```python
import torch

def _softmax(x, axis=-1):
    return torch.softmax(x, dim=axis)

def _gelu(x):
    return torch.nn.functional.gelu(x, approximate='tanh')

def _silu(x):
    return torch.nn.functional.silu(x)

def _sigmoid(x):
    return torch.sigmoid(x)

def _layernorm(x, axis=-1, eps=1e-05):
    m = x.mean(dim=axis, keepdim=True)
    v = x.var(dim=axis, keepdim=True, unbiased=False)
    return (x - m) / torch.sqrt(v + eps)

def _scatter_add(tgt, idx, src, axis=0):
    return tgt.clone().index_add_(axis, idx, src)

def _segment_sum(src, seg, n):
    out = torch.zeros((n,) + src.shape[1:], dtype=src.dtype)
    return out.index_add_(0, seg, src)

def _pad(x, pw):
    flat = tuple((v for pair in reversed(pw) for v in pair))
    return torch.nn.functional.pad(x, flat)
kernel_name = 'concat_heads__memory_aug_recurrent_mem_tr__spectral_gfnet__prompt'

def setup_inputs():

    _w = lambda a: (lambda t: t.to(torch.bfloat16) if t.is_floating_point() else t)(torch.as_tensor(a))

    def _A_setup():
        B, S, Dm = (1, 2048, 1024)
        H, Dh = (32, 128)
        M, seg = (8, 32)
        seg = min(seg, S)
        S = S // seg * seg
        return {'x': _w((lambda *s: torch.randn(*s, dtype=torch.bfloat16) * 0.05)(B, S, Dm)), 'mem0': _w((lambda *s: torch.randn(*s, dtype=torch.bfloat16) * 0.4)(B, M, Dm)), 'Wq': _w((lambda *s: torch.randn(*s, dtype=torch.bfloat16) * 6.4)(Dm, H, Dh) * Dm ** (-0.5)), 'Wk': _w((lambda *s: torch.randn(*s, dtype=torch.bfloat16) * 6.4)(Dm, H, Dh) * Dm ** (-0.5)), 'Wv': _w((lambda *s: torch.randn(*s, dtype=torch.bfloat16) * 0.4)(Dm, H, Dh) * Dm ** (-0.5)), 'Wo': _w((lambda *s: torch.randn(*s, dtype=torch.bfloat16) * 0.4)(H, Dh, Dm) * (H * Dh) ** (-0.5)), 'seg_len': seg}
    _A_in = _A_setup()

    def _B_setup():
        B, S, D = (1, 2048, 1024)
        Df = D // 2 + 1
        return {'x': _w((lambda *s: torch.randn(*s, dtype=torch.bfloat16) * 0.05)(B, S, D)), 'w_r': _w((lambda *s: torch.randn(*s, dtype=torch.bfloat16) * 3.2)(S, Df) * 0.02), 'w_i': _w((lambda *s: torch.randn(*s, dtype=torch.bfloat16) * 3.2)(S, Df) * 0.02)}
    _B_in = _B_setup()
    return {'A_x': _A_in['x'], 'A_mem0': _A_in['mem0'], 'A_Wq': _A_in['Wq'], 'A_Wk': _A_in['Wk'], 'A_Wv': _A_in['Wv'], 'A_Wo': _A_in['Wo'], 'A_seg_len': _A_in['seg_len'], 'B_x': _B_in['x'], 'B_w_r': _B_in['w_r'], 'B_w_i': _B_in['w_i']}

def reference(A_x, A_mem0, A_Wq, A_Wk, A_Wv, A_Wo, A_seg_len, B_x, B_w_r, B_w_i):

    def _A_ref(x, mem0, Wq, Wk, Wv, Wo, seg_len):
        B, S, Dm = x.shape
        H, Dh = (Wq.shape[1], Wq.shape[2])
        M = mem0.shape[1]
        scale = Dh ** (-0.5)
        n_seg = S // seg_len
        L = M + seg_len
        idx = torch.arange(L)
        mask = (idx[:, None] < M) | (idx[:, None] >= idx[None, :])
        mem = mem0
        outs = []
        for s in range(n_seg):
            xs = x[:, s * seg_len:(s + 1) * seg_len, :].clone()
            h = torch.concatenate([mem, xs], axis=1)
            q = torch.einsum('btd,dhe->bhte', h, Wq)
            k = torch.einsum('btd,dhe->bhte', h, Wk)
            v = torch.einsum('btd,dhe->bhte', h, Wv)
            scores = torch.einsum('bhqe,bhke->bhqk', q, k) * scale
            scores = torch.where(mask[None, None], scores, -1000000000.0)
            p = _softmax(scores, axis=-1)
            o = torch.einsum('bhqk,bhke->bhqe', p, v)
            o = torch.einsum('bhte,hed->btd', o, Wo)
            mem = o[:, :M, :].clone()
            outs.append(o[:, M:, :])
        return torch.concatenate(outs, axis=1)

    def _B_ref(x, w_r, w_i):
        B, S, D = x.shape
        X = (lambda x, axes=(-2, -1): torch.fft.rfft2(x.float(), dim=axes))(x, axes=(-2, -1))
        W = w_r + 1j * w_i
        X = X * W
        y = (lambda x, s, axes=(-2, -1): torch.fft.irfft2(x, s=s, dim=axes).to(torch.bfloat16))(X, (S, D), axes=(-2, -1))
        return y
    a = _A_ref(A_x, A_mem0, A_Wq, A_Wk, A_Wv, A_Wo, A_seg_len)
    b = _B_ref(B_x, B_w_r, B_w_i)
    return torch.concatenate([a, b], axis=-1)
```

```python
KNAME = "concat_heads__memory_aug_recurrent_mem_tr__spectral_gfnet__prompt"

MB = 1 << 20
WS_QX = 0
WS_KX = 16 * MB
WS_VT = 32 * MB
WS_O = 48 * MB
WS_MEM = 64 * MB
WS_QKVM = 74 * MB
WS_PART = 88 * MB
WS_T1 = 92 * MB
WS_T2 = 104 * MB
WS_BYTES = 256 * MB

KA_AX, KA_MEM0, KA_WQ, KA_WK, KA_WV, KA_WO, KA_SEG, KA_BX, KA_WR, KA_WI, KA_OUT, KA_DBG, KA_WS = [8 * i for i in range(13)]


class Asm:
    def __init__(self):
        self.lines = []
        self.uid = 0

    def __call__(self, s):
        for l in s.strip("\n").split("\n"):
            self.lines.append("    " + l.strip())

    def label(self, name):
        self.lines.append(name + ":")

    def newlabel(self, base="L"):
        self.uid += 1
        return f"{base}_{self.uid}"

    def comment(self, s):
        self.lines.append("    ; " + s)

    def text(self):
        return "\n".join(self.lines) + "\n"

    def kernel_begin(self, name):
        self.lines.append(f".globl {name}")
        self.lines.append(".p2align 8")
        self.lines.append(f".type {name},@function")
        self.lines.append(f"{name}:")

    def nops(self, n):
        while n > 0:
            k = min(n, 16)
            self(f"s_nop {k-1}")
            n -= k


def vr(base, n=1):
    return f"v{base}" if n == 1 else f"v[{base}:{base+n-1}]"


def ar(base, n=1):
    return f"a{base}" if n == 1 else f"a[{base}:{base+n-1}]"


def sr(base, n=1):
    return f"s{base}" if n == 1 else f"s[{base}:{base+n-1}]"


def kd(name, vgpr, sgpr=102, accum=None, ids="x"):
    if accum is None:
        accum = (vgpr + 3) // 4 * 4
    s = f""".p2align 6
.amdhsa_kernel {name}
  .amdhsa_next_free_vgpr {vgpr}
  .amdhsa_next_free_sgpr {sgpr}
  .amdhsa_accum_offset {accum}
  .amdhsa_group_segment_fixed_size 0
  .amdhsa_kernarg_size 104
  .amdhsa_user_sgpr_count 2
  .amdhsa_user_sgpr_kernarg_segment_ptr 1
  .amdhsa_system_sgpr_workgroup_id_x 1
.end_amdhsa_kernel
"""
    return s


import os
HEADER = open(os.path.join(os.path.dirname(os.path.abspath(__file__)), "..", KNAME + ".s.ref")).read().split("; Override launch geometry")[0]
```

```python
from gen_common import *

SC = "sc1"


def gen_rec(a: Asm, name, nsteps=64, prof=False):
    a.kernel_begin(name)
    NST = 8
    def stamp(i):
        if not prof: return
        a("s_memtime s[66:67]")
        a("s_waitcnt lgkmcnt(0)")
        a("s_sub_u32 s68, s66, s69")
        a(f"s_add_u32 s{70+i}, s{70+i}, s68")
        a("s_mov_b32 s69, s66")
    S_WS, S_W1, S_WO, S_M0 = 4, 8, 12, 16
    S_WAVE, S_H, S_J, S_STEP = 20, 21, 22, 23
    S_T0, S_T1, S_T2, S_T3 = 24, 25, 32, 33
    S_MASKN8, S_MASKLO32, S_MASK8 = 26, 28, 30
    S_SOFF_MEM, S_SOFF_QKVM, S_SOFF_X, S_SOFF_PART = 34, 35, 36, 37
    S_NEGMASK = 38
    S_C = 40
    S_MEMSRD = 44
    V_LANE, V_G, V_M = 1, 2, 3
    V_OMEM, V_OQK, V_OVTM, V_OKX0, V_OKX1, V_OVTX, V_OPUB1, V_OPART, V_ORED, V_OMPUB = 4, 5, 6, 7, 8, 9, 10, 11, 12, 13
    V_T0, V_T1 = 14, 15
    V_R = 16
    V_Q, V_KM, V_VTM = 80, 96, 112
    V_KX, V_VTX = 128, 160
    V_S = 192
    V_O = 204
    V_OB = 236
    V_P = 16
    V_TMP = 24
    A_W1, A_WO = 0, 128

    if prof:
        for i in range(NST + 4):
            a(f"s_mov_b32 s{70+i}, 0")
        a("s_memtime s[66:67]")
        a("s_waitcnt lgkmcnt(0)")
        a("s_mov_b32 s69, s66")
    a(f"""
    s_cmp_ge_u32 s2, 256
    s_cbranch_scc1 {name}_end
    s_load_dwordx2 s[{S_WS}:{S_WS+1}], s[0:1], {KA_WS}
    s_load_dwordx2 s[{S_M0}:{S_M0+1}], s[0:1], {KA_MEM0}
    s_load_dwordx2 s[{S_WO}:{S_WO+1}], s[0:1], {KA_WO}
    s_load_dwordx2 s[48:49], s[0:1], {KA_WQ}
    s_load_dwordx2 s[50:51], s[0:1], {KA_WK}
    s_load_dwordx2 s[52:53], s[0:1], {KA_WV}
    v_lshrrev_b32 v{V_T0}, 6, v0
    v_and_b32 v{V_LANE}, 63, v0
    v_readfirstlane_b32 s{S_WAVE}, v{V_T0}
    v_lshrrev_b32 v{V_G}, 4, v{V_LANE}
    v_and_b32 v{V_M}, 15, v{V_LANE}
    s_and_b32 s{S_H}, s2, 31
    s_lshr_b32 s{S_J}, s2, 5
    s_waitcnt lgkmcnt(0)
    s_mov_b32 s{S_WS+2}, {WS_BYTES}
    s_mov_b32 s{S_WS+3}, 0x00020000
    s_mov_b32 s{S_M0+2}, 16384
    s_mov_b32 s{S_M0+3}, 0x00020000
    s_mov_b32 s{S_WO+2}, {8*MB}
    s_mov_b32 s{S_WO+3}, 0x00020000
    s_mov_b32 s{S_W1+2}, {8*MB}
    s_mov_b32 s{S_W1+3}, 0x00020000
    s_cmp_eq_u32 s{S_WAVE}, 1
    s_cselect_b32 s{S_W1}, s50, s48
    s_cselect_b32 s{S_W1+1}, s51, s49
    s_cmp_eq_u32 s{S_WAVE}, 2
    s_cselect_b32 s{S_W1}, s52, s{S_W1}
    s_cselect_b32 s{S_W1+1}, s53, s{S_W1+1}
    s_mov_b32 s{S_MASKN8}, 0x00ff00ff
    s_mov_b32 s{S_MASKN8+1}, 0x00ff00ff
    s_mov_b32 s{S_MASKLO32}, -1
    s_mov_b32 s{S_MASKLO32+1}, 0
    s_mov_b32 s{S_MASK8}, 0xff
    s_mov_b32 s{S_MASK8+1}, 0
    s_mov_b32 s{S_NEGMASK}, 0
    s_mov_b32 s{S_NEGMASK+1}, -1
    s_mov_b32 s{S_C}, 0x3e0293ee   ; 128^-0.5 * log2(e) = 0.12751743
    """)
    a(f"""
    v_and_b32 v{V_T0}, 7, v{V_M}
    v_lshlrev_b32 v{V_OMEM}, 11, v{V_T0}
    v_lshrrev_b32 v{V_T1}, 3, v{V_M}
    v_lshlrev_b32 v{V_T1}, 10, v{V_T1}
    v_add_u32 v{V_OMEM}, v{V_OMEM}, v{V_T1}
    v_lshl_add_u32 v{V_OMEM}, v{V_G}, 4, v{V_OMEM}
    v_lshlrev_b32 v{V_OQK}, 8, v{V_T0}
    v_lshl_add_u32 v{V_OQK}, v{V_G}, 4, v{V_OQK}
    v_and_b32 v{V_T1}, 1, v{V_G}
    v_lshlrev_b32 v{V_OVTM}, 4, v{V_M}
    v_lshl_add_u32 v{V_OVTM}, v{V_T1}, 3, v{V_OVTM}
    v_add_u32 v{V_OVTM}, 4096, v{V_OVTM}
    s_lshl_b32 s{S_T0}, s{S_H}, 8
    s_add_u32 s{S_T0}, s{S_T0}, {WS_KX}
    v_lshlrev_b32 v{V_OKX0}, 13, v{V_M}
    v_lshl_add_u32 v{V_OKX0}, v{V_G}, 4, v{V_OKX0}
    v_add_u32 v{V_OKX0}, s{S_T0}, v{V_OKX0}
    v_add_u32 v{V_OKX1}, 0x20000, v{V_OKX0}
    s_lshl_b32 s{S_T0}, s{S_H}, 13
    s_add_u32 s{S_T0}, s{S_T0}, {WS_VT}
    v_lshlrev_b32 v{V_OVTX}, 6, v{V_M}
    v_lshl_add_u32 v{V_OVTX}, v{V_G}, 4, v{V_OVTX}
    v_add_u32 v{V_OVTX}, s{S_T0}, v{V_OVTX}
    s_lshl_b32 s{S_T0}, s{S_J}, 2
    s_add_u32 s{S_T0}, s{S_T0}, s{S_WAVE}
    s_lshl_b32 s{S_T0}, s{S_T0}, 12
    s_lshl_b32 s{S_T1}, s{S_H}, 7
    s_add_u32 s{S_T0}, s{S_T0}, s{S_T1}
    v_lshlrev_b32 v{V_OPART}, 17, v{V_M}
    v_lshl_add_u32 v{V_OPART}, v{V_G}, 4, v{V_OPART}
    v_add_u32 v{V_OPART}, s{S_T0}, v{V_OPART}
    s_lshl_b32 s{S_T0}, s2, 12
    v_lshlrev_b32 v{V_ORED}, 4, v{V_LANE}
    v_add_u32 v{V_ORED}, s{S_T0}, v{V_ORED}
    s_lshr_b32 s{S_T0}, s2, 5
    s_lshl_b32 s{S_T0}, s{S_T0}, 11
    s_and_b32 s{S_T1}, s2, 31
    s_lshl_b32 s{S_T1}, s{S_T1}, 6
    s_add_u32 s{S_T0}, s{S_T0}, s{S_T1}
    v_lshlrev_b32 v{V_OMPUB}, 3, v{V_LANE}
    v_add_u32 v{V_OMPUB}, s{S_T0}, v{V_OMPUB}
    s_lshl_b32 s{S_T0}, s{S_WAVE}, 11
    s_lshl_b32 s{S_T1}, s{S_J}, 5
    s_add_u32 s{S_T0}, s{S_T0}, s{S_T1}
    v_lshlrev_b32 v{V_OPUB1}, 8, v{V_M}
    v_lshl_add_u32 v{V_OPUB1}, v{V_G}, 3, v{V_OPUB1}
    v_add_u32 v{V_OPUB1}, s{S_T0}, v{V_OPUB1}
    s_cmp_eq_u32 s{S_WAVE}, 2
    s_cbranch_scc0 {name}_pub1_done
    s_lshl_b32 s{S_T0}, s{S_J}, 8
    s_add_u32 s{S_T0}, s{S_T0}, 4096
    v_lshlrev_b32 v{V_OPUB1}, 4, v{V_M}
    v_lshl_add_u32 v{V_OPUB1}, v{V_G}, 3, v{V_OPUB1}
    v_add_u32 v{V_OPUB1}, s{S_T0}, v{V_OPUB1}
    """)
    a.label(f"{name}_pub1_done")
    a(f"""
    s_lshl_b32 s{S_T0}, s{S_H}, 18
    s_lshl_b32 s{S_T1}, s{S_J}, 8
    s_add_u32 s{S_T0}, s{S_T0}, s{S_T1}
    s_lshl_b32 s{S_T1}, s{S_WAVE}, 6
    s_add_u32 s{S_T0}, s{S_T0}, s{S_T1}
    v_lshlrev_b32 v{V_T0}, 13, v{V_G}
    v_lshl_add_u32 v{V_T0}, v{V_M}, 1, v{V_T0}
    v_add_u32 v{V_T0}, s{S_T0}, v{V_T0}
    """)
    for t in range(2):
        for u in range(4):
            for i in range(8):
                e = 32 * u + 16 * (i >> 2) + (i & 3)
                a(f"s_mov_b32 s{S_T1}, {e*2048}")
                a(f"buffer_load_ushort v{V_R + (t*4+u)*8 + i}, v{V_T0}, s[{S_WO}:{S_WO+3}], s{S_T1} offen offset:{32*t}")
    a("s_waitcnt vmcnt(0)")
    for f in range(8):
        for i in range(4):
            a(f"v_lshl_or_b32 v{V_T1}, v{V_R + f*8 + 2*i + 1}, 16, v{V_R + f*8 + 2*i}")
            a(f"v_accvgpr_write_b32 a{A_WO + f*4 + i}, v{V_T1}")
    a(f"""
    s_cmp_eq_u32 s{S_WAVE}, 3
    s_cbranch_scc1 {name}_w1_done
    s_lshl_b32 s{S_T0}, s{S_H}, 8
    s_lshl_b32 s{S_T1}, s{S_J}, 5
    s_add_u32 s{S_T0}, s{S_T0}, s{S_T1}
    v_lshlrev_b32 v{V_T0}, 16, v{V_G}
    v_lshl_add_u32 v{V_T0}, v{V_M}, 1, v{V_T0}
    v_add_u32 v{V_T0}, s{S_T0}, v{V_T0}
    """)
    for tb in range(4):
        for t in range(8 * tb, 8 * tb + 8):
            for i in range(8):
                k = 32 * t + i
                a(f"s_mov_b32 s{S_T1}, {k*8192}")
                a(f"buffer_load_ushort v{V_R + (t & 7)*8 + i}, v{V_T0}, s[{S_W1}:{S_W1+3}], s{S_T1} offen")
        a("s_waitcnt vmcnt(0)")
        for t in range(8 * tb, 8 * tb + 8):
            for i in range(4):
                a(f"v_lshl_or_b32 v{V_T1}, v{V_R + (t & 7)*8 + 2*i + 1}, 16, v{V_R + (t & 7)*8 + 2*i}")
                a(f"v_accvgpr_write_b32 a{A_W1 + t*4 + i}, v{V_T1}")
    a.label(f"{name}_w1_done")
    a(f"""
    s_mov_b32 s{S_STEP}, 0
    s_waitcnt vmcnt(0)
    """)
    stamp(0)

    def prefetch_x():
        a(f"s_lshl_b32 s{S_SOFF_X}, s{S_STEP}, 18")
        for tt in range(2):
            for t in range(4):
                a(f"buffer_load_dwordx4 v[{V_KX+16*tt+4*t}:{V_KX+16*tt+4*t+3}], v{V_OKX0 if tt==0 else V_OKX1}, s[{S_WS}:{S_WS+3}], s{S_SOFF_X} offen offset:{64*t}")
        a(f"v_add_u32 v{V_T1}, 4096, v{V_OVTX}")
        for T in range(8):
            vo = V_OVTX if T < 4 else V_T1
            a(f"buffer_load_dwordx4 v[{V_VTX+4*T}:{V_VTX+4*T+3}], v{vo}, s[{S_WS}:{S_WS+3}], s{S_SOFF_X} offen offset:{1024*(T&3)}")

    prefetch_x()

    a.label(f"{name}_loop")
    a(f"""
    s_lshl_b32 s{S_SOFF_MEM}, s{S_STEP}, 14
    s_add_u32 s{S_SOFF_MEM}, s{S_SOFF_MEM}, {WS_MEM}
    s_lshl_b32 s{S_T0}, s{S_STEP}, 5
    s_add_u32 s{S_T0}, s{S_T0}, s{S_H}
    s_mul_i32 s{S_SOFF_QKVM}, s{S_T0}, 6144
    s_add_u32 s{S_SOFF_QKVM}, s{S_SOFF_QKVM}, {WS_QKVM}
    s_and_b32 s{S_T0}, s{S_STEP}, 1
    s_lshl_b32 s{S_SOFF_PART}, s{S_T0}, 20
    s_add_u32 s{S_SOFF_PART}, s{S_SOFF_PART}, {WS_PART}
    s_cmp_eq_u32 s{S_WAVE}, 3
    s_cbranch_scc1 {name}_phaseB
    s_cmp_eq_u32 s{S_STEP}, 0
    s_cselect_b32 s{S_MEMSRD}, s{S_M0}, s{S_WS}
    s_cselect_b32 s{S_MEMSRD+1}, s{S_M0+1}, s{S_WS+1}
    s_cselect_b32 s{S_MEMSRD+2}, s{S_M0+2}, s{S_WS+2}
    s_mov_b32 s{S_MEMSRD+3}, 0x00020000
    s_cselect_b32 s{S_SOFF_MEM}, 0, s{S_SOFF_MEM}
    """)
    a.label(f"{name}_poll1")
    for t in range(16):
        a(f"buffer_load_dwordx4 v[{V_R+4*t}:{V_R+4*t+3}], v{V_OMEM}, s[{S_MEMSRD}:{S_MEMSRD+3}], s{S_SOFF_MEM} offen offset:{64*t} {SC}")
    a("s_waitcnt vmcnt(0)")

    def check(regs, tmp, target):
        regs = list(regs)
        a(f"v_max3_u32 v{tmp}, v{regs[0]}, v{regs[1]}, v{regs[2]}")
        rest = regs[3:]
        while len(rest) >= 2:
            a(f"v_max3_u32 v{tmp}, v{tmp}, v{rest[0]}, v{rest[1]}")
            rest = rest[2:]
        if rest:
            a(f"v_max_u32 v{tmp}, v{tmp}, v{rest[0]}")
        a(f"v_cmp_eq_u32 vcc, -1, v{tmp}")
        a(f"s_cbranch_vccnz {target}")

    if prof: a("s_add_u32 s78, s78, 1")
    check(range(V_R, V_R + 64), V_T0, f"{name}_poll1")
    stamp(1)
    LO, HI = V_S, V_S + 4
    a(f"""
    s_cmp_eq_u32 s{S_WAVE}, 2
    s_cbranch_scc1 {name}_p1v
    """)
    for t in range(16):
        c0 = "0" if t == 0 else f"v[{LO}:{LO+3}]"
        c1 = "0" if t == 0 else f"v[{HI}:{HI+3}]"
        a(f"v_mfma_f32_16x16x32_bf16 v[{LO}:{LO+3}], a[{A_W1+4*t}:{A_W1+4*t+3}], v[{V_R+4*t}:{V_R+4*t+3}], {c0}")
        a(f"v_mfma_f32_16x16x32_bf16 v[{HI}:{HI+3}], a[{A_W1+4*(t+16)}:{A_W1+4*(t+16)+3}], v[{V_R+4*t}:{V_R+4*t+3}], {c1}")
    a.nops(8)
    for r in range(4):
        a(f"v_add_f32_dpp v{LO+r}, v{HI+r}, v{LO+r} row_ror:8 row_mask:0xf bank_mask:0xf")
    a(f"""
    v_cvt_pk_bf16_f32 v{HI}, v{LO}, v{LO+1}
    v_cvt_pk_bf16_f32 v{HI+1}, v{LO+2}, v{LO+3}
    v_min_u32 v{HI}, -2, v{HI}
    v_min_u32 v{HI+1}, -2, v{HI+1}
    s_mov_b64 exec, s[{S_MASKN8}:{S_MASKN8+1}]
    buffer_store_dwordx2 v[{HI}:{HI+1}], v{V_OPUB1}, s[{S_WS}:{S_WS+3}], s{S_SOFF_QKVM} offen {SC}
    s_mov_b64 exec, -1
    s_branch {name}_p1done
    """)
    a.label(f"{name}_p1v")
    for t in range(16):
        c0 = "0" if t == 0 else f"v[{LO}:{LO+3}]"
        c1 = "0" if t == 0 else f"v[{HI}:{HI+3}]"
        a(f"v_mfma_f32_16x16x32_bf16 v[{LO}:{LO+3}], v[{V_R+4*t}:{V_R+4*t+3}], a[{A_W1+4*t}:{A_W1+4*t+3}], {c0}")
        a(f"v_mfma_f32_16x16x32_bf16 v[{HI}:{HI+3}], v[{V_R+4*t}:{V_R+4*t+3}], a[{A_W1+4*(t+16)}:{A_W1+4*(t+16)+3}], {c1}")
    a.nops(8)
    Y = V_S + 8
    for r in range(4):
        a(f"v_permlane32_swap_b32 v{HI+r}, v{Y+r}")
    a.nops(1)
    for r in range(4):
        a(f"v_add_f32 v{LO+r}, v{LO+r}, v{Y+r}")
    a(f"""
    v_cvt_pk_bf16_f32 v{HI}, v{LO}, v{LO+1}
    v_cvt_pk_bf16_f32 v{HI+1}, v{LO+2}, v{LO+3}
    v_min_u32 v{HI}, -2, v{HI}
    v_min_u32 v{HI+1}, -2, v{HI+1}
    s_mov_b64 exec, s[{S_MASKLO32}:{S_MASKLO32+1}]
    buffer_store_dwordx2 v[{HI}:{HI+1}], v{V_OPUB1}, s[{S_WS}:{S_WS+3}], s{S_SOFF_QKVM} offen {SC}
    s_mov_b64 exec, -1
    """)
    a.label(f"{name}_p1done")
    stamp(2)
    a.label(f"{name}_phaseB")
    a(f"""
    s_cmp_eq_u32 s{S_STEP}, {nsteps-1}
    s_cbranch_scc1 {name}_end
    """)
    a.label(f"{name}_poll2")
    for t in range(4):
        a(f"buffer_load_dwordx4 v[{V_Q+4*t}:{V_Q+4*t+3}], v{V_OQK}, s[{S_WS}:{S_WS+3}], s{S_SOFF_QKVM} offen offset:{64*t} {SC}")
    for t in range(4):
        a(f"buffer_load_dwordx4 v[{V_KM+4*t}:{V_KM+4*t+3}], v{V_OQK}, s[{S_WS}:{S_WS+3}], s{S_SOFF_QKVM} offen offset:{2048+64*t} {SC}")
    for T in range(8):
        a(f"buffer_load_dwordx2 v[{V_VTM+2*T}:{V_VTM+2*T+1}], v{V_OVTM}, s[{S_WS}:{S_WS+3}], s{S_SOFF_QKVM} offen offset:{256*T} {SC}")
    a("s_waitcnt vmcnt(0)")
    if prof: a("s_add_u32 s79, s79, 1")
    check(range(V_Q, V_Q + 48), V_T0, f"{name}_poll2")
    stamp(3)
    for t in range(4):
        for tile in range(3):
            src = (V_KX + 16 * tile + 4 * t) if tile < 2 else (V_KM + 4 * t)
            d = V_S + 4 * tile
            c = "0" if t == 0 else f"v[{d}:{d+3}]"
            a(f"v_mfma_f32_16x16x32_bf16 v[{d}:{d+3}], v[{src}:{src+3}], v[{V_Q+4*t}:{V_Q+4*t+3}], {c}")
    a.nops(8)
    a(f"v_mov_b32 v{V_T1}, 0xff7fffff")
    for r in range(4):
        a(f"v_cndmask_b32 v{V_S+8+r}, v{V_S+8+r}, v{V_T1}, s[{S_NEGMASK}:{S_NEGMASK+1}]")
    MX, TM = V_TMP, V_TMP + 1
    a(f"v_max3_f32 v{MX}, v{V_S}, v{V_S+1}, v{V_S+2}")
    for i in range(3, 11, 2):
        a(f"v_max3_f32 v{MX}, v{MX}, v{V_S+i}, v{V_S+i+1}")
    a(f"v_max_f32 v{MX}, v{MX}, v{V_S+11}")

    def allreduce(op, x, tmp):
        for sw in ("v_permlane16_swap_b32", "v_permlane32_swap_b32"):
            a(f"v_mov_b32 v{tmp}, v{x}")
            a.nops(2)
            a(f"{sw} v{x}, v{tmp}")
            a.nops(1)
            a(f"{op} v{x}, v{x}, v{tmp}")

    allreduce("v_max_f32", MX, TM)
    a(f"v_mul_f32 v{MX}, s{S_C}, v{MX}")
    for i in range(12):
        a(f"v_fma_f32 v{V_S+i}, v{V_S+i}, s{S_C}, -v{MX}")
    for i in range(12):
        a(f"v_exp_f32 v{V_S+i}, v{V_S+i}")
    a.nops(1)
    SM = V_TMP + 2
    a(f"v_add_f32 v{SM}, v{V_S}, v{V_S+1}")
    for i in range(2, 12):
        a(f"v_add_f32 v{SM}, v{SM}, v{V_S+i}")
    allreduce("v_add_f32", SM, TM)
    a(f"v_rcp_f32 v{SM}, v{SM}")
    a.nops(1)
    for i in range(12):
        a(f"v_mul_f32 v{V_S+i}, v{V_S+i}, v{SM}")
    for i in range(6):
        a(f"v_cvt_pk_bf16_f32 v{V_P+i}, v{V_S+2*i}, v{V_S+2*i+1}")
    a.nops(2)
    for T in range(8):
        d = V_O + 4 * T
        a(f"v_mfma_f32_16x16x32_bf16 v[{d}:{d+3}], v[{V_VTX+4*T}:{V_VTX+4*T+3}], v[{V_P}:{V_P+3}], 0")
    for T in range(8):
        d = V_O + 4 * T
        a(f"v_mfma_f32_16x16x16_bf16 v[{d}:{d+3}], v[{V_VTM+2*T}:{V_VTM+2*T+1}], v[{V_P+4}:{V_P+5}], v[{d}:{d+3}]")
    a(f"s_add_u32 s{S_STEP}, s{S_STEP}, 1")
    a.nops(4)
    prefetch_x()
    for i in range(16):
        a(f"v_cvt_pk_bf16_f32 v{V_OB+i}, v{V_O+2*i}, v{V_O+2*i+1}")
    a.nops(2)
    F = V_S
    for u in range(4):
        for t in range(2):
            d = F + 4 * t
            c = "0" if u == 0 else f"v[{d}:{d+3}]"
            wo = A_WO + (t * 4 + u) * 4
            a(f"v_mfma_f32_16x16x32_bf16 v[{d}:{d+3}], a[{wo}:{wo+3}], v[{V_OB+4*u}:{V_OB+4*u+3}], {c}")
    a.nops(8)
    for i in range(8):
        a(f"v_min_u32 v{F+i}, -2, v{F+i}")
    a(f"""
    s_mov_b64 exec, s[{S_MASKN8}:{S_MASKN8+1}]
    buffer_store_dwordx4 v[{F}:{F+3}], v{V_OPART}, s[{S_WS}:{S_WS+3}], s{S_SOFF_PART} offen {SC}
    buffer_store_dwordx4 v[{F+4}:{F+7}], v{V_OPART}, s[{S_WS}:{S_WS+3}], s{S_SOFF_PART} offen offset:64 {SC}
    s_mov_b64 exec, -1
    """)
    stamp(4)
    a(f"""
    s_cmp_eq_u32 s{S_WAVE}, 3
    s_cbranch_scc0 {name}_loop
    """)
    RR = V_R
    a.label(f"{name}_poll3")
    for i in range(4):
        a(f"buffer_load_dwordx4 v[{RR+4*i}:{RR+4*i+3}], v{V_ORED}, s[{S_WS}:{S_WS+3}], s{S_SOFF_PART} offen offset:{1024*i} {SC}")
    a("s_waitcnt vmcnt(0)")
    if prof: a("s_add_u32 s80, s80, 1")
    check(range(RR, RR + 16), V_T0, f"{name}_poll3")
    stamp(5)
    for r in range(4):
        a(f"v_add_f32 v{RR+r}, v{RR+r}, v{RR+4+r}")
        a(f"v_add_f32 v{RR+8+r}, v{RR+8+r}, v{RR+12+r}")
    for r in range(4):
        a(f"v_add_f32 v{RR+r}, v{RR+r}, v{RR+8+r}")
    a.nops(2)
    for r in range(4):
        a(f"v_add_f32_dpp v{RR+r}, v{RR+r}, v{RR+r} row_ror:8 row_mask:0xf bank_mask:0xf")
    for sw in ("v_permlane16_swap_b32", "v_permlane32_swap_b32"):
        for r in range(4):
            a(f"v_mov_b32 v{RR+4+r}, v{RR+r}")
        a.nops(2)
        for r in range(4):
            a(f"{sw} v{RR+r}, v{RR+4+r}")
        a.nops(1)
        for r in range(4):
            a(f"v_add_f32 v{RR+r}, v{RR+r}, v{RR+4+r}")
    a(f"""
    v_cvt_pk_bf16_f32 v{RR+4}, v{RR}, v{RR+1}
    v_cvt_pk_bf16_f32 v{RR+5}, v{RR+2}, v{RR+3}
    v_min_u32 v{RR+4}, -2, v{RR+4}
    v_min_u32 v{RR+5}, -2, v{RR+5}
    v_mov_b32 v{RR+8}, -1
    v_mov_b32 v{RR+9}, -1
    v_mov_b32 v{RR+10}, -1
    v_mov_b32 v{RR+11}, -1
    s_lshl_b32 s{S_SOFF_MEM}, s{S_STEP}, 14
    s_add_u32 s{S_SOFF_MEM}, s{S_SOFF_MEM}, {WS_MEM}
    s_mov_b64 exec, s[{S_MASK8}:{S_MASK8+1}]
    buffer_store_dwordx2 v[{RR+4}:{RR+5}], v{V_OMPUB}, s[{S_WS}:{S_WS+3}], s{S_SOFF_MEM} offen {SC}
    s_mov_b64 exec, -1
    """)
    for i in range(4):
        a(f"buffer_store_dwordx4 v[{RR+8}:{RR+11}], v{V_ORED}, s[{S_WS}:{S_WS+3}], s{S_SOFF_PART} offen offset:{1024*i} {SC}")
    stamp(6)
    a(f"s_branch {name}_loop")
    a.label(f"{name}_end")
    if prof:
        a(f"""
        s_cmp_lg_u32 s2, 0
        s_cbranch_scc1 {name}_end2
        s_load_dwordx2 s[60:61], s[0:1], {KA_DBG}
        s_waitcnt lgkmcnt(0)
        s_mov_b32 s62, 256
        s_mov_b32 s63, 0x00020000
        s_mul_i32 s64, s{S_WAVE}, 48
        """)
        for i in range(12):
            a(f"v_mov_b32 v{V_T0}, s{70+i}")
            a(f"v_mov_b32 v{V_T1}, {4*i}")
            a(f"s_mov_b64 exec, 1")
            a(f"buffer_store_dword v{V_T0}, v{V_T1}, s[60:63], s64 offen")
            a(f"s_mov_b64 exec, -1")
        a.label(f"{name}_end2")
    a("s_endpgm")
    return kd(name, 512, sgpr=96, accum=256)


if __name__ == "__main__":
    a = Asm()
    name = "rec_kernel"
    import sys
    k = gen_rec(a, name, prof=(len(sys.argv) > 1))
    out = HEADER + f"; @launch kernel={name} grid=(256,1,1) block=(256,1,1) lds=0\n"
    out += '.amdgcn_target "amdgcn-amd-amdhsa--gfx950"\n.text\n' + a.text() + '.section .rodata,"a"\n' + k
    open("rec_only.s", "w").write(out)
```

```python
import os
KNAME = "concat_heads__memory_aug_recurrent_mem_tr__spectral_gfnet__prompt"
MB = 1 << 20
WS_BYTES = 256 * MB
KA_AX, KA_MEM0, KA_WQ, KA_WK, KA_WV, KA_WO, KA_SEG, KA_BX, KA_WR, KA_WI, KA_OUT, KA_DBG, KA_WS = [8 * i for i in range(13)]


class Asm:
    def __init__(self):
        self.lines = []
        self.uid = 0

    def __call__(self, s):
        for l in s.strip("\n").split("\n"):
            l = l.strip()
            if not l:
                continue
            if l.endswith(":") and " " not in l:
                self.lines.append(l)
            else:
                self.lines.append("    " + l)

    def label(self, name):
        self.lines.append(name + ":")

    def newlabel(self, base="L"):
        self.uid += 1
        return f"{base}_{self.uid}"

    def text(self):
        return "\n".join(self.lines) + "\n"

    def kernel_begin(self, name):
        self.lines.append(f".globl {name}")
        self.lines.append(".p2align 8")
        self.lines.append(f".type {name},@function")
        self.lines.append(f"{name}:")

    def nops(self, n):
        while n > 0:
            k = min(n, 16)
            self(f"s_nop {k-1}")
            n -= k


def kd(name, vgpr, sgpr=102, accum=None):
    if accum is None:
        accum = (vgpr + 3) // 4 * 4
    return f""".p2align 6
.amdhsa_kernel {name}
  .amdhsa_next_free_vgpr {vgpr}
  .amdhsa_next_free_sgpr {sgpr}
  .amdhsa_accum_offset {accum}
  .amdhsa_group_segment_fixed_size 0
  .amdhsa_kernarg_size 104
  .amdhsa_user_sgpr_count 2
  .amdhsa_user_sgpr_kernarg_segment_ptr 1
  .amdhsa_system_sgpr_workgroup_id_x 1
.end_amdhsa_kernel
"""


HEADER = open(os.path.join(os.path.dirname(os.path.abspath(__file__)), "..", KNAME + ".s.ref")).read().split("; Override launch geometry")[0]


def write_file(path, kernels):
    out = HEADER
    for n, t, k, g, b, l in kernels:
        out += f"; @launch kernel={n} grid=({g},1,1) block=({b},1,1) lds={l}\n"
    out += '.amdgcn_target "amdgcn-amd-amdhsa--gfx950"\n.text\n'
    seen = set()
    for n, t, k, g, b, l in kernels:
        if n in seen: continue
        seen.add(n)
        out += t
    out += '.section .rodata,"a"\n'
    seen = set()
    for n, t, k, g, b, l in kernels:
        if n in seen: continue
        seen.add(n)
        out += k
    open(path, "w").write(out)
```

```python
import math, struct
from common import *
WS_T1 = 92 * MB
WS_T2 = 104 * MB

WS_WT = 116 * MB
SCALE = 0.5 / (2048.0 * 1024.0)


def flit(x):
    return "0x%08x" % struct.unpack("<I", struct.pack("<f", x))[0]


class RegFFT:
    def __init__(self, a, re, im, temps):
        self.a, self.re, self.im, self.t = a, list(re), list(im), list(temps)

    def fft(self, sign):
        a = self.a
        n = len(self.re)
        re, im = self.re, self.im
        span = n // 2
        while span >= 1:
            for start in range(0, n, 2 * span):
                for j in range(span):
                    p, q = start + j, start + j + span
                    num, den = j, 2 * span
                    tr, ti = self.t[0], self.t[1]
                    if num == 0:
                        a(f"v_sub_f32 v{tr}, v{re[p]}, v{re[q]}")
                        a(f"v_sub_f32 v{ti}, v{im[p]}, v{im[q]}")
                        a(f"v_add_f32 v{re[p]}, v{re[p]}, v{re[q]}")
                        a(f"v_add_f32 v{im[p]}, v{im[p]}, v{im[q]}")
                        self.t[0], re[q] = re[q], tr
                        self.t[1], im[q] = im[q], ti
                    elif 4 * num == den:
                        if sign > 0:
                            a(f"v_sub_f32 v{tr}, v{im[q]}, v{im[p]}")
                            a(f"v_sub_f32 v{ti}, v{re[p]}, v{re[q]}")
                        else:
                            a(f"v_sub_f32 v{tr}, v{im[p]}, v{im[q]}")
                            a(f"v_sub_f32 v{ti}, v{re[q]}, v{re[p]}")
                        a(f"v_add_f32 v{re[p]}, v{re[p]}, v{re[q]}")
                        a(f"v_add_f32 v{im[p]}, v{im[p]}, v{im[q]}")
                        self.t[0], re[q] = re[q], tr
                        self.t[1], im[q] = im[q], ti
                    else:
                        c = math.cos(2 * math.pi * num / den)
                        s = sign * math.sin(2 * math.pi * num / den)
                        a(f"v_sub_f32 v{tr}, v{re[p]}, v{re[q]}")
                        a(f"v_sub_f32 v{ti}, v{im[p]}, v{im[q]}")
                        a(f"v_add_f32 v{re[p]}, v{re[p]}, v{re[q]}")
                        a(f"v_add_f32 v{im[p]}, v{im[p]}, v{im[q]}")
                        a(f"v_mul_f32 v{re[q]}, {flit(c)}, v{tr}")
                        a(f"v_mul_f32 v{im[q]}, {flit(s)}, v{tr}")
                        a(f"v_fmac_f32 v{re[q]}, {flit(-s)}, v{ti}")
                        a(f"v_fmac_f32 v{im[q]}, {flit(c)}, v{ti}")
            span //= 2
        bits = n.bit_length() - 1
        rev = [int(format(i, f"0{bits}b")[::-1], 2) for i in range(n)]
        self.re = [re[rev[i]] for i in range(n)]
        self.im = [im[rev[i]] for i in range(n)]

    def twiddle(self, vx, den, sign, scale_idx=1):
        a = self.a
        re, im = self.re, self.im
        tA, tC, tS, tR = self.t[0], self.t[1], self.t[2], self.t[3]
        for k in range(1, len(re)):
            a(f"v_mul_f32 v{tA}, {flit(sign * k / den)}, v{vx}")
            a(f"v_cos_f32 v{tC}, v{tA}")
            a(f"v_sin_f32 v{tS}, v{tA}")
            a("s_nop 0")
            a(f"v_mul_f32 v{tR}, v{re[k]}, v{tC}")
            a(f"v_fma_f32 v{tR}, -v{im[k]}, v{tS}, v{tR}")
            a(f"v_mul_f32 v{im[k]}, v{im[k]}, v{tC}")
            a(f"v_fmac_f32 v{im[k]}, v{re[k]}, v{tS}")
            self.t[3], re[k] = re[k], tR
            tR = self.t[3]


def srd(a, s, ptr_lo, nbytes):
    a(f"s_mov_b32 s{s+2}, {nbytes}")
    a(f"s_mov_b32 s{s+3}, 0x00020000")


def fft1024(a, F, v_tau_f, v_lw, v_lr, sign):
    F.fft(sign)
    F.twiddle(v_tau_f, 1024.0, sign)
    for k in range(32):
        a(f"ds_write_b32 v{v_lw}, v{F.re[k]} offset:{k*264}")
        a(f"ds_write_b32 v{v_lw}, v{F.im[k]} offset:{k*264+4}")
    a("s_waitcnt lgkmcnt(0)")
    for n in range(32):
        a(f"ds_read_b32 v{F.re[n]}, v{v_lr} offset:{n*8}")
        a(f"ds_read_b32 v{F.im[n]}, v{v_lr} offset:{n*8+4}")
        if n % 7 == 6:
            a("s_waitcnt lgkmcnt(0)")
    a("s_waitcnt lgkmcnt(0)")
    F.fft(sign)


def gen_f0(a: Asm, name, role=None, noend=False):
    SI = "s2" if role is None else f"s{role}"
    if role is None:
        a.kernel_begin(name)
        a(f"s_cmp_ge_u32 s2, 288\ns_cbranch_scc1 {name}_end")
    a(f"""
    s_load_dwordx2 s[4:5], s[0:1], {KA_WR}
    s_load_dwordx2 s[8:9], s[0:1], {KA_WI}
    s_load_dwordx2 s[12:13], s[0:1], {KA_WS}
    s_and_b32 s16, {SI}, 31       ; k0 tile
    s_lshr_b32 s17, {SI}, 5
    v_and_b32 v1, 63, v0
    v_lshrrev_b32 v2, 6, v0
    s_waitcnt lgkmcnt(0)
    s_mov_b32 s6, {2048*513*2}
    s_mov_b32 s7, 0x00020000
    s_mov_b32 s10, {2048*513*2}
    s_mov_b32 s11, 0x00020000
    s_add_u32 s12, s12, {WS_WT}
    s_addc_u32 s13, s13, 0
    s_mov_b32 s14, {513*8192}
    s_mov_b32 s15, 0x00020000
    s_lshl_b32 s18, s16, 6
    v_add_u32 v3, s18, v2
    s_movk_i32 s19, 1026
    v_mul_lo_u32 v3, v3, s19
    s_lshl_b32 s18, s17, 7
    v_add_u32 v3, s18, v3
    v_lshl_add_u32 v3, v1, 1, v3
    """)
    for i in range(16):
        a(f"s_mov_b32 s18, {4*1026*i}")
        a(f"buffer_load_ushort v{16+i}, v3, s[4:7], s18 offen")
        a(f"buffer_load_ushort v{32+i}, v3, s[8:11], s18 offen")
    a(f"""
    v_mul_u32_u24 v4, 65, v1
    v_add_u32 v4, v4, v2
    v_lshlrev_b32 v4, 2, v4
    s_waitcnt vmcnt(0)
    """)
    for i in range(16):
        a(f"v_lshl_or_b32 v{16+i}, v{32+i}, 16, v{16+i}")
        a(f"ds_write_b32 v4, v{16+i} offset:{16*i}")
    a(f"""
    v_lshrrev_b32 v7, 4, v0
    v_and_b32 v8, 15, v0
    v_mul_u32_u24 v5, 65, v7
    v_lshl_add_u32 v5, v8, 2, v5
    v_lshlrev_b32 v5, 2, v5
    s_waitcnt lgkmcnt(0)
    s_barrier
    """)
    for i in range(4):
        for r in range(4):
            a(f"ds_read_b32 v{16+4*i+r}, v5 offset:{16*65*4*i + 4*r}")
    a(f"""
    s_lshl_b32 s18, s17, 6
    v_add_u32 v6, s18, v7
    v_lshlrev_b32 v6, 13, v6
    s_lshl_b32 s18, s16, 8
    v_add_u32 v6, s18, v6
    v_lshl_add_u32 v6, v8, 4, v6
    s_waitcnt lgkmcnt(0)
    """)
    for i in range(4):
        a(f"s_mov_b32 s18, {16*8192*i}")
        a(f"buffer_store_dwordx4 v[{16+4*i}:{19+4*i}], v6, s[12:15], s18 offen{' sc1' if noend else ''}")
    if noend:
        return
    if role is not None:
        a("s_endpgm")
        return 288
    a.label(f"{name}_end")
    a("s_endpgm")
    return kd(name, 48, sgpr=24), 288, 64 * 65 * 4


def gen_f1(a: Asm, name, role=None):
    ST = "s2" if role is None else f"s{role}"
    SCX = "" if role is None else " sc1"
    if role is None:
        a.kernel_begin(name)
        a(f"s_cmp_ge_u32 s2, 128\ns_cbranch_scc1 {name}_end")
    else:
        a("s_barrier")
    V_TAU, V_F, V_TAUF, V_LW, V_LR, V_T0, V_T1, V_T2 = 1, 2, 3, 4, 5, 6, 7, 8
    RE = list(range(16, 48)); IM = list(range(48, 80)); TMP = list(range(80, 84))
    FB = 8448
    a(f"""
    s_load_dwordx2 s[4:5], s[0:1], {KA_BX}
    s_load_dwordx2 s[8:9], s[0:1], {KA_WS}
    v_and_b32 v{V_TAU}, 31, v0
    v_lshrrev_b32 v{V_F}, 5, v0
    v_cvt_f32_u32 v{V_TAUF}, v{V_TAU}
    s_waitcnt lgkmcnt(0)
    s_mov_b32 s6, {4*MB}
    s_mov_b32 s7, 0x00020000
    s_mov_b32 s10, {WS_BYTES}
    s_mov_b32 s11, 0x00020000
    s_lshl_b32 s12, {ST}, 15
    v_lshlrev_b32 v{V_T0}, 12, v{V_F}
    v_lshl_add_u32 v{V_T0}, v{V_TAU}, 1, v{V_T0}
    """)
    for i in range(32):
        a(f"buffer_load_ushort v{RE[i]}, v{V_T0}, s[4:7], s12 offen offset:{64*i}")
        a(f"buffer_load_ushort v{IM[i]}, v{V_T0}, s[4:7], s12 offen offset:{2048+64*i}")
    a(f"""
    s_movk_i32 s13, {FB}
    v_mul_lo_u32 v{V_T1}, v{V_F}, s13
    v_lshl_add_u32 v{V_LW}, v{V_TAU}, 3, v{V_T1}
    s_movk_i32 s13, 264
    v_mul_lo_u32 v{V_LR}, v{V_TAU}, s13
    v_add_u32 v{V_LR}, v{V_LR}, v{V_T1}
    s_waitcnt vmcnt(0)
    """)
    for i in range(32):
        a(f"v_lshlrev_b32 v{RE[i]}, 16, v{RE[i]}")
        a(f"v_lshlrev_b32 v{IM[i]}, 16, v{IM[i]}")
    F = RegFFT(a, RE, IM, TMP)
    fft1024(a, F, V_TAUF, V_LW, V_LR, -1)
    for i in range(32):
        a(f"ds_write_b32 v{V_LW}, v{F.re[i]} offset:{256*i}")
        a(f"ds_write_b32 v{V_LW}, v{F.im[i]} offset:{256*i+4}")
    a("s_waitcnt lgkmcnt(0)\ns_barrier")
    a(f"""
    v_and_b32 v{V_T0}, 7, v0
    v_lshrrev_b32 v{V_T1}, 3, v0
    s_movk_i32 s13, {FB}
    v_mul_lo_u32 v{V_T2}, v{V_T0}, s13          ; f*FB
    v_lshl_add_u32 v{V_LW}, v{V_T1}, 3, v{V_T2}
    ; global: T1 + k*16384 + (16b + 2f)*8
    v_lshlrev_b32 v{V_LR}, 14, v{V_T1}
    v_lshl_add_u32 v{V_LR}, v{V_T0}, 4, v{V_LR}
    s_lshl_b32 s12, {ST}, 7
    s_add_u32 s12, s12, {WS_T1}
    """)
    for it in range(17):
        a(f"""
        v_sub_u32 v{V_T0}, {1024 - 32*it}, v{V_T1}
        v_and_b32 v{V_T0}, 1023, v{V_T0}
        v_lshl_add_u32 v{V_T0}, v{V_T0}, 3, v{V_T2}
        ds_read_b64 v[16:17], v{V_LW} offset:{256*it}
        ds_read_b64 v[18:19], v{V_T0}
        s_waitcnt lgkmcnt(0)
        v_add_f32 v20, v16, v18      ; ar+br
        v_sub_f32 v21, v17, v19      ; ai-bi
        v_add_f32 v22, v17, v19      ; ai+bi
        v_sub_f32 v23, v18, v16      ; br-ar
        s_mov_b32 s13, s12
        """)
        if it == 16:
            a(f"v_cmp_eq_u32 vcc, 0, v{V_T1}")
            a("s_and_saveexec_b64 s[14:15], vcc")
        a(f"s_add_u32 s13, s12, {it * 32 * 16384}")
        a(f"buffer_store_dwordx4 v[20:23], v{V_LR}, s[8:11], s13 offen{SCX}")
        a.nops(2)
    if role is not None:
        a("s_mov_b64 exec, -1")
        return
    a.label(f"{name}_end")
    a("s_endpgm")
    return kd(name, 96, sgpr=24), 128, 8 * FB


def gen_f3(a: Asm, name, role=None):
    ST = "s2" if role is None else f"s{role}"
    if role is None:
        a.kernel_begin(name)
        a(f"s_cmp_ge_u32 s2, 128\ns_cbranch_scc1 {name}_end")
    else:
        a("s_barrier")
    V_TAU, V_F, V_TAUF, V_LW, V_LR, V_T0, V_T1, V_T2 = 1, 2, 3, 4, 5, 6, 7, 8
    RE = list(range(16, 48)); IM = list(range(48, 80)); TMP = list(range(80, 84))
    FB = 8448
    a(f"""
    s_load_dwordx2 s[4:5], s[0:1], {KA_OUT}
    s_load_dwordx2 s[8:9], s[0:1], {KA_WS}
    v_and_b32 v{V_T0}, 7, v0
    v_lshrrev_b32 v{V_T1}, 3, v0
    s_movk_i32 s13, {FB}
    v_mul_lo_u32 v{V_T2}, v{V_T0}, s13          ; f*FB
    v_lshl_add_u32 v{V_LW}, v{V_T1}, 3, v{V_T2}
    v_lshlrev_b32 v{V_LR}, 14, v{V_T1}
    v_lshl_add_u32 v{V_LR}, v{V_T0}, 4, v{V_LR}
    s_lshl_b32 s12, {ST}, 7
    s_add_u32 s12, s12, {WS_T2}
    s_waitcnt lgkmcnt(0)
    s_mov_b32 s6, {8*MB}
    s_mov_b32 s7, 0x00020000
    s_mov_b32 s10, {WS_BYTES}
    s_mov_b32 s11, 0x00020000
    """)
    for it in range(17):
        a(f"s_add_u32 s13, s12, {it * 32 * 16384}")
        a(f"buffer_load_dwordx4 v[{16+4*it}:{19+4*it}], v{V_LR}, s[8:11], s13 offen")
    a("s_waitcnt vmcnt(0)")
    a(f"v_cmp_eq_u32 vcc, 0, v{V_T1}")
    a.nops(2)
    a("v_mov_b32 v9, 0")
    for it in (0, 16):
        b = 16 + 4 * it
        a(f"v_cndmask_b32 v{b+1}, v{b+1}, v9, vcc")
        a(f"v_cndmask_b32 v{b+3}, v{b+3}, v9, vcc")
    for it in range(17):
        b = 16 + 4 * it
        if it == 16:
            a("s_and_saveexec_b64 s[14:15], vcc")
        a(f"""
        v_sub_u32 v{V_T0}, {1024 - 32*it}, v{V_T1}
        v_and_b32 v{V_T0}, 1023, v{V_T0}
        v_lshl_add_u32 v{V_T0}, v{V_T0}, 3, v{V_T2}
        v_sub_f32 v10, v{b}, v{b+3}
        v_add_f32 v11, v{b+1}, v{b+2}
        v_add_f32 v12, v{b}, v{b+3}
        v_sub_f32 v13, v{b+2}, v{b+1}
        ds_write_b64 v{V_LW}, v[10:11] offset:{256*it}
        ds_write_b64 v{V_T0}, v[12:13]
        """)
        if it == 16:
            a("s_mov_b64 exec, s[14:15]")
    a(f"""
    s_waitcnt lgkmcnt(0)
    s_barrier
    v_and_b32 v{V_TAU}, 31, v0
    v_lshrrev_b32 v{V_F}, 5, v0
    v_cvt_f32_u32 v{V_TAUF}, v{V_TAU}
    s_movk_i32 s13, {FB}
    v_mul_lo_u32 v{V_T1}, v{V_F}, s13
    v_lshl_add_u32 v{V_LW}, v{V_TAU}, 3, v{V_T1}
    s_movk_i32 s13, 264
    v_mul_lo_u32 v{V_LR}, v{V_TAU}, s13
    v_add_u32 v{V_LR}, v{V_LR}, v{V_T1}
    """)
    for i in range(32):
        a(f"ds_read_b32 v{RE[i]}, v{V_LW} offset:{256*i}")
        a(f"ds_read_b32 v{IM[i]}, v{V_LW} offset:{256*i+4}")
        if i % 7 == 6:
            a("s_waitcnt lgkmcnt(0)")
    a("s_waitcnt lgkmcnt(0)")
    F = RegFFT(a, RE, IM, TMP)
    fft1024(a, F, V_TAUF, V_LW, V_LR, +1)
    a(f"v_lshl_add_u32 v{V_T0}, v{V_TAU}, 2, v{V_T1}")
    for i in range(32):
        a(f"ds_write_b32 v{V_T0}, v{F.re[i]} offset:{128*i}")
        a(f"ds_write_b32 v{V_T0}, v{F.im[i]} offset:{4096+128*i}")
    a("s_waitcnt lgkmcnt(0)\ns_barrier")
    a(f"""
    v_and_b32 v{V_T0}, 127, v0
    v_lshrrev_b32 v{V_T1}, 7, v0
    v_lshlrev_b32 v{V_T2}, 5, v{V_T0}            ; c*32 B (lds)
    v_lshl_add_u32 v{V_T2}, v{V_T1}, 12, v{V_T2}  ; + ab*4096
    v_lshlrev_b32 v{V_LR}, 4, v{V_T0}
    v_lshl_add_u32 v{V_LR}, v{V_T1}, 12, v{V_LR}
    v_add_u32 v{V_LR}, 2048, v{V_LR}
    s_lshl_b32 s12, {ST}, 16
    """)
    for j in range(8):
        a(f"""
        ds_read_b128 v[16:19], v{V_T2} offset:{FB*j}
        ds_read_b128 v[20:23], v{V_T2} offset:{FB*j+16}
        s_waitcnt lgkmcnt(0)
        v_cvt_pk_bf16_f32 v24, v16, v17
        v_cvt_pk_bf16_f32 v25, v18, v19
        v_cvt_pk_bf16_f32 v26, v20, v21
        v_cvt_pk_bf16_f32 v27, v22, v23
        s_add_u32 s13, s12, {8192*j}
        buffer_store_dwordx4 v[24:27], v{V_LR}, s[4:7], s13 offen
        s_nop 1
        """)
    if role is not None:
        return
    a.label(f"{name}_end")
    a("s_endpgm")
    return kd(name, 96, sgpr=24), 128, 8 * FB


def gen_f2(a: Asm, name, role=None):
    ST = "s2" if role is None else f"s{role}"
    SCX = "" if role is None else " sc1"
    if role is None:
        a.kernel_begin(name)
    else:
        a("s_barrier")
    V_L, V_LF, V_LW, V_LR, V_T0, V_T1, V_B, V_K1F, V_SG, V_BF = 1, 2, 3, 4, 5, 6, 7, 8, 9, 10
    RE = [16 + 2 * i for i in range(32)]; IM = [17 + 2 * i for i in range(32)]; TMP = list(range(80, 88))
    WB = 32 * 66 * 8
    a(f"""
    s_load_dwordx2 s[8:9], s[0:1], {KA_WS}
    v_lshrrev_b32 v{V_T0}, 6, v0
    v_and_b32 v{V_L}, 63, v0
    v_readfirstlane_b32 s12, v{V_T0}
    s_lshl_b32 s13, {ST}, 2
    s_add_u32 s13, s13, s12          ; column
    s_cmp_ge_u32 s13, 513
    s_cbranch_scc1 {name}_end
    v_cvt_f32_u32 v{V_LF}, v{V_L}
    s_waitcnt lgkmcnt(0)
    s_mov_b32 s10, {WS_BYTES}
    s_mov_b32 s11, 0x00020000
    s_lshl_b32 s14, s13, 14          ; col*16384
    s_add_u32 s15, s14, {WS_T1}
    v_lshlrev_b32 v{V_T0}, 3, v{V_L}
    """)
    for i in range(32):
        a(f"s_add_u32 s16, s15, {512*i}")
        a(f"buffer_load_dwordx2 v[{RE[i]}:{IM[i]}], v{V_T0}, s[8:11], s16 offen")
    a(f"""
    s_mul_i32 s17, s12, {WB}
    v_lshlrev_b32 v{V_LW}, 3, v{V_L}
    v_add_u32 v{V_LW}, s17, v{V_LW}
    v_and_b32 v{V_B}, 1, v{V_L}
    v_lshrrev_b32 v{V_T1}, 1, v{V_L}          ; k1
    v_cvt_f32_u32 v{V_K1F}, v{V_T1}
    v_cvt_f32_u32 v{V_BF}, v{V_B}
    s_movk_i32 s18, 528
    v_mul_lo_u32 v{V_LR}, v{V_T1}, s18
    v_lshl_add_u32 v{V_LR}, v{V_B}, 3, v{V_LR}
    v_add_u32 v{V_LR}, s17, v{V_LR}
    ; sign = 1 - 2b
    v_mov_b32 v{V_SG}, 1.0
    v_fma_f32 v{V_SG}, v{V_BF}, -2.0, v{V_SG}
    ; W offset: b*4096 + k1*4 (+128 k2')
    v_lshlrev_b32 v{V_T0}, 12, v{V_B}
    v_lshl_add_u32 v11, v{V_T1}, 2, v{V_T0}
    s_lshl_b32 s19, s13, 13
    s_add_u32 s19, s19, {WS_WT}
    s_waitcnt vmcnt(0)
    """)
    F = RegFFT(a, RE, IM, TMP)
    F.fft(-1)
    F.twiddle(V_LF, 2048.0, -1)
    for k in range(32):
        a(f"ds_write_b32 v{V_LW}, v{F.re[k]} offset:{k*528}")
        a(f"ds_write_b32 v{V_LW}, v{F.im[k]} offset:{k*528+4}")
    a("s_waitcnt lgkmcnt(0)")
    for m in range(32):
        a(f"ds_read_b32 v{F.re[m]}, v{V_LR} offset:{m*16}")
        a(f"ds_read_b32 v{F.im[m]}, v{V_LR} offset:{m*16+4}")
        if m % 7 == 6:
            a("s_waitcnt lgkmcnt(0)")
    a("s_waitcnt lgkmcnt(0)")
    WR = 88
    for k in range(32):
        a(f"buffer_load_dword v{WR+k}, v11, s[8:11], s19 offen offset:{128*k}")
    F.fft(-1)
    F.twiddle(V_BF, 64.0, -1)
    tA = F.t[0]

    def cross():
        for k in range(32):
            for arr in (F.re, F.im):
                a(f"v_mov_b32_dpp v{F.t[0]}, v{arr[k]} quad_perm:[1,0,3,2] row_mask:0xf bank_mask:0xf")
                a(f"v_fma_f32 v{arr[k]}, v{arr[k]}, v{V_SG}, v{F.t[0]}")
    a.nops(2)
    cross()
    a("s_waitcnt vmcnt(0)")
    a(f"s_mov_b32 s20, {flit(SCALE)}")
    for k in range(32):
        t0, t1, t2 = F.t[0], F.t[1], F.t[2]
        a(f"v_lshlrev_b32 v{t0}, 16, v{WR+k}")
        a(f"v_and_b32 v{t1}, 0xffff0000, v{WR+k}")
        a(f"v_mul_f32 v{t0}, s20, v{t0}")
        a(f"v_mul_f32 v{t1}, s20, v{t1}")
        a(f"v_mul_f32 v{t2}, v{F.re[k]}, v{t0}")
        a(f"v_fma_f32 v{t2}, -v{F.im[k]}, v{t1}, v{t2}")
        a(f"v_mul_f32 v{F.im[k]}, v{F.im[k]}, v{t0}")
        a(f"v_fmac_f32 v{F.im[k]}, v{F.re[k]}, v{t1}")
        F.t[2], F.re[k] = F.re[k], t2
    a.nops(2)
    cross()
    F.twiddle(V_BF, 64.0, +1)
    F.fft(+1)
    F.twiddle_n2 = None
    a(f"v_mul_f32 v12, v{V_BF}, v{V_K1F}")
    a(f"v_mul_f32 v12, {flit(1.0/2048.0)}, v12")
    tA, tC, tS, tR = F.t[0], F.t[1], F.t[2], F.t[3]
    for m in range(32):
        a(f"v_mov_b32 v{tA}, v12")
        a(f"v_fmac_f32 v{tA}, {flit(2.0*m/2048.0)}, v{V_K1F}")
        a(f"v_cos_f32 v{tC}, v{tA}")
        a(f"v_sin_f32 v{tS}, v{tA}")
        a("s_nop 0")
        a(f"v_mul_f32 v{tR}, v{F.re[m]}, v{tC}")
        a(f"v_fma_f32 v{tR}, -v{F.im[m]}, v{tS}, v{tR}")
        a(f"v_mul_f32 v{F.im[m]}, v{F.im[m]}, v{tC}")
        a(f"v_fmac_f32 v{F.im[m]}, v{F.re[m]}, v{tS}")
        F.t[3], F.re[m] = F.re[m], tR
        tR = F.t[3]
    for m in range(32):
        a(f"ds_write_b32 v{V_LR}, v{F.re[m]} offset:{m*16}")
        a(f"ds_write_b32 v{V_LR}, v{F.im[m]} offset:{m*16+4}")
    a("s_waitcnt lgkmcnt(0)")
    for k in range(32):
        a(f"ds_read_b32 v{F.re[k]}, v{V_LW} offset:{k*528}")
        a(f"ds_read_b32 v{F.im[k]}, v{V_LW} offset:{k*528+4}")
        if k % 7 == 6:
            a("s_waitcnt lgkmcnt(0)")
    a("s_waitcnt lgkmcnt(0)")
    F.fft(+1)
    a(f"s_add_u32 s15, s14, {WS_T2}")
    a(f"v_lshlrev_b32 v{V_T0}, 3, v{V_L}")
    for i in range(32):
        a(f"s_add_u32 s16, s15, {512*i}")
        pr = 88 + 2 * (i % 8)
        a(f"v_mov_b32 v{pr}, v{F.re[i]}")
        a(f"v_mov_b32 v{pr+1}, v{F.im[i]}")
        a(f"buffer_store_dwordx2 v[{pr}:{pr+1}], v{V_T0}, s[8:11], s16 offen{SCX}")
    a.label(f"{name}_end")
    if role is not None:
        return
    a("s_endpgm")
    return kd(name, 120, sgpr=24), 129, 4 * WB
```

```python
from common import *
import json, sys
R = 200
BUF = 8 * MB
RES = 200 * MB

def ticket(a, name, nx):
    a(f"""
    s_load_dwordx2 s[4:5], s[0:1], {KA_WS}
    s_load_dwordx2 s[72:73], s[0:1], {KA_DBG}
    s_getreg_b32 s90, hwreg(HW_REG_XCC_ID)
    s_and_b32 s90, s90, 7
    s_waitcnt lgkmcnt(0)
    s_mov_b32 s6, {WS_BYTES}
    s_mov_b32 s7, 0x00020000
    s_mov_b32 s74, 256
    s_mov_b32 s75, 0x00020000
    v_mov_b32 v1, 0
    v_mov_b32 v2, 1
    v_mov_b32 v3, 1
    s_lshl_b32 s91, s90, 4
    s_mov_b32 s40, 0
    v_cmp_eq_u32 vcc, 0, v0
    s_and_saveexec_b64 s[88:89], vcc
    s_cbranch_execz {name}_tkd
    buffer_atomic_add v2, v1, s[72:75], s91 offen sc0
    s_waitcnt vmcnt(0)
    buffer_atomic_add v3, v1, s[72:75], 0 offen offset:128 sc0
    s_waitcnt vmcnt(0)
    ds_write_b64 v1, v[2:3]
    s_waitcnt lgkmcnt(0)
    {name}_tkw:
    s_add_u32 s40, s40, 1
    s_cmp_gt_u32 s40, 200000
    s_cbranch_scc1 {name}_tkd
    buffer_load_dword v4, v1, s[72:75], 0 offen offset:128 sc1
    s_waitcnt vmcnt(0)
    v_cmp_ne_u32 vcc, 256, v4
    s_cbranch_vccnz {name}_tkw
    {name}_tkd:
    s_mov_b64 exec, s[88:89]
    s_barrier
    ds_read_b64 v[2:3], v1
    s_waitcnt lgkmcnt(0)
    v_readfirstlane_b32 s96, v2
    s_barrier
    """)


def gen(name, hops, xa=0, xb=1, delay=0):
    a = Asm(); a.kernel_begin(name)
    ticket(a, name, 2)
    a(f"""
    s_cmp_eq_u32 s90, {xa}
    s_cselect_b32 s30, 0, 2
    s_cmp_eq_u32 s90, {xb}
    s_cselect_b32 s30, 1, s30
    s_cmp_ge_u32 s30, 2
    s_cbranch_scc1 {name}_end
    s_cmp_ge_u32 s96, 32
    s_cbranch_scc1 {name}_end
    s_mov_b32 s31, s96
    s_xor_b32 s32, s30, 1
    v_lshrrev_b32 v2, 6, v0
    v_and_b32 v1, 63, v0
    v_readfirstlane_b32 s33, v2
    v_lshlrev_b32 v3, 4, v1        ; lane*16
    s_mov_b32 s40, 0
    s_mov_b32 s12, 1
    """)
    for i, h in enumerate(hops):
        B = BUF + i * 4 * MB
        k = h["k"]
        ss, sl, sl2 = 44 + 4 * i, 45 + 4 * i, 46 + 4 * i
        vs = 8 + i
        if k == "ag":
            pb = h.get("pb", 512)
            tot = pb * 32
            a(f"""
            s_mul_i32 s{ss}, s30, {tot}
            s_mul_i32 s20, s31, {pb}
            s_add_u32 s{ss}, s{ss}, s20
            s_add_u32 s{ss}, s{ss}, {B}
            s_mul_i32 s{sl}, s30, {tot}
            s_mul_i32 s20, s33, {tot // 4}
            s_add_u32 s{sl}, s{sl}, s20
            s_add_u32 s{sl}, s{sl}, {B}
            s_mul_i32 s{sl2}, s32, {tot}
            s_add_u32 s{sl2}, s{sl2}, s20
            s_add_u32 s{sl2}, s{sl2}, {B}
            """)
        elif k == "a2a":
            pb = h.get("pb", 512)
            per = 1024 // pb
            a(f"""
            s_mul_i32 s{ss}, s30, {pb * 1024}
            s_mul_i32 s20, s31, {pb}
            s_add_u32 s{ss}, s{ss}, s20
            s_mul_i32 s20, s33, {8 * 32 * pb}
            s_add_u32 s{ss}, s{ss}, s20
            s_add_u32 s{ss}, s{ss}, {B}
            s_mul_i32 s{sl}, s30, {pb * 1024}
            s_mul_i32 s20, s31, {pb * 32}
            s_add_u32 s{sl}, s{sl}, s20
            s_mul_i32 s20, s33, {0 if h.get('one') else pb * 8}
            s_add_u32 s{sl}, s{sl}, s20
            s_add_u32 s{sl}, s{sl}, {B}
            """)
            if per == 1:
                a(f"v_mov_b32 v{vs}, v3")
            else:
                lpp = 64 // per
                a(f"""
                v_lshrrev_b32 v{vs}, {lpp.bit_length()-1}, v1
                v_mul_u32_u24 v{vs}, {pb*32}, v{vs}
                v_and_b32 v2, {lpp-1}, v1
                v_lshl_add_u32 v{vs}, v2, 4, v{vs}
                """)
        elif k == "a2b":
            pb = h.get("pb", 256)
            lpp = pb // 16
            a(f"""
            s_mul_i32 s{ss}, s30, {pb * 1024}
            s_mul_i32 s20, s31, {pb * 32}
            s_add_u32 s{ss}, s{ss}, s20
            s_mul_i32 s20, s33, {8 * pb}
            s_add_u32 s{ss}, s{ss}, s20
            s_add_u32 s{ss}, s{ss}, {B}
            s_mul_i32 s{sl}, s30, {pb * 1024}
            s_mul_i32 s20, s31, {pb}
            s_add_u32 s{sl}, s{sl}, s20
            s_mul_i32 s20, s33, {0 if h.get('one') else pb * 32 * 8}
            s_add_u32 s{sl}, s{sl}, s20
            s_add_u32 s{sl}, s{sl}, {B}
            v_lshrrev_b32 v{vs}, {lpp.bit_length()-1}, v1
            v_mul_u32_u24 v{vs}, {pb*32}, v{vs}
            v_and_b32 v2, {lpp-1}, v1
            v_lshl_add_u32 v{vs}, v2, 4, v{vs}
            """)
        elif k == "pair":
            a(f"""
            s_lshl_b32 s{ss}, s30, 5
            s_add_u32 s{ss}, s{ss}, s31
            s_xor_b32 s{sl}, s{ss}, {32 if h.get('cross') else 1}
            s_mul_i32 s{ss}, s{ss}, {h.get('stride', 4096)}
            s_mul_i32 s{sl}, s{sl}, {h.get('stride', 4096)}
            s_add_u32 s{ss}, s{ss}, {B}
            s_add_u32 s{sl}, s{sl}, {B}
            """)
            if h.get("allw"):
                a(f"s_lshl_b32 s20, s33, 10\ns_add_u32 s{ss}, s{ss}, s20")
                if h["allw"] == 1: a(f"s_add_u32 s{sl}, s{sl}, s20")
    a("s_barrier\ns_memtime s[36:37]\ns_waitcnt lgkmcnt(0)")
    a.label(f"{name}_loop")
    for i in range(4):
        a(f"v_mov_b32 v{4+i}, s12")
    for i, h in enumerate(hops):
        k = h["k"]
        ss, sl, sl2 = 44 + 4 * i, 45 + 4 * i, 46 + 4 * i
        vs = 8 + i
        ld = h.get("ld", "sc1")
        loads = []
        lv = 3
        if delay:
            a(f"s_sleep {delay}")
        if k == "ag":
            pb = h.get("pb", 512)
            mode = h.get("mode", "local")
            a(f"s_cmp_lg_u32 s33, {h.get('sw', 0)}\ns_cbranch_scc1 {name}_ns{i}")
            if pb == 512: a("s_mov_b64 exec, 0xffffffff")
            if pb == 256: a("s_mov_b64 exec, 0xffff")
            if mode == "local":
                a(f"buffer_store_dwordx4 v[4:7], v3, s[4:7], s{ss} offen")
            elif mode in ("remote", "both1"):
                a(f"buffer_store_dwordx4 v[4:7], v3, s[4:7], s{ss} offen sc1")
            elif mode == "both2":
                a(f"s_add_u32 s20, s{ss}, {MB}")
                a(f"buffer_store_dwordx4 v[4:7], v3, s[4:7], s20 offen sc1")
                a(f"buffer_store_dwordx4 v[4:7], v3, s[4:7], s{ss} offen")
            a("s_mov_b64 exec, -1")
            a.label(f"{name}_ns{i}")
            n = pb * 32 // 4096
            if mode == "local": loads = [(f"s{sl}", 1024 * j) for j in range(n)]
            elif mode == "remote": loads = [(f"s{sl2}", 1024 * j) for j in range(n)]
            elif mode == "both1": loads = [(f"s{sl2}", 1024 * j) for j in range(n)] + [(f"s{sl}", 1024 * j) for j in range(n)]
            elif mode == "both2":
                a(f"s_add_u32 s21, s{sl2}, {MB}")
                loads = [("s21", 1024 * j) for j in range(n)] + [(f"s{sl}", 1024 * j) for j in range(n)]
        elif k == "a2a":
            pb = h.get("pb", 512)
            per = 1024 // pb
            for j in range(8 // per):
                a(f"s_add_u32 s20, s{ss}, {j * per * pb * 32}")
                a(f"buffer_store_dwordx4 v[4:7], v{vs}, s[4:7], s20 offen {h.get('st','')}")
            loads = [(f"s{sl}", 1024 * j) for j in range(pb * (32 if h.get('one') else 8) // 1024)]
            if h.get("one"):
                a(f"s_cmp_lg_u32 s33, {h.get('pw', 0)}\ns_cbranch_scc1 {name}_ok{i}")
        elif k == "a2b":
            pb = h.get("pb", 256)
            per = 1024 // pb
            for j in range(8 // per):
                a(f"buffer_store_dwordx4 v[4:7], v3, s[4:7], s{ss} offen offset:{1024*j} {h.get('st','')}")
            loads = [(f"s{sl}", per * pb * 32 * j) for j in range((32 if h.get('one') else 8) // per)]
            lv = vs
            if h.get("one"):
                a(f"s_cmp_lg_u32 s33, {h.get('pw', 0)}\ns_cbranch_scc1 {name}_ok{i}")
        elif k == "pair":
            n = h.get("n", 1)
            if not h.get("allw"): a(f"s_cmp_lg_u32 s33, 0\ns_cbranch_scc1 {name}_ns{i}")
            for j in range(n):
                a(f"buffer_store_dwordx4 v[4:7], v3, s[4:7], s{ss} offen offset:{1024*j} {h.get('st', 'sc1' if h.get('cross') else '')}")
            a.label(f"{name}_ns{i}")
            loads = [(f"s{sl}", 1024 * j) for j in range(4 if h.get("allw") == 2 else n)]
            if h.get("one"):
                a(f"s_cmp_lg_u32 s33, {h.get('pw', 0)}\ns_cbranch_scc1 {name}_ok{i}")
        D = h.get("pp", 1)
        nl = len(loads)
        def issue(slot):
            for j, (sb, off) in enumerate(loads):
                if off >= 4096:
                    a(f"s_add_u32 s22, {sb}, {off & ~4095}")
                    sb = "s22"
                b = 16 + 4 * (slot * nl + j)
                a(f"buffer_load_dwordx4 v[{b}:{b+3}], v{lv}, s[4:7], {sb} offen offset:{off & 4095} {ld}")
        if h.get("pre"):
            a.nops(h["pre"])
        for sl_ in range(D):
            issue(sl_)
            if sl_ + 1 < D: a.nops(h.get("stag", 16))
        a.label(f"{name}_p{i}")
        for sl_ in range(D):
            a(f"""
            s_add_u32 s40, s40, 1
            s_cmp_gt_u32 s40, 100000
            s_cbranch_scc1 {name}_fin
            """)
            a(f"s_waitcnt vmcnt({(D-1)*nl})")
            regs = [16 + 4 * (sl_ * nl + j) for j in range(nl)]
            a(f"v_mov_b32 v2, v{regs[0]}")
            rest = regs[1:]
            while len(rest) >= 2:
                a(f"v_min3_u32 v2, v2, v{rest[0]}, v{rest[1]}"); rest = rest[2:]
            if rest: a(f"v_min_u32 v2, v2, v{rest[0]}")
            a(f"""
            v_cmp_gt_u32 vcc, s12, v2
            s_cbranch_vccz {name}_ok{i}
            """)
            issue(sl_)
        a(f"""
        s_branch {name}_p{i}
        {name}_ok{i}:
        s_barrier
        """)
    a(f"""
    s_add_u32 s12, s12, 1
    s_cmp_le_u32 s12, {R}
    s_cbranch_scc1 {name}_loop
    {name}_fin:
    s_memtime s[38:39]
    s_waitcnt lgkmcnt(0)
    s_sub_u32 s38, s38, s36
    v_mov_b32 v4, s38
    v_mov_b32 v5, s40
    s_lshl_b32 s20, s30, 5
    s_add_u32 s20, s20, s31
    s_lshl_b32 s20, s20, 2
    s_add_u32 s20, s20, s33
    s_lshl_b32 s20, s20, 3
    s_add_u32 s20, s20, {RES}
    v_mov_b32 v1, 0
    s_mov_b64 exec, 1
    buffer_store_dwordx2 v[4:5], v1, s[4:7], s20 offen
    {name}_end:
    s_endpgm
    """)
    return (name, a.text(), kd(name, 256, sgpr=100), 256, 256, 100000)

if __name__ == "__main__":
  V = eval(open(sys.argv[1]).read())
  ks = [gen(f"h{i}_kernel", **v) for i, v in enumerate(V)]
  write_file("hop.s", ks)
  json.dump(V, open("hop.json", "w"))
```

```python
from common import *
from gen_rec import WS_QX, WS_FL


def load_weights_tr(a, name, S_W, S_WAVE, S_T0, S_M0, so_base, row_bytes, krows_per_wave, permkind, S_BASE):
    pass


def qkv_role(a: Asm, name, S_B, S_WS, S_DBG, stamp=None, opt={}):
    S_A, S_W = 8, 12
    S_WAVE, S_MAT, S_H, S_P, S_T0, S_T1 = 16, 17, 18, 19, 20, 21
    S_M0, S_SA, S_SO, S_IT, S_FL = 22, 23, 24, 25, 26
    V_L, V_T0, V_T1, V_T2 = 1, 2, 3, 4
    V_DA = 6
    V_ST, V_FO, V_FV, V_DW, V_RW = 8, 9, 10, 11, 12
    V_RA = 16
    V_F = 32
    V_ACC = 64
    V_E = 96
    NF = 8
    a(f"""
    s_load_dwordx2 s[{S_A}:{S_A+1}], s[0:1], {KA_AX}
    s_load_dwordx2 s[40:41], s[0:1], {KA_WQ}
    s_load_dwordx2 s[42:43], s[0:1], {KA_WK}
    s_load_dwordx2 s[44:45], s[0:1], {KA_WV}
    v_lshrrev_b32 v{V_T0}, 6, v0
    v_and_b32 v{V_L}, 63, v0
    v_readfirstlane_b32 s{S_WAVE}, v{V_T0}
    s_lshr_b32 s{S_MAT}, s{S_B}, 6
    s_bfe_u32 s{S_H}, s{S_B}, 0x50001
    s_and_b32 s{S_P}, s{S_B}, 1
    s_waitcnt lgkmcnt(0)
    s_mov_b32 s{S_A+2}, {4*MB}
    s_mov_b32 s{S_A+3}, 0x00020000
    s_cmp_eq_u32 s{S_MAT}, 1
    s_cselect_b32 s{S_W}, s42, s40
    s_cselect_b32 s{S_W+1}, s43, s41
    s_cmp_eq_u32 s{S_MAT}, 2
    s_cselect_b32 s{S_W}, s44, s{S_W}
    s_cselect_b32 s{S_W+1}, s45, s{S_W+1}
    s_mov_b32 s{S_W+2}, {8*MB}
    s_mov_b32 s{S_W+3}, 0x00020000
    v_lshrrev_b32 v{V_T0}, 4, v{V_L}
    v_and_b32 v{V_T1}, 15, v{V_L}
    v_lshlrev_b32 v{V_T2}, 2, v{V_T0}
    v_xor_b32 v{V_T2}, v{V_T2}, v{V_T1}
    v_lshlrev_b32 v{V_T2}, 4, v{V_T2}
    s_lshl_b32 s{S_T0}, s{S_WAVE}, 5
    v_add_u32 v{V_DW}, s{S_T0}, v{V_T0}
    v_lshl_add_u32 v{V_DW}, v{V_DW}, 13, v{V_T2}
    s_lshl_b32 s{S_T0}, s{S_H}, 8
    v_add_u32 v{V_DW}, s{S_T0}, v{V_DW}
    s_lshl_b32 s{S_M0}, s{S_WAVE}, 13
    """)

    def wdma(u):
        for i in range(8):
            a(f"s_add_u32 m0, s{S_M0}, {(u & 3) * 32768 + i * 1024}")
            a(f"s_mov_b32 s{S_T0}, {(128 * u + 4 * i) * 8192}")
            a(f"buffer_load_dwordx4 v{V_DW}, s[{S_W}:{S_W+3}], s{S_T0} offen lds")
    for u in range(4):
        wdma(u)
    a(f"""
    v_and_b32 v{V_T1}, 3, v{V_L}              ; cc
    v_bfe_u32 v{V_T2}, v{V_L}, 4, 1           ; gam&1
    v_lshl_add_u32 v13, v{V_T1}, 1, v{V_T2}    ; v form
    v_and_b32 v14, 1, v{V_T1}
    v_lshlrev_b32 v14, 1, v14
    v_lshrrev_b32 v15, 1, v{V_T1}
    v_add_u32 v14, v14, v15
    v_lshl_add_u32 v14, v{V_T2}, 2, v14        ; q/k form
    s_cmp_eq_u32 s{S_MAT}, 2
    s_cselect_b64 vcc, -1, 0
    v_cndmask_b32 v13, v14, v13, vcc
    v_bfe_u32 v14, v{V_L}, 2, 2                ; r
    v_xor_b32 v15, s{S_WAVE}, v14
    v_lshlrev_b32 v15, 6, v15
    v_lshl_add_u32 v15, v13, 3, v15
    v_lshrrev_b32 v13, 5, v{V_L}
    v_lshl_add_u32 v13, v13, 3, v14            ; row
    v_lshl_add_u32 v{V_RW}, v13, 8, v15
    v_and_b32 v{V_T1}, 15, v{V_L}
    s_lshl_b32 s{S_T0}, s{S_WAVE}, 3
    """)
    for b in range(2):
        a(f"""
        v_add_u32 v13, s{S_T0}, v{V_T0}
        v_add_u32 v13, {4*b}, v13
        v_and_b32 v14, 15, v13
        v_xor_b32 v14, v14, v{V_T1}
        v_lshlrev_b32 v14, 4, v14
        v_lshl_add_u32 v{V_DA+b}, v13, 11, v14
        """)
    a(f"""
    v_and_b32 v13, 31, v{V_L}
    v_lshrrev_b32 v14, 5, v{V_L}
    v_xor_b32 v14, v14, v{V_T1}
    v_lshlrev_b32 v14, 4, v14
    v_lshl_add_u32 v13, v13, 8, v14
    """)
    for kk in range(8):
        a(f"v_xor_b32 v{V_RA+kk}, {32*kk}, v13")
        a(f"v_add_u32 v{V_RA+8+kk}, 0x10000, v{V_RA+kk}")
    a(f"""
    v_bfe_u32 v13, v{V_L}, 4, 1
    v_lshlrev_b32 v{V_ST}, 10, v13
    v_lshrrev_b32 v13, 5, v{V_L}
    v_lshl_add_u32 v{V_ST}, v13, 8, v{V_ST}
    v_lshl_add_u32 v{V_ST}, v{V_T1}, 4, v{V_ST}
    v_bfrev_b32 v13, 1
    s_lshl_b32 s{S_T0}, s{S_B}, 7
    s_add_u32 s{S_T0}, s{S_T0}, {WS_FL}
    v_mov_b32 v14, s{S_T0}
    v_cmp_eq_u32 vcc, 0, v0
    s_lshl_b32 s{S_SO}, s{S_MAT}, 24
    s_lshl_b32 s{S_T0}, s{S_P}, 18
    v_cndmask_b32 v{V_FO}, v13, v14, vcc
    s_add_u32 s{S_SO}, s{S_SO}, s{S_T0}
    s_lshl_b32 s{S_T0}, s{S_H}, 13
    s_add_u32 s{S_SO}, s{S_SO}, s{S_T0}
    s_lshl_b32 s{S_T0}, s{S_WAVE}, 11
    s_add_u32 s{S_SO}, s{S_SO}, s{S_T0}
    s_add_u32 s{S_SO}, s{S_SO}, {WS_QX}
    s_lshl_b32 s{S_SA}, s{S_P}, 16
    v_mov_b32 v{V_FV}, 0
    """)

    def xdma(slot, uu, i):
        return [f"s_add_u32 m0, s{S_T1}, {slot * 32768 + (i >> 1) * 8192 + (i & 1) * 1024}",
                f"s_add_u32 s{S_T0}, s{S_SA}, {(4 * uu + (i >> 1)) * 256}",
                f"buffer_load_dwordx4 v{V_DA + (i & 1)}, s[{S_A}:{S_A+3}], s{S_T0} offen lds"]
    a(f"s_lshl_b32 s{S_T1}, s{S_WAVE}, 11")
    for u in range(8):
        a(f"s_waitcnt vmcnt(24)" if u < 7 else "s_waitcnt vmcnt(24)")
        a("s_barrier")
        a(f"v_add_u32 v13, {(u & 3) * 32768}, v{V_RW}")
        for ks in range(8):
            for j in range(2):
                d = (8 * u + ks) * 4 + 2 * j
                a(f"ds_read_b64_tr_b16 a[{d}:{d+1}], v13 offset:{(16 * ks + 4 * j) * 256}")
            if ks == 3: a("s_waitcnt lgkmcnt(0)")
        a("s_waitcnt lgkmcnt(0)")
        a("s_barrier")
        if u < 4:
            wdma(u + 4)
        elif u < 7:
            g = u - 4
            if g == 2: a(f"s_add_u32 s{S_SA}, s{S_SA}, {2*65536}")
            for i in range(8):
                for l in xdma(g, g & 1, i): a(l)
    if stamp: stamp()
    a("s_waitcnt vmcnt(16)\ns_barrier")

    def fread(gk):
        gk %= 128
        half, ks = gk >> 6, gk & 63
        d = V_F + 4 * (gk % NF)
        return f"ds_read_b128 v[{d}:{d+3}], v{V_RA + 8 * half + (ks & 7)} offset:{(ks >> 5) * 32768 + ((ks >> 3) & 3) * 8192}"

    PF = 6
    def epi_lines(accb, isv):
        L = []
        for st in range(2):
            e = V_E + 4 * st
            src = [4 * st, 4 * st + 2, 4 * st + 8, 4 * st + 10] if isv else [8 * st, 8 * st + 2, 8 * st + 4, 8 * st + 6]
            for i, sr in enumerate(src):
                L.append(f"v_cvt_pk_bf16_f32 v{e+i}, v{accb+sr}, v{accb+sr+1}")
            L.append(f"buffer_store_dwordx4 v[{e}:{e+3}], v{V_ST}, s[{S_WS}:{S_WS+3}], s{S_SO} offen offset:{512*st} {opt.get('st', 'sc1')}" if not opt.get("nost") else "s_nop 0")
        L.append(f"s_add_u32 s{S_SO}, s{S_SO}, {2 * 32 * 8192}")
        return L
    flag = [f"v_add_u32 v{V_FV}, 1, v{V_FV}", f"buffer_store_dword v{V_FV}, v{V_FO}, s[{S_WS}:{S_WS+3}], 0 offen sc1"]

    def body(isv, tag):
        for gk in range(PF): a(fread(gk))
        a(f"s_mov_b32 s{S_IT}, 0")
        a.label(f"{name}_{tag}_loop")
        for gk in range(128):
            half, ks = gk >> 6, gk & 63
            u4 = gk >> 5
            k32 = gk & 31
            acc = V_ACC + 16 * half
            f = V_F + 4 * (gk % NF)
            if k32 == 24:
                a("s_waitcnt vmcnt(8)")
                a("s_barrier")
            a(f"s_waitcnt lgkmcnt({PF - 1})")
            c = "0" if ks == 0 else f"v[{acc}:{acc+15}]"
            wreg = f"a[{4*ks}:{4*ks+3}]"
            if isv: a(f"v_mfma_f32_32x32x16_bf16 v[{acc}:{acc+15}], v[{f}:{f+3}], {wreg}, {c}")
            else: a(f"v_mfma_f32_32x32x16_bf16 v[{acc}:{acc+15}], {wreg}, v[{f}:{f+3}], {c}")
            if not opt.get("nord"): a(fread(gk + PF))
            sched = {25: 0, 28: 1, 31: 2, 2: 3, 5: 4, 8: 5, 11: 6, 14: 7}
            if k32 in sched:
                i = sched[k32]
                tgt = (u4 + 3) & 3 if k32 >= 24 else (u4 + 2) & 3
                if gk < 24:
                    a(f"s_cmp_eq_u32 s{S_IT}, 0\ns_cbranch_scc1 {name}_{tag}_sk{gk}")
                if i == 0 and (tgt & 1) == 0:
                    a(f"s_add_u32 s{S_SA}, s{S_SA}, {2*65536}")
                for l in xdma(tgt, tgt & 1, i):
                    if not (opt.get("nodma") and "buffer" in l): a(l)
                if gk < 24: a.label(f"{name}_{tag}_sk{gk}")
            if ks == 16:
                if half == 0: a(f"s_cmp_eq_u32 s{S_IT}, 0\ns_cbranch_scc1 {name}_{tag}_ne0")
                for l in epi_lines(V_ACC + 16 * (1 - half), isv)[:5]: a(l)
                if half == 0: a.label(f"{name}_{tag}_ne0")
            if ks == 18:
                if half == 0: a(f"s_cmp_eq_u32 s{S_IT}, 0\ns_cbranch_scc1 {name}_{tag}_ne1")
                for l in epi_lines(V_ACC + 16 * (1 - half), isv)[5:]: a(l)
                if half == 0: a.label(f"{name}_{tag}_ne1")
            if ks == 58:
                if half == 0: a(f"s_cmp_eq_u32 s{S_IT}, 0\ns_cbranch_scc1 {name}_{tag}_nf")
                for l in flag: a(l)
                if half == 0: a.label(f"{name}_{tag}_nf")
        a(f"""
        s_add_u32 s{S_IT}, s{S_IT}, 1
        s_cmp_lt_u32 s{S_IT}, 16
        s_cbranch_scc1 {name}_{tag}_loop
        """)
        a.nops(12)
        for l in epi_lines(V_ACC + 16, isv): a(l)
        a("s_waitcnt vmcnt(0) lgkmcnt(0)\ns_barrier")
        for l in flag: a(l)

    a(f"s_cmp_eq_u32 s{S_MAT}, 2\ns_cbranch_scc1 {name}_v")
    body(False, "qk")
    a(f"s_branch {name}_done")
    a.label(f"{name}_v")
    body(True, "v")
    a.label(f"{name}_done")


def standalone(name, opt):
    from gen_hop import ticket
    a = Asm(); a.kernel_begin(name)
    ticket(a, name, 2)
    a(f"""
    s_cmp_lt_u32 s90, 2
    s_cbranch_scc1 {name}_exit
    s_sub_u32 s91, s90, 2
    s_lshl_b32 s91, s91, 5
    s_add_u32 s91, s91, s96
    s_add_u32 s72, s4, {210*MB}
    s_addc_u32 s73, s5, 0
    s_memrealtime s[60:61]
    """)
    qkv_role(a, name + "_q", 91, 4, 72, stamp=lambda: a("s_memrealtime s[62:63]\ns_memtime s[66:67]"), opt=opt)
    a(f"""
    s_memrealtime s[64:65]
    s_memtime s[68:69]
    s_waitcnt lgkmcnt(0)
    s_sub_u32 s62, s62, s60
    s_sub_u32 s64, s64, s60
    s_sub_u32 s68, s68, s66
    v_mov_b32 v2, s62
    v_mov_b32 v3, s64
    v_mov_b32 v4, s68
    v_mov_b32 v1, 0
    s_lshl_b32 s20, s91, 4
    s_add_u32 s20, s20, {200*MB}
    s_mov_b64 exec, 1
    buffer_store_dwordx4 v[2:5], v1, s[4:7], s20 offen
    {name}_exit:
    s_endpgm
    """)
    return (name, a.text(), kd(name, 512, sgpr=100, accum=256), 256, 256, 131072 + 8192)

if __name__ == "__main__":
    import sys, json
    V = eval(open(sys.argv[1]).read())
    write_file("qkv.s", [standalone(f"q{i}_kernel", v) for i, v in enumerate(V)])
    json.dump(V, open("qkv.json", "w"))
```

```python
from common import *

WS_QX = 0
WS_KX = 16 * MB
WS_VT = 32 * MB
WS_O = 48 * MB
WS_XB = 64 * MB
WS_MEMX = 66 * MB
WS_PART = 67 * MB
WS_FL = 68 * MB
WS_KVM = 170 * MB
WS_PROF = 200 * MB

DBG_INIT = 8

LDS_MEM = 131072
LDS_X = LDS_MEM + 8192
LDS_O = LDS_X + 12288
LDS_VX = LDS_O + 2048
LDS_REC = LDS_VX + 8192

S_J, S_H = 30, 31


def rec_body(a: Asm, name, IS, nsteps=64, prof=False, wd=False, full=False, S_VOTE=None, opt={}, tstamp=None):
    S_WS, S_W, S_DBG = 4, 8, 12
    S_WAVE, S_STEP, S_T0, S_T1, S_T2 = 20, 21, 22, 23, 24
    S_MLO, S_MQ, S_MK = 26, 28, 32
    S_C = 34
    S_MEMR, S_MEMW, S_XOUT, S_XIN, S_VOUT, S_VIN, S_PHX, S_PHP = 35, 36, 37, 38, 39, 40, 41, 42
    S_KX, S_VX, S_KVM, S_PARTW, S_PARTR, S_M0X = 43, 44, 45, 46, 47, 48
    S_WD = 49
    S_PQ, S_PK, S_PV, S_PO, S_PM = 50, 52, 54, 56, 58
    S_SEL, S_PARTW2, S_PARTR2 = 60, 61, 25
    S_PUBK, S_PUBV = 16, 18
    V_L16, V_IDX, V_T0, V_T1, V_LH, V_LL = 1, 2, 3, 4, 5, 6
    V_FL, V_OPART, V_OMP, V_OKM, V_OVM, V_OMR, V_OCR = 7, 8, 9, 10, 11, 12, 13
    V_Z = 14
    V_SEL, V_TAGM, V_PB1, V_SELR, V_ONE = 16, 34, 20, 24, 28
    V_PV = 18
    V_WV, V_WV2 = 32, 33
    V_M, V_ST, V_AQ, V_AV, V_VX = 32, 64, 96, 112, 120
    V_WO = 128
    V_KX = 32
    V_X, V_S = 64, 80
    G, PG, DO = 108, 96, 100
    V_ACC = 32

    WO_ORDER = [(T, 0) for T in range(4)] + [(T, 1) for T in range(4)] + [(T, 0) for T in range(4, 8)] + [(T, 1) for T in range(4, 8)]
    WO_R, WO_L = WO_ORDER[:10], WO_ORDER[10:]
    def wv_reg(op): return V_WO + 8 * op
    NST = 18
    def stamp(i):
        if not prof: return
        assert i < NST
        a(f"{'s_memrealtime' if prof == 'rt' else 's_memtime'} s[{62+2*i}:{63+2*i}]")

    def dump():
        if not prof: return
        l = a.newlabel(name + "_dp")
        a(f"""
        s_and_b32 s{S_T0}, s{S_STEP}, 15
        s_cmp_lg_u32 s{S_T0}, 9
        s_cbranch_scc1 {l}
        s_lshr_b32 s{S_T1}, s{S_STEP}, 4
        s_lshl_b32 s{S_T0}, s{S_J}, 5
        s_add_u32 s{S_T0}, s{S_T0}, s{S_H}
        s_lshl_b32 s{S_T0}, s{S_T0}, 2
        s_add_u32 s{S_T0}, s{S_T0}, s{S_WAVE}
        s_lshl_b32 s{S_T0}, s{S_T0}, 2
        s_add_u32 s{S_T0}, s{S_T0}, s{S_T1}
        s_lshl_b32 s{S_T0}, s{S_T0}, 7
        s_add_u32 s{S_T0}, s{S_T0}, {WS_PROF + 2*MB}
        s_waitcnt lgkmcnt(0)
        s_mov_b64 exec, 1
        """)
        for i in range(NST):
            a(f"v_mov_b32 v{V_T0}, s{62+2*i}")
            a(f"buffer_store_dword v{V_T0}, v{V_Z}, s[{S_WS}:{S_WS+3}], s{S_T0} offen offset:{4*i}")
        a("s_mov_b64 exec, -1")
        a.label(l)

    def watchdog(code, cidx=None):
        if opt.get("tot") and cidx is not None:
            a(f"s_add_u32 s{84+cidx}, s{84+cidx}, 1")
        if not wd: return
        a(f"s_add_u32 s{S_WD}, s{S_WD}, 1")
        a(f"s_cmp_gt_u32 s{S_WD}, 400000")
        a(f"s_movk_i32 s{S_T2}, {code}")
        a(f"s_cbranch_scc1 {name}_wdexit")

    if prof or opt.get("tot"):
        for i in range(62, 98):
            a(f"s_mov_b32 s{i}, 0")
    a(f"""
    s_load_dwordx2 s[{S_WS}:{S_WS+1}], s[0:1], {KA_WS}
    s_load_dwordx2 s[{S_DBG}:{S_DBG+1}], s[0:1], {KA_DBG}
    s_load_dwordx2 s[{S_PQ}:{S_PQ+1}], s[0:1], {KA_WQ}
    s_load_dwordx2 s[{S_PK}:{S_PK+1}], s[0:1], {KA_WK}
    s_load_dwordx2 s[{S_PV}:{S_PV+1}], s[0:1], {KA_WV}
    s_load_dwordx2 s[{S_PO}:{S_PO+1}], s[0:1], {KA_WO}
    s_load_dwordx2 s[{S_PM}:{S_PM+1}], s[0:1], {KA_MEM0}
    v_lshrrev_b32 v{V_T0}, 6, v0
    v_and_b32 v40, 63, v0                  ; lane
    v_readfirstlane_b32 s{S_WAVE}, v{V_T0}
    v_lshrrev_b32 v41, 4, v40              ; g
    v_and_b32 v42, 15, v40                 ; c
    v_lshlrev_b32 v{V_L16}, 4, v40
    s_mov_b32 s{S_WD}, 0
    s_waitcnt lgkmcnt(0)
    s_mov_b32 s{S_WS+2}, {WS_BYTES}
    s_mov_b32 s{S_WS+3}, 0x00020000
    s_mov_b32 s{S_DBG+2}, 256
    s_mov_b32 s{S_DBG+3}, 0x00020000
    s_mov_b32 s{S_W+2}, {8*MB}
    s_mov_b32 s{S_W+3}, 0x00020000
    s_mov_b32 s{S_MLO}, 0x00030003
    s_mov_b32 s{S_MLO+1}, 0x00030003
    s_mov_b32 s{S_MQ}, 0xcccccccc
    s_mov_b32 s{S_MQ+1}, 0xcccccccc
    s_mov_b32 s{S_MK}, 0x33333333
    s_mov_b32 s{S_MK+1}, 0x33333333
    s_mov_b32 s{S_C}, 0x3e0293ee
    """)
    a(f"""
    v_mov_b32 v48, 0
    v_mov_b32 v49, 0
    v_mov_b32 v50, 0
    v_mov_b32 v51, 0
    v_lshlrev_b32 v52, 4, v0
    s_lshl_b32 s{S_T0}, s{S_J}, 5
    s_add_u32 s{S_T0}, s{S_T0}, s{S_H}
    s_lshl_b32 s{S_XIN}, s{S_T0}, 14
    s_xor_b32 s{S_T0}, s{S_T0}, 32
    s_lshl_b32 s{S_XOUT}, s{S_T0}, 14
    s_add_u32 s{S_XIN}, s{S_XIN}, {WS_XB}
    s_add_u32 s{S_XOUT}, s{S_XOUT}, {WS_XB}
    s_lshl_b32 s{S_PARTW}, s{S_J}, 18
    s_add_u32 s{S_PARTW}, s{S_PARTW}, {WS_PART}
    s_lshl_b32 s{S_T0}, s{S_H}, 13
    s_add_u32 s{S_PARTR}, s{S_PARTW}, s{S_T0}
    s_lshl_b32 s{S_T0}, s{S_WAVE}, 16
    s_add_u32 s{S_PARTW}, s{S_PARTW}, s{S_T0}
    s_lshl_b32 s{S_T0}, s{S_H}, 8
    s_add_u32 s{S_PARTW}, s{S_PARTW}, s{S_T0}
    s_add_u32 s{S_PARTW2}, s{S_PARTW}, {4*8192}
    s_add_u32 s{S_PARTR2}, s{S_PARTR}, 4096
    s_lshl_b32 s{S_MEMR}, s{S_J}, 13
    s_add_u32 s{S_MEMR}, s{S_MEMR}, {WS_MEMX}
    s_mov_b32 s16, s{S_PM}
    s_mov_b32 s17, s{S_PM+1}
    s_mov_b32 s18, 16384
    s_mov_b32 s19, 0x00020000
    v_lshrrev_b32 v53, 2, v42
    v_lshlrev_b32 v53, 1, v53
    v_and_b32 v54, 1, v42
    v_add_u32 v55, v53, v54               ; m(c)
    v_bfe_u32 v53, v0, 3, 1
    v_lshlrev_b32 v53, 11, v53            ; mu*2048
    v_and_b32 v54, 3, v0
    v_lshl_add_u32 v53, v54, 5, v53       ; + (e&3)*32
    v_bfe_u32 v54, v0, 4, 3
    v_lshl_add_u32 v53, v54, 2, v53
    v_bfe_u32 v54, v0, 2, 1
    v_lshl_add_u32 v53, v54, 1, v53       ; + (e>>2)*2
    s_lshl_b32 s{S_T0}, s{S_J}, 10
    s_lshr_b32 s{S_T1}, s{S_H}, 2
    s_lshl_b32 s{S_T1}, s{S_T1}, 7
    s_add_u32 s{S_T0}, s{S_T0}, s{S_T1}
    s_and_b32 s{S_T1}, s{S_H}, 3
    s_lshl_b32 s{S_T1}, s{S_T1}, 12
    s_add_u32 s{S_T0}, s{S_T0}, s{S_T1}
    buffer_load_ushort v56, v53, s[16:19], s{S_T0} offen
    """)
    for sl in range(2):
        for i in range(4):
            a(f"s_add_u32 s{S_T0}, s{S_XIN}, {sl * MB + 4096 * i}")
            a(f"buffer_store_dwordx4 v[48:51], v52, s[{S_WS}:{S_WS+3}], s{S_T0} offen sc1")
    for i in range(2):
        a(f"s_add_u32 s{S_T0}, s{S_PARTR}, {4096 * i}")
        a(f"buffer_store_dwordx4 v[48:51], v52, s[{S_WS}:{S_WS+3}], s{S_T0} offen {IS}")
    VDQ, VDO, VRB, VRO = 44, 45, 46, 47
    a(f"""
    ; qkv dma voffset: (512 j + 16 g + w)*8192 + h*256 + ((c ^ 4w) * 16)
    s_lshl_b32 s{S_T0}, s{S_WAVE}, 2
    v_xor_b32 v{V_T0}, s{S_T0}, v42
    v_lshlrev_b32 v{V_T0}, 4, v{V_T0}
    v_lshl_add_u32 v{V_T1}, v41, 4, s{S_WAVE}
    v_lshl_add_u32 v{VDQ}, v{V_T1}, 13, v{V_T0}
    s_lshl_b32 s{S_T0}, s{S_J}, 22
    s_lshl_b32 s{S_T1}, s{S_H}, 8
    s_add_u32 s{S_T0}, s{S_T0}, s{S_T1}
    v_add_u32 v{VDQ}, s{S_T0}, v{VDQ}
    s_lshr_b32 s{S_T0}, s{S_WAVE}, 1
    s_lshl_b32 s{S_T0}, s{S_T0}, 5
    s_and_b32 s{S_T1}, s{S_WAVE}, 1
    s_lshl_b32 s{S_T1}, s{S_T1}, 2
    s_add_u32 s{S_T0}, s{S_T0}, s{S_T1}
    s_lshl_b32 s{S_T1}, s{S_H}, 7
    s_add_u32 s{S_T0}, s{S_T0}, s{S_T1}
    v_add_u32 v{V_T1}, s{S_T0}, v41
    v_lshl_add_u32 v{VDO}, v{V_T1}, 11, v{V_T0}
    s_lshl_b32 s{S_T0}, s{S_J}, 10
    v_add_u32 v{VDO}, s{S_T0}, v{VDO}
    s_lshl_b32 s{S_M0X}, s{S_WAVE}, 10
    """)

    units = [("q", k) for k in range(8)] + [("k", k) for k in range(8)] + [("o", k) for k in range(8)] + [("v", k) for k in range(8)]

    def dma_unit(u):
        m, k = units[u]
        slot = (u & 7) * 16384
        if k == 0:
            p = dict(q=S_PQ, k=S_PK, v=S_PV, o=S_PO)[m]
            a(f"s_mov_b32 s{S_W}, s{p}\ns_mov_b32 s{S_W+1}, s{p+1}")
        for i in range(4):
            a(f"s_add_u32 m0, s{S_M0X}, {slot + 4096 * i}")
            if m == "o":
                so = (64 * (k >> 2) + 8 * i) * 2048 + (k & 3) * 256
                vo = VDO
            else:
                so = (64 * k + 4 * i) * 8192
                vo = VDQ
            a(f"s_mov_b32 s{S_T0}, {so}")
            a(f"buffer_load_dwordx4 v{vo}, s[{S_W}:{S_W+3}], s{S_T0} offen lds")

    for u in range(8):
        dma_unit(u)

    a(f"""
    v_mov_b32 v{V_Z}, 0
    v_mov_b32 v{V_Z+1}, 0
    v_mov_b32 v{V_IDX}, 0x4444
    v_mov_b32 v{V_T0}, 0xeeee
    v_cndmask_b32 v{V_IDX}, v{V_IDX}, v{V_T0}, s[{S_MQ}:{S_MQ+1}]
    s_lshl_b32 s{S_T0}, s{S_WAVE}, 12
    v_add_u32 v{V_WV}, s{S_T0}, v{V_L16}
    v_add_u32 v{V_WV2}, 0x10000, v{V_WV}
    v_add_u32 v{V_LH}, 0x10000, v{V_L16}
    v_add_u32 v{V_LL}, {LDS_MEM}, v{V_L16}
    v_and_b32 v{V_T0}, 3, v42
    v_bfe_u32 v43, v40, 1, 1
    v_lshlrev_b32 v{V_FL}, 13, v43
    v_and_b32 v43, 1, v40
    v_lshl_add_u32 v{V_FL}, v43, 7, v{V_FL}
    s_lshl_b32 s{S_T0}, s{S_H}, 8
    s_add_u32 s{S_T1}, s{S_T0}, {WS_FL + 8192}
    v_add_u32 v{V_FL}, s{S_T1}, v{V_FL}
    s_cmp_lg_u32 s{S_WAVE}, 0
    s_cbranch_scc1 {name}_flk
    s_lshl_b32 s{S_T1}, s{S_J}, 7
    s_add_u32 s{S_T0}, s{S_T0}, s{S_T1}
    s_add_u32 s{S_T0}, s{S_T0}, {WS_FL + 192 * 128}
    v_bfrev_b32 v{V_FL}, 1
    v_writelane_b32 v{V_FL}, s{S_T0}, 0
    {name}_flk:
    v_lshlrev_b32 v{V_OVM}, 3, v40
    ; k_m publish: m(c)*256 + g*16 (+ w*64)
    v_lshlrev_b32 v{V_OKM}, 8, v55
    v_lshl_add_u32 v{V_OKM}, v41, 4, v{V_OKM}
    v_lshlrev_b32 v{V_OPART}, 13, v41
    v_lshl_add_u32 v{V_OPART}, v42, 4, v{V_OPART}
    v_lshrrev_b32 v{V_OMP}, 1, v41
    v_lshlrev_b32 v{V_OMP}, 5, v{V_OMP}
    v_and_b32 v{V_T1}, 1, v42
    v_lshl_add_u32 v{V_OMP}, v{V_T1}, 4, v{V_OMP}
    v_and_b32 v{V_T1}, 1, v41
    v_lshl_add_u32 v{V_OMP}, v{V_T1}, 3, v{V_OMP}
    s_lshl_b32 s{S_T0}, s{S_H}, 8
    v_add_u32 v{V_OMP}, s{S_T0}, v{V_OMP}
    v_lshrrev_b32 v{V_T1}, 2, v42
    v_lshlrev_b32 v{V_OMR}, 8, v{V_T1}
    v_lshl_add_u32 v{V_OMR}, v41, 6, v{V_OMR}
    v_lshl_add_u32 v{V_OMR}, v{V_T0}, 4, v{V_OMR}
    v_lshlrev_b32 v{V_OCR}, 8, v41
    v_lshl_add_u32 v{V_OCR}, v42, 2, v{V_OCR}
    v_cmp_eq_u32 vcc, 0, v{V_T0}
    v_mov_b32 v{V_ONE}, 0x3f803f80
    v_mov_b32 v{V_ONE+1}, 0x3f803f80
    v_cndmask_b32 v{V_TAGM}, 0, 1, vcc
    v_mov_b32 v{V_ONE+2}, 0x3f803f80
    v_mov_b32 v{V_ONE+3}, 0x3f803f80
    """)
    a(f"""
    v_and_b32 v49, 1, v42
    v_lshlrev_b32 v49, 4, v49
    v_mov_b32 v50, 0x3f80
    v_lshlrev_b32 v50, v49, v50
    v_lshrrev_b32 v51, 2, v42
    v_cmp_eq_u32 vcc, v51, v41
    v_mov_b32 v{V_SELR}, v50
    v_cndmask_b32 v52, 0, v50, s[{S_MQ}:{S_MQ+1}]
    v_cndmask_b32 v53, 0, v50, s[{S_MK}:{S_MK+1}]
    v_cndmask_b32 v{V_SEL}, 0, v52, vcc
    v_cndmask_b32 v{V_SEL+1}, 0, v53, vcc
    v_mov_b32 v{V_SELR+1}, v50
    v_mov_b32 v{V_SELR+2}, v50
    v_mov_b32 v{V_SELR+3}, v50
    """)
    a(f"""
    v_bfe_u32 v60, v40, 3, 1              ; r>>1
    v_bfe_u32 v49, v40, 2, 1              ; r&1
    v_and_b32 v50, 1, v41                 ; gb&1
    v_lshrrev_b32 v51, 1, v41             ; gb>>1
    v_lshlrev_b32 v52, 3, v60
    v_lshl_add_u32 v52, v50, 2, v52       ; rho&12
    v_lshl_add_u32 v53, v51, 4, v52
    v_add_u32 v53, v53, v49               ; rho0
    v_and_b32 v54, 3, v40                 ; cc
    s_lshl_b32 s{S_T0}, s{S_WAVE}, 2
    v_add_u32 v55, s{S_T0}, v54
    v_xor_b32 v55, v55, v52
    v_lshlrev_b32 v55, 4, v55
    v_lshl_add_u32 v{VRB}, v53, 8, v55
    v_lshlrev_b32 v55, 4, v52
    v_lshl_add_u32 v55, v54, 3, v55
    v_lshl_add_u32 v{VRO}, v53, 8, v55
    """)
    a(f"""
    v_mov_b32 v60, -1
    v_lshlrev_b32 v61, 1, v0
    s_waitcnt vmcnt(32)
    v_min_u32 v56, 0xfffe, v56
    s_cmp_ge_u32 s{S_WAVE}, 2
    s_cbranch_scc1 {name}_nomi
    s_lshl_b32 s{S_T1}, s{S_H}, 8
    s_add_u32 s{S_T0}, s{S_MEMR}, s{S_T1}
    s_add_u32 s{S_T1}, s{S_T0}, 16384
    buffer_store_short v60, v61, s[{S_WS}:{S_WS+3}], s{S_T1} offen {IS}
    buffer_store_short v56, v61, s[{S_WS}:{S_WS+3}], s{S_T0} offen {IS}
    {name}_nomi:
    """)
    for u in range(32):
        m, k = units[u]
        slot = (u & 7) * 16384
        a(f"s_waitcnt vmcnt({4 * (min(u + 8, 32) - u - 1)})")
        a("s_barrier")
        if u == 9:
            a(f"""
            s_cmp_lg_u32 s{S_WAVE}, 1
            s_cbranch_scc1 {name}_noin
            v_mov_b32 v53, 1
            s_mov_b64 exec, 1
            buffer_atomic_add v53, v{V_Z}, s[{S_DBG}:{S_DBG+3}], 0 offen offset:{DBG_INIT} sc1
            s_mov_b64 exec, -1
            {name}_noin:
            """)
        if m in "qkv":
            a(f"v_add_u32 v48, {slot}, v{VRB}")
            for tau in range(2):
                for rh in range(2):
                    for dp in range(2):
                        off = rh * 8192 + dp * 512 + 8 * tau
                        if m == "v":
                            base = (64 + tau * 8) if k < 5 else wv_reg(2 * k + tau)
                            d = base + rh * 4 + dp * 2
                            a(f"ds_read_b64_tr_b16 v[{d}:{d+1}], v48 offset:{off}")
                        else:
                            d = (128 if m == "k" else 0) + (k * 2 + tau) * 8 + rh * 4 + dp * 2
                            a(f"ds_read_b64_tr_b16 a[{d}:{d+1}], v48 offset:{off}")
            a("s_waitcnt lgkmcnt(0)")
            a("s_barrier")
            if m == "v":
                src = 64 if k < 5 else 80 + 16 * (k - 5)
                for q in range(4):
                    vb = V_WV if k < 4 else V_WV2
                    a(f"ds_write_b128 v{vb}, v[{src+4*q}:{src+3+4*q}] offset:{(k & 3) * 16384 + q * 1024}")
                a("s_waitcnt lgkmcnt(0)")
        else:
            kp, om = k >> 2, k & 3
            a(f"s_cmp_lg_u32 s{S_WAVE}, {om}\ns_cbranch_scc1 {name}_wo{k}")
            for T8 in range(8):
                if T8 & 1 == 0:
                    a(f"v_xor_b32 v48, {(T8 >> 1) * 64}, v{VRO}")
                    a(f"v_add_u32 v48, {slot}, v48")
                base = V_WO + 8 * WO_R.index((T8, kp)) if (T8, kp) in WO_R else 80 + 8 * WO_L.index((T8, kp))
                for rh in range(2):
                    for dp in range(2):
                        d = base + rh * 4 + dp * 2
                        a(f"ds_read_b64_tr_b16 v[{d}:{d+1}], v48 offset:{rh*8192 + dp*512 + 32*(T8 & 1)}")
                if T8 & 1: a("s_waitcnt lgkmcnt(0)")
            a.label(f"{name}_wo{k}")
            a("s_barrier")
        if u + 8 < 32:
            dma_unit(u + 8)
    a.label(f"{name}_iw")
    watchdog(1)
    a(f"""
    buffer_load_dwordx2 v[48:49], v{V_Z}, s[{S_DBG}:{S_DBG+3}], 0 offen offset:{DBG_INIT} sc1
    s_waitcnt vmcnt(0)
    v_cmp_ne_u32 vcc, 64, v48
    s_cbranch_vccnz {name}_iw
    """)
    if S_VOTE:
        a(f"""
        v_and_b32 v50, 0xffff, v49
        v_readfirstlane_b32 s{S_SEL}, v49
        v_cmp_ne_u32 vcc, s{S_VOTE}, v50
        s_cbranch_vccnz {name}_iw
        s_lshr_b32 s{S_SEL}, s{S_SEL}, 15
        s_cmp_gt_u32 s{S_SEL}, s{S_VOTE}
        s_cselect_b32 s{S_SEL}, 8192, 0
        """)
    else:
        a(f"""
        s_mov_b32 s{S_T0}, {WS_PROF + 3*MB}
        buffer_load_dword v48, v{V_Z}, s[{S_WS}:{S_WS+3}], s{S_T0} offen
        s_waitcnt vmcnt(0)
        v_readfirstlane_b32 s{S_SEL}, v48
        s_nop 3
        s_and_b32 s{S_SEL}, s{S_SEL}, 8192
        """)
    a(f"""
    s_bfe_u32 s{S_T0}, s{S_H}, 0x10001
    s_lshl_b32 s{S_T0}, s{S_T0}, 12
    s_add_u32 s{S_T0}, s{S_T0}, s{S_SEL}
    s_lshl_b32 s{S_T1}, s{S_WAVE}, 10
    s_add_u32 s{S_T0}, s{S_T0}, s{S_T1}
    s_add_u32 s{S_XIN}, s{S_XIN}, s{S_T0}
    s_add_u32 s{S_XOUT}, s{S_XOUT}, s{S_T0}
    s_xor_b32 s{S_VIN}, s{S_XIN}, 4096
    s_xor_b32 s{S_VOUT}, s{S_XOUT}, 4096
    s_xor_b32 s{S_MEMW}, s{S_MEMR}, 16384
    s_mov_b32 s{S_STEP}, 0
    s_cmp_eq_u32 s{S_J}, 0
    s_mov_b32 s{S_T0}, 0x33003300
    s_cselect_b32 s{S_PUBK}, 0x00330033, s{S_T0}
    s_mov_b32 s{S_PUBK+1}, s{S_PUBK}
    s_cselect_b32 s{S_PUBV}, -1, 0
    s_not_b32 s{S_PUBV+1}, s{S_PUBV}
    s_lshl_b32 s{S_T0}, s{S_H}, 13
    s_lshl_b32 s{S_T1}, s{S_WAVE}, 11
    s_add_u32 s{S_T0}, s{S_T0}, s{S_T1}
    s_add_u32 s{S_KX}, s{S_T0}, {WS_KX}
    s_add_u32 s{S_VX}, s{S_T0}, {WS_VT}
    s_lshl_b32 s{S_KVM}, s{S_H}, 12
    s_add_u32 s{S_KVM}, s{S_KVM}, {WS_KVM}
    s_mul_i32 s{S_M0X}, s{S_WAVE}, 3072
    s_add_u32 m0, s{S_M0X}, {LDS_X + 1024}
    s_mov_b32 s{S_PHX}, 1
    s_mov_b32 s{S_PHP}, 1
    v_mov_b32 v0, v{V_TAGM}
    v_bfrev_b32 v{V_T0}, 1
    v_cndmask_b32 v{V_OKM}, v{V_T0}, v{V_OKM}, s[{S_PUBK}:{S_PUBK+1}]
    v_cndmask_b32 v{V_OVM}, v{V_T0}, v{V_OVM}, s[{S_PUBV}:{S_PUBV+1}]
    v_cndmask_b32 v{V_OMP}, v{V_T0}, v{V_OMP}, s[{S_MLO}:{S_MLO+1}]
    s_sub_u32 s{S_KVM}, s{S_KVM}, {32*4096}
    """)
    V_TAGM = 0
    S_KN = 50
    kvn = [0]
    def kv_eval(reg):
        a(f"""
        v_readlane_b32 s{S_KN}, v{reg}, 0
        v_readlane_b32 s{S_T0}, v{reg}, 2
        v_readlane_b32 s{S_T1}, v{reg}, 1
        v_readlane_b32 s{S_T2}, v{reg}, 3
        s_nop 3
        s_min_u32 s{S_KN}, s{S_KN}, s{S_T0}
        s_min_u32 s{S_T1}, s{S_T1}, s{S_T2}
        s_lshl_b32 s{S_KN}, s{S_KN}, 1
        s_lshl_b32 s{S_T1}, s{S_T1}, 1
        s_add_u32 s{S_T1}, s{S_T1}, 1
        s_min_u32 s{S_KN}, s{S_KN}, s{S_T1}
        """)
    def kv_block(reg, plus):
        n = kvn[0]; kvn[0] += 1
        a.label(f"{name}_kvb{n}")
        a(f"""
        s_add_u32 s{S_T0}, s{S_STEP}, {plus}
        s_min_u32 s{S_T0}, s{S_T0}, 63
        s_cmp_gt_u32 s{S_KN}, s{S_T0}
        s_cbranch_scc1 {name}_kvd{n}
        """)
        watchdog(5)
        a(f"""
        buffer_load_dword v{reg}, v{V_FL}, s[{S_WS}:{S_WS+3}], 0 offen sc1
        s_waitcnt vmcnt(0)
        """)
        kv_eval(reg)
        a(f"s_branch {name}_kvb{n}")
        a.label(f"{name}_kvd{n}")
    if full:
        a(f"s_mov_b32 s{S_KN}, 0\ns_cmp_lg_u32 s{S_WAVE}, 3\ns_cbranch_scc1 {name}_kv0")
        kv_block(48, 0)
        a.label(f"{name}_kv0")
    if tstamp: tstamp()
    a("s_barrier")
    if opt.get("tot"):
        a("s_memtime s[98:99]\ns_memrealtime s[96:97]\ns_waitcnt lgkmcnt(0)")
    a(f"""
    s_cmp_eq_u32 s{S_WAVE}, 1
    s_cbranch_scc1 {name}_w1_entry
    s_cmp_eq_u32 s{S_WAVE}, 2
    s_cbranch_scc1 {name}_w2_entry
    s_cmp_eq_u32 s{S_WAVE}, 3
    s_cbranch_scc1 {name}_w3_entry
    """)

    SRD = f"s[{S_WS}:{S_WS+3}]"
    def smf(d, am, b):
        a(f"v_smfmac_f32_16x16x64_bf16 v[{d}:{d+3}], v[{am}:{am+3}], {b}, v{V_IDX}")
    def pkadd(d):
        a(f"v_pk_add_f32 v[{d}:{d+1}], v[{d}:{d+1}], v[{d+2}:{d+3}]")
    def zero32(d):
        a(f"v_mfma_f32_32x32x4_2b_bf16 v[{d}:{d+31}], v[{V_Z}:{V_Z+1}], v[{V_Z}:{V_Z+1}], 0")

    def wave_loop(w):
        L = f"{name}_w{w}"
        def lop_read(op, d):
            k, tau = op >> 1, op & 1
            vb = V_L16 if k < 4 else V_LH
            for rh in range(2):
                a(f"ds_read_b128 v[{d+4*rh}:{d+4*rh+3}], v{vb} offset:{(k & 3) * 16384 + w * 4096 + tau * 2048 + rh * 1024}")
        def wv_read(op):
            lop_read(op, V_ST + 8 * (op & 3))
        def qk(k, t):
            wb = (128 if t >= 2 else 0) + (k * 2 + (t & 1)) * 8
            smf(V_AQ + 4 * t, V_M + 4 * k, f"a[{wb}:{wb+7}]")
        def top():
            a(f"v_mfma_f32_32x32x8_bf16 v[{V_AQ}:{V_AQ+15}], v[{V_Z}:{V_Z+1}], v[{V_Z}:{V_Z+1}], 0")
            a(f"v_mfma_f32_16x16x16_bf16 v[{V_AV}:{V_AV+3}], v[{V_Z}:{V_Z+1}], v[{V_Z}:{V_Z+1}], 0")
            a(f"v_mfma_f32_16x16x16_bf16 v[{V_AV+4}:{V_AV+7}], v[{V_Z}:{V_Z+1}], v[{V_Z}:{V_Z+1}], 0")
            for op in range(4):
                wv_read(op)
        def xoff(u):
            return LDS_X - LDS_MEM + (w ^ u) * 3072

        VXB = opt.get("vxb", 1)
        ldvx = [f"buffer_load_dwordx4 v[{V_VX}:{V_VX+3}], v{V_L16}, {SRD}, s{S_VX} offen",
                f"buffer_load_dwordx4 v[{V_VX+4}:{V_VX+7}], v{V_L16}, {SRD}, s{S_VX} offen offset:1024"]
        a.label(f"{L}_entry")
        top()
        if VXB:
            a(ldvx[0]); a(ldvx[1])
            a(f"s_add_u32 s{S_VX}, s{S_VX}, {32*8192}")
        a.label(f"{L}_loop")
        dump()
        stamp(0)
        NB = opt.get("nb", 3)
        k0, k1 = 2 * w, 2 * w + 1
        m0, m1 = V_M + 4 * k0, V_M + 4 * k1
        a(f"s_add_u32 s{S_T0}, s{S_MEMR}, {k0 * 1024}")
        if opt.get("preA"): a.nops(opt["preA"])
        own = [(k0, t) for t in range(4)] + [(k1, t) for t in range(4)]
        lda = f"""
        buffer_load_dwordx4 v[{m0}:{m0+3}], v{V_OMR}, {SRD}, s{S_T0} offen sc1
        buffer_load_dwordx4 v[{m1}:{m1+3}], v{V_OMR}, {SRD}, s{S_T0} offen offset:1024 sc1
        """
        a(lda)
        a.label(f"{L}_pa")
        a(f"""
        s_waitcnt vmcnt(1)
        ds_write_b128 v{V_LL}, v[{m0}:{m0+3}] offset:{k0*1024}
        s_waitcnt vmcnt(0)
        ds_write_b128 v{V_LL}, v[{m1}:{m1+3}] offset:{k1*1024}
        """)
        chk = [f"v_max3_u32 v{V_T0}, v{m0}, v{m0+2}, v{m1}", f"v_max_u32 v{V_T0}, v{V_T0}, v{m1+2}", f"v_cmp_eq_u32 vcc, -1, v{V_T0}"]
        stamp(1)
        a(chk[0]); a(chk[1]); a(chk[2])
        for x in own[:NB]: qk(*x)
        a(f"s_cbranch_vccnz {L}_pafail\ns_waitcnt lgkmcnt(0)\ns_barrier")
        stamp(2)
        others = [(k0 + 2 + i) & 7 for i in range(6)]
        rd = [f"ds_read_b128 v[{V_M+4*k}:{V_M+4*k+3}], v{V_LL} offset:{k*1024}" for k in others]
        ld = [f"buffer_load_dwordx4 v{V_L16}, {SRD}, s{S_KX} offen lds",
              f"buffer_load_dwordx4 v{V_L16}, {SRD}, s{S_KX} offen offset:1024 lds"] + ([] if VXB else ldvx)
        pubd = (f"buffer_store_dwordx4 v[{V_PB1}:{V_PB1+3}], v{V_OKM}, {SRD}, s{S_KVM} offen offset:{w*64} sc1",
                f"buffer_store_dwordx2 v[{V_PV}:{V_PV+1}], v{V_OVM}, {SRD}, s{S_KVM} offen offset:{2048 + w*512} sc1")
        fill = rd + ld + list(pubd)
        KVW = full and w == 3
        if KVW: fill.append(f"buffer_load_dword v{V_T1}, v{V_FL}, {SRD}, 0 offen sc1")
        seq = own[NB:] + [(k, t) for k in others for t in range(4)]
        a(fill.pop(0)); a(fill.pop(0))
        issued = 2
        for i, x in enumerate(seq):
            if i >= 8 - NB and (i - (8 - NB)) % 4 == 0:
                need = (i - (8 - NB)) // 4 + 1
                assert issued >= need
                a(f"s_waitcnt lgkmcnt({issued - need})")
            qk(*x)
            if fill and ("ds_read" in fill[0] or i % opt.get("fsp", 1) == 0):
                a(fill.pop(0))
                if "ds_read" in a.lines[-1]: issued += 1
        assert not fill
        stamp(3)
        def vsm(op):
            k, tau = op >> 1, op & 1
            d = V_ST + 8 * (op & 3) if op < 10 else wv_reg(op)
            smf(V_AV + 4 * tau, V_M + 4 * k, f"v[{d}:{d+7}]")
        vm = ["kx", "vx", "pk", "pv"] + (["fl"] if KVW else [])
        def vwait(tag):
            n = len(vm) - 1 - max(i for i, t in enumerate(vm) if t == tag)
            a(f"s_waitcnt vmcnt({n})")
        a.nops(5)
        pkadd(V_AQ); pkadd(V_AQ + 4); pkadd(V_AQ + 8); pkadd(V_AQ + 12)
        a(f"""
        v_cvt_pk_bf16_f32 v{G+3}, v{V_AQ+12}, v{V_AQ+13}
        v_cvt_pk_bf16_f32 v{G}, v{V_AQ}, v{V_AQ+1}
        v_cvt_pk_bf16_f32 v{G+2}, v{V_AQ+4}, v{V_AQ+5}
        v_cvt_pk_bf16_f32 v{G+1}, v{V_AQ+8}, v{V_AQ+9}
        v_and_or_b32 v{G}, v{G}, -2, s{S_PHX}
        buffer_store_dwordx4 v[{G}:{G+3}], v{V_L16}, {SRD}, s{S_XOUT} offen sc1
        """)
        vm.append("sq")
        stamp(4)
        XP = opt.get("xp", (14,))
        PB = [PG, V_PB1, G]
        def ldx(b):
            a(f"buffer_load_dwordx4 v[{PB[b]}:{PB[b]+3}], v{V_L16}, {SRD}, s{S_XIN} offen sc1")
        def xpoint(p):
            for b, q in enumerate(XP):
                if q == p:
                    ldx(b); vm.append(f"x{b}")
        ldv = f"buffer_load_dwordx4 v[{V_AV+4}:{V_AV+7}], v{V_L16}, {SRD}, s{S_VIN} offen sc1"
        vorder = [0, 1, 2, 3, 10, 11, 12, 4, 5, 13, 14, 15, 6, 7, 8, 9]
        pend = []
        for i, op in enumerate(vorder):
            if op in pend:
                a(f"s_waitcnt lgkmcnt({2 * (len(pend) - 1 - pend.index(op))})")
            vsm(op)
            if op + 4 < 10:
                wv_read(op + 4); pend.append(op + 4)
            xpoint(i)
        stamp(5)
        a(f"v_mfma_f32_16x16x16_bf16 v[{DO}:{DO+3}], v[{G}:{G+1}], v[{V_SEL}:{V_SEL+1}], 0")
        a(f"v_mfma_f32_16x16x16_bf16 v[{DO+4}:{DO+7}], v[{G+2}:{G+3}], v[{V_SEL}:{V_SEL+1}], 0")
        a.nops(5)
        a(f"""
        v_add_f32 v{V_AV}, v{V_AV}, v{V_AV+2}
        v_add_f32 v{V_AV+1}, v{V_AV+1}, v{V_AV+3}
        v_add_f32 v{V_AV+2}, v{V_AV+4}, v{V_AV+6}
        v_add_f32 v{V_AV+3}, v{V_AV+5}, v{V_AV+7}
        v_and_or_b32 v{V_AV}, v{V_AV}, -2, s{S_PHX}
        """)
        VS = opt.get("vs", 17)
        def vstore(p):
            if p != VS: return
            if opt.get("vbar"): a("s_barrier")
            a(f"buffer_store_dwordx4 v[{V_AV}:{V_AV+3}], v{V_L16}, {SRD}, s{S_VOUT} offen sc1")
            vm.append("sv")
        xpoint(16)
        vstore(17)
        xpoint(17)
        stamp(6)
        vwait("vx")
        stamp(7)
        a("s_barrier")
        for u in range(4):
            for t in range(2):
                d = V_KX + 8 * u + 4 * t
                a(f"ds_read_b128 v[{d}:{d+3}], v{V_LL} offset:{xoff(u) + 1024*(1+t)}")
        xpoint(18)
        vstore(18)
        for i, dl in enumerate(opt.get("xd", ())):
            a.nops(dl)
            xpoint(19 + i)
            vstore(19 + i)
        if opt.get("vearly"):
            a(ldv); vm.append("v")
        if KVW:
            a(f"""
            s_add_u32 s{S_T0}, s{S_STEP}, 4
            s_cmp_gt_u32 s{S_KN}, s{S_T0}
            s_cbranch_scc1 {L}_kvs
            """)
            vwait("fl")
            kv_eval(V_T1)
            kv_block(V_T1, 1)
            a.label(f"{L}_kvs")
        stamp(8)
        XD = V_S
        def xtry(b):
            p = PB[b]
            a(f"""
            v_mfma_f32_16x16x16_bf16 v[{XD}:{XD+3}], v[{p}:{p+1}], v[{V_SEL}:{V_SEL+1}], v[{DO}:{DO+3}]
            v_mfma_f32_16x16x16_bf16 v[{XD+4}:{XD+7}], v[{p+2}:{p+3}], v[{V_SEL}:{V_SEL+1}], v[{DO+4}:{DO+7}]
            v_and_b32 v{V_T0}, 1, v{p}
            v_cmp_ne_u32 vcc, s{S_PHX}, v{V_T0}
            s_nop 4
            v_cvt_pk_bf16_f32 v{V_X}, v{XD}, v{XD+1}
            v_cvt_pk_bf16_f32 v{V_X+1}, v{XD+2}, v{XD+3}
            v_cvt_pk_bf16_f32 v{V_X+2}, v{XD+4}, v{XD+5}
            v_cvt_pk_bf16_f32 v{V_X+3}, v{XD+6}, v{XD+7}
            ds_write_b128 v{V_LL}, v[{V_X}:{V_X+3}] offset:{xoff(0)}
            """)
        vwait("x0")
        stamp(9)
        xtry(0)
        a(f"s_cbranch_vccnz {L}_xslow")
        a.label(f"{L}_xok")
        vm_x = list(vm)
        if opt.get("vearly"):
            a(f"buffer_load_dwordx4 v[{V_PB1}:{V_PB1+3}], v{V_L16}, {SRD}, s{S_VIN} offen sc1")
        else:
            a(ldv)
        a("s_waitcnt lgkmcnt(1)")
        def score(u, ts=(0, 1, 2)):
            x = V_X + 4 * u
            for t in ts:
                src = (V_KX + 8 * u + 4 * t) if t < 2 else x
                d = V_S + 4 * t
                c = "0" if u == 0 else f"v[{d}:{d+3}]"
                a(f"v_mfma_f32_16x16x32_bf16 v[{d}:{d+3}], v[{src}:{src+3}], v[{x}:{x+3}], {c}")
        score(0, (0,))
        a("s_waitcnt lgkmcnt(0)\ns_barrier")
        stamp(10)
        for u in range(1, 4):
            a(f"ds_read_b128 v[{V_X+4*u}:{V_X+4*u+3}], v{V_LL} offset:{xoff(u)}")
        score(0, (1, 2))
        if not opt.get("vearly"):
            a(f"buffer_load_dwordx4 v[{V_PB1}:{V_PB1+3}], v{V_L16}, {SRD}, s{S_VIN} offen sc1")
        VB, VB1 = V_PV, PG + 2
        vchk = f"""
        s_waitcnt vmcnt(1)
        v_and_b32 v{V_T0}, 1, v{V_AV+4}
        v_cmp_ne_u32 vcc, s{S_PHX}, v{V_T0}
        v_add_f32 v{V_AV+4}, v{V_AV}, v{V_AV+4}
        v_add_f32 v{V_AV+5}, v{V_AV+1}, v{V_AV+5}
        v_add_f32 v{V_AV+6}, v{V_AV+2}, v{V_AV+6}
        v_add_f32 v{V_AV+7}, v{V_AV+3}, v{V_AV+7}
        """.strip().split("\n")
        vcvt = f"""
        v_cvt_pk_bf16_f32 v{VB}, v{V_AV+4}, v{V_AV+5}
        v_cvt_pk_bf16_f32 v{VB+1}, v{V_AV+6}, v{V_AV+7}
        v_cvt_pk_bf16_f32 v{VB1}, v{V_AV+6}, v{V_AV+7}
        v_mov_b32 v{VB1+1}, 0
        """
        for u in range(1, 4):
            a(f"s_waitcnt lgkmcnt({3-u})")
            score(u)
        zero32(V_ACC)
        stamp(11)
        MX, TM = V_T1, V_S + 10
        P = V_X + 4
        VE = opt.get("vearly")
        if VE:
            for l in vchk: a(l)
        else:
            a.nops(5)
        a(f"""
        v_max3_f32 v{MX}, v{V_S}, v{V_S+1}, v{V_S+2}
        v_max3_f32 v{MX}, v{MX}, v{V_S+3}, v{V_S+4}
        v_max3_f32 v{MX}, v{MX}, v{V_S+5}, v{V_S+6}
        v_max3_f32 v{MX}, v{MX}, v{V_S+7}, v{V_S+8}
        v_max_f32 v{TM}, v{MX}, v{V_S+9}
        v_max_f32 v{MX}, v{MX}, v{V_S+9}
        v_mov_b32 v{P+5}, 0
        """)
        if VE:
            a(f"s_cbranch_vccnz {L}_pv0\n{L}_pv2:")
        else:
            a("s_nop 0")
        a(f"""
        v_permlane16_swap_b32 v{MX}, v{TM}
        v_max_f32 v{MX}, v{MX}, v{TM}
        v_max_f32 v{TM}, v{MX}, v{TM}
        """)
        if VE: a(vcvt)
        else: a("s_nop 1")
        a(f"""
        v_permlane32_swap_b32 v{MX}, v{TM}
        v_max_f32 v{MX}, v{MX}, v{TM}
        v_mul_f32 v{MX}, s{S_C}, v{MX}
        """)
        for i in range(0, 10, 2):
            a(f"v_pk_fma_f32 v[{V_S+i}:{V_S+i+1}], v[{V_S+i}:{V_S+i+1}], s[{S_C}:{S_C+1}], v[{MX}:{MX+1}] op_sel_hi:[1,0,0] neg_lo:[0,0,1] neg_hi:[0,0,1]")
        for i in range(8):
            a(f"v_exp_f32 v{V_S+i}, v{V_S+i}")
            if i >= 2 and i % 2 == 0:
                a(f"v_cvt_pk_bf16_f32 v{P+i//2-1}, v{V_S+i-2}, v{V_S+i-1}")
        O, SM = DO, V_X + 12
        a(f"""
        v_exp_f32 v{V_S+8}, v{V_S+8}
        v_cvt_pk_bf16_f32 v{P+3}, v{V_S+6}, v{V_S+7}
        v_exp_f32 v{V_S+9}, v{V_S+9}
        s_cmp_eq_u32 s{S_STEP}, {nsteps-1}
        """)
        stamp(12)
        a(f"""
        v_mfma_f32_16x16x32_bf16 v[{SM}:{SM+3}], v[{V_ONE}:{V_ONE+3}], v[{P}:{P+3}], 0
        v_cvt_pk_bf16_f32 v{P+4}, v{V_S+8}, v{V_S+9}
        """)
        if not VE: a(vchk[0]); a(vchk[1])
        a(f"v_mfma_f32_16x16x32_bf16 v[{O}:{O+3}], v[{V_VX}:{V_VX+3}], v[{P}:{P+3}], 0")
        if not VE: a(vchk[2]); a(vchk[3])
        a(f"v_mfma_f32_16x16x32_bf16 v[{O+4}:{O+7}], v[{V_VX+4}:{V_VX+7}], v[{P}:{P+3}], 0")
        if not VE: a(vchk[4]); a(vchk[5])
        a(f"v_mfma_f32_16x16x16_bf16 v[{SM}:{SM+3}], v[{V_ONE}:{V_ONE+1}], v[{P+4}:{P+5}], v[{SM}:{SM+3}]")
        if not VE:
            a(vchk[6])
            a(f"s_cbranch_vccnz {L}_pv0\n{L}_pv2:")
            a(vcvt)
        a(f"""
        v_mfma_f32_16x16x16_bf16 v[{O}:{O+3}], v[{VB}:{VB+1}], v[{P+4}:{P+5}], v[{O}:{O+3}]
        s_nop 0
        v_mfma_f32_16x16x16_bf16 v[{O+4}:{O+7}], v[{VB1}:{VB1+1}], v[{P+4}:{P+5}], v[{O+4}:{O+7}]
        """)
        stamp(13)
        nn = 0
        if opt.get("vxp", 13) == 13:
            a(ldvx[0]); a(ldvx[1]); nn = 2
        if not VE:
            a(f"s_cmp_eq_u32 s{S_STEP}, {nsteps-1}")
            a.nops(2 - nn)
        else:
            a.nops(5 - nn)
        a(f"""
        v_rcp_f32 v{SM}, v{SM}
        s_cbranch_scc1 {L}_last
        s_mov_b64 exec, s[{S_MQ}:{S_MQ+1}]
        """)
        OB = V_X + 8
        a(f"""
        v_pk_mul_f32 v[{O}:{O+1}], v[{O}:{O+1}], v[{SM}:{SM+1}] op_sel_hi:[1,0]
        v_pk_mul_f32 v[{O+2}:{O+3}], v[{O+2}:{O+3}], v[{SM}:{SM+1}] op_sel_hi:[1,0]
        v_pk_mul_f32 v[{O+4}:{O+5}], v[{O+4}:{O+5}], v[{SM}:{SM+1}] op_sel_hi:[1,0]
        v_pk_mul_f32 v[{O+6}:{O+7}], v[{O+6}:{O+7}], v[{SM}:{SM+1}] op_sel_hi:[1,0]
        v_cvt_pk_bf16_f32 v{OB}, v{O}, v{O+1}
        v_cvt_pk_bf16_f32 v{OB+1}, v{O+2}, v{O+3}
        v_cvt_pk_bf16_f32 v{OB+2}, v{O+4}, v{O+5}
        v_cvt_pk_bf16_f32 v{OB+3}, v{O+6}, v{O+7}
        """)
        OA = V_X + 4
        stamp(14)
        def save(n):
            a(f"""
            s_waitcnt vmcnt({n})
            v_mov_b32 v{V_PB1}, v{V_X}
            v_mov_b32 v{V_PB1+1}, v{V_X+1}
            v_mov_b32 v{V_PB1+2}, v{V_X+2}
            v_mov_b32 v{V_PB1+3}, v{V_X+3}
            s_add_u32 s{S_KVM}, s{S_KVM}, {32*4096}
            """)
        a(f"ds_write_b128 v{V_LL}, v[{OB}:{OB+3}] offset:{LDS_O - LDS_MEM + (w >> 1) * 1024 + (w & 1) * 32 - 32}")
        a("s_mov_b64 exec, -1")
        WB = {10: 88, 11: 80, 12: V_AV, 13: 96, 14: 104, 15: 88}
        NPRE = opt.get("npre", 3)
        for op in range(10, 10 + NPRE): lop_read(op, WB[op])
        if opt.get("vxp", 13) == 14: a(ldvx[0]); a(ldvx[1])
        if full and w == 0:
            a(f"v_mov_b32 v{V_T0}, s{S_STEP}")
            a(f"buffer_store_dword v{V_T0}, v{V_FL}, {SRD}, 0 offen sc1")
        a(f"""
        s_waitcnt lgkmcnt({2 * NPRE})
        s_barrier
        ds_read_b128 v[{OA}:{OA+3}], v{V_LL} offset:{LDS_O - LDS_MEM}
        ds_read_b128 v[{OA+4}:{OA+7}], v{V_LL} offset:{LDS_O - LDS_MEM + 1024}
        """)
        for op in range(10 + NPRE, 15): lop_read(op, WB[op])
        NPOST = 2 * (5 - NPRE)
        stamp(15)
        sal = f"""
        s_add_u32 s{S_STEP}, s{S_STEP}, 1
        s_xor_b32 s{S_XIN}, s{S_XIN}, {MB}
        s_xor_b32 s{S_XOUT}, s{S_XOUT}, {MB}
        s_xor_b32 s{S_VIN}, s{S_VIN}, {MB}
        s_xor_b32 s{S_VOUT}, s{S_VOUT}, {MB}
        s_lshr_b32 s{S_PHX}, s{S_STEP}, 1
        s_and_b32 s{S_PHX}, s{S_PHX}, 1
        s_xor_b32 s{S_PHX}, s{S_PHX}, 1
        s_xor_b32 s{S_MEMR}, s{S_MEMR}, 16384
        s_xor_b32 s{S_MEMW}, s{S_MEMW}, 16384
        s_add_u32 s{S_KX}, s{S_KX}, {32*8192}
        s_add_u32 s{S_VX}, s{S_VX}, {32*8192}
        """.strip().split("\n")

        def wo(i):
            T, kp = WO_ORDER[i]
            b = V_WO + 8 * i if i < 10 else WB[i]
            smf(V_ACC + 4 * T, OA + 4 * kp, f"v[{b}:{b+7}]")
        def fold(T, pk):
            A = V_ACC + 4 * T
            GR = V_ACC + 16 * (T >> 2)
            if pk: pkadd(A)
            else:
                a(f"v_add_f32 v{A}, v{A}, v{A+2}\nv_add_f32 v{A+1}, v{A+1}, v{A+3}")
            a(f"v_cvt_pk_bf16_f32 v{GR+(T&3)}, v{A}, v{A+1}")
            if T & 3 == 0:
                a(f"v_and_or_b32 v{GR}, v{GR}, -2, s{S_PHP}")
            if T & 3 == 3:
                a(f"buffer_store_dwordx4 v[{GR}:{GR+3}], v{V_OPART}, {SRD}, s{S_PARTW if T < 4 else S_PARTW2} offen {IS}")
        a(f"s_waitcnt lgkmcnt({NPOST + 1})")
        for i in range(13):
            if i == 4: a(f"s_waitcnt lgkmcnt({NPOST})")
            if i == 10: a("s_waitcnt lgkmcnt(0)")
            wo(i)
            if i == 10: lop_read(15, WB[15])
            elif sal: a(sal.pop(0))
        assert not sal
        fold(0, 0); wo(13); fold(1, 0); wo(14); fold(2, 0); a("s_waitcnt lgkmcnt(0)"); wo(15); fold(3, 0)
        pk = opt.get("pkt", 1)
        fold(4, pk); fold(5, pk); fold(6, pk); fold(7, pk)
        stamp(16)
        save(5 if (full and w == 0) else 4)
        top()
        RB, RD = V_M + 4, V_M + 20
        a(f"v_mov_b32 v{RD+6}, -1\nv_mov_b32 v{RD+7}, -1")
        if opt.get("preC"): a.nops(opt["preC"])
        def cissue(b):
            for d in range(8):
                a(f"buffer_load_dword v{RB+8*b+d}, v{V_OCR}, {SRD}, s{S_PARTR if d < 4 else S_PARTR2} offen offset:{1024*(d&3) + 64*w} sc1")
        def ctry(b, behind, nxt=None):
            r = RB + 8 * b
            a(f"""
            s_waitcnt vmcnt({behind + 4})
            v_mfma_f32_16x16x32_bf16 v[{RD}:{RD+3}], v[{r}:{r+3}], v[{V_SELR}:{V_SELR+3}], 0
            v_bitop3_b32 v{V_T0}, s{S_PHP}, v{r}, v{r+1} bitop3:0x7e
            v_bitop3_b32 v{V_T1}, s{S_PHP}, v{r+2}, v{r+3} bitop3:0x7e
            s_waitcnt vmcnt({behind + 2})
            v_or_b32 v{V_T0}, v{V_T0}, v{V_T1}
            v_bitop3_b32 v{V_T1}, s{S_PHP}, v{r+4}, v{r+5} bitop3:0x7e
            s_waitcnt vmcnt({behind})
            v_mfma_f32_16x16x32_bf16 v[{RD}:{RD+3}], v[{r+4}:{r+7}], v[{V_SELR}:{V_SELR+3}], v[{RD}:{RD+3}]
            v_bitop3_b32 v{RD+4}, s{S_PHP}, v{r+6}, v{r+7} bitop3:0x7e
            v_or3_b32 v{V_T0}, v{V_T0}, v{V_T1}, v{RD+4}
            v_and_b32 v{V_T0}, v{V_TAGM}, v{V_T0}
            v_cmp_ne_u32 vcc, 0, v{V_T0}
            """)
        def cfin():
            a(f"""
            v_cvt_pk_bf16_f32 v{RD+4}, v{RD}, v{RD+1}
            v_cvt_pk_bf16_f32 v{RD+5}, v{RD+2}, v{RD+3}
            v_min_u32 v{RD+4}, -2, v{RD+4}
            """)
        CD = opt.get("cd", 0)
        if CD:
            cissue(0); a.nops(CD); cissue(1)
            a.label(f"{L}_pc")
            watchdog(30, 3)
            ctry(0, 8); a("s_nop 3"); cfin()
            a(f"s_cbranch_vccz {L}_cok")
            cissue(0)
            watchdog(30, 3)
            ctry(1, 8); a("s_nop 3"); cfin()
            a(f"s_cbranch_vccz {L}_cok")
            cissue(1)
            a(f"s_branch {L}_pc")
            a.label(f"{L}_cok")
        elif opt.get("cearly", 1):
            a.label(f"{L}_pc")
            cissue(0)
            watchdog(30, 3)
            ctry(0, 0)
            a(f"s_cbranch_vccnz {L}_pc")
            a("s_nop 2"); cfin()
        else:
            a.label(f"{L}_pc")
            cissue(0)
            watchdog(30, 3)
            ctry(0, 0); a("s_nop 3"); cfin()
            a(f"s_cbranch_vccnz {L}_pc")
        a(f"""
        {"" if opt.get("amask") else f"s_mov_b64 exec, s[{S_MLO}:{S_MLO+1}]"}
        buffer_store_dwordx2 v[{RD+4}:{RD+5}], v{V_OMP}, {SRD}, s{S_MEMR} offen offset:{w * 64} {IS}
        buffer_store_dwordx2 v[{RD+6}:{RD+7}], v{V_OMP}, {SRD}, s{S_MEMW} offen offset:{w * 64} {IS}
        s_mov_b64 exec, -1
        s_xor_b32 s{S_PHP}, s{S_PHP}, 1
        """)
        stamp(17)
        a(f"s_branch {L}_loop")
        a.label(f"{L}_last")
        save(0); a(pubd[0]); a(pubd[1])
        a(f"s_branch {name}_end")
        a.label(f"{L}_pafail")
        a(lda)
        watchdog(10 + w, 0)
        a.nops(8)
        for i in range(4 * min(NB, 4)):
            a(f"v_mov_b32 v{V_AQ+i}, 0")
        a(f"s_branch {L}_pa")

        a.label(f"{L}_xslow")
        vm[:] = vm_x
        nxp = len(XP)
        def xlight(b):
            a(f"""
            v_and_b32 v{V_T0}, 1, v{PB[b]}
            v_cmp_ne_u32 vcc, s{S_PHX}, v{V_T0}
            s_cbranch_vccz {L}_xgot{b}
            """)
        ldx(0); vm.append("y0")
        for b in range(1, nxp):
            if opt.get("tot"): a(f"s_add_u32 s85, s85, 1")
            vwait(f"x{b}")
            xlight(b)
            ldx(b); vm.append(f"y{b}")
        a.label(f"{L}_px")
        for b in range(nxp):
            watchdog(20, 1)
            a(f"s_waitcnt vmcnt({nxp - 1})")
            xlight(b)
            ldx(b)
        a(f"s_branch {L}_px")
        for b in range(nxp):
            a.label(f"{L}_xgot{b}")
            xtry(b)
            a(f"s_branch {L}_xok")

        a.label(f"{L}_pv0")
        if opt.get("tot"): a("s_add_u32 s86, s86, 1")
        a(f"s_waitcnt vmcnt(0)\ns_branch {L}_pv1")
        a.label(f"{L}_pv")
        watchdog(21, 2)
        a(f"""
        buffer_load_dwordx4 v[{V_PB1}:{V_PB1+3}], v{V_L16}, {SRD}, s{S_VIN} offen sc1
        s_waitcnt vmcnt(0)
        {L}_pv1:
        v_and_b32 v{V_T0}, 1, v{V_PB1}
        v_cmp_ne_u32 vcc, s{S_PHX}, v{V_T0}
        v_pk_add_f32 v[{V_AV+4}:{V_AV+5}], v[{V_AV}:{V_AV+1}], v[{V_PB1}:{V_PB1+1}]
        v_pk_add_f32 v[{V_AV+6}:{V_AV+7}], v[{V_AV+2}:{V_AV+3}], v[{V_PB1+2}:{V_PB1+3}]
        s_cbranch_vccnz {L}_pv
        s_branch {L}_pv2
        """)

    for w in range(4):
        wave_loop(w)
    a.label(f"{name}_end")
    a("s_mov_b64 exec, -1")
    if full:
        a(f"""
        v_mov_b32 v{V_T0}, 64
        s_waitcnt vmcnt(0)
        s_barrier
        s_cmp_lg_u32 s{S_WAVE}, 0
        s_cbranch_scc1 {name}_end2
        buffer_store_dword v{V_T0}, v{V_FL}, s[{S_WS}:{S_WS+3}], 0 offen sc1
        {name}_end2:
        """)
    if tstamp: tstamp()
    if opt.get("tot"):
        a(f"""
        s_memtime s[66:67]
        s_memrealtime s[68:69]
        s_waitcnt lgkmcnt(0)
        s_sub_u32 s89, s66, s98
        s_sub_u32 s88, s68, s96
        s_lshl_b32 s{S_T0}, s{S_J}, 5
        s_add_u32 s{S_T0}, s{S_T0}, s{S_H}
        s_lshl_b32 s{S_T0}, s{S_T0}, 2
        s_add_u32 s{S_T0}, s{S_T0}, s{S_WAVE}
        s_lshl_b32 s{S_T0}, s{S_T0}, 7
        s_add_u32 s{S_T0}, s{S_T0}, {WS_PROF}
        s_mov_b64 exec, 1
        """)
        for i in range(14, 20):
            a(f"v_mov_b32 v{V_T0}, s{70+i}")
            a(f"buffer_store_dword v{V_T0}, v{V_Z}, s[{S_WS}:{S_WS+3}], s{S_T0} offen offset:{4*i}")
        a("s_mov_b64 exec, -1")
    a("s_waitcnt vmcnt(0)")
    a("s_endpgm")
    if wd:
        a.label(f"{name}_wdexit")
        a(f"""
        s_mov_b64 exec, 1
        s_lshl_b32 s{S_T0}, s{S_STEP}, 8
        s_or_b32 s{S_T2}, s{S_T2}, s{S_T0}
        v_mov_b32 v{V_T0}, s{S_T2}
        v_mov_b32 v{V_T1}, 0
        s_lshl_b32 s{S_T0}, s{S_J}, 5
        s_add_u32 s{S_T0}, s{S_T0}, s{S_H}
        s_lshl_b32 s{S_T0}, s{S_T0}, 2
        s_add_u32 s{S_T0}, s{S_T0}, s{S_WAVE}
        s_lshl_b32 s{S_T0}, s{S_T0}, 2
        s_add_u32 s{S_T0}, s{S_T0}, {WS_PROF + MB}
        buffer_store_dword v{V_T0}, v{V_T1}, s[{S_WS}:{S_WS+3}], s{S_T0} offen
        s_endpgm
        """)


def gen_standalone(name, prof=False, opt={}, xa=0, xb=1):
    from gen_hop import ticket
    a = Asm(); a.kernel_begin(name)
    a(f"s_cmp_ge_u32 s2, 256\ns_cbranch_scc1 {name}_exit")
    ticket(a, name, 2)
    a(f"""
    s_cmp_eq_u32 s90, {xa}
    s_cselect_b32 s{S_J}, 0, 2
    s_cmp_eq_u32 s90, {xb}
    s_cselect_b32 s{S_J}, 1, s{S_J}
    s_cmp_ge_u32 s{S_J}, 2
    s_cbranch_scc1 {name}_exit
    s_cmp_ge_u32 s96, 32
    s_cbranch_scc1 {name}_exit
    s_mov_b32 s{S_H}, s96
    s_branch {name}_go
    {name}_exit:
    s_endpgm
    {name}_go:
    """)
    rec_body(a, name + "_r", "", prof=prof, wd=True, opt=opt)
    return (name, a.text(), kd(name, 512, sgpr=100, accum=256), 256, 256, LDS_REC)


if __name__ == "__main__":
    import sys, json
    V = eval(open(sys.argv[1]).read())
    ks = [gen_standalone(f"r{i}_kernel", **v) for i, v in enumerate(V)]
    write_file("rec.s", ks)
    json.dump(V, open("rec.json", "w"))
```

```python
from common import *
from gen_rec import WS_QX, WS_KX, WS_VT, WS_O, WS_KVM
from gen_qkv import WS_FL

FL_RP, FL_XF = 192, 256
NEARLY = 12


def xo_role(a: Asm, name, S_B, S_WS, wd=None, opt={}, stamp=None):
    S_W, S_O = 8, 12
    S_WAVE, S_G, S_C, S_T0, S_T1, S_SEG, S_CST = 16, 17, 18, 20, 21, 22, 24
    S_QO, S_KO, S_VO, S_MO, S_OW, S_OR, S_OUT, S_NEED = 26, 27, 28, 29, 40, 41, 42, 43
    S_M0 = 44
    SRD = f"s[{S_WS}:{S_WS+3}]"
    V_L, V_L16, V_T0, V_T1, V_T2 = 1, 2, 3, 4, 5
    V_OKM, V_OVM, V_OOW, V_TH0, V_TH1, V_NEG, V_FGP, V_FRP, V_FXF, V_FMY, V_LR, V_LW, V_OUT = 6, 7, 8, 9, 10, 11, 12, 13, 14, 15, 16, 17, 18
    V_ONE = 20
    V_Q, V_K, V_V = 24, 40, 72
    V_KM, V_VM = 88, 104
    V_S, V_P, V_SM = 112, 124, 132
    V_O = 88
    V_ACC = 88
    V_F = 136
    NFR = 30

    def poll_guard(code):
        if wd: wd(code)

    a(f"""
    s_load_dwordx2 s[{S_W}:{S_W+1}], s[0:1], {KA_WO}
    s_load_dwordx2 s[{S_O}:{S_O+1}], s[0:1], {KA_OUT}
    v_lshrrev_b32 v{V_T0}, 6, v0
    v_and_b32 v{V_L}, 63, v0
    v_readfirstlane_b32 s{S_WAVE}, v{V_T0}
    s_lshr_b32 s{S_G}, s{S_B}, 5
    s_and_b32 s{S_C}, s{S_B}, 31
    v_lshlrev_b32 v{V_L16}, 4, v{V_L}
    s_waitcnt lgkmcnt(0) vmcnt(0)
    s_barrier
    s_mov_b32 s{S_W+2}, {8*MB}
    s_mov_b32 s{S_W+3}, 0x00020000
    s_mov_b32 s{S_O+2}, {8*MB}
    s_mov_b32 s{S_O+3}, 0x00020000
    s_mov_b32 s{S_CST}, 0x3e0293ee
    v_lshrrev_b32 v{V_T0}, 2, v{V_L}
    v_lshlrev_b32 v{V_T0}, 11, v{V_T0}
    v_and_b32 v{V_T1}, 3, v{V_L}
    v_lshl_add_u32 v{V_T0}, v{V_T1}, 4, v{V_T0}
    s_lshl_b32 s{S_T0}, s{S_WAVE}, 21
    s_lshl_b32 s{S_T1}, s{S_C}, 6
    s_add_u32 s{S_T0}, s{S_T0}, s{S_T1}
    v_add_u32 v24, s{S_T0}, v{V_T0}
    s_lshl_b32 s{S_M0}, s{S_WAVE}, 15
    v_lshrrev_b32 v{V_T0}, 5, v{V_L}
    v_bfe_u32 v{V_T2}, v{V_L}, 2, 2
    v_lshl_add_u32 v{V_T0}, v{V_T0}, 3, v{V_T2}
    v_lshlrev_b32 v25, 6, v{V_T0}
    v_bfe_u32 v{V_T2}, v{V_L}, 4, 1
    v_lshl_add_u32 v25, v{V_T2}, 5, v25
    v_lshl_add_u32 v25, v{V_T1}, 3, v25
    v_add_u32 v25, s{S_M0}, v25
    """)
    def wdma(ks):
        a(f"s_add_u32 m0, s{S_M0}, {(ks & 31) * 1024}")
        a(f"s_mov_b32 s{S_T0}, {16 * ks * 2048}")
        a(f"buffer_load_dwordx4 v24, s[{S_W}:{S_W+3}], s{S_T0} offen lds")
    for ks in range(32): wdma(ks)
    a(f"""
    v_and_b32 v{V_T1}, 15, v{V_L}             ; c
    v_lshrrev_b32 v{V_T2}, 4, v{V_L}          ; g
    v_lshrrev_b32 v{V_T0}, 2, v{V_T1}
    v_lshlrev_b32 v{V_T0}, 1, v{V_T0}
    v_and_b32 v26, 1, v{V_T1}
    v_add_u32 v{V_T0}, v{V_T0}, v26           ; m(c)
    v_lshlrev_b32 v{V_OKM}, 8, v{V_T0}
    v_lshl_add_u32 v{V_OKM}, v{V_T2}, 4, v{V_OKM}
    s_lshr_b32 s{S_T0}, s{S_WAVE}, 1
    s_lshl_b32 s{S_T0}, s{S_T0}, 10
    s_add_u32 s{S_T0}, s{S_T0}, 2048
    v_lshlrev_b32 v{V_OVM}, 3, v{V_L}
    v_add_u32 v{V_OVM}, s{S_T0}, v{V_OVM}
    v_lshlrev_b32 v{V_OOW}, 9, v{V_T2}
    v_lshl_add_u32 v{V_OOW}, v{V_T1}, 4, v{V_OOW}
    s_lshr_b32 s{S_T0}, s{S_WAVE}, 1
    s_lshl_b32 s{S_T0}, s{S_T0}, 12
    s_and_b32 s{S_T1}, s{S_WAVE}, 1
    s_lshl_b32 s{S_T1}, s{S_T1}, 8
    s_add_u32 s{S_T0}, s{S_T0}, s{S_T1}
    v_add_u32 v{V_OOW}, s{S_T0}, v{V_OOW}
    v_lshlrev_b32 v26, 2, v{V_T2}
    v_sub_u32 v{V_TH0}, v{V_T1}, v26
    s_lshr_b32 s{S_T1}, s{S_T1}, 4
    v_add_u32 v{V_TH0}, s{S_T1}, v{V_TH0}
    v_add_u32 v{V_TH1}, -16, v{V_TH0}
    v_mov_b32 v{V_NEG}, 0xff7fffff
    v_mov_b32 v{V_ONE}, 0x3f803f80
    v_mov_b32 v{V_ONE+1}, 0x3f803f80
    v_mov_b32 v{V_ONE+2}, 0x3f803f80
    v_mov_b32 v{V_ONE+3}, 0x3f803f80
    ; flag offsets. GP: lane%4 -> mat (3 -> 0): line 64 mat + 2c (+parity via soffset)
    v_and_b32 v26, 3, v{V_L}
    v_cmp_eq_u32 vcc, 3, v26
    s_lshl_b32 s{S_T0}, s{S_C}, 8
    s_add_u32 s{S_T0}, s{S_T0}, {WS_FL}
    v_cndmask_b32 v26, v26, 0, vcc
    v_lshlrev_b32 v{V_FGP}, 13, v26
    v_add_u32 v{V_FGP}, s{S_T0}, v{V_FGP}
    v_and_b32 v26, 1, v{V_L}
    v_lshlrev_b32 v{V_FRP}, 7, v26
    s_add_u32 s{S_T0}, s{S_T0}, {FL_RP * 128}
    v_add_u32 v{V_FRP}, s{S_T0}, v{V_FRP}
    v_and_b32 v26, 7, v{V_L}
    s_lshl_b32 s{S_T0}, s{S_G}, 5
    s_lshl_b32 s{S_T1}, s{S_WAVE}, 3
    s_add_u32 s{S_T0}, s{S_T0}, s{S_T1}
    v_add_u32 v26, s{S_T0}, v26
    v_lshlrev_b32 v{V_FXF}, 7, v26
    v_add_u32 v{V_FXF}, {WS_FL + FL_XF * 128}, v{V_FXF}
    v_bfrev_b32 v26, 1
    s_lshl_b32 s{S_T0}, s{S_B}, 7
    s_add_u32 s{S_T0}, s{S_T0}, {WS_FL + FL_XF * 128}
    v_mov_b32 v27, s{S_T0}
    v_cmp_eq_u32 vcc, 0, v0
    s_lshl_b32 s{S_T0}, s{S_WAVE}, 12
    v_add_u32 v{V_LW}, s{S_T0}, v{V_L16}
    v_cndmask_b32 v{V_FMY}, v26, v27, vcc
    v_lshrrev_b32 v26, 3, v0
    v_and_b32 v27, 1, v0
    v_lshl_add_u32 v27, v27, 5, v26
    v_lshlrev_b32 v{V_LR}, 4, v27
    v_bfe_u32 v27, v0, 1, 2
    v_lshl_add_u32 v{V_LR}, v27, 10, v{V_LR}
    v_lshlrev_b32 v{V_OUT}, 12, v26
    v_and_b32 v27, 7, v0
    v_lshl_add_u32 v{V_OUT}, v27, 3, v{V_OUT}
    s_lshl_b32 s{S_T0}, s{S_C}, 6
    v_add_u32 v{V_OUT}, s{S_T0}, v{V_OUT}
    """)
    for k4 in range(16):
        a(f"s_waitcnt vmcnt({min(28, 60 - 4 * k4)})")
        for ks in range(4 * k4, 4 * k4 + 4):
            for j in range(2):
                a(f"ds_read_b64_tr_b16 a[{4*ks+2*j}:{4*ks+2*j+1}], v25 offset:{(ks & 31) * 1024 + j * 256}")
        a("s_waitcnt lgkmcnt(0)")
        if k4 < 8:
            for ks in range(4 * k4 + 32, 4 * k4 + 36): wdma(ks)
    a("s_barrier")
    if stamp: stamp()
    a(f"""
    s_add_u32 s{S_SEG}, s{S_G}, {NEARLY}
    s_sub_u32 s{S_T0}, s{S_G}, 4
    s_cmp_ge_u32 s{S_G}, 4
    s_cselect_b32 s{S_SEG}, s{S_T0}, s{S_SEG}
    """)

    def fetch_qkv(tag):
        a(f"""
        s_and_b32 s{S_T0}, s{S_SEG}, 1
        s_lshl_b32 s{S_T0}, s{S_T0}, 7
        s_lshr_b32 s{S_NEED}, s{S_SEG}, 1
        {name}_gp{tag}:
        """)
        poll_guard(40)
        a(f"""
        buffer_load_dword v{V_T0}, v{V_FGP}, {SRD}, s{S_T0} offen sc1
        s_waitcnt vmcnt(0)
        v_cmp_ge_u32 vcc, s{S_NEED}, v{V_T0}
        s_cbranch_vccz {name}_gk{tag}
        s_sleep 8
        s_branch {name}_gp{tag}
        {name}_gk{tag}:
        s_lshl_b32 s{S_KO}, s{S_SEG}, 18
        s_lshl_b32 s{S_T0}, s{S_C}, 13
        s_add_u32 s{S_KO}, s{S_KO}, s{S_T0}
        s_and_b32 s{S_T0}, s{S_WAVE}, 1
        s_lshl_b32 s{S_T0}, s{S_T0}, 10
        s_add_u32 s{S_QO}, s{S_KO}, s{S_T0}
        s_lshr_b32 s{S_T0}, s{S_WAVE}, 1
        s_lshl_b32 s{S_T0}, s{S_T0}, 12
        s_add_u32 s{S_VO}, s{S_KO}, s{S_T0}
        s_add_u32 s{S_VO}, s{S_VO}, {WS_VT}
        s_add_u32 s{S_KO}, s{S_KO}, {WS_KX}
        s_add_u32 s{S_T0}, s{S_QO}, 4096
        s_add_u32 s{S_T1}, s{S_KO}, 4096
        """)
        for u in range(4):
            a(f"buffer_load_dwordx4 v[{V_Q+4*u}:{V_Q+4*u+3}], v{V_L16}, {SRD}, s{S_QO if u < 2 else S_T0} offen offset:{(u & 1) * 2048}")
        for i in range(8):
            a(f"buffer_load_dwordx4 v[{V_K+4*i}:{V_K+4*i+3}], v{V_L16}, {SRD}, s{S_KO if i < 4 else S_T1} offen offset:{(i & 3) * 1024}")
        for i in range(4):
            a(f"buffer_load_dwordx4 v[{V_V+4*i}:{V_V+4*i+3}], v{V_L16}, {SRD}, s{S_VO} offen offset:{i * 1024}")

    fetch_qkv("a")
    a.label(f"{name}_loop")
    a("s_waitcnt vmcnt(0)")
    for u in range(4):
        for kt in range(2):
            d = V_S + 4 * kt
            c = "0" if u == 0 else f"v[{d}:{d+3}]"
            k = V_K + 8 * u + 4 * kt
            a(f"v_mfma_f32_16x16x32_bf16 v[{d}:{d+3}], v[{k}:{k+3}], v[{V_Q+4*u}:{V_Q+4*u+3}], {c}")
    a(f"""
    s_lshl_b32 s{S_MO}, s{S_SEG}, 17
    s_lshl_b32 s{S_T0}, s{S_C}, 12
    s_add_u32 s{S_MO}, s{S_MO}, s{S_T0}
    s_add_u32 s{S_MO}, s{S_MO}, {WS_KVM}
    s_lshl_b32 s{S_OR}, s{S_SEG}, 18
    s_add_u32 s{S_OR}, s{S_OR}, {WS_O}
    s_lshl_b32 s{S_T0}, s{S_C}, 13
    s_add_u32 s{S_OW}, s{S_OR}, s{S_T0}
    s_lshl_b32 s{S_T0}, s{S_WAVE}, 16
    s_add_u32 s{S_OR}, s{S_OR}, s{S_T0}
    s_lshl_b32 s{S_OUT}, s{S_SEG}, 17
    """)
    for kt, th in ((0, V_TH0), (1, V_TH1)):
        for r in range(4):
            a(f"v_cmp_gt_i32 vcc, {r}, v{th}")
            a("s_nop 1")
            a(f"v_cndmask_b32 v{V_S+4*kt+r}, v{V_S+4*kt+r}, v{V_NEG}, vcc")
    a.label(f"{name}_rp")
    poll_guard(41)
    a(f"""
    buffer_load_dword v{V_T0}, v{V_FRP}, {SRD}, 0 offen sc1
    s_waitcnt vmcnt(0)
    v_cmp_ge_u32 vcc, s{S_SEG}, v{V_T0}
    s_cbranch_vccz {name}_rk
    s_sleep {opt.get('rps', 4)}
    s_branch {name}_rp
    {name}_rk:
    """)
    for u in range(4):
        a(f"buffer_load_dwordx4 v[{V_KM+4*u}:{V_KM+4*u+3}], v{V_OKM}, {SRD}, s{S_MO} offen offset:{64*u} sc1")
    for i in range(2):
        a(f"buffer_load_dwordx2 v[{V_VM+2*i}:{V_VM+2*i+1}], v{V_OVM}, {SRD}, s{S_MO} offen offset:{512*i} sc1")
    a(f"v_mov_b32 v{V_P+5}, 0\nv_mov_b32 v{V_VM+5}, 0\nv_mov_b32 v{V_VM+7}, 0")
    d = V_S + 8
    for u in range(4):
        a(f"s_waitcnt vmcnt({5-u})")
        c = "0" if u == 0 else f"v[{d}:{d+3}]"
        a(f"v_mfma_f32_16x16x32_bf16 v[{d}:{d+3}], v[{V_KM+4*u}:{V_KM+4*u+3}], v[{V_Q+4*u}:{V_Q+4*u+3}], {c}")
    MX, TM = V_T1, V_T0
    a(f"""
    v_max3_f32 v{MX}, v{V_S}, v{V_S+1}, v{V_S+2}
    v_max3_f32 v{MX}, v{MX}, v{V_S+3}, v{V_S+4}
    v_max3_f32 v{MX}, v{MX}, v{V_S+5}, v{V_S+6}
    s_waitcnt vmcnt(0)
    v_mov_b32 v{V_VM+4}, v{V_VM+1}
    v_mov_b32 v{V_VM+6}, v{V_VM+3}
    s_nop 1
    v_max3_f32 v{MX}, v{MX}, v{V_S+7}, v{V_S+8}
    v_max_f32 v{TM}, v{MX}, v{V_S+9}
    v_max_f32 v{MX}, v{MX}, v{V_S+9}
    s_nop 1
    v_permlane16_swap_b32 v{MX}, v{TM}
    v_max_f32 v{MX}, v{MX}, v{TM}
    v_max_f32 v{TM}, v{MX}, v{TM}
    s_nop 1
    v_permlane32_swap_b32 v{MX}, v{TM}
    v_max_f32 v{MX}, v{MX}, v{TM}
    v_mul_f32 v{MX}, s{S_CST}, v{MX}
    """)
    for i in range(10):
        a(f"v_fma_f32 v{V_S+i}, v{V_S+i}, s{S_CST}, -v{MX}")
    for i in range(10):
        a(f"v_exp_f32 v{V_S+i}, v{V_S+i}")
    a("s_nop 0")
    for i in range(5):
        a(f"v_cvt_pk_bf16_f32 v{V_P+i}, v{V_S+2*i}, v{V_S+2*i+1}")
    a("s_nop 1")
    a(f"v_mfma_f32_16x16x32_bf16 v[{V_SM}:{V_SM+3}], v[{V_ONE}:{V_ONE+3}], v[{V_P}:{V_P+3}], 0")
    for i in range(4):
        a(f"v_mfma_f32_16x16x32_bf16 v[{V_O+4*i}:{V_O+4*i+3}], v[{V_V+4*i}:{V_V+4*i+3}], v[{V_P}:{V_P+3}], 0")
    a("s_nop 1")
    a(f"v_mfma_f32_16x16x16_bf16 v[{V_SM}:{V_SM+3}], v[{V_ONE}:{V_ONE+1}], v[{V_P+4}:{V_P+5}], v[{V_SM}:{V_SM+3}]")
    for i in range(4):
        vb = V_VM + 2 * (i >> 1) + 4 * (i & 1)
        a(f"v_mfma_f32_16x16x16_bf16 v[{V_O+4*i}:{V_O+4*i+3}], v[{vb}:{vb+1}], v[{V_P+4}:{V_P+5}], v[{V_O+4*i}:{V_O+4*i+3}]")
    a.nops(4)
    a(f"v_rcp_f32 v{V_SM}, v{V_SM}")
    a.nops(3)
    for i in range(8):
        a(f"v_pk_mul_f32 v[{V_O+2*i}:{V_O+2*i+1}], v[{V_O+2*i}:{V_O+2*i+1}], v[{V_SM}:{V_SM+1}] op_sel_hi:[1,0]")
    for i in range(8):
        a(f"v_cvt_pk_bf16_f32 v{V_S+i}, v{V_O+2*i}, v{V_O+2*i+1}")
    a(f"""
    buffer_store_dwordx4 v[{V_S}:{V_S+3}], v{V_OOW}, {SRD}, s{S_OW} offen sc1
    buffer_store_dwordx4 v[{V_S+4}:{V_S+7}], v{V_OOW}, {SRD}, s{S_OW} offen offset:2048 sc1
    s_add_u32 s{S_NEED}, s{S_SEG}, 1
    v_mov_b32 v{V_T1}, s{S_NEED}
    s_waitcnt vmcnt(0)
    s_barrier
    buffer_store_dword v{V_T1}, v{V_FMY}, {SRD}, 0 offen sc1
    {name}_xp:
    """)
    poll_guard(42)
    a(f"""
    buffer_load_dword v{V_T0}, v{V_FXF}, {SRD}, 0 offen sc1
    s_waitcnt vmcnt(0)
    v_cmp_ge_u32 vcc, s{S_SEG}, v{V_T0}
    s_cbranch_vccnz {name}_xp
    """)
    def fload(i):
        d = V_F + 4 * (i % NFR)
        if i % 4 == 0:
            a(f"s_add_u32 s{S_T0}, s{S_OR}, {i * 1024}")
        a(f"buffer_load_dwordx4 v[{d}:{d+3}], v{V_L16}, {SRD}, s{S_T0} offen offset:{(i & 3) * 1024}")
    PFD = NFR - 2
    for i in range(PFD): fload(i)
    for i in range(64):
        out = min(63, i + PFD - 1) - i
        a(f"s_waitcnt vmcnt({out})")
        d = V_F + 4 * (i % NFR)
        c = "0" if i == 0 else f"v[{V_ACC}:{V_ACC+15}]"
        a(f"v_mfma_f32_32x32x16_bf16 v[{V_ACC}:{V_ACC+15}], a[{4*i}:{4*i+3}], v[{d}:{d+3}], {c}")
        if i + PFD < 64: fload(i + PFD)
    a(f"""
    s_add_u32 s{S_T0}, s{S_SEG}, 2
    s_add_u32 s{S_T1}, s{S_G}, {NEARLY}
    s_cmp_lt_u32 s{S_T0}, {NEARLY}
    s_cselect_b32 s{S_T0}, s{S_T0}, s{S_T1}
    s_add_u32 s{S_T1}, s{S_SEG}, 6
    s_cmp_lt_u32 s{S_SEG}, {NEARLY}
    s_cselect_b32 s{S_SEG}, s{S_T0}, s{S_T1}
    """)
    a.nops(6)
    for q in range(4):
        a(f"ds_write_b128 v{V_LW}, v[{V_ACC+4*q}:{V_ACC+4*q+3}] offset:{1024*q}")
    a("s_waitcnt lgkmcnt(0)\ns_barrier")
    for w in range(4):
        a(f"ds_read_b128 v[{V_ACC+4*w}:{V_ACC+4*w+3}], v{V_LR} offset:{4096*w}")
    a(f"""
    s_waitcnt lgkmcnt(0)
    v_pk_add_f32 v[{V_ACC}:{V_ACC+1}], v[{V_ACC}:{V_ACC+1}], v[{V_ACC+4}:{V_ACC+5}]
    v_pk_add_f32 v[{V_ACC+2}:{V_ACC+3}], v[{V_ACC+2}:{V_ACC+3}], v[{V_ACC+6}:{V_ACC+7}]
    v_pk_add_f32 v[{V_ACC+8}:{V_ACC+9}], v[{V_ACC+8}:{V_ACC+9}], v[{V_ACC+12}:{V_ACC+13}]
    v_pk_add_f32 v[{V_ACC+10}:{V_ACC+11}], v[{V_ACC+10}:{V_ACC+11}], v[{V_ACC+14}:{V_ACC+15}]
    v_pk_add_f32 v[{V_ACC}:{V_ACC+1}], v[{V_ACC}:{V_ACC+1}], v[{V_ACC+8}:{V_ACC+9}]
    v_pk_add_f32 v[{V_ACC+2}:{V_ACC+3}], v[{V_ACC+2}:{V_ACC+3}], v[{V_ACC+10}:{V_ACC+11}]
    v_cvt_pk_bf16_f32 v{V_S}, v{V_ACC}, v{V_ACC+1}
    v_cvt_pk_bf16_f32 v{V_S+1}, v{V_ACC+2}, v{V_ACC+3}
    buffer_store_dwordx2 v[{V_S}:{V_S+1}], v{V_OUT}, s[{S_O}:{S_O+3}], s{S_OUT} offen
    """)
    if stamp: stamp()
    a(f"s_cmp_ge_u32 s{S_SEG}, 64\ns_cbranch_scc1 {name}_done")
    fetch_qkv("b")
    a(f"s_branch {name}_loop")
    a.label(f"{name}_done")
```

```python
import sys, json
from common import *
from gen_rec import rec_body, S_J, S_H, LDS_REC, WS_FL, WS_XB, WS_PROF
from gen_qkv import qkv_role
from gen_xo import xo_role
from gen_fft import gen_f0, gen_f1, gen_f2, gen_f3

DBG_F1, DBG_F2 = 64, 128
RECOPT = dict(preC=48, preA=40, xp=(18, 19), xd=(32,), vs=18, vbar=1, fsp=4)


def gen_mega(name, force_slow=False, wd=False, bprof=False, ropt={}, rprof=False, opt={}):
    a = Asm(); a.kernel_begin(name)
    S_W, S_D = 84, 88
    S_B, S_X, S_TK, S_GT, S_VOTE, S_TS, S_WDC = 92, 93, 94, 95, 100, 101, 83
    ro = dict(RECOPT); ro.update(ropt)

    def ts(srd=S_W):
        if not bprof: return
        l = a.newlabel(name + "_ts")
        a(f"""
        s_memrealtime vcc
        s_waitcnt lgkmcnt(0)
        s_mov_b64 exec, 1
        v_accvgpr_read_b32 v255, a255
        v_mov_b32 v255, vcc_lo
        s_nop 0
        buffer_store_dword v255, off, s[{srd}:{srd+3}], s{S_TS}
        s_mov_b64 exec, -1
        s_add_u32 s{S_TS}, s{S_TS}, 4
        """.replace("v_accvgpr_read_b32 v255, a255\n", ""))

    def wdog(code):
        if not wd: return
        a(f"""
        s_add_u32 s{S_WDC}, s{S_WDC}, 1
        s_cmp_gt_u32 s{S_WDC}, 300000
        s_movk_i32 s82, {code}
        s_cbranch_scc1 {name}_wdx
        """)

    a(f"""
    s_cmp_ge_u32 s2, 256
    s_cbranch_scc1 {name}_exit
    s_load_dwordx2 s[{S_W}:{S_W+1}], s[0:1], {KA_WS}
    s_load_dwordx2 s[{S_D}:{S_D+1}], s[0:1], {KA_DBG}
    s_getreg_b32 s{S_X}, hwreg(HW_REG_XCC_ID)
    s_and_b32 s{S_X}, s{S_X}, 7
    v_lshrrev_b32 v1, 6, v0
    v_mov_b32 v4, 0
    v_readfirstlane_b32 s80, v1
    v_mov_b32 v5, 0
    v_mov_b32 v6, 0
    v_mov_b32 v7, 0
    s_mov_b32 s{S_WDC}, 0
    s_lshl_b32 s{S_TS}, s2, 2
    s_add_u32 s{S_TS}, s{S_TS}, s80
    s_lshl_b32 s{S_TS}, s{S_TS}, 8
    s_add_u32 s{S_TS}, s{S_TS}, {220*MB}
    s_waitcnt lgkmcnt(0)
    s_mov_b32 s{S_W+2}, {WS_BYTES}
    s_mov_b32 s{S_W+3}, 0x00020000
    s_mov_b32 s{S_D+2}, 256
    s_mov_b32 s{S_D+3}, 0x00020000
    """)
    ts()
    a(f"""
    s_cmp_lg_u32 s80, 0
    s_cbranch_scc1 {name}_tkd
    v_lshlrev_b32 v1, 15, v0
    s_lshl_b32 s81, s2, 7
    s_add_u32 s81, s81, {WS_FL}
    s_mov_b64 exec, 3
    buffer_store_dword v4, v1, s[{S_W}:{S_W+3}], s81 offen sc1
    s_lshl_b32 s81, s{S_X}, 3
    s_lshl_b64 s[78:79], 1, s81
    v_mov_b32 v2, s78
    v_mov_b32 v3, s79
    s_mov_b64 exec, 1
    s_waitcnt vmcnt(0)
    buffer_atomic_add_x2 v[2:3], off, s[{S_D}:{S_D+3}], 0 sc0
    s_mov_b64 exec, -1
    s_cmp_ge_u32 s{S_X}, 2
    s_cbranch_scc1 {name}_nopr
    v_lshlrev_b32 v1, 4, v0
    s_and_b32 s81, s2, 127
    s_lshl_b32 s81, s81, 14
    s_add_u32 s81, s81, {WS_XB}
    s_add_u32 s77, s81, 8192
    buffer_store_dwordx4 v[4:7], v1, s[{S_W}:{S_W+3}], s81 offen sc1
    buffer_store_dwordx4 v[4:7], v1, s[{S_W}:{S_W+3}], s77 offen sc1
    s_waitcnt vmcnt(0)
    s_memtime s[70:71]
    buffer_store_dwordx4 v[4:7], v1, s[{S_W}:{S_W+3}], s81 offen sc1
    s_waitcnt vmcnt(0)
    s_memtime s[72:73]
    buffer_store_dwordx4 v[4:7], v1, s[{S_W}:{S_W+3}], s77 offen sc1
    s_waitcnt vmcnt(0)
    s_memtime s[74:75]
    s_waitcnt lgkmcnt(0)
    s_sub_u32 s74, s74, s72
    s_sub_u32 s72, s72, s70
    s_cmp_lt_u32 s74, s72
    s_cselect_b32 s81, 0x10001, 1
    v_mov_b32 v8, s81
    s_mov_b64 exec, 1
    buffer_atomic_add v8, off, s[{S_D}:{S_D+3}], 0 offset:12 sc1
    s_mov_b64 exec, -1
    {name}_nopr:
    {name}_tkw:
    """)
    wdog(2)
    a(f"""
    buffer_load_dwordx2 v[6:7], off, s[{S_D}:{S_D+3}], 0 sc1
    s_waitcnt vmcnt(0)
    v_sad_u8 v1, v6, 0, 0
    v_sad_u8 v1, v7, 0, v1
    v_cmp_ne_u32 vcc, 256, v1
    s_cbranch_vccnz {name}_tkw
    s_mov_b64 exec, 1
    ds_write_b64 v4, v[2:3]
    ds_write_b64 v4, v[6:7] offset:8
    s_mov_b64 exec, -1
    s_waitcnt lgkmcnt(0)
    {name}_tkd:
    s_barrier
    ds_read_b128 v[8:11], v4
    s_waitcnt lgkmcnt(0)
    v_sad_u8 v1, v8, 0, 0
    v_sad_u8 v1, v9, 0, v1
    v_readfirstlane_b32 s78, v8
    v_readfirstlane_b32 s79, v9
    v_readfirstlane_b32 s76, v10
    v_readfirstlane_b32 s77, v11
    v_readfirstlane_b32 s{S_GT}, v1
    s_barrier
    s_and_b32 s{S_VOTE}, s76, 255
    s_bfe_u32 s81, s76, 0x80008
    s_add_u32 s{S_VOTE}, s{S_VOTE}, s81
    s_lshl_b32 s81, s{S_X}, 3
    s_lshr_b64 s[78:79], s[78:79], s81
    s_and_b32 s{S_TK}, s78, 255
    s_cmp_eq_u32 s76, 0x20202020
    s_cbranch_scc0 {name}_slow
    s_cmp_eq_u32 s77, 0x20202020
    s_cbranch_scc0 {name}_slow
    """)
    if force_slow: a(f"s_branch {name}_slow")
    a(f"""
    s_mov_b32 s{S_J}, s{S_X}
    s_mov_b32 s{S_H}, s{S_TK}
    s_cmp_lt_u32 s{S_X}, 2
    s_cbranch_scc1 {name}_recf
    s_sub_u32 s{S_B}, s{S_X}, 2
    s_lshl_b32 s{S_B}, s{S_B}, 5
    s_add_u32 s{S_B}, s{S_B}, s{S_TK}
    s_branch {name}_bulk
    {name}_slow:
    s_lshr_b32 s{S_J}, s{S_GT}, 5
    s_and_b32 s{S_H}, s{S_GT}, 31
    s_cmp_lt_u32 s{S_GT}, 64
    s_cbranch_scc1 {name}_recs
    s_sub_u32 s{S_B}, s{S_GT}, 64
    s_branch {name}_bulk
    {name}_exit:
    s_endpgm
    """)
    if wd:
        a(f"""
        {name}_wdx:
        s_mov_b64 exec, 1
        v_mov_b32 v1, s82
        s_lshl_b32 s81, s2, 2
        s_add_u32 s81, s81, {WS_PROF + MB + 1024}
        buffer_store_dword v1, off, s[{S_W}:{S_W+3}], s81
        s_endpgm
        """)
    a.label(f"{name}_recf")
    def rts():
        if not bprof: return
        a(f"""
        s_memrealtime vcc
        s_waitcnt lgkmcnt(0)
        s_mov_b64 exec, 1
        v_mov_b32 v3, vcc_lo
        s_nop 0
        buffer_store_dword v3, off, s[4:7], s{S_TS}
        s_mov_b64 exec, -1
        s_add_u32 s{S_TS}, s{S_TS}, 4
        """)
    ts()
    rec_body(a, name + "_rf", "", wd=wd, full=True, S_VOTE=S_VOTE, opt=ro, prof=rprof, tstamp=rts)
    a.label(f"{name}_recs")
    if opt.get("noslow"): a("s_endpgm")
    else: rec_body(a, name + "_rs", "sc1", wd=wd, full=True, S_VOTE=S_VOTE, opt=RECOPT)

    a.label(f"{name}_bulk")
    ts()
    qkv_role(a, name + "_q", S_B, S_W, S_D, stamp=ts, opt=opt)
    ts()

    def signal(off):
        a(f"""
        s_waitcnt vmcnt(0)
        s_barrier
        v_mov_b32 v2, 1
        v_cmp_eq_u32 vcc, 0, v0
        s_and_saveexec_b64 s[80:81], vcc
        s_cbranch_execz {name}_sg{off}_{a.uid}
        buffer_atomic_add v2, off, s[{S_D}:{S_D+3}], 0 offset:{off} sc1
        {name}_sg{off}_{a.uid}:
        s_mov_b64 exec, s[80:81]
        """)
        a.uid += 1

    def wait(off, n, tag):
        a.label(f"{name}_w{tag}")
        wdog(50)
        a(f"""
        s_sleep 8
        buffer_load_dword v2, off, s[{S_D}:{S_D+3}], 0 offset:{off} sc1
        s_waitcnt vmcnt(0)
        v_cmp_ne_u32 vcc, {n}, v2
        s_cbranch_vccnz {name}_w{tag}
        """)
    a(f"""
    s_cmp_lt_u32 s{S_B}, 128
    s_cbranch_scc1 {name}_fft
    s_sub_u32 s99, s{S_B}, 128
    {name}_f0l:
    s_barrier
    """)
    gen_f0(a, name + "_f0", role=99, noend=True)
    a(f"""
    s_add_u32 s99, s99, 64
    s_cmp_lt_u32 s99, 288
    s_cbranch_scc1 {name}_f0l
    """)
    signal(DBG_F1)
    a(f"s_branch {name}_xo")
    a.label(f"{name}_fft")
    gen_f1(a, name + "_f1", role=S_B)
    signal(DBG_F1)
    ts()
    wait(DBG_F1, 192, "f1")
    a(f"s_mov_b32 s99, s{S_B}")
    a.label(f"{name}_f2l")
    gen_f2(a, name + "_f2", role=99)
    signal(DBG_F2)
    a(f"""
    s_cmp_eq_u32 s99, 0
    s_cbranch_scc0 {name}_f2d
    s_mov_b32 s99, 128
    s_branch {name}_f2l
    {name}_f2d:
    """)
    ts()
    wait(DBG_F2, 129, "f2")
    gen_f3(a, name + "_f3", role=S_B)
    a.label(f"{name}_xo")
    ts()
    xo_role(a, name + "_x", S_B, S_W, wd=wdog if wd else None, opt=opt, stamp=ts)
    a("s_endpgm")
    return (name, a.text(), kd(name, 512, sgpr=102, accum=256), 256, 256, LDS_REC)


if __name__ == "__main__":
    out = sys.argv[1]
    kw = eval(sys.argv[2]) if len(sys.argv) > 2 else {}
    write_file(out, [gen_mega("mega_kernel", **kw)])
```

```python
import math, struct
from common import *
WS_T1 = 92 * MB
WS_T2 = 104 * MB

WS_WT = 116 * MB
SCALE = 0.5 / (2048.0 * 1024.0)


def flit(x):
    return "0x%08x" % struct.unpack("<I", struct.pack("<f", x))[0]


class RegFFT:
    def __init__(self, a, re, im, temps):
        self.a, self.re, self.im, self.t = a, list(re), list(im), list(temps)

    def fft(self, sign):
        a = self.a
        n = len(self.re)
        re, im = self.re, self.im
        span = n // 2
        while span >= 1:
            for start in range(0, n, 2 * span):
                for j in range(span):
                    p, q = start + j, start + j + span
                    num, den = j, 2 * span
                    tr, ti = self.t[0], self.t[1]
                    if num == 0:
                        a(f"v_sub_f32 v{tr}, v{re[p]}, v{re[q]}")
                        a(f"v_sub_f32 v{ti}, v{im[p]}, v{im[q]}")
                        a(f"v_add_f32 v{re[p]}, v{re[p]}, v{re[q]}")
                        a(f"v_add_f32 v{im[p]}, v{im[p]}, v{im[q]}")
                        self.t[0], re[q] = re[q], tr
                        self.t[1], im[q] = im[q], ti
                    elif 4 * num == den:
                        if sign > 0:
                            a(f"v_sub_f32 v{tr}, v{im[q]}, v{im[p]}")
                            a(f"v_sub_f32 v{ti}, v{re[p]}, v{re[q]}")
                        else:
                            a(f"v_sub_f32 v{tr}, v{im[p]}, v{im[q]}")
                            a(f"v_sub_f32 v{ti}, v{re[q]}, v{re[p]}")
                        a(f"v_add_f32 v{re[p]}, v{re[p]}, v{re[q]}")
                        a(f"v_add_f32 v{im[p]}, v{im[p]}, v{im[q]}")
                        self.t[0], re[q] = re[q], tr
                        self.t[1], im[q] = im[q], ti
                    else:
                        c = math.cos(2 * math.pi * num / den)
                        s = sign * math.sin(2 * math.pi * num / den)
                        a(f"v_sub_f32 v{tr}, v{re[p]}, v{re[q]}")
                        a(f"v_sub_f32 v{ti}, v{im[p]}, v{im[q]}")
                        a(f"v_add_f32 v{re[p]}, v{re[p]}, v{re[q]}")
                        a(f"v_add_f32 v{im[p]}, v{im[p]}, v{im[q]}")
                        a(f"v_mul_f32 v{re[q]}, {flit(c)}, v{tr}")
                        a(f"v_mul_f32 v{im[q]}, {flit(s)}, v{tr}")
                        a(f"v_fmac_f32 v{re[q]}, {flit(-s)}, v{ti}")
                        a(f"v_fmac_f32 v{im[q]}, {flit(c)}, v{ti}")
            span //= 2
        bits = n.bit_length() - 1
        rev = [int(format(i, f"0{bits}b")[::-1], 2) for i in range(n)]
        self.re = [re[rev[i]] for i in range(n)]
        self.im = [im[rev[i]] for i in range(n)]

    def twiddle(self, vx, den, sign, scale_idx=1):
        a = self.a
        re, im = self.re, self.im
        tA, tC, tS, tR = self.t[0], self.t[1], self.t[2], self.t[3]
        for k in range(1, len(re)):
            a(f"v_mul_f32 v{tA}, {flit(sign * k / den)}, v{vx}")
            a(f"v_cos_f32 v{tC}, v{tA}")
            a(f"v_sin_f32 v{tS}, v{tA}")
            a("s_nop 0")
            a(f"v_mul_f32 v{tR}, v{re[k]}, v{tC}")
            a(f"v_fma_f32 v{tR}, -v{im[k]}, v{tS}, v{tR}")
            a(f"v_mul_f32 v{im[k]}, v{im[k]}, v{tC}")
            a(f"v_fmac_f32 v{im[k]}, v{re[k]}, v{tS}")
            self.t[3], re[k] = re[k], tR
            tR = self.t[3]


def srd(a, s, ptr_lo, nbytes):
    a(f"s_mov_b32 s{s+2}, {nbytes}")
    a(f"s_mov_b32 s{s+3}, 0x00020000")


def fft1024(a, F, v_tau_f, v_lw, v_lr, sign):
    F.fft(sign)
    F.twiddle(v_tau_f, 1024.0, sign)
    for k in range(32):
        a(f"ds_write_b32 v{v_lw}, v{F.re[k]} offset:{k*264}")
        a(f"ds_write_b32 v{v_lw}, v{F.im[k]} offset:{k*264+4}")
    a("s_waitcnt lgkmcnt(0)")
    for n in range(32):
        a(f"ds_read_b32 v{F.re[n]}, v{v_lr} offset:{n*8}")
        a(f"ds_read_b32 v{F.im[n]}, v{v_lr} offset:{n*8+4}")
        if n % 7 == 6:
            a("s_waitcnt lgkmcnt(0)")
    a("s_waitcnt lgkmcnt(0)")
    F.fft(sign)


def gen_f0(a: Asm, name, role=None, noend=False, pre_store=None):
    SI = "s2" if role is None else f"s{role}"
    if role is None:
        a.kernel_begin(name)
        a(f"s_cmp_ge_u32 s2, 288\ns_cbranch_scc1 {name}_end")
    a(f"""
    s_load_dwordx2 s[4:5], s[0:1], {KA_WR}
    s_load_dwordx2 s[8:9], s[0:1], {KA_WI}
    s_load_dwordx2 s[12:13], s[0:1], {KA_WS}
    s_and_b32 s16, {SI}, 31       ; k0 tile
    s_lshr_b32 s17, {SI}, 5
    v_and_b32 v1, 63, v0
    v_lshrrev_b32 v2, 6, v0
    s_waitcnt lgkmcnt(0)
    s_mov_b32 s6, {2048*513*2}
    s_mov_b32 s7, 0x00020000
    s_mov_b32 s10, {2048*513*2}
    s_mov_b32 s11, 0x00020000
    s_add_u32 s12, s12, {WS_WT}
    s_addc_u32 s13, s13, 0
    s_mov_b32 s14, {513*8192}
    s_mov_b32 s15, 0x00020000
    s_lshl_b32 s18, s16, 6
    v_add_u32 v3, s18, v2
    s_movk_i32 s19, 1026
    v_mul_lo_u32 v3, v3, s19
    s_lshl_b32 s18, s17, 7
    v_add_u32 v3, s18, v3
    v_lshl_add_u32 v3, v1, 1, v3
    """)
    for i in range(16):
        a(f"s_mov_b32 s18, {4*1026*i}")
        a(f"buffer_load_ushort v{16+i}, v3, s[4:7], s18 offen")
        a(f"buffer_load_ushort v{32+i}, v3, s[8:11], s18 offen")
    a(f"""
    v_mul_u32_u24 v4, 65, v1
    v_add_u32 v4, v4, v2
    v_lshlrev_b32 v4, 2, v4
    s_waitcnt vmcnt(0)
    """)
    for i in range(16):
        a(f"v_lshl_or_b32 v{16+i}, v{32+i}, 16, v{16+i}")
        a(f"ds_write_b32 v4, v{16+i} offset:{16*i}")
    a(f"""
    v_lshrrev_b32 v7, 4, v0
    v_and_b32 v8, 15, v0
    v_mul_u32_u24 v5, 65, v7
    v_lshl_add_u32 v5, v8, 2, v5
    v_lshlrev_b32 v5, 2, v5
    s_waitcnt lgkmcnt(0)
    s_barrier
    """)
    for i in range(4):
        for r in range(4):
            a(f"ds_read_b32 v{16+4*i+r}, v5 offset:{16*65*4*i + 4*r}")
    a(f"""
    s_lshl_b32 s18, s17, 6
    v_add_u32 v6, s18, v7
    v_lshlrev_b32 v6, 13, v6
    s_lshl_b32 s18, s16, 8
    v_add_u32 v6, s18, v6
    v_lshl_add_u32 v6, v8, 4, v6
    s_waitcnt lgkmcnt(0)
    """)
    if pre_store: pre_store()
    for i in range(4):
        a(f"s_mov_b32 s18, {16*8192*i}")
        a(f"buffer_store_dwordx4 v[{16+4*i}:{19+4*i}], v6, s[12:15], s18 offen{' sc1' if noend else ''}")
    if noend:
        return
    if role is not None:
        a("s_endpgm")
        return 288
    a.label(f"{name}_end")
    a("s_endpgm")
    return kd(name, 48, sgpr=24), 288, 64 * 65 * 4


def gen_f1(a: Asm, name, role=None, pre_store=None):
    ST = "s2" if role is None else f"s{role}"
    SCX = "" if role is None else " sc1"
    if role is None:
        a.kernel_begin(name)
        a(f"s_cmp_ge_u32 s2, 128\ns_cbranch_scc1 {name}_end")
    else:
        a("s_barrier")
    V_TAU, V_F, V_TAUF, V_LW, V_LR, V_T0, V_T1, V_T2 = 1, 2, 3, 4, 5, 6, 7, 8
    RE = list(range(16, 48)); IM = list(range(48, 80)); TMP = list(range(80, 84))
    FB = 8448
    a(f"""
    s_load_dwordx2 s[4:5], s[0:1], {KA_BX}
    s_load_dwordx2 s[8:9], s[0:1], {KA_WS}
    v_and_b32 v{V_TAU}, 31, v0
    v_lshrrev_b32 v{V_F}, 5, v0
    v_cvt_f32_u32 v{V_TAUF}, v{V_TAU}
    s_waitcnt lgkmcnt(0)
    s_mov_b32 s6, {4*MB}
    s_mov_b32 s7, 0x00020000
    s_mov_b32 s10, {WS_BYTES}
    s_mov_b32 s11, 0x00020000
    s_lshl_b32 s12, {ST}, 15
    v_lshlrev_b32 v{V_T0}, 12, v{V_F}
    v_lshl_add_u32 v{V_T0}, v{V_TAU}, 1, v{V_T0}
    """)
    for i in range(32):
        a(f"buffer_load_ushort v{RE[i]}, v{V_T0}, s[4:7], s12 offen offset:{64*i}")
        a(f"buffer_load_ushort v{IM[i]}, v{V_T0}, s[4:7], s12 offen offset:{2048+64*i}")
    a(f"""
    s_movk_i32 s13, {FB}
    v_mul_lo_u32 v{V_T1}, v{V_F}, s13
    v_lshl_add_u32 v{V_LW}, v{V_TAU}, 3, v{V_T1}
    s_movk_i32 s13, 264
    v_mul_lo_u32 v{V_LR}, v{V_TAU}, s13
    v_add_u32 v{V_LR}, v{V_LR}, v{V_T1}
    s_waitcnt vmcnt(0)
    """)
    for i in range(32):
        a(f"v_lshlrev_b32 v{RE[i]}, 16, v{RE[i]}")
        a(f"v_lshlrev_b32 v{IM[i]}, 16, v{IM[i]}")
    F = RegFFT(a, RE, IM, TMP)
    fft1024(a, F, V_TAUF, V_LW, V_LR, -1)
    for i in range(32):
        a(f"ds_write_b32 v{V_LW}, v{F.re[i]} offset:{256*i}")
        a(f"ds_write_b32 v{V_LW}, v{F.im[i]} offset:{256*i+4}")
    a("s_waitcnt lgkmcnt(0)\ns_barrier")
    if pre_store: pre_store()
    a(f"""
    v_and_b32 v{V_T0}, 7, v0
    v_lshrrev_b32 v{V_T1}, 3, v0
    s_movk_i32 s13, {FB}
    v_mul_lo_u32 v{V_T2}, v{V_T0}, s13          ; f*FB
    v_lshl_add_u32 v{V_LW}, v{V_T1}, 3, v{V_T2}
    ; global: T1 + k*16384 + (16b + 2f)*8
    v_lshlrev_b32 v{V_LR}, 14, v{V_T1}
    v_lshl_add_u32 v{V_LR}, v{V_T0}, 4, v{V_LR}
    s_lshl_b32 s12, {ST}, 7
    s_add_u32 s12, s12, {WS_T1}
    """)
    for it in range(17):
        a(f"""
        v_sub_u32 v{V_T0}, {1024 - 32*it}, v{V_T1}
        v_and_b32 v{V_T0}, 1023, v{V_T0}
        v_lshl_add_u32 v{V_T0}, v{V_T0}, 3, v{V_T2}
        ds_read_b64 v[16:17], v{V_LW} offset:{256*it}
        ds_read_b64 v[18:19], v{V_T0}
        s_waitcnt lgkmcnt(0)
        v_add_f32 v20, v16, v18      ; ar+br
        v_sub_f32 v21, v17, v19      ; ai-bi
        v_add_f32 v22, v17, v19      ; ai+bi
        v_sub_f32 v23, v18, v16      ; br-ar
        s_mov_b32 s13, s12
        """)
        if it == 16:
            a(f"v_cmp_eq_u32 vcc, 0, v{V_T1}")
            a("s_and_saveexec_b64 s[14:15], vcc")
        a(f"s_add_u32 s13, s12, {it * 32 * 16384}")
        a(f"buffer_store_dwordx4 v[20:23], v{V_LR}, s[8:11], s13 offen{SCX}")
        a.nops(2)
    if role is not None:
        a("s_mov_b64 exec, -1")
        return
    a.label(f"{name}_end")
    a("s_endpgm")
    return kd(name, 96, sgpr=24), 128, 8 * FB


def gen_f3(a: Asm, name, role=None, ost=''):
    ST = "s2" if role is None else f"s{role}"
    if role is None:
        a.kernel_begin(name)
        a(f"s_cmp_ge_u32 s2, 128\ns_cbranch_scc1 {name}_end")
    else:
        a("s_barrier")
    V_TAU, V_F, V_TAUF, V_LW, V_LR, V_T0, V_T1, V_T2 = 1, 2, 3, 4, 5, 6, 7, 8
    RE = list(range(16, 48)); IM = list(range(48, 80)); TMP = list(range(80, 84))
    FB = 8448
    a(f"""
    s_load_dwordx2 s[4:5], s[0:1], {KA_OUT}
    s_load_dwordx2 s[8:9], s[0:1], {KA_WS}
    v_and_b32 v{V_T0}, 7, v0
    v_lshrrev_b32 v{V_T1}, 3, v0
    s_movk_i32 s13, {FB}
    v_mul_lo_u32 v{V_T2}, v{V_T0}, s13          ; f*FB
    v_lshl_add_u32 v{V_LW}, v{V_T1}, 3, v{V_T2}
    v_lshlrev_b32 v{V_LR}, 14, v{V_T1}
    v_lshl_add_u32 v{V_LR}, v{V_T0}, 4, v{V_LR}
    s_lshl_b32 s12, {ST}, 7
    s_add_u32 s12, s12, {WS_T2}
    s_waitcnt lgkmcnt(0)
    s_mov_b32 s6, {8*MB}
    s_mov_b32 s7, 0x00020000
    s_mov_b32 s10, {WS_BYTES}
    s_mov_b32 s11, 0x00020000
    """)
    for it in range(17):
        a(f"s_add_u32 s13, s12, {it * 32 * 16384}")
        a(f"buffer_load_dwordx4 v[{16+4*it}:{19+4*it}], v{V_LR}, s[8:11], s13 offen")
    a("s_waitcnt vmcnt(0)")
    a(f"v_cmp_eq_u32 vcc, 0, v{V_T1}")
    a.nops(2)
    a("v_mov_b32 v9, 0")
    for it in (0, 16):
        b = 16 + 4 * it
        a(f"v_cndmask_b32 v{b+1}, v{b+1}, v9, vcc")
        a(f"v_cndmask_b32 v{b+3}, v{b+3}, v9, vcc")
    for it in range(17):
        b = 16 + 4 * it
        if it == 16:
            a("s_and_saveexec_b64 s[14:15], vcc")
        a(f"""
        v_sub_u32 v{V_T0}, {1024 - 32*it}, v{V_T1}
        v_and_b32 v{V_T0}, 1023, v{V_T0}
        v_lshl_add_u32 v{V_T0}, v{V_T0}, 3, v{V_T2}
        v_sub_f32 v10, v{b}, v{b+3}
        v_add_f32 v11, v{b+1}, v{b+2}
        v_add_f32 v12, v{b}, v{b+3}
        v_sub_f32 v13, v{b+2}, v{b+1}
        ds_write_b64 v{V_LW}, v[10:11] offset:{256*it}
        ds_write_b64 v{V_T0}, v[12:13]
        """)
        if it == 16:
            a("s_mov_b64 exec, s[14:15]")
    a(f"""
    s_waitcnt lgkmcnt(0)
    s_barrier
    v_and_b32 v{V_TAU}, 31, v0
    v_lshrrev_b32 v{V_F}, 5, v0
    v_cvt_f32_u32 v{V_TAUF}, v{V_TAU}
    s_movk_i32 s13, {FB}
    v_mul_lo_u32 v{V_T1}, v{V_F}, s13
    v_lshl_add_u32 v{V_LW}, v{V_TAU}, 3, v{V_T1}
    s_movk_i32 s13, 264
    v_mul_lo_u32 v{V_LR}, v{V_TAU}, s13
    v_add_u32 v{V_LR}, v{V_LR}, v{V_T1}
    """)
    for i in range(32):
        a(f"ds_read_b32 v{RE[i]}, v{V_LW} offset:{256*i}")
        a(f"ds_read_b32 v{IM[i]}, v{V_LW} offset:{256*i+4}")
        if i % 7 == 6:
            a("s_waitcnt lgkmcnt(0)")
    a("s_waitcnt lgkmcnt(0)")
    F = RegFFT(a, RE, IM, TMP)
    fft1024(a, F, V_TAUF, V_LW, V_LR, +1)
    a(f"v_lshl_add_u32 v{V_T0}, v{V_TAU}, 2, v{V_T1}")
    for i in range(32):
        a(f"ds_write_b32 v{V_T0}, v{F.re[i]} offset:{128*i}")
        a(f"ds_write_b32 v{V_T0}, v{F.im[i]} offset:{4096+128*i}")
    a("s_waitcnt lgkmcnt(0)\ns_barrier")
    a(f"""
    v_and_b32 v{V_T0}, 127, v0
    v_lshrrev_b32 v{V_T1}, 7, v0
    v_lshlrev_b32 v{V_T2}, 5, v{V_T0}            ; c*32 B (lds)
    v_lshl_add_u32 v{V_T2}, v{V_T1}, 12, v{V_T2}  ; + ab*4096
    v_lshlrev_b32 v{V_LR}, 4, v{V_T0}
    v_lshl_add_u32 v{V_LR}, v{V_T1}, 12, v{V_LR}
    v_add_u32 v{V_LR}, 2048, v{V_LR}
    s_lshl_b32 s12, {ST}, 16
    """)
    for j in range(8):
        a(f"""
        ds_read_b128 v[16:19], v{V_T2} offset:{FB*j}
        ds_read_b128 v[20:23], v{V_T2} offset:{FB*j+16}
        s_waitcnt lgkmcnt(0)
        v_cvt_pk_bf16_f32 v24, v16, v17
        v_cvt_pk_bf16_f32 v25, v18, v19
        v_cvt_pk_bf16_f32 v26, v20, v21
        v_cvt_pk_bf16_f32 v27, v22, v23
        s_add_u32 s13, s12, {8192*j}
        buffer_store_dwordx4 v[24:27], v{V_LR}, s[4:7], s13 offen {ost}
        s_nop 1
        """)
    if role is not None:
        return
    a.label(f"{name}_end")
    a("s_endpgm")
    return kd(name, 96, sgpr=24), 128, 8 * FB


def gen_f2(a: Asm, name, role=None):
    ST = "s2" if role is None else f"s{role}"
    SCX = "" if role is None else " sc1"
    if role is None:
        a.kernel_begin(name)
    else:
        a("s_barrier")
        a.label(f"{name}_in")
    V_L, V_LF, V_LW, V_LR, V_T0, V_T1, V_B, V_K1F, V_SG, V_BF = 1, 2, 3, 4, 5, 6, 7, 8, 9, 10
    RE = [16 + 2 * i for i in range(32)]; IM = [17 + 2 * i for i in range(32)]; TMP = list(range(80, 88))
    WB = 32 * 66 * 8
    a(f"""
    s_load_dwordx2 s[8:9], s[0:1], {KA_WS}
    v_lshrrev_b32 v{V_T0}, 6, v0
    v_and_b32 v{V_L}, 63, v0
    v_readfirstlane_b32 s12, v{V_T0}
    s_lshl_b32 s13, {ST}, 2
    s_add_u32 s13, s13, s12          ; column
    s_cmp_ge_u32 s13, 513
    s_cbranch_scc1 {name}_end
    v_cvt_f32_u32 v{V_LF}, v{V_L}
    s_waitcnt lgkmcnt(0)
    s_mov_b32 s10, {WS_BYTES}
    s_mov_b32 s11, 0x00020000
    s_lshl_b32 s14, s13, 14          ; col*16384
    s_add_u32 s15, s14, {WS_T1}
    v_lshlrev_b32 v{V_T0}, 3, v{V_L}
    """)
    for i in range(32):
        a(f"s_add_u32 s16, s15, {512*i}")
        a(f"buffer_load_dwordx2 v[{RE[i]}:{IM[i]}], v{V_T0}, s[8:11], s16 offen")
    a(f"""
    s_mul_i32 s17, s12, {WB}
    v_lshlrev_b32 v{V_LW}, 3, v{V_L}
    v_add_u32 v{V_LW}, s17, v{V_LW}
    v_and_b32 v{V_B}, 1, v{V_L}
    v_lshrrev_b32 v{V_T1}, 1, v{V_L}          ; k1
    v_cvt_f32_u32 v{V_K1F}, v{V_T1}
    v_cvt_f32_u32 v{V_BF}, v{V_B}
    s_movk_i32 s18, 528
    v_mul_lo_u32 v{V_LR}, v{V_T1}, s18
    v_lshl_add_u32 v{V_LR}, v{V_B}, 3, v{V_LR}
    v_add_u32 v{V_LR}, s17, v{V_LR}
    ; sign = 1 - 2b
    v_mov_b32 v{V_SG}, 1.0
    v_fma_f32 v{V_SG}, v{V_BF}, -2.0, v{V_SG}
    ; W offset: b*4096 + k1*4 (+128 k2')
    v_lshlrev_b32 v{V_T0}, 12, v{V_B}
    v_lshl_add_u32 v11, v{V_T1}, 2, v{V_T0}
    s_lshl_b32 s19, s13, 13
    s_add_u32 s19, s19, {WS_WT}
    s_waitcnt vmcnt(0)
    """)
    F = RegFFT(a, RE, IM, TMP)
    F.fft(-1)
    F.twiddle(V_LF, 2048.0, -1)
    for k in range(32):
        a(f"ds_write_b32 v{V_LW}, v{F.re[k]} offset:{k*528}")
        a(f"ds_write_b32 v{V_LW}, v{F.im[k]} offset:{k*528+4}")
    a("s_waitcnt lgkmcnt(0)")
    for m in range(32):
        a(f"ds_read_b32 v{F.re[m]}, v{V_LR} offset:{m*16}")
        a(f"ds_read_b32 v{F.im[m]}, v{V_LR} offset:{m*16+4}")
        if m % 7 == 6:
            a("s_waitcnt lgkmcnt(0)")
    a("s_waitcnt lgkmcnt(0)")
    WR = 88
    for k in range(32):
        a(f"buffer_load_dword v{WR+k}, v11, s[8:11], s19 offen offset:{128*k}")
    F.fft(-1)
    F.twiddle(V_BF, 64.0, -1)
    tA = F.t[0]

    def cross():
        for k in range(32):
            for arr in (F.re, F.im):
                a(f"v_mov_b32_dpp v{F.t[0]}, v{arr[k]} quad_perm:[1,0,3,2] row_mask:0xf bank_mask:0xf")
                a(f"v_fma_f32 v{arr[k]}, v{arr[k]}, v{V_SG}, v{F.t[0]}")
    a.nops(2)
    cross()
    a("s_waitcnt vmcnt(0)")
    a(f"s_mov_b32 s20, {flit(SCALE)}")
    for k in range(32):
        t0, t1, t2 = F.t[0], F.t[1], F.t[2]
        a(f"v_lshlrev_b32 v{t0}, 16, v{WR+k}")
        a(f"v_and_b32 v{t1}, 0xffff0000, v{WR+k}")
        a(f"v_mul_f32 v{t0}, s20, v{t0}")
        a(f"v_mul_f32 v{t1}, s20, v{t1}")
        a(f"v_mul_f32 v{t2}, v{F.re[k]}, v{t0}")
        a(f"v_fma_f32 v{t2}, -v{F.im[k]}, v{t1}, v{t2}")
        a(f"v_mul_f32 v{F.im[k]}, v{F.im[k]}, v{t0}")
        a(f"v_fmac_f32 v{F.im[k]}, v{F.re[k]}, v{t1}")
        F.t[2], F.re[k] = F.re[k], t2
    a.nops(2)
    cross()
    F.twiddle(V_BF, 64.0, +1)
    F.fft(+1)
    F.twiddle_n2 = None
    a(f"v_mul_f32 v12, v{V_BF}, v{V_K1F}")
    a(f"v_mul_f32 v12, {flit(1.0/2048.0)}, v12")
    tA, tC, tS, tR = F.t[0], F.t[1], F.t[2], F.t[3]
    for m in range(32):
        a(f"v_mov_b32 v{tA}, v12")
        a(f"v_fmac_f32 v{tA}, {flit(2.0*m/2048.0)}, v{V_K1F}")
        a(f"v_cos_f32 v{tC}, v{tA}")
        a(f"v_sin_f32 v{tS}, v{tA}")
        a("s_nop 0")
        a(f"v_mul_f32 v{tR}, v{F.re[m]}, v{tC}")
        a(f"v_fma_f32 v{tR}, -v{F.im[m]}, v{tS}, v{tR}")
        a(f"v_mul_f32 v{F.im[m]}, v{F.im[m]}, v{tC}")
        a(f"v_fmac_f32 v{F.im[m]}, v{F.re[m]}, v{tS}")
        F.t[3], F.re[m] = F.re[m], tR
        tR = F.t[3]
    for m in range(32):
        a(f"ds_write_b32 v{V_LR}, v{F.re[m]} offset:{m*16}")
        a(f"ds_write_b32 v{V_LR}, v{F.im[m]} offset:{m*16+4}")
    a("s_waitcnt lgkmcnt(0)")
    for k in range(32):
        a(f"ds_read_b32 v{F.re[k]}, v{V_LW} offset:{k*528}")
        a(f"ds_read_b32 v{F.im[k]}, v{V_LW} offset:{k*528+4}")
        if k % 7 == 6:
            a("s_waitcnt lgkmcnt(0)")
    a("s_waitcnt lgkmcnt(0)")
    F.fft(+1)
    a(f"s_add_u32 s15, s14, {WS_T2}")
    a(f"v_lshlrev_b32 v{V_T0}, 3, v{V_L}")
    for i in range(32):
        a(f"s_add_u32 s16, s15, {512*i}")
        pr = 88 + 2 * (i % 8)
        a(f"v_mov_b32 v{pr}, v{F.re[i]}")
        a(f"v_mov_b32 v{pr+1}, v{F.im[i]}")
        a(f"buffer_store_dwordx2 v[{pr}:{pr+1}], v{V_T0}, s[8:11], s16 offen{SCX}")
    a.label(f"{name}_end")
    if role is not None:
        return
    a("s_endpgm")
    return kd(name, 120, sgpr=24), 129, 4 * WB
```

```python
from common import *
from gen_rec import WS_QX, WS_FL


def load_weights_tr(a, name, S_W, S_WAVE, S_T0, S_M0, so_base, row_bytes, krows_per_wave, permkind, S_BASE):
    pass


def qkv_role(a: Asm, name, S_B, S_WS, S_DBG, stamp=None, opt={}, hooks=None):
    S_A, S_W = 8, 12
    S_WAVE, S_MAT, S_H, S_P, S_T0, S_T1 = 16, 17, 18, 19, 20, 21
    S_M0, S_SA, S_SO, S_IT, S_FL = 22, 23, 24, 25, 26
    V_L, V_T0, V_T1, V_T2 = 1, 2, 3, 4
    V_DA = 6
    V_ST, V_FO, V_FV, V_DW, V_RW = 8, 9, 10, 11, 12
    V_RA = 16
    V_F = 32
    V_ACC = 64
    V_E = 96
    NF = 8
    a(f"""
    s_load_dwordx2 s[{S_A}:{S_A+1}], s[0:1], {KA_AX}
    s_load_dwordx2 s[40:41], s[0:1], {KA_WQ}
    s_load_dwordx2 s[42:43], s[0:1], {KA_WK}
    s_load_dwordx2 s[44:45], s[0:1], {KA_WV}
    v_lshrrev_b32 v{V_T0}, 6, v0
    v_and_b32 v{V_L}, 63, v0
    v_readfirstlane_b32 s{S_WAVE}, v{V_T0}
    s_lshr_b32 s{S_MAT}, s{S_B}, 6
    s_bfe_u32 s{S_H}, s{S_B}, 0x50001
    s_and_b32 s{S_P}, s{S_B}, 1
    s_waitcnt lgkmcnt(0)
    s_mov_b32 s{S_A+2}, {4*MB}
    s_mov_b32 s{S_A+3}, 0x00020000
    s_cmp_eq_u32 s{S_MAT}, 1
    s_cselect_b32 s{S_W}, s42, s40
    s_cselect_b32 s{S_W+1}, s43, s41
    s_cmp_eq_u32 s{S_MAT}, 2
    s_cselect_b32 s{S_W}, s44, s{S_W}
    s_cselect_b32 s{S_W+1}, s45, s{S_W+1}
    s_mov_b32 s{S_W+2}, {8*MB}
    s_mov_b32 s{S_W+3}, 0x00020000
    v_lshrrev_b32 v{V_T0}, 4, v{V_L}
    v_and_b32 v{V_T1}, 15, v{V_L}
    v_lshlrev_b32 v{V_T2}, 2, v{V_T0}
    v_xor_b32 v{V_T2}, v{V_T2}, v{V_T1}
    v_lshlrev_b32 v{V_T2}, 4, v{V_T2}
    s_lshl_b32 s{S_T0}, s{S_WAVE}, 5
    v_add_u32 v{V_DW}, s{S_T0}, v{V_T0}
    v_lshl_add_u32 v{V_DW}, v{V_DW}, 13, v{V_T2}
    s_lshl_b32 s{S_T0}, s{S_H}, 8
    v_add_u32 v{V_DW}, s{S_T0}, v{V_DW}
    s_lshl_b32 s{S_M0}, s{S_WAVE}, 13
    """)

    def wdma(u):
        for i in range(8):
            a(f"s_add_u32 m0, s{S_M0}, {(u & 3) * 32768 + i * 1024}")
            a(f"s_mov_b32 s{S_T0}, {(128 * u + 4 * i) * 8192}")
            a(f"buffer_load_dwordx4 v{V_DW}, s[{S_W}:{S_W+3}], s{S_T0} offen lds")
    for u in range(4):
        wdma(u)
    if hooks: hooks[0](32)
    a(f"""
    v_and_b32 v{V_T1}, 3, v{V_L}              ; cc
    v_bfe_u32 v{V_T2}, v{V_L}, 4, 1           ; gam&1
    v_lshl_add_u32 v13, v{V_T1}, 1, v{V_T2}    ; v form
    v_and_b32 v14, 1, v{V_T1}
    v_lshlrev_b32 v14, 1, v14
    v_lshrrev_b32 v15, 1, v{V_T1}
    v_add_u32 v14, v14, v15
    v_lshl_add_u32 v14, v{V_T2}, 2, v14        ; q/k form
    s_cmp_eq_u32 s{S_MAT}, 2
    s_cselect_b64 vcc, -1, 0
    v_cndmask_b32 v13, v14, v13, vcc
    v_bfe_u32 v14, v{V_L}, 2, 2                ; r
    v_xor_b32 v15, s{S_WAVE}, v14
    v_lshlrev_b32 v15, 6, v15
    v_lshl_add_u32 v15, v13, 3, v15
    v_lshrrev_b32 v13, 5, v{V_L}
    v_lshl_add_u32 v13, v13, 3, v14            ; row
    v_lshl_add_u32 v{V_RW}, v13, 8, v15
    v_and_b32 v{V_T1}, 15, v{V_L}
    s_lshl_b32 s{S_T0}, s{S_WAVE}, 3
    """)
    for b in range(2):
        a(f"""
        v_add_u32 v13, s{S_T0}, v{V_T0}
        v_add_u32 v13, {4*b}, v13
        v_and_b32 v14, 15, v13
        v_xor_b32 v14, v14, v{V_T1}
        v_lshlrev_b32 v14, 4, v14
        v_lshl_add_u32 v{V_DA+b}, v13, 11, v14
        """)
    a(f"""
    v_and_b32 v13, 31, v{V_L}
    v_lshrrev_b32 v14, 5, v{V_L}
    v_xor_b32 v14, v14, v{V_T1}
    v_lshlrev_b32 v14, 4, v14
    v_lshl_add_u32 v13, v13, 8, v14
    """)
    for kk in range(8):
        a(f"v_xor_b32 v{V_RA+kk}, {32*kk}, v13")
        a(f"v_add_u32 v{V_RA+8+kk}, 0x10000, v{V_RA+kk}")
    a(f"""
    v_bfe_u32 v13, v{V_L}, 4, 1
    v_lshlrev_b32 v{V_ST}, 10, v13
    v_lshrrev_b32 v13, 5, v{V_L}
    v_lshl_add_u32 v{V_ST}, v13, 8, v{V_ST}
    v_lshl_add_u32 v{V_ST}, v{V_T1}, 4, v{V_ST}
    v_bfrev_b32 v13, 1
    s_lshl_b32 s{S_T0}, s{S_B}, 7
    s_add_u32 s{S_T0}, s{S_T0}, {WS_FL}
    v_mov_b32 v14, s{S_T0}
    v_cmp_eq_u32 vcc, 0, v0
    s_lshl_b32 s{S_SO}, s{S_MAT}, 24
    s_lshl_b32 s{S_T0}, s{S_P}, 18
    v_cndmask_b32 v{V_FO}, v13, v14, vcc
    s_add_u32 s{S_SO}, s{S_SO}, s{S_T0}
    s_lshl_b32 s{S_T0}, s{S_H}, 13
    s_add_u32 s{S_SO}, s{S_SO}, s{S_T0}
    s_lshl_b32 s{S_T0}, s{S_WAVE}, 11
    s_add_u32 s{S_SO}, s{S_SO}, s{S_T0}
    s_add_u32 s{S_SO}, s{S_SO}, {WS_QX}
    s_lshl_b32 s{S_SA}, s{S_P}, 16
    v_mov_b32 v{V_FV}, 0
    """)

    def xdma(slot, uu, i):
        return [f"s_add_u32 m0, s{S_T1}, {slot * 32768 + (i >> 1) * 8192 + (i & 1) * 1024}",
                f"s_add_u32 s{S_T0}, s{S_SA}, {(4 * uu + (i >> 1)) * 256}",
                f"buffer_load_dwordx4 v{V_DA + (i & 1)}, s[{S_A}:{S_A+3}], s{S_T0} offen lds"]
    a(f"s_lshl_b32 s{S_T1}, s{S_WAVE}, 11")
    for u in range(8):
        a(f"s_waitcnt vmcnt(24)" if u < 7 else "s_waitcnt vmcnt(24)")
        a("s_barrier")
        if hooks and u == 3: hooks[1]()
        if hooks and u == 7: hooks[2]()
        a(f"v_add_u32 v13, {(u & 3) * 32768}, v{V_RW}")
        for ks in range(8):
            for j in range(2):
                d = (8 * u + ks) * 4 + 2 * j
                a(f"ds_read_b64_tr_b16 a[{d}:{d+1}], v13 offset:{(16 * ks + 4 * j) * 256}")
            if ks == 3: a("s_waitcnt lgkmcnt(0)")
        a("s_waitcnt lgkmcnt(0)")
        a("s_barrier")
        if u < 4:
            wdma(u + 4)
        elif u < 7:
            g = u - 4
            if g == 2: a(f"s_add_u32 s{S_SA}, s{S_SA}, {2*65536}")
            for i in range(8):
                for l in xdma(g, g & 1, i): a(l)
    if stamp: stamp()
    a("s_waitcnt vmcnt(16)\ns_barrier")

    def fread(gk):
        gk %= 128
        half, ks = gk >> 6, gk & 63
        d = V_F + 4 * (gk % NF)
        return f"ds_read_b128 v[{d}:{d+3}], v{V_RA + 8 * half + (ks & 7)} offset:{(ks >> 5) * 32768 + ((ks >> 3) & 3) * 8192}"

    PF = 6
    def epi_lines(accb, isv):
        L = []
        for st in range(2):
            e = V_E + 4 * st
            src = [4 * st, 4 * st + 2, 4 * st + 8, 4 * st + 10] if isv else [8 * st, 8 * st + 2, 8 * st + 4, 8 * st + 6]
            for i, sr in enumerate(src):
                L.append(f"v_cvt_pk_bf16_f32 v{e+i}, v{accb+sr}, v{accb+sr+1}")
            L.append(f"buffer_store_dwordx4 v[{e}:{e+3}], v{V_ST}, s[{S_WS}:{S_WS+3}], s{S_SO} offen offset:{512*st} {opt.get('st', 'sc1')}" if not opt.get("nost") else "s_nop 0")
        L.append(f"s_add_u32 s{S_SO}, s{S_SO}, {2 * 32 * 8192}")
        return L
    flag = [f"v_add_u32 v{V_FV}, 1, v{V_FV}", f"buffer_store_dword v{V_FV}, v{V_FO}, s[{S_WS}:{S_WS+3}], 0 offen sc1"]

    def body(isv, tag):
        for gk in range(PF): a(fread(gk))
        a(f"s_mov_b32 s{S_IT}, 0")
        a.label(f"{name}_{tag}_loop")
        for gk in range(128):
            half, ks = gk >> 6, gk & 63
            u4 = gk >> 5
            k32 = gk & 31
            acc = V_ACC + 16 * half
            f = V_F + 4 * (gk % NF)
            if k32 == 24:
                a("s_waitcnt vmcnt(8)")
                a("s_barrier")
            a(f"s_waitcnt lgkmcnt({PF - 1})")
            c = "0" if ks == 0 else f"v[{acc}:{acc+15}]"
            wreg = f"a[{4*ks}:{4*ks+3}]"
            if isv: a(f"v_mfma_f32_32x32x16_bf16 v[{acc}:{acc+15}], v[{f}:{f+3}], {wreg}, {c}")
            else: a(f"v_mfma_f32_32x32x16_bf16 v[{acc}:{acc+15}], {wreg}, v[{f}:{f+3}], {c}")
            if not opt.get("nord"): a(fread(gk + PF))
            sched = {25: 0, 28: 1, 31: 2, 2: 3, 5: 4, 8: 5, 11: 6, 14: 7}
            if k32 in sched:
                i = sched[k32]
                tgt = (u4 + 3) & 3 if k32 >= 24 else (u4 + 2) & 3
                if gk < 24:
                    a(f"s_cmp_eq_u32 s{S_IT}, 0\ns_cbranch_scc1 {name}_{tag}_sk{gk}")
                if i == 0 and (tgt & 1) == 0:
                    a(f"s_add_u32 s{S_SA}, s{S_SA}, {2*65536}")
                for l in xdma(tgt, tgt & 1, i):
                    if not (opt.get("nodma") and "buffer" in l): a(l)
                if gk < 24: a.label(f"{name}_{tag}_sk{gk}")
            if ks == 16:
                if half == 0: a(f"s_cmp_eq_u32 s{S_IT}, 0\ns_cbranch_scc1 {name}_{tag}_ne0")
                for l in epi_lines(V_ACC + 16 * (1 - half), isv)[:5]: a(l)
                if half == 0: a.label(f"{name}_{tag}_ne0")
            if ks == 18:
                if half == 0: a(f"s_cmp_eq_u32 s{S_IT}, 0\ns_cbranch_scc1 {name}_{tag}_ne1")
                for l in epi_lines(V_ACC + 16 * (1 - half), isv)[5:]: a(l)
                if half == 0: a.label(f"{name}_{tag}_ne1")
            if ks == 58:
                if half == 0: a(f"s_cmp_eq_u32 s{S_IT}, 0\ns_cbranch_scc1 {name}_{tag}_nf")
                for l in flag: a(l)
                if half == 0: a.label(f"{name}_{tag}_nf")
        a(f"""
        s_add_u32 s{S_IT}, s{S_IT}, 1
        s_cmp_lt_u32 s{S_IT}, 16
        s_cbranch_scc1 {name}_{tag}_loop
        """)
        a.nops(12)
        for l in epi_lines(V_ACC + 16, isv): a(l)
        a("s_waitcnt vmcnt(0) lgkmcnt(0)\ns_barrier")
        for l in flag: a(l)

    a(f"s_cmp_eq_u32 s{S_MAT}, 2\ns_cbranch_scc1 {name}_v")
    body(False, "qk")
    a(f"s_branch {name}_done")
    a.label(f"{name}_v")
    body(True, "v")
    a.label(f"{name}_done")


def standalone(name, opt):
    from gen_hop import ticket
    a = Asm(); a.kernel_begin(name)
    ticket(a, name, 2)
    a(f"""
    s_cmp_lt_u32 s90, 2
    s_cbranch_scc1 {name}_exit
    s_sub_u32 s91, s90, 2
    s_lshl_b32 s91, s91, 5
    s_add_u32 s91, s91, s96
    s_add_u32 s72, s4, {210*MB}
    s_addc_u32 s73, s5, 0
    s_memrealtime s[60:61]
    """)
    qkv_role(a, name + "_q", 91, 4, 72, stamp=lambda: a("s_memrealtime s[62:63]\ns_memtime s[66:67]"), opt=opt)
    a(f"""
    s_memrealtime s[64:65]
    s_memtime s[68:69]
    s_waitcnt lgkmcnt(0)
    s_sub_u32 s62, s62, s60
    s_sub_u32 s64, s64, s60
    s_sub_u32 s68, s68, s66
    v_mov_b32 v2, s62
    v_mov_b32 v3, s64
    v_mov_b32 v4, s68
    v_mov_b32 v1, 0
    s_lshl_b32 s20, s91, 4
    s_add_u32 s20, s20, {200*MB}
    s_mov_b64 exec, 1
    buffer_store_dwordx4 v[2:5], v1, s[4:7], s20 offen
    {name}_exit:
    s_endpgm
    """)
    return (name, a.text(), kd(name, 512, sgpr=100, accum=256), 256, 256, 131072 + 8192)

if __name__ == "__main__":
    import sys, json
    V = eval(open(sys.argv[1]).read())
    write_file("qkv.s", [standalone(f"q{i}_kernel", v) for i, v in enumerate(V)])
    json.dump(V, open("qkv.json", "w"))
```

```python
from common import *

WS_QX = 0
WS_KX = 16 * MB
WS_VT = 32 * MB
WS_O = 48 * MB
WS_XB = 64 * MB
WS_MEMX = 66 * MB
WS_PART = 67 * MB
WS_FL = 68 * MB
WS_KVM = 170 * MB
WS_PROF = 200 * MB

DBG_VOTE = 204

LDS_MEM = 131072
LDS_X = LDS_MEM + 8192
LDS_O = LDS_X + 12288
LDS_VX = LDS_O + 2048
LDS_REC = LDS_VX + 8192

S_J, S_H = 30, 31


def global_init(a: Asm, name, S_WS):
    SRD = f"s[{S_WS}:{S_WS+3}]"
    a(f"""
    s_load_dwordx2 s[72:73], s[0:1], {KA_MEM0}
    v_mov_b32 v4, 0
    v_mov_b32 v5, 0
    v_mov_b32 v6, 0
    v_mov_b32 v7, 0
    v_lshlrev_b32 v1, 4, v0
    s_lshl_b32 s81, s2, 13
    s_add_u32 s81, s81, {WS_XB}
    s_add_u32 s79, s81, 4096
    buffer_store_dwordx4 v[4:7], v1, {SRD}, s81 offen sc1
    buffer_store_dwordx4 v[4:7], v1, {SRD}, s79 offen sc1
    v_lshlrev_b32 v1, 3, v0
    s_lshl_b32 s81, s2, 11
    s_add_u32 s81, s81, {WS_PART}
    buffer_store_dwordx2 v[4:5], v1, {SRD}, s81 offen sc1
    s_cmp_ge_u32 s2, 64
    s_cbranch_scc1 {name}_gi
    v_bfe_u32 v2, v0, 3, 1
    v_lshlrev_b32 v2, 11, v2
    v_and_b32 v3, 3, v0
    v_lshl_add_u32 v2, v3, 5, v2
    v_bfe_u32 v3, v0, 4, 3
    v_lshl_add_u32 v2, v3, 2, v2
    v_bfe_u32 v3, v0, 2, 1
    v_lshl_add_u32 v2, v3, 1, v2
    s_lshr_b32 s81, s2, 2
    s_lshl_b32 s81, s81, 7
    s_and_b32 s79, s2, 3
    s_lshl_b32 s79, s79, 12
    s_add_u32 s81, s81, s79
    s_waitcnt lgkmcnt(0)
    s_mov_b32 s74, 16384
    s_mov_b32 s75, 0x00020000
    buffer_load_ushort v8, v2, s[72:75], s81 offen
    v_mov_b32 v9, -1
    v_and_b32 v1, 127, v0
    v_lshlrev_b32 v1, 1, v1
    v_lshrrev_b32 v3, 7, v0
    v_lshl_add_u32 v1, v3, 14, v1
    v_cmp_gt_u32 vcc, 128, v0
    s_lshl_b32 s81, s2, 8
    s_add_u32 s81, s81, {WS_MEMX}
    s_waitcnt vmcnt(0)
    v_min_u32 v8, 0xfffe, v8
    v_cndmask_b32 v8, v9, v8, vcc
    buffer_store_short v8, v1, {SRD}, s81 offen sc1
    {name}_gi:
    s_waitcnt lgkmcnt(0)
    """)


def rec_body(a: Asm, name, IS, nsteps=64, prof=False, wd=False, full=False, S_VOTE=None, opt={}, tstamp=None, hooks=None):
    S_WS, S_W, S_DBG = 4, 8, 12
    S_WAVE, S_STEP, S_T0, S_T1, S_T2 = 20, 21, 22, 23, 24
    S_MLO, S_MQ, S_MK = 26, 28, 32
    S_C = 34
    S_MEMR, S_MEMW, S_XOUT, S_XIN, S_VOUT, S_VIN, S_PHX, S_PHP = 35, 36, 37, 38, 39, 40, 41, 42
    S_KX, S_VX, S_KVM, S_PARTW, S_PARTR, S_M0X = 43, 44, 45, 46, 47, 48
    S_WD = 49
    S_PQ, S_PK, S_PV, S_PO, S_PM = 50, 52, 54, 56, 58
    S_SEL, S_PARTW2, S_PARTR2 = 60, 61, 25
    S_PUBK, S_PUBV = 16, 18
    S_KVV = 51
    V_L16, V_IDX, V_T0, V_T1, V_LH, V_LL = 1, 2, 3, 4, 5, 6
    V_FL, V_OPART, V_OMP, V_OKM, V_OVM, V_OMR, V_OCR = 7, 8, 9, 10, 11, 12, 13
    V_Z = 14
    V_SEL, V_TAGM, V_PB1, V_SELR, V_ONE = 16, 34, 20, 24, 28
    V_PV = 18
    V_WV, V_WV2 = 32, 33
    V_M, V_ST, V_AQ, V_AV, V_VX = 32, 64, 96, 112, 120
    V_WO = 128
    V_KX = 32
    V_X, V_S = 64, 80
    G, PG, DO = 108, 96, 100
    V_ACC = 32

    WO_ORDER = [(T, 0) for T in range(4)] + [(T, 1) for T in range(4)] + [(T, 0) for T in range(4, 8)] + [(T, 1) for T in range(4, 8)]
    WO_R, WO_L = WO_ORDER[:10], WO_ORDER[10:]
    def wv_reg(op): return V_WO + 8 * op
    NST = 18
    def stamp(i):
        if not prof: return
        assert i < NST
        a(f"{'s_memrealtime' if prof == 'rt' else 's_memtime'} s[{62+2*i}:{63+2*i}]")

    def dump():
        if not prof: return
        l = a.newlabel(name + "_dp")
        a(f"""
        s_and_b32 s{S_T0}, s{S_STEP}, 15
        s_cmp_lg_u32 s{S_T0}, 9
        s_cbranch_scc1 {l}
        s_lshr_b32 s{S_T1}, s{S_STEP}, 4
        s_lshl_b32 s{S_T0}, s{S_J}, 5
        s_add_u32 s{S_T0}, s{S_T0}, s{S_H}
        s_lshl_b32 s{S_T0}, s{S_T0}, 2
        s_add_u32 s{S_T0}, s{S_T0}, s{S_WAVE}
        s_lshl_b32 s{S_T0}, s{S_T0}, 2
        s_add_u32 s{S_T0}, s{S_T0}, s{S_T1}
        s_lshl_b32 s{S_T0}, s{S_T0}, 7
        s_add_u32 s{S_T0}, s{S_T0}, {WS_PROF + 2*MB}
        s_waitcnt lgkmcnt(0)
        s_mov_b64 exec, 1
        """)
        for i in range(NST):
            a(f"v_mov_b32 v{V_T0}, s{62+2*i}")
            a(f"buffer_store_dword v{V_T0}, v{V_Z}, s[{S_WS}:{S_WS+3}], s{S_T0} offen offset:{4*i}")
        a("s_mov_b64 exec, -1")
        a.label(l)

    def watchdog(code, cidx=None):
        if opt.get("tot") and cidx is not None:
            a(f"s_add_u32 s{84+cidx}, s{84+cidx}, 1")
        if not wd: return
        a(f"s_add_u32 s{S_WD}, s{S_WD}, 1")
        a(f"s_cmp_gt_u32 s{S_WD}, 400000")
        a(f"s_movk_i32 s{S_T2}, {code}")
        a(f"s_cbranch_scc1 {name}_wdexit")

    a(f"""
    s_load_dwordx2 s[{S_WS}:{S_WS+1}], s[0:1], {KA_WS}
    s_load_dwordx2 s[{S_DBG}:{S_DBG+1}], s[0:1], {KA_DBG}
    s_load_dwordx2 s[{S_PQ}:{S_PQ+1}], s[0:1], {KA_WQ}
    s_load_dwordx2 s[{S_PK}:{S_PK+1}], s[0:1], {KA_WK}
    s_load_dwordx2 s[{S_PV}:{S_PV+1}], s[0:1], {KA_WV}
    s_load_dwordx2 s[{S_PO}:{S_PO+1}], s[0:1], {KA_WO}
    s_load_dwordx2 s[{S_PM}:{S_PM+1}], s[0:1], {KA_MEM0}
    v_lshrrev_b32 v{V_T0}, 6, v0
    v_and_b32 v40, 63, v0                  ; lane
    v_readfirstlane_b32 s{S_WAVE}, v{V_T0}
    v_lshrrev_b32 v41, 4, v40              ; g
    v_and_b32 v42, 15, v40                 ; c
    v_lshlrev_b32 v{V_L16}, 4, v40
    s_mov_b32 s{S_WD}, 0
    s_waitcnt lgkmcnt(0)
    s_mov_b32 s{S_WS+2}, {WS_BYTES}
    s_mov_b32 s{S_WS+3}, 0x00020000
    s_mov_b32 s{S_DBG+2}, 256
    s_mov_b32 s{S_DBG+3}, 0x00020000
    s_mov_b32 s{S_W+2}, {8*MB}
    s_mov_b32 s{S_W+3}, 0x00020000
    s_mov_b32 s{S_MLO}, 0x00030003
    s_mov_b32 s{S_MLO+1}, 0x00030003
    s_mov_b32 s{S_MQ}, 0xcccccccc
    s_mov_b32 s{S_MQ+1}, 0xcccccccc
    s_mov_b32 s{S_MK}, 0x33333333
    s_mov_b32 s{S_MK+1}, 0x33333333
    s_mov_b32 s{S_C}, 0x3e0293ee
    """)
    VDQ, VDO, VRB, VRO = 44, 45, 46, 47
    a(f"""
    ; qkv dma voffset: (512 j + 16 g + w)*8192 + h*256 + ((c ^ 4w) * 16)
    s_lshl_b32 s{S_T0}, s{S_WAVE}, 2
    v_xor_b32 v{V_T0}, s{S_T0}, v42
    v_lshlrev_b32 v{V_T0}, 4, v{V_T0}
    v_lshl_add_u32 v{V_T1}, v41, 4, s{S_WAVE}
    v_lshl_add_u32 v{VDQ}, v{V_T1}, 13, v{V_T0}
    s_lshl_b32 s{S_T0}, s{S_J}, 22
    s_lshl_b32 s{S_T1}, s{S_H}, 8
    s_add_u32 s{S_T0}, s{S_T0}, s{S_T1}
    v_add_u32 v{VDQ}, s{S_T0}, v{VDQ}
    s_lshr_b32 s{S_T0}, s{S_WAVE}, 1
    s_lshl_b32 s{S_T0}, s{S_T0}, 5
    s_and_b32 s{S_T1}, s{S_WAVE}, 1
    s_lshl_b32 s{S_T1}, s{S_T1}, 2
    s_add_u32 s{S_T0}, s{S_T0}, s{S_T1}
    s_lshl_b32 s{S_T1}, s{S_H}, 7
    s_add_u32 s{S_T0}, s{S_T0}, s{S_T1}
    v_add_u32 v{V_T1}, s{S_T0}, v41
    v_lshl_add_u32 v{VDO}, v{V_T1}, 11, v{V_T0}
    s_lshl_b32 s{S_T0}, s{S_J}, 10
    v_add_u32 v{VDO}, s{S_T0}, v{VDO}
    s_lshl_b32 s{S_M0X}, s{S_WAVE}, 10
    """)

    units = [(mm, k) for mm in opt.get("word", "qkov") for k in range(8)]

    def dma_unit(u):
        m, k = units[u]
        slot = (u & 7) * 16384
        if k == 0:
            p = dict(q=S_PQ, k=S_PK, v=S_PV, o=S_PO)[m]
            a(f"s_mov_b32 s{S_W}, s{p}\ns_mov_b32 s{S_W+1}, s{p+1}")
        for i in range(4):
            a(f"s_add_u32 m0, s{S_M0X}, {slot + 4096 * i}")
            if m == "o":
                so = (64 * (k >> 2) + 8 * i) * 2048 + (k & 3) * 256
                vo = VDO
            else:
                so = (64 * k + 4 * i) * 8192
                vo = VDQ
            a(f"s_mov_b32 s{S_T0}, {so}")
            a(f"buffer_load_dwordx4 v{vo}, s[{S_W}:{S_W+3}], s{S_T0} offen {opt.get('wnt', '')} lds")

    for u in range(8):
        dma_unit(u)

    if tstamp and opt.get('pst'): tstamp()
    if hooks: hooks[0](33 if (tstamp and opt.get('pst')) else 32)
    a(f"""
    s_lshl_b32 s{S_T0}, s{S_J}, 5
    s_add_u32 s{S_T0}, s{S_T0}, s{S_H}
    s_lshl_b32 s{S_XIN}, s{S_T0}, 14
    s_xor_b32 s{S_T0}, s{S_T0}, 32
    s_lshl_b32 s{S_XOUT}, s{S_T0}, 14
    s_add_u32 s{S_XIN}, s{S_XIN}, {WS_XB}
    s_add_u32 s{S_XOUT}, s{S_XOUT}, {WS_XB}
    s_lshl_b32 s{S_PARTW}, s{S_J}, 18
    s_add_u32 s{S_PARTW}, s{S_PARTW}, {WS_PART}
    s_lshl_b32 s{S_T0}, s{S_H}, 13
    s_add_u32 s{S_PARTR}, s{S_PARTW}, s{S_T0}
    s_lshl_b32 s{S_T0}, s{S_WAVE}, 16
    s_add_u32 s{S_PARTW}, s{S_PARTW}, s{S_T0}
    s_lshl_b32 s{S_T0}, s{S_H}, 8
    s_add_u32 s{S_PARTW}, s{S_PARTW}, s{S_T0}
    s_add_u32 s{S_PARTW2}, s{S_PARTW}, {4*8192}
    s_add_u32 s{S_PARTR2}, s{S_PARTR}, 4096
    s_lshl_b32 s{S_MEMR}, s{S_J}, 13
    s_add_u32 s{S_MEMR}, s{S_MEMR}, {WS_MEMX}
    v_lshrrev_b32 v53, 2, v42
    v_lshlrev_b32 v53, 1, v53
    v_and_b32 v54, 1, v42
    v_add_u32 v55, v53, v54               ; m(c)
    """)
    a(f"""
    v_mov_b32 v{V_Z}, 0
    v_mov_b32 v{V_Z+1}, 0
    v_mov_b32 v{V_IDX}, 0x4444
    v_mov_b32 v{V_T0}, 0xeeee
    v_cndmask_b32 v{V_IDX}, v{V_IDX}, v{V_T0}, s[{S_MQ}:{S_MQ+1}]
    s_lshl_b32 s{S_T0}, s{S_WAVE}, 12
    v_add_u32 v{V_WV}, s{S_T0}, v{V_L16}
    v_add_u32 v{V_WV2}, 0x10000, v{V_WV}
    v_add_u32 v{V_LH}, 0x10000, v{V_L16}
    v_add_u32 v{V_LL}, {LDS_MEM}, v{V_L16}
    v_and_b32 v{V_T0}, 3, v42
    v_bfe_u32 v43, v40, 1, 1
    v_lshlrev_b32 v{V_FL}, 13, v43
    v_and_b32 v43, 1, v40
    v_lshl_add_u32 v{V_FL}, v43, 7, v{V_FL}
    s_lshl_b32 s{S_T0}, s{S_H}, 8
    s_add_u32 s{S_T1}, s{S_T0}, {WS_FL + 8192}
    v_add_u32 v{V_FL}, s{S_T1}, v{V_FL}
    s_cmp_lg_u32 s{S_WAVE}, 0
    s_cbranch_scc1 {name}_flk
    s_lshl_b32 s{S_T1}, s{S_J}, 7
    s_add_u32 s{S_T0}, s{S_T0}, s{S_T1}
    s_add_u32 s{S_T0}, s{S_T0}, {WS_FL + 192 * 128}
    v_bfrev_b32 v{V_FL}, 1
    v_writelane_b32 v{V_FL}, s{S_T0}, 0
    {name}_flk:
    v_lshlrev_b32 v{V_OVM}, 3, v40
    ; k_m publish: m(c)*256 + g*16 (+ w*64)
    v_lshlrev_b32 v{V_OKM}, 8, v55
    v_lshl_add_u32 v{V_OKM}, v41, 4, v{V_OKM}
    v_lshlrev_b32 v{V_OPART}, 13, v41
    v_lshl_add_u32 v{V_OPART}, v42, 4, v{V_OPART}
    v_lshrrev_b32 v{V_OMP}, 1, v41
    v_lshlrev_b32 v{V_OMP}, 5, v{V_OMP}
    v_and_b32 v{V_T1}, 1, v42
    v_lshl_add_u32 v{V_OMP}, v{V_T1}, 4, v{V_OMP}
    v_and_b32 v{V_T1}, 1, v41
    v_lshl_add_u32 v{V_OMP}, v{V_T1}, 3, v{V_OMP}
    s_lshl_b32 s{S_T0}, s{S_H}, 8
    v_add_u32 v{V_OMP}, s{S_T0}, v{V_OMP}
    v_lshrrev_b32 v{V_T1}, 2, v42
    v_lshlrev_b32 v{V_OMR}, 8, v{V_T1}
    v_lshl_add_u32 v{V_OMR}, v41, 6, v{V_OMR}
    v_lshl_add_u32 v{V_OMR}, v{V_T0}, 4, v{V_OMR}
    v_lshlrev_b32 v{V_OCR}, 8, v41
    v_lshl_add_u32 v{V_OCR}, v42, 2, v{V_OCR}
    v_cmp_eq_u32 vcc, 0, v{V_T0}
    v_mov_b32 v{V_ONE}, 0x3f803f80
    v_mov_b32 v{V_ONE+1}, 0x3f803f80
    v_cndmask_b32 v{V_TAGM}, 0, 1, vcc
    v_mov_b32 v{V_ONE+2}, 0x3f803f80
    v_mov_b32 v{V_ONE+3}, 0x3f803f80
    """)
    a(f"""
    v_and_b32 v49, 1, v42
    v_lshlrev_b32 v49, 4, v49
    v_mov_b32 v50, 0x3f80
    v_lshlrev_b32 v50, v49, v50
    v_lshrrev_b32 v51, 2, v42
    v_cmp_eq_u32 vcc, v51, v41
    v_mov_b32 v{V_SELR}, v50
    v_cndmask_b32 v52, 0, v50, s[{S_MQ}:{S_MQ+1}]
    v_cndmask_b32 v53, 0, v50, s[{S_MK}:{S_MK+1}]
    v_cndmask_b32 v{V_SEL}, 0, v52, vcc
    v_cndmask_b32 v{V_SEL+1}, 0, v53, vcc
    v_mov_b32 v{V_SELR+1}, v50
    v_mov_b32 v{V_SELR+2}, v50
    v_mov_b32 v{V_SELR+3}, v50
    """)
    a(f"""
    v_bfe_u32 v60, v40, 3, 1              ; r>>1
    v_bfe_u32 v49, v40, 2, 1              ; r&1
    v_and_b32 v50, 1, v41                 ; gb&1
    v_lshrrev_b32 v51, 1, v41             ; gb>>1
    v_lshlrev_b32 v52, 3, v60
    v_lshl_add_u32 v52, v50, 2, v52       ; rho&12
    v_lshl_add_u32 v53, v51, 4, v52
    v_add_u32 v53, v53, v49               ; rho0
    v_and_b32 v54, 3, v40                 ; cc
    s_lshl_b32 s{S_T0}, s{S_WAVE}, 2
    v_add_u32 v55, s{S_T0}, v54
    v_xor_b32 v55, v55, v52
    v_lshlrev_b32 v55, 4, v55
    v_lshl_add_u32 v{VRB}, v53, 8, v55
    v_lshlrev_b32 v55, 4, v52
    v_lshl_add_u32 v55, v54, 3, v55
    v_lshl_add_u32 v{VRO}, v53, 8, v55
    """)
    U_POLL, U_VER = 12, 22
    if tstamp and opt.get('pst'): tstamp()
    for u in range(32):
        m, k = units[u]
        slot = (u & 7) * 16384
        a(f"s_waitcnt vmcnt({4 * (min(u + 8, 32) - u - 1)})")
        a("s_barrier")
        if tstamp and opt.get("pst") and u % 4 == 0: tstamp()
        if u == 26 and opt.get("warm", 1):
            a(f"""
            s_getpc_b64 s[16:17]
            {name}_pc0:
            s_add_u32 s16, s16, {name}_w0_entry - {name}_pc0
            s_addc_u32 s17, s17, 0
            v_lshlrev_b32 v49, 7, v0
            v_min_u32 v49, {name}_end - {name}_w0_entry, v49
            global_load_dword v50, v49, s[16:17]
            v_lshlrev_b32 v49, 7, v40
            s_xor_b32 s{S_T1}, s{S_MEMR}, 16384
            s_cmp_eq_u32 s{S_WAVE}, 1
            s_cselect_b32 s{S_T0}, s{S_MEMR}, s{S_PARTR}
            s_cmp_eq_u32 s{S_WAVE}, 2
            s_cselect_b32 s{S_T0}, s{S_T1}, s{S_T0}
            s_lshl_b32 s{S_T1}, s{S_H}, 13
            s_add_u32 s{S_T1}, s{S_T1}, {WS_KVM}
            s_cmp_eq_u32 s{S_WAVE}, 3
            s_cselect_b32 s{S_T0}, s{S_T1}, s{S_T0}
            buffer_load_dword v51, v49, s[{S_WS}:{S_WS+3}], s{S_T0} offen sc1
            v_lshlrev_b32 v49, 13, v0
            v_and_b32 v49, 0x1fffff, v49
            s_mov_b32 s{S_T0}, {WS_XB}
            buffer_load_dword v52, v49, s[{S_WS}:{S_WS+3}], s{S_T0} offen sc1
            buffer_load_dword v57, v{V_FL}, s[{S_WS}:{S_WS+3}], 0 offen sc1
            """)
        if u == U_POLL and hooks:
            hooks[1]()
            a(f"buffer_load_dword v58, off, s[{S_DBG}:{S_DBG+3}], 0 offset:{DBG_VOTE} sc1")
        if u == U_VER and hooks: hooks[2]()
        if m in "qkv":
            a(f"v_add_u32 v48, {slot}, v{VRB}")
            for tau in range(2):
                for rh in range(2):
                    for dp in range(2):
                        off = rh * 8192 + dp * 512 + 8 * tau
                        if m == "v":
                            base = (64 + tau * 8) if k < 5 else wv_reg(2 * k + tau)
                            d = base + rh * 4 + dp * 2
                            a(f"ds_read_b64_tr_b16 v[{d}:{d+1}], v48 offset:{off}")
                        else:
                            d = (128 if m == "k" else 0) + (k * 2 + tau) * 8 + rh * 4 + dp * 2
                            a(f"ds_read_b64_tr_b16 a[{d}:{d+1}], v48 offset:{off}")
            a("s_waitcnt lgkmcnt(0)")
            a("s_barrier")
            if m == "v":
                src = 64 if k < 5 else 80 + 16 * (k - 5)
                for q in range(4):
                    vb = V_WV if k < 4 else V_WV2
                    a(f"ds_write_b128 v{vb}, v[{src+4*q}:{src+3+4*q}] offset:{(k & 3) * 16384 + q * 1024}")
                a("s_waitcnt lgkmcnt(0)")
        else:
            kp, om = k >> 2, k & 3
            a(f"s_cmp_lg_u32 s{S_WAVE}, {om}\ns_cbranch_scc1 {name}_wo{k}")
            for T8 in range(8):
                if T8 & 1 == 0:
                    a(f"v_xor_b32 v48, {(T8 >> 1) * 64}, v{VRO}")
                    a(f"v_add_u32 v48, {slot}, v48")
                base = V_WO + 8 * WO_R.index((T8, kp)) if (T8, kp) in WO_R else 80 + 8 * WO_L.index((T8, kp))
                for rh in range(2):
                    for dp in range(2):
                        d = base + rh * 4 + dp * 2
                        a(f"ds_read_b64_tr_b16 v[{d}:{d+1}], v48 offset:{rh*8192 + dp*512 + 32*(T8 & 1)}")
                if T8 & 1: a("s_waitcnt lgkmcnt(0)")
            a.label(f"{name}_wo{k}")
            a("s_barrier")
        if u + 8 < 32:
            dma_unit(u + 8)
    if prof or opt.get("tot"):
        for i in range(62, 98):
            a(f"s_mov_b32 s{i}, 0")
    if S_VOTE:
        a(f"s_branch {name}_iw1" if hooks else "")
        a.label(f"{name}_iw")
        watchdog(1)
        a(f"""
        buffer_load_dword v58, off, s[{S_DBG}:{S_DBG+3}], 0 offset:{DBG_VOTE} sc1
        s_waitcnt vmcnt(0)
        {name}_iw1:
        v_and_b32 v50, 0xffff, v58
        v_readfirstlane_b32 s{S_SEL}, v58
        v_cmp_ne_u32 vcc, s{S_VOTE}, v50
        s_cbranch_vccnz {name}_iw
        s_lshr_b32 s{S_SEL}, s{S_SEL}, 15
        s_cmp_gt_u32 s{S_SEL}, s{S_VOTE}
        s_cselect_b32 s{S_SEL}, 8192, 0
        """)
    else:
        a(f"""
        s_mov_b32 s{S_T0}, {WS_PROF + 3*MB}
        buffer_load_dword v48, v{V_Z}, s[{S_WS}:{S_WS+3}], s{S_T0} offen
        s_waitcnt vmcnt(0)
        v_readfirstlane_b32 s{S_SEL}, v48
        s_nop 3
        s_and_b32 s{S_SEL}, s{S_SEL}, 8192
        """)
    a(f"""
    s_bfe_u32 s{S_T0}, s{S_H}, 0x10001
    s_lshl_b32 s{S_T0}, s{S_T0}, 12
    s_add_u32 s{S_T0}, s{S_T0}, s{S_SEL}
    s_lshl_b32 s{S_T1}, s{S_WAVE}, 10
    s_add_u32 s{S_T0}, s{S_T0}, s{S_T1}
    s_add_u32 s{S_XIN}, s{S_XIN}, s{S_T0}
    s_add_u32 s{S_XOUT}, s{S_XOUT}, s{S_T0}
    s_xor_b32 s{S_VIN}, s{S_XIN}, 4096
    s_xor_b32 s{S_VOUT}, s{S_XOUT}, 4096
    s_xor_b32 s{S_MEMW}, s{S_MEMR}, 16384
    s_mov_b32 s{S_STEP}, 0
    s_cmp_eq_u32 s{S_J}, 0
    s_mov_b32 s{S_T0}, 0x33003300
    s_cselect_b32 s{S_PUBK}, 0x00330033, s{S_T0}
    s_mov_b32 s{S_PUBK+1}, s{S_PUBK}
    s_cselect_b32 s{S_PUBV}, -1, 0
    s_not_b32 s{S_PUBV+1}, s{S_PUBV}
    s_lshl_b32 s{S_T0}, s{S_H}, 13
    s_lshl_b32 s{S_T1}, s{S_WAVE}, 11
    s_add_u32 s{S_T0}, s{S_T0}, s{S_T1}
    s_add_u32 s{S_KX}, s{S_T0}, {WS_KX}
    s_add_u32 s{S_VX}, s{S_T0}, {WS_VT}
    s_lshl_b32 s{S_KVM}, s{S_H}, 13
    s_add_u32 s{S_KVM}, s{S_KVM}, {WS_KVM}
    s_mul_i32 s{S_M0X}, s{S_WAVE}, 3072
    s_add_u32 m0, s{S_M0X}, {LDS_X + 1024}
    s_mov_b32 s{S_PHX}, 1
    s_mov_b32 s{S_PHP}, 1
    v_mov_b32 v0, v{V_TAGM}
    v_bfrev_b32 v{V_T0}, 1
    v_cndmask_b32 v{V_OKM}, v{V_T0}, v{V_OKM}, s[{S_PUBK}:{S_PUBK+1}]
    v_cndmask_b32 v{V_OMP}, v{V_T0}, v{V_OMP}, s[{S_MLO}:{S_MLO+1}]
    s_sub_u32 s{S_KVM}, s{S_KVM}, {32*8192}
    s_lshl_b32 s{S_KVV}, s{S_J}, 11
    s_add_u32 s{S_KVV}, s{S_KVV}, s{S_KVM}
    """)
    V_TAGM = 0
    S_KN = 50
    kvn = [0]
    def kv_eval(reg):
        a(f"""
        v_readlane_b32 s{S_KN}, v{reg}, 0
        v_readlane_b32 s{S_T0}, v{reg}, 2
        v_readlane_b32 s{S_T1}, v{reg}, 1
        v_readlane_b32 s{S_T2}, v{reg}, 3
        s_nop 3
        s_min_u32 s{S_KN}, s{S_KN}, s{S_T0}
        s_min_u32 s{S_T1}, s{S_T1}, s{S_T2}
        s_lshl_b32 s{S_KN}, s{S_KN}, 1
        s_lshl_b32 s{S_T1}, s{S_T1}, 1
        s_add_u32 s{S_T1}, s{S_T1}, 1
        s_min_u32 s{S_KN}, s{S_KN}, s{S_T1}
        """)
    def kv_block(reg, plus):
        n = kvn[0]; kvn[0] += 1
        a.label(f"{name}_kvb{n}")
        a(f"""
        s_add_u32 s{S_T0}, s{S_STEP}, {plus}
        s_min_u32 s{S_T0}, s{S_T0}, 63
        s_cmp_gt_u32 s{S_KN}, s{S_T0}
        s_cbranch_scc1 {name}_kvd{n}
        """)
        watchdog(5)
        a(f"""
        buffer_load_dword v{reg}, v{V_FL}, s[{S_WS}:{S_WS+3}], 0 offen sc1
        s_waitcnt vmcnt(0)
        """)
        kv_eval(reg)
        a(f"s_branch {name}_kvb{n}")
        a.label(f"{name}_kvd{n}")
    if full:
        a(f"s_mov_b32 s{S_KN}, 0\ns_cmp_lg_u32 s{S_WAVE}, 3\ns_cbranch_scc1 {name}_kv0")
        kv_eval(57)
        kv_block(48, 0)
        a.label(f"{name}_kv0")
    if tstamp: tstamp()
    a("s_barrier")
    if opt.get("tot"):
        a("s_memtime s[98:99]\ns_memrealtime s[96:97]\ns_waitcnt lgkmcnt(0)")
    a(f"""
    s_cmp_eq_u32 s{S_WAVE}, 1
    s_cbranch_scc1 {name}_w1_entry
    s_cmp_eq_u32 s{S_WAVE}, 2
    s_cbranch_scc1 {name}_w2_entry
    s_cmp_eq_u32 s{S_WAVE}, 3
    s_cbranch_scc1 {name}_w3_entry
    """)

    SRD = f"s[{S_WS}:{S_WS+3}]"
    def smf(d, am, b):
        a(f"v_smfmac_f32_16x16x64_bf16 v[{d}:{d+3}], v[{am}:{am+3}], {b}, v{V_IDX}")
    def pkadd(d):
        a(f"v_pk_add_f32 v[{d}:{d+1}], v[{d}:{d+1}], v[{d+2}:{d+3}]")
    def zero32(d):
        a(f"v_mfma_f32_32x32x4_2b_bf16 v[{d}:{d+31}], v[{V_Z}:{V_Z+1}], v[{V_Z}:{V_Z+1}], 0")

    def wave_loop(w):
        L = f"{name}_w{w}"
        def lop_read(op, d):
            k, tau = op >> 1, op & 1
            vb = V_L16 if k < 4 else V_LH
            for rh in range(2):
                a(f"ds_read_b128 v[{d+4*rh}:{d+4*rh+3}], v{vb} offset:{(k & 3) * 16384 + w * 4096 + tau * 2048 + rh * 1024}")
        def wv_read(op):
            lop_read(op, V_ST + 8 * (op & 3))
        def qk(k, t):
            wb = (128 if t >= 2 else 0) + (k * 2 + (t & 1)) * 8
            smf(V_AQ + 4 * t, V_M + 4 * k, f"a[{wb}:{wb+7}]")
        def top():
            a(f"v_mfma_f32_32x32x8_bf16 v[{V_AQ}:{V_AQ+15}], v[{V_Z}:{V_Z+1}], v[{V_Z}:{V_Z+1}], 0")
            a(f"v_mfma_f32_16x16x16_bf16 v[{V_AV}:{V_AV+3}], v[{V_Z}:{V_Z+1}], v[{V_Z}:{V_Z+1}], 0")
            a(f"v_mfma_f32_16x16x16_bf16 v[{V_AV+4}:{V_AV+7}], v[{V_Z}:{V_Z+1}], v[{V_Z}:{V_Z+1}], 0")
            for op in range(4):
                wv_read(op)
        def xoff(u):
            return LDS_X - LDS_MEM + (w ^ u) * 3072

        VXB = opt.get("vxb", 1)
        ldvx = [f"buffer_load_dwordx4 v[{V_VX}:{V_VX+3}], v{V_L16}, {SRD}, s{S_VX} offen",
                f"buffer_load_dwordx4 v[{V_VX+4}:{V_VX+7}], v{V_L16}, {SRD}, s{S_VX} offen offset:1024"]
        a.label(f"{L}_entry")
        top()
        if VXB:
            a(ldvx[0]); a(ldvx[1])
            a(f"s_add_u32 s{S_VX}, s{S_VX}, {32*8192}")
        a.label(f"{L}_loop")
        dump()
        stamp(0)
        NB = opt.get("nb", 3)
        k0, k1 = 2 * w, 2 * w + 1
        m0, m1 = V_M + 4 * k0, V_M + 4 * k1
        a(f"s_add_u32 s{S_T0}, s{S_MEMR}, {k0 * 1024}")
        if opt.get("preA") == "ack": a("s_waitcnt vmcnt(0)")
        elif opt.get("preA"): a.nops(opt["preA"])
        own = [(k0, t) for t in range(4)] + [(k1, t) for t in range(4)]
        lda = f"""
        buffer_load_dwordx4 v[{m0}:{m0+3}], v{V_OMR}, {SRD}, s{S_T0} offen sc1
        buffer_load_dwordx4 v[{m1}:{m1+3}], v{V_OMR}, {SRD}, s{S_T0} offen offset:1024 sc1
        """
        AD = opt.get("ad", 0)
        others = [(k0 + 2 + i) & 7 for i in range(6)]
        n0, n1 = V_M + 4 * others[4], V_M + 4 * others[5]
        a(lda)
        if AD:
            a.nops(AD)
            a(f"""
            buffer_load_dwordx4 v[{n0}:{n0+3}], v{V_OMR}, {SRD}, s{S_T0} offen sc1
            buffer_load_dwordx4 v[{n1}:{n1+3}], v{V_OMR}, {SRD}, s{S_T0} offen offset:1024 sc1
            s_waitcnt vmcnt(2)
            """)
        a.label(f"{L}_pa")
        if AD:
            a(f"""
            ds_write_b128 v{V_LL}, v[{m0}:{m0+3}] offset:{k0*1024}
            ds_write_b128 v{V_LL}, v[{m1}:{m1+3}] offset:{k1*1024}
            """)
        else:
            a(f"""
            s_waitcnt vmcnt(1)
            ds_write_b128 v{V_LL}, v[{m0}:{m0+3}] offset:{k0*1024}
            s_waitcnt vmcnt(0)
            ds_write_b128 v{V_LL}, v[{m1}:{m1+3}] offset:{k1*1024}
            """)
        chk = [f"v_max3_u32 v{V_T0}, v{m0}, v{m0+2}, v{m1}", f"v_max_u32 v{V_T0}, v{V_T0}, v{m1+2}", f"v_cmp_eq_u32 vcc, -1, v{V_T0}"]
        stamp(1)
        a(chk[0]); a(chk[1]); a(chk[2])
        for x in own[:NB]: qk(*x)
        a(f"s_cbranch_vccnz {L}_pafail\ns_waitcnt lgkmcnt(0)\ns_barrier")
        stamp(2)
        rd = [f"ds_read_b128 v[{V_M+4*k}:{V_M+4*k+3}], v{V_LL} offset:{k*1024}" for k in others]
        if AD: rd[4] = "s_waitcnt vmcnt(0)\n" + rd[4]
        ld = [f"buffer_load_dwordx4 v{V_L16}, {SRD}, s{S_KX} offen lds",
              f"buffer_load_dwordx4 v{V_L16}, {SRD}, s{S_KX} offen offset:1024 lds"] + ([] if VXB else ldvx)
        pubd = (f"buffer_store_dwordx4 v[{V_PB1}:{V_PB1+3}], v{V_OKM}, {SRD}, s{S_KVM} offen offset:{w*64} sc1",
                f"buffer_store_dwordx2 v[{V_PV}:{V_PV+1}], v{V_OVM}, {SRD}, s{S_KVV} offen offset:{2048 + w*512} sc1")
        fill = rd + ld + list(pubd)
        KVW = full and w == 3
        if KVW: fill.append(f"buffer_load_dword v{V_T1}, v{V_FL}, {SRD}, 0 offen sc1")
        seq = own[NB:] + [(k, t) for k in others for t in range(4)]
        a(fill.pop(0)); a(fill.pop(0))
        issued = 2
        for i, x in enumerate(seq):
            if i >= 8 - NB and (i - (8 - NB)) % 4 == 0:
                need = (i - (8 - NB)) // 4 + 1
                assert issued >= need
                a(f"s_waitcnt lgkmcnt({issued - need})")
            qk(*x)
            if fill and ("ds_read" in fill[0] or i % opt.get("fsp", 1) == 0):
                a(fill.pop(0))
                if "ds_read" in a.lines[-1]: issued += 1
        assert not fill
        stamp(3)
        def vsm(op):
            k, tau = op >> 1, op & 1
            d = V_ST + 8 * (op & 3) if op < 10 else wv_reg(op)
            smf(V_AV + 4 * tau, V_M + 4 * k, f"v[{d}:{d+7}]")
        vm = ["kx", "vx", "pk", "pv"] + (["fl"] if KVW else [])
        def vwait(tag):
            n = len(vm) - 1 - max(i for i, t in enumerate(vm) if t == tag)
            a(f"s_waitcnt vmcnt({n})")
        a.nops(5)
        pkadd(V_AQ); pkadd(V_AQ + 4); pkadd(V_AQ + 8); pkadd(V_AQ + 12)
        a(f"""
        v_cvt_pk_bf16_f32 v{G+3}, v{V_AQ+12}, v{V_AQ+13}
        v_cvt_pk_bf16_f32 v{G}, v{V_AQ}, v{V_AQ+1}
        v_cvt_pk_bf16_f32 v{G+2}, v{V_AQ+4}, v{V_AQ+5}
        v_cvt_pk_bf16_f32 v{G+1}, v{V_AQ+8}, v{V_AQ+9}
        v_and_or_b32 v{G}, v{G}, -2, s{S_PHX}
        buffer_store_dwordx4 v[{G}:{G+3}], v{V_L16}, {SRD}, s{S_XOUT} offen sc1
        """)
        vm.append("sq")
        stamp(4)
        XP = opt.get("xp", (14,))
        PB = [PG, V_PB1, G]
        def ldx(b):
            a(f"buffer_load_dwordx4 v[{PB[b]}:{PB[b]+3}], v{V_L16}, {SRD}, s{S_XIN} offen sc1")
        def xpoint(p):
            for b, q in enumerate(XP):
                if q == p:
                    ldx(b); vm.append(f"x{b}")
        ldv = f"buffer_load_dwordx2 v[{V_AV+4}:{V_AV+5}], v{V_OVM}, {SRD}, s{S_VIN} offen sc1"
        vorder = [0, 1, 2, 3, 10, 11, 12, 4, 5, 13, 14, 15, 6, 7, 8, 9]
        pend = []
        for i, op in enumerate(vorder):
            if op in pend:
                a(f"s_waitcnt lgkmcnt({2 * (len(pend) - 1 - pend.index(op))})")
            vsm(op)
            if op + 4 < 10:
                wv_read(op + 4); pend.append(op + 4)
            xpoint(i)
        stamp(5)
        a(f"v_mfma_f32_16x16x16_bf16 v[{DO}:{DO+3}], v[{G}:{G+1}], v[{V_SEL}:{V_SEL+1}], 0")
        a(f"v_mfma_f32_16x16x16_bf16 v[{DO+4}:{DO+7}], v[{G+2}:{G+3}], v[{V_SEL}:{V_SEL+1}], 0")
        a.nops(5)
        a(f"""
        v_add_f32 v{V_AV}, v{V_AV}, v{V_AV+2}
        v_add_f32 v{V_AV+1}, v{V_AV+1}, v{V_AV+3}
        v_add_f32 v{V_AV+2}, v{V_AV+4}, v{V_AV+6}
        v_add_f32 v{V_AV+3}, v{V_AV+5}, v{V_AV+7}
        v_cvt_pk_bf16_f32 v{V_PV}, v{V_AV}, v{V_AV+1}
        v_cvt_pk_bf16_f32 v{V_PV+1}, v{V_AV+2}, v{V_AV+3}
        v_and_or_b32 v{V_PV}, v{V_PV}, -2, s{S_PHX}
        """)
        VS = opt.get("vs", 17)
        def vstore(p):
            if p != VS: return
            if opt.get("vbar"): a("s_barrier")
            a(f"buffer_store_dwordx2 v[{V_PV}:{V_PV+1}], v{V_OVM}, {SRD}, s{S_VOUT} offen sc1")
            vm.append("sv")
        xpoint(16)
        vstore(17)
        xpoint(17)
        stamp(6)
        OZ = 92
        a(f"""
        v_mov_b32 v{V_AV}, v{V_PV}
        v_mov_b32 v{V_AV+2}, v{V_PV+1}
        v_mov_b32 v{OZ}, v{V_ONE}
        v_mov_b32 v{OZ+1}, 0
        """)
        vwait("vx")
        stamp(7)
        a("s_barrier")
        for u in range(4):
            for t in range(2):
                d = V_KX + 8 * u + 4 * t
                a(f"ds_read_b128 v[{d}:{d+3}], v{V_LL} offset:{xoff(u) + 1024*(1+t)}")
        xpoint(18)
        vstore(18)
        for i, dl in enumerate(opt.get("xd", ())):
            a.nops(dl)
            xpoint(19 + i)
            vstore(19 + i)
        if opt.get("vearly"):
            a(ldv); vm.append("v")
        if KVW:
            a(f"""
            s_add_u32 s{S_T0}, s{S_STEP}, 4
            s_cmp_gt_u32 s{S_KN}, s{S_T0}
            s_cbranch_scc1 {L}_kvs
            """)
            vwait("fl")
            kv_eval(V_T1)
            kv_block(V_T1, 1)
            a.label(f"{L}_kvs")
        stamp(8)
        XD = V_S
        def xtry(b):
            p = PB[b]
            a(f"""
            v_mfma_f32_16x16x16_bf16 v[{XD}:{XD+3}], v[{p}:{p+1}], v[{V_SEL}:{V_SEL+1}], v[{DO}:{DO+3}]
            v_mfma_f32_16x16x16_bf16 v[{XD+4}:{XD+7}], v[{p+2}:{p+3}], v[{V_SEL}:{V_SEL+1}], v[{DO+4}:{DO+7}]
            v_and_b32 v{V_T0}, 1, v{p}
            v_cmp_ne_u32 vcc, s{S_PHX}, v{V_T0}
            s_nop 4
            v_cvt_pk_bf16_f32 v{V_X}, v{XD}, v{XD+1}
            v_cvt_pk_bf16_f32 v{V_X+1}, v{XD+2}, v{XD+3}
            v_cvt_pk_bf16_f32 v{V_X+2}, v{XD+4}, v{XD+5}
            v_cvt_pk_bf16_f32 v{V_X+3}, v{XD+6}, v{XD+7}
            ds_write_b128 v{V_LL}, v[{V_X}:{V_X+3}] offset:{xoff(0)}
            """)
        vwait("x0")
        stamp(9)
        xtry(0)
        a(f"s_cbranch_vccnz {L}_xslow")
        a.label(f"{L}_xok")
        vm_x = list(vm)
        if opt.get("vearly"):
            a(f"buffer_load_dwordx2 v[{V_PB1}:{V_PB1+1}], v{V_OVM}, {SRD}, s{S_VIN} offen sc1")
        else:
            a(ldv)
        a("s_waitcnt lgkmcnt(1)")
        def score(u, ts=(0, 1, 2)):
            x = V_X + 4 * u
            for t in ts:
                src = (V_KX + 8 * u + 4 * t) if t < 2 else x
                d = V_S + 4 * t
                c = "0" if u == 0 else f"v[{d}:{d+3}]"
                a(f"v_mfma_f32_16x16x32_bf16 v[{d}:{d+3}], v[{src}:{src+3}], v[{x}:{x+3}], {c}")
        score(0, (0,))
        a("s_waitcnt lgkmcnt(0)\ns_barrier")
        stamp(10)
        for u in range(1, 4):
            a(f"ds_read_b128 v[{V_X+4*u}:{V_X+4*u+3}], v{V_LL} offset:{xoff(u)}")
        score(0, (1, 2))
        if not opt.get("vearly"):
            a(f"buffer_load_dwordx2 v[{V_PB1}:{V_PB1+1}], v{V_OVM}, {SRD}, s{S_VIN} offen sc1")
        vchk = f"""
        s_waitcnt vmcnt(1)
        v_and_b32 v{V_T0}, 1, v{V_AV+4}
        v_cmp_ne_u32 vcc, s{S_PHX}, v{V_T0}
        v_mov_b32 v{V_AV+1}, v{V_AV+4}
        v_mov_b32 v{V_AV+3}, v{V_AV+5}
        """.strip().split("\n")
        for u in range(1, 4):
            a(f"s_waitcnt lgkmcnt({3-u})")
            score(u)
        zero32(V_ACC)
        stamp(11)
        MX, TM = V_T1, V_S + 10
        P = V_X + 4
        VE = opt.get("vearly")
        if VE:
            for l in vchk: a(l)
        else:
            a.nops(5)
        a(f"""
        v_max3_f32 v{MX}, v{V_S}, v{V_S+1}, v{V_S+2}
        v_max3_f32 v{MX}, v{MX}, v{V_S+3}, v{V_S+4}
        v_max3_f32 v{MX}, v{MX}, v{V_S+5}, v{V_S+6}
        v_max3_f32 v{MX}, v{MX}, v{V_S+7}, v{V_S+8}
        v_max_f32 v{TM}, v{MX}, v{V_S+9}
        v_max_f32 v{MX}, v{MX}, v{V_S+9}
        s_nop 0
        """)
        if VE:
            a(f"s_cbranch_vccnz {L}_pv0\n{L}_pv2:")
        else:
            a("s_nop 0")
        a(f"""
        v_permlane16_swap_b32 v{MX}, v{TM}
        v_max_f32 v{MX}, v{MX}, v{TM}
        v_max_f32 v{TM}, v{MX}, v{TM}
        """)
        a("s_nop 1")
        a(f"""
        v_permlane32_swap_b32 v{MX}, v{TM}
        v_max_f32 v{MX}, v{MX}, v{TM}
        v_mul_f32 v{MX}, s{S_C}, v{MX}
        """)
        for i in range(0, 10, 2):
            a(f"v_pk_fma_f32 v[{V_S+i}:{V_S+i+1}], v[{V_S+i}:{V_S+i+1}], s[{S_C}:{S_C+1}], v[{MX}:{MX+1}] op_sel_hi:[1,0,0] neg_lo:[0,0,1] neg_hi:[0,0,1]")
        for i in range(8):
            a(f"v_exp_f32 v{V_S+i}, v{V_S+i}")
            if i >= 2 and i % 2 == 0:
                a(f"v_cvt_pk_bf16_f32 v{P+i//2-1}, v{V_S+i-2}, v{V_S+i-1}")
        O, SM = DO, V_X + 12
        a(f"""
        v_exp_f32 v{V_S+8}, v{V_S+8}
        v_cvt_pk_bf16_f32 v{P+3}, v{V_S+6}, v{V_S+7}
        v_exp_f32 v{V_S+9}, v{V_S+9}
        s_cmp_eq_u32 s{S_STEP}, {nsteps-1}
        """)
        stamp(12)
        a(f"""
        v_mfma_f32_16x16x32_bf16 v[{SM}:{SM+3}], v[{V_ONE}:{V_ONE+3}], v[{P}:{P+3}], 0
        v_cvt_pk_bf16_f32 v{P+4}, v{V_S+8}, v{V_S+9}
        v_cvt_pk_bf16_f32 v{P+5}, v{V_S+8}, v{V_S+9}
        """)
        a(f"v_mfma_f32_16x16x32_bf16 v[{O}:{O+3}], v[{V_VX}:{V_VX+3}], v[{P}:{P+3}], 0")
        if not VE: a(vchk[0]); a(vchk[1]); a(vchk[2])
        a(f"v_mfma_f32_16x16x32_bf16 v[{O+4}:{O+7}], v[{V_VX+4}:{V_VX+7}], v[{P}:{P+3}], 0")
        if not VE: a(vchk[3]); a(vchk[4])
        a(f"v_mfma_f32_16x16x16_bf16 v[{SM}:{SM+3}], v[{OZ}:{OZ+1}], v[{P+4}:{P+5}], v[{SM}:{SM+3}]")
        if not VE:
            a(f"s_cbranch_vccnz {L}_pv0\n{L}_pv2:")
        a(f"""
        v_mfma_f32_16x16x16_bf16 v[{O}:{O+3}], v[{V_AV}:{V_AV+1}], v[{P+4}:{P+5}], v[{O}:{O+3}]
        v_mfma_f32_16x16x16_bf16 v[{O+4}:{O+7}], v[{V_AV+2}:{V_AV+3}], v[{P+4}:{P+5}], v[{O+4}:{O+7}]
        """)
        stamp(13)
        nn = 0
        if opt.get("vxp", 13) == 13:
            a(ldvx[0]); a(ldvx[1]); nn = 2
        if not VE:
            a(f"s_cmp_eq_u32 s{S_STEP}, {nsteps-1}")
            a.nops(4 - nn)
        else:
            a.nops(6 - nn)
        a(f"""
        v_rcp_f32 v{SM}, v{SM}
        s_cbranch_scc1 {L}_last
        s_mov_b64 exec, s[{S_MQ}:{S_MQ+1}]
        """)
        OB = V_X + 8
        a(f"""
        v_pk_mul_f32 v[{O}:{O+1}], v[{O}:{O+1}], v[{SM}:{SM+1}] op_sel_hi:[1,0]
        v_pk_mul_f32 v[{O+2}:{O+3}], v[{O+2}:{O+3}], v[{SM}:{SM+1}] op_sel_hi:[1,0]
        v_pk_mul_f32 v[{O+4}:{O+5}], v[{O+4}:{O+5}], v[{SM}:{SM+1}] op_sel_hi:[1,0]
        v_pk_mul_f32 v[{O+6}:{O+7}], v[{O+6}:{O+7}], v[{SM}:{SM+1}] op_sel_hi:[1,0]
        v_cvt_pk_bf16_f32 v{OB}, v{O}, v{O+1}
        v_cvt_pk_bf16_f32 v{OB+1}, v{O+2}, v{O+3}
        v_cvt_pk_bf16_f32 v{OB+2}, v{O+4}, v{O+5}
        v_cvt_pk_bf16_f32 v{OB+3}, v{O+6}, v{O+7}
        """)
        OA = V_X + 4
        stamp(14)
        def save(n):
            a(f"""
            s_waitcnt vmcnt({n})
            v_mov_b32 v{V_PB1}, v{V_X}
            v_mov_b32 v{V_PB1+1}, v{V_X+1}
            v_mov_b32 v{V_PB1+2}, v{V_X+2}
            v_mov_b32 v{V_PB1+3}, v{V_X+3}
            s_add_u32 s{S_KVM}, s{S_KVM}, {32*8192}
            s_add_u32 s{S_KVV}, s{S_KVV}, {32*8192}
            """)
        a(f"ds_write_b128 v{V_LL}, v[{OB}:{OB+3}] offset:{LDS_O - LDS_MEM + (w >> 1) * 1024 + (w & 1) * 32 - 32}")
        a("s_mov_b64 exec, -1")
        WB = {10: 88, 11: 80, 12: V_AV, 13: 96, 14: 104, 15: 88}
        NPRE = opt.get("npre", 3)
        for op in range(10, 10 + NPRE): lop_read(op, WB[op])
        if opt.get("vxp", 13) == 14: a(ldvx[0]); a(ldvx[1])
        if full and w == 0:
            a(f"v_mov_b32 v{V_T0}, s{S_STEP}")
            a(f"buffer_store_dword v{V_T0}, v{V_FL}, {SRD}, 0 offen sc1")
        a(f"""
        s_waitcnt lgkmcnt({2 * NPRE})
        s_barrier
        ds_read_b128 v[{OA}:{OA+3}], v{V_LL} offset:{LDS_O - LDS_MEM}
        ds_read_b128 v[{OA+4}:{OA+7}], v{V_LL} offset:{LDS_O - LDS_MEM + 1024}
        """)
        for op in range(10 + NPRE, 15): lop_read(op, WB[op])
        NPOST = 2 * (5 - NPRE)
        stamp(15)
        sal = f"""
        s_add_u32 s{S_STEP}, s{S_STEP}, 1
        s_xor_b32 s{S_XIN}, s{S_XIN}, {MB}
        s_xor_b32 s{S_XOUT}, s{S_XOUT}, {MB}
        s_xor_b32 s{S_VIN}, s{S_VIN}, {MB}
        s_xor_b32 s{S_VOUT}, s{S_VOUT}, {MB}
        s_lshr_b32 s{S_PHX}, s{S_STEP}, 1
        s_and_b32 s{S_PHX}, s{S_PHX}, 1
        s_xor_b32 s{S_PHX}, s{S_PHX}, 1
        s_xor_b32 s{S_MEMR}, s{S_MEMR}, 16384
        s_xor_b32 s{S_MEMW}, s{S_MEMW}, 16384
        s_add_u32 s{S_KX}, s{S_KX}, {32*8192}
        s_add_u32 s{S_VX}, s{S_VX}, {32*8192}
        """.strip().split("\n")

        def wo(i):
            T, kp = WO_ORDER[i]
            b = V_WO + 8 * i if i < 10 else WB[i]
            smf(V_ACC + 4 * T, OA + 4 * kp, f"v[{b}:{b+7}]")
        def fold(T, pk):
            A = V_ACC + 4 * T
            GR = V_ACC + 16 * (T >> 2)
            if pk: pkadd(A)
            else:
                a(f"v_add_f32 v{A}, v{A}, v{A+2}\nv_add_f32 v{A+1}, v{A+1}, v{A+3}")
            a(f"v_cvt_pk_bf16_f32 v{GR+(T&3)}, v{A}, v{A+1}")
            if T & 3 == 0:
                a(f"v_and_or_b32 v{GR}, v{GR}, -2, s{S_PHP}")
            if T & 3 == 3:
                a(f"buffer_store_dwordx4 v[{GR}:{GR+3}], v{V_OPART}, {SRD}, s{S_PARTW if T < 4 else S_PARTW2} offen {IS}")
        a(f"s_waitcnt lgkmcnt({NPOST + 1})")
        for i in range(13):
            if i == 4: a(f"s_waitcnt lgkmcnt({NPOST})")
            if i == 10: a("s_waitcnt lgkmcnt(0)")
            wo(i)
            if i == 10: lop_read(15, WB[15])
            elif sal: a(sal.pop(0))
        assert not sal
        fold(0, 0); wo(13); fold(1, 0); wo(14); fold(2, 0); a("s_waitcnt lgkmcnt(0)"); wo(15); fold(3, 0)
        pk = opt.get("pkt", 1)
        fold(4, pk); fold(5, pk); fold(6, pk); fold(7, pk)
        stamp(16)
        save(5 if (full and w == 0) else 4)
        if opt.get("steps") and w == 1:
            a(f"""
            s_memrealtime s[62:63]
            s_lshl_b32 s64, s{S_J}, 5
            s_add_u32 s64, s64, s{S_H}
            s_lshl_b32 s64, s64, 6
            s_add_u32 s64, s64, s{S_STEP}
            s_lshl_b32 s64, s64, 2
            s_add_u32 s64, s64, {WS_PROF + 4*MB}
            s_waitcnt lgkmcnt(0)
            v_mov_b32 v{V_T0}, s62
            s_mov_b64 exec, 1
            buffer_store_dword v{V_T0}, off, {SRD}, s64
            s_mov_b64 exec, -1
            """)
        top()
        RB, RD = V_M + 4, V_M + 20
        a(f"v_mov_b32 v{RD+6}, -1\nv_mov_b32 v{RD+7}, -1")
        if opt.get("preC") == "ack": a("s_waitcnt vmcnt(0)")
        elif opt.get("preC") == "ack1": a("s_waitcnt vmcnt(1)")
        elif opt.get("preC"): a.nops(opt["preC"])
        def cissue(b):
            for d in range(8):
                a(f"buffer_load_dword v{RB+8*b+d}, v{V_OCR}, {SRD}, s{S_PARTR if d < 4 else S_PARTR2} offen offset:{1024*(d&3) + 64*w} sc1")
        def ctry(b, behind, nxt=None):
            r = RB + 8 * b
            a(f"""
            s_waitcnt vmcnt({behind + 4})
            v_mfma_f32_16x16x32_bf16 v[{RD}:{RD+3}], v[{r}:{r+3}], v[{V_SELR}:{V_SELR+3}], 0
            v_bitop3_b32 v{V_T0}, s{S_PHP}, v{r}, v{r+1} bitop3:0x7e
            v_bitop3_b32 v{V_T1}, s{S_PHP}, v{r+2}, v{r+3} bitop3:0x7e
            s_waitcnt vmcnt({behind + 2})
            v_or_b32 v{V_T0}, v{V_T0}, v{V_T1}
            v_bitop3_b32 v{V_T1}, s{S_PHP}, v{r+4}, v{r+5} bitop3:0x7e
            s_waitcnt vmcnt({behind})
            v_mfma_f32_16x16x32_bf16 v[{RD}:{RD+3}], v[{r+4}:{r+7}], v[{V_SELR}:{V_SELR+3}], v[{RD}:{RD+3}]
            v_bitop3_b32 v{RD+4}, s{S_PHP}, v{r+6}, v{r+7} bitop3:0x7e
            v_or3_b32 v{V_T0}, v{V_T0}, v{V_T1}, v{RD+4}
            v_and_b32 v{V_T0}, v{V_TAGM}, v{V_T0}
            v_cmp_ne_u32 vcc, 0, v{V_T0}
            """)
        def cfin():
            a(f"""
            v_cvt_pk_bf16_f32 v{RD+4}, v{RD}, v{RD+1}
            v_cvt_pk_bf16_f32 v{RD+5}, v{RD+2}, v{RD+3}
            v_min_u32 v{RD+4}, -2, v{RD+4}
            """)
        CD = opt.get("cd", 0)
        if CD:
            cissue(0); a.nops(CD); cissue(1)
            if opt.get("tot"): a("s_add_u32 s87, s87, 1")
            ctry(0, 8)
            a(f"s_cbranch_vccnz {L}_cslow")
            a.label(f"{L}_cok")
            a("s_nop 2"); cfin()
        elif opt.get("cearly", 1):
            a.label(f"{L}_pc")
            cissue(0)
            watchdog(30, 3)
            ctry(0, 0)
            a(f"s_cbranch_vccnz {L}_pc")
            a("s_nop 2"); cfin()
        else:
            a.label(f"{L}_pc")
            cissue(0)
            watchdog(30, 3)
            ctry(0, 0); a("s_nop 3"); cfin()
            a(f"s_cbranch_vccnz {L}_pc")
        a(f"""
        {"" if opt.get("amask") else f"s_mov_b64 exec, s[{S_MLO}:{S_MLO+1}]"}
        buffer_store_dwordx2 v[{RD+4}:{RD+5}], v{V_OMP}, {SRD}, s{S_MEMR} offen offset:{w * 64} {IS}
        buffer_store_dwordx2 v[{RD+6}:{RD+7}], v{V_OMP}, {SRD}, s{S_MEMW} offen offset:{w * 64} {IS}
        s_mov_b64 exec, -1
        s_xor_b32 s{S_PHP}, s{S_PHP}, 1
        """)
        stamp(17)
        a(f"s_branch {L}_loop")
        a.label(f"{L}_last")
        save(0); a(pubd[0]); a(pubd[1])
        a(f"s_branch {name}_end")
        a.label(f"{L}_pafail")
        if AD:
            if opt.get("tot"): a("s_add_u32 s84, s84, 1")
            a.nops(6)
            for i in range(4 * min(NB, 4)):
                a(f"v_mov_b32 v{V_AQ+i}, 0")
            a.label(f"{L}_pa2")
            a(f"""
            s_waitcnt vmcnt(0)
            v_max3_u32 v{V_T0}, v{n0}, v{n0+2}, v{n1}
            v_max_u32 v{V_T0}, v{V_T0}, v{n1+2}
            v_cmp_eq_u32 vcc, -1, v{V_T0}
            """)
            for i in range(0, 4, 2):
                a(f"v_pk_mov_b32 v[{m0+i}:{m0+i+1}], v[{n0+i}:{n0+i+1}], v[{n0+i}:{n0+i+1}] op_sel:[0,1]")
                a(f"v_pk_mov_b32 v[{m1+i}:{m1+i+1}], v[{n1+i}:{n1+i+1}], v[{n1+i}:{n1+i+1}] op_sel:[0,1]")
            a(f"""
            s_cbranch_vccz {L}_pa
            buffer_load_dwordx4 v[{n0}:{n0+3}], v{V_OMR}, {SRD}, s{S_T0} offen sc1
            buffer_load_dwordx4 v[{n1}:{n1+3}], v{V_OMR}, {SRD}, s{S_T0} offen offset:1024 sc1
            """)
            watchdog(10 + w, 0)
            a(f"s_branch {L}_pa2")
        else:
            a(lda)
            watchdog(10 + w, 0)
            a.nops(8)
            for i in range(4 * min(NB, 4)):
                a(f"v_mov_b32 v{V_AQ+i}, 0")
            a(f"s_branch {L}_pa")

        if opt.get("cd"):
            a.label(f"{L}_cslow")
            cissue(0)
            a.label(f"{L}_pc")
            watchdog(30, 3)
            ctry(1, 8)
            a(f"s_cbranch_vccz {L}_cok")
            cissue(1)
            watchdog(30, 3)
            ctry(0, 8)
            a(f"s_cbranch_vccz {L}_cok")
            cissue(0)
            a(f"s_branch {L}_pc")

        a.label(f"{L}_xslow")
        vm[:] = vm_x
        nxp = len(XP)
        def xlight(b):
            a(f"""
            v_and_b32 v{V_T0}, 1, v{PB[b]}
            v_cmp_ne_u32 vcc, s{S_PHX}, v{V_T0}
            s_cbranch_vccz {L}_xgot{b}
            """)
        ldx(0); vm.append("y0")
        for b in range(1, nxp):
            if opt.get("tot"): a(f"s_add_u32 s85, s85, 1")
            vwait(f"x{b}")
            xlight(b)
            ldx(b); vm.append(f"y{b}")
        a.label(f"{L}_px")
        for b in range(nxp):
            watchdog(20, 1)
            a(f"s_waitcnt vmcnt({nxp - 1})")
            xlight(b)
            ldx(b)
        a(f"s_branch {L}_px")
        for b in range(nxp):
            a.label(f"{L}_xgot{b}")
            xtry(b)
            a(f"s_branch {L}_xok")

        a.label(f"{L}_pv0")
        if opt.get("tot"): a("s_add_u32 s86, s86, 1")
        a(f"s_waitcnt vmcnt(0)\ns_branch {L}_pv1")
        a.label(f"{L}_pv")
        watchdog(21, 2)
        a(f"""
        buffer_load_dwordx2 v[{V_PB1}:{V_PB1+1}], v{V_OVM}, {SRD}, s{S_VIN} offen sc1
        s_waitcnt vmcnt(0)
        {L}_pv1:
        v_and_b32 v{V_T0}, 1, v{V_PB1}
        v_cmp_ne_u32 vcc, s{S_PHX}, v{V_T0}
        v_mov_b32 v{V_AV+1}, v{V_PB1}
        v_mov_b32 v{V_AV+3}, v{V_PB1+1}
        s_cbranch_vccnz {L}_pv
        s_branch {L}_pv2
        """)

    for w in range(4):
        wave_loop(w)
    a.label(f"{name}_end")
    a("s_mov_b64 exec, -1")
    if full:
        a(f"""
        v_mov_b32 v{V_T0}, 64
        s_waitcnt vmcnt(0)
        s_barrier
        s_cmp_lg_u32 s{S_WAVE}, 0
        s_cbranch_scc1 {name}_end2
        buffer_store_dword v{V_T0}, v{V_FL}, s[{S_WS}:{S_WS+3}], 0 offen sc1
        {name}_end2:
        """)
    if tstamp: tstamp()
    if opt.get("tot"):
        a(f"""
        s_memtime s[66:67]
        s_memrealtime s[68:69]
        s_waitcnt lgkmcnt(0)
        s_sub_u32 s89, s66, s98
        s_sub_u32 s88, s68, s96
        s_lshl_b32 s{S_T0}, s{S_J}, 5
        s_add_u32 s{S_T0}, s{S_T0}, s{S_H}
        s_lshl_b32 s{S_T0}, s{S_T0}, 2
        s_add_u32 s{S_T0}, s{S_T0}, s{S_WAVE}
        s_lshl_b32 s{S_T0}, s{S_T0}, 7
        s_add_u32 s{S_T0}, s{S_T0}, {WS_PROF}
        s_mov_b64 exec, 1
        """)
        for i in range(14, 20):
            a(f"v_mov_b32 v{V_T0}, s{70+i}")
            a(f"buffer_store_dword v{V_T0}, v{V_Z}, s[{S_WS}:{S_WS+3}], s{S_T0} offen offset:{4*i}")
        a("s_mov_b64 exec, -1")
    a("s_waitcnt vmcnt(0)")
    a("s_endpgm")
    if wd:
        a.label(f"{name}_wdexit")
        a(f"""
        s_mov_b64 exec, 1
        s_lshl_b32 s{S_T0}, s{S_STEP}, 8
        s_or_b32 s{S_T2}, s{S_T2}, s{S_T0}
        v_mov_b32 v{V_T0}, s{S_T2}
        v_mov_b32 v{V_T1}, 0
        s_lshl_b32 s{S_T0}, s{S_J}, 5
        s_add_u32 s{S_T0}, s{S_T0}, s{S_H}
        s_lshl_b32 s{S_T0}, s{S_T0}, 2
        s_add_u32 s{S_T0}, s{S_T0}, s{S_WAVE}
        s_lshl_b32 s{S_T0}, s{S_T0}, 2
        s_add_u32 s{S_T0}, s{S_T0}, {WS_PROF + MB}
        buffer_store_dword v{V_T0}, v{V_T1}, s[{S_WS}:{S_WS+3}], s{S_T0} offen
        s_endpgm
        """)


def gen_standalone(name, prof=False, opt={}, xa=0, xb=1):
    from gen_hop import ticket
    a = Asm(); a.kernel_begin(name)
    a(f"s_cmp_ge_u32 s2, 256\ns_cbranch_scc1 {name}_exit")
    a(f"""
    s_load_dwordx2 s[84:85], s[0:1], {KA_WS}
    s_waitcnt lgkmcnt(0)
    s_mov_b32 s86, {WS_BYTES}
    s_mov_b32 s87, 0x00020000
    """)
    global_init(a, name, 84)
    a("s_waitcnt vmcnt(0)\ns_barrier")
    ticket(a, name, 2)
    a(f"""
    s_cmp_eq_u32 s90, {xa}
    s_cselect_b32 s{S_J}, 0, 2
    s_cmp_eq_u32 s90, {xb}
    s_cselect_b32 s{S_J}, 1, s{S_J}
    s_cmp_ge_u32 s{S_J}, 2
    s_cbranch_scc1 {name}_exit
    s_cmp_ge_u32 s96, 32
    s_cbranch_scc1 {name}_exit
    s_mov_b32 s{S_H}, s96
    s_branch {name}_go
    {name}_exit:
    s_endpgm
    {name}_go:
    """)
    rec_body(a, name + "_r", "", prof=prof, wd=True, opt=opt)
    return (name, a.text(), kd(name, 512, sgpr=100, accum=256), 256, 256, LDS_REC)


if __name__ == "__main__":
    import sys, json
    V = eval(open(sys.argv[1]).read())
    ks = [gen_standalone(f"r{i}_kernel", **v) for i, v in enumerate(V)]
    write_file("rec.s", ks)
    json.dump(V, open("rec.json", "w"))
```

```python
from common import *
from gen_rec import WS_QX, WS_KX, WS_VT, WS_O, WS_KVM
from gen_qkv import WS_FL

FL_RP, FL_XF = 192, 256
NEARLY = 12


def xo_role(a: Asm, name, S_B, S_WS, S_FAST, wd=None, opt={}, stamp=None):
    S_W, S_O = 8, 12
    S_WAVE, S_G, S_C, S_T0, S_T1, S_SEG, S_CST = 16, 17, 18, 20, 21, 22, 24
    S_QO, S_KO, S_VO, S_MO, S_OW, S_OR, S_OUT, S_NEED = 26, 27, 28, 29, 40, 41, 42, 43
    S_M0 = 44
    S_CUR, S_RET, S_SLOT, S_CSLOT = 45, 46, 47, 48
    SRD = f"s[{S_WS}:{S_WS+3}]"
    V_L, V_L16, V_T0, V_T1, V_T2 = 1, 2, 3, 4, 5
    V_OKM, V_OVM, V_OOW, V_TH0, V_TH1, V_NEG, V_FGP, V_FRP, V_FXF, V_FMY, V_LR, V_LW, V_OUT = 6, 7, 8, 9, 10, 11, 12, 13, 14, 15, 16, 17, 18
    V_ONE = 20
    V_Q, V_K, V_V = 24, 40, 72
    V_KM, V_VM = 88, 104
    V_S, V_P, V_SM = 112, 124, 132
    V_O = 88
    V_ACC = 88
    V_F = 136
    NFR = 30

    def poll_guard(code):
        if wd: wd(code)

    a(f"""
    s_load_dwordx2 s[{S_W}:{S_W+1}], s[0:1], {KA_WO}
    s_load_dwordx2 s[{S_O}:{S_O+1}], s[0:1], {KA_OUT}
    v_lshrrev_b32 v{V_T0}, 6, v0
    v_and_b32 v{V_L}, 63, v0
    v_readfirstlane_b32 s{S_WAVE}, v{V_T0}
    s_lshr_b32 s{S_G}, s{S_B}, 5
    s_and_b32 s{S_C}, s{S_B}, 31
    v_lshlrev_b32 v{V_L16}, 4, v{V_L}
    s_waitcnt lgkmcnt(0) vmcnt(0)
    s_barrier
    s_mov_b32 s{S_W+2}, {8*MB}
    s_mov_b32 s{S_W+3}, 0x00020000
    s_mov_b32 s{S_O+2}, {8*MB}
    s_mov_b32 s{S_O+3}, 0x00020000
    s_mov_b32 s{S_CST}, 0x3e0293ee
    v_lshrrev_b32 v{V_T0}, 2, v{V_L}
    v_lshlrev_b32 v{V_T0}, 11, v{V_T0}
    v_and_b32 v{V_T1}, 3, v{V_L}
    v_lshl_add_u32 v{V_T0}, v{V_T1}, 4, v{V_T0}
    s_lshl_b32 s{S_T0}, s{S_WAVE}, 21
    s_lshl_b32 s{S_T1}, s{S_C}, 6
    s_add_u32 s{S_T0}, s{S_T0}, s{S_T1}
    v_add_u32 v24, s{S_T0}, v{V_T0}
    s_lshl_b32 s{S_M0}, s{S_WAVE}, 15
    v_lshrrev_b32 v{V_T0}, 5, v{V_L}
    v_bfe_u32 v{V_T2}, v{V_L}, 2, 2
    v_lshl_add_u32 v{V_T0}, v{V_T0}, 3, v{V_T2}
    v_lshlrev_b32 v25, 6, v{V_T0}
    v_bfe_u32 v{V_T2}, v{V_L}, 4, 1
    v_lshl_add_u32 v25, v{V_T2}, 5, v25
    v_lshl_add_u32 v25, v{V_T1}, 3, v25
    v_add_u32 v25, s{S_M0}, v25
    """)
    def wdma(ks):
        a(f"s_add_u32 m0, s{S_M0}, {(ks & 31) * 1024}")
        a(f"s_mov_b32 s{S_T0}, {16 * ks * 2048}")
        a(f"buffer_load_dwordx4 v24, s[{S_W}:{S_W+3}], s{S_T0} offen lds")
    a(f"""
    s_lshl_b32 s{S_SLOT}, s{S_G}, 2
    s_add_u32 s{S_T0}, s{S_SLOT}, s{S_WAVE}
    s_lshl_b32 s{S_T0}, s{S_T0}, 18
    s_lshl_b32 s{S_T1}, s{S_C}, 13
    s_add_u32 s{S_T0}, s{S_T0}, s{S_T1}
    s_add_u32 s{S_T0}, s{S_T0}, {WS_O}
    v_lshlrev_b32 v26, 7, v{V_L}
    buffer_load_dword v28, v26, {SRD}, s{S_T0} offen sc1
    """)
    for ks in range(32): wdma(ks)
    a(f"""
    v_and_b32 v{V_T1}, 15, v{V_L}             ; c
    v_lshrrev_b32 v{V_T2}, 4, v{V_L}          ; g
    v_lshrrev_b32 v{V_T0}, 2, v{V_T1}
    v_lshlrev_b32 v{V_T0}, 1, v{V_T0}
    v_and_b32 v26, 1, v{V_T1}
    v_add_u32 v{V_T0}, v{V_T0}, v26           ; m(c)
    v_lshlrev_b32 v{V_OKM}, 8, v{V_T0}
    v_lshl_add_u32 v{V_OKM}, v{V_T2}, 4, v{V_OKM}
    s_lshr_b32 s{S_T0}, s{S_WAVE}, 1
    s_lshl_b32 s{S_T0}, s{S_T0}, 10
    s_add_u32 s{S_T0}, s{S_T0}, 2048
    v_lshlrev_b32 v{V_OVM}, 3, v{V_L}
    v_add_u32 v{V_OVM}, s{S_T0}, v{V_OVM}
    v_lshlrev_b32 v{V_OOW}, 9, v{V_T2}
    v_lshl_add_u32 v{V_OOW}, v{V_T1}, 4, v{V_OOW}
    s_lshr_b32 s{S_T0}, s{S_WAVE}, 1
    s_lshl_b32 s{S_T0}, s{S_T0}, 12
    s_and_b32 s{S_T1}, s{S_WAVE}, 1
    s_lshl_b32 s{S_T1}, s{S_T1}, 8
    s_add_u32 s{S_T0}, s{S_T0}, s{S_T1}
    v_add_u32 v{V_OOW}, s{S_T0}, v{V_OOW}
    v_lshlrev_b32 v26, 2, v{V_T2}
    v_sub_u32 v{V_TH0}, v{V_T1}, v26
    s_lshr_b32 s{S_T1}, s{S_T1}, 4
    v_add_u32 v{V_TH0}, s{S_T1}, v{V_TH0}
    v_add_u32 v{V_TH1}, -16, v{V_TH0}
    v_mov_b32 v{V_NEG}, 0xff7fffff
    v_mov_b32 v{V_ONE}, 0x3f803f80
    v_mov_b32 v{V_ONE+1}, 0x3f803f80
    v_mov_b32 v{V_ONE+2}, 0x3f803f80
    v_mov_b32 v{V_ONE+3}, 0x3f803f80
    ; flag offsets. GP: lane%4 -> mat (3 -> 0): line 64 mat + 2c (+parity via soffset)
    v_and_b32 v26, 3, v{V_L}
    v_cmp_eq_u32 vcc, 3, v26
    s_lshl_b32 s{S_T0}, s{S_C}, 8
    s_add_u32 s{S_T0}, s{S_T0}, {WS_FL}
    v_cndmask_b32 v26, v26, 0, vcc
    v_lshlrev_b32 v{V_FGP}, 13, v26
    v_add_u32 v{V_FGP}, s{S_T0}, v{V_FGP}
    v_and_b32 v26, 1, v{V_L}
    v_lshlrev_b32 v{V_FRP}, 7, v26
    s_add_u32 s{S_T0}, s{S_T0}, {FL_RP * 128}
    v_add_u32 v{V_FRP}, s{S_T0}, v{V_FRP}
    v_and_b32 v26, 7, v{V_L}
    s_lshl_b32 s{S_T0}, s{S_G}, 5
    s_lshl_b32 s{S_T1}, s{S_WAVE}, 3
    s_add_u32 s{S_T0}, s{S_T0}, s{S_T1}
    v_add_u32 v26, s{S_T0}, v26
    v_lshlrev_b32 v{V_FXF}, 7, v26
    v_add_u32 v{V_FXF}, {WS_FL + FL_XF * 128}, v{V_FXF}
    v_bfrev_b32 v26, 1
    s_lshl_b32 s{S_T0}, s{S_B}, 7
    s_add_u32 s{S_T0}, s{S_T0}, {WS_FL + FL_XF * 128}
    v_mov_b32 v27, s{S_T0}
    v_cmp_eq_u32 vcc, 0, v0
    s_lshl_b32 s{S_T0}, s{S_WAVE}, 12
    v_add_u32 v{V_LW}, s{S_T0}, v{V_L16}
    v_cndmask_b32 v{V_FMY}, v26, v27, vcc
    v_lshrrev_b32 v26, 3, v0
    v_and_b32 v27, 1, v0
    v_lshl_add_u32 v27, v27, 5, v26
    v_lshlrev_b32 v{V_LR}, 4, v27
    v_bfe_u32 v27, v0, 1, 2
    v_lshl_add_u32 v{V_LR}, v27, 10, v{V_LR}
    v_lshlrev_b32 v{V_OUT}, 12, v26
    v_and_b32 v27, 7, v0
    v_lshl_add_u32 v{V_OUT}, v27, 3, v{V_OUT}
    s_lshl_b32 s{S_T0}, s{S_C}, 6
    v_add_u32 v{V_OUT}, s{S_T0}, v{V_OUT}
    """)
    for k4 in range(16):
        a(f"s_waitcnt vmcnt({min(28, 60 - 4 * k4)})")
        for ks in range(4 * k4, 4 * k4 + 4):
            for j in range(2):
                a(f"ds_read_b64_tr_b16 a[{4*ks+2*j}:{4*ks+2*j+1}], v25 offset:{(ks & 31) * 1024 + j * 256}")
        a("s_waitcnt lgkmcnt(0)")
        if k4 < 8:
            for ks in range(4 * k4 + 32, 4 * k4 + 36): wdma(ks)
    a("s_barrier")
    if stamp: stamp()
    a(f"""
    s_add_u32 s{S_SEG}, s{S_G}, {NEARLY}
    s_sub_u32 s{S_T0}, s{S_G}, 4
    s_cmp_ge_u32 s{S_G}, 4
    s_cselect_b32 s{S_SEG}, s{S_T0}, s{S_SEG}
    """)

    def fetch_qkv(tag):
        a(f"""
        s_and_b32 s{S_T0}, s{S_SEG}, 1
        s_lshl_b32 s{S_T0}, s{S_T0}, 7
        s_lshr_b32 s{S_NEED}, s{S_SEG}, 1
        {name}_gp{tag}:
        """)
        poll_guard(40)
        a(f"""
        buffer_load_dword v{V_T0}, v{V_FGP}, {SRD}, s{S_T0} offen sc1
        s_waitcnt vmcnt(0)
        v_cmp_ge_u32 vcc, s{S_NEED}, v{V_T0}
        s_cbranch_vccz {name}_gk{tag}
        s_sleep 8
        s_branch {name}_gp{tag}
        {name}_gk{tag}:
        s_lshl_b32 s{S_KO}, s{S_SEG}, 18
        s_lshl_b32 s{S_T0}, s{S_C}, 13
        s_add_u32 s{S_KO}, s{S_KO}, s{S_T0}
        s_and_b32 s{S_T0}, s{S_WAVE}, 1
        s_lshl_b32 s{S_T0}, s{S_T0}, 10
        s_add_u32 s{S_QO}, s{S_KO}, s{S_T0}
        s_lshr_b32 s{S_T0}, s{S_WAVE}, 1
        s_lshl_b32 s{S_T0}, s{S_T0}, 12
        s_add_u32 s{S_VO}, s{S_KO}, s{S_T0}
        s_add_u32 s{S_VO}, s{S_VO}, {WS_VT}
        s_add_u32 s{S_KO}, s{S_KO}, {WS_KX}
        s_add_u32 s{S_T0}, s{S_QO}, 4096
        s_add_u32 s{S_T1}, s{S_KO}, 4096
        """)
        for u in range(4):
            a(f"buffer_load_dwordx4 v[{V_Q+4*u}:{V_Q+4*u+3}], v{V_L16}, {SRD}, s{S_QO if u < 2 else S_T0} offen offset:{(u & 1) * 2048}")
        for i in range(8):
            a(f"buffer_load_dwordx4 v[{V_K+4*i}:{V_K+4*i+3}], v{V_L16}, {SRD}, s{S_KO if i < 4 else S_T1} offen offset:{(i & 3) * 1024}")
        for i in range(4):
            a(f"buffer_load_dwordx4 v[{V_V+4*i}:{V_V+4*i+3}], v{V_L16}, {SRD}, s{S_VO} offen offset:{i * 1024}")

    fetch_qkv("a")
    a(f"s_mov_b32 s{S_RET}, 0")
    a.label(f"{name}_att")
    a("s_waitcnt vmcnt(0)")
    for u in range(4):
        for kt in range(2):
            d = V_S + 4 * kt
            c = "0" if u == 0 else f"v[{d}:{d+3}]"
            k = V_K + 8 * u + 4 * kt
            a(f"v_mfma_f32_16x16x32_bf16 v[{d}:{d+3}], v[{k}:{k+3}], v[{V_Q+4*u}:{V_Q+4*u+3}], {c}")
    a(f"""
    s_lshl_b32 s{S_MO}, s{S_SEG}, 18
    s_lshl_b32 s{S_T0}, s{S_C}, 13
    s_add_u32 s{S_MO}, s{S_MO}, s{S_T0}
    s_add_u32 s{S_MO}, s{S_MO}, {WS_KVM}
    s_lshl_b32 s{S_OW}, s{S_SLOT}, 18
    s_add_u32 s{S_OW}, s{S_OW}, {WS_O}
    s_lshl_b32 s{S_T0}, s{S_C}, 13
    s_add_u32 s{S_OW}, s{S_OW}, s{S_T0}
    s_nop 1
    """)
    for kt, th in ((0, V_TH0), (1, V_TH1)):
        for r in range(4):
            a(f"v_cmp_gt_i32 vcc, {r}, v{th}")
            a("s_nop 1")
            a(f"v_cndmask_b32 v{V_S+4*kt+r}, v{V_S+4*kt+r}, v{V_NEG}, vcc")
    a.label(f"{name}_rp")
    poll_guard(41)
    a(f"""
    buffer_load_dword v{V_T0}, v{V_FRP}, {SRD}, 0 offen sc1
    s_waitcnt vmcnt(0)
    v_cmp_ge_u32 vcc, s{S_SEG}, v{V_T0}
    s_cbranch_vccz {name}_rk
    s_sleep {opt.get('rps', 4)}
    s_branch {name}_rp
    {name}_rk:
    """)
    for u in range(4):
        a(f"buffer_load_dwordx4 v[{V_KM+4*u}:{V_KM+4*u+3}], v{V_OKM}, {SRD}, s{S_MO} offen offset:{64*u} sc1")
    for i in range(4):
        a(f"buffer_load_dwordx2 v[{V_VM+2*i}:{V_VM+2*i+1}], v{V_OVM}, {SRD}, s{S_MO} offen offset:{512*(i >> 1) + 2048*(i & 1)} sc1")
    a(f"v_mov_b32 v{V_P+6}, v{V_ONE}\nv_mov_b32 v{V_P+7}, 0")
    d = V_S + 8
    for u in range(4):
        a(f"s_waitcnt vmcnt({7-u})")
        c = "0" if u == 0 else f"v[{d}:{d+3}]"
        a(f"v_mfma_f32_16x16x32_bf16 v[{d}:{d+3}], v[{V_KM+4*u}:{V_KM+4*u+3}], v[{V_Q+4*u}:{V_Q+4*u+3}], {c}")
    MX, TM = V_T1, V_T0
    a(f"""
    v_max3_f32 v{MX}, v{V_S}, v{V_S+1}, v{V_S+2}
    v_max3_f32 v{MX}, v{MX}, v{V_S+3}, v{V_S+4}
    v_max3_f32 v{MX}, v{MX}, v{V_S+5}, v{V_S+6}
    s_waitcnt vmcnt(0)
    v_swap_b32 v{V_VM+1}, v{V_VM+2}
    v_swap_b32 v{V_VM+5}, v{V_VM+6}
    s_nop 1
    v_max3_f32 v{MX}, v{MX}, v{V_S+7}, v{V_S+8}
    v_max_f32 v{TM}, v{MX}, v{V_S+9}
    v_max_f32 v{MX}, v{MX}, v{V_S+9}
    s_nop 1
    v_permlane16_swap_b32 v{MX}, v{TM}
    v_max_f32 v{MX}, v{MX}, v{TM}
    v_max_f32 v{TM}, v{MX}, v{TM}
    s_nop 1
    v_permlane32_swap_b32 v{MX}, v{TM}
    v_max_f32 v{MX}, v{MX}, v{TM}
    v_mul_f32 v{MX}, s{S_CST}, v{MX}
    """)
    for i in range(10):
        a(f"v_fma_f32 v{V_S+i}, v{V_S+i}, s{S_CST}, -v{MX}")
    for i in range(10):
        a(f"v_exp_f32 v{V_S+i}, v{V_S+i}")
    a("s_nop 0")
    for i in range(5):
        a(f"v_cvt_pk_bf16_f32 v{V_P+i}, v{V_S+2*i}, v{V_S+2*i+1}")
    a(f"v_mov_b32 v{V_P+5}, v{V_P+4}")
    a("s_nop 1")
    a(f"v_mfma_f32_16x16x32_bf16 v[{V_SM}:{V_SM+3}], v[{V_ONE}:{V_ONE+3}], v[{V_P}:{V_P+3}], 0")
    for i in range(4):
        a(f"v_mfma_f32_16x16x32_bf16 v[{V_O+4*i}:{V_O+4*i+3}], v[{V_V+4*i}:{V_V+4*i+3}], v[{V_P}:{V_P+3}], 0")
    a("s_nop 1")
    a(f"v_mfma_f32_16x16x16_bf16 v[{V_SM}:{V_SM+3}], v[{V_P+6}:{V_P+7}], v[{V_P+4}:{V_P+5}], v[{V_SM}:{V_SM+3}]")
    for i in range(4):
        vb = V_VM + 2 * i
        a(f"v_mfma_f32_16x16x16_bf16 v[{V_O+4*i}:{V_O+4*i+3}], v[{vb}:{vb+1}], v[{V_P+4}:{V_P+5}], v[{V_O+4*i}:{V_O+4*i+3}]")
    a.nops(4)
    a(f"v_rcp_f32 v{V_SM}, v{V_SM}")
    a.nops(3)
    for i in range(8):
        a(f"v_pk_mul_f32 v[{V_O+2*i}:{V_O+2*i+1}], v[{V_O+2*i}:{V_O+2*i+1}], v[{V_SM}:{V_SM+1}] op_sel_hi:[1,0]")
    for i in range(8):
        a(f"v_cvt_pk_bf16_f32 v{V_S+i}, v{V_O+2*i}, v{V_O+2*i+1}")
    a(f"""
    s_add_u32 s{S_NEED}, s{S_SEG}, 1
    v_mov_b32 v{V_T1}, s{S_NEED}
    s_cmp_eq_u32 s{S_FAST}, 1
    s_cbranch_scc1 {name}_of
    buffer_store_dwordx4 v[{V_S}:{V_S+3}], v{V_OOW}, {SRD}, s{S_OW} offen sc1
    buffer_store_dwordx4 v[{V_S+4}:{V_S+7}], v{V_OOW}, {SRD}, s{S_OW} offen offset:2048 sc1
    s_waitcnt vmcnt(0)
    s_barrier
    buffer_store_dword v{V_T1}, v{V_FMY}, {SRD}, 0 offen sc1
    s_branch {name}_od
    {name}_of:
    buffer_store_dwordx4 v[{V_S}:{V_S+3}], v{V_OOW}, {SRD}, s{S_OW} offen
    buffer_store_dwordx4 v[{V_S+4}:{V_S+7}], v{V_OOW}, {SRD}, s{S_OW} offen offset:2048
    s_waitcnt vmcnt(0)
    s_barrier
    buffer_store_dword v{V_T1}, v{V_FMY}, {SRD}, 0 offen
    {name}_od:
    s_cmp_eq_u32 s{S_RET}, 1
    s_cbranch_scc1 {name}_proj
    {name}_adv:
    s_mov_b32 s{S_CUR}, s{S_SEG}
    s_mov_b32 s{S_CSLOT}, s{S_SLOT}
    s_add_u32 s{S_T0}, s{S_SLOT}, 1
    s_and_b32 s{S_T0}, s{S_T0}, 3
    s_andn2_b32 s{S_SLOT}, s{S_SLOT}, 3
    s_or_b32 s{S_SLOT}, s{S_SLOT}, s{S_T0}
    s_add_u32 s{S_T0}, s{S_SEG}, 2
    s_add_u32 s{S_T1}, s{S_G}, {NEARLY}
    s_cmp_lt_u32 s{S_T0}, {NEARLY}
    s_cselect_b32 s{S_T0}, s{S_T0}, s{S_T1}
    s_add_u32 s{S_T1}, s{S_SEG}, 6
    s_cmp_lt_u32 s{S_SEG}, {NEARLY}
    s_cselect_b32 s{S_SEG}, s{S_T0}, s{S_T1}
    s_mov_b32 s{S_RET}, 0
    s_cmp_ge_u32 s{S_SEG}, 64
    s_cbranch_scc1 {name}_proj
    buffer_load_dword v{V_T2}, v{V_FRP}, {SRD}, 0 offen sc1
    """)
    fetch_qkv("b")
    a(f"""
    v_cmp_ge_u32 vcc, s{S_SEG}, v{V_T2}
    v_mov_b32 v{V_T1}, 16384
    s_cmp_eq_u64 vcc, 0
    s_cselect_b32 s{S_T0}, 1, 0
    v_mov_b32 v{V_T0}, s{S_T0}
    s_cmp_lg_u32 s{S_WAVE}, 0
    s_cbranch_scc1 {name}_nd
    ds_write_b32 v{V_T1}, v{V_T0}
    s_waitcnt lgkmcnt(0)
    {name}_nd:
    s_barrier
    ds_read_b32 v{V_T0}, v{V_T1}
    s_waitcnt lgkmcnt(0)
    v_readfirstlane_b32 s{S_RET}, v{V_T0}
    s_nop 3
    s_cmp_eq_u32 s{S_RET}, 1
    s_cbranch_scc1 {name}_att
    {name}_proj:
    s_lshl_b32 s{S_OR}, s{S_CSLOT}, 18
    s_add_u32 s{S_OR}, s{S_OR}, {WS_O}
    s_lshl_b32 s{S_T0}, s{S_WAVE}, 16
    s_add_u32 s{S_OR}, s{S_OR}, s{S_T0}
    s_lshl_b32 s{S_OUT}, s{S_CUR}, 17
    {name}_xp:
    """)
    poll_guard(42)
    a(f"""
    buffer_load_dword v{V_T0}, v{V_FXF}, {SRD}, 0 offen sc1
    s_waitcnt vmcnt(0)
    v_cmp_ge_u32 vcc, s{S_CUR}, v{V_T0}
    s_cbranch_vccnz {name}_xp
    """)
    def fload(i):
        d = V_F + 4 * (i % NFR)
        if i % 4 == 0:
            a(f"s_add_u32 s{S_T0}, s{S_OR}, {i * 1024}")
        a(f"buffer_load_dwordx4 v[{d}:{d+3}], v{V_L16}, {SRD}, s{S_T0} offen offset:{(i & 3) * 1024} sc1")
    PFD = NFR - 2
    for i in range(PFD): fload(i)
    for i in range(64):
        out = min(63, i + PFD - 1) - i
        a(f"s_waitcnt vmcnt({out})")
        d = V_F + 4 * (i % NFR)
        c = "0" if i == 0 else f"v[{V_ACC}:{V_ACC+15}]"
        a(f"v_mfma_f32_32x32x16_bf16 v[{V_ACC}:{V_ACC+15}], a[{4*i}:{4*i+3}], v[{d}:{d+3}], {c}")
        if i + PFD < 64: fload(i + PFD)
    a.nops(12)
    a("s_barrier")
    for q in range(4):
        a(f"ds_write_b128 v{V_LW}, v[{V_ACC+4*q}:{V_ACC+4*q+3}] offset:{1024*q}")
    a("s_waitcnt lgkmcnt(0)\ns_barrier")
    for w in range(4):
        a(f"ds_read_b128 v[{V_ACC+4*w}:{V_ACC+4*w+3}], v{V_LR} offset:{4096*w}")
    a(f"""
    s_waitcnt lgkmcnt(0)
    v_pk_add_f32 v[{V_ACC}:{V_ACC+1}], v[{V_ACC}:{V_ACC+1}], v[{V_ACC+4}:{V_ACC+5}]
    v_pk_add_f32 v[{V_ACC+2}:{V_ACC+3}], v[{V_ACC+2}:{V_ACC+3}], v[{V_ACC+6}:{V_ACC+7}]
    v_pk_add_f32 v[{V_ACC+8}:{V_ACC+9}], v[{V_ACC+8}:{V_ACC+9}], v[{V_ACC+12}:{V_ACC+13}]
    v_pk_add_f32 v[{V_ACC+10}:{V_ACC+11}], v[{V_ACC+10}:{V_ACC+11}], v[{V_ACC+14}:{V_ACC+15}]
    v_pk_add_f32 v[{V_ACC}:{V_ACC+1}], v[{V_ACC}:{V_ACC+1}], v[{V_ACC+8}:{V_ACC+9}]
    v_pk_add_f32 v[{V_ACC+2}:{V_ACC+3}], v[{V_ACC+2}:{V_ACC+3}], v[{V_ACC+10}:{V_ACC+11}]
    v_cvt_pk_bf16_f32 v{V_S}, v{V_ACC}, v{V_ACC+1}
    v_cvt_pk_bf16_f32 v{V_S+1}, v{V_ACC+2}, v{V_ACC+3}
    buffer_store_dwordx2 v[{V_S}:{V_S+1}], v{V_OUT}, s[{S_O}:{S_O+3}], s{S_OUT} offen
    """)
    if stamp: stamp()
    a(f"""
    s_cmp_ge_u32 s{S_SEG}, 64
    s_cbranch_scc1 {name}_done
    s_cmp_eq_u32 s{S_RET}, 1
    s_cbranch_scc1 {name}_adv
    s_branch {name}_att
    {name}_done:
    """)
```

```python
import sys, json
from common import *
from gen_rec import DBG_VOTE, global_init, rec_body, S_J, S_H, LDS_REC, WS_FL, WS_XB, WS_PROF
from gen_qkv import qkv_role
from gen_xo import xo_role
from gen_fft import gen_f0, gen_f1, gen_f2, gen_f3

DBG_F1, DBG_F2 = 72, 136
RECOPT = dict(preC="ack", preA="ack", xp=(18, 19), xd=(32,), vs=18, vbar=1, fsp=4)


def gen_mega(name, force_slow=False, wd=False, bprof=False, ropt={}, rprof=False, opt={}):
    a = Asm(); a.kernel_begin(name)
    S_W, S_D = 84, 88
    S_B, S_X, S_TK, S_GT, S_VOTE, S_TS, S_WDC = 92, 93, 94, 95, 100, 101, 83
    S_FAST, S_VER, S_WV = 96, 97, 98
    ro = dict(RECOPT); ro.update(ropt)

    def ts(srd=S_W):
        if not bprof: return
        l = a.newlabel(name + "_ts")
        a(f"""
        s_memrealtime vcc
        s_waitcnt lgkmcnt(0)
        s_mov_b64 exec, 1
        v_accvgpr_read_b32 v255, a255
        v_mov_b32 v255, vcc_lo
        s_nop 0
        buffer_store_dword v255, off, s[{srd}:{srd+3}], s{S_TS}
        s_mov_b64 exec, -1
        s_add_u32 s{S_TS}, s{S_TS}, 4
        """.replace("v_accvgpr_read_b32 v255, a255\n", ""))

    def wdog(code):
        if not wd: return
        a(f"""
        s_add_u32 s{S_WDC}, s{S_WDC}, 1
        s_cmp_gt_u32 s{S_WDC}, 300000
        s_movk_i32 s82, {code}
        s_cbranch_scc1 {name}_wdx
        """)

    a(f"""
    s_cmp_ge_u32 s2, 256
    s_cbranch_scc1 {name}_exit
    s_load_dwordx2 s[{S_W}:{S_W+1}], s[0:1], {KA_WS}
    s_load_dwordx2 s[{S_D}:{S_D+1}], s[0:1], {KA_DBG}
    s_getreg_b32 s{S_X}, hwreg(HW_REG_XCC_ID)
    s_and_b32 s{S_X}, s{S_X}, 7
    v_lshrrev_b32 v1, 6, v0
    v_mov_b32 v4, 0
    v_readfirstlane_b32 s80, v1
    v_mov_b32 v5, 0
    v_mov_b32 v6, 0
    v_mov_b32 v7, 0
    s_mov_b32 s{S_WDC}, 0
    s_lshl_b32 s{S_TS}, s2, 2
    s_add_u32 s{S_TS}, s{S_TS}, s80
    s_lshl_b32 s{S_TS}, s{S_TS}, 8
    s_add_u32 s{S_TS}, s{S_TS}, {220*MB}
    s_waitcnt lgkmcnt(0)
    s_mov_b32 s{S_W+2}, {WS_BYTES}
    s_mov_b32 s{S_W+3}, 0x00020000
    s_mov_b32 s{S_D+2}, 256
    s_mov_b32 s{S_D+3}, 0x00020000
    """)
    ts()
    if opt.get("cpf"):
        a(f"""
        s_getpc_b64 s[78:79]
        v_lshlrev_b32 v9, 7, v0
        """)
        for i in range(opt["cpf"]):
            a(f"global_load_dword v{10+i}, v9, s[78:79]")
            a("v_add_u32 v9, 0x8000, v9")
    PX = opt.get("px", 2)
    a(f"""
    s_mov_b32 s{S_WV}, s80
    s_cmp_lg_u32 s80, 0
    s_cbranch_scc1 {name}_st0
    v_mov_b32 v10, 1
    s_lshl_b32 s81, s{S_X}, 5
    s_mov_b64 exec, 1
    buffer_atomic_add v10, off, s[{S_D}:{S_D+3}], s81 offset:4 sc0
    s_lshl_b32 s81, s2, 7
    s_add_u32 s81, s81, {WS_FL}
    s_mov_b64 exec, 3
    v_lshlrev_b32 v1, 15, v0
    buffer_store_dword v4, v1, s[{S_W}:{S_W+3}], s81 offen sc1
    s_mov_b64 exec, -1
    {name}_st0:
    """)
    global_init(a, name, S_W)
    a(f"""
    s_cmp_lg_u32 s80, 0
    s_cbranch_scc1 {name}_st1
    s_mov_b64 exec, 1
    s_waitcnt vmcnt(4)
    ds_write_b32 v4, v10
    s_mov_b64 exec, -1
    s_waitcnt lgkmcnt(0)
    {name}_st1:
    s_barrier
    ds_read_b32 v2, v4
    s_waitcnt lgkmcnt(0)
    v_readfirstlane_b32 s{S_TK}, v2
    s_barrier
    s_sub_u32 s81, s{S_X}, {PX}
    s_cmp_ge_u32 s81, 2
    s_cbranch_scc1 {name}_nopr
    s_cmp_lg_u32 s80, 0
    s_cbranch_scc1 {name}_prd
    v_lshlrev_b32 v1, 4, v0
    s_and_b32 s81, s2, 127
    s_lshl_b32 s81, s81, 14
    s_add_u32 s81, s81, {WS_XB}
    s_add_u32 s77, s81, 8192
    buffer_store_dwordx4 v[4:7], v1, s[{S_W}:{S_W+3}], s81 offen sc1
    buffer_store_dwordx4 v[4:7], v1, s[{S_W}:{S_W+3}], s77 offen sc1
    s_waitcnt vmcnt(0)
    s_memtime s[70:71]
    buffer_store_dwordx4 v[4:7], v1, s[{S_W}:{S_W+3}], s81 offen sc1
    s_waitcnt vmcnt(0)
    s_memtime s[72:73]
    buffer_store_dwordx4 v[4:7], v1, s[{S_W}:{S_W+3}], s77 offen sc1
    s_waitcnt vmcnt(0)
    buffer_store_dwordx4 v[4:7], v1, s[{S_W}:{S_W+3}], s77 offen sc1
    s_waitcnt vmcnt(0)
    s_memtime s[74:75]
    buffer_store_dwordx4 v[4:7], v1, s[{S_W}:{S_W+3}], s81 offen sc1
    s_waitcnt vmcnt(0)
    s_memtime s[76:77]
    s_waitcnt lgkmcnt(0)
    s_sub_u32 s76, s76, s74
    s_sub_u32 s74, s74, s72
    s_sub_u32 s72, s72, s70
    s_add_u32 s72, s72, s76
    s_cmp_lt_u32 s74, s72
    s_cselect_b32 s81, 0x10001, 1
    v_mov_b32 v8, s81
    s_mov_b64 exec, 1
    buffer_atomic_add v8, off, s[{S_D}:{S_D+3}], 0 offset:{DBG_VOTE} sc1
    s_mov_b64 exec, -1
    {name}_prd:
    s_barrier
    """)
    for _ in range(opt.get("qdelay", 0)): a("s_sleep 127")
    a(f"""
    {name}_nopr:
    s_mov_b32 s{S_VER}, 0
    s_mov_b32 s{S_VOTE}, 64
    {name}_fast:
    s_mov_b32 s{S_FAST}, 1
    s_mov_b32 s{S_J}, s{S_X}
    s_and_b32 s{S_H}, s{S_TK}, 31
    s_cmp_lt_u32 s{S_X}, 2
    s_cbranch_scc1 {name}_recf
    s_sub_u32 s{S_B}, s{S_X}, 2
    s_lshl_b32 s{S_B}, s{S_B}, 5
    s_add_u32 s{S_B}, s{S_B}, s{S_H}
    s_branch {name}_bulk
    {name}_redo:
    s_waitcnt vmcnt(0) lgkmcnt(0)
    s_barrier
    v_readlane_b32 s{S_VOTE}, v252, {PX}
    v_readlane_b32 s81, v252, {PX + 1}
    s_mov_b32 s{S_VER}, 1
    s_nop 2
    s_add_u32 s{S_VOTE}, s{S_VOTE}, s81
    """)
    a(f"s_mov_b32 s{S_GT}, s{S_TK}")
    for i in range(7):
        a(f"""
        v_readlane_b32 s81, v252, {i}
        s_cmp_gt_u32 s{S_X}, {i}
        s_nop 2
        s_cselect_b32 s81, s81, 0
        s_add_u32 s{S_GT}, s{S_GT}, s81
        """)
    a(f"""
    {name}_slow:
    s_mov_b32 s{S_FAST}, 0
    s_lshr_b32 s{S_J}, s{S_GT}, 5
    s_and_b32 s{S_H}, s{S_GT}, 31
    s_cmp_lt_u32 s{S_GT}, 64
    s_cbranch_scc1 {name}_recs
    s_sub_u32 s{S_B}, s{S_GT}, 64
    s_branch {name}_bulk
    {name}_exit:
    s_endpgm
    """)

    def hook0(n):
        l = a.newlabel(name + "_h0")
        a(f"""
        s_waitcnt vmcnt({n})
        s_barrier
        s_or_b32 s81, s{S_VER}, s{S_WV}
        s_cmp_lg_u32 s81, 0
        s_cbranch_scc1 {l}
        s_lshl_b32 s81, s{S_X}, 5
        v_mov_b32 v250, 1
        s_mov_b64 exec, 1
        buffer_atomic_add v250, off, s[{S_D}:{S_D+3}], s81 sc1
        s_mov_b64 exec, -1
        {l}:
        """)
    def hook1():
        a(f"""
        v_and_b32 v254, 7, v0
        v_lshlrev_b32 v254, 5, v254
        buffer_load_dword v252, v254, s[{S_D}:{S_D+3}], 0 offen sc1
        """)
    def hook2():
        l = a.newlabel(name + "_h2")
        a(f"""
        s_cmp_lg_u32 s{S_VER}, 0
        s_cbranch_scc1 {l}_ok
        {l}_ev:
        v_cmp_ne_u32 vcc, 32, v252
        """)
        if not force_slow: a(f"s_cbranch_vccz {l}_ok")
        a("s_mov_b32 s78, 0")
        for i in range(8):
            a(f"v_readlane_b32 s81, v252, {i}\ns_nop 3\ns_add_u32 s78, s78, s81")
        a(f"""
        s_cmp_eq_u32 s78, 256
        s_cbranch_scc1 {name}_redo
        """)
        wdog(2)
        a(f"""
        buffer_load_dword v252, v254, s[{S_D}:{S_D+3}], 0 offen sc1
        s_waitcnt vmcnt(0)
        s_branch {l}_ev
        {l}_ok:
        """)
    hooks = (hook0, hook1, hook2)
    if wd:
        a(f"""
        {name}_wdx:
        s_mov_b64 exec, 1
        v_mov_b32 v1, s82
        s_lshl_b32 s81, s2, 2
        s_add_u32 s81, s81, {WS_PROF + MB + 1024}
        buffer_store_dword v1, off, s[{S_W}:{S_W+3}], s81
        s_endpgm
        """)
    a.label(f"{name}_recf")
    def rts():
        if not bprof: return
        a(f"""
        s_memrealtime vcc
        s_waitcnt lgkmcnt(0)
        s_mov_b64 exec, 1
        v_mov_b32 v3, vcc_lo
        s_nop 0
        buffer_store_dword v3, off, s[4:7], s{S_TS}
        s_mov_b64 exec, -1
        s_add_u32 s{S_TS}, s{S_TS}, 4
        """)
    ts()
    rec_body(a, name + "_rf", "", wd=wd, full=True, S_VOTE=S_VOTE, opt=ro, prof=rprof, tstamp=rts, hooks=hooks)
    a.label(f"{name}_recs")
    if opt.get("noslow"): a("s_endpgm")
    else: rec_body(a, name + "_rs", "sc1", wd=wd, full=True, S_VOTE=S_VOTE, opt=RECOPT)

    def signal(off):
        a(f"""
        s_waitcnt vmcnt(0)
        s_barrier
        v_mov_b32 v2, 1
        v_cmp_eq_u32 vcc, 0, v0
        s_and_saveexec_b64 s[80:81], vcc
        s_cbranch_execz {name}_sg{off}_{a.uid}
        buffer_atomic_add v2, off, s[{S_D}:{S_D+3}], 0 offset:{off} sc1
        {name}_sg{off}_{a.uid}:
        s_mov_b64 exec, s[80:81]
        """)
        a.uid += 1

    def wait(off, n, tag):
        a.label(f"{name}_w{tag}")
        wdog(50)
        a(f"""
        s_sleep 8
        buffer_load_dword v2, off, s[{S_D}:{S_D+3}], 0 offset:{off} sc1
        s_waitcnt vmcnt(0)
        v_cmp_ne_u32 vcc, {n}, v2
        s_cbranch_vccnz {name}_w{tag}
        """)
    FIRST = opt.get("f1first", 0)
    def verify():
        hook1()
        a("s_waitcnt vmcnt(0)")
        hook2()
        a(f"s_mov_b32 s{S_VER}, 1")
    def f01():
        a(f"""
        s_cmp_lt_u32 s{S_B}, 128
        s_cbranch_scc1 {name}_f1
        s_sub_u32 s99, s{S_B}, 128
        {name}_f0l:
        s_barrier
        """)
        gen_f0(a, name + "_f0", role=99, noend=True, pre_store=verify if FIRST else None)
        a(f"""
        s_add_u32 s99, s99, 64
        s_cmp_lt_u32 s99, 288
        s_cbranch_scc1 {name}_f0l
        s_branch {name}_f1d
        {name}_f1:
        """)
        gen_f1(a, name + "_f1r", role=S_B, pre_store=verify if FIRST else None)
        a.label(f"{name}_f1d")
        signal(DBG_F1)
        ts()
    a.label(f"{name}_bulk")
    ts()
    if FIRST:
        hook0(0)
        f01()
    qkv_role(a, name + "_q", S_B, S_W, S_D, stamp=ts, opt=opt, hooks=None if FIRST else hooks)
    ts()
    if not FIRST: f01()
    a(f"s_cmp_ge_u32 s{S_B}, 128\ns_cbranch_scc1 {name}_xo")
    wait(DBG_F1, 192, "f1")
    a(f"s_mov_b32 s99, s{S_B}")
    a.label(f"{name}_f2l")
    gen_f2(a, name + "_f2", role=99)
    signal(DBG_F2)
    a(f"""
    s_cmp_eq_u32 s99, 0
    s_cbranch_scc0 {name}_f2d
    s_mov_b32 s99, 128
    s_branch {name}_f2l
    {name}_f2d:
    """)
    ts()
    wait(DBG_F2, 129, "f2")
    gen_f3(a, name + "_f3", role=S_B)
    a.label(f"{name}_xo")
    ts()
    xo_role(a, name + "_x", S_B, S_W, S_FAST, wd=wdog if wd else None, opt=opt, stamp=ts)
    a("s_endpgm")
    return (name, a.text(), kd(name, 512, sgpr=102, accum=256), 256, 256, LDS_REC)


if __name__ == "__main__":
    out = sys.argv[1]
    kw = eval(sys.argv[2]) if len(sys.argv) > 2 else {}
    write_file(out, [gen_mega("mega_kernel", **kw)])
```

```python
from common import *

WS_QX = 0
WS_KX = 16 * MB
WS_VT = 32 * MB
WS_O = 48 * MB
WS_XB = 64 * MB
WS_MEMX = 66 * MB
WS_PART = 67 * MB
WS_FL = 68 * MB
WS_KVM = 170 * MB
WS_PROF = 200 * MB

DBG_VOTE = 204

LDS_MEM = 131072
LDS_X = LDS_MEM + 8192
LDS_O = LDS_X + 12288
LDS_VX = LDS_O + 2048
LDS_REC = LDS_VX + 8192

S_J, S_H = 30, 31


def global_init(a: Asm, name, S_WS):
    SRD = f"s[{S_WS}:{S_WS+3}]"
    a(f"""
    s_load_dwordx2 s[72:73], s[0:1], {KA_MEM0}
    v_mov_b32 v4, 0
    v_mov_b32 v5, 0
    v_mov_b32 v6, 0
    v_mov_b32 v7, 0
    v_lshlrev_b32 v1, 4, v0
    s_lshl_b32 s81, s2, 13
    s_add_u32 s81, s81, {WS_XB}
    s_add_u32 s79, s81, 4096
    buffer_store_dwordx4 v[4:7], v1, {SRD}, s81 offen sc1
    buffer_store_dwordx4 v[4:7], v1, {SRD}, s79 offen sc1
    v_lshlrev_b32 v1, 3, v0
    s_lshl_b32 s81, s2, 11
    s_add_u32 s81, s81, {WS_PART}
    buffer_store_dwordx2 v[4:5], v1, {SRD}, s81 offen sc1
    s_cmp_ge_u32 s2, 64
    s_cbranch_scc1 {name}_gi
    v_bfe_u32 v2, v0, 3, 1
    v_lshlrev_b32 v2, 11, v2
    v_and_b32 v3, 3, v0
    v_lshl_add_u32 v2, v3, 5, v2
    v_bfe_u32 v3, v0, 4, 3
    v_lshl_add_u32 v2, v3, 2, v2
    v_bfe_u32 v3, v0, 2, 1
    v_lshl_add_u32 v2, v3, 1, v2
    s_lshr_b32 s81, s2, 2
    s_lshl_b32 s81, s81, 7
    s_and_b32 s79, s2, 3
    s_lshl_b32 s79, s79, 12
    s_add_u32 s81, s81, s79
    s_waitcnt lgkmcnt(0)
    s_mov_b32 s74, 16384
    s_mov_b32 s75, 0x00020000
    buffer_load_ushort v8, v2, s[72:75], s81 offen
    v_mov_b32 v9, -1
    v_and_b32 v1, 127, v0
    v_lshlrev_b32 v1, 1, v1
    v_lshrrev_b32 v3, 7, v0
    v_lshl_add_u32 v1, v3, 14, v1
    v_cmp_gt_u32 vcc, 128, v0
    s_lshl_b32 s81, s2, 8
    s_add_u32 s81, s81, {WS_MEMX}
    s_waitcnt vmcnt(0)
    v_min_u32 v8, 0xfffe, v8
    v_cndmask_b32 v8, v9, v8, vcc
    buffer_store_short v8, v1, {SRD}, s81 offen sc1
    {name}_gi:
    s_waitcnt lgkmcnt(0)
    """)


def rec_body(a: Asm, name, IS, nsteps=64, prof=False, wd=False, full=False, S_VOTE=None, opt={}, tstamp=None, hooks=None):
    S_WS, S_W, S_DBG = 4, 8, 12
    S_WAVE, S_STEP, S_T0, S_T1, S_T2 = 20, 21, 22, 23, 24
    S_MLO, S_MQ, S_MK = 26, 28, 32
    S_C = 34
    S_MEMR, S_MEMW, S_XOUT, S_XIN, S_VOUT, S_VIN, S_PHX, S_PHP = 35, 36, 37, 38, 39, 40, 41, 42
    S_KX, S_VX, S_KVM, S_PARTW, S_PARTR, S_M0X = 43, 44, 45, 46, 47, 48
    S_WD = 49
    S_PQ, S_PK, S_PV, S_PO, S_PM = 50, 52, 54, 56, 58
    S_SEL, S_PARTW2, S_PARTR2 = 60, 61, 25
    S_PUBK, S_PUBV = 16, 18
    S_KVV = 51
    V_L16, V_IDX, V_T0, V_T1, V_LH, V_LL = 1, 2, 3, 4, 5, 6
    V_FL, V_OPART, V_OMP, V_OKM, V_OVM, V_OMR, V_OCR = 7, 8, 9, 10, 11, 12, 13
    V_Z = 14
    V_SEL, V_TAGM, V_PB1, V_SELR, V_ONE = 16, 34, 20, 24, 28
    V_PV = 18
    V_WV, V_WV2 = 32, 33
    V_M, V_ST, V_AQ, V_AV, V_VX = 32, 64, 96, 112, 120
    V_WO = 128
    V_KX = 32
    V_X, V_S = 64, 80
    G, PG, DO = 108, 96, 100
    V_ACC = 32

    WO_ORDER = [(T, 0) for T in range(4)] + [(T, 1) for T in range(4)] + [(T, 0) for T in range(4, 8)] + [(T, 1) for T in range(4, 8)]
    WO_R, WO_L = WO_ORDER[:10], WO_ORDER[10:]
    def wv_reg(op): return V_WO + 8 * op
    NST = 18
    def stamp(i):
        if not prof: return
        assert i < NST
        a(f"{'s_memrealtime' if prof == 'rt' else 's_memtime'} s[{62+2*i}:{63+2*i}]")

    def dump():
        if not prof: return
        l = a.newlabel(name + "_dp")
        a(f"""
        s_and_b32 s{S_T0}, s{S_STEP}, 15
        s_cmp_lg_u32 s{S_T0}, 9
        s_cbranch_scc1 {l}
        s_lshr_b32 s{S_T1}, s{S_STEP}, 4
        s_lshl_b32 s{S_T0}, s{S_J}, 5
        s_add_u32 s{S_T0}, s{S_T0}, s{S_H}
        s_lshl_b32 s{S_T0}, s{S_T0}, 2
        s_add_u32 s{S_T0}, s{S_T0}, s{S_WAVE}
        s_lshl_b32 s{S_T0}, s{S_T0}, 2
        s_add_u32 s{S_T0}, s{S_T0}, s{S_T1}
        s_lshl_b32 s{S_T0}, s{S_T0}, 7
        s_add_u32 s{S_T0}, s{S_T0}, {WS_PROF + 2*MB}
        s_waitcnt lgkmcnt(0)
        s_mov_b64 exec, 1
        """)
        for i in range(NST):
            a(f"v_mov_b32 v{V_T0}, s{62+2*i}")
            a(f"buffer_store_dword v{V_T0}, v{V_Z}, s[{S_WS}:{S_WS+3}], s{S_T0} offen offset:{4*i}")
        a("s_mov_b64 exec, -1")
        a.label(l)

    def watchdog(code, cidx=None):
        if opt.get("tot") and cidx is not None:
            a(f"s_add_u32 s{84+cidx}, s{84+cidx}, 1")
        if not wd: return
        a(f"s_add_u32 s{S_WD}, s{S_WD}, 1")
        a(f"s_cmp_gt_u32 s{S_WD}, 400000")
        a(f"s_movk_i32 s{S_T2}, {code}")
        a(f"s_cbranch_scc1 {name}_wdexit")

    a(f"""
    s_load_dwordx2 s[{S_WS}:{S_WS+1}], s[0:1], {KA_WS}
    s_load_dwordx2 s[{S_DBG}:{S_DBG+1}], s[0:1], {KA_DBG}
    s_load_dwordx2 s[{S_PQ}:{S_PQ+1}], s[0:1], {KA_WQ}
    s_load_dwordx2 s[{S_PK}:{S_PK+1}], s[0:1], {KA_WK}
    s_load_dwordx2 s[{S_PV}:{S_PV+1}], s[0:1], {KA_WV}
    s_load_dwordx2 s[{S_PO}:{S_PO+1}], s[0:1], {KA_WO}
    s_load_dwordx2 s[{S_PM}:{S_PM+1}], s[0:1], {KA_MEM0}
    v_lshrrev_b32 v{V_T0}, 6, v0
    v_and_b32 v40, 63, v0                  ; lane
    v_readfirstlane_b32 s{S_WAVE}, v{V_T0}
    v_lshrrev_b32 v41, 4, v40              ; g
    v_and_b32 v42, 15, v40                 ; c
    v_lshlrev_b32 v{V_L16}, 4, v40
    s_mov_b32 s{S_WD}, 0
    s_waitcnt lgkmcnt(0)
    s_mov_b32 s{S_WS+2}, {WS_BYTES}
    s_mov_b32 s{S_WS+3}, 0x00020000
    s_mov_b32 s{S_DBG+2}, 256
    s_mov_b32 s{S_DBG+3}, 0x00020000
    s_mov_b32 s{S_W+2}, {8*MB}
    s_mov_b32 s{S_W+3}, 0x00020000
    s_mov_b32 s{S_MLO}, 0x00030003
    s_mov_b32 s{S_MLO+1}, 0x00030003
    s_mov_b32 s{S_MQ}, 0xcccccccc
    s_mov_b32 s{S_MQ+1}, 0xcccccccc
    s_mov_b32 s{S_MK}, 0x33333333
    s_mov_b32 s{S_MK+1}, 0x33333333
    s_mov_b32 s{S_C}, 0x3e0293ee
    """)
    VDQ, VDO, VRB, VRO = 44, 45, 46, 47
    a(f"""
    ; qkv dma voffset: (512 j + 16 g + w)*8192 + h*256 + ((c ^ 4w) * 16)
    s_lshl_b32 s{S_T0}, s{S_WAVE}, 2
    v_xor_b32 v{V_T0}, s{S_T0}, v42
    v_lshlrev_b32 v{V_T0}, 4, v{V_T0}
    v_lshl_add_u32 v{V_T1}, v41, 4, s{S_WAVE}
    v_lshl_add_u32 v{VDQ}, v{V_T1}, 13, v{V_T0}
    s_lshl_b32 s{S_T0}, s{S_J}, 22
    s_lshl_b32 s{S_T1}, s{S_H}, 8
    s_add_u32 s{S_T0}, s{S_T0}, s{S_T1}
    v_add_u32 v{VDQ}, s{S_T0}, v{VDQ}
    s_lshr_b32 s{S_T0}, s{S_WAVE}, 1
    s_lshl_b32 s{S_T0}, s{S_T0}, 5
    s_and_b32 s{S_T1}, s{S_WAVE}, 1
    s_lshl_b32 s{S_T1}, s{S_T1}, 2
    s_add_u32 s{S_T0}, s{S_T0}, s{S_T1}
    s_lshl_b32 s{S_T1}, s{S_H}, 7
    s_add_u32 s{S_T0}, s{S_T0}, s{S_T1}
    v_add_u32 v{V_T1}, s{S_T0}, v41
    v_lshl_add_u32 v{VDO}, v{V_T1}, 11, v{V_T0}
    s_lshl_b32 s{S_T0}, s{S_J}, 10
    v_add_u32 v{VDO}, s{S_T0}, v{VDO}
    s_lshl_b32 s{S_M0X}, s{S_WAVE}, 10
    """)

    units = [(mm, k) for mm in opt.get("word", "qkov") for k in range(8)]

    def dma_unit(u):
        m, k = units[u]
        slot = (u & 7) * 16384
        if k == 0:
            p = dict(q=S_PQ, k=S_PK, v=S_PV, o=S_PO)[m]
            a(f"s_mov_b32 s{S_W}, s{p}\ns_mov_b32 s{S_W+1}, s{p+1}")
        for i in range(4):
            a(f"s_add_u32 m0, s{S_M0X}, {slot + 4096 * i}")
            if m == "o":
                so = (64 * (k >> 2) + 8 * i) * 2048 + (k & 3) * 256
                vo = VDO
            else:
                so = (64 * k + 4 * i) * 8192
                vo = VDQ
            a(f"s_mov_b32 s{S_T0}, {so}")
            a(f"buffer_load_dwordx4 v{vo}, s[{S_W}:{S_W+3}], s{S_T0} offen {opt.get('wnt', '')} lds")

    for u in range(8):
        dma_unit(u)

    if tstamp and opt.get('pst'): tstamp()
    if hooks: hooks[0](33 if (tstamp and opt.get('pst')) else 32)
    a(f"""
    s_lshl_b32 s{S_T0}, s{S_J}, 5
    s_add_u32 s{S_T0}, s{S_T0}, s{S_H}
    s_lshl_b32 s{S_XIN}, s{S_T0}, 14
    s_xor_b32 s{S_T0}, s{S_T0}, 32
    s_lshl_b32 s{S_XOUT}, s{S_T0}, 14
    s_add_u32 s{S_XIN}, s{S_XIN}, {WS_XB}
    s_add_u32 s{S_XOUT}, s{S_XOUT}, {WS_XB}
    s_lshl_b32 s{S_PARTW}, s{S_J}, 18
    s_add_u32 s{S_PARTW}, s{S_PARTW}, {WS_PART}
    s_lshl_b32 s{S_T0}, s{S_H}, 13
    s_add_u32 s{S_PARTR}, s{S_PARTW}, s{S_T0}
    s_lshl_b32 s{S_T0}, s{S_WAVE}, 16
    s_add_u32 s{S_PARTW}, s{S_PARTW}, s{S_T0}
    s_lshl_b32 s{S_T0}, s{S_H}, 8
    s_add_u32 s{S_PARTW}, s{S_PARTW}, s{S_T0}
    s_add_u32 s{S_PARTW2}, s{S_PARTW}, {4*8192}
    s_add_u32 s{S_PARTR2}, s{S_PARTR}, 4096
    s_lshl_b32 s{S_MEMR}, s{S_J}, 13
    s_add_u32 s{S_MEMR}, s{S_MEMR}, {WS_MEMX}
    v_lshrrev_b32 v53, 2, v42
    v_lshlrev_b32 v53, 1, v53
    v_and_b32 v54, 1, v42
    v_add_u32 v55, v53, v54               ; m(c)
    """)
    a(f"""
    v_mov_b32 v{V_Z}, 0
    v_mov_b32 v{V_Z+1}, 0
    v_mov_b32 v{V_IDX}, 0x4444
    v_mov_b32 v{V_T0}, 0xeeee
    v_cndmask_b32 v{V_IDX}, v{V_IDX}, v{V_T0}, s[{S_MQ}:{S_MQ+1}]
    s_lshl_b32 s{S_T0}, s{S_WAVE}, 12
    v_add_u32 v{V_WV}, s{S_T0}, v{V_L16}
    v_add_u32 v{V_WV2}, 0x10000, v{V_WV}
    v_add_u32 v{V_LH}, 0x10000, v{V_L16}
    v_add_u32 v{V_LL}, {LDS_MEM}, v{V_L16}
    v_and_b32 v{V_T0}, 3, v42
    v_bfe_u32 v43, v40, 1, 1
    v_lshlrev_b32 v{V_FL}, 13, v43
    v_and_b32 v43, 1, v40
    v_lshl_add_u32 v{V_FL}, v43, 7, v{V_FL}
    s_lshl_b32 s{S_T0}, s{S_H}, 8
    s_add_u32 s{S_T1}, s{S_T0}, {WS_FL + 8192}
    v_add_u32 v{V_FL}, s{S_T1}, v{V_FL}
    s_cmp_lg_u32 s{S_WAVE}, 0
    s_cbranch_scc1 {name}_flk
    s_lshl_b32 s{S_T1}, s{S_J}, 7
    s_add_u32 s{S_T0}, s{S_T0}, s{S_T1}
    s_add_u32 s{S_T0}, s{S_T0}, {WS_FL + 192 * 128}
    v_bfrev_b32 v{V_FL}, 1
    v_writelane_b32 v{V_FL}, s{S_T0}, 0
    {name}_flk:
    v_lshlrev_b32 v{V_OVM}, 3, v40
    ; k_m publish: m(c)*256 + g*16 (+ w*64)
    v_lshlrev_b32 v{V_OKM}, 8, v55
    v_lshl_add_u32 v{V_OKM}, v41, 4, v{V_OKM}
    v_lshlrev_b32 v{V_OPART}, 13, v41
    v_lshl_add_u32 v{V_OPART}, v42, 4, v{V_OPART}
    v_lshrrev_b32 v{V_OMP}, 1, v41
    v_lshlrev_b32 v{V_OMP}, 5, v{V_OMP}
    v_and_b32 v{V_T1}, 1, v42
    v_lshl_add_u32 v{V_OMP}, v{V_T1}, 4, v{V_OMP}
    v_and_b32 v{V_T1}, 1, v41
    v_lshl_add_u32 v{V_OMP}, v{V_T1}, 3, v{V_OMP}
    s_lshl_b32 s{S_T0}, s{S_H}, 8
    v_add_u32 v{V_OMP}, s{S_T0}, v{V_OMP}
    v_lshrrev_b32 v{V_T1}, 2, v42
    v_lshlrev_b32 v{V_OMR}, 8, v{V_T1}
    v_lshl_add_u32 v{V_OMR}, v41, 6, v{V_OMR}
    v_lshl_add_u32 v{V_OMR}, v{V_T0}, 4, v{V_OMR}
    v_lshlrev_b32 v{V_OCR}, 8, v41
    v_lshl_add_u32 v{V_OCR}, v42, 2, v{V_OCR}
    v_cmp_eq_u32 vcc, 0, v{V_T0}
    v_mov_b32 v{V_ONE}, 0x3f803f80
    v_mov_b32 v{V_ONE+1}, 0x3f803f80
    v_cndmask_b32 v{V_TAGM}, 0, 1, vcc
    v_mov_b32 v{V_ONE+2}, 0x3f803f80
    v_mov_b32 v{V_ONE+3}, 0x3f803f80
    """)
    a(f"""
    v_and_b32 v49, 1, v42
    v_lshlrev_b32 v49, 4, v49
    v_mov_b32 v50, 0x3f80
    v_lshlrev_b32 v50, v49, v50
    v_lshrrev_b32 v51, 2, v42
    v_cmp_eq_u32 vcc, v51, v41
    v_mov_b32 v{V_SELR}, v50
    v_cndmask_b32 v52, 0, v50, s[{S_MQ}:{S_MQ+1}]
    v_cndmask_b32 v53, 0, v50, s[{S_MK}:{S_MK+1}]
    v_cndmask_b32 v{V_SEL}, 0, v52, vcc
    v_cndmask_b32 v{V_SEL+1}, 0, v53, vcc
    v_mov_b32 v{V_SELR+1}, v50
    v_mov_b32 v{V_SELR+2}, v50
    v_mov_b32 v{V_SELR+3}, v50
    """)
    a(f"""
    v_bfe_u32 v60, v40, 3, 1              ; r>>1
    v_bfe_u32 v49, v40, 2, 1              ; r&1
    v_and_b32 v50, 1, v41                 ; gb&1
    v_lshrrev_b32 v51, 1, v41             ; gb>>1
    v_lshlrev_b32 v52, 3, v60
    v_lshl_add_u32 v52, v50, 2, v52       ; rho&12
    v_lshl_add_u32 v53, v51, 4, v52
    v_add_u32 v53, v53, v49               ; rho0
    v_and_b32 v54, 3, v40                 ; cc
    s_lshl_b32 s{S_T0}, s{S_WAVE}, 2
    v_add_u32 v55, s{S_T0}, v54
    v_xor_b32 v55, v55, v52
    v_lshlrev_b32 v55, 4, v55
    v_lshl_add_u32 v{VRB}, v53, 8, v55
    v_lshlrev_b32 v55, 4, v52
    v_lshl_add_u32 v55, v54, 3, v55
    v_lshl_add_u32 v{VRO}, v53, 8, v55
    """)
    U_POLL, U_VER = 12, 22
    if tstamp and opt.get('pst'): tstamp()
    for u in range(32):
        m, k = units[u]
        slot = (u & 7) * 16384
        a(f"s_waitcnt vmcnt({4 * (min(u + 8, 32) - u - 1)})")
        a("s_barrier")
        if tstamp and opt.get("pst") and u % 4 == 0: tstamp()
        if u == 26 and opt.get("warm", 1):
            a(f"""
            s_getpc_b64 s[16:17]
            {name}_pc0:
            s_add_u32 s16, s16, {name}_w0_entry - {name}_pc0
            s_addc_u32 s17, s17, 0
            v_lshlrev_b32 v49, 7, v0
            v_min_u32 v49, {name}_end - {name}_w0_entry, v49
            global_load_dword v50, v49, s[16:17]
            v_lshlrev_b32 v49, 7, v40
            s_xor_b32 s{S_T1}, s{S_MEMR}, 16384
            s_cmp_eq_u32 s{S_WAVE}, 1
            s_cselect_b32 s{S_T0}, s{S_MEMR}, s{S_PARTR}
            s_cmp_eq_u32 s{S_WAVE}, 2
            s_cselect_b32 s{S_T0}, s{S_T1}, s{S_T0}
            s_lshl_b32 s{S_T1}, s{S_H}, 13
            s_add_u32 s{S_T1}, s{S_T1}, {WS_KVM}
            s_cmp_eq_u32 s{S_WAVE}, 3
            s_cselect_b32 s{S_T0}, s{S_T1}, s{S_T0}
            buffer_load_dword v51, v49, s[{S_WS}:{S_WS+3}], s{S_T0} offen sc1
            v_lshlrev_b32 v49, 13, v0
            v_and_b32 v49, 0x1fffff, v49
            s_mov_b32 s{S_T0}, {WS_XB}
            buffer_load_dword v52, v49, s[{S_WS}:{S_WS+3}], s{S_T0} offen sc1
            buffer_load_dword v57, v{V_FL}, s[{S_WS}:{S_WS+3}], 0 offen sc1
            """)
        if u == U_POLL and hooks:
            hooks[1]()
            a(f"buffer_load_dword v58, off, s[{S_DBG}:{S_DBG+3}], 0 offset:{DBG_VOTE} sc1")
        if u == U_VER and hooks: hooks[2]()
        if m in "qkv":
            a(f"v_add_u32 v48, {slot}, v{VRB}")
            for tau in range(2):
                for rh in range(2):
                    for dp in range(2):
                        off = rh * 8192 + dp * 512 + 8 * tau
                        if m == "v":
                            base = (64 + tau * 8) if k < 5 else wv_reg(2 * k + tau)
                            d = base + rh * 4 + dp * 2
                            a(f"ds_read_b64_tr_b16 v[{d}:{d+1}], v48 offset:{off}")
                        else:
                            d = (128 if m == "k" else 0) + (k * 2 + tau) * 8 + rh * 4 + dp * 2
                            a(f"ds_read_b64_tr_b16 a[{d}:{d+1}], v48 offset:{off}")
            a("s_waitcnt lgkmcnt(0)")
            a("s_barrier")
            if m == "v":
                src = 64 if k < 5 else 80 + 16 * (k - 5)
                for q in range(4):
                    vb = V_WV if k < 4 else V_WV2
                    a(f"ds_write_b128 v{vb}, v[{src+4*q}:{src+3+4*q}] offset:{(k & 3) * 16384 + q * 1024}")
                a("s_waitcnt lgkmcnt(0)")
        else:
            kp, om = k >> 2, k & 3
            a(f"s_cmp_lg_u32 s{S_WAVE}, {om}\ns_cbranch_scc1 {name}_wo{k}")
            for T8 in range(8):
                if T8 & 1 == 0:
                    a(f"v_xor_b32 v48, {(T8 >> 1) * 64}, v{VRO}")
                    a(f"v_add_u32 v48, {slot}, v48")
                base = V_WO + 8 * WO_R.index((T8, kp)) if (T8, kp) in WO_R else 80 + 8 * WO_L.index((T8, kp))
                for rh in range(2):
                    for dp in range(2):
                        d = base + rh * 4 + dp * 2
                        a(f"ds_read_b64_tr_b16 v[{d}:{d+1}], v48 offset:{rh*8192 + dp*512 + 32*(T8 & 1)}")
                if T8 & 1: a("s_waitcnt lgkmcnt(0)")
            a.label(f"{name}_wo{k}")
            a("s_barrier")
        if u + 8 < 32:
            dma_unit(u + 8)
    if prof or opt.get("tot"):
        for i in range(62, 98):
            a(f"s_mov_b32 s{i}, 0")
    if S_VOTE:
        a(f"s_branch {name}_iw1" if hooks else "")
        a.label(f"{name}_iw")
        watchdog(1)
        a(f"""
        buffer_load_dword v58, off, s[{S_DBG}:{S_DBG+3}], 0 offset:{DBG_VOTE} sc1
        s_waitcnt vmcnt(0)
        {name}_iw1:
        v_and_b32 v50, 0xffff, v58
        v_readfirstlane_b32 s{S_SEL}, v58
        v_cmp_ne_u32 vcc, s{S_VOTE}, v50
        s_cbranch_vccnz {name}_iw
        s_lshr_b32 s{S_SEL}, s{S_SEL}, 15
        s_cmp_gt_u32 s{S_SEL}, s{S_VOTE}
        s_cselect_b32 s{S_SEL}, 8192, 0
        """)
    else:
        a(f"""
        s_mov_b32 s{S_T0}, {WS_PROF + 3*MB}
        buffer_load_dword v48, v{V_Z}, s[{S_WS}:{S_WS+3}], s{S_T0} offen
        s_waitcnt vmcnt(0)
        v_readfirstlane_b32 s{S_SEL}, v48
        s_nop 3
        s_and_b32 s{S_SEL}, s{S_SEL}, 8192
        """)
    a(f"""
    s_bfe_u32 s{S_T0}, s{S_H}, 0x10001
    s_lshl_b32 s{S_T0}, s{S_T0}, 12
    s_add_u32 s{S_T0}, s{S_T0}, s{S_SEL}
    s_lshl_b32 s{S_T1}, s{S_WAVE}, 10
    s_add_u32 s{S_T0}, s{S_T0}, s{S_T1}
    s_add_u32 s{S_XIN}, s{S_XIN}, s{S_T0}
    s_add_u32 s{S_XOUT}, s{S_XOUT}, s{S_T0}
    s_xor_b32 s{S_VIN}, s{S_XIN}, 4096
    s_xor_b32 s{S_VOUT}, s{S_XOUT}, 4096
    s_xor_b32 s{S_MEMW}, s{S_MEMR}, 16384
    s_mov_b32 s{S_STEP}, 0
    s_cmp_eq_u32 s{S_J}, 0
    s_mov_b32 s{S_T0}, 0x33003300
    s_cselect_b32 s{S_PUBK}, 0x00330033, s{S_T0}
    s_mov_b32 s{S_PUBK+1}, s{S_PUBK}
    s_cselect_b32 s{S_PUBV}, -1, 0
    s_not_b32 s{S_PUBV+1}, s{S_PUBV}
    s_lshl_b32 s{S_T0}, s{S_H}, 13
    s_lshl_b32 s{S_T1}, s{S_WAVE}, 11
    s_add_u32 s{S_T0}, s{S_T0}, s{S_T1}
    s_add_u32 s{S_KX}, s{S_T0}, {WS_KX}
    s_add_u32 s{S_VX}, s{S_T0}, {WS_VT}
    s_lshl_b32 s{S_KVM}, s{S_H}, 13
    s_add_u32 s{S_KVM}, s{S_KVM}, {WS_KVM}
    s_mul_i32 s{S_M0X}, s{S_WAVE}, 3072
    s_add_u32 m0, s{S_M0X}, {LDS_X + 1024}
    s_mov_b32 s{S_PHX}, 1
    s_mov_b32 s{S_PHP}, 1
    v_mov_b32 v0, v{V_TAGM}
    v_bfrev_b32 v{V_T0}, 1
    v_cndmask_b32 v{V_OKM}, v{V_T0}, v{V_OKM}, s[{S_PUBK}:{S_PUBK+1}]
    v_cndmask_b32 v{V_OMP}, v{V_T0}, v{V_OMP}, s[{S_MLO}:{S_MLO+1}]
    s_sub_u32 s{S_KVM}, s{S_KVM}, {32*8192}
    s_lshl_b32 s{S_KVV}, s{S_J}, 11
    s_add_u32 s{S_KVV}, s{S_KVV}, s{S_KVM}
    """)
    V_TAGM = 0
    S_KN = 50
    kvn = [0]
    def kv_eval(reg):
        a(f"""
        v_readlane_b32 s{S_KN}, v{reg}, 0
        v_readlane_b32 s{S_T0}, v{reg}, 2
        v_readlane_b32 s{S_T1}, v{reg}, 1
        v_readlane_b32 s{S_T2}, v{reg}, 3
        s_nop 3
        s_min_u32 s{S_KN}, s{S_KN}, s{S_T0}
        s_min_u32 s{S_T1}, s{S_T1}, s{S_T2}
        s_lshl_b32 s{S_KN}, s{S_KN}, 1
        s_lshl_b32 s{S_T1}, s{S_T1}, 1
        s_add_u32 s{S_T1}, s{S_T1}, 1
        s_min_u32 s{S_KN}, s{S_KN}, s{S_T1}
        """)
    def kv_block(reg, plus):
        n = kvn[0]; kvn[0] += 1
        a.label(f"{name}_kvb{n}")
        a(f"""
        s_add_u32 s{S_T0}, s{S_STEP}, {plus}
        s_min_u32 s{S_T0}, s{S_T0}, 63
        s_cmp_gt_u32 s{S_KN}, s{S_T0}
        s_cbranch_scc1 {name}_kvd{n}
        """)
        watchdog(5)
        a(f"""
        buffer_load_dword v{reg}, v{V_FL}, s[{S_WS}:{S_WS+3}], 0 offen sc1
        s_waitcnt vmcnt(0)
        """)
        kv_eval(reg)
        a(f"s_branch {name}_kvb{n}")
        a.label(f"{name}_kvd{n}")
    if full:
        a(f"s_mov_b32 s{S_KN}, 0\ns_cmp_lg_u32 s{S_WAVE}, 3\ns_cbranch_scc1 {name}_kv0")
        kv_eval(57)
        kv_block(48, 0)
        a.label(f"{name}_kv0")
    if tstamp: tstamp()
    a("s_barrier")
    if opt.get("tot"):
        a("s_memtime s[98:99]\ns_memrealtime s[96:97]\ns_waitcnt lgkmcnt(0)")
    a(f"""
    s_cmp_eq_u32 s{S_WAVE}, 1
    s_cbranch_scc1 {name}_w1_entry
    s_cmp_eq_u32 s{S_WAVE}, 2
    s_cbranch_scc1 {name}_w2_entry
    s_cmp_eq_u32 s{S_WAVE}, 3
    s_cbranch_scc1 {name}_w3_entry
    """)

    SRD = f"s[{S_WS}:{S_WS+3}]"
    def smf(d, am, b):
        a(f"v_smfmac_f32_16x16x64_bf16 v[{d}:{d+3}], v[{am}:{am+3}], {b}, v{V_IDX}")
    def pkadd(d):
        a(f"v_pk_add_f32 v[{d}:{d+1}], v[{d}:{d+1}], v[{d+2}:{d+3}]")
    def zero32(d):
        a(f"v_mfma_f32_32x32x4_2b_bf16 v[{d}:{d+31}], v[{V_Z}:{V_Z+1}], v[{V_Z}:{V_Z+1}], 0")

    def wave_loop(w):
        L = f"{name}_w{w}"
        def lop_read(op, d):
            k, tau = op >> 1, op & 1
            vb = V_L16 if k < 4 else V_LH
            for rh in range(2):
                a(f"ds_read_b128 v[{d+4*rh}:{d+4*rh+3}], v{vb} offset:{(k & 3) * 16384 + w * 4096 + tau * 2048 + rh * 1024}")
        def wv_read(op):
            lop_read(op, V_ST + 8 * (op & 3))
        def qk(k, t):
            wb = (128 if t >= 2 else 0) + (k * 2 + (t & 1)) * 8
            smf(V_AQ + 4 * t, V_M + 4 * k, f"a[{wb}:{wb+7}]")
        def top():
            a(f"v_mfma_f32_32x32x8_bf16 v[{V_AQ}:{V_AQ+15}], v[{V_Z}:{V_Z+1}], v[{V_Z}:{V_Z+1}], 0")
            a(f"v_mfma_f32_16x16x16_bf16 v[{V_AV}:{V_AV+3}], v[{V_Z}:{V_Z+1}], v[{V_Z}:{V_Z+1}], 0")
            a(f"v_mfma_f32_16x16x16_bf16 v[{V_AV+4}:{V_AV+7}], v[{V_Z}:{V_Z+1}], v[{V_Z}:{V_Z+1}], 0")
            for op in range(4):
                wv_read(op)
        def xoff(u):
            return LDS_X - LDS_MEM + (w ^ u) * 3072

        VXB = opt.get("vxb", 1)
        ldvx = [f"buffer_load_dwordx4 v[{V_VX}:{V_VX+3}], v{V_L16}, {SRD}, s{S_VX} offen",
                f"buffer_load_dwordx4 v[{V_VX+4}:{V_VX+7}], v{V_L16}, {SRD}, s{S_VX} offen offset:1024"]
        a.label(f"{L}_entry")
        top()
        if VXB:
            a(ldvx[0]); a(ldvx[1])
            a(f"s_add_u32 s{S_VX}, s{S_VX}, {32*8192}")
        a.label(f"{L}_loop")
        dump()
        stamp(0)
        NB = opt.get("nb", 3)
        k0, k1 = 2 * w, 2 * w + 1
        m0, m1 = V_M + 4 * k0, V_M + 4 * k1
        a(f"s_add_u32 s{S_T0}, s{S_MEMR}, {k0 * 1024}")
        if opt.get("preA") == "ack": a("s_waitcnt vmcnt(0)")
        elif opt.get("preA"): a.nops(opt["preA"])
        own = [(k0, t) for t in range(4)] + [(k1, t) for t in range(4)]
        lda = f"""
        buffer_load_dwordx4 v[{m0}:{m0+3}], v{V_OMR}, {SRD}, s{S_T0} offen sc1
        buffer_load_dwordx4 v[{m1}:{m1+3}], v{V_OMR}, {SRD}, s{S_T0} offen offset:1024 sc1
        """
        AD = opt.get("ad", 0)
        others = [(k0 + 2 + i) & 7 for i in range(6)]
        n0, n1 = V_M + 4 * others[4], V_M + 4 * others[5]
        a(lda)
        if AD:
            a.nops(AD)
            a(f"""
            buffer_load_dwordx4 v[{n0}:{n0+3}], v{V_OMR}, {SRD}, s{S_T0} offen sc1
            buffer_load_dwordx4 v[{n1}:{n1+3}], v{V_OMR}, {SRD}, s{S_T0} offen offset:1024 sc1
            s_waitcnt vmcnt(2)
            """)
        a.label(f"{L}_pa")
        if AD:
            a(f"""
            ds_write_b128 v{V_LL}, v[{m0}:{m0+3}] offset:{k0*1024}
            ds_write_b128 v{V_LL}, v[{m1}:{m1+3}] offset:{k1*1024}
            """)
        else:
            a(f"""
            s_waitcnt vmcnt(1)
            ds_write_b128 v{V_LL}, v[{m0}:{m0+3}] offset:{k0*1024}
            s_waitcnt vmcnt(0)
            ds_write_b128 v{V_LL}, v[{m1}:{m1+3}] offset:{k1*1024}
            """)
        chk = [f"v_max3_u32 v{V_T0}, v{m0}, v{m0+2}, v{m1}", f"v_max_u32 v{V_T0}, v{V_T0}, v{m1+2}", f"v_cmp_eq_u32 vcc, -1, v{V_T0}"]
        stamp(1)
        a(chk[0]); a(chk[1]); a(chk[2])
        for x in own[:NB]: qk(*x)
        a(f"s_cbranch_vccnz {L}_pafail\ns_waitcnt lgkmcnt(0)\ns_barrier")
        stamp(2)
        rd = [f"ds_read_b128 v[{V_M+4*k}:{V_M+4*k+3}], v{V_LL} offset:{k*1024}" for k in others]
        if AD: rd[4] = "s_waitcnt vmcnt(0)\n" + rd[4]
        ld = [f"buffer_load_dwordx4 v{V_L16}, {SRD}, s{S_KX} offen lds",
              f"buffer_load_dwordx4 v{V_L16}, {SRD}, s{S_KX} offen offset:1024 lds"] + ([] if VXB else ldvx)
        pubd = (f"buffer_store_dwordx4 v[{V_PB1}:{V_PB1+3}], v{V_OKM}, {SRD}, s{S_KVM} offen offset:{w*64} sc1",
                f"buffer_store_dwordx2 v[{V_PV}:{V_PV+1}], v{V_OVM}, {SRD}, s{S_KVV} offen offset:{2048 + w*512} sc1")
        fill = rd + ld + list(pubd)
        KVW = full and w == 3
        if KVW: fill.append(f"buffer_load_dword v{V_T1}, v{V_FL}, {SRD}, 0 offen sc1")
        seq = own[NB:] + [(k, t) for k in others for t in range(4)]
        a(fill.pop(0)); a(fill.pop(0))
        issued = 2
        for i, x in enumerate(seq):
            if i >= 8 - NB and (i - (8 - NB)) % 4 == 0:
                need = (i - (8 - NB)) // 4 + 1
                assert issued >= need
                a(f"s_waitcnt lgkmcnt({issued - need})")
            qk(*x)
            if fill and ("ds_read" in fill[0] or i % opt.get("fsp", 1) == 0):
                a(fill.pop(0))
                if "ds_read" in a.lines[-1]: issued += 1
        assert not fill
        stamp(3)
        def vsm(op):
            k, tau = op >> 1, op & 1
            d = V_ST + 8 * (op & 3) if op < 10 else wv_reg(op)
            smf(V_AV + 4 * tau, V_M + 4 * k, f"v[{d}:{d+7}]")
        vm = ["kx", "vx", "pk", "pv"] + (["fl"] if KVW else [])
        def vwait(tag):
            n = len(vm) - 1 - max(i for i, t in enumerate(vm) if t == tag)
            a(f"s_waitcnt vmcnt({n})")
        a.nops(5)
        pkadd(V_AQ); pkadd(V_AQ + 4); pkadd(V_AQ + 8); pkadd(V_AQ + 12)
        a(f"""
        v_cvt_pk_bf16_f32 v{G+3}, v{V_AQ+12}, v{V_AQ+13}
        v_cvt_pk_bf16_f32 v{G}, v{V_AQ}, v{V_AQ+1}
        v_cvt_pk_bf16_f32 v{G+2}, v{V_AQ+4}, v{V_AQ+5}
        v_cvt_pk_bf16_f32 v{G+1}, v{V_AQ+8}, v{V_AQ+9}
        v_and_or_b32 v{G}, v{G}, -2, s{S_PHX}
        buffer_store_dwordx4 v[{G}:{G+3}], v{V_L16}, {SRD}, s{S_XOUT} offen sc1
        """)
        vm.append("sq")
        stamp(4)
        XP = opt.get("xp", (14,))
        PB = [PG, V_PB1, G]
        def ldx(b):
            a(f"buffer_load_dwordx4 v[{PB[b]}:{PB[b]+3}], v{V_L16}, {SRD}, s{S_XIN} offen sc1")
        def xpoint(p):
            for b, q in enumerate(XP):
                if q == p:
                    ldx(b); vm.append(f"x{b}")
        ldv = f"buffer_load_dwordx2 v[{V_AV+4}:{V_AV+5}], v{V_OVM}, {SRD}, s{S_VIN} offen sc1"
        vorder = [0, 1, 2, 3, 10, 11, 12, 4, 5, 13, 14, 15, 6, 7, 8, 9]
        pend = []
        for i, op in enumerate(vorder):
            if op in pend:
                a(f"s_waitcnt lgkmcnt({2 * (len(pend) - 1 - pend.index(op))})")
            vsm(op)
            if op + 4 < 10:
                wv_read(op + 4); pend.append(op + 4)
            xpoint(i)
        stamp(5)
        a(f"v_mfma_f32_16x16x16_bf16 v[{DO}:{DO+3}], v[{G}:{G+1}], v[{V_SEL}:{V_SEL+1}], 0")
        a(f"v_mfma_f32_16x16x16_bf16 v[{DO+4}:{DO+7}], v[{G+2}:{G+3}], v[{V_SEL}:{V_SEL+1}], 0")
        a.nops(5)
        a(f"""
        v_add_f32 v{V_AV}, v{V_AV}, v{V_AV+2}
        v_add_f32 v{V_AV+1}, v{V_AV+1}, v{V_AV+3}
        v_add_f32 v{V_AV+2}, v{V_AV+4}, v{V_AV+6}
        v_add_f32 v{V_AV+3}, v{V_AV+5}, v{V_AV+7}
        v_cvt_pk_bf16_f32 v{V_PV}, v{V_AV}, v{V_AV+1}
        v_cvt_pk_bf16_f32 v{V_PV+1}, v{V_AV+2}, v{V_AV+3}
        v_and_or_b32 v{V_PV}, v{V_PV}, -2, s{S_PHX}
        """)
        VS = opt.get("vs", 17)
        def vstore(p):
            if p != VS: return
            if opt.get("vbar"): a("s_barrier")
            a(f"buffer_store_dwordx2 v[{V_PV}:{V_PV+1}], v{V_OVM}, {SRD}, s{S_VOUT} offen sc1")
            vm.append("sv")
        xpoint(16)
        vstore(17)
        xpoint(17)
        stamp(6)
        OZ = 92
        a(f"""
        v_mov_b32 v{V_AV}, v{V_PV}
        v_mov_b32 v{V_AV+2}, v{V_PV+1}
        v_mov_b32 v{OZ}, v{V_ONE}
        v_mov_b32 v{OZ+1}, 0
        """)
        vwait("vx")
        stamp(7)
        a("s_barrier")
        for u in range(4):
            for t in range(2):
                d = V_KX + 8 * u + 4 * t
                a(f"ds_read_b128 v[{d}:{d+3}], v{V_LL} offset:{xoff(u) + 1024*(1+t)}")
        xpoint(18)
        vstore(18)
        for i, dl in enumerate(opt.get("xd", ())):
            a.nops(dl)
            xpoint(19 + i)
            vstore(19 + i)
        if opt.get("vearly"):
            a(ldv); vm.append("v")
        if KVW:
            a(f"""
            s_add_u32 s{S_T0}, s{S_STEP}, 4
            s_cmp_gt_u32 s{S_KN}, s{S_T0}
            s_cbranch_scc1 {L}_kvs
            """)
            vwait("fl")
            kv_eval(V_T1)
            kv_block(V_T1, 1)
            a.label(f"{L}_kvs")
        stamp(8)
        XD = V_S
        def xtry(b):
            p = PB[b]
            a(f"""
            v_mfma_f32_16x16x16_bf16 v[{XD}:{XD+3}], v[{p}:{p+1}], v[{V_SEL}:{V_SEL+1}], v[{DO}:{DO+3}]
            v_mfma_f32_16x16x16_bf16 v[{XD+4}:{XD+7}], v[{p+2}:{p+3}], v[{V_SEL}:{V_SEL+1}], v[{DO+4}:{DO+7}]
            v_and_b32 v{V_T0}, 1, v{p}
            v_cmp_ne_u32 vcc, s{S_PHX}, v{V_T0}
            s_nop 4
            v_cvt_pk_bf16_f32 v{V_X}, v{XD}, v{XD+1}
            v_cvt_pk_bf16_f32 v{V_X+1}, v{XD+2}, v{XD+3}
            v_cvt_pk_bf16_f32 v{V_X+2}, v{XD+4}, v{XD+5}
            v_cvt_pk_bf16_f32 v{V_X+3}, v{XD+6}, v{XD+7}
            ds_write_b128 v{V_LL}, v[{V_X}:{V_X+3}] offset:{xoff(0)}
            """)
        vwait("x0")
        stamp(9)
        xtry(0)
        a(f"s_cbranch_vccnz {L}_xslow")
        a.label(f"{L}_xok")
        vm_x = list(vm)
        a(f"s_cmp_eq_u32 s{S_STEP}, {nsteps-1}\ns_cbranch_scc1 {L}_last")
        if opt.get("vearly"):
            a(f"buffer_load_dwordx2 v[{V_PB1}:{V_PB1+1}], v{V_OVM}, {SRD}, s{S_VIN} offen sc1")
        else:
            a(ldv)
        a("s_waitcnt lgkmcnt(1)")
        def score(u, ts=(0, 1, 2)):
            x = V_X + 4 * u
            for t in ts:
                src = (V_KX + 8 * u + 4 * t) if t < 2 else x
                d = V_S + 4 * t
                c = "0" if u == 0 else f"v[{d}:{d+3}]"
                a(f"v_mfma_f32_16x16x32_bf16 v[{d}:{d+3}], v[{src}:{src+3}], v[{x}:{x+3}], {c}")
        score(0, (0,))
        a("s_waitcnt lgkmcnt(0)\ns_barrier")
        stamp(10)
        for u in range(1, 4):
            a(f"ds_read_b128 v[{V_X+4*u}:{V_X+4*u+3}], v{V_LL} offset:{xoff(u)}")
        score(0, (1, 2))
        if not opt.get("vearly"):
            a(f"buffer_load_dwordx2 v[{V_PB1}:{V_PB1+1}], v{V_OVM}, {SRD}, s{S_VIN} offen sc1")
        vchk = f"""
        s_waitcnt vmcnt(1)
        v_and_b32 v{V_T0}, 1, v{V_AV+4}
        v_cmp_ne_u32 vcc, s{S_PHX}, v{V_T0}
        v_mov_b32 v{V_AV+1}, v{V_AV+4}
        v_mov_b32 v{V_AV+3}, v{V_AV+5}
        """.strip().split("\n")
        for u in range(1, 4):
            a(f"s_waitcnt lgkmcnt({3-u})")
            score(u)
        zero32(V_ACC)
        stamp(11)
        MX, TM = V_T1, V_S + 10
        P = V_X + 4
        VE = opt.get("vearly")
        if VE:
            for l in vchk: a(l)
        else:
            a.nops(5)
        a(f"""
        v_max3_f32 v{MX}, v{V_S}, v{V_S+1}, v{V_S+2}
        v_max3_f32 v{MX}, v{MX}, v{V_S+3}, v{V_S+4}
        v_max3_f32 v{MX}, v{MX}, v{V_S+5}, v{V_S+6}
        v_max3_f32 v{MX}, v{MX}, v{V_S+7}, v{V_S+8}
        v_max_f32 v{TM}, v{MX}, v{V_S+9}
        v_max_f32 v{MX}, v{MX}, v{V_S+9}
        s_nop 0
        """)
        if VE:
            a(f"s_cbranch_vccnz {L}_pv0\n{L}_pv2:")
        else:
            a("s_nop 0")
        a(f"""
        v_permlane16_swap_b32 v{MX}, v{TM}
        v_max_f32 v{MX}, v{MX}, v{TM}
        v_max_f32 v{TM}, v{MX}, v{TM}
        """)
        a("s_nop 1")
        a(f"""
        v_permlane32_swap_b32 v{MX}, v{TM}
        v_max_f32 v{MX}, v{MX}, v{TM}
        v_mul_f32 v{MX}, s{S_C}, v{MX}
        """)
        for i in range(0, 10, 2):
            a(f"v_pk_fma_f32 v[{V_S+i}:{V_S+i+1}], v[{V_S+i}:{V_S+i+1}], s[{S_C}:{S_C+1}], v[{MX}:{MX+1}] op_sel_hi:[1,0,0] neg_lo:[0,0,1] neg_hi:[0,0,1]")
        for i in range(8):
            a(f"v_exp_f32 v{V_S+i}, v{V_S+i}")
            if i >= 2 and i % 2 == 0:
                a(f"v_cvt_pk_bf16_f32 v{P+i//2-1}, v{V_S+i-2}, v{V_S+i-1}")
        O, SM = DO, V_X + 12
        a(f"""
        v_exp_f32 v{V_S+8}, v{V_S+8}
        v_cvt_pk_bf16_f32 v{P+3}, v{V_S+6}, v{V_S+7}
        v_exp_f32 v{V_S+9}, v{V_S+9}
        s_nop 0
        """)
        stamp(12)
        a(f"""
        v_mfma_f32_16x16x32_bf16 v[{SM}:{SM+3}], v[{V_ONE}:{V_ONE+3}], v[{P}:{P+3}], 0
        v_cvt_pk_bf16_f32 v{P+4}, v{V_S+8}, v{V_S+9}
        v_cvt_pk_bf16_f32 v{P+5}, v{V_S+8}, v{V_S+9}
        """)
        a(f"v_mfma_f32_16x16x32_bf16 v[{O}:{O+3}], v[{V_VX}:{V_VX+3}], v[{P}:{P+3}], 0")
        if not VE: a(vchk[0]); a(vchk[1]); a(vchk[2])
        a(f"v_mfma_f32_16x16x32_bf16 v[{O+4}:{O+7}], v[{V_VX+4}:{V_VX+7}], v[{P}:{P+3}], 0")
        if not VE: a(vchk[3]); a(vchk[4])
        a(f"v_mfma_f32_16x16x16_bf16 v[{SM}:{SM+3}], v[{OZ}:{OZ+1}], v[{P+4}:{P+5}], v[{SM}:{SM+3}]")
        if not VE:
            a(f"s_cbranch_vccnz {L}_pv0\n{L}_pv2:")
        a(f"""
        v_mfma_f32_16x16x16_bf16 v[{O}:{O+3}], v[{V_AV}:{V_AV+1}], v[{P+4}:{P+5}], v[{O}:{O+3}]
        v_mfma_f32_16x16x16_bf16 v[{O+4}:{O+7}], v[{V_AV+2}:{V_AV+3}], v[{P+4}:{P+5}], v[{O+4}:{O+7}]
        """)
        stamp(13)
        nn = 0
        if opt.get("vxp", 13) == 13:
            a(ldvx[0]); a(ldvx[1]); nn = 2
        if not VE:
            a.nops(5 - nn)
        else:
            a.nops(6 - nn)
        a(f"""
        v_rcp_f32 v{SM}, v{SM}
        s_mov_b64 exec, s[{S_MQ}:{S_MQ+1}]
        """)
        OB = V_X + 8
        a(f"""
        v_pk_mul_f32 v[{O}:{O+1}], v[{O}:{O+1}], v[{SM}:{SM+1}] op_sel_hi:[1,0]
        v_pk_mul_f32 v[{O+2}:{O+3}], v[{O+2}:{O+3}], v[{SM}:{SM+1}] op_sel_hi:[1,0]
        v_pk_mul_f32 v[{O+4}:{O+5}], v[{O+4}:{O+5}], v[{SM}:{SM+1}] op_sel_hi:[1,0]
        v_pk_mul_f32 v[{O+6}:{O+7}], v[{O+6}:{O+7}], v[{SM}:{SM+1}] op_sel_hi:[1,0]
        v_cvt_pk_bf16_f32 v{OB}, v{O}, v{O+1}
        v_cvt_pk_bf16_f32 v{OB+1}, v{O+2}, v{O+3}
        v_cvt_pk_bf16_f32 v{OB+2}, v{O+4}, v{O+5}
        v_cvt_pk_bf16_f32 v{OB+3}, v{O+6}, v{O+7}
        """)
        OA = V_X + 4
        stamp(14)
        def save(n):
            a(f"""
            s_waitcnt vmcnt({n})
            v_mov_b32 v{V_PB1}, v{V_X}
            v_mov_b32 v{V_PB1+1}, v{V_X+1}
            v_mov_b32 v{V_PB1+2}, v{V_X+2}
            v_mov_b32 v{V_PB1+3}, v{V_X+3}
            s_add_u32 s{S_KVM}, s{S_KVM}, {32*8192}
            s_add_u32 s{S_KVV}, s{S_KVV}, {32*8192}
            """)
        a(f"ds_write_b128 v{V_LL}, v[{OB}:{OB+3}] offset:{LDS_O - LDS_MEM + (w >> 1) * 1024 + (w & 1) * 32 - 32}")
        a("s_mov_b64 exec, -1")
        WB = {10: 88, 11: 80, 12: V_AV, 13: 96, 14: 104, 15: 88}
        NPRE = opt.get("npre", 3)
        for op in range(10, 10 + NPRE): lop_read(op, WB[op])
        if opt.get("vxp", 13) == 14: a(ldvx[0]); a(ldvx[1])
        if full and w == 0:
            a(f"v_mov_b32 v{V_T0}, s{S_STEP}")
            a(f"buffer_store_dword v{V_T0}, v{V_FL}, {SRD}, 0 offen sc1")
        a(f"""
        s_waitcnt lgkmcnt({2 * NPRE})
        s_barrier
        ds_read_b128 v[{OA}:{OA+3}], v{V_LL} offset:{LDS_O - LDS_MEM}
        ds_read_b128 v[{OA+4}:{OA+7}], v{V_LL} offset:{LDS_O - LDS_MEM + 1024}
        """)
        for op in range(10 + NPRE, 15): lop_read(op, WB[op])
        NPOST = 2 * (5 - NPRE)
        stamp(15)
        sal = f"""
        s_add_u32 s{S_STEP}, s{S_STEP}, 1
        s_xor_b32 s{S_XIN}, s{S_XIN}, {MB}
        s_xor_b32 s{S_XOUT}, s{S_XOUT}, {MB}
        s_xor_b32 s{S_VIN}, s{S_VIN}, {MB}
        s_xor_b32 s{S_VOUT}, s{S_VOUT}, {MB}
        s_lshr_b32 s{S_PHX}, s{S_STEP}, 1
        s_and_b32 s{S_PHX}, s{S_PHX}, 1
        s_xor_b32 s{S_PHX}, s{S_PHX}, 1
        s_xor_b32 s{S_MEMR}, s{S_MEMR}, 16384
        s_xor_b32 s{S_MEMW}, s{S_MEMW}, 16384
        s_add_u32 s{S_KX}, s{S_KX}, {32*8192}
        s_add_u32 s{S_VX}, s{S_VX}, {32*8192}
        """.strip().split("\n")

        def wo(i):
            T, kp = WO_ORDER[i]
            b = V_WO + 8 * i if i < 10 else WB[i]
            smf(V_ACC + 4 * T, OA + 4 * kp, f"v[{b}:{b+7}]")
        def fold(T, pk):
            A = V_ACC + 4 * T
            GR = V_ACC + 16 * (T >> 2)
            if pk: pkadd(A)
            else:
                a(f"v_add_f32 v{A}, v{A}, v{A+2}\nv_add_f32 v{A+1}, v{A+1}, v{A+3}")
            a(f"v_cvt_pk_bf16_f32 v{GR+(T&3)}, v{A}, v{A+1}")
            if T & 3 == 0:
                a(f"v_and_or_b32 v{GR}, v{GR}, -2, s{S_PHP}")
            if T & 3 == 3:
                a(f"buffer_store_dwordx4 v[{GR}:{GR+3}], v{V_OPART}, {SRD}, s{S_PARTW if T < 4 else S_PARTW2} offen {IS}")
        a(f"s_waitcnt lgkmcnt({NPOST + 1})")
        for i in range(13):
            if i == 4: a(f"s_waitcnt lgkmcnt({NPOST})")
            if i == 10: a("s_waitcnt lgkmcnt(0)")
            wo(i)
            if i == 10: lop_read(15, WB[15])
            elif sal: a(sal.pop(0))
        assert not sal
        fold(0, 0); wo(13); fold(1, 0); wo(14); fold(2, 0); a("s_waitcnt lgkmcnt(0)"); wo(15); fold(3, 0)
        pk = opt.get("pkt", 1)
        fold(4, pk); fold(5, pk); fold(6, pk); fold(7, pk)
        stamp(16)
        save(5 if (full and w == 0) else 4)
        if opt.get("steps") and w == 1:
            a(f"""
            s_memrealtime s[62:63]
            s_lshl_b32 s64, s{S_J}, 5
            s_add_u32 s64, s64, s{S_H}
            s_lshl_b32 s64, s64, 6
            s_add_u32 s64, s64, s{S_STEP}
            s_lshl_b32 s64, s64, 2
            s_add_u32 s64, s64, {WS_PROF + 4*MB}
            s_waitcnt lgkmcnt(0)
            v_mov_b32 v{V_T0}, s62
            s_mov_b64 exec, 1
            buffer_store_dword v{V_T0}, off, {SRD}, s64
            s_mov_b64 exec, -1
            """)
        top()
        RB, RD = V_M + 4, V_M + 20
        a(f"v_mov_b32 v{RD+6}, -1\nv_mov_b32 v{RD+7}, -1")
        if opt.get("preC") == "ack": a("s_waitcnt vmcnt(0)")
        elif opt.get("preC") == "ack1": a("s_waitcnt vmcnt(1)")
        elif opt.get("preC"): a.nops(opt["preC"])
        def cissue(b):
            for d in range(8):
                a(f"buffer_load_dword v{RB+8*b+d}, v{V_OCR}, {SRD}, s{S_PARTR if d < 4 else S_PARTR2} offen offset:{1024*(d&3) + 64*w} sc1")
        def ctry(b, behind, nxt=None):
            r = RB + 8 * b
            a(f"""
            s_waitcnt vmcnt({behind + 4})
            v_mfma_f32_16x16x32_bf16 v[{RD}:{RD+3}], v[{r}:{r+3}], v[{V_SELR}:{V_SELR+3}], 0
            v_bitop3_b32 v{V_T0}, s{S_PHP}, v{r}, v{r+1} bitop3:0x7e
            v_bitop3_b32 v{V_T1}, s{S_PHP}, v{r+2}, v{r+3} bitop3:0x7e
            s_waitcnt vmcnt({behind + 2})
            v_or_b32 v{V_T0}, v{V_T0}, v{V_T1}
            v_bitop3_b32 v{V_T1}, s{S_PHP}, v{r+4}, v{r+5} bitop3:0x7e
            s_waitcnt vmcnt({behind})
            v_mfma_f32_16x16x32_bf16 v[{RD}:{RD+3}], v[{r+4}:{r+7}], v[{V_SELR}:{V_SELR+3}], v[{RD}:{RD+3}]
            v_bitop3_b32 v{RD+4}, s{S_PHP}, v{r+6}, v{r+7} bitop3:0x7e
            v_or3_b32 v{V_T0}, v{V_T0}, v{V_T1}, v{RD+4}
            v_and_b32 v{V_T0}, v{V_TAGM}, v{V_T0}
            v_cmp_ne_u32 vcc, 0, v{V_T0}
            """)
        def cfin():
            a(f"""
            v_cvt_pk_bf16_f32 v{RD+4}, v{RD}, v{RD+1}
            v_cvt_pk_bf16_f32 v{RD+5}, v{RD+2}, v{RD+3}
            v_min_u32 v{RD+4}, -2, v{RD+4}
            """)
        CD = opt.get("cd", 0)
        if CD:
            cissue(0); a.nops(CD); cissue(1)
            if opt.get("tot"): a("s_add_u32 s87, s87, 1")
            ctry(0, 8)
            a(f"s_cbranch_vccnz {L}_cslow")
            a.label(f"{L}_cok")
            a("s_nop 2"); cfin()
        elif opt.get("cearly", 1):
            a.label(f"{L}_pc")
            cissue(0)
            watchdog(30, 3)
            ctry(0, 0)
            a(f"s_cbranch_vccnz {L}_pc")
            a("s_nop 2"); cfin()
        else:
            a.label(f"{L}_pc")
            cissue(0)
            watchdog(30, 3)
            ctry(0, 0); a("s_nop 3"); cfin()
            a(f"s_cbranch_vccnz {L}_pc")
        a(f"""
        {"" if opt.get("amask") else f"s_mov_b64 exec, s[{S_MLO}:{S_MLO+1}]"}
        buffer_store_dwordx2 v[{RD+4}:{RD+5}], v{V_OMP}, {SRD}, s{S_MEMR} offen offset:{w * 64} {IS}
        buffer_store_dwordx2 v[{RD+6}:{RD+7}], v{V_OMP}, {SRD}, s{S_MEMW} offen offset:{w * 64} {IS}
        s_mov_b64 exec, -1
        s_xor_b32 s{S_PHP}, s{S_PHP}, 1
        """)
        stamp(17)
        a(f"s_branch {L}_loop")
        a.label(f"{L}_last")
        a(f"s_add_u32 s{S_KVM}, s{S_KVM}, {32*8192}\ns_add_u32 s{S_KVV}, s{S_KVV}, {32*8192}")
        a(pubd[0].replace(f"v[{V_PB1}:{V_PB1+3}]", f"v[{V_X}:{V_X+3}]")); a(pubd[1])
        a(f"s_branch {name}_end")
        a.label(f"{L}_pafail")
        if AD:
            if opt.get("tot"): a("s_add_u32 s84, s84, 1")
            a.nops(6)
            for i in range(4 * min(NB, 4)):
                a(f"v_mov_b32 v{V_AQ+i}, 0")
            a.label(f"{L}_pa2")
            a(f"""
            s_waitcnt vmcnt(0)
            v_max3_u32 v{V_T0}, v{n0}, v{n0+2}, v{n1}
            v_max_u32 v{V_T0}, v{V_T0}, v{n1+2}
            v_cmp_eq_u32 vcc, -1, v{V_T0}
            """)
            for i in range(0, 4, 2):
                a(f"v_pk_mov_b32 v[{m0+i}:{m0+i+1}], v[{n0+i}:{n0+i+1}], v[{n0+i}:{n0+i+1}] op_sel:[0,1]")
                a(f"v_pk_mov_b32 v[{m1+i}:{m1+i+1}], v[{n1+i}:{n1+i+1}], v[{n1+i}:{n1+i+1}] op_sel:[0,1]")
            a(f"""
            s_cbranch_vccz {L}_pa
            buffer_load_dwordx4 v[{n0}:{n0+3}], v{V_OMR}, {SRD}, s{S_T0} offen sc1
            buffer_load_dwordx4 v[{n1}:{n1+3}], v{V_OMR}, {SRD}, s{S_T0} offen offset:1024 sc1
            """)
            watchdog(10 + w, 0)
            a(f"s_branch {L}_pa2")
        else:
            a(lda)
            watchdog(10 + w, 0)
            a.nops(8)
            for i in range(4 * min(NB, 4)):
                a(f"v_mov_b32 v{V_AQ+i}, 0")
            a(f"s_branch {L}_pa")

        if opt.get("cd"):
            a.label(f"{L}_cslow")
            cissue(0)
            a.label(f"{L}_pc")
            watchdog(30, 3)
            ctry(1, 8)
            a(f"s_cbranch_vccz {L}_cok")
            cissue(1)
            watchdog(30, 3)
            ctry(0, 8)
            a(f"s_cbranch_vccz {L}_cok")
            cissue(0)
            a(f"s_branch {L}_pc")

        a.label(f"{L}_xslow")
        vm[:] = vm_x
        nxp = len(XP)
        def xlight(b):
            a(f"""
            v_and_b32 v{V_T0}, 1, v{PB[b]}
            v_cmp_ne_u32 vcc, s{S_PHX}, v{V_T0}
            s_cbranch_vccz {L}_xgot{b}
            """)
        ldx(0); vm.append("y0")
        for b in range(1, nxp):
            if opt.get("tot"): a(f"s_add_u32 s85, s85, 1")
            vwait(f"x{b}")
            xlight(b)
            ldx(b); vm.append(f"y{b}")
        a.label(f"{L}_px")
        for b in range(nxp):
            watchdog(20, 1)
            a(f"s_waitcnt vmcnt({nxp - 1})")
            xlight(b)
            ldx(b)
        a(f"s_branch {L}_px")
        for b in range(nxp):
            a.label(f"{L}_xgot{b}")
            xtry(b)
            a(f"s_branch {L}_xok")

        a.label(f"{L}_pv0")
        if opt.get("tot"): a("s_add_u32 s86, s86, 1")
        a(f"s_waitcnt vmcnt(0)\ns_branch {L}_pv1")
        a.label(f"{L}_pv")
        watchdog(21, 2)
        a(f"""
        buffer_load_dwordx2 v[{V_PB1}:{V_PB1+1}], v{V_OVM}, {SRD}, s{S_VIN} offen sc1
        s_waitcnt vmcnt(0)
        {L}_pv1:
        v_and_b32 v{V_T0}, 1, v{V_PB1}
        v_cmp_ne_u32 vcc, s{S_PHX}, v{V_T0}
        v_mov_b32 v{V_AV+1}, v{V_PB1}
        v_mov_b32 v{V_AV+3}, v{V_PB1+1}
        s_cbranch_vccnz {L}_pv
        s_branch {L}_pv2
        """)

    for w in range(4):
        wave_loop(w)
    a.label(f"{name}_end")
    a("s_mov_b64 exec, -1")
    if full:
        a(f"""
        v_mov_b32 v{V_T0}, 64
        s_waitcnt vmcnt(0)
        s_barrier
        s_cmp_lg_u32 s{S_WAVE}, 0
        s_cbranch_scc1 {name}_end2
        buffer_store_dword v{V_T0}, v{V_FL}, s[{S_WS}:{S_WS+3}], 0 offen sc1
        {name}_end2:
        """)
    if tstamp: tstamp()
    if opt.get("tot"):
        a(f"""
        s_memtime s[66:67]
        s_memrealtime s[68:69]
        s_waitcnt lgkmcnt(0)
        s_sub_u32 s89, s66, s98
        s_sub_u32 s88, s68, s96
        s_lshl_b32 s{S_T0}, s{S_J}, 5
        s_add_u32 s{S_T0}, s{S_T0}, s{S_H}
        s_lshl_b32 s{S_T0}, s{S_T0}, 2
        s_add_u32 s{S_T0}, s{S_T0}, s{S_WAVE}
        s_lshl_b32 s{S_T0}, s{S_T0}, 7
        s_add_u32 s{S_T0}, s{S_T0}, {WS_PROF}
        s_mov_b64 exec, 1
        """)
        for i in range(14, 20):
            a(f"v_mov_b32 v{V_T0}, s{70+i}")
            a(f"buffer_store_dword v{V_T0}, v{V_Z}, s[{S_WS}:{S_WS+3}], s{S_T0} offen offset:{4*i}")
        a("s_mov_b64 exec, -1")
    a("s_waitcnt vmcnt(0)")
    a("s_endpgm")
    if wd:
        a.label(f"{name}_wdexit")
        a(f"""
        s_mov_b64 exec, 1
        s_lshl_b32 s{S_T0}, s{S_STEP}, 8
        s_or_b32 s{S_T2}, s{S_T2}, s{S_T0}
        v_mov_b32 v{V_T0}, s{S_T2}
        v_mov_b32 v{V_T1}, 0
        s_lshl_b32 s{S_T0}, s{S_J}, 5
        s_add_u32 s{S_T0}, s{S_T0}, s{S_H}
        s_lshl_b32 s{S_T0}, s{S_T0}, 2
        s_add_u32 s{S_T0}, s{S_T0}, s{S_WAVE}
        s_lshl_b32 s{S_T0}, s{S_T0}, 2
        s_add_u32 s{S_T0}, s{S_T0}, {WS_PROF + MB}
        buffer_store_dword v{V_T0}, v{V_T1}, s[{S_WS}:{S_WS+3}], s{S_T0} offen
        s_endpgm
        """)


def gen_standalone(name, prof=False, opt={}, xa=0, xb=1):
    from gen_hop import ticket
    a = Asm(); a.kernel_begin(name)
    a(f"s_cmp_ge_u32 s2, 256\ns_cbranch_scc1 {name}_exit")
    a(f"""
    s_load_dwordx2 s[84:85], s[0:1], {KA_WS}
    s_waitcnt lgkmcnt(0)
    s_mov_b32 s86, {WS_BYTES}
    s_mov_b32 s87, 0x00020000
    """)
    global_init(a, name, 84)
    a("s_waitcnt vmcnt(0)\ns_barrier")
    ticket(a, name, 2)
    a(f"""
    s_cmp_eq_u32 s90, {xa}
    s_cselect_b32 s{S_J}, 0, 2
    s_cmp_eq_u32 s90, {xb}
    s_cselect_b32 s{S_J}, 1, s{S_J}
    s_cmp_ge_u32 s{S_J}, 2
    s_cbranch_scc1 {name}_exit
    s_cmp_ge_u32 s96, 32
    s_cbranch_scc1 {name}_exit
    s_mov_b32 s{S_H}, s96
    s_branch {name}_go
    {name}_exit:
    s_endpgm
    {name}_go:
    """)
    rec_body(a, name + "_r", "", prof=prof, wd=True, opt=opt)
    return (name, a.text(), kd(name, 512, sgpr=100, accum=256), 256, 256, LDS_REC)


if __name__ == "__main__":
    import sys, json
    V = eval(open(sys.argv[1]).read())
    ks = [gen_standalone(f"r{i}_kernel", **v) for i, v in enumerate(V)]
    write_file("rec.s", ks)
    json.dump(V, open("rec.json", "w"))
```

```python
from common import *
from gen_rec import WS_QX, WS_KX, WS_VT, WS_O, WS_KVM
from gen_qkv import WS_FL

FL_RP, FL_XF = 192, 256
NEARLY = 16


def xo_role(a: Asm, name, S_B, S_WS, S_FAST, wd=None, opt={}, stamp=None):
    S_W, S_O = 8, 12
    S_WAVE, S_G, S_C, S_T0, S_T1, S_SEG, S_CST = 16, 17, 18, 20, 21, 22, 24
    S_QO, S_KO, S_VO, S_MO, S_OW, S_OR, S_OUT, S_NEED = 26, 27, 28, 29, 40, 41, 42, 43
    S_M0 = 44
    S_CUR, S_RET, S_SLOT, S_QO2, S_KO2, S_ROT = 45, 46, 47, 48, 49, 50
    SRD = f"s[{S_WS}:{S_WS+3}]"
    V_L, V_L16, V_T0, V_T1, V_T2 = 1, 2, 3, 4, 5
    V_OKM, V_OVM, V_OOW, V_TH0, V_TH1, V_NEG, V_FGP, V_FRP, V_FXF, V_FMY, V_LR, V_LW, V_OUT = 6, 7, 8, 9, 10, 11, 12, 13, 14, 15, 16, 17, 18
    V_ONE = 20
    V_Q, V_K, V_V = 24, 40, 72
    V_KM, V_VM = 88, 104
    V_S, V_P, V_SM = 112, 124, 132
    V_O = 88
    V_ACC = 112
    V_F = 136
    NFR = 30

    def poll_guard(code):
        if wd: wd(code)

    a(f"""
    s_load_dwordx2 s[{S_W}:{S_W+1}], s[0:1], {KA_WO}
    s_load_dwordx2 s[{S_O}:{S_O+1}], s[0:1], {KA_OUT}
    v_lshrrev_b32 v{V_T0}, 6, v0
    v_and_b32 v{V_L}, 63, v0
    v_readfirstlane_b32 s{S_WAVE}, v{V_T0}
    s_lshr_b32 s{S_G}, s{S_B}, 5
    s_and_b32 s{S_C}, s{S_B}, 31
    v_lshlrev_b32 v{V_L16}, 4, v{V_L}
    s_waitcnt lgkmcnt(0)
    s_mov_b32 s{S_W+2}, {8*MB}
    s_mov_b32 s{S_W+3}, 0x00020000
    s_mov_b32 s{S_O+2}, {8*MB}
    s_mov_b32 s{S_O+3}, 0x00020000
    s_mov_b32 s{S_CST}, 0x3e0293ee
    v_lshrrev_b32 v{V_T0}, 2, v{V_L}
    v_lshlrev_b32 v{V_T0}, 11, v{V_T0}
    v_and_b32 v{V_T1}, 3, v{V_L}
    v_lshl_add_u32 v{V_T0}, v{V_T1}, 4, v{V_T0}
    s_lshl_b32 s{S_T0}, s{S_WAVE}, 21
    s_lshl_b32 s{S_T1}, s{S_C}, 6
    s_add_u32 s{S_T0}, s{S_T0}, s{S_T1}
    v_add_u32 v24, s{S_T0}, v{V_T0}
    s_lshl_b32 s{S_M0}, s{S_WAVE}, 15
    s_lshr_b32 s{S_ROT}, s{S_C}, 1
    s_lshl_b32 s{S_ROT}, s{S_ROT}, {12 if opt.get('rot', 1) else 16}
    v_lshrrev_b32 v{V_T0}, 5, v{V_L}
    v_bfe_u32 v{V_T2}, v{V_L}, 2, 2
    v_lshl_add_u32 v{V_T0}, v{V_T0}, 3, v{V_T2}
    v_lshlrev_b32 v25, 6, v{V_T0}
    v_bfe_u32 v{V_T2}, v{V_L}, 4, 1
    v_lshl_add_u32 v25, v{V_T2}, 5, v25
    v_lshl_add_u32 v25, v{V_T1}, 3, v25
    v_add_u32 v25, s{S_M0}, v25
    """)
    def wdma(ks):
        a(f"s_add_u32 m0, s{S_M0}, {(ks & 31) * 1024}")
        a(f"s_add_u32 s{S_T0}, s{S_ROT}, {ks * 1024}")
        a(f"s_and_b32 s{S_T0}, s{S_T0}, 0xffff")
        a(f"s_lshl_b32 s{S_T0}, s{S_T0}, 5")
        a(f"buffer_load_dwordx4 v24, s[{S_W}:{S_W+3}], s{S_T0} offen lds")
    a(f"""
    s_lshl_b32 s{S_SLOT}, s{S_G}, 2
    s_add_u32 s{S_T0}, s{S_SLOT}, s{S_WAVE}
    s_lshl_b32 s{S_T0}, s{S_T0}, 18
    s_lshl_b32 s{S_T1}, s{S_C}, 13
    s_add_u32 s{S_T0}, s{S_T0}, s{S_T1}
    s_add_u32 s{S_T0}, s{S_T0}, {WS_O}
    v_lshlrev_b32 v26, 7, v{V_L}
    buffer_load_dword v28, v26, {SRD}, s{S_T0} offen sc1
    """)
    for ks in range(32): wdma(ks)
    a(f"""
    v_and_b32 v{V_T1}, 15, v{V_L}             ; c
    v_lshrrev_b32 v{V_T2}, 4, v{V_L}          ; g
    v_lshrrev_b32 v{V_T0}, 2, v{V_T1}
    v_lshlrev_b32 v{V_T0}, 1, v{V_T0}
    v_and_b32 v26, 1, v{V_T1}
    v_add_u32 v{V_T0}, v{V_T0}, v26           ; m(c)
    v_lshlrev_b32 v{V_OKM}, 8, v{V_T0}
    v_lshl_add_u32 v{V_OKM}, v{V_T2}, 4, v{V_OKM}
    s_lshr_b32 s{S_T0}, s{S_WAVE}, 1
    s_lshl_b32 s{S_T0}, s{S_T0}, 10
    s_add_u32 s{S_T0}, s{S_T0}, 2048
    v_lshlrev_b32 v{V_OVM}, 3, v{V_L}
    v_add_u32 v{V_OVM}, s{S_T0}, v{V_OVM}
    v_lshlrev_b32 v{V_OOW}, 9, v{V_T2}
    v_lshl_add_u32 v{V_OOW}, v{V_T1}, 4, v{V_OOW}
    s_lshr_b32 s{S_T0}, s{S_WAVE}, 1
    s_lshl_b32 s{S_T0}, s{S_T0}, 12
    s_and_b32 s{S_T1}, s{S_WAVE}, 1
    s_lshl_b32 s{S_T1}, s{S_T1}, 8
    s_add_u32 s{S_T0}, s{S_T0}, s{S_T1}
    v_add_u32 v{V_OOW}, s{S_T0}, v{V_OOW}
    v_lshlrev_b32 v26, 2, v{V_T2}
    v_sub_u32 v{V_TH0}, v{V_T1}, v26
    s_lshr_b32 s{S_T1}, s{S_T1}, 4
    v_add_u32 v{V_TH0}, s{S_T1}, v{V_TH0}
    v_add_u32 v{V_TH1}, -16, v{V_TH0}
    v_mov_b32 v{V_NEG}, 0xff7fffff
    v_mov_b32 v{V_ONE}, 0x3f803f80
    v_mov_b32 v{V_ONE+1}, 0x3f803f80
    v_mov_b32 v{V_ONE+2}, 0x3f803f80
    v_mov_b32 v{V_ONE+3}, 0x3f803f80
    v_bfe_u32 v26, v{V_L}, 1, 2
    v_min_u32 v26, 2, v26
    s_lshl_b32 s{S_T0}, s{S_C}, 8
    s_add_u32 s{S_T0}, s{S_T0}, {WS_FL}
    v_lshlrev_b32 v{V_FGP}, 13, v26
    v_and_b32 v26, 1, v{V_L}
    v_lshl_add_u32 v{V_FGP}, v26, 7, v{V_FGP}
    v_add_u32 v{V_FGP}, s{S_T0}, v{V_FGP}
    v_and_b32 v26, 1, v{V_L}
    v_lshlrev_b32 v{V_FRP}, 7, v26
    s_add_u32 s{S_T0}, s{S_T0}, {FL_RP * 128}
    v_add_u32 v{V_FRP}, s{S_T0}, v{V_FRP}
    v_and_b32 v26, 7, v{V_L}
    s_lshl_b32 s{S_T0}, s{S_G}, 5
    s_lshl_b32 s{S_T1}, s{S_WAVE}, 3
    s_add_u32 s{S_T0}, s{S_T0}, s{S_T1}
    v_add_u32 v26, s{S_T0}, v26
    v_lshlrev_b32 v{V_FXF}, 7, v26
    v_add_u32 v{V_FXF}, {WS_FL + FL_XF * 128}, v{V_FXF}
    v_bfrev_b32 v26, 1
    s_lshl_b32 s{S_T0}, s{S_B}, 7
    s_add_u32 s{S_T0}, s{S_T0}, {WS_FL + FL_XF * 128}
    v_mov_b32 v27, s{S_T0}
    v_cmp_eq_u32 vcc, 0, v0
    s_lshl_b32 s{S_T0}, s{S_WAVE}, 12
    v_add_u32 v{V_LW}, s{S_T0}, v{V_L16}
    v_cndmask_b32 v{V_FMY}, v26, v27, vcc
    v_lshrrev_b32 v26, 3, v0
    v_and_b32 v27, 1, v0
    v_lshl_add_u32 v27, v27, 5, v26
    v_lshlrev_b32 v{V_LR}, 4, v27
    v_bfe_u32 v27, v0, 1, 2
    v_lshl_add_u32 v{V_LR}, v27, 10, v{V_LR}
    v_lshlrev_b32 v{V_OUT}, 12, v26
    v_and_b32 v27, 7, v0
    v_lshl_add_u32 v{V_OUT}, v27, 3, v{V_OUT}
    s_lshl_b32 s{S_T0}, s{S_C}, 6
    v_add_u32 v{V_OUT}, s{S_T0}, v{V_OUT}
    """)
    for k4 in range(16):
        a(f"s_waitcnt vmcnt({min(28, 60 - 4 * k4)})")
        for ks in range(4 * k4, 4 * k4 + 4):
            for j in range(2):
                a(f"ds_read_b64_tr_b16 a[{4*ks+2*j}:{4*ks+2*j+1}], v25 offset:{(ks & 31) * 1024 + j * 256}")
        a("s_waitcnt lgkmcnt(0)")
        if k4 < 8:
            for ks in range(4 * k4 + 32, 4 * k4 + 36): wdma(ks)
    a("s_barrier")
    if stamp: stamp()
    a(f"""
    s_add_u32 s{S_SEG}, s{S_G}, {NEARLY}
    s_sub_u32 s{S_T0}, s{S_G}, 4
    s_cmp_ge_u32 s{S_G}, 4
    s_cselect_b32 s{S_SEG}, s{S_T0}, s{S_SEG}
    """)

    def addr():
        a(f"""
        s_lshl_b32 s{S_KO}, s{S_SEG}, 18
        s_lshl_b32 s{S_T0}, s{S_C}, 13
        s_add_u32 s{S_KO}, s{S_KO}, s{S_T0}
        s_add_u32 s{S_MO}, s{S_KO}, {WS_KVM}
        s_and_b32 s{S_T0}, s{S_WAVE}, 1
        s_lshl_b32 s{S_T0}, s{S_T0}, 10
        s_add_u32 s{S_QO}, s{S_KO}, s{S_T0}
        s_lshr_b32 s{S_T0}, s{S_WAVE}, 1
        s_lshl_b32 s{S_T0}, s{S_T0}, 12
        s_add_u32 s{S_VO}, s{S_KO}, s{S_T0}
        s_add_u32 s{S_VO}, s{S_VO}, {WS_VT}
        s_add_u32 s{S_KO}, s{S_KO}, {WS_KX}
        s_add_u32 s{S_QO2}, s{S_QO}, 4096
        s_add_u32 s{S_KO2}, s{S_KO}, 4096
        """)
    Lq = [f"buffer_load_dwordx4 v[{V_Q+4*u}:{V_Q+4*u+3}], v{V_L16}, {SRD}, s{S_QO if u < 2 else S_QO2} offen offset:{(u & 1) * 2048}" for u in range(4)]
    Lq += [f"buffer_load_dwordx4 v[{V_K+4*i}:{V_K+4*i+3}], v{V_L16}, {SRD}, s{S_KO if i < 4 else S_KO2} offen offset:{(i & 3) * 1024}" for i in range(8)]
    Lq += [f"buffer_load_dwordx4 v[{V_V+4*i}:{V_V+4*i+3}], v{V_L16}, {SRD}, s{S_VO} offen offset:{i * 1024}" for i in range(4)]
    Lm = [f"buffer_load_dwordx4 v[{V_KM+4*u}:{V_KM+4*u+3}], v{V_OKM}, {SRD}, s{S_MO} offen offset:{64*u} sc1" for u in range(4)]
    Lm += [f"buffer_load_dwordx2 v[{V_VM+2*i}:{V_VM+2*i+1}], v{V_OVM}, {SRD}, s{S_MO} offen offset:{512*(i >> 1) + 2048*(i & 1)} sc1" for i in range(4)]

    a.label(f"{name}_gp")
    poll_guard(40)
    a(f"""
    buffer_load_dword v{V_T0}, v{V_FGP}, {SRD}, 0 offen sc1
    s_waitcnt vmcnt(0)
    v_cmp_ne_u32 vcc, 32, v{V_T0}
    s_cbranch_vccz {name}_gk
    s_sleep 8
    s_branch {name}_gp
    {name}_gk:
    s_mov_b32 s{S_RET}, 0
    """)
    addr()
    a.label(f"{name}_ldq")
    for l in Lq: a(l)
    a.label(f"{name}_att")
    a("s_waitcnt vmcnt(0)")
    for u in range(4):
        for kt in range(2):
            d = V_S + 4 * kt
            c = "0" if u == 0 else f"v[{d}:{d+3}]"
            k = V_K + 8 * u + 4 * kt
            a(f"v_mfma_f32_16x16x32_bf16 v[{d}:{d+3}], v[{k}:{k+3}], v[{V_Q+4*u}:{V_Q+4*u+3}], {c}")
    a(f"""
    s_lshl_b32 s{S_OR}, s{S_SLOT}, 18
    s_add_u32 s{S_OR}, s{S_OR}, {WS_O}
    s_lshl_b32 s{S_T0}, s{S_C}, 13
    s_add_u32 s{S_OW}, s{S_OR}, s{S_T0}
    s_lshl_b32 s{S_T0}, s{S_WAVE}, 16
    s_add_u32 s{S_OR}, s{S_OR}, s{S_T0}
    s_lshl_b32 s{S_OUT}, s{S_SEG}, 17
    v_mov_b32 v{V_P+6}, v{V_ONE}
    v_mov_b32 v{V_P+7}, 0
    """)
    for kt, th in ((0, V_TH0), (1, V_TH1)):
        for r in range(4):
            a(f"v_cmp_gt_i32 vcc, {r}, v{th}")
            a("s_nop 1")
            a(f"v_cndmask_b32 v{V_S+4*kt+r}, v{V_S+4*kt+r}, v{V_NEG}, vcc")
    a(f"s_cmp_eq_u32 s{S_RET}, 1\ns_cbranch_scc1 {name}_rd")
    a.label(f"{name}_rp")
    poll_guard(41)
    a(f"""
    buffer_load_dword v{V_T0}, v{V_FRP}, {SRD}, 0 offen sc1
    s_waitcnt vmcnt(0)
    v_cmp_ge_u32 vcc, s{S_SEG}, v{V_T0}
    s_cbranch_vccz {name}_rk
    s_sleep {opt.get('rps', 2)}
    s_branch {name}_rp
    {name}_rk:
    """)
    for l in Lm: a(l)
    a.label(f"{name}_rd")
    d = V_S + 8
    for u in range(4):
        a(f"s_waitcnt vmcnt({7-u})")
        c = "0" if u == 0 else f"v[{d}:{d+3}]"
        a(f"v_mfma_f32_16x16x32_bf16 v[{d}:{d+3}], v[{V_KM+4*u}:{V_KM+4*u+3}], v[{V_Q+4*u}:{V_Q+4*u+3}], {c}")
    MX, TM = V_T1, V_T0
    a(f"""
    v_max3_f32 v{MX}, v{V_S}, v{V_S+1}, v{V_S+2}
    v_max3_f32 v{MX}, v{MX}, v{V_S+3}, v{V_S+4}
    v_max3_f32 v{MX}, v{MX}, v{V_S+5}, v{V_S+6}
    s_waitcnt vmcnt(0)
    v_swap_b32 v{V_VM+1}, v{V_VM+2}
    v_swap_b32 v{V_VM+5}, v{V_VM+6}
    s_nop 1
    v_max3_f32 v{MX}, v{MX}, v{V_S+7}, v{V_S+8}
    v_max_f32 v{TM}, v{MX}, v{V_S+9}
    v_max_f32 v{MX}, v{MX}, v{V_S+9}
    s_nop 1
    v_permlane16_swap_b32 v{MX}, v{TM}
    v_max_f32 v{MX}, v{MX}, v{TM}
    v_max_f32 v{TM}, v{MX}, v{TM}
    s_nop 1
    v_permlane32_swap_b32 v{MX}, v{TM}
    v_max_f32 v{MX}, v{MX}, v{TM}
    v_mul_f32 v{MX}, s{S_CST}, v{MX}
    """)
    for i in range(10):
        a(f"v_fma_f32 v{V_S+i}, v{V_S+i}, s{S_CST}, -v{MX}")
    for i in range(10):
        a(f"v_exp_f32 v{V_S+i}, v{V_S+i}")
    a("s_nop 0")
    for i in range(5):
        a(f"v_cvt_pk_bf16_f32 v{V_P+i}, v{V_S+2*i}, v{V_S+2*i+1}")
    a(f"v_mov_b32 v{V_P+5}, v{V_P+4}")
    a("s_nop 1")
    a(f"v_mfma_f32_16x16x32_bf16 v[{V_SM}:{V_SM+3}], v[{V_ONE}:{V_ONE+3}], v[{V_P}:{V_P+3}], 0")
    for i in range(4):
        a(f"v_mfma_f32_16x16x32_bf16 v[{V_O+4*i}:{V_O+4*i+3}], v[{V_V+4*i}:{V_V+4*i+3}], v[{V_P}:{V_P+3}], 0")
    a("s_nop 1")
    a(f"v_mfma_f32_16x16x16_bf16 v[{V_SM}:{V_SM+3}], v[{V_P+6}:{V_P+7}], v[{V_P+4}:{V_P+5}], v[{V_SM}:{V_SM+3}]")
    for i in range(4):
        vb = V_VM + 2 * i
        a(f"v_mfma_f32_16x16x16_bf16 v[{V_O+4*i}:{V_O+4*i+3}], v[{vb}:{vb+1}], v[{V_P+4}:{V_P+5}], v[{V_O+4*i}:{V_O+4*i+3}]")
    a.nops(4)
    a(f"v_rcp_f32 v{V_SM}, v{V_SM}")
    a.nops(3)
    for i in range(8):
        a(f"v_pk_mul_f32 v[{V_O+2*i}:{V_O+2*i+1}], v[{V_O+2*i}:{V_O+2*i+1}], v[{V_SM}:{V_SM+1}] op_sel_hi:[1,0]")
    for i in range(8):
        a(f"v_cvt_pk_bf16_f32 v{V_S+i}, v{V_O+2*i}, v{V_O+2*i+1}")
    a(f"""
    s_add_u32 s{S_NEED}, s{S_SEG}, 1
    v_mov_b32 v{V_T1}, s{S_NEED}
    s_cmp_eq_u32 s{S_FAST}, 1
    s_cbranch_scc1 {name}_of
    buffer_store_dwordx4 v[{V_S}:{V_S+3}], v{V_OOW}, {SRD}, s{S_OW} offen sc1
    buffer_store_dwordx4 v[{V_S+4}:{V_S+7}], v{V_OOW}, {SRD}, s{S_OW} offen offset:2048 sc1
    s_waitcnt vmcnt(0)
    s_barrier
    buffer_store_dword v{V_T1}, v{V_FMY}, {SRD}, 0 offen sc1
    s_branch {name}_od
    {name}_of:
    buffer_store_dwordx4 v[{V_S}:{V_S+3}], v{V_OOW}, {SRD}, s{S_OW} offen
    buffer_store_dwordx4 v[{V_S+4}:{V_S+7}], v{V_OOW}, {SRD}, s{S_OW} offen offset:2048
    s_waitcnt vmcnt(0)
    s_barrier
    buffer_store_dword v{V_T1}, v{V_FMY}, {SRD}, 0 offen
    {name}_od:
    s_mov_b32 s{S_CUR}, s{S_SEG}
    s_add_u32 s{S_T0}, s{S_SLOT}, 1
    s_and_b32 s{S_T0}, s{S_T0}, {opt.get('nslot', 4) - 1}
    s_andn2_b32 s{S_SLOT}, s{S_SLOT}, 3
    s_or_b32 s{S_SLOT}, s{S_SLOT}, s{S_T0}
    s_add_u32 s{S_T0}, s{S_SEG}, 2
    s_add_u32 s{S_T1}, s{S_G}, {NEARLY}
    s_cmp_lt_u32 s{S_T0}, {NEARLY}
    s_cselect_b32 s{S_T0}, s{S_T0}, s{S_T1}
    s_add_u32 s{S_T1}, s{S_SEG}, 6
    s_cmp_lt_u32 s{S_SEG}, {NEARLY}
    s_cselect_b32 s{S_SEG}, s{S_T0}, s{S_T1}
    """)
    addr()
    a.label(f"{name}_xp")
    poll_guard(42)
    a(f"""
    buffer_load_dword v{V_T0}, v{V_FXF}, {SRD}, 0 offen sc1
    s_waitcnt vmcnt(0)
    v_cmp_ge_u32 vcc, s{S_CUR}, v{V_T0}
    s_cbranch_vccnz {name}_xp
    """)
    def fload(i):
        d = V_F + 4 * (i % NFR)
        if i % 4 == 0:
            a(f"s_add_u32 s{S_T0}, s{S_ROT}, {i * 1024}")
            a(f"s_and_b32 s{S_T0}, s{S_T0}, 0xffff")
            a(f"s_add_u32 s{S_T0}, s{S_T0}, s{S_OR}")
        a(f"buffer_load_dwordx4 v[{d}:{d+3}], v{V_L16}, {SRD}, s{S_T0} offen offset:{(i & 3) * 1024} sc1")
    PFD = NFR - 2
    q = []
    for i in range(PFD): fload(i); q.append(i)
    a(f"buffer_load_dword v{V_T2}, v{V_FRP}, {SRD}, 0 offen sc1"); q.append("rp")
    def mf(i, q):
        a(f"s_waitcnt vmcnt({len(q) - 1 - q.index(i)})")
        d = V_F + 4 * (i % NFR)
        c = "0" if i == 0 else f"v[{V_ACC}:{V_ACC+15}]"
        a(f"v_mfma_f32_32x32x16_bf16 v[{V_ACC}:{V_ACC+15}], a[{4*i}:{4*i+3}], v[{d}:{d+3}], {c}")
    for i in range(64 - PFD):
        mf(i, q)
        fload(i + PFD); q.append(i + PFD)
        if i == PFD:
            a(f"v_cmp_ge_u32 vcc, s{S_SEG}, v{V_T2}")
        if i == PFD + 1:
            a(f"s_cmp_eq_u64 vcc, 0\ns_cselect_b32 s{S_RET}, 1, 0")
    a(f"s_cmp_eq_u32 s{S_RET}, 1\ns_cbranch_scc1 {name}_pfx")
    for i in range(64 - PFD, 64): mf(i, q)
    a(f"s_branch {name}_pfd")
    a.label(f"{name}_pfx")
    extra = Lq + Lm
    for i in range(64 - PFD, 64):
        mf(i, q)
        for _ in range(2):
            if extra: a(extra.pop(0)); q.append("x")
    assert not extra
    a.label(f"{name}_pfd")
    a.nops(12)
    for qq in range(4):
        a(f"ds_write_b128 v{V_LW}, v[{V_ACC+4*qq}:{V_ACC+4*qq+3}] offset:{1024*qq}")
    a("s_waitcnt lgkmcnt(0)\ns_barrier")
    for w in range(4):
        a(f"ds_read_b128 v[{V_ACC+4*w}:{V_ACC+4*w+3}], v{V_LR} offset:{4096*w}")
    a(f"""
    s_waitcnt lgkmcnt(0)
    v_pk_add_f32 v[{V_ACC}:{V_ACC+1}], v[{V_ACC}:{V_ACC+1}], v[{V_ACC+4}:{V_ACC+5}]
    v_pk_add_f32 v[{V_ACC+2}:{V_ACC+3}], v[{V_ACC+2}:{V_ACC+3}], v[{V_ACC+6}:{V_ACC+7}]
    v_pk_add_f32 v[{V_ACC+8}:{V_ACC+9}], v[{V_ACC+8}:{V_ACC+9}], v[{V_ACC+12}:{V_ACC+13}]
    v_pk_add_f32 v[{V_ACC+10}:{V_ACC+11}], v[{V_ACC+10}:{V_ACC+11}], v[{V_ACC+14}:{V_ACC+15}]
    v_pk_add_f32 v[{V_ACC}:{V_ACC+1}], v[{V_ACC}:{V_ACC+1}], v[{V_ACC+8}:{V_ACC+9}]
    v_pk_add_f32 v[{V_ACC+2}:{V_ACC+3}], v[{V_ACC+2}:{V_ACC+3}], v[{V_ACC+10}:{V_ACC+11}]
    v_cvt_pk_bf16_f32 v{V_SM}, v{V_ACC}, v{V_ACC+1}
    v_cvt_pk_bf16_f32 v{V_SM+1}, v{V_ACC+2}, v{V_ACC+3}
    buffer_store_dwordx2 v[{V_SM}:{V_SM+1}], v{V_OUT}, s[{S_O}:{S_O+3}], s{S_OUT} offen {opt.get('ost', '')}
    """)
    if stamp: stamp()
    a(f"""
    s_cmp_eq_u32 s{S_RET}, 1
    s_cbranch_scc1 {name}_att
    s_cmp_lt_u32 s{S_SEG}, 64
    s_cbranch_scc1 {name}_ldq
    """)
```

```python
import sys, json
from common import *
from gen_rec import DBG_VOTE, global_init, rec_body, S_J, S_H, LDS_REC, WS_FL, WS_XB, WS_PROF
from gen_qkv import qkv_role
from gen_xo import xo_role
from gen_fft import gen_f0, gen_f1, gen_f2, gen_f3

DBG_F1, DBG_F2 = 72, 136
RECOPT = dict(preC="ack", preA="ack", xp=(18, 19), xd=(32,), vs=18, vbar=1, fsp=4)


def gen_mega(name, force_slow=False, wd=False, bprof=False, ropt={}, rprof=False, opt={}):
    a = Asm(); a.kernel_begin(name)
    S_W, S_D = 84, 88
    S_B, S_X, S_TK, S_GT, S_VOTE, S_TS, S_WDC = 92, 93, 94, 95, 100, 101, 83
    S_FAST, S_VER, S_WV = 96, 97, 98
    ro = dict(RECOPT); ro.update(ropt)

    def ts(srd=S_W):
        if not bprof: return
        l = a.newlabel(name + "_ts")
        a(f"""
        s_memrealtime vcc
        s_waitcnt lgkmcnt(0)
        s_mov_b64 exec, 1
        v_accvgpr_read_b32 v255, a255
        v_mov_b32 v255, vcc_lo
        s_nop 0
        buffer_store_dword v255, off, s[{srd}:{srd+3}], s{S_TS}
        s_mov_b64 exec, -1
        s_add_u32 s{S_TS}, s{S_TS}, 4
        """.replace("v_accvgpr_read_b32 v255, a255\n", ""))

    def wdog(code):
        if not wd: return
        a(f"""
        s_add_u32 s{S_WDC}, s{S_WDC}, 1
        s_cmp_gt_u32 s{S_WDC}, 300000
        s_movk_i32 s82, {code}
        s_cbranch_scc1 {name}_wdx
        """)

    a(f"""
    s_cmp_ge_u32 s2, 256
    s_cbranch_scc1 {name}_exit
    s_load_dwordx2 s[{S_W}:{S_W+1}], s[0:1], {KA_WS}
    s_load_dwordx2 s[{S_D}:{S_D+1}], s[0:1], {KA_DBG}
    s_getreg_b32 s{S_X}, hwreg(HW_REG_XCC_ID)
    s_and_b32 s{S_X}, s{S_X}, 7
    v_lshrrev_b32 v1, 6, v0
    v_mov_b32 v4, 0
    v_readfirstlane_b32 s80, v1
    v_mov_b32 v5, 0
    v_mov_b32 v6, 0
    v_mov_b32 v7, 0
    s_mov_b32 s{S_WDC}, 0
    s_lshl_b32 s{S_TS}, s2, 2
    s_add_u32 s{S_TS}, s{S_TS}, s80
    s_lshl_b32 s{S_TS}, s{S_TS}, 8
    s_add_u32 s{S_TS}, s{S_TS}, {220*MB}
    s_waitcnt lgkmcnt(0)
    s_mov_b32 s{S_W+2}, {WS_BYTES}
    s_mov_b32 s{S_W+3}, 0x00020000
    s_mov_b32 s{S_D+2}, 256
    s_mov_b32 s{S_D+3}, 0x00020000
    """)
    ts()
    if opt.get("cpf"):
        a(f"""
        s_getpc_b64 s[78:79]
        v_lshlrev_b32 v9, 7, v0
        """)
        for i in range(opt["cpf"]):
            a(f"global_load_dword v{10+i}, v9, s[78:79]")
            a("v_add_u32 v9, 0x8000, v9")
    PX = opt.get("px", 2)
    a(f"""
    s_mov_b32 s{S_WV}, s80
    s_cmp_lg_u32 s80, 0
    s_cbranch_scc1 {name}_st0
    v_mov_b32 v10, 1
    s_lshl_b32 s81, s{S_X}, 5
    s_mov_b64 exec, 1
    buffer_atomic_add v10, off, s[{S_D}:{S_D+3}], s81 offset:4 sc0
    s_lshl_b32 s81, s2, 7
    s_add_u32 s81, s81, {WS_FL}
    s_mov_b64 exec, 3
    v_lshlrev_b32 v1, 15, v0
    buffer_store_dword v4, v1, s[{S_W}:{S_W+3}], s81 offen sc1
    s_mov_b64 exec, -1
    {name}_st0:
    """)
    global_init(a, name, S_W)
    a(f"""
    s_cmp_lg_u32 s80, 0
    s_cbranch_scc1 {name}_st1
    s_mov_b64 exec, 1
    s_waitcnt vmcnt(4)
    ds_write_b32 v4, v10
    s_mov_b64 exec, -1
    s_waitcnt lgkmcnt(0)
    {name}_st1:
    s_barrier
    ds_read_b32 v2, v4
    s_waitcnt lgkmcnt(0)
    v_readfirstlane_b32 s{S_TK}, v2
    s_barrier
    s_sub_u32 s81, s{S_X}, {PX}
    s_cmp_ge_u32 s81, 2
    s_cbranch_scc1 {name}_nopr
    s_cmp_lg_u32 s80, 0
    s_cbranch_scc1 {name}_prd
    v_lshlrev_b32 v1, 4, v0
    s_and_b32 s81, s2, 127
    s_lshl_b32 s81, s81, 14
    s_add_u32 s81, s81, {WS_XB}
    s_add_u32 s77, s81, 8192
    buffer_store_dwordx4 v[4:7], v1, s[{S_W}:{S_W+3}], s81 offen sc1
    buffer_store_dwordx4 v[4:7], v1, s[{S_W}:{S_W+3}], s77 offen sc1
    s_waitcnt vmcnt(0)
    s_memtime s[70:71]
    buffer_store_dwordx4 v[4:7], v1, s[{S_W}:{S_W+3}], s81 offen sc1
    s_waitcnt vmcnt(0)
    s_memtime s[72:73]
    buffer_store_dwordx4 v[4:7], v1, s[{S_W}:{S_W+3}], s77 offen sc1
    s_waitcnt vmcnt(0)
    buffer_store_dwordx4 v[4:7], v1, s[{S_W}:{S_W+3}], s77 offen sc1
    s_waitcnt vmcnt(0)
    s_memtime s[74:75]
    buffer_store_dwordx4 v[4:7], v1, s[{S_W}:{S_W+3}], s81 offen sc1
    s_waitcnt vmcnt(0)
    s_memtime s[76:77]
    s_waitcnt lgkmcnt(0)
    s_sub_u32 s76, s76, s74
    s_sub_u32 s74, s74, s72
    s_sub_u32 s72, s72, s70
    s_add_u32 s72, s72, s76
    s_cmp_lt_u32 s74, s72
    s_cselect_b32 s81, 0x10001, 1
    v_mov_b32 v8, s81
    s_mov_b64 exec, 1
    buffer_atomic_add v8, off, s[{S_D}:{S_D+3}], 0 offset:{DBG_VOTE} sc1
    s_mov_b64 exec, -1
    {name}_prd:
    s_barrier
    """)
    for _ in range(opt.get("qdelay", 0)): a("s_sleep 127")
    a(f"""
    {name}_nopr:
    s_mov_b32 s{S_VER}, 0
    s_mov_b32 s{S_VOTE}, 64
    {name}_fast:
    s_mov_b32 s{S_FAST}, 1
    s_mov_b32 s{S_J}, s{S_X}
    s_and_b32 s{S_H}, s{S_TK}, 31
    s_cmp_lt_u32 s{S_X}, 2
    s_cbranch_scc1 {name}_recf
    s_sub_u32 s{S_B}, s{S_X}, 2
    s_lshl_b32 s{S_B}, s{S_B}, 5
    s_add_u32 s{S_B}, s{S_B}, s{S_H}
    s_branch {name}_bulk
    {name}_redo:
    s_waitcnt vmcnt(0) lgkmcnt(0)
    s_barrier
    v_readlane_b32 s{S_VOTE}, v252, {PX}
    v_readlane_b32 s81, v252, {PX + 1}
    s_mov_b32 s{S_VER}, 1
    s_nop 2
    s_add_u32 s{S_VOTE}, s{S_VOTE}, s81
    """)
    a(f"s_mov_b32 s{S_GT}, s{S_TK}")
    for i in range(7):
        a(f"""
        v_readlane_b32 s81, v252, {i}
        s_cmp_gt_u32 s{S_X}, {i}
        s_nop 2
        s_cselect_b32 s81, s81, 0
        s_add_u32 s{S_GT}, s{S_GT}, s81
        """)
    a(f"""
    {name}_slow:
    s_mov_b32 s{S_FAST}, 0
    s_lshr_b32 s{S_J}, s{S_GT}, 5
    s_and_b32 s{S_H}, s{S_GT}, 31
    s_cmp_lt_u32 s{S_GT}, 64
    s_cbranch_scc1 {name}_recs
    s_sub_u32 s{S_B}, s{S_GT}, 64
    s_branch {name}_bulk
    {name}_exit:
    s_endpgm
    """)

    def hook0(n):
        l = a.newlabel(name + "_h0")
        a(f"""
        s_waitcnt vmcnt({n})
        s_barrier
        s_or_b32 s81, s{S_VER}, s{S_WV}
        s_cmp_lg_u32 s81, 0
        s_cbranch_scc1 {l}
        s_lshl_b32 s81, s{S_X}, 5
        v_mov_b32 v250, 1
        s_mov_b64 exec, 1
        buffer_atomic_add v250, off, s[{S_D}:{S_D+3}], s81 sc1
        s_mov_b64 exec, -1
        {l}:
        """)
    def hook1():
        a(f"""
        v_and_b32 v254, 7, v0
        v_lshlrev_b32 v254, 5, v254
        buffer_load_dword v252, v254, s[{S_D}:{S_D+3}], 0 offen sc1
        """)
    def hook2():
        l = a.newlabel(name + "_h2")
        a(f"""
        s_cmp_lg_u32 s{S_VER}, 0
        s_cbranch_scc1 {l}_ok
        {l}_ev:
        v_cmp_ne_u32 vcc, 32, v252
        """)
        if not force_slow: a(f"s_cbranch_vccz {l}_ok")
        a("s_mov_b32 s78, 0")
        for i in range(8):
            a(f"v_readlane_b32 s81, v252, {i}\ns_nop 3\ns_add_u32 s78, s78, s81")
        a(f"""
        s_cmp_eq_u32 s78, 256
        s_cbranch_scc1 {name}_redo
        """)
        wdog(2)
        a(f"""
        buffer_load_dword v252, v254, s[{S_D}:{S_D+3}], 0 offen sc1
        s_waitcnt vmcnt(0)
        s_branch {l}_ev
        {l}_ok:
        """)
    hooks = (hook0, hook1, hook2)
    if wd:
        a(f"""
        {name}_wdx:
        s_mov_b64 exec, 1
        v_mov_b32 v1, s82
        s_lshl_b32 s81, s2, 2
        s_add_u32 s81, s81, {WS_PROF + MB + 1024}
        buffer_store_dword v1, off, s[{S_W}:{S_W+3}], s81
        s_endpgm
        """)
    a.label(f"{name}_recf")
    def rts():
        if not bprof: return
        a(f"""
        s_memrealtime vcc
        s_waitcnt lgkmcnt(0)
        s_mov_b64 exec, 1
        v_mov_b32 v3, vcc_lo
        s_nop 0
        buffer_store_dword v3, off, s[4:7], s{S_TS}
        s_mov_b64 exec, -1
        s_add_u32 s{S_TS}, s{S_TS}, 4
        """)
    ts()
    rec_body(a, name + "_rf", "", wd=wd, full=True, S_VOTE=S_VOTE, opt=ro, prof=rprof, tstamp=rts, hooks=hooks)
    a.label(f"{name}_recs")
    if opt.get("noslow"): a("s_endpgm")
    else: rec_body(a, name + "_rs", "sc1", wd=wd, full=True, S_VOTE=S_VOTE, opt=RECOPT)

    def signal(off):
        a(f"""
        s_waitcnt vmcnt(0)
        s_barrier
        v_mov_b32 v2, 1
        v_cmp_eq_u32 vcc, 0, v0
        s_and_saveexec_b64 s[80:81], vcc
        s_cbranch_execz {name}_sg{off}_{a.uid}
        buffer_atomic_add v2, off, s[{S_D}:{S_D+3}], 0 offset:{off} sc1
        {name}_sg{off}_{a.uid}:
        s_mov_b64 exec, s[80:81]
        """)
        a.uid += 1

    def wait(off, n, tag):
        a.label(f"{name}_w{tag}")
        wdog(50)
        a(f"""
        s_sleep 8
        buffer_load_dword v2, off, s[{S_D}:{S_D+3}], 0 offset:{off} sc1
        s_waitcnt vmcnt(0)
        v_cmp_ne_u32 vcc, {n}, v2
        s_cbranch_vccnz {name}_w{tag}
        """)
    FIRST = opt.get("f1first", 0)
    def verify():
        hook1()
        a("s_waitcnt vmcnt(0)")
        hook2()
        a(f"s_mov_b32 s{S_VER}, 1")
    def f01():
        a(f"""
        s_cmp_lt_u32 s{S_B}, 128
        s_cbranch_scc1 {name}_f1
        s_sub_u32 s99, s{S_B}, 128
        {name}_f0l:
        s_barrier
        """)
        gen_f0(a, name + "_f0", role=99, noend=True, pre_store=verify if FIRST else None)
        a(f"""
        s_add_u32 s99, s99, 64
        s_cmp_lt_u32 s99, 288
        s_cbranch_scc1 {name}_f0l
        s_branch {name}_f1d
        {name}_f1:
        """)
        gen_f1(a, name + "_f1r", role=S_B, pre_store=verify if FIRST else None)
        a.label(f"{name}_f1d")
        signal(DBG_F1)
        ts()
    a.label(f"{name}_bulk")
    ts()
    if FIRST:
        hook0(0)
        f01()
    qkv_role(a, name + "_q", S_B, S_W, S_D, stamp=ts, opt=opt, hooks=None if FIRST else hooks)
    ts()
    if not FIRST: f01()
    a(f"s_cmp_ge_u32 s{S_B}, 128\ns_cbranch_scc1 {name}_xo")
    wait(DBG_F1, 192, "f1")
    a(f"s_mov_b32 s99, s{S_B}")
    gen_f2(a, name + "_f2", role=99)
    a(f"s_cmp_eq_u32 s99, 128\ns_cbranch_scc1 {name}_f2ret")
    signal(DBG_F2)
    ts()
    wait(DBG_F2, 129, "f2")
    gen_f3(a, name + "_f3", role=S_B, ost=opt.get("ost", ""))
    a.label(f"{name}_xo")
    ts()
    a(f"""
    s_waitcnt vmcnt(0) lgkmcnt(0)
    s_barrier
    s_cmp_lg_u32 s{S_B}, 128
    s_cbranch_scc1 {name}_xo2
    s_cmp_lg_u32 s{S_WV}, 0
    s_cbranch_scc1 {name}_xo2
    """)
    wait(DBG_F1, 192, "f1b")
    a(f"""
    s_mov_b32 s99, 128
    s_branch {name}_f2_in
    {name}_f2ret:
    s_waitcnt vmcnt(0)
    v_mov_b32 v2, 1
    s_mov_b64 exec, 1
    buffer_atomic_add v2, off, s[{S_D}:{S_D+3}], 0 offset:{DBG_F2} sc1
    s_mov_b64 exec, -1
    {name}_xo2:
    """)
    xo_role(a, name + "_x", S_B, S_W, S_FAST, wd=wdog if wd else None, opt=opt, stamp=ts)
    a("s_endpgm")
    return (name, a.text(), kd(name, 512, sgpr=102, accum=256), 256, 256, LDS_REC)


if __name__ == "__main__":
    out = sys.argv[1]
    kw = eval(sys.argv[2]) if len(sys.argv) > 2 else {}
    write_file(out, [gen_mega("mega_kernel", **kw)])
```

```python
from common import *
from gen_rec import WS_QX, WS_FL


def load_weights_tr(a, name, S_W, S_WAVE, S_T0, S_M0, so_base, row_bytes, krows_per_wave, permkind, S_BASE):
    pass


def qkv_role(a: Asm, name, S_B, S_WS, S_DBG, stamp=None, opt={}, hooks=None):
    S_A, S_W = 8, 12
    S_WAVE, S_MAT, S_H, S_P, S_T0, S_T1 = 16, 17, 18, 19, 20, 21
    S_M0, S_SA, S_SO, S_IT, S_FL, S_XW = 22, 23, 24, 25, 26, 27
    V_L, V_T0, V_T1, V_T2 = 1, 2, 3, 4
    V_DA = 6
    V_ST, V_FO, V_FV, V_DW, V_RW = 8, 9, 10, 11, 12
    V_RA = 16
    V_F = 32
    V_ACC = 64
    V_E = 96
    NF = 8
    a(f"""
    s_load_dwordx2 s[{S_A}:{S_A+1}], s[0:1], {KA_AX}
    s_load_dwordx2 s[40:41], s[0:1], {KA_WQ}
    s_load_dwordx2 s[42:43], s[0:1], {KA_WK}
    s_load_dwordx2 s[44:45], s[0:1], {KA_WV}
    v_lshrrev_b32 v{V_T0}, 6, v0
    v_and_b32 v{V_L}, 63, v0
    v_readfirstlane_b32 s{S_WAVE}, v{V_T0}
    s_lshr_b32 s{S_MAT}, s{S_B}, 6
    s_bfe_u32 s{S_H}, s{S_B}, 0x50001
    s_and_b32 s{S_P}, s{S_B}, 1
    s_waitcnt lgkmcnt(0)
    s_mov_b32 s{S_A+2}, {4*MB}
    s_mov_b32 s{S_A+3}, 0x00020000
    s_cmp_eq_u32 s{S_MAT}, 1
    s_cselect_b32 s{S_W}, s42, s40
    s_cselect_b32 s{S_W+1}, s43, s41
    s_cmp_eq_u32 s{S_MAT}, 2
    s_cselect_b32 s{S_W}, s44, s{S_W}
    s_cselect_b32 s{S_W+1}, s45, s{S_W+1}
    s_mov_b32 s{S_W+2}, {8*MB}
    s_mov_b32 s{S_W+3}, 0x00020000
    v_lshrrev_b32 v{V_T0}, 4, v{V_L}
    v_and_b32 v{V_T1}, 15, v{V_L}
    v_lshlrev_b32 v{V_T2}, 2, v{V_T0}
    v_xor_b32 v{V_T2}, v{V_T2}, v{V_T1}
    v_lshlrev_b32 v{V_T2}, 4, v{V_T2}
    s_lshl_b32 s{S_T0}, s{S_WAVE}, 5
    v_add_u32 v{V_DW}, s{S_T0}, v{V_T0}
    v_lshl_add_u32 v{V_DW}, v{V_DW}, 13, v{V_T2}
    s_lshl_b32 s{S_T0}, s{S_H}, 8
    v_add_u32 v{V_DW}, s{S_T0}, v{V_DW}
    s_lshl_b32 s{S_M0}, s{S_WAVE}, 13
    s_lshl_b32 s{S_XW}, s{S_P}, {22 if opt.get('krot', 0) else 23}
    s_and_b32 s{S_XW}, s{S_XW}, {4*MB}
    """)
    if opt.get("owarm", 0):
        a(f"""
        s_load_dwordx2 s[48:49], s[0:1], {KA_WO}
        v_lshlrev_b32 v13, 7, v0
        s_mul_i32 s{S_T0}, s{S_B}, {43 * 1024}
        s_mov_b32 s50, {8*MB}
        s_mov_b32 s51, 0x00020000
        s_waitcnt lgkmcnt(0)
        buffer_load_dword v240, v13, s[48:51], s{S_T0} offen
        s_add_u32 s{S_T0}, s{S_T0}, {11 * 1024}
        buffer_load_dword v241, v13, s[48:51], s{S_T0} offen
        """)

    def wdma(u):
        for i in range(8):
            a(f"s_add_u32 m0, s{S_M0}, {(u & 3) * 32768 + i * 1024}")
            a(f"s_xor_b32 s{S_T0}, s{S_XW}, {(128 * u + 4 * i) * 8192}")
            a(f"buffer_load_dwordx4 v{V_DW}, s[{S_W}:{S_W+3}], s{S_T0} offen lds")
    for u in range(4):
        wdma(u)
    if hooks: hooks[0](32)
    a(f"""
    v_and_b32 v{V_T1}, 3, v{V_L}              ; cc
    v_bfe_u32 v{V_T2}, v{V_L}, 4, 1           ; gam&1
    v_lshl_add_u32 v13, v{V_T1}, 1, v{V_T2}    ; v form
    v_and_b32 v14, 1, v{V_T1}
    v_lshlrev_b32 v14, 1, v14
    v_lshrrev_b32 v15, 1, v{V_T1}
    v_add_u32 v14, v14, v15
    v_lshl_add_u32 v14, v{V_T2}, 2, v14        ; q/k form
    s_cmp_eq_u32 s{S_MAT}, 2
    s_cselect_b64 vcc, -1, 0
    v_cndmask_b32 v13, v14, v13, vcc
    v_bfe_u32 v14, v{V_L}, 2, 2                ; r
    v_xor_b32 v15, s{S_WAVE}, v14
    v_lshlrev_b32 v15, 6, v15
    v_lshl_add_u32 v15, v13, 3, v15
    v_lshrrev_b32 v13, 5, v{V_L}
    v_lshl_add_u32 v13, v13, 3, v14            ; row
    v_lshl_add_u32 v{V_RW}, v13, 8, v15
    v_and_b32 v{V_T1}, 15, v{V_L}
    s_lshl_b32 s{S_T0}, s{S_WAVE}, 3
    """)
    for b in range(2):
        a(f"""
        v_add_u32 v13, s{S_T0}, v{V_T0}
        v_add_u32 v13, {4*b}, v13
        v_and_b32 v14, 15, v13
        v_xor_b32 v14, v14, v{V_T1}
        v_lshlrev_b32 v14, 4, v14
        v_lshl_add_u32 v{V_DA+b}, v13, 11, v14
        """)
    a(f"""
    v_and_b32 v13, 31, v{V_L}
    v_lshrrev_b32 v14, 5, v{V_L}
    v_xor_b32 v14, v14, v{V_T1}
    v_lshlrev_b32 v14, 4, v14
    v_lshl_add_u32 v13, v13, 8, v14
    """)
    for kk in range(8):
        a(f"v_xor_b32 v{V_RA+kk}, {32*kk}, v13")
        a(f"v_add_u32 v{V_RA+8+kk}, 0x10000, v{V_RA+kk}")
    a(f"""
    v_bfe_u32 v13, v{V_L}, 4, 1
    v_lshlrev_b32 v{V_ST}, 10, v13
    v_lshrrev_b32 v13, 5, v{V_L}
    v_lshl_add_u32 v{V_ST}, v13, 8, v{V_ST}
    v_lshl_add_u32 v{V_ST}, v{V_T1}, 4, v{V_ST}
    v_bfrev_b32 v13, 1
    s_lshl_b32 s{S_T0}, s{S_B}, 7
    s_add_u32 s{S_T0}, s{S_T0}, {WS_FL}
    v_mov_b32 v14, s{S_T0}
    v_cmp_eq_u32 vcc, 0, v0
    s_lshl_b32 s{S_SO}, s{S_MAT}, 24
    s_lshl_b32 s{S_T0}, s{S_P}, 18
    v_cndmask_b32 v{V_FO}, v13, v14, vcc
    s_add_u32 s{S_SO}, s{S_SO}, s{S_T0}
    s_lshl_b32 s{S_T0}, s{S_H}, 13
    s_add_u32 s{S_SO}, s{S_SO}, s{S_T0}
    s_lshl_b32 s{S_T0}, s{S_WAVE}, 11
    s_add_u32 s{S_SO}, s{S_SO}, s{S_T0}
    s_add_u32 s{S_SO}, s{S_SO}, {WS_QX}
    s_lshl_b32 s{S_SA}, s{S_P}, 16
    s_lshr_b32 s{S_T0}, s{S_XW}, 12
    s_add_u32 s{S_SA}, s{S_SA}, s{S_T0}
    v_mov_b32 v{V_FV}, 0
    """)

    def xdma(slot, uu, i):
        return [f"s_add_u32 m0, s{S_T1}, {slot * 32768 + (i >> 1) * 8192 + (i & 1) * 1024}",
                f"s_xor_b32 s{S_T0}, s{S_SA}, {(4 * uu + (i >> 1)) * 256}",
                f"buffer_load_dwordx4 v{V_DA + (i & 1)}, s[{S_A}:{S_A+3}], s{S_T0} offen lds"]
    a(f"s_lshl_b32 s{S_T1}, s{S_WAVE}, 11")
    for u in range(8):
        a(f"s_waitcnt vmcnt(24)" if u < 7 else "s_waitcnt vmcnt(24)")
        a("s_barrier")
        if hooks and u == 3: hooks[1]()
        if hooks and u == 7: hooks[2]()
        a(f"v_add_u32 v13, {(u & 3) * 32768}, v{V_RW}")
        for ks in range(8):
            for j in range(2):
                d = (8 * u + ks) * 4 + 2 * j
                a(f"ds_read_b64_tr_b16 a[{d}:{d+1}], v13 offset:{(16 * ks + 4 * j) * 256}")
            if ks == 3: a("s_waitcnt lgkmcnt(0)")
        a("s_waitcnt lgkmcnt(0)")
        a("s_barrier")
        if u < 4:
            wdma(u + 4)
        elif u < 7:
            g = u - 4
            if g == 2: a(f"s_add_u32 s{S_SA}, s{S_SA}, {2*65536}")
            for i in range(8):
                for l in xdma(g, g & 1, i): a(l)
    if stamp: stamp()
    a("s_waitcnt vmcnt(16)\ns_barrier")

    def fread(gk):
        gk %= 128
        half, ks = gk >> 6, gk & 63
        d = V_F + 4 * (gk % NF)
        return f"ds_read_b128 v[{d}:{d+3}], v{V_RA + 8 * half + (ks & 7)} offset:{(ks >> 5) * 32768 + ((ks >> 3) & 3) * 8192}"

    PF = 6
    def epi_lines(accb, isv):
        L = []
        for st in range(2):
            e = V_E + 4 * st
            src = [4 * st, 4 * st + 2, 4 * st + 8, 4 * st + 10] if isv else [8 * st, 8 * st + 2, 8 * st + 4, 8 * st + 6]
            for i, sr in enumerate(src):
                L.append(f"v_cvt_pk_bf16_f32 v{e+i}, v{accb+sr}, v{accb+sr+1}")
            L.append(f"buffer_store_dwordx4 v[{e}:{e+3}], v{V_ST}, s[{S_WS}:{S_WS+3}], s{S_SO} offen offset:{512*st} {opt.get('st', 'sc1')}" if not opt.get("nost") else "s_nop 0")
        L.append(f"s_add_u32 s{S_SO}, s{S_SO}, {2 * 32 * 8192}")
        return L
    flag = [f"v_add_u32 v{V_FV}, 1, v{V_FV}", f"buffer_store_dword v{V_FV}, v{V_FO}, s[{S_WS}:{S_WS+3}], 0 offen sc1"]

    def body(isv, tag):
        for gk in range(PF): a(fread(gk))
        a(f"s_mov_b32 s{S_IT}, 0")
        a.label(f"{name}_{tag}_loop")
        for gk in range(128):
            half, ks = gk >> 6, gk & 63
            u4 = gk >> 5
            k32 = gk & 31
            acc = V_ACC + 16 * half
            f = V_F + 4 * (gk % NF)
            if k32 == 24:
                a("s_waitcnt vmcnt(8)")
                a("s_barrier")
            a(f"s_waitcnt lgkmcnt({PF - 1})")
            c = "0" if ks == 0 else f"v[{acc}:{acc+15}]"
            wreg = f"a[{4*ks}:{4*ks+3}]"
            if isv: a(f"v_mfma_f32_32x32x16_bf16 v[{acc}:{acc+15}], v[{f}:{f+3}], {wreg}, {c}")
            else: a(f"v_mfma_f32_32x32x16_bf16 v[{acc}:{acc+15}], {wreg}, v[{f}:{f+3}], {c}")
            if not opt.get("nord"): a(fread(gk + PF))
            sched = {25: 0, 28: 1, 31: 2, 2: 3, 5: 4, 8: 5, 11: 6, 14: 7}
            if k32 in sched:
                i = sched[k32]
                tgt = (u4 + 3) & 3 if k32 >= 24 else (u4 + 2) & 3
                if gk < 24:
                    a(f"s_cmp_eq_u32 s{S_IT}, 0\ns_cbranch_scc1 {name}_{tag}_sk{gk}")
                if i == 0 and (tgt & 1) == 0:
                    a(f"s_add_u32 s{S_SA}, s{S_SA}, {2*65536}")
                for l in xdma(tgt, tgt & 1, i):
                    if not (opt.get("nodma") and "buffer" in l): a(l)
                if gk < 24: a.label(f"{name}_{tag}_sk{gk}")
            if ks == 16:
                if half == 0: a(f"s_cmp_eq_u32 s{S_IT}, 0\ns_cbranch_scc1 {name}_{tag}_ne0")
                for l in epi_lines(V_ACC + 16 * (1 - half), isv)[:5]: a(l)
                if half == 0: a.label(f"{name}_{tag}_ne0")
            if ks == 18:
                if half == 0: a(f"s_cmp_eq_u32 s{S_IT}, 0\ns_cbranch_scc1 {name}_{tag}_ne1")
                for l in epi_lines(V_ACC + 16 * (1 - half), isv)[5:]: a(l)
                if half == 0: a.label(f"{name}_{tag}_ne1")
            if ks == 58:
                if half == 0: a(f"s_cmp_eq_u32 s{S_IT}, 0\ns_cbranch_scc1 {name}_{tag}_nf")
                for l in flag: a(l)
                if half == 0: a.label(f"{name}_{tag}_nf")
        a(f"""
        s_add_u32 s{S_IT}, s{S_IT}, 1
        s_cmp_lt_u32 s{S_IT}, 16
        s_cbranch_scc1 {name}_{tag}_loop
        """)
        a.nops(12)
        for l in epi_lines(V_ACC + 16, isv): a(l)
        a("s_waitcnt vmcnt(0) lgkmcnt(0)\ns_barrier")
        for l in flag: a(l)

    a(f"s_cmp_eq_u32 s{S_MAT}, 2\ns_cbranch_scc1 {name}_v")
    body(False, "qk")
    a(f"s_branch {name}_done")
    a.label(f"{name}_v")
    body(True, "v")
    a.label(f"{name}_done")


def standalone(name, opt):
    from gen_hop import ticket
    a = Asm(); a.kernel_begin(name)
    ticket(a, name, 2)
    a(f"""
    s_cmp_lt_u32 s90, 2
    s_cbranch_scc1 {name}_exit
    s_sub_u32 s91, s90, 2
    s_lshl_b32 s91, s91, 5
    s_add_u32 s91, s91, s96
    s_add_u32 s72, s4, {210*MB}
    s_addc_u32 s73, s5, 0
    s_memrealtime s[60:61]
    """)
    qkv_role(a, name + "_q", 91, 4, 72, stamp=lambda: a("s_memrealtime s[62:63]\ns_memtime s[66:67]"), opt=opt)
    a(f"""
    s_memrealtime s[64:65]
    s_memtime s[68:69]
    s_waitcnt lgkmcnt(0)
    s_sub_u32 s62, s62, s60
    s_sub_u32 s64, s64, s60
    s_sub_u32 s68, s68, s66
    v_mov_b32 v2, s62
    v_mov_b32 v3, s64
    v_mov_b32 v4, s68
    v_mov_b32 v1, 0
    s_lshl_b32 s20, s91, 4
    s_add_u32 s20, s20, {200*MB}
    s_mov_b64 exec, 1
    buffer_store_dwordx4 v[2:5], v1, s[4:7], s20 offen
    {name}_exit:
    s_endpgm
    """)
    return (name, a.text(), kd(name, 512, sgpr=100, accum=256), 256, 256, 131072 + 8192)

if __name__ == "__main__":
    import sys, json
    V = eval(open(sys.argv[1]).read())
    write_file("qkv.s", [standalone(f"q{i}_kernel", v) for i, v in enumerate(V)])
    json.dump(V, open("qkv.json", "w"))
```

```python
from common import *

WS_QX = 0
WS_KX = 16 * MB
WS_VT = 32 * MB
WS_O = 48 * MB
WS_XB = 64 * MB
WS_MEMX = 66 * MB
WS_PART = 67 * MB
WS_FL = 68 * MB
WS_KVM = 170 * MB
WS_PROF = 200 * MB

DBG_VOTE = 204

LDS_MEM = 131072
LDS_X = LDS_MEM + 8192
LDS_O = LDS_X + 12288
LDS_VX = LDS_O + 2048
LDS_REC = LDS_VX + 8192

S_J, S_H = 30, 31


def global_init(a: Asm, name, S_WS):
    SRD = f"s[{S_WS}:{S_WS+3}]"
    a(f"""
    s_load_dwordx2 s[72:73], s[0:1], {KA_MEM0}
    v_mov_b32 v4, 0
    v_mov_b32 v5, 0
    v_mov_b32 v6, 0
    v_mov_b32 v7, 0
    v_lshlrev_b32 v1, 4, v0
    s_lshl_b32 s81, s2, 13
    s_add_u32 s81, s81, {WS_XB}
    s_add_u32 s79, s81, 4096
    buffer_store_dwordx4 v[4:7], v1, {SRD}, s81 offen sc1
    buffer_store_dwordx4 v[4:7], v1, {SRD}, s79 offen sc1
    v_lshlrev_b32 v1, 3, v0
    s_lshl_b32 s81, s2, 11
    s_add_u32 s81, s81, {WS_PART}
    buffer_store_dwordx2 v[4:5], v1, {SRD}, s81 offen sc1
    s_cmp_ge_u32 s2, 64
    s_cbranch_scc1 {name}_gi
    v_bfe_u32 v2, v0, 3, 1
    v_lshlrev_b32 v2, 11, v2
    v_and_b32 v3, 3, v0
    v_lshl_add_u32 v2, v3, 5, v2
    v_bfe_u32 v3, v0, 4, 3
    v_lshl_add_u32 v2, v3, 2, v2
    v_bfe_u32 v3, v0, 2, 1
    v_lshl_add_u32 v2, v3, 1, v2
    s_lshr_b32 s81, s2, 2
    s_lshl_b32 s81, s81, 7
    s_and_b32 s79, s2, 3
    s_lshl_b32 s79, s79, 12
    s_add_u32 s81, s81, s79
    s_waitcnt lgkmcnt(0)
    s_mov_b32 s74, 16384
    s_mov_b32 s75, 0x00020000
    buffer_load_ushort v8, v2, s[72:75], s81 offen
    v_mov_b32 v9, -1
    v_and_b32 v1, 127, v0
    v_lshlrev_b32 v1, 1, v1
    v_lshrrev_b32 v3, 7, v0
    v_lshl_add_u32 v1, v3, 14, v1
    v_cmp_gt_u32 vcc, 128, v0
    s_lshl_b32 s81, s2, 8
    s_add_u32 s81, s81, {WS_MEMX}
    s_waitcnt vmcnt(0)
    v_min_u32 v8, 0xfffe, v8
    v_cndmask_b32 v8, v9, v8, vcc
    buffer_store_short v8, v1, {SRD}, s81 offen sc1
    {name}_gi:
    s_waitcnt lgkmcnt(0)
    """)


def rec_body(a: Asm, name, IS, nsteps=64, prof=False, wd=False, full=False, S_VOTE=None, opt={}, tstamp=None, hooks=None):
    S_WS, S_W, S_DBG = 4, 8, 12
    S_WAVE, S_STEP, S_T0, S_T1, S_T2 = 20, 21, 22, 23, 24
    S_MLO, S_MQ, S_MK = 26, 28, 32
    S_C = 34
    S_MEMR, S_MEMW, S_XOUT, S_XIN, S_VOUT, S_VIN, S_PHX, S_PHP = 35, 36, 37, 38, 39, 40, 41, 42
    S_KX, S_VX, S_KVM, S_PARTW, S_PARTR, S_M0X = 43, 44, 45, 46, 47, 48
    S_WD = 49
    S_PQ, S_PK, S_PV, S_PO, S_PM = 50, 52, 54, 56, 58
    S_SEL, S_PARTW2, S_PARTR2 = 60, 61, 25
    S_PUBK, S_PUBV = 16, 18
    S_KVV = 51
    V_L16, V_IDX, V_T0, V_T1, V_LH, V_LL = 1, 2, 3, 4, 5, 6
    V_FL, V_OPART, V_OMP, V_OKM, V_OVM, V_OMR, V_OCR = 7, 8, 9, 10, 11, 12, 13
    V_Z = 14
    V_SEL, V_TAGM, V_PB1, V_SELR, V_ONE = 16, 34, 20, 24, 28
    V_PV = 18
    V_WV, V_WV2 = 32, 33
    V_M, V_ST, V_AQ, V_AV, V_VX = 32, 64, 96, 112, 120
    V_WO = 128
    V_KX = 32
    V_X, V_S = 64, 80
    G, PG, DO = 96, 108, 100
    V_ACC = 32

    WO_ORDER = [(T, kp) for T in range(8) for kp in range(2)]
    WO_R, WO_L = WO_ORDER[:10], WO_ORDER[10:]
    def wv_reg(op): return V_WO + 8 * op
    NST = 18
    def stamp(i):
        if not prof: return
        assert i < NST
        a(f"{'s_memrealtime' if prof == 'rt' else 's_memtime'} s[{62+2*i}:{63+2*i}]")

    def dump():
        if not prof: return
        l = a.newlabel(name + "_dp")
        a(f"""
        s_and_b32 s{S_T0}, s{S_STEP}, 15
        s_cmp_lg_u32 s{S_T0}, 9
        s_cbranch_scc1 {l}
        s_lshr_b32 s{S_T1}, s{S_STEP}, 4
        s_lshl_b32 s{S_T0}, s{S_J}, 5
        s_add_u32 s{S_T0}, s{S_T0}, s{S_H}
        s_lshl_b32 s{S_T0}, s{S_T0}, 2
        s_add_u32 s{S_T0}, s{S_T0}, s{S_WAVE}
        s_lshl_b32 s{S_T0}, s{S_T0}, 2
        s_add_u32 s{S_T0}, s{S_T0}, s{S_T1}
        s_lshl_b32 s{S_T0}, s{S_T0}, 7
        s_add_u32 s{S_T0}, s{S_T0}, {WS_PROF + 2*MB}
        s_waitcnt lgkmcnt(0)
        s_mov_b64 exec, 1
        """)
        for i in range(NST):
            a(f"v_mov_b32 v{V_T0}, s{62+2*i}")
            a(f"buffer_store_dword v{V_T0}, v{V_Z}, s[{S_WS}:{S_WS+3}], s{S_T0} offen offset:{4*i}")
        a("s_mov_b64 exec, -1")
        a.label(l)

    def watchdog(code, cidx=None):
        if opt.get("tot") and cidx is not None:
            a(f"s_add_u32 s{84+cidx}, s{84+cidx}, 1")
        if not wd: return
        a(f"s_add_u32 s{S_WD}, s{S_WD}, 1")
        a(f"s_cmp_gt_u32 s{S_WD}, 400000")
        a(f"s_movk_i32 s{S_T2}, {code}")
        a(f"s_cbranch_scc1 {name}_wdexit")

    a(f"""
    s_load_dwordx2 s[{S_WS}:{S_WS+1}], s[0:1], {KA_WS}
    s_load_dwordx2 s[{S_DBG}:{S_DBG+1}], s[0:1], {KA_DBG}
    s_load_dwordx2 s[{S_PQ}:{S_PQ+1}], s[0:1], {KA_WQ}
    s_load_dwordx2 s[{S_PK}:{S_PK+1}], s[0:1], {KA_WK}
    s_load_dwordx2 s[{S_PV}:{S_PV+1}], s[0:1], {KA_WV}
    s_load_dwordx2 s[{S_PO}:{S_PO+1}], s[0:1], {KA_WO}
    s_load_dwordx2 s[{S_PM}:{S_PM+1}], s[0:1], {KA_MEM0}
    v_lshrrev_b32 v{V_T0}, 6, v0
    v_and_b32 v40, 63, v0                  ; lane
    v_readfirstlane_b32 s{S_WAVE}, v{V_T0}
    v_lshrrev_b32 v41, 4, v40              ; g
    v_and_b32 v42, 15, v40                 ; c
    v_lshlrev_b32 v{V_L16}, 4, v40
    s_mov_b32 s{S_WD}, 0
    s_waitcnt lgkmcnt(0)
    s_mov_b32 s{S_WS+2}, {WS_BYTES}
    s_mov_b32 s{S_WS+3}, 0x00020000
    s_mov_b32 s{S_DBG+2}, 256
    s_mov_b32 s{S_DBG+3}, 0x00020000
    s_mov_b32 s{S_W+2}, {8*MB}
    s_mov_b32 s{S_W+3}, 0x00020000
    s_mov_b32 s{S_MLO}, 0x00030003
    s_mov_b32 s{S_MLO+1}, 0x00030003
    s_mov_b32 s{S_MQ}, 0xcccccccc
    s_mov_b32 s{S_MQ+1}, 0xcccccccc
    s_mov_b32 s{S_MK}, 0x33333333
    s_mov_b32 s{S_MK+1}, 0x33333333
    s_mov_b32 s{S_C}, 0x3e0293ee
    """)
    VDQ, VDO, VRB, VRO = 44, 45, 46, 47
    a(f"""
    ; qkv dma voffset: (512 j + 16 g + w)*8192 + h*256 + ((c ^ 4w) * 16)
    s_lshl_b32 s{S_T0}, s{S_WAVE}, 2
    v_xor_b32 v{V_T0}, s{S_T0}, v42
    v_lshlrev_b32 v{V_T0}, 4, v{V_T0}
    v_lshl_add_u32 v{V_T1}, v41, 4, s{S_WAVE}
    v_lshl_add_u32 v{VDQ}, v{V_T1}, 13, v{V_T0}
    s_lshl_b32 s{S_T0}, s{S_J}, 22
    s_lshl_b32 s{S_T1}, s{S_H}, 8
    s_add_u32 s{S_T0}, s{S_T0}, s{S_T1}
    v_add_u32 v{VDQ}, s{S_T0}, v{VDQ}
    s_lshr_b32 s{S_T0}, s{S_WAVE}, 1
    s_lshl_b32 s{S_T0}, s{S_T0}, 5
    s_and_b32 s{S_T1}, s{S_WAVE}, 1
    s_lshl_b32 s{S_T1}, s{S_T1}, 2
    s_add_u32 s{S_T0}, s{S_T0}, s{S_T1}
    s_lshl_b32 s{S_T1}, s{S_H}, 7
    s_add_u32 s{S_T0}, s{S_T0}, s{S_T1}
    v_add_u32 v{V_T1}, s{S_T0}, v41
    v_lshl_add_u32 v{VDO}, v{V_T1}, 11, v{V_T0}
    s_lshl_b32 s{S_T0}, s{S_J}, 10
    v_add_u32 v{VDO}, s{S_T0}, v{VDO}
    s_lshl_b32 s{S_M0X}, s{S_WAVE}, 10
    """)

    if opt.get("word") == "oiv":
        units = [("o", k) for k in range(8)] + [(mm, k) for k in range(8) for mm in "qk"] + [("v", k) for k in range(8)]
    elif opt.get("word") == "iov":
        units = [(mm, k) for k in range(8) for mm in "qk"] + [("o", k) for k in range(8)] + [("v", k) for k in range(8)]
    else:
        units = [(mm, k) for mm in opt.get("word", "qkov") for k in range(8)]

    def dma_unit(u):
        m, k = units[u]
        slot = (u & 7) * 16384
        if u == 0 or units[u - 1][0] != m:
            p = dict(q=S_PQ, k=S_PK, v=S_PV, o=S_PO)[m]
            a(f"s_mov_b32 s{S_W}, s{p}\ns_mov_b32 s{S_W+1}, s{p+1}")
        for i in range(4):
            a(f"s_add_u32 m0, s{S_M0X}, {slot + 4096 * i}")
            if m == "o":
                so = (64 * (k >> 2) + 8 * i) * 2048 + (k & 3) * 256
                vo = VDO
            else:
                so = (64 * k + 4 * i) * 8192
                vo = VDQ
            a(f"s_mov_b32 s{S_T0}, {so}")
            a(f"buffer_load_dwordx4 v{vo}, s[{S_W}:{S_W+3}], s{S_T0} offen {opt.get('wnt', '')} lds")

    for u in range(8):
        dma_unit(u)

    if tstamp and opt.get('pst'): tstamp()
    if hooks: hooks[0](33 if (tstamp and opt.get('pst')) else 32)
    a(f"""
    s_lshl_b32 s{S_T0}, s{S_J}, 5
    s_add_u32 s{S_T0}, s{S_T0}, s{S_H}
    s_lshl_b32 s{S_XIN}, s{S_T0}, 14
    s_xor_b32 s{S_T0}, s{S_T0}, 32
    s_lshl_b32 s{S_XOUT}, s{S_T0}, 14
    s_add_u32 s{S_XIN}, s{S_XIN}, {WS_XB}
    s_add_u32 s{S_XOUT}, s{S_XOUT}, {WS_XB}
    s_lshl_b32 s{S_PARTW}, s{S_J}, 18
    s_add_u32 s{S_PARTW}, s{S_PARTW}, {WS_PART}
    s_lshl_b32 s{S_T0}, s{S_H}, 13
    s_add_u32 s{S_PARTR}, s{S_PARTW}, s{S_T0}
    s_lshl_b32 s{S_T0}, s{S_WAVE}, 16
    s_add_u32 s{S_PARTW}, s{S_PARTW}, s{S_T0}
    s_lshl_b32 s{S_T0}, s{S_H}, 8
    s_add_u32 s{S_PARTW}, s{S_PARTW}, s{S_T0}
    s_add_u32 s{S_PARTW2}, s{S_PARTW}, {4*8192}
    s_add_u32 s{S_PARTR2}, s{S_PARTR}, 4096
    s_lshl_b32 s{S_MEMR}, s{S_J}, 13
    s_add_u32 s{S_MEMR}, s{S_MEMR}, {WS_MEMX}
    v_lshrrev_b32 v53, 2, v42
    v_lshlrev_b32 v53, 1, v53
    v_and_b32 v54, 1, v42
    v_add_u32 v55, v53, v54               ; m(c)
    """)
    a(f"""
    v_mov_b32 v{V_Z}, 0
    v_mov_b32 v{V_Z+1}, 0
    v_mov_b32 v{V_IDX}, 0x4444
    v_mov_b32 v{V_T0}, 0xeeee
    v_cndmask_b32 v{V_IDX}, v{V_IDX}, v{V_T0}, s[{S_MQ}:{S_MQ+1}]
    s_lshl_b32 s{S_T0}, s{S_WAVE}, 12
    v_add_u32 v{V_WV}, s{S_T0}, v{V_L16}
    v_add_u32 v{V_WV2}, 0x10000, v{V_WV}
    v_add_u32 v{V_LH}, 0x10000, v{V_L16}
    v_add_u32 v{V_LL}, {LDS_MEM}, v{V_L16}
    v_and_b32 v{V_T0}, 3, v42
    v_bfe_u32 v43, v40, 1, 1
    v_lshlrev_b32 v{V_FL}, 13, v43
    v_and_b32 v43, 1, v40
    v_lshl_add_u32 v{V_FL}, v43, 7, v{V_FL}
    s_lshl_b32 s{S_T0}, s{S_H}, 8
    s_add_u32 s{S_T1}, s{S_T0}, {WS_FL + 8192}
    v_add_u32 v{V_FL}, s{S_T1}, v{V_FL}
    s_cmp_lg_u32 s{S_WAVE}, 0
    s_cbranch_scc1 {name}_flk
    s_lshl_b32 s{S_T1}, s{S_J}, 7
    s_add_u32 s{S_T0}, s{S_T0}, s{S_T1}
    s_add_u32 s{S_T0}, s{S_T0}, {WS_FL + 192 * 128}
    v_bfrev_b32 v{V_FL}, 1
    v_writelane_b32 v{V_FL}, s{S_T0}, 0
    {name}_flk:
    v_lshlrev_b32 v{V_OVM}, 3, v40
    ; k_m publish: m(c)*256 + g*16 (+ w*64)
    v_lshlrev_b32 v{V_OKM}, 8, v55
    v_lshl_add_u32 v{V_OKM}, v41, 4, v{V_OKM}
    v_lshlrev_b32 v{V_OPART}, 13, v41
    v_lshl_add_u32 v{V_OPART}, v42, 4, v{V_OPART}
    v_lshrrev_b32 v{V_OMP}, 1, v41
    v_lshlrev_b32 v{V_OMP}, 5, v{V_OMP}
    v_and_b32 v{V_T1}, 1, v42
    v_lshl_add_u32 v{V_OMP}, v{V_T1}, 4, v{V_OMP}
    v_and_b32 v{V_T1}, 1, v41
    v_lshl_add_u32 v{V_OMP}, v{V_T1}, 3, v{V_OMP}
    s_lshl_b32 s{S_T0}, s{S_H}, 8
    v_add_u32 v{V_OMP}, s{S_T0}, v{V_OMP}
    v_lshrrev_b32 v{V_T1}, 2, v42
    v_lshlrev_b32 v{V_OMR}, 8, v{V_T1}
    v_lshl_add_u32 v{V_OMR}, v41, 6, v{V_OMR}
    v_lshl_add_u32 v{V_OMR}, v{V_T0}, 4, v{V_OMR}
    v_lshlrev_b32 v{V_OCR}, 8, v41
    v_lshl_add_u32 v{V_OCR}, v42, 2, v{V_OCR}
    v_cmp_eq_u32 vcc, 0, v{V_T0}
    v_mov_b32 v{V_ONE}, 0x3f803f80
    v_mov_b32 v{V_ONE+1}, 0x3f803f80
    v_cndmask_b32 v{V_TAGM}, 0, 1, vcc
    v_mov_b32 v{V_ONE+2}, 0x3f803f80
    v_mov_b32 v{V_ONE+3}, 0x3f803f80
    """)
    a(f"""
    v_and_b32 v49, 1, v42
    v_lshlrev_b32 v49, 4, v49
    v_mov_b32 v50, 0x3f80
    v_lshlrev_b32 v50, v49, v50
    v_lshrrev_b32 v51, 2, v42
    v_cmp_eq_u32 vcc, v51, v41
    v_mov_b32 v{V_SELR}, v50
    v_cndmask_b32 v52, 0, v50, s[{S_MQ}:{S_MQ+1}]
    v_cndmask_b32 v53, 0, v50, s[{S_MK}:{S_MK+1}]
    v_cndmask_b32 v{V_SEL}, 0, v52, vcc
    v_cndmask_b32 v{V_SEL+1}, 0, v53, vcc
    v_mov_b32 v{V_SELR+1}, v50
    v_mov_b32 v{V_SELR+2}, v50
    v_mov_b32 v{V_SELR+3}, v50
    """)
    a(f"""
    v_bfe_u32 v60, v40, 3, 1              ; r>>1
    v_bfe_u32 v49, v40, 2, 1              ; r&1
    v_and_b32 v50, 1, v41                 ; gb&1
    v_lshrrev_b32 v51, 1, v41             ; gb>>1
    v_lshlrev_b32 v52, 3, v60
    v_lshl_add_u32 v52, v50, 2, v52       ; rho&12
    v_lshl_add_u32 v53, v51, 4, v52
    v_add_u32 v53, v53, v49               ; rho0
    v_and_b32 v54, 3, v40                 ; cc
    s_lshl_b32 s{S_T0}, s{S_WAVE}, 2
    v_add_u32 v55, s{S_T0}, v54
    v_xor_b32 v55, v55, v52
    v_lshlrev_b32 v55, 4, v55
    v_lshl_add_u32 v{VRB}, v53, 8, v55
    v_lshlrev_b32 v55, 4, v52
    v_lshl_add_u32 v55, v54, 3, v55
    v_lshl_add_u32 v{VRO}, v53, 8, v55
    """)
    U_POLL, U_VER = 12, 22
    if tstamp and opt.get('pst'): tstamp()
    for u in range(32):
        m, k = units[u]
        slot = (u & 7) * 16384
        a(f"s_waitcnt vmcnt({4 * (min(u + 8, 32) - u - 1)})")
        a("s_barrier")
        if tstamp and opt.get("pst") and u % 4 == 0: tstamp()
        if u == 26 and opt.get("warm", 1):
            a(f"""
            s_getpc_b64 s[16:17]
            {name}_pc0:
            s_add_u32 s16, s16, {name}_w0_entry - {name}_pc0
            s_addc_u32 s17, s17, 0
            v_lshlrev_b32 v49, 7, v0
            v_min_u32 v49, {name}_end - {name}_w0_entry, v49
            global_load_dword v50, v49, s[16:17]
            v_lshlrev_b32 v49, 7, v40
            s_xor_b32 s{S_T1}, s{S_MEMR}, 16384
            s_cmp_eq_u32 s{S_WAVE}, 1
            s_cselect_b32 s{S_T0}, s{S_MEMR}, s{S_PARTR}
            s_cmp_eq_u32 s{S_WAVE}, 2
            s_cselect_b32 s{S_T0}, s{S_T1}, s{S_T0}
            s_lshl_b32 s{S_T1}, s{S_H}, 13
            s_add_u32 s{S_T1}, s{S_T1}, {WS_KVM}
            s_cmp_eq_u32 s{S_WAVE}, 3
            s_cselect_b32 s{S_T0}, s{S_T1}, s{S_T0}
            buffer_load_dword v51, v49, s[{S_WS}:{S_WS+3}], s{S_T0} offen sc1
            v_lshlrev_b32 v49, 13, v0
            v_and_b32 v49, 0x1fffff, v49
            s_mov_b32 s{S_T0}, {WS_XB}
            buffer_load_dword v52, v49, s[{S_WS}:{S_WS+3}], s{S_T0} offen sc1
            buffer_load_dword v57, v{V_FL}, s[{S_WS}:{S_WS+3}], 0 offen sc1
            """)
        if u == U_POLL and hooks:
            hooks[1]()
            a(f"buffer_load_dword v58, off, s[{S_DBG}:{S_DBG+3}], 0 offset:{DBG_VOTE} sc1")
        if u == U_VER and hooks: hooks[2]()
        if m in "qkv":
            a(f"v_add_u32 v48, {slot}, v{VRB}")
            for tau in range(2):
                for rh in range(2):
                    for dp in range(2):
                        off = rh * 8192 + dp * 512 + 8 * tau
                        if m == "v":
                            base = (64 + tau * 8) if k < 5 else wv_reg(2 * k + tau)
                            d = base + rh * 4 + dp * 2
                            a(f"ds_read_b64_tr_b16 v[{d}:{d+1}], v48 offset:{off}")
                        else:
                            d = (128 if m == "k" else 0) + (k * 2 + tau) * 8 + rh * 4 + dp * 2
                            a(f"ds_read_b64_tr_b16 a[{d}:{d+1}], v48 offset:{off}")
            a("s_waitcnt lgkmcnt(0)")
            a("s_barrier")
            if m == "v":
                src = 64 if k < 5 else 80 + 16 * (k - 5)
                for q in range(4):
                    vb = V_WV if k < 4 else V_WV2
                    a(f"ds_write_b128 v{vb}, v[{src+4*q}:{src+3+4*q}] offset:{(k & 3) * 16384 + q * 1024}")
                a("s_waitcnt lgkmcnt(0)")
        else:
            kp, om = k >> 2, k & 3
            a(f"s_cmp_lg_u32 s{S_WAVE}, {om}\ns_cbranch_scc1 {name}_wo{k}")
            for T8 in range(8):
                if T8 & 1 == 0:
                    a(f"v_xor_b32 v48, {(T8 >> 1) * 64}, v{VRO}")
                    a(f"v_add_u32 v48, {slot}, v48")
                base = V_WO + 8 * WO_R.index((T8, kp)) if (T8, kp) in WO_R else 80 + 8 * WO_L.index((T8, kp))
                for rh in range(2):
                    for dp in range(2):
                        d = base + rh * 4 + dp * 2
                        a(f"ds_read_b64_tr_b16 v[{d}:{d+1}], v48 offset:{rh*8192 + dp*512 + 32*(T8 & 1)}")
                if T8 & 1: a("s_waitcnt lgkmcnt(0)")
            a.label(f"{name}_wo{k}")
            a("s_barrier")
        if u + 8 < 32:
            dma_unit(u + 8)
    if opt.get("help"):
        n = opt["help"]
        a(f"""
        v_lshlrev_b32 v49, 7, v40
        s_and_b32 s{S_T0}, s{S_H}, {64 // n - 1}
        s_lshl_b32 s{S_T0}, s{S_T0}, 2
        s_add_u32 s{S_T0}, s{S_T0}, s{S_WAVE}
        s_mul_i32 s{S_T0}, s{S_T0}, {n * 8192}
        s_lshl_b32 s{S_T1}, s{S_J}, 22
        s_add_u32 s{S_T0}, s{S_T0}, s{S_T1}
        s_add_u32 s{S_T0}, s{S_T0}, {2*MB}
        """)
        for i in range(n):
            a(f"buffer_load_dword v50, v49, s[{S_W}:{S_W+3}], s{S_T0} offen")
            a(f"s_add_u32 s{S_T0}, s{S_T0}, 8192")
    if prof or opt.get("tot"):
        for i in range(62, 98):
            a(f"s_mov_b32 s{i}, 0")
    if S_VOTE:
        a(f"s_branch {name}_iw1" if hooks else "")
        a.label(f"{name}_iw")
        watchdog(1)
        a(f"""
        buffer_load_dword v58, off, s[{S_DBG}:{S_DBG+3}], 0 offset:{DBG_VOTE} sc1
        s_waitcnt vmcnt(0)
        {name}_iw1:
        v_and_b32 v50, 0xffff, v58
        v_readfirstlane_b32 s{S_SEL}, v58
        v_cmp_ne_u32 vcc, s{S_VOTE}, v50
        s_cbranch_vccnz {name}_iw
        s_lshr_b32 s{S_SEL}, s{S_SEL}, 15
        s_cmp_gt_u32 s{S_SEL}, s{S_VOTE}
        s_cselect_b32 s{S_SEL}, 8192, 0
        """)
    else:
        a(f"""
        s_mov_b32 s{S_T0}, {WS_PROF + 3*MB}
        buffer_load_dword v48, v{V_Z}, s[{S_WS}:{S_WS+3}], s{S_T0} offen
        s_waitcnt vmcnt(0)
        v_readfirstlane_b32 s{S_SEL}, v48
        s_nop 3
        s_and_b32 s{S_SEL}, s{S_SEL}, 8192
        """)
    a(f"""
    s_bfe_u32 s{S_T0}, s{S_H}, 0x10001
    s_lshl_b32 s{S_T0}, s{S_T0}, 12
    s_add_u32 s{S_T0}, s{S_T0}, s{S_SEL}
    s_lshl_b32 s{S_T1}, s{S_WAVE}, 10
    s_add_u32 s{S_T0}, s{S_T0}, s{S_T1}
    s_add_u32 s{S_XIN}, s{S_XIN}, s{S_T0}
    s_add_u32 s{S_XOUT}, s{S_XOUT}, s{S_T0}
    s_xor_b32 s{S_VIN}, s{S_XIN}, 4096
    s_xor_b32 s{S_VOUT}, s{S_XOUT}, 4096
    s_xor_b32 s{S_MEMW}, s{S_MEMR}, 16384
    s_mov_b32 s{S_STEP}, 0
    s_cmp_eq_u32 s{S_J}, 0
    s_mov_b32 s{S_T0}, 0x33003300
    s_cselect_b32 s{S_PUBK}, 0x00330033, s{S_T0}
    s_mov_b32 s{S_PUBK+1}, s{S_PUBK}
    s_cselect_b32 s{S_PUBV}, -1, 0
    s_not_b32 s{S_PUBV+1}, s{S_PUBV}
    s_lshl_b32 s{S_T0}, s{S_H}, 13
    s_lshl_b32 s{S_T1}, s{S_WAVE}, 11
    s_add_u32 s{S_T0}, s{S_T0}, s{S_T1}
    s_add_u32 s{S_KX}, s{S_T0}, {WS_KX}
    s_add_u32 s{S_VX}, s{S_T0}, {WS_VT}
    s_lshl_b32 s{S_KVM}, s{S_H}, 13
    s_add_u32 s{S_KVM}, s{S_KVM}, {WS_KVM}
    s_mul_i32 s{S_M0X}, s{S_WAVE}, 3072
    s_add_u32 m0, s{S_M0X}, {LDS_X + 1024}
    s_mov_b32 s{S_PHX}, 1
    s_mov_b32 s{S_PHP}, 1
    v_mov_b32 v0, v{V_TAGM}
    v_bfrev_b32 v{V_T0}, 1
    v_cndmask_b32 v{V_OKM}, v{V_T0}, v{V_OKM}, s[{S_PUBK}:{S_PUBK+1}]
    v_cndmask_b32 v{V_OMP}, v{V_T0}, v{V_OMP}, s[{S_MLO}:{S_MLO+1}]
    s_sub_u32 s{S_KVM}, s{S_KVM}, {32*8192}
    s_lshl_b32 s{S_KVV}, s{S_J}, 11
    s_add_u32 s{S_KVV}, s{S_KVV}, s{S_KVM}
    """)
    V_TAGM = 0
    S_KN = 50
    kvn = [0]
    def kv_eval(reg):
        a(f"""
        v_readlane_b32 s{S_KN}, v{reg}, 0
        v_readlane_b32 s{S_T0}, v{reg}, 2
        v_readlane_b32 s{S_T1}, v{reg}, 1
        v_readlane_b32 s{S_T2}, v{reg}, 3
        s_nop 3
        s_min_u32 s{S_KN}, s{S_KN}, s{S_T0}
        s_min_u32 s{S_T1}, s{S_T1}, s{S_T2}
        s_lshl_b32 s{S_KN}, s{S_KN}, 1
        s_lshl_b32 s{S_T1}, s{S_T1}, 1
        s_add_u32 s{S_T1}, s{S_T1}, 1
        s_min_u32 s{S_KN}, s{S_KN}, s{S_T1}
        """)
    def kv_block(reg, plus):
        n = kvn[0]; kvn[0] += 1
        a.label(f"{name}_kvb{n}")
        a(f"""
        s_add_u32 s{S_T0}, s{S_STEP}, {plus}
        s_min_u32 s{S_T0}, s{S_T0}, 63
        s_cmp_gt_u32 s{S_KN}, s{S_T0}
        s_cbranch_scc1 {name}_kvd{n}
        """)
        watchdog(5)
        a(f"""
        buffer_load_dword v{reg}, v{V_FL}, s[{S_WS}:{S_WS+3}], 0 offen sc1
        s_waitcnt vmcnt(0)
        """)
        kv_eval(reg)
        a(f"s_branch {name}_kvb{n}")
        a.label(f"{name}_kvd{n}")
    if full:
        a(f"s_mov_b32 s{S_KN}, 0\ns_cmp_lg_u32 s{S_WAVE}, 3\ns_cbranch_scc1 {name}_kv0")
        kv_eval(57)
        kv_block(48, 0)
        a.label(f"{name}_kv0")
    if tstamp: tstamp()
    a("s_barrier")
    if opt.get("tot"):
        a("s_memtime s[98:99]\ns_memrealtime s[96:97]\ns_waitcnt lgkmcnt(0)")
    a(f"""
    s_cmp_eq_u32 s{S_WAVE}, 1
    s_cbranch_scc1 {name}_w1_entry
    s_cmp_eq_u32 s{S_WAVE}, 2
    s_cbranch_scc1 {name}_w2_entry
    s_cmp_eq_u32 s{S_WAVE}, 3
    s_cbranch_scc1 {name}_w3_entry
    """)

    SRD = f"s[{S_WS}:{S_WS+3}]"
    def smf(d, am, b):
        a(f"v_smfmac_f32_16x16x64_bf16 v[{d}:{d+3}], v[{am}:{am+3}], {b}, v{V_IDX}")
    def pkadd(d):
        a(f"v_pk_add_f32 v[{d}:{d+1}], v[{d}:{d+1}], v[{d+2}:{d+3}]")
    def zero32(d):
        a(f"v_mfma_f32_32x32x4_2b_bf16 v[{d}:{d+31}], v[{V_Z}:{V_Z+1}], v[{V_Z}:{V_Z+1}], 0")

    def wave_loop(w):
        L = f"{name}_w{w}"
        def lop_read(op, d):
            k, tau = op >> 1, op & 1
            vb = V_L16 if k < 4 else V_LH
            for rh in range(2):
                a(f"ds_read_b128 v[{d+4*rh}:{d+4*rh+3}], v{vb} offset:{(k & 3) * 16384 + w * 4096 + tau * 2048 + rh * 1024}")
        def wv_read(op):
            lop_read(op, V_ST + 8 * (op & 3))
        def qk(k, t):
            wb = (128 if t >= 2 else 0) + (k * 2 + (t & 1)) * 8
            smf(V_AQ + 4 * t, V_M + 4 * k, f"a[{wb}:{wb+7}]")
        def top():
            a(f"v_mfma_f32_32x32x8_bf16 v[{V_AQ}:{V_AQ+15}], v[{V_Z}:{V_Z+1}], v[{V_Z}:{V_Z+1}], 0")
            a(f"v_mfma_f32_16x16x16_bf16 v[{V_AV}:{V_AV+3}], v[{V_Z}:{V_Z+1}], v[{V_Z}:{V_Z+1}], 0")
            a(f"v_mfma_f32_16x16x16_bf16 v[{V_AV+4}:{V_AV+7}], v[{V_Z}:{V_Z+1}], v[{V_Z}:{V_Z+1}], 0")
            for op in range(4):
                wv_read(op)
        def xoff(u):
            return LDS_X - LDS_MEM + (w ^ u) * 3072

        VXB = opt.get("vxb", 1)
        ldvx = [f"buffer_load_dwordx4 v[{V_VX}:{V_VX+3}], v{V_L16}, {SRD}, s{S_VX} offen",
                f"buffer_load_dwordx4 v[{V_VX+4}:{V_VX+7}], v{V_L16}, {SRD}, s{S_VX} offen offset:1024"]
        a.label(f"{L}_entry")
        top()
        if VXB:
            a(ldvx[0]); a(ldvx[1])
            a(f"s_add_u32 s{S_VX}, s{S_VX}, {32*8192}")
        a.label(f"{L}_loop")
        dump()
        stamp(0)
        NB = opt.get("nb", 3)
        k0, k1 = 2 * w, 2 * w + 1
        m0, m1 = V_M + 4 * k0, V_M + 4 * k1
        a(f"s_add_u32 s{S_T0}, s{S_MEMR}, {k0 * 1024}")
        if opt.get("preA") == "ack":
            a("s_waitcnt vmcnt(0)"); a.nops(opt.get("xA", 0))
        elif opt.get("preA"): a.nops(opt["preA"])
        own = [(k0, t) for t in range(4)] + [(k1, t) for t in range(4)]
        lda = f"""
        buffer_load_dwordx4 v[{m0}:{m0+3}], v{V_OMR}, {SRD}, s{S_T0} offen sc1
        buffer_load_dwordx4 v[{m1}:{m1+3}], v{V_OMR}, {SRD}, s{S_T0} offen offset:1024 sc1
        """
        AD = opt.get("ad", 0)
        others = [(k0 + 2 + i) & 7 for i in range(6)]
        n0, n1 = V_M + 4 * others[4], V_M + 4 * others[5]
        a(lda)
        if AD:
            a.nops(AD)
            a(f"""
            buffer_load_dwordx4 v[{n0}:{n0+3}], v{V_OMR}, {SRD}, s{S_T0} offen sc1
            buffer_load_dwordx4 v[{n1}:{n1+3}], v{V_OMR}, {SRD}, s{S_T0} offen offset:1024 sc1
            s_waitcnt vmcnt(2)
            """)
        a.label(f"{L}_pa")
        if AD:
            a(f"""
            ds_write_b128 v{V_LL}, v[{m0}:{m0+3}] offset:{k0*1024}
            ds_write_b128 v{V_LL}, v[{m1}:{m1+3}] offset:{k1*1024}
            """)
        else:
            a(f"""
            s_waitcnt vmcnt(1)
            ds_write_b128 v{V_LL}, v[{m0}:{m0+3}] offset:{k0*1024}
            s_waitcnt vmcnt(0)
            ds_write_b128 v{V_LL}, v[{m1}:{m1+3}] offset:{k1*1024}
            """)
        chk = [f"v_max3_u32 v{V_T0}, v{m0}, v{m0+2}, v{m1}", f"v_max_u32 v{V_T0}, v{V_T0}, v{m1+2}", f"v_cmp_eq_u32 vcc, -1, v{V_T0}"]
        stamp(1)
        a(chk[0]); a(chk[1]); a(chk[2])
        for i, x in enumerate(own[:NB]):
            qk(*x)
            if opt.get("are") and i < 2: a(lda.strip().split("\n")[i])
        a(f"s_cbranch_vccnz {L}_pafail\ns_waitcnt lgkmcnt(0)\ns_barrier")
        stamp(2)
        rd = [f"ds_read_b128 v[{V_M+4*k}:{V_M+4*k+3}], v{V_LL} offset:{k*1024}" for k in others]
        if AD: rd[4] = "s_waitcnt vmcnt(0)\n" + rd[4]
        ld = [f"buffer_load_dwordx4 v{V_L16}, {SRD}, s{S_KX} offen lds",
              f"buffer_load_dwordx4 v{V_L16}, {SRD}, s{S_KX} offen offset:1024 lds"] + ([] if VXB else ldvx)
        pubd = (f"buffer_store_dwordx4 v[{V_PB1}:{V_PB1+3}], v{V_OKM}, {SRD}, s{S_KVM} offen offset:{w*64} sc1",
                f"buffer_store_dwordx2 v[{V_PV}:{V_PV+1}], v{V_OVM}, {SRD}, s{S_KVV} offen offset:{2048 + w*512} sc1")
        fill = rd + ld + list(pubd)
        KVW = full and w == 3
        if KVW: fill.append(f"buffer_load_dword v{V_T1}, v{V_FL}, {SRD}, 0 offen sc1")
        seq = own[NB:] + [(k, t) for k in others[:4] for t in range(4)]
        ka, kb = others[4], others[5]
        a(fill.pop(0)); a(fill.pop(0))
        issued = 2
        for i, x in enumerate(seq):
            if i >= 8 - NB and (i - (8 - NB)) % 4 == 0:
                need = (i - (8 - NB)) // 4 + 1
                assert issued >= need
                a(f"s_waitcnt lgkmcnt({issued - need})")
            qk(*x)
            if fill and ("ds_read" in fill[0] or i % opt.get("fsp", 1) == 0):
                a(fill.pop(0))
                if "ds_read" in a.lines[-1]: issued += 1
        while fill: a(fill.pop(0))
        def vsm(op):
            k, tau = op >> 1, op & 1
            d = V_ST + 8 * (op & 3) if op < 10 else wv_reg(op)
            smf(V_AV + 4 * tau, V_M + 4 * k, f"v[{d}:{d+7}]")
        vm = ["kx", "vx", "pk", "pv"] + (["fl"] if KVW else [])
        def vwait(tag):
            n = len(vm) - 1 - max(i for i, t in enumerate(vm) if t == tag)
            a(f"s_waitcnt vmcnt({n})")
        T0, T1, T2, T3 = V_AQ, V_AQ + 4, V_AQ + 8, V_AQ + 12
        a("s_waitcnt lgkmcnt(0)")
        qk(ka, 0); qk(kb, 0); qk(ka, 1); qk(kb, 1); qk(ka, 2); qk(kb, 2)
        qk(ka, 3)
        a.nops(3)
        a(f"v_add_f32 v{T0}, v{T0}, v{T0+2}")
        qk(kb, 3)
        stamp(3)
        a(f"""
        v_add_f32 v{T0+1}, v{T0+1}, v{T0+3}
        v_add_f32 v{T1}, v{T1}, v{T1+2}
        v_add_f32 v{T1+1}, v{T1+1}, v{T1+3}
        v_cvt_pk_bf16_f32 v{G}, v{T0}, v{T0+1}
        v_pk_add_f32 v[{T2}:{T2+1}], v[{T2}:{T2+1}], v[{T2+2}:{T2+3}]
        v_cvt_pk_bf16_f32 v{G+2}, v{T1}, v{T1+1}
        v_and_or_b32 v{G}, v{G}, -2, s{S_PHX}
        v_cvt_pk_bf16_f32 v{G+1}, v{T2}, v{T2+1}
        v_pk_add_f32 v[{T3}:{T3+1}], v[{T3}:{T3+1}], v[{T3+2}:{T3+3}]
        v_cvt_pk_bf16_f32 v{G+3}, v{T3}, v{T3+1}
        buffer_store_dwordx4 v[{G}:{G+3}], v{V_L16}, {SRD}, s{S_XOUT} offen sc1
        """)
        vm.append("sq")
        stamp(4)
        XP = opt.get("xp", (14,))
        PB = [PG, V_PB1, G]
        def ldx(b):
            a(f"buffer_load_dwordx4 v[{PB[b]}:{PB[b]+3}], v{V_L16}, {SRD}, s{S_XIN} offen sc1")
        def xpoint(p):
            for b, q in enumerate(XP):
                if q == p:
                    ldx(b); vm.append(f"x{b}")
        ldv = f"buffer_load_dwordx2 v[{V_AV+4}:{V_AV+5}], v{V_OVM}, {SRD}, s{S_VIN} offen sc1"
        vorder = [0, 1, 2, 3, 10, 11, 12, 4, 5, 13, 14, 15, 6, 7, 8, 9]
        pend = []
        for i, op in enumerate(vorder):
            if op in pend:
                a(f"s_waitcnt lgkmcnt({2 * (len(pend) - 1 - pend.index(op))})")
            vsm(op)
            if op + 4 < 10:
                wv_read(op + 4); pend.append(op + 4)
            xpoint(i)
        stamp(5)
        a(f"v_mfma_f32_16x16x16_bf16 v[{DO}:{DO+3}], v[{G}:{G+1}], v[{V_SEL}:{V_SEL+1}], 0")
        a(f"v_mfma_f32_16x16x16_bf16 v[{DO+4}:{DO+7}], v[{G+2}:{G+3}], v[{V_SEL}:{V_SEL+1}], 0")
        a.nops(5)
        a(f"""
        v_add_f32 v{V_AV}, v{V_AV}, v{V_AV+2}
        v_add_f32 v{V_AV+1}, v{V_AV+1}, v{V_AV+3}
        v_add_f32 v{V_AV+2}, v{V_AV+4}, v{V_AV+6}
        v_add_f32 v{V_AV+3}, v{V_AV+5}, v{V_AV+7}
        v_cvt_pk_bf16_f32 v{V_PV}, v{V_AV}, v{V_AV+1}
        v_cvt_pk_bf16_f32 v{V_PV+1}, v{V_AV+2}, v{V_AV+3}
        v_and_or_b32 v{V_PV}, v{V_PV}, -2, s{S_PHX}
        """)
        VS = opt.get("vs", 17)
        def vstore(p):
            if p != VS: return
            if opt.get("vbar"): a("s_barrier")
            a(f"buffer_store_dwordx2 v[{V_PV}:{V_PV+1}], v{V_OVM}, {SRD}, s{S_VOUT} offen sc1")
            vm.append("sv")
        xpoint(16)
        vstore(17)
        xpoint(17)
        stamp(6)
        OZ = 92
        a(f"""
        v_mov_b32 v{V_AV}, v{V_PV}
        v_mov_b32 v{V_AV+2}, v{V_PV+1}
        v_mov_b32 v{OZ}, v{V_ONE}
        v_mov_b32 v{OZ+1}, 0
        """)
        vwait("vx")
        stamp(7)
        a("s_barrier")
        for u in range(4):
            for t in range(2):
                d = V_KX + 8 * u + 4 * t
                a(f"ds_read_b128 v[{d}:{d+3}], v{V_LL} offset:{xoff(u) + 1024*(1+t)}")
        xpoint(18)
        vstore(18)
        for i, dl in enumerate(opt.get("xd", ())):
            a.nops(dl)
            xpoint(19 + i)
            vstore(19 + i)
        if KVW:
            a(f"""
            s_add_u32 s{S_T0}, s{S_STEP}, 4
            s_cmp_gt_u32 s{S_KN}, s{S_T0}
            s_cbranch_scc1 {L}_kvs
            """)
            vwait("fl")
            kv_eval(V_T1)
            kv_block(V_T1, 1)
            a.label(f"{L}_kvs")
        stamp(8)
        XD = V_S
        def xtry(b):
            p = PB[b]
            a(f"""
            v_mfma_f32_16x16x16_bf16 v[{XD}:{XD+3}], v[{p}:{p+1}], v[{V_SEL}:{V_SEL+1}], v[{DO}:{DO+3}]
            v_mfma_f32_16x16x16_bf16 v[{XD+4}:{XD+7}], v[{p+2}:{p+3}], v[{V_SEL}:{V_SEL+1}], v[{DO+4}:{DO+7}]
            v_and_b32 v{V_T0}, 1, v{p}
            v_cmp_ne_u32 vcc, s{S_PHX}, v{V_T0}
            s_nop 4
            v_cvt_pk_bf16_f32 v{V_X}, v{XD}, v{XD+1}
            v_cvt_pk_bf16_f32 v{V_X+1}, v{XD+2}, v{XD+3}
            v_cvt_pk_bf16_f32 v{V_X+2}, v{XD+4}, v{XD+5}
            v_cvt_pk_bf16_f32 v{V_X+3}, v{XD+6}, v{XD+7}
            ds_write_b128 v{V_LL}, v[{V_X}:{V_X+3}] offset:{xoff(0)}
            """)
        vwait("x0")
        stamp(9)
        xtry(0)
        a(f"s_cbranch_vccnz {L}_xslow")
        a.label(f"{L}_xok")
        vm_x = list(vm)
        a(f"s_cmp_eq_u32 s{S_STEP}, {nsteps-1}\ns_cbranch_scc1 {L}_last")
        VL = opt.get("vlate", 0)
        ldv2 = f"buffer_load_dwordx2 v[{V_PB1}:{V_PB1+1}], v{V_OVM}, {SRD}, s{S_VIN} offen sc1"
        if not VL: a(ldv)
        a("s_waitcnt lgkmcnt(1)")
        def score(u, ts=(0, 1, 2)):
            x = V_X + 4 * u
            for t in ts:
                src = (V_KX + 8 * u + 4 * t) if t < 2 else x
                d = V_S + 4 * t
                c = "0" if u == 0 else f"v[{d}:{d+3}]"
                a(f"v_mfma_f32_16x16x32_bf16 v[{d}:{d+3}], v[{src}:{src+3}], v[{x}:{x+3}], {c}")
        score(0, (0,))
        a("s_waitcnt lgkmcnt(0)\ns_barrier")
        stamp(10)
        for u in range(1, 4):
            a(f"ds_read_b128 v[{V_X+4*u}:{V_X+4*u+3}], v{V_LL} offset:{xoff(u)}")
        score(0, (1, 2))
        a(ldv if VL else ldv2)
        vchk = f"""
        s_waitcnt vmcnt(1)
        v_and_b32 v{V_T0}, 1, v{V_AV+4}
        v_cmp_ne_u32 vcc, s{S_PHX}, v{V_T0}
        v_mov_b32 v{V_AV+1}, v{V_AV+4}
        v_mov_b32 v{V_AV+3}, v{V_AV+5}
        """.strip().split("\n")
        MX, TM = V_T1, V_S + 10
        P = V_X + 4
        a("s_waitcnt lgkmcnt(2)"); score(1, (0,))
        a("s_waitcnt lgkmcnt(1)"); score(2, (0,))
        a("s_waitcnt lgkmcnt(0)"); score(3, (0,))
        for u in range(1, 4): score(u, (1,))
        if VL: a(ldv2)
        for u in range(1, 4): score(u, (2,))
        zero32(V_ACC)
        stamp(11)
        a(f"""
        s_nop 0
        v_max3_f32 v{MX}, v{V_S}, v{V_S+1}, v{V_S+2}
        s_nop 1
        v_max3_f32 v{MX}, v{MX}, v{V_S+3}, v{V_S+4}
        v_max3_f32 v{MX}, v{MX}, v{V_S+5}, v{V_S+6}
        v_max_f32 v{MX}, v{MX}, v{V_S+7}
        v_max3_f32 v{TM}, v{MX}, v{V_S+8}, v{V_S+9}
        v_max3_f32 v{MX}, v{MX}, v{V_S+8}, v{V_S+9}
        s_nop 1
        v_permlane16_swap_b32 v{MX}, v{TM}
        v_max_f32 v{MX}, v{MX}, v{TM}
        v_max_f32 v{TM}, v{MX}, v{TM}
        s_nop 1
        v_permlane32_swap_b32 v{MX}, v{TM}
        v_max_f32 v{MX}, v{MX}, v{TM}
        v_mul_f32 v{MX}, s{S_C}, v{MX}
        """)
        for i in range(0, 10, 2):
            a(f"v_pk_fma_f32 v[{V_S+i}:{V_S+i+1}], v[{V_S+i}:{V_S+i+1}], s[{S_C}:{S_C+1}], v[{MX}:{MX+1}] op_sel_hi:[1,0,0] neg_lo:[0,0,1] neg_hi:[0,0,1]")
        for i in range(8):
            a(f"v_exp_f32 v{V_S+i}, v{V_S+i}")
            if i >= 2 and i % 2 == 0:
                a(f"v_cvt_pk_bf16_f32 v{P+i//2-1}, v{V_S+i-2}, v{V_S+i-1}")
        O, SM = DO, V_X + 12
        OB = V_S + 4
        a(f"""
        v_exp_f32 v{V_S+8}, v{V_S+8}
        v_cvt_pk_bf16_f32 v{P+3}, v{V_S+6}, v{V_S+7}
        v_exp_f32 v{V_S+9}, v{V_S+9}
        {vchk[0]}
        """)
        stamp(12)
        a(f"""
        v_mfma_f32_16x16x32_bf16 v[{SM}:{SM+3}], v[{V_ONE}:{V_ONE+3}], v[{P}:{P+3}], 0
        {vchk[1]}
        v_cvt_pk_bf16_f32 v{P+4}, v{V_S+8}, v{V_S+9}
        v_mfma_f32_16x16x32_bf16 v[{O}:{O+3}], v[{V_VX}:{V_VX+3}], v[{P}:{P+3}], 0
        {vchk[2]}
        v_cvt_pk_bf16_f32 v{P+5}, v{V_S+8}, v{V_S+9}
        v_mfma_f32_16x16x32_bf16 v[{O+4}:{O+7}], v[{V_VX+4}:{V_VX+7}], v[{P}:{P+3}], 0
        {vchk[3]}
        {vchk[4]}
        v_mfma_f32_16x16x16_bf16 v[{SM}:{SM+3}], v[{OZ}:{OZ+1}], v[{P+4}:{P+5}], v[{SM}:{SM+3}]
        s_cbranch_vccnz {L}_pv0
        {L}_pv2:
        v_mfma_f32_16x16x16_bf16 v[{O}:{O+3}], v[{V_AV}:{V_AV+1}], v[{P+4}:{P+5}], v[{O}:{O+3}]
        v_mfma_f32_16x16x16_bf16 v[{O+4}:{O+7}], v[{V_AV+2}:{V_AV+3}], v[{P+4}:{P+5}], v[{O+4}:{O+7}]
        """)
        stamp(13)
        nn = 0
        if opt.get("vxp", 13) == 13:
            a(ldvx[0]); a(ldvx[1]); nn = 2
        a.nops(5 - nn)
        a(f"""
        v_rcp_f32 v{SM}, v{SM}
        s_mov_b64 exec, s[{S_MQ}:{S_MQ+1}]
        v_pk_mul_f32 v[{O}:{O+1}], v[{O}:{O+1}], v[{SM}:{SM+1}] op_sel_hi:[1,0]
        v_pk_mul_f32 v[{O+2}:{O+3}], v[{O+2}:{O+3}], v[{SM}:{SM+1}] op_sel_hi:[1,0]
        v_pk_mul_f32 v[{O+4}:{O+5}], v[{O+4}:{O+5}], v[{SM}:{SM+1}] op_sel_hi:[1,0]
        v_pk_mul_f32 v[{O+6}:{O+7}], v[{O+6}:{O+7}], v[{SM}:{SM+1}] op_sel_hi:[1,0]
        v_cvt_pk_bf16_f32 v{OB}, v{O}, v{O+1}
        v_cvt_pk_bf16_f32 v{OB+1}, v{O+2}, v{O+3}
        v_cvt_pk_bf16_f32 v{OB+2}, v{O+4}, v{O+5}
        v_cvt_pk_bf16_f32 v{OB+3}, v{O+6}, v{O+7}
        """)
        OA = V_X + 4
        stamp(14)
        def save(n):
            a(f"""
            s_waitcnt vmcnt({n})
            v_mov_b32 v{V_PB1}, v{V_X}
            v_mov_b32 v{V_PB1+1}, v{V_X+1}
            v_mov_b32 v{V_PB1+2}, v{V_X+2}
            v_mov_b32 v{V_PB1+3}, v{V_X+3}
            s_add_u32 s{S_KVM}, s{S_KVM}, {32*8192}
            s_add_u32 s{S_KVV}, s{S_KVV}, {32*8192}
            """)
        a(f"ds_write_b128 v{V_LL}, v[{OB}:{OB+3}] offset:{LDS_O - LDS_MEM + (w >> 1) * 1024 + (w & 1) * 32 - 32}")
        a("s_mov_b64 exec, -1")
        WB = {10: 88, 11: V_AV, 12: 96, 13: 104, 14: 80, 15: 88}
        NPRE = opt.get("npre", 3)
        for op in range(10, 10 + NPRE): lop_read(op, WB[op])
        if opt.get("vxp", 13) == 14: a(ldvx[0]); a(ldvx[1])
        if full and w == 0:
            a(f"v_mov_b32 v{V_T0}, s{S_STEP}")
            a(f"buffer_store_dword v{V_T0}, v{V_FL}, {SRD}, 0 offen sc1")
        a(f"""
        s_waitcnt lgkmcnt({2 * NPRE})
        s_barrier
        ds_read_b128 v[{OA}:{OA+3}], v{V_LL} offset:{LDS_O - LDS_MEM}
        ds_read_b128 v[{OA+4}:{OA+7}], v{V_LL} offset:{LDS_O - LDS_MEM + 1024}
        """)
        for op in range(10 + NPRE, 15): lop_read(op, WB[op])
        NPOST = 2 * (5 - NPRE)
        stamp(15)
        sal = f"""
        s_add_u32 s{S_STEP}, s{S_STEP}, 1
        s_xor_b32 s{S_XIN}, s{S_XIN}, {MB}
        s_xor_b32 s{S_XOUT}, s{S_XOUT}, {MB}
        s_xor_b32 s{S_VIN}, s{S_VIN}, {MB}
        s_xor_b32 s{S_VOUT}, s{S_VOUT}, {MB}
        s_lshr_b32 s{S_PHX}, s{S_STEP}, 1
        s_and_b32 s{S_PHX}, s{S_PHX}, 1
        s_xor_b32 s{S_PHX}, s{S_PHX}, 1
        s_xor_b32 s{S_MEMR}, s{S_MEMR}, 16384
        s_xor_b32 s{S_MEMW}, s{S_MEMW}, 16384
        s_add_u32 s{S_KX}, s{S_KX}, {32*8192}
        s_add_u32 s{S_VX}, s{S_VX}, {32*8192}
        """.strip().split("\n")

        def wo(i):
            T, kp = WO_ORDER[i]
            b = V_WO + 8 * i if i < 10 else WB[i]
            smf(V_ACC + 4 * T, OA + 4 * kp, f"v[{b}:{b+7}]")
        def fold(T, pk):
            A = V_ACC + 4 * T
            GR = V_ACC + 16 * (T >> 2)
            if pk:
                Ls = [f"v_pk_add_f32 v[{A}:{A+1}], v[{A}:{A+1}], v[{A+2}:{A+3}]"]
            else:
                Ls = [f"v_add_f32 v{A}, v{A}, v{A+2}", f"v_add_f32 v{A+1}, v{A+1}, v{A+3}"]
            Ls.append(f"v_cvt_pk_bf16_f32 v{GR+(T&3)}, v{A}, v{A+1}")
            if T & 3 == 0:
                Ls.append(f"v_and_or_b32 v{GR}, v{GR}, -2, s{S_PHP}")
            if T & 3 == 3:
                Ls.append(f"buffer_store_dwordx4 v[{GR}:{GR+3}], v{V_OPART}, {SRD}, s{S_PARTW if T < 4 else S_PARTW2} offen {IS}")
            return Ls
        NG = opt.get("wog", 1)
        NPK = opt.get("npk", 4)
        ready, pending, since = [], {}, {}
        a(f"s_waitcnt lgkmcnt({NPOST + 1})")
        def tick(n=1):
            for T in list(since):
                since[T] += n
                if since[T] >= 8:
                    ready.extend(fold(T, T >= NPK)); del since[T]
        for i in range(16):
            if i == 1: a(f"s_waitcnt lgkmcnt({NPOST})"); tick()
            if i == 10 or i == 15: a("s_waitcnt lgkmcnt(0)"); tick()
            wo(i); tick()
            if i & 1: since[i >> 1] = 0
            if i == 10:
                lop_read(15, WB[15]); tick(2)
            else:
                n = NG if i < opt.get("wog2", 16) else 2
                for _ in range(n):
                    if ready and "v_pk" not in ready[0]: a(ready.pop(0)); tick()
                for _ in range(3 if i < 4 else 0):
                    if sal: a(sal.pop(0)); tick()
        while ready or since:
            if ready: a(ready.pop(0))
            else: a("s_nop 0")
            tick()
        stamp(16)
        for l in sal: a(l)
        save(5 if (full and w == 0) else 4)
        if opt.get("steps") and w == 1:
            a(f"""
            s_memrealtime s[62:63]
            s_lshl_b32 s64, s{S_J}, 5
            s_add_u32 s64, s64, s{S_H}
            s_lshl_b32 s64, s64, 6
            s_add_u32 s64, s64, s{S_STEP}
            s_lshl_b32 s64, s64, 2
            s_add_u32 s64, s64, {WS_PROF + 4*MB}
            s_waitcnt lgkmcnt(0)
            v_mov_b32 v{V_T0}, s62
            s_mov_b64 exec, 1
            buffer_store_dword v{V_T0}, off, {SRD}, s64
            s_mov_b64 exec, -1
            """)
        top()
        RB, RD = V_M + 4, V_M + 20
        a(f"v_mov_b32 v{RD+6}, -1\nv_mov_b32 v{RD+7}, -1")
        if opt.get("preC") == "ack":
            a("s_waitcnt vmcnt(0)"); a.nops(opt.get("xC", 0))
        elif opt.get("preC") == "ack1": a("s_waitcnt vmcnt(1)")
        elif opt.get("preC"): a.nops(opt["preC"])
        def cissue(b):
            for d in range(8):
                a(f"buffer_load_dword v{RB+8*b+d}, v{V_OCR}, {SRD}, s{S_PARTR if d < 4 else S_PARTR2} offen offset:{1024*(d&3) + 64*w} sc1")
        def ctry(b, behind, nxt=None):
            r = RB + 8 * b
            a(f"""
            s_waitcnt vmcnt({behind + 4})
            v_mfma_f32_16x16x32_bf16 v[{RD}:{RD+3}], v[{r}:{r+3}], v[{V_SELR}:{V_SELR+3}], 0
            v_bitop3_b32 v{V_T0}, s{S_PHP}, v{r}, v{r+1} bitop3:0x7e
            v_bitop3_b32 v{V_T1}, s{S_PHP}, v{r+2}, v{r+3} bitop3:0x7e
            s_waitcnt vmcnt({behind + 2})
            v_or_b32 v{V_T0}, v{V_T0}, v{V_T1}
            v_bitop3_b32 v{V_T1}, s{S_PHP}, v{r+4}, v{r+5} bitop3:0x7e
            s_waitcnt vmcnt({behind})
            v_mfma_f32_16x16x32_bf16 v[{RD}:{RD+3}], v[{r+4}:{r+7}], v[{V_SELR}:{V_SELR+3}], v[{RD}:{RD+3}]
            v_bitop3_b32 v{RD+4}, s{S_PHP}, v{r+6}, v{r+7} bitop3:0x7e
            v_or3_b32 v{V_T0}, v{V_T0}, v{V_T1}, v{RD+4}
            v_and_b32 v{V_T0}, v{V_TAGM}, v{V_T0}
            v_cmp_ne_u32 vcc, 0, v{V_T0}
            """)
        def cfin():
            a(f"""
            v_cvt_pk_bf16_f32 v{RD+4}, v{RD}, v{RD+1}
            v_cvt_pk_bf16_f32 v{RD+5}, v{RD+2}, v{RD+3}
            v_min_u32 v{RD+4}, -2, v{RD+4}
            """)
        CD = opt.get("cd", 0)
        if CD:
            cissue(0); a.nops(CD); cissue(1)
            if opt.get("tot"): a("s_add_u32 s87, s87, 1")
            ctry(0, 8)
            a(f"s_cbranch_vccnz {L}_cslow")
            a.label(f"{L}_cok")
            a("s_nop 2"); cfin()
        elif opt.get("cearly", 1):
            a.label(f"{L}_pc")
            cissue(0)
            watchdog(30, 3)
            ctry(0, 0)
            a(f"s_cbranch_vccnz {L}_pc")
            a("s_nop 2"); cfin()
        else:
            a.label(f"{L}_pc")
            cissue(0)
            watchdog(30, 3)
            ctry(0, 0); a("s_nop 3"); cfin()
            a(f"s_cbranch_vccnz {L}_pc")
        a(f"""
        {"" if opt.get("amask") else f"s_mov_b64 exec, s[{S_MLO}:{S_MLO+1}]"}
        buffer_store_dwordx2 v[{RD+4}:{RD+5}], v{V_OMP}, {SRD}, s{S_MEMR} offen offset:{w * 64} {IS}
        buffer_store_dwordx2 v[{RD+6}:{RD+7}], v{V_OMP}, {SRD}, s{S_MEMW} offen offset:{w * 64} {IS}
        s_mov_b64 exec, -1
        s_xor_b32 s{S_PHP}, s{S_PHP}, 1
        """)
        stamp(17)
        a(f"s_branch {L}_loop")
        a.label(f"{L}_last")
        a(f"s_add_u32 s{S_KVM}, s{S_KVM}, {32*8192}\ns_add_u32 s{S_KVV}, s{S_KVV}, {32*8192}")
        a(pubd[0].replace(f"v[{V_PB1}:{V_PB1+3}]", f"v[{V_X}:{V_X+3}]")); a(pubd[1])
        a(f"s_branch {name}_end")
        a.label(f"{L}_pafail")
        if AD:
            if opt.get("tot"): a("s_add_u32 s84, s84, 1")
            a.nops(6)
            for i in range(4 * min(NB, 4)):
                a(f"v_mov_b32 v{V_AQ+i}, 0")
            a.label(f"{L}_pa2")
            a(f"""
            s_waitcnt vmcnt(0)
            v_max3_u32 v{V_T0}, v{n0}, v{n0+2}, v{n1}
            v_max_u32 v{V_T0}, v{V_T0}, v{n1+2}
            v_cmp_eq_u32 vcc, -1, v{V_T0}
            """)
            for i in range(0, 4, 2):
                a(f"v_pk_mov_b32 v[{m0+i}:{m0+i+1}], v[{n0+i}:{n0+i+1}], v[{n0+i}:{n0+i+1}] op_sel:[0,1]")
                a(f"v_pk_mov_b32 v[{m1+i}:{m1+i+1}], v[{n1+i}:{n1+i+1}], v[{n1+i}:{n1+i+1}] op_sel:[0,1]")
            a(f"""
            s_cbranch_vccz {L}_pa
            buffer_load_dwordx4 v[{n0}:{n0+3}], v{V_OMR}, {SRD}, s{S_T0} offen sc1
            buffer_load_dwordx4 v[{n1}:{n1+3}], v{V_OMR}, {SRD}, s{S_T0} offen offset:1024 sc1
            """)
            watchdog(10 + w, 0)
            a(f"s_branch {L}_pa2")
        else:
            if not opt.get("are"): a(lda)
            watchdog(10 + w, 0)
            a.nops(8)
            for i in range(4 * min(NB, 4)):
                a(f"v_mov_b32 v{V_AQ+i}, 0")
            a(f"s_branch {L}_pa")

        if opt.get("cd"):
            a.label(f"{L}_cslow")
            cissue(0)
            a.label(f"{L}_pc")
            watchdog(30, 3)
            ctry(1, 8)
            a(f"s_cbranch_vccz {L}_cok")
            cissue(1)
            watchdog(30, 3)
            ctry(0, 8)
            a(f"s_cbranch_vccz {L}_cok")
            cissue(0)
            a(f"s_branch {L}_pc")

        a.label(f"{L}_xslow")
        vm[:] = vm_x
        nxp = len(XP)
        def xlight(b):
            a(f"""
            v_and_b32 v{V_T0}, 1, v{PB[b]}
            v_cmp_ne_u32 vcc, s{S_PHX}, v{V_T0}
            s_cbranch_vccz {L}_xgot{b}
            """)
        ldx(0); vm.append("y0")
        for b in range(1, nxp):
            if opt.get("tot"): a(f"s_add_u32 s85, s85, 1")
            vwait(f"x{b}")
            xlight(b)
            ldx(b); vm.append(f"y{b}")
        a.label(f"{L}_px")
        for b in range(nxp):
            watchdog(20, 1)
            a(f"s_waitcnt vmcnt({nxp - 1})")
            xlight(b)
            ldx(b)
        a(f"s_branch {L}_px")
        for b in range(nxp):
            a.label(f"{L}_xgot{b}")
            xtry(b)
            a(f"s_branch {L}_xok")

        a.label(f"{L}_pv0")
        if opt.get("tot"): a("s_add_u32 s86, s86, 1")
        a(f"s_waitcnt vmcnt(0)\ns_branch {L}_pv1")
        a.label(f"{L}_pv")
        watchdog(21, 2)
        a(f"""
        buffer_load_dwordx2 v[{V_PB1}:{V_PB1+1}], v{V_OVM}, {SRD}, s{S_VIN} offen sc1
        s_waitcnt vmcnt(0)
        {L}_pv1:
        v_and_b32 v{V_T0}, 1, v{V_PB1}
        v_cmp_ne_u32 vcc, s{S_PHX}, v{V_T0}
        v_mov_b32 v{V_AV+1}, v{V_PB1}
        v_mov_b32 v{V_AV+3}, v{V_PB1+1}
        s_cbranch_vccnz {L}_pv
        s_branch {L}_pv2
        """)

    for w in range(4):
        wave_loop(w)
    a.label(f"{name}_end")
    a("s_mov_b64 exec, -1")
    if full:
        a(f"""
        v_mov_b32 v{V_T0}, 64
        s_waitcnt vmcnt(0)
        s_barrier
        s_cmp_lg_u32 s{S_WAVE}, 0
        s_cbranch_scc1 {name}_end2
        buffer_store_dword v{V_T0}, v{V_FL}, s[{S_WS}:{S_WS+3}], 0 offen sc1
        {name}_end2:
        """)
    if tstamp: tstamp()
    if opt.get("tot"):
        a(f"""
        s_memtime s[66:67]
        s_memrealtime s[68:69]
        s_waitcnt lgkmcnt(0)
        s_sub_u32 s89, s66, s98
        s_sub_u32 s88, s68, s96
        s_lshl_b32 s{S_T0}, s{S_J}, 5
        s_add_u32 s{S_T0}, s{S_T0}, s{S_H}
        s_lshl_b32 s{S_T0}, s{S_T0}, 2
        s_add_u32 s{S_T0}, s{S_T0}, s{S_WAVE}
        s_lshl_b32 s{S_T0}, s{S_T0}, 7
        s_add_u32 s{S_T0}, s{S_T0}, {WS_PROF}
        s_mov_b64 exec, 1
        """)
        for i in range(14, 20):
            a(f"v_mov_b32 v{V_T0}, s{70+i}")
            a(f"buffer_store_dword v{V_T0}, v{V_Z}, s[{S_WS}:{S_WS+3}], s{S_T0} offen offset:{4*i}")
        a("s_mov_b64 exec, -1")
    a("s_waitcnt vmcnt(0)")
    a("s_endpgm")
    if wd:
        a.label(f"{name}_wdexit")
        a(f"""
        s_mov_b64 exec, 1
        s_lshl_b32 s{S_T0}, s{S_STEP}, 8
        s_or_b32 s{S_T2}, s{S_T2}, s{S_T0}
        v_mov_b32 v{V_T0}, s{S_T2}
        v_mov_b32 v{V_T1}, 0
        s_lshl_b32 s{S_T0}, s{S_J}, 5
        s_add_u32 s{S_T0}, s{S_T0}, s{S_H}
        s_lshl_b32 s{S_T0}, s{S_T0}, 2
        s_add_u32 s{S_T0}, s{S_T0}, s{S_WAVE}
        s_lshl_b32 s{S_T0}, s{S_T0}, 2
        s_add_u32 s{S_T0}, s{S_T0}, {WS_PROF + MB}
        buffer_store_dword v{V_T0}, v{V_T1}, s[{S_WS}:{S_WS+3}], s{S_T0} offen
        s_endpgm
        """)


def gen_standalone(name, prof=False, opt={}, xa=0, xb=1):
    from gen_hop import ticket
    a = Asm(); a.kernel_begin(name)
    a(f"s_cmp_ge_u32 s2, 256\ns_cbranch_scc1 {name}_exit")
    a(f"""
    s_load_dwordx2 s[84:85], s[0:1], {KA_WS}
    s_waitcnt lgkmcnt(0)
    s_mov_b32 s86, {WS_BYTES}
    s_mov_b32 s87, 0x00020000
    """)
    global_init(a, name, 84)
    a("s_waitcnt vmcnt(0)\ns_barrier")
    ticket(a, name, 2)
    a(f"""
    s_cmp_eq_u32 s90, {xa}
    s_cselect_b32 s{S_J}, 0, 2
    s_cmp_eq_u32 s90, {xb}
    s_cselect_b32 s{S_J}, 1, s{S_J}
    s_cmp_ge_u32 s{S_J}, 2
    s_cbranch_scc1 {name}_exit
    s_cmp_ge_u32 s96, 32
    s_cbranch_scc1 {name}_exit
    s_mov_b32 s{S_H}, s96
    s_branch {name}_go
    {name}_exit:
    s_endpgm
    {name}_go:
    """)
    rec_body(a, name + "_r", "", prof=prof, wd=True, opt=opt)
    return (name, a.text(), kd(name, 512, sgpr=100, accum=256), 256, 256, LDS_REC)


if __name__ == "__main__":
    import sys, json
    V = eval(open(sys.argv[1]).read())
    ks = [gen_standalone(f"r{i}_kernel", **v) for i, v in enumerate(V)]
    write_file("rec.s", ks)
    json.dump(V, open("rec.json", "w"))
```

```python
from common import *
from gen_rec import WS_QX, WS_KX, WS_VT, WS_O, WS_KVM
from gen_qkv import WS_FL

FL_RP, FL_XF = 192, 256
SPAIR = 58
NEARLY = 10


def xo_role(a: Asm, name, S_B, S_WS, S_FAST, wd=None, opt={}, stamp=None):
    S_W, S_O = 8, 12
    S_WAVE, S_G, S_C, S_T0, S_T1, S_SEG, S_CST = 16, 17, 18, 20, 21, 22, 24
    S_QO, S_KO, S_VO, S_MO, S_OW, S_OR, S_OUT, S_NEED = 26, 27, 28, 29, 40, 41, 42, 43
    S_M0 = 44
    S_CUR, S_RET, S_SLOT, S_QO2, S_KO2, S_ROT = 45, 46, 47, 48, 49, 50
    SRD = f"s[{S_WS}:{S_WS+3}]"
    V_L, V_L16, V_T0, V_T1, V_T2 = 1, 2, 3, 4, 5
    V_OKM, V_OVM, V_OOW, V_TH0, V_TH1, V_NEG, V_FGP, V_FRP, V_FXF, V_FMY, V_LR, V_LW, V_OUT = 6, 7, 8, 9, 10, 11, 12, 13, 14, 15, 16, 17, 18
    V_HL = 19
    V_ONE = 20
    V_Q, V_K, V_V = 24, 40, 72
    V_KM, V_VM = 88, 104
    V_S, V_P, V_SM = 112, 124, 132
    V_O = 88
    V_ACC = 112
    V_F = 136
    NFR = 30

    def xst(reg):
        if not (stamp and opt.get("xst")): return
        l = a.newlabel(name + "_xs")
        a(f"s_cmp_lt_u32 s{reg}, 61\ns_cbranch_scc1 {l}")
        stamp()
        a.label(l)

    def poll_guard(code):
        if wd: wd(code)

    a(f"""
    s_load_dwordx2 s[{S_W}:{S_W+1}], s[0:1], {KA_WO}
    s_load_dwordx2 s[{S_O}:{S_O+1}], s[0:1], {KA_OUT}
    v_lshrrev_b32 v{V_T0}, 6, v0
    v_and_b32 v{V_L}, 63, v0
    v_readfirstlane_b32 s{S_WAVE}, v{V_T0}
    s_lshr_b32 s{S_G}, s{S_B}, 5
    s_and_b32 s{S_C}, s{S_B}, 31
    v_lshlrev_b32 v{V_L16}, 4, v{V_L}
    s_waitcnt lgkmcnt(0)
    s_mov_b32 s{S_W+2}, {8*MB}
    s_mov_b32 s{S_W+3}, 0x00020000
    s_mov_b32 s{S_O+2}, {8*MB}
    s_mov_b32 s{S_O+3}, 0x00020000
    s_mov_b32 s{S_CST}, 0x3e0293ee
    v_lshrrev_b32 v{V_T0}, 2, v{V_L}
    v_lshlrev_b32 v{V_T0}, 11, v{V_T0}
    v_and_b32 v{V_T1}, 3, v{V_L}
    v_lshl_add_u32 v{V_T0}, v{V_T1}, 4, v{V_T0}
    s_lshl_b32 s{S_T0}, s{S_WAVE}, 21
    s_lshl_b32 s{S_T1}, s{S_C}, 6
    s_add_u32 s{S_T0}, s{S_T0}, s{S_T1}
    v_add_u32 v24, s{S_T0}, v{V_T0}
    s_lshl_b32 s{S_M0}, s{S_WAVE}, 15
    s_lshr_b32 s{S_ROT}, s{S_C}, 1
    s_lshl_b32 s{S_ROT}, s{S_ROT}, {12 if opt.get('rot', 1) else 16}
    v_lshrrev_b32 v{V_T0}, 5, v{V_L}
    v_bfe_u32 v{V_T2}, v{V_L}, 2, 2
    v_lshl_add_u32 v{V_T0}, v{V_T0}, 3, v{V_T2}
    v_lshlrev_b32 v25, 6, v{V_T0}
    v_bfe_u32 v{V_T2}, v{V_L}, 4, 1
    v_lshl_add_u32 v25, v{V_T2}, 5, v25
    v_lshl_add_u32 v25, v{V_T1}, 3, v25
    v_add_u32 v25, s{S_M0}, v25
    """)
    def wdma(ks):
        a(f"s_add_u32 m0, s{S_M0}, {(ks & 31) * 1024}")
        a(f"s_add_u32 s{S_T0}, s{S_ROT}, {ks * 1024}")
        a(f"s_and_b32 s{S_T0}, s{S_T0}, 0xffff")
        a(f"s_lshl_b32 s{S_T0}, s{S_T0}, 5")
        a(f"buffer_load_dwordx4 v24, s[{S_W}:{S_W+3}], s{S_T0} offen lds")
    a(f"""
    s_lshl_b32 s{S_SLOT}, s{S_G}, 2
    s_add_u32 s{S_T0}, s{S_SLOT}, s{S_WAVE}
    s_lshl_b32 s{S_T0}, s{S_T0}, 18
    s_lshl_b32 s{S_T1}, s{S_C}, 13
    s_add_u32 s{S_T0}, s{S_T0}, s{S_T1}
    s_add_u32 s{S_T0}, s{S_T0}, {WS_O}
    v_lshlrev_b32 v26, 7, v{V_L}
    buffer_load_dword v28, v26, {SRD}, s{S_T0} offen sc1
    """)
    for ks in range(32): wdma(ks)
    a(f"""
    v_and_b32 v{V_T1}, 15, v{V_L}             ; c
    v_lshrrev_b32 v{V_T2}, 4, v{V_L}          ; g
    v_lshrrev_b32 v{V_T0}, 2, v{V_T1}
    v_lshlrev_b32 v{V_T0}, 1, v{V_T0}
    v_and_b32 v26, 1, v{V_T1}
    v_add_u32 v{V_T0}, v{V_T0}, v26           ; m(c)
    v_lshlrev_b32 v{V_OKM}, 8, v{V_T0}
    v_lshl_add_u32 v{V_OKM}, v{V_T2}, 4, v{V_OKM}
    s_lshr_b32 s{S_T0}, s{S_WAVE}, 1
    s_lshl_b32 s{S_T0}, s{S_T0}, 10
    s_add_u32 s{S_T0}, s{S_T0}, 2048
    v_lshlrev_b32 v{V_OVM}, 3, v{V_L}
    v_add_u32 v{V_OVM}, s{S_T0}, v{V_OVM}
    v_lshlrev_b32 v{V_OOW}, 9, v{V_T2}
    v_lshl_add_u32 v{V_OOW}, v{V_T1}, 4, v{V_OOW}
    s_lshr_b32 s{S_T0}, s{S_WAVE}, 1
    s_lshl_b32 s{S_T0}, s{S_T0}, 12
    s_and_b32 s{S_T1}, s{S_WAVE}, 1
    s_lshl_b32 s{S_T1}, s{S_T1}, 8
    s_add_u32 s{S_T0}, s{S_T0}, s{S_T1}
    v_add_u32 v{V_OOW}, s{S_T0}, v{V_OOW}
    v_lshlrev_b32 v{V_HL}, 4, v{V_T1}
    v_and_b32 v26, 1, v{V_T2}
    v_lshl_add_u32 v{V_HL}, v26, 10, v{V_HL}
    v_lshrrev_b32 v26, 1, v{V_T2}
    v_lshl_add_u32 v{V_HL}, v26, 9, v{V_HL}
    s_and_b32 s{S_T0}, s{S_G}, 1
    s_lshl_b32 s{S_T0}, s{S_T0}, 8
    v_add_u32 v{V_HL}, s{S_T0}, v{V_HL}
    v_lshlrev_b32 v26, 2, v{V_T2}
    v_sub_u32 v{V_TH0}, v{V_T1}, v26
    s_lshr_b32 s{S_T1}, s{S_T1}, 4
    v_add_u32 v{V_TH0}, s{S_T1}, v{V_TH0}
    v_add_u32 v{V_TH1}, -16, v{V_TH0}
    v_mov_b32 v{V_NEG}, 0xff7fffff
    v_mov_b32 v{V_ONE}, 0x3f803f80
    v_mov_b32 v{V_ONE+1}, 0x3f803f80
    v_mov_b32 v{V_ONE+2}, 0x3f803f80
    v_mov_b32 v{V_ONE+3}, 0x3f803f80
    v_bfe_u32 v26, v{V_L}, 1, 2
    v_min_u32 v26, 2, v26
    s_lshl_b32 s{S_T0}, s{S_C}, 8
    s_add_u32 s{S_T0}, s{S_T0}, {WS_FL}
    v_lshlrev_b32 v{V_FGP}, 13, v26
    v_and_b32 v26, 1, v{V_L}
    v_lshl_add_u32 v{V_FGP}, v26, 7, v{V_FGP}
    v_add_u32 v{V_FGP}, s{S_T0}, v{V_FGP}
    v_and_b32 v26, 1, v{V_L}
    v_lshlrev_b32 v{V_FRP}, 7, v26
    s_add_u32 s{S_T0}, s{S_T0}, {FL_RP * 128}
    v_add_u32 v{V_FRP}, s{S_T0}, v{V_FRP}
    v_and_b32 v26, 7, v{V_L}
    s_lshl_b32 s{S_T0}, s{S_G}, 5
    s_lshl_b32 s{S_T1}, s{S_WAVE}, 3
    s_add_u32 s{S_T0}, s{S_T0}, s{S_T1}
    v_add_u32 v26, s{S_T0}, v26
    v_lshlrev_b32 v{V_FXF}, 7, v26
    v_add_u32 v{V_FXF}, {WS_FL + FL_XF * 128}, v{V_FXF}
    v_bfrev_b32 v26, 1
    s_lshl_b32 s{S_T0}, s{S_B}, 7
    s_add_u32 s{S_T0}, s{S_T0}, {WS_FL + FL_XF * 128}
    v_mov_b32 v27, s{S_T0}
    v_cmp_eq_u32 vcc, 0, v0
    s_lshl_b32 s{S_T0}, s{S_WAVE}, 12
    v_add_u32 v{V_LW}, s{S_T0}, v{V_L16}
    v_cndmask_b32 v{V_FMY}, v26, v27, vcc
    v_lshrrev_b32 v26, 3, v0
    v_and_b32 v27, 1, v0
    v_lshl_add_u32 v27, v27, 5, v26
    v_lshlrev_b32 v{V_LR}, 4, v27
    v_bfe_u32 v27, v0, 1, 2
    v_lshl_add_u32 v{V_LR}, v27, 10, v{V_LR}
    v_lshlrev_b32 v{V_OUT}, 12, v26
    v_and_b32 v27, 7, v0
    v_lshl_add_u32 v{V_OUT}, v27, 3, v{V_OUT}
    s_lshl_b32 s{S_T0}, s{S_C}, 6
    v_add_u32 v{V_OUT}, s{S_T0}, v{V_OUT}
    """)
    for k4 in range(16):
        a(f"s_waitcnt vmcnt({min(28, 60 - 4 * k4)})")
        for ks in range(4 * k4, 4 * k4 + 4):
            for j in range(2):
                a(f"ds_read_b64_tr_b16 a[{4*ks+2*j}:{4*ks+2*j+1}], v25 offset:{(ks & 31) * 1024 + j * 256}")
        a("s_waitcnt lgkmcnt(0)")
        if k4 < 8:
            for ks in range(4 * k4 + 32, 4 * k4 + 36): wdma(ks)
    a("s_barrier")
    if stamp: stamp()
    a(f"""
    s_add_u32 s{S_SEG}, s{S_G}, {NEARLY}
    s_sub_u32 s{S_T0}, s{S_G}, 4
    s_cmp_ge_u32 s{S_G}, 4
    s_cselect_b32 s{S_SEG}, s{S_T0}, s{S_SEG}
    """)

    def addr():
        a(f"""
        s_lshl_b32 s{S_KO}, s{S_SEG}, 18
        s_lshl_b32 s{S_T0}, s{S_C}, 13
        s_add_u32 s{S_KO}, s{S_KO}, s{S_T0}
        s_add_u32 s{S_MO}, s{S_KO}, {WS_KVM}
        s_and_b32 s{S_T0}, s{S_WAVE}, 1
        s_lshl_b32 s{S_T0}, s{S_T0}, 10
        s_add_u32 s{S_QO}, s{S_KO}, s{S_T0}
        s_lshr_b32 s{S_T0}, s{S_WAVE}, 1
        s_lshl_b32 s{S_T0}, s{S_T0}, 12
        s_add_u32 s{S_VO}, s{S_KO}, s{S_T0}
        s_add_u32 s{S_VO}, s{S_VO}, {WS_VT}
        s_add_u32 s{S_KO}, s{S_KO}, {WS_KX}
        s_add_u32 s{S_QO2}, s{S_QO}, 4096
        s_add_u32 s{S_KO2}, s{S_KO}, 4096
        """)
    Lq = [f"buffer_load_dwordx4 v[{V_Q+4*u}:{V_Q+4*u+3}], v{V_L16}, {SRD}, s{S_QO if u < 2 else S_QO2} offen offset:{(u & 1) * 2048}" for u in range(4)]
    Lq += [f"buffer_load_dwordx4 v[{V_K+4*i}:{V_K+4*i+3}], v{V_L16}, {SRD}, s{S_KO if i < 4 else S_KO2} offen offset:{(i & 3) * 1024}" for i in range(8)]
    Lq += [f"buffer_load_dwordx4 v[{V_V+4*i}:{V_V+4*i+3}], v{V_L16}, {SRD}, s{S_VO} offen offset:{i * 1024}" for i in range(4)]
    Lm = [f"buffer_load_dwordx4 v[{V_KM+4*u}:{V_KM+4*u+3}], v{V_OKM}, {SRD}, s{S_MO} offen offset:{64*u} sc1" for u in range(4)]
    Lm += [f"buffer_load_dwordx2 v[{V_VM+2*i}:{V_VM+2*i+1}], v{V_OVM}, {SRD}, s{S_MO} offen offset:{512*(i >> 1) + 2048*(i & 1)} sc1" for i in range(4)]

    a.label(f"{name}_gp")
    poll_guard(40)
    a(f"""
    buffer_load_dword v{V_T0}, v{V_FGP}, {SRD}, 0 offen sc1
    s_waitcnt vmcnt(0)
    v_cmp_ne_u32 vcc, 32, v{V_T0}
    s_cbranch_vccz {name}_gk
    s_sleep 8
    s_branch {name}_gp
    {name}_gk:
    s_mov_b32 s{S_RET}, 0
    """)
    addr()
    a.label(f"{name}_ldq")
    for l in Lq: a(l)
    a.label(f"{name}_att")
    a("s_waitcnt vmcnt(0)")
    for u in range(4):
        for kt in range(2):
            d = V_S + 4 * kt
            c = "0" if u == 0 else f"v[{d}:{d+3}]"
            k = V_K + 8 * u + 4 * kt
            a(f"v_mfma_f32_16x16x32_bf16 v[{d}:{d+3}], v[{k}:{k+3}], v[{V_Q+4*u}:{V_Q+4*u+3}], {c}")
    a(f"""
    s_lshl_b32 s{S_OR}, s{S_SLOT}, 18
    s_add_u32 s{S_OR}, s{S_OR}, {WS_O}
    s_lshl_b32 s{S_T0}, s{S_C}, 13
    s_add_u32 s{S_OW}, s{S_OR}, s{S_T0}
    s_lshl_b32 s{S_T0}, s{S_WAVE}, 16
    s_add_u32 s{S_OR}, s{S_OR}, s{S_T0}
    s_lshl_b32 s{S_OUT}, s{S_SEG}, 17
    v_mov_b32 v{V_P+6}, v{V_ONE}
    v_mov_b32 v{V_P+7}, 0
    """)
    for kt, th in ((0, V_TH0), (1, V_TH1)):
        for r in range(4):
            a(f"v_cmp_gt_i32 vcc, {r}, v{th}")
            a("s_nop 1")
            a(f"v_cndmask_b32 v{V_S+4*kt+r}, v{V_S+4*kt+r}, v{V_NEG}, vcc")
    a(f"s_cmp_eq_u32 s{S_RET}, 1\ns_cbranch_scc1 {name}_rd")
    a.label(f"{name}_rp")
    poll_guard(41)
    a(f"""
    buffer_load_dword v{V_T0}, v{V_FRP}, {SRD}, 0 offen sc1
    s_waitcnt vmcnt(0)
    v_cmp_ge_u32 vcc, s{S_SEG}, v{V_T0}
    s_cbranch_vccz {name}_rk
    s_sleep {opt.get('rps', 2)}
    s_branch {name}_rp
    {name}_rk:
    """)
    xst(S_SEG)
    for l in Lm: a(l)
    a.label(f"{name}_rd")
    d = V_S + 8
    for u in range(4):
        a(f"s_waitcnt vmcnt({7-u})")
        c = "0" if u == 0 else f"v[{d}:{d+3}]"
        a(f"v_mfma_f32_16x16x32_bf16 v[{d}:{d+3}], v[{V_KM+4*u}:{V_KM+4*u+3}], v[{V_Q+4*u}:{V_Q+4*u+3}], {c}")
    xst(S_SEG)
    MX, TM = V_T1, V_T0
    a(f"""
    v_max3_f32 v{MX}, v{V_S}, v{V_S+1}, v{V_S+2}
    v_max3_f32 v{MX}, v{MX}, v{V_S+3}, v{V_S+4}
    v_max3_f32 v{MX}, v{MX}, v{V_S+5}, v{V_S+6}
    s_waitcnt vmcnt(0)
    v_swap_b32 v{V_VM+1}, v{V_VM+2}
    v_swap_b32 v{V_VM+5}, v{V_VM+6}
    s_nop 1
    v_max3_f32 v{MX}, v{MX}, v{V_S+7}, v{V_S+8}
    v_max_f32 v{TM}, v{MX}, v{V_S+9}
    v_max_f32 v{MX}, v{MX}, v{V_S+9}
    s_nop 1
    v_permlane16_swap_b32 v{MX}, v{TM}
    v_max_f32 v{MX}, v{MX}, v{TM}
    v_max_f32 v{TM}, v{MX}, v{TM}
    s_nop 1
    v_permlane32_swap_b32 v{MX}, v{TM}
    v_max_f32 v{MX}, v{MX}, v{TM}
    v_mul_f32 v{MX}, s{S_CST}, v{MX}
    """)
    for i in range(10):
        a(f"v_fma_f32 v{V_S+i}, v{V_S+i}, s{S_CST}, -v{MX}")
    for i in range(10):
        a(f"v_exp_f32 v{V_S+i}, v{V_S+i}")
    a("s_nop 0")
    for i in range(5):
        a(f"v_cvt_pk_bf16_f32 v{V_P+i}, v{V_S+2*i}, v{V_S+2*i+1}")
    a(f"v_mov_b32 v{V_P+5}, v{V_P+4}")
    a("s_nop 1")
    a(f"v_mfma_f32_16x16x32_bf16 v[{V_SM}:{V_SM+3}], v[{V_ONE}:{V_ONE+3}], v[{V_P}:{V_P+3}], 0")
    for i in range(4):
        a(f"v_mfma_f32_16x16x32_bf16 v[{V_O+4*i}:{V_O+4*i+3}], v[{V_V+4*i}:{V_V+4*i+3}], v[{V_P}:{V_P+3}], 0")
    a("s_nop 1")
    a(f"v_mfma_f32_16x16x16_bf16 v[{V_SM}:{V_SM+3}], v[{V_P+6}:{V_P+7}], v[{V_P+4}:{V_P+5}], v[{V_SM}:{V_SM+3}]")
    for i in range(4):
        vb = V_VM + 2 * i
        a(f"v_mfma_f32_16x16x16_bf16 v[{V_O+4*i}:{V_O+4*i+3}], v[{vb}:{vb+1}], v[{V_P+4}:{V_P+5}], v[{V_O+4*i}:{V_O+4*i+3}]")
    a.nops(4)
    a(f"v_rcp_f32 v{V_SM}, v{V_SM}")
    a.nops(3)
    for i in range(8):
        a(f"v_pk_mul_f32 v[{V_O+2*i}:{V_O+2*i+1}], v[{V_O+2*i}:{V_O+2*i+1}], v[{V_SM}:{V_SM+1}] op_sel_hi:[1,0]")
    for i in range(8):
        a(f"v_cvt_pk_bf16_f32 v{V_S+i}, v{V_O+2*i}, v{V_O+2*i+1}")
    xst(S_SEG)
    a(f"""
    s_add_u32 s{S_NEED}, s{S_SEG}, 1
    v_mov_b32 v{V_T1}, s{S_NEED}
    s_cmp_eq_u32 s{S_FAST}, 1
    s_cbranch_scc1 {name}_of
    buffer_store_dwordx4 v[{V_S}:{V_S+3}], v{V_OOW}, {SRD}, s{S_OW} offen sc1
    buffer_store_dwordx4 v[{V_S+4}:{V_S+7}], v{V_OOW}, {SRD}, s{S_OW} offen offset:2048 sc1
    s_waitcnt vmcnt(0)
    s_barrier
    buffer_store_dword v{V_T1}, v{V_FMY}, {SRD}, 0 offen sc1
    s_branch {name}_od
    {name}_of:
    buffer_store_dwordx4 v[{V_S}:{V_S+3}], v{V_OOW}, {SRD}, s{S_OW} offen
    buffer_store_dwordx4 v[{V_S+4}:{V_S+7}], v{V_OOW}, {SRD}, s{S_OW} offen offset:2048
    s_waitcnt vmcnt(0)
    s_barrier
    buffer_store_dword v{V_T1}, v{V_FMY}, {SRD}, 0 offen
    {name}_od:
    s_mov_b32 s{S_CUR}, s{S_SEG}
    s_add_u32 s{S_T0}, s{S_SLOT}, 1
    s_and_b32 s{S_T0}, s{S_T0}, {opt.get('nslot', 4) - 1}
    s_andn2_b32 s{S_SLOT}, s{S_SLOT}, 3
    s_or_b32 s{S_SLOT}, s{S_SLOT}, s{S_T0}
    s_add_u32 s{S_T0}, s{S_SEG}, 2
    s_add_u32 s{S_T1}, s{S_G}, {NEARLY}
    s_cmp_lt_u32 s{S_T0}, {NEARLY}
    s_cselect_b32 s{S_T0}, s{S_T0}, s{S_T1}
    s_add_u32 s{S_T1}, s{S_SEG}, 6
    s_cmp_lt_u32 s{S_SEG}, {NEARLY}
    s_cselect_b32 s{S_SEG}, s{S_T0}, s{S_T1}
    s_lshr_b32 s{S_T0}, s{S_G}, 1
    s_add_u32 s{S_T0}, s{S_T0}, {SPAIR}
    s_cmp_ge_u32 s{S_SEG}, {SPAIR}
    s_cselect_b32 s{S_SEG}, s{S_T0}, s{S_SEG}
    s_add_u32 s{S_T0}, s{S_CUR}, 3
    s_cmp_ge_u32 s{S_CUR}, {SPAIR}
    s_cselect_b32 s{S_SEG}, s{S_T0}, s{S_SEG}
    """)
    addr()
    xst(S_CUR)
    a.label(f"{name}_xp")
    poll_guard(42)
    a(f"""
    buffer_load_dword v{V_T0}, v{V_FXF}, {SRD}, 0 offen sc1
    s_waitcnt vmcnt(0)
    v_cmp_ge_u32 vcc, s{S_CUR}, v{V_T0}
    s_cbranch_vccnz {name}_xp
    """)
    def fload(i):
        d = V_F + 4 * (i % NFR)
        if i % 4 == 0:
            a(f"s_add_u32 s{S_T0}, s{S_ROT}, {i * 1024}")
            a(f"s_and_b32 s{S_T0}, s{S_T0}, 0xffff")
            a(f"s_add_u32 s{S_T0}, s{S_T0}, s{S_OR}")
        a(f"buffer_load_dwordx4 v[{d}:{d+3}], v{V_L16}, {SRD}, s{S_T0} offen offset:{(i & 3) * 1024} sc1")
    a(f"s_cmp_ge_u32 s{S_CUR}, {SPAIR}\ns_cbranch_scc1 {name}_half")
    PFD = opt.get('pfd', 12)
    q = []
    for i in range(PFD): fload(i); q.append(i)
    a(f"buffer_load_dword v{V_T2}, v{V_FRP}, {SRD}, 0 offen sc1"); q.append("rp")
    def mf(i, q):
        a(f"s_waitcnt vmcnt({len(q) - 1 - q.index(i)})")
        d = V_F + 4 * (i % NFR)
        c = "0" if i == 0 else f"v[{V_ACC}:{V_ACC+15}]"
        a(f"v_mfma_f32_32x32x16_bf16 v[{V_ACC}:{V_ACC+15}], a[{4*i}:{4*i+3}], v[{d}:{d+3}], {c}")
    for i in range(64 - PFD):
        mf(i, q)
        fload(i + PFD); q.append(i + PFD)
        if i == PFD:
            a(f"v_cmp_ge_u32 vcc, s{S_SEG}, v{V_T2}")
        if i == PFD + 1:
            a(f"s_cmp_eq_u64 vcc, 0\ns_cselect_b32 s{S_RET}, 1, 0")
    a(f"s_cmp_eq_u32 s{S_RET}, 1\ns_cbranch_scc1 {name}_pfx")
    for i in range(64 - PFD, 64): mf(i, q)
    a(f"s_branch {name}_pfd")
    a.label(f"{name}_pfx")
    extra = Lq + Lm
    for i in range(64 - PFD, 64):
        mf(i, q)
        for _ in range(-(-24 // PFD)):
            if extra: a(extra.pop(0)); q.append("x")
    assert not extra
    a.label(f"{name}_pfd")
    a.nops(12)
    for qq in range(4):
        a(f"ds_write_b128 v{V_LW}, v[{V_ACC+4*qq}:{V_ACC+4*qq+3}] offset:{1024*qq}")
    a("s_waitcnt lgkmcnt(0)\ns_barrier")
    for w in range(4):
        a(f"ds_read_b128 v[{V_ACC+4*w}:{V_ACC+4*w+3}], v{V_LR} offset:{4096*w}")
    a("s_waitcnt lgkmcnt(0)")
    fin = (f"""
    v_pk_add_f32 v[{V_ACC}:{V_ACC+1}], v[{V_ACC}:{V_ACC+1}], v[{V_ACC+4}:{V_ACC+5}]
    v_pk_add_f32 v[{V_ACC+2}:{V_ACC+3}], v[{V_ACC+2}:{V_ACC+3}], v[{V_ACC+6}:{V_ACC+7}]
    v_pk_add_f32 v[{V_ACC+8}:{V_ACC+9}], v[{V_ACC+8}:{V_ACC+9}], v[{V_ACC+12}:{V_ACC+13}]
    v_pk_add_f32 v[{V_ACC+10}:{V_ACC+11}], v[{V_ACC+10}:{V_ACC+11}], v[{V_ACC+14}:{V_ACC+15}]
    v_pk_add_f32 v[{V_ACC}:{V_ACC+1}], v[{V_ACC}:{V_ACC+1}], v[{V_ACC+8}:{V_ACC+9}]
    v_pk_add_f32 v[{V_ACC+2}:{V_ACC+3}], v[{V_ACC+2}:{V_ACC+3}], v[{V_ACC+10}:{V_ACC+11}]
    v_cvt_pk_bf16_f32 v{V_SM}, v{V_ACC}, v{V_ACC+1}
    v_cvt_pk_bf16_f32 v{V_SM+1}, v{V_ACC+2}, v{V_ACC+3}
    buffer_store_dwordx2 v[{V_SM}:{V_SM+1}], v{V_OUT}, s[{S_O}:{S_O+3}], s{S_OUT} offen {opt.get('ost', '')}
    """)
    a(fin)
    a(f"s_branch {name}_nxt")
    a.label(f"{name}_half")
    ACB = V_KM
    xst(S_CUR)
    def hload(i):
        d = V_F + 4 * (i % NFR)
        if i % 2 == 0:
            a(f"s_add_u32 s{S_T0}, s{S_ROT}, {i * 2048}")
            a(f"s_and_b32 s{S_T0}, s{S_T0}, 0xffff")
            a(f"s_add_u32 s{S_T0}, s{S_T0}, s{S_OR}")
        a(f"buffer_load_dwordx4 v[{d}:{d+3}], v{V_HL}, {SRD}, s{S_T0} offen offset:{(i & 1) * 2048} sc1")
    for i in range(PFD): hload(i)
    a(f"s_mov_b32 s{S_RET}, 0")
    for i in range(32):
        a(f"s_waitcnt vmcnt({min(31, i + PFD - 1) - i})")
        d = V_F + 4 * (i % NFR)
        for b, acc in enumerate((V_ACC, ACB)):
            c = "0" if i == 0 else f"v[{acc}:{acc+15}]"
            a(f"v_mfma_f32_32x32x16_bf16 v[{acc}:{acc+15}], a[{8*i+4*b}:{8*i+4*b+3}], v[{d}:{d+3}], {c}")
        if i + PFD < 32: hload(i + PFD)
    xst(S_CUR)
    a(f"s_mov_b32 vcc_lo, 0xffff0000\ns_mov_b32 vcc_hi, 0xffff0000")
    a.nops(10)
    for i in range(16):
        a(f"v_cndmask_b32 v{V_ACC+i}, v{V_ACC+i}, v{ACB+i}, vcc")
    for qq in range(4):
        a(f"ds_write_b128 v{V_LW}, v[{V_ACC+4*qq}:{V_ACC+4*qq+3}] offset:{1024*qq}")
    a(f"""
    s_waitcnt lgkmcnt(0)
    s_barrier
    s_cmp_ge_u32 s{S_WAVE}, 2
    s_cbranch_scc1 {name}_nxt
    """)
    for w in range(4):
        a(f"ds_read_b128 v[{V_ACC+4*w}:{V_ACC+4*w+3}], v{V_LR} offset:{4096*w}")
        a(f"ds_read_b128 v[{ACB+4*w}:{ACB+4*w+3}], v{V_LR} offset:{4096*w + 256}")
    a(f"""
    s_and_b32 s{S_T0}, s{S_G}, 1
    s_lshl_b32 s{S_T0}, s{S_T0}, 16
    s_add_u32 s{S_OUT}, s{S_OUT}, s{S_T0}
    s_waitcnt lgkmcnt(0)
    """)
    for i in range(0, 16, 2):
        a(f"v_pk_add_f32 v[{V_ACC+i}:{V_ACC+i+1}], v[{V_ACC+i}:{V_ACC+i+1}], v[{ACB+i}:{ACB+i+1}]")
    a(fin)
    a.label(f"{name}_nxt")
    if stamp: stamp()
    a(f"""
    s_cmp_eq_u32 s{S_RET}, 1
    s_cbranch_scc1 {name}_att
    s_cmp_lt_u32 s{S_SEG}, 64
    s_cbranch_scc1 {name}_ldq
    """)
```

```python
import sys, json
from common import *
from gen_rec import DBG_VOTE, global_init, rec_body, S_J, S_H, LDS_REC, WS_FL, WS_XB, WS_PROF
from gen_qkv import qkv_role
from gen_xo import xo_role
from gen_fft import gen_f0, gen_f1, gen_f2, gen_f3

DBG_F1, DBG_F2 = 72, 136
RECOPT = dict(preC="ack", preA="ack", xp=(18, 19), xd=(32,), vs=18, vbar=1, fsp=4)


def gen_mega(name, force_slow=False, wd=False, bprof=False, ropt={}, rprof=False, opt={}):
    a = Asm(); a.kernel_begin(name)
    S_W, S_D = 84, 88
    S_B, S_X, S_TK, S_GT, S_VOTE, S_TS, S_WDC = 92, 93, 94, 95, 100, 101, 83
    S_FAST, S_VER, S_WV = 96, 97, 98
    ro = dict(RECOPT); ro.update(ropt)

    def ts(srd=S_W):
        if not bprof: return
        l = a.newlabel(name + "_ts")
        a(f"""
        {'s_memtime' if opt.get('cyc') else 's_memrealtime'} vcc
        s_waitcnt lgkmcnt(0)
        s_mov_b64 exec, 1
        v_accvgpr_read_b32 v255, a255
        v_mov_b32 v135, vcc_lo
        s_nop 0
        buffer_store_dword v135, off, s[{srd}:{srd+3}], s{S_TS}
        s_mov_b64 exec, -1
        s_add_u32 s{S_TS}, s{S_TS}, 4
        """.replace("v_accvgpr_read_b32 v255, a255\n", ""))

    def wdog(code):
        if not wd: return
        a(f"""
        s_add_u32 s{S_WDC}, s{S_WDC}, 1
        s_cmp_gt_u32 s{S_WDC}, 300000
        s_movk_i32 s82, {code}
        s_cbranch_scc1 {name}_wdx
        """)

    a(f"""
    s_cmp_ge_u32 s2, 256
    s_cbranch_scc1 {name}_exit
    s_load_dwordx2 s[{S_W}:{S_W+1}], s[0:1], {KA_WS}
    s_load_dwordx2 s[{S_D}:{S_D+1}], s[0:1], {KA_DBG}
    s_getreg_b32 s{S_X}, hwreg(HW_REG_XCC_ID)
    s_and_b32 s{S_X}, s{S_X}, 7
    v_lshrrev_b32 v1, 6, v0
    v_mov_b32 v4, 0
    v_readfirstlane_b32 s80, v1
    v_mov_b32 v5, 0
    v_mov_b32 v6, 0
    v_mov_b32 v7, 0
    s_mov_b32 s{S_WDC}, 0
    s_lshl_b32 s{S_TS}, s2, 2
    s_add_u32 s{S_TS}, s{S_TS}, s80
    s_lshl_b32 s{S_TS}, s{S_TS}, 8
    s_add_u32 s{S_TS}, s{S_TS}, {220*MB}
    s_waitcnt lgkmcnt(0)
    s_mov_b32 s{S_W+2}, {WS_BYTES}
    s_mov_b32 s{S_W+3}, 0x00020000
    s_mov_b32 s{S_D+2}, 256
    s_mov_b32 s{S_D+3}, 0x00020000
    """)
    ts()
    if opt.get("cpf"):
        a(f"""
        s_getpc_b64 s[78:79]
        v_lshlrev_b32 v9, 7, v0
        """)
        for i in range(opt["cpf"]):
            a(f"global_load_dword v{10+i}, v9, s[78:79]")
            a("v_add_u32 v9, 0x8000, v9")
    PX = opt.get("px", 2)
    a(f"""
    s_mov_b32 s{S_WV}, s80
    s_cmp_lg_u32 s80, 0
    s_cbranch_scc1 {name}_st0
    v_mov_b32 v10, 1
    s_lshl_b32 s81, s{S_X}, 5
    s_mov_b64 exec, 1
    buffer_atomic_add v10, off, s[{S_D}:{S_D+3}], s81 offset:4 sc0
    s_lshl_b32 s81, s2, 7
    s_add_u32 s81, s81, {WS_FL}
    s_mov_b64 exec, 3
    v_lshlrev_b32 v1, 15, v0
    buffer_store_dword v4, v1, s[{S_W}:{S_W+3}], s81 offen sc1
    s_mov_b64 exec, -1
    {name}_st0:
    """)
    global_init(a, name, S_W)
    a(f"""
    s_cmp_lg_u32 s80, 0
    s_cbranch_scc1 {name}_st1
    s_mov_b64 exec, 1
    s_waitcnt vmcnt(4)
    ds_write_b32 v4, v10
    s_mov_b64 exec, -1
    s_waitcnt lgkmcnt(0)
    {name}_st1:
    s_barrier
    ds_read_b32 v2, v4
    s_waitcnt lgkmcnt(0)
    v_readfirstlane_b32 s{S_TK}, v2
    s_waitcnt vmcnt(0)
    s_barrier
    s_cmp_lg_u32 s80, 0
    s_cbranch_scc1 {name}_st2
    s_lshl_b32 s81, s{S_X}, 5
    v_mov_b32 v10, 1
    s_mov_b64 exec, 1
    buffer_atomic_add v10, off, s[{S_D}:{S_D+3}], s81 sc1
    s_mov_b64 exec, -1
    {name}_st2:
    s_sub_u32 s81, s{S_X}, {PX}
    s_cmp_ge_u32 s81, 2
    s_cbranch_scc1 {name}_nopr
    s_cmp_lg_u32 s80, 0
    s_cbranch_scc1 {name}_prd
    v_lshlrev_b32 v1, 4, v0
    s_and_b32 s81, s2, 127
    s_lshl_b32 s81, s81, 14
    s_add_u32 s81, s81, {WS_XB}
    s_add_u32 s77, s81, 8192
    buffer_store_dwordx4 v[4:7], v1, s[{S_W}:{S_W+3}], s81 offen sc1
    buffer_store_dwordx4 v[4:7], v1, s[{S_W}:{S_W+3}], s77 offen sc1
    s_waitcnt vmcnt(0)
    s_memtime s[70:71]
    buffer_store_dwordx4 v[4:7], v1, s[{S_W}:{S_W+3}], s81 offen sc1
    s_waitcnt vmcnt(0)
    s_memtime s[72:73]
    buffer_store_dwordx4 v[4:7], v1, s[{S_W}:{S_W+3}], s77 offen sc1
    s_waitcnt vmcnt(0)
    buffer_store_dwordx4 v[4:7], v1, s[{S_W}:{S_W+3}], s77 offen sc1
    s_waitcnt vmcnt(0)
    s_memtime s[74:75]
    buffer_store_dwordx4 v[4:7], v1, s[{S_W}:{S_W+3}], s81 offen sc1
    s_waitcnt vmcnt(0)
    s_memtime s[76:77]
    s_waitcnt lgkmcnt(0)
    s_sub_u32 s76, s76, s74
    s_sub_u32 s74, s74, s72
    s_sub_u32 s72, s72, s70
    s_add_u32 s72, s72, s76
    s_cmp_lt_u32 s74, s72
    s_cselect_b32 s81, 0x10001, 1
    v_mov_b32 v8, s81
    s_mov_b64 exec, 1
    buffer_atomic_add v8, off, s[{S_D}:{S_D+3}], 0 offset:{DBG_VOTE} sc1
    s_mov_b64 exec, -1
    {name}_prd:
    s_barrier
    """)
    for _ in range(opt.get("qdelay", 0)): a("s_sleep 127")
    a(f"""
    {name}_nopr:
    s_mov_b32 s{S_VER}, 0
    s_mov_b32 s{S_VOTE}, 64
    {name}_fast:
    s_mov_b32 s{S_FAST}, 1
    s_mov_b32 s{S_J}, s{S_X}
    s_and_b32 s{S_H}, s{S_TK}, 31
    s_cmp_lt_u32 s{S_X}, 2
    s_cbranch_scc1 {name}_recf
    s_sub_u32 s{S_B}, s{S_X}, 2
    s_lshl_b32 s{S_B}, s{S_B}, 5
    s_add_u32 s{S_B}, s{S_B}, s{S_H}
    s_branch {name}_bulk
    {name}_redo:
    s_waitcnt vmcnt(0) lgkmcnt(0)
    s_barrier
    v_readlane_b32 s{S_VOTE}, v252, {PX}
    v_readlane_b32 s81, v252, {PX + 1}
    s_mov_b32 s{S_VER}, 1
    s_nop 2
    s_add_u32 s{S_VOTE}, s{S_VOTE}, s81
    """)
    a(f"s_mov_b32 s{S_GT}, s{S_TK}")
    for i in range(7):
        a(f"""
        v_readlane_b32 s81, v252, {i}
        s_cmp_gt_u32 s{S_X}, {i}
        s_nop 2
        s_cselect_b32 s81, s81, 0
        s_add_u32 s{S_GT}, s{S_GT}, s81
        """)
    a(f"""
    {name}_slow:
    s_mov_b32 s{S_FAST}, 0
    s_lshr_b32 s{S_J}, s{S_GT}, 5
    s_and_b32 s{S_H}, s{S_GT}, 31
    s_cmp_lt_u32 s{S_GT}, 64
    s_cbranch_scc1 {name}_recs
    s_sub_u32 s{S_B}, s{S_GT}, 64
    s_branch {name}_bulk
    {name}_exit:
    s_endpgm
    """)

    def hook0(n):
        pass
    def hook1():
        a(f"""
        v_and_b32 v254, 7, v0
        v_lshlrev_b32 v254, 5, v254
        buffer_load_dword v252, v254, s[{S_D}:{S_D+3}], 0 offen sc1
        """)
    def hook2():
        l = a.newlabel(name + "_h2")
        a(f"""
        s_cmp_lg_u32 s{S_VER}, 0
        s_cbranch_scc1 {l}_ok
        {l}_ev:
        v_cmp_ne_u32 vcc, 32, v252
        """)
        if not force_slow: a(f"s_cbranch_vccz {l}_ok")
        a("s_mov_b32 s78, 0")
        for i in range(8):
            a(f"v_readlane_b32 s81, v252, {i}\ns_nop 3\ns_add_u32 s78, s78, s81")
        a(f"""
        s_cmp_eq_u32 s78, 256
        s_cbranch_scc1 {name}_redo
        """)
        wdog(2)
        a(f"""
        buffer_load_dword v252, v254, s[{S_D}:{S_D+3}], 0 offen sc1
        s_waitcnt vmcnt(0)
        s_branch {l}_ev
        {l}_ok:
        """)
    hooks = (hook0, hook1, hook2)
    if wd:
        a(f"""
        {name}_wdx:
        s_mov_b64 exec, 1
        v_mov_b32 v1, s82
        s_lshl_b32 s81, s2, 2
        s_add_u32 s81, s81, {WS_PROF + MB + 1024}
        buffer_store_dword v1, off, s[{S_W}:{S_W+3}], s81
        s_endpgm
        """)
    a.label(f"{name}_recf")
    def rts():
        if not bprof: return
        a(f"""
        s_memrealtime vcc
        s_waitcnt lgkmcnt(0)
        s_mov_b64 exec, 1
        v_mov_b32 v3, vcc_lo
        s_nop 0
        buffer_store_dword v3, off, s[4:7], s{S_TS}
        s_mov_b64 exec, -1
        s_add_u32 s{S_TS}, s{S_TS}, 4
        """)
    ts()
    rec_body(a, name + "_rf", "", wd=wd, full=True, S_VOTE=S_VOTE, opt=ro, prof=rprof, tstamp=rts, hooks=hooks)
    a.label(f"{name}_recs")
    if opt.get("noslow"): a("s_endpgm")
    else: rec_body(a, name + "_rs", "sc1", wd=wd, full=True, S_VOTE=S_VOTE, opt=RECOPT)

    def signal(off):
        a(f"""
        s_waitcnt vmcnt(0)
        s_barrier
        v_mov_b32 v2, 1
        v_cmp_eq_u32 vcc, 0, v0
        s_and_saveexec_b64 s[80:81], vcc
        s_cbranch_execz {name}_sg{off}_{a.uid}
        buffer_atomic_add v2, off, s[{S_D}:{S_D+3}], 0 offset:{off} sc1
        {name}_sg{off}_{a.uid}:
        s_mov_b64 exec, s[80:81]
        """)
        a.uid += 1

    def wait(off, n, tag):
        a.label(f"{name}_w{tag}")
        wdog(50)
        a(f"""
        s_sleep 8
        buffer_load_dword v2, off, s[{S_D}:{S_D+3}], 0 offset:{off} sc1
        s_waitcnt vmcnt(0)
        v_cmp_ne_u32 vcc, {n}, v2
        s_cbranch_vccnz {name}_w{tag}
        """)
    FIRST = opt.get("f1first", 0)
    def verify():
        hook1()
        a("s_waitcnt vmcnt(0)")
        hook2()
        a(f"s_mov_b32 s{S_VER}, 1")
    def f01():
        a(f"""
        s_cmp_lt_u32 s{S_B}, 128
        s_cbranch_scc1 {name}_f1
        s_sub_u32 s99, s{S_B}, 128
        {name}_f0l:
        s_barrier
        """)
        gen_f0(a, name + "_f0", role=99, noend=True, pre_store=verify if FIRST else None)
        a(f"""
        s_add_u32 s99, s99, 64
        s_cmp_lt_u32 s99, 288
        s_cbranch_scc1 {name}_f0l
        s_branch {name}_f1d
        {name}_f1:
        """)
        gen_f1(a, name + "_f1r", role=S_B, pre_store=verify if FIRST else None)
        a.label(f"{name}_f1d")
        signal(DBG_F1)
        ts()
    a.label(f"{name}_bulk")
    ts()
    if FIRST:
        hook0(0)
        f01()
    qkv_role(a, name + "_q", S_B, S_W, S_D, stamp=ts, opt=opt, hooks=None if FIRST else hooks)
    ts()
    if not FIRST: f01()
    a(f"s_cmp_ge_u32 s{S_B}, 128\ns_cbranch_scc1 {name}_xo")
    wait(DBG_F1, 192, "f1")
    a(f"s_mov_b32 s99, s{S_B}")
    gen_f2(a, name + "_f2", role=99)
    a(f"s_cmp_eq_u32 s99, 128\ns_cbranch_scc1 {name}_f2ret")
    signal(DBG_F2)
    ts()
    wait(DBG_F2, 129, "f2")
    gen_f3(a, name + "_f3", role=S_B, ost=opt.get("ost", ""))
    a.label(f"{name}_xo")
    ts()
    a(f"""
    s_waitcnt vmcnt(0) lgkmcnt(0)
    s_barrier
    s_cmp_lg_u32 s{S_B}, 128
    s_cbranch_scc1 {name}_xo2
    s_cmp_lg_u32 s{S_WV}, 0
    s_cbranch_scc1 {name}_xo2
    """)
    wait(DBG_F1, 192, "f1b")
    a(f"""
    s_mov_b32 s99, 128
    s_branch {name}_f2_in
    {name}_f2ret:
    s_waitcnt vmcnt(0)
    v_mov_b32 v2, 1
    s_mov_b64 exec, 1
    buffer_atomic_add v2, off, s[{S_D}:{S_D+3}], 0 offset:{DBG_F2} sc1
    s_mov_b64 exec, -1
    {name}_xo2:
    """)
    xo_role(a, name + "_x", S_B, S_W, S_FAST, wd=wdog if wd else None, opt=opt, stamp=ts)
    a("s_endpgm")
    return (name, a.text(), kd(name, 512, sgpr=102, accum=256), 256, 256, LDS_REC)


if __name__ == "__main__":
    out = sys.argv[1]
    kw = eval(sys.argv[2]) if len(sys.argv) > 2 else {}
    write_file(out, [gen_mega("mega_kernel", **kw)])
```

```python
import sys, json
from common import *
from gen_rec import DBG_VOTE, global_init, rec_body, S_J, S_H, LDS_REC, WS_FL, WS_XB, WS_PROF
from gen_qkv import qkv_role
from gen_xo import xo_role
from gen_fft import gen_f0, gen_f1, gen_f2, gen_f3

DBG_F1, DBG_F2 = 72, 136
RECOPT = dict(preC="ack", preA="ack", xp=(18, 19), xd=(32,), vs=18, vbar=1, fsp=4)


def gen_mega(name, force_slow=False, wd=False, bprof=False, ropt={}, rprof=False, opt={}):
    a = Asm(); a.kernel_begin(name)
    S_W, S_D = 84, 88
    S_B, S_X, S_TK, S_GT, S_VOTE, S_TS, S_WDC = 92, 93, 94, 95, 100, 101, 83
    S_FAST, S_VER, S_WV = 96, 97, 98
    ro = dict(RECOPT); ro.update(ropt)

    def ts(srd=S_W):
        if not bprof: return
        l = a.newlabel(name + "_ts")
        a(f"""
        {'s_memtime' if opt.get('cyc') else 's_memrealtime'} vcc
        s_waitcnt lgkmcnt(0)
        s_mov_b64 exec, 1
        v_accvgpr_read_b32 v255, a255
        v_mov_b32 v135, vcc_lo
        s_nop 0
        buffer_store_dword v135, off, s[{srd}:{srd+3}], s{S_TS}
        s_mov_b64 exec, -1
        s_add_u32 s{S_TS}, s{S_TS}, 4
        """.replace("v_accvgpr_read_b32 v255, a255\n", ""))

    def dmax(idx, srd=S_D, v=135):
        if not opt.get("dbgt"): return
        a(f"""
        s_memrealtime vcc
        s_waitcnt lgkmcnt(0)
        s_mov_b64 exec, 1
        v_mov_b32 v{v}, vcc_lo
        s_nop 0
        buffer_atomic_umax v{v}, off, s[{srd}:{srd+3}], 0 offset:{4*idx} sc1
        s_mov_b64 exec, -1
        """)

    def wdog(code):
        if not wd: return
        a(f"""
        s_add_u32 s{S_WDC}, s{S_WDC}, 1
        s_cmp_gt_u32 s{S_WDC}, 300000
        s_movk_i32 s82, {code}
        s_cbranch_scc1 {name}_wdx
        """)

    a(f"""
    s_cmp_ge_u32 s2, 256
    s_cbranch_scc1 {name}_exit
    s_load_dwordx2 s[{S_W}:{S_W+1}], s[0:1], {KA_WS}
    s_load_dwordx2 s[{S_D}:{S_D+1}], s[0:1], {KA_DBG}
    s_getreg_b32 s{S_X}, hwreg(HW_REG_XCC_ID)
    s_and_b32 s{S_X}, s{S_X}, 7
    v_lshrrev_b32 v1, 6, v0
    v_mov_b32 v4, 0
    v_readfirstlane_b32 s80, v1
    v_mov_b32 v5, 0
    v_mov_b32 v6, 0
    v_mov_b32 v7, 0
    s_mov_b32 s{S_WDC}, 0
    s_lshl_b32 s{S_TS}, s2, 2
    s_add_u32 s{S_TS}, s{S_TS}, s80
    s_lshl_b32 s{S_TS}, s{S_TS}, 8
    s_add_u32 s{S_TS}, s{S_TS}, {220*MB}
    s_waitcnt lgkmcnt(0)
    s_mov_b32 s{S_W+2}, {WS_BYTES}
    s_mov_b32 s{S_W+3}, 0x00020000
    s_mov_b32 s{S_D+2}, 256
    s_mov_b32 s{S_D+3}, 0x00020000
    """)
    ts()
    if opt.get("cpf"):
        a(f"""
        s_getpc_b64 s[78:79]
        v_lshlrev_b32 v9, 7, v0
        """)
        for i in range(opt["cpf"]):
            a(f"global_load_dword v{10+i}, v9, s[78:79]")
            a("v_add_u32 v9, 0x8000, v9")
    PX = opt.get("px", 2)
    a(f"""
    s_mov_b32 s{S_WV}, s80
    s_cmp_lg_u32 s80, 0
    s_cbranch_scc1 {name}_st0
    v_mov_b32 v10, 1
    s_lshl_b32 s81, s{S_X}, 5
    s_mov_b64 exec, 1
    buffer_atomic_add v10, off, s[{S_D}:{S_D+3}], s81 offset:4 sc0
    s_lshl_b32 s81, s2, 7
    s_add_u32 s81, s81, {WS_FL}
    s_mov_b64 exec, 3
    v_lshlrev_b32 v1, 15, v0
    buffer_store_dword v4, v1, s[{S_W}:{S_W+3}], s81 offen sc1
    s_mov_b64 exec, -1
    {name}_st0:
    """)
    global_init(a, name, S_W)
    a(f"""
    s_cmp_lg_u32 s80, 0
    s_cbranch_scc1 {name}_st1
    s_mov_b64 exec, 1
    s_waitcnt vmcnt(4)
    ds_write_b32 v4, v10
    s_mov_b64 exec, -1
    s_waitcnt lgkmcnt(0)
    {name}_st1:
    s_barrier
    ds_read_b32 v2, v4
    s_waitcnt lgkmcnt(0)
    v_readfirstlane_b32 s{S_TK}, v2
    s_waitcnt vmcnt(0)
    s_barrier
    s_cmp_lg_u32 s80, 0
    s_cbranch_scc1 {name}_st2
    s_lshl_b32 s81, s{S_X}, 5
    v_mov_b32 v10, 1
    s_mov_b64 exec, 1
    buffer_atomic_add v10, off, s[{S_D}:{S_D+3}], s81 sc1
    s_mov_b64 exec, -1
    """)
    dmax(3)
    a(f"""
    {name}_st2:
    s_sub_u32 s81, s{S_X}, {PX}
    s_cmp_ge_u32 s81, 2
    s_cbranch_scc1 {name}_nopr
    s_cmp_lg_u32 s80, 0
    s_cbranch_scc1 {name}_prd
    v_lshlrev_b32 v1, 4, v0
    s_and_b32 s81, s2, 127
    s_lshl_b32 s81, s81, 14
    s_add_u32 s81, s81, {WS_XB}
    s_add_u32 s77, s81, 8192
    buffer_store_dwordx4 v[4:7], v1, s[{S_W}:{S_W+3}], s81 offen sc1
    buffer_store_dwordx4 v[4:7], v1, s[{S_W}:{S_W+3}], s77 offen sc1
    s_waitcnt vmcnt(0)
    s_memtime s[70:71]
    buffer_store_dwordx4 v[4:7], v1, s[{S_W}:{S_W+3}], s81 offen sc1
    s_waitcnt vmcnt(0)
    s_memtime s[72:73]
    buffer_store_dwordx4 v[4:7], v1, s[{S_W}:{S_W+3}], s77 offen sc1
    s_waitcnt vmcnt(0)
    buffer_store_dwordx4 v[4:7], v1, s[{S_W}:{S_W+3}], s77 offen sc1
    s_waitcnt vmcnt(0)
    s_memtime s[74:75]
    buffer_store_dwordx4 v[4:7], v1, s[{S_W}:{S_W+3}], s81 offen sc1
    s_waitcnt vmcnt(0)
    s_memtime s[76:77]
    s_waitcnt lgkmcnt(0)
    s_sub_u32 s76, s76, s74
    s_sub_u32 s74, s74, s72
    s_sub_u32 s72, s72, s70
    s_add_u32 s72, s72, s76
    s_cmp_lt_u32 s74, s72
    s_cselect_b32 s81, 0x10001, 1
    v_mov_b32 v8, s81
    s_mov_b64 exec, 1
    buffer_atomic_add v8, off, s[{S_D}:{S_D+3}], 0 offset:{DBG_VOTE} sc1
    s_mov_b64 exec, -1
    {name}_prd:
    s_barrier
    """)
    for _ in range(opt.get("qdelay", 0)): a("s_sleep 127")
    a(f"""
    {name}_nopr:
    s_mov_b32 s{S_VER}, 0
    s_mov_b32 s{S_VOTE}, 64
    {name}_fast:
    s_mov_b32 s{S_FAST}, 1
    s_mov_b32 s{S_J}, s{S_X}
    s_and_b32 s{S_H}, s{S_TK}, 31
    s_cmp_lt_u32 s{S_X}, 2
    s_cbranch_scc1 {name}_recf
    s_sub_u32 s{S_B}, s{S_X}, 2
    s_lshl_b32 s{S_B}, s{S_B}, 5
    s_add_u32 s{S_B}, s{S_B}, s{S_H}
    s_branch {name}_bulk
    {name}_redo:
    s_waitcnt vmcnt(0) lgkmcnt(0)
    s_barrier
    v_readlane_b32 s{S_VOTE}, v252, {PX}
    v_readlane_b32 s81, v252, {PX + 1}
    s_mov_b32 s{S_VER}, 1
    s_nop 2
    s_add_u32 s{S_VOTE}, s{S_VOTE}, s81
    """)
    a(f"s_mov_b32 s{S_GT}, s{S_TK}")
    for i in range(7):
        a(f"""
        v_readlane_b32 s81, v252, {i}
        s_cmp_gt_u32 s{S_X}, {i}
        s_nop 2
        s_cselect_b32 s81, s81, 0
        s_add_u32 s{S_GT}, s{S_GT}, s81
        """)
    a(f"""
    {name}_slow:
    s_mov_b32 s{S_FAST}, 0
    s_lshr_b32 s{S_J}, s{S_GT}, 5
    s_and_b32 s{S_H}, s{S_GT}, 31
    s_cmp_lt_u32 s{S_GT}, 64
    s_cbranch_scc1 {name}_recs
    s_sub_u32 s{S_B}, s{S_GT}, 64
    s_branch {name}_bulk
    {name}_exit:
    s_endpgm
    """)

    def hook0(n):
        pass
    def hook1():
        a(f"""
        v_and_b32 v254, 7, v0
        v_lshlrev_b32 v254, 5, v254
        buffer_load_dword v252, v254, s[{S_D}:{S_D+3}], 0 offen sc1
        """)
    def hook2():
        l = a.newlabel(name + "_h2")
        a(f"""
        s_cmp_lg_u32 s{S_VER}, 0
        s_cbranch_scc1 {l}_ok
        {l}_ev:
        v_cmp_ne_u32 vcc, 32, v252
        """)
        if not force_slow: a(f"s_cbranch_vccz {l}_ok")
        a("s_mov_b32 s78, 0")
        for i in range(8):
            a(f"v_readlane_b32 s81, v252, {i}\ns_nop 3\ns_add_u32 s78, s78, s81")
        a(f"""
        s_cmp_eq_u32 s78, 256
        s_cbranch_scc1 {name}_redo
        """)
        wdog(2)
        a(f"""
        buffer_load_dword v252, v254, s[{S_D}:{S_D+3}], 0 offen sc1
        s_waitcnt vmcnt(0)
        s_branch {l}_ev
        {l}_ok:
        """)
    hooks = (hook0, hook1, hook2)
    if wd:
        a(f"""
        {name}_wdx:
        s_mov_b64 exec, 1
        v_mov_b32 v1, s82
        s_lshl_b32 s81, s2, 2
        s_add_u32 s81, s81, {WS_PROF + MB + 1024}
        buffer_store_dword v1, off, s[{S_W}:{S_W+3}], s81
        s_endpgm
        """)
    a.label(f"{name}_recf")
    rn = [0]
    def rts():
        if opt.get("dbgt"):
            l = a.newlabel(name + "_rt")
            a(f"s_cmp_lg_u32 s20, 0\ns_cbranch_scc1 {l}")
            dmax(4 + rn[0], 12, 3); rn[0] += 1
            a.label(l)
        if not bprof: return
        a(f"""
        s_memrealtime vcc
        s_waitcnt lgkmcnt(0)
        s_mov_b64 exec, 1
        v_mov_b32 v3, vcc_lo
        s_nop 0
        buffer_store_dword v3, off, s[4:7], s{S_TS}
        s_mov_b64 exec, -1
        s_add_u32 s{S_TS}, s{S_TS}, 4
        """)
    ts()
    rec_body(a, name + "_rf", "", wd=wd, full=True, S_VOTE=S_VOTE, opt=ro, prof=rprof, tstamp=rts, hooks=hooks)
    a.label(f"{name}_recs")
    if opt.get("noslow"): a("s_endpgm")
    else: rec_body(a, name + "_rs", "sc1", wd=wd, full=True, S_VOTE=S_VOTE, opt=RECOPT)

    def signal(off):
        a(f"""
        s_waitcnt vmcnt(0)
        s_barrier
        v_mov_b32 v2, 1
        v_cmp_eq_u32 vcc, 0, v0
        s_and_saveexec_b64 s[80:81], vcc
        s_cbranch_execz {name}_sg{off}_{a.uid}
        buffer_atomic_add v2, off, s[{S_D}:{S_D+3}], 0 offset:{off} sc1
        {name}_sg{off}_{a.uid}:
        s_mov_b64 exec, s[80:81]
        """)
        a.uid += 1

    def wait(off, n, tag):
        a.label(f"{name}_w{tag}")
        wdog(50)
        a(f"""
        s_sleep 8
        buffer_load_dword v2, off, s[{S_D}:{S_D+3}], 0 offset:{off} sc1
        s_waitcnt vmcnt(0)
        v_cmp_ne_u32 vcc, {n}, v2
        s_cbranch_vccnz {name}_w{tag}
        """)
    FIRST = opt.get("f1first", 0)
    def verify():
        hook1()
        a("s_waitcnt vmcnt(0)")
        hook2()
        a(f"s_mov_b32 s{S_VER}, 1")
    def f01():
        a(f"""
        s_cmp_lt_u32 s{S_B}, 128
        s_cbranch_scc1 {name}_f1
        s_sub_u32 s99, s{S_B}, 128
        {name}_f0l:
        s_barrier
        """)
        gen_f0(a, name + "_f0", role=99, noend=True, pre_store=verify if FIRST else None)
        a(f"""
        s_add_u32 s99, s99, 64
        s_cmp_lt_u32 s99, 288
        s_cbranch_scc1 {name}_f0l
        s_branch {name}_f1d
        {name}_f1:
        """)
        gen_f1(a, name + "_f1r", role=S_B, pre_store=verify if FIRST else None)
        a.label(f"{name}_f1d")
        signal(DBG_F1)
        ts()
    a.label(f"{name}_bulk")
    ts()
    if FIRST:
        hook0(0)
        f01()
    qkv_role(a, name + "_q", S_B, S_W, S_D, stamp=ts, opt=opt, hooks=None if FIRST else hooks)
    ts()
    if opt.get("dbgt"):
        a(f"s_cmp_lg_u32 s{S_WV}, 0\ns_cbranch_scc1 {name}_fq")
        dmax(7)
        a.label(f"{name}_fq")
    if not FIRST: f01()
    a(f"s_cmp_ge_u32 s{S_B}, 128\ns_cbranch_scc1 {name}_xo")
    wait(DBG_F1, 192, "f1")
    a(f"s_mov_b32 s99, s{S_B}")
    gen_f2(a, name + "_f2", role=99)
    a(f"s_cmp_eq_u32 s99, 128\ns_cbranch_scc1 {name}_f2ret")
    signal(DBG_F2)
    ts()
    wait(DBG_F2, 129, "f2")
    gen_f3(a, name + "_f3", role=S_B, ost=opt.get("ost", ""))
    a.label(f"{name}_xo")
    ts()
    if opt.get("dbgt"):
        a(f"s_cmp_lg_u32 s{S_WV}, 0\ns_cbranch_scc1 {name}_fx")
        dmax(10)
        a.label(f"{name}_fx")
    a(f"""
    s_waitcnt vmcnt(0) lgkmcnt(0)
    s_barrier
    s_cmp_lg_u32 s{S_B}, 128
    s_cbranch_scc1 {name}_xo2
    s_cmp_lg_u32 s{S_WV}, 0
    s_cbranch_scc1 {name}_xo2
    """)
    wait(DBG_F1, 192, "f1b")
    a(f"""
    s_mov_b32 s99, 128
    s_branch {name}_f2_in
    {name}_f2ret:
    s_waitcnt vmcnt(0)
    v_mov_b32 v2, 1
    s_mov_b64 exec, 1
    buffer_atomic_add v2, off, s[{S_D}:{S_D+3}], 0 offset:{DBG_F2} sc1
    s_mov_b64 exec, -1
    {name}_xo2:
    """)
    xo_role(a, name + "_x", S_B, S_W, S_FAST, wd=wdog if wd else None, opt=opt, stamp=ts)
    if opt.get("dbgt"):
        a(f"s_cmp_lg_u32 s{S_WV}, 0\ns_cbranch_scc1 {name}_fin")
        dmax(6)
        a.label(f"{name}_fin")
    a("s_endpgm")
    return (name, a.text(), kd(name, 512, sgpr=102, accum=256), 256, 256, LDS_REC)


if __name__ == "__main__":
    out = sys.argv[1]
    kw = eval(sys.argv[2]) if len(sys.argv) > 2 else {}
    write_file(out, [gen_mega("mega_kernel", **kw)])
```

```python
import math, struct
from common import *
WS_T1 = 92 * MB
WS_T2 = 104 * MB

WS_WT = 116 * MB
if os.environ.get("LAYOUT") == "hi":
    WS_T1, WS_T2, WS_WT = 226 * MB, 236 * MB, 246 * MB
if os.environ.get("ALIAS"):
    WS_T2 = WS_T1
SCALE = 0.5 / (2048.0 * 1024.0)


def flit(x):
    return "0x%08x" % struct.unpack("<I", struct.pack("<f", x))[0]


class RegFFT:
    def __init__(self, a, re, im, temps):
        self.a, self.re, self.im, self.t = a, list(re), list(im), list(temps)

    def fft(self, sign):
        a = self.a
        n = len(self.re)
        re, im = self.re, self.im
        span = n // 2
        while span >= 1:
            for start in range(0, n, 2 * span):
                for j in range(span):
                    p, q = start + j, start + j + span
                    num, den = j, 2 * span
                    tr, ti = self.t[0], self.t[1]
                    if num == 0:
                        a(f"v_sub_f32 v{tr}, v{re[p]}, v{re[q]}")
                        a(f"v_sub_f32 v{ti}, v{im[p]}, v{im[q]}")
                        a(f"v_add_f32 v{re[p]}, v{re[p]}, v{re[q]}")
                        a(f"v_add_f32 v{im[p]}, v{im[p]}, v{im[q]}")
                        self.t[0], re[q] = re[q], tr
                        self.t[1], im[q] = im[q], ti
                    elif 4 * num == den:
                        if sign > 0:
                            a(f"v_sub_f32 v{tr}, v{im[q]}, v{im[p]}")
                            a(f"v_sub_f32 v{ti}, v{re[p]}, v{re[q]}")
                        else:
                            a(f"v_sub_f32 v{tr}, v{im[p]}, v{im[q]}")
                            a(f"v_sub_f32 v{ti}, v{re[q]}, v{re[p]}")
                        a(f"v_add_f32 v{re[p]}, v{re[p]}, v{re[q]}")
                        a(f"v_add_f32 v{im[p]}, v{im[p]}, v{im[q]}")
                        self.t[0], re[q] = re[q], tr
                        self.t[1], im[q] = im[q], ti
                    else:
                        c = math.cos(2 * math.pi * num / den)
                        s = sign * math.sin(2 * math.pi * num / den)
                        a(f"v_sub_f32 v{tr}, v{re[p]}, v{re[q]}")
                        a(f"v_sub_f32 v{ti}, v{im[p]}, v{im[q]}")
                        a(f"v_add_f32 v{re[p]}, v{re[p]}, v{re[q]}")
                        a(f"v_add_f32 v{im[p]}, v{im[p]}, v{im[q]}")
                        a(f"v_mul_f32 v{re[q]}, {flit(c)}, v{tr}")
                        a(f"v_mul_f32 v{im[q]}, {flit(s)}, v{tr}")
                        a(f"v_fmac_f32 v{re[q]}, {flit(-s)}, v{ti}")
                        a(f"v_fmac_f32 v{im[q]}, {flit(c)}, v{ti}")
            span //= 2
        bits = n.bit_length() - 1
        rev = [int(format(i, f"0{bits}b")[::-1], 2) for i in range(n)]
        self.re = [re[rev[i]] for i in range(n)]
        self.im = [im[rev[i]] for i in range(n)]

    def twiddle(self, vx, den, sign, scale_idx=1):
        a = self.a
        re, im = self.re, self.im
        tA, tC, tS, tR = self.t[0], self.t[1], self.t[2], self.t[3]
        for k in range(1, len(re)):
            a(f"v_mul_f32 v{tA}, {flit(sign * k / den)}, v{vx}")
            a(f"v_cos_f32 v{tC}, v{tA}")
            a(f"v_sin_f32 v{tS}, v{tA}")
            a("s_nop 0")
            a(f"v_mul_f32 v{tR}, v{re[k]}, v{tC}")
            a(f"v_fma_f32 v{tR}, -v{im[k]}, v{tS}, v{tR}")
            a(f"v_mul_f32 v{im[k]}, v{im[k]}, v{tC}")
            a(f"v_fmac_f32 v{im[k]}, v{re[k]}, v{tS}")
            self.t[3], re[k] = re[k], tR
            tR = self.t[3]


def srd(a, s, ptr_lo, nbytes):
    a(f"s_mov_b32 s{s+2}, {nbytes}")
    a(f"s_mov_b32 s{s+3}, 0x00020000")


def fft1024(a, F, v_tau_f, v_lw, v_lr, sign):
    F.fft(sign)
    F.twiddle(v_tau_f, 1024.0, sign)
    for k in range(32):
        a(f"ds_write_b32 v{v_lw}, v{F.re[k]} offset:{k*264}")
        a(f"ds_write_b32 v{v_lw}, v{F.im[k]} offset:{k*264+4}")
    a("s_waitcnt lgkmcnt(0)")
    for n in range(32):
        a(f"ds_read_b32 v{F.re[n]}, v{v_lr} offset:{n*8}")
        a(f"ds_read_b32 v{F.im[n]}, v{v_lr} offset:{n*8+4}")
        if n % 7 == 6:
            a("s_waitcnt lgkmcnt(0)")
    a("s_waitcnt lgkmcnt(0)")
    F.fft(sign)


def gen_f0(a: Asm, name, role=None, noend=False, pre_store=None):
    SI = "s2" if role is None else f"s{role}"
    if role is None:
        a.kernel_begin(name)
        a(f"s_cmp_ge_u32 s2, 288\ns_cbranch_scc1 {name}_end")
    a(f"""
    s_load_dwordx2 s[4:5], s[0:1], {KA_WR}
    s_load_dwordx2 s[8:9], s[0:1], {KA_WI}
    s_load_dwordx2 s[12:13], s[0:1], {KA_WS}
    s_and_b32 s16, {SI}, 31       ; k0 tile
    s_lshr_b32 s17, {SI}, 5
    v_and_b32 v1, 63, v0
    v_lshrrev_b32 v2, 6, v0
    s_waitcnt lgkmcnt(0)
    s_mov_b32 s6, {2048*513*2}
    s_mov_b32 s7, 0x00020000
    s_mov_b32 s10, {2048*513*2}
    s_mov_b32 s11, 0x00020000
    s_add_u32 s12, s12, {WS_WT}
    s_addc_u32 s13, s13, 0
    s_mov_b32 s14, {513*8192}
    s_mov_b32 s15, 0x00020000
    s_lshl_b32 s18, s16, 6
    v_add_u32 v3, s18, v2
    s_movk_i32 s19, 1026
    v_mul_lo_u32 v3, v3, s19
    s_lshl_b32 s18, s17, 7
    v_add_u32 v3, s18, v3
    v_lshl_add_u32 v3, v1, 1, v3
    """)
    for i in range(16):
        a(f"s_mov_b32 s18, {4*1026*i}")
        a(f"buffer_load_ushort v{16+i}, v3, s[4:7], s18 offen")
        a(f"buffer_load_ushort v{32+i}, v3, s[8:11], s18 offen")
    a(f"""
    v_mul_u32_u24 v4, 65, v1
    v_add_u32 v4, v4, v2
    v_lshlrev_b32 v4, 2, v4
    s_waitcnt vmcnt(0)
    """)
    for i in range(16):
        a(f"v_lshl_or_b32 v{16+i}, v{32+i}, 16, v{16+i}")
        a(f"ds_write_b32 v4, v{16+i} offset:{16*i}")
    a(f"""
    v_lshrrev_b32 v7, 4, v0
    v_and_b32 v8, 15, v0
    v_mul_u32_u24 v5, 65, v7
    v_lshl_add_u32 v5, v8, 2, v5
    v_lshlrev_b32 v5, 2, v5
    s_waitcnt lgkmcnt(0)
    s_barrier
    """)
    for i in range(4):
        for r in range(4):
            a(f"ds_read_b32 v{16+4*i+r}, v5 offset:{16*65*4*i + 4*r}")
    a(f"""
    s_lshl_b32 s18, s17, 6
    v_add_u32 v6, s18, v7
    v_lshlrev_b32 v6, 13, v6
    s_lshl_b32 s18, s16, 8
    v_add_u32 v6, s18, v6
    v_lshl_add_u32 v6, v8, 4, v6
    s_waitcnt lgkmcnt(0)
    """)
    if pre_store: pre_store()
    for i in range(4):
        a(f"s_mov_b32 s18, {16*8192*i}")
        a(f"buffer_store_dwordx4 v[{16+4*i}:{19+4*i}], v6, s[12:15], s18 offen{' sc1' if noend else ''}")
    if noend:
        return
    if role is not None:
        a("s_endpgm")
        return 288
    a.label(f"{name}_end")
    a("s_endpgm")
    return kd(name, 48, sgpr=24), 288, 64 * 65 * 4


def gen_f1(a: Asm, name, role=None, pre_store=None):
    ST = "s2" if role is None else f"s{role}"
    SCX = "" if role is None else " sc1"
    if role is None:
        a.kernel_begin(name)
        a(f"s_cmp_ge_u32 s2, 128\ns_cbranch_scc1 {name}_end")
    else:
        a("s_barrier")
    V_TAU, V_F, V_TAUF, V_LW, V_LR, V_T0, V_T1, V_T2 = 1, 2, 3, 4, 5, 6, 7, 8
    RE = list(range(16, 48)); IM = list(range(48, 80)); TMP = list(range(80, 84))
    FB = 8448
    a(f"""
    s_load_dwordx2 s[4:5], s[0:1], {KA_BX}
    s_load_dwordx2 s[8:9], s[0:1], {KA_WS}
    v_and_b32 v{V_TAU}, 31, v0
    v_lshrrev_b32 v{V_F}, 5, v0
    v_cvt_f32_u32 v{V_TAUF}, v{V_TAU}
    s_waitcnt lgkmcnt(0)
    s_mov_b32 s6, {4*MB}
    s_mov_b32 s7, 0x00020000
    s_mov_b32 s10, {WS_BYTES}
    s_mov_b32 s11, 0x00020000
    s_lshl_b32 s12, {ST}, 15
    v_lshlrev_b32 v{V_T0}, 12, v{V_F}
    v_lshl_add_u32 v{V_T0}, v{V_TAU}, 1, v{V_T0}
    """)
    for i in range(32):
        a(f"buffer_load_ushort v{RE[i]}, v{V_T0}, s[4:7], s12 offen offset:{64*i}")
        a(f"buffer_load_ushort v{IM[i]}, v{V_T0}, s[4:7], s12 offen offset:{2048+64*i}")
    a(f"""
    s_movk_i32 s13, {FB}
    v_mul_lo_u32 v{V_T1}, v{V_F}, s13
    v_lshl_add_u32 v{V_LW}, v{V_TAU}, 3, v{V_T1}
    s_movk_i32 s13, 264
    v_mul_lo_u32 v{V_LR}, v{V_TAU}, s13
    v_add_u32 v{V_LR}, v{V_LR}, v{V_T1}
    s_waitcnt vmcnt(0)
    """)
    for i in range(32):
        a(f"v_lshlrev_b32 v{RE[i]}, 16, v{RE[i]}")
        a(f"v_lshlrev_b32 v{IM[i]}, 16, v{IM[i]}")
    F = RegFFT(a, RE, IM, TMP)
    fft1024(a, F, V_TAUF, V_LW, V_LR, -1)
    for i in range(32):
        a(f"ds_write_b32 v{V_LW}, v{F.re[i]} offset:{256*i}")
        a(f"ds_write_b32 v{V_LW}, v{F.im[i]} offset:{256*i+4}")
    a("s_waitcnt lgkmcnt(0)\ns_barrier")
    if pre_store: pre_store()
    a(f"""
    v_and_b32 v{V_T0}, 7, v0
    v_lshrrev_b32 v{V_T1}, 3, v0
    s_movk_i32 s13, {FB}
    v_mul_lo_u32 v{V_T2}, v{V_T0}, s13          ; f*FB
    v_lshl_add_u32 v{V_LW}, v{V_T1}, 3, v{V_T2}
    ; global: T1 + k*16384 + (16b + 2f)*8
    v_lshlrev_b32 v{V_LR}, 14, v{V_T1}
    v_lshl_add_u32 v{V_LR}, v{V_T0}, 4, v{V_LR}
    s_lshl_b32 s12, {ST}, 7
    s_add_u32 s12, s12, {WS_T1}
    """)
    for it in range(17):
        a(f"""
        v_sub_u32 v{V_T0}, {1024 - 32*it}, v{V_T1}
        v_and_b32 v{V_T0}, 1023, v{V_T0}
        v_lshl_add_u32 v{V_T0}, v{V_T0}, 3, v{V_T2}
        ds_read_b64 v[16:17], v{V_LW} offset:{256*it}
        ds_read_b64 v[18:19], v{V_T0}
        s_waitcnt lgkmcnt(0)
        v_add_f32 v20, v16, v18      ; ar+br
        v_sub_f32 v21, v17, v19      ; ai-bi
        v_add_f32 v22, v17, v19      ; ai+bi
        v_sub_f32 v23, v18, v16      ; br-ar
        s_mov_b32 s13, s12
        """)
        if it == 16:
            a(f"v_cmp_eq_u32 vcc, 0, v{V_T1}")
            a("s_and_saveexec_b64 s[14:15], vcc")
        a(f"s_add_u32 s13, s12, {it * 32 * 16384}")
        a(f"buffer_store_dwordx4 v[20:23], v{V_LR}, s[8:11], s13 offen{SCX}")
        a.nops(2)
    if role is not None:
        a("s_mov_b64 exec, -1")
        return
    a.label(f"{name}_end")
    a("s_endpgm")
    return kd(name, 96, sgpr=24), 128, 8 * FB


def gen_f3(a: Asm, name, role=None, ost=''):
    ST = "s2" if role is None else f"s{role}"
    if role is None:
        a.kernel_begin(name)
        a(f"s_cmp_ge_u32 s2, 128\ns_cbranch_scc1 {name}_end")
    else:
        a("s_barrier")
    V_TAU, V_F, V_TAUF, V_LW, V_LR, V_T0, V_T1, V_T2 = 1, 2, 3, 4, 5, 6, 7, 8
    RE = list(range(16, 48)); IM = list(range(48, 80)); TMP = list(range(80, 84))
    FB = 8448
    a(f"""
    s_load_dwordx2 s[4:5], s[0:1], {KA_OUT}
    s_load_dwordx2 s[8:9], s[0:1], {KA_WS}
    v_and_b32 v{V_T0}, 7, v0
    v_lshrrev_b32 v{V_T1}, 3, v0
    s_movk_i32 s13, {FB}
    v_mul_lo_u32 v{V_T2}, v{V_T0}, s13          ; f*FB
    v_lshl_add_u32 v{V_LW}, v{V_T1}, 3, v{V_T2}
    v_lshlrev_b32 v{V_LR}, 14, v{V_T1}
    v_lshl_add_u32 v{V_LR}, v{V_T0}, 4, v{V_LR}
    s_lshl_b32 s12, {ST}, 7
    s_add_u32 s12, s12, {WS_T2}
    s_waitcnt lgkmcnt(0)
    s_mov_b32 s6, {8*MB}
    s_mov_b32 s7, 0x00020000
    s_mov_b32 s10, {WS_BYTES}
    s_mov_b32 s11, 0x00020000
    """)
    for it in range(17):
        a(f"s_add_u32 s13, s12, {it * 32 * 16384}")
        a(f"buffer_load_dwordx4 v[{16+4*it}:{19+4*it}], v{V_LR}, s[8:11], s13 offen")
    a("s_waitcnt vmcnt(0)")
    a(f"v_cmp_eq_u32 vcc, 0, v{V_T1}")
    a.nops(2)
    a("v_mov_b32 v9, 0")
    for it in (0, 16):
        b = 16 + 4 * it
        a(f"v_cndmask_b32 v{b+1}, v{b+1}, v9, vcc")
        a(f"v_cndmask_b32 v{b+3}, v{b+3}, v9, vcc")
    for it in range(17):
        b = 16 + 4 * it
        if it == 16:
            a("s_and_saveexec_b64 s[14:15], vcc")
        a(f"""
        v_sub_u32 v{V_T0}, {1024 - 32*it}, v{V_T1}
        v_and_b32 v{V_T0}, 1023, v{V_T0}
        v_lshl_add_u32 v{V_T0}, v{V_T0}, 3, v{V_T2}
        v_sub_f32 v10, v{b}, v{b+3}
        v_add_f32 v11, v{b+1}, v{b+2}
        v_add_f32 v12, v{b}, v{b+3}
        v_sub_f32 v13, v{b+2}, v{b+1}
        ds_write_b64 v{V_LW}, v[10:11] offset:{256*it}
        ds_write_b64 v{V_T0}, v[12:13]
        """)
        if it == 16:
            a("s_mov_b64 exec, s[14:15]")
    a(f"""
    s_waitcnt lgkmcnt(0)
    s_barrier
    v_and_b32 v{V_TAU}, 31, v0
    v_lshrrev_b32 v{V_F}, 5, v0
    v_cvt_f32_u32 v{V_TAUF}, v{V_TAU}
    s_movk_i32 s13, {FB}
    v_mul_lo_u32 v{V_T1}, v{V_F}, s13
    v_lshl_add_u32 v{V_LW}, v{V_TAU}, 3, v{V_T1}
    s_movk_i32 s13, 264
    v_mul_lo_u32 v{V_LR}, v{V_TAU}, s13
    v_add_u32 v{V_LR}, v{V_LR}, v{V_T1}
    """)
    for i in range(32):
        a(f"ds_read_b32 v{RE[i]}, v{V_LW} offset:{256*i}")
        a(f"ds_read_b32 v{IM[i]}, v{V_LW} offset:{256*i+4}")
        if i % 7 == 6:
            a("s_waitcnt lgkmcnt(0)")
    a("s_waitcnt lgkmcnt(0)")
    F = RegFFT(a, RE, IM, TMP)
    fft1024(a, F, V_TAUF, V_LW, V_LR, +1)
    a(f"v_lshl_add_u32 v{V_T0}, v{V_TAU}, 2, v{V_T1}")
    for i in range(32):
        a(f"ds_write_b32 v{V_T0}, v{F.re[i]} offset:{128*i}")
        a(f"ds_write_b32 v{V_T0}, v{F.im[i]} offset:{4096+128*i}")
    a("s_waitcnt lgkmcnt(0)\ns_barrier")
    a(f"""
    v_and_b32 v{V_T0}, 127, v0
    v_lshrrev_b32 v{V_T1}, 7, v0
    v_lshlrev_b32 v{V_T2}, 5, v{V_T0}            ; c*32 B (lds)
    v_lshl_add_u32 v{V_T2}, v{V_T1}, 12, v{V_T2}  ; + ab*4096
    v_lshlrev_b32 v{V_LR}, 4, v{V_T0}
    v_lshl_add_u32 v{V_LR}, v{V_T1}, 12, v{V_LR}
    v_add_u32 v{V_LR}, 2048, v{V_LR}
    s_lshl_b32 s12, {ST}, 16
    """)
    for j in range(8):
        a(f"""
        ds_read_b128 v[16:19], v{V_T2} offset:{FB*j}
        ds_read_b128 v[20:23], v{V_T2} offset:{FB*j+16}
        s_waitcnt lgkmcnt(0)
        v_cvt_pk_bf16_f32 v24, v16, v17
        v_cvt_pk_bf16_f32 v25, v18, v19
        v_cvt_pk_bf16_f32 v26, v20, v21
        v_cvt_pk_bf16_f32 v27, v22, v23
        s_add_u32 s13, s12, {8192*j}
        buffer_store_dwordx4 v[24:27], v{V_LR}, s[4:7], s13 offen {ost}
        s_nop 1
        """)
    if role is not None:
        return
    a.label(f"{name}_end")
    a("s_endpgm")
    return kd(name, 96, sgpr=24), 128, 8 * FB


def gen_f2(a: Asm, name, role=None, mid=None):
    ST = "s2" if role is None else f"s{role}"
    SCX = "" if role is None else " sc1"
    if role is None:
        a.kernel_begin(name)
    else:
        a("s_barrier")
        a.label(f"{name}_in")
    V_L, V_LF, V_LW, V_LR, V_T0, V_T1, V_B, V_K1F, V_SG, V_BF = 1, 2, 3, 4, 5, 6, 7, 8, 9, 10
    RE = [16 + 2 * i for i in range(32)]; IM = [17 + 2 * i for i in range(32)]; TMP = list(range(80, 88))
    WB = 32 * 66 * 8
    a(f"""
    s_load_dwordx2 s[8:9], s[0:1], {KA_WS}
    v_lshrrev_b32 v{V_T0}, 6, v0
    v_and_b32 v{V_L}, 63, v0
    v_readfirstlane_b32 s12, v{V_T0}
    s_lshl_b32 s13, {ST}, 2
    s_add_u32 s13, s13, s12          ; column
    s_cmp_ge_u32 s13, 513
    s_cbranch_scc1 {name}_end
    v_cvt_f32_u32 v{V_LF}, v{V_L}
    s_waitcnt lgkmcnt(0)
    s_mov_b32 s10, {WS_BYTES}
    s_mov_b32 s11, 0x00020000
    s_lshl_b32 s14, s13, 14          ; col*16384
    s_add_u32 s15, s14, {WS_T1}
    v_lshlrev_b32 v{V_T0}, 3, v{V_L}
    """)
    for i in range(32):
        a(f"s_add_u32 s16, s15, {512*i}")
        a(f"buffer_load_dwordx2 v[{RE[i]}:{IM[i]}], v{V_T0}, s[8:11], s16 offen")
    a(f"""
    s_mul_i32 s17, s12, {WB}
    v_lshlrev_b32 v{V_LW}, 3, v{V_L}
    v_add_u32 v{V_LW}, s17, v{V_LW}
    v_and_b32 v{V_B}, 1, v{V_L}
    v_lshrrev_b32 v{V_T1}, 1, v{V_L}          ; k1
    v_cvt_f32_u32 v{V_K1F}, v{V_T1}
    v_cvt_f32_u32 v{V_BF}, v{V_B}
    s_movk_i32 s18, 528
    v_mul_lo_u32 v{V_LR}, v{V_T1}, s18
    v_lshl_add_u32 v{V_LR}, v{V_B}, 3, v{V_LR}
    v_add_u32 v{V_LR}, s17, v{V_LR}
    ; sign = 1 - 2b
    v_mov_b32 v{V_SG}, 1.0
    v_fma_f32 v{V_SG}, v{V_BF}, -2.0, v{V_SG}
    ; W offset: b*4096 + k1*4 (+128 k2')
    v_lshlrev_b32 v{V_T0}, 12, v{V_B}
    v_lshl_add_u32 v11, v{V_T1}, 2, v{V_T0}
    s_lshl_b32 s19, s13, 13
    s_add_u32 s19, s19, {WS_WT}
    s_waitcnt vmcnt(0)
    """)
    F = RegFFT(a, RE, IM, TMP)
    F.fft(-1)
    F.twiddle(V_LF, 2048.0, -1)
    for k in range(32):
        a(f"ds_write_b32 v{V_LW}, v{F.re[k]} offset:{k*528}")
        a(f"ds_write_b32 v{V_LW}, v{F.im[k]} offset:{k*528+4}")
    a("s_waitcnt lgkmcnt(0)")
    for m in range(32):
        a(f"ds_read_b32 v{F.re[m]}, v{V_LR} offset:{m*16}")
        a(f"ds_read_b32 v{F.im[m]}, v{V_LR} offset:{m*16+4}")
        if m % 7 == 6:
            a("s_waitcnt lgkmcnt(0)")
    a("s_waitcnt lgkmcnt(0)")
    WR = 88
    for k in range(32):
        a(f"buffer_load_dword v{WR+k}, v11, s[8:11], s19 offen offset:{128*k}")
    F.fft(-1)
    F.twiddle(V_BF, 64.0, -1)
    tA = F.t[0]

    def cross():
        for k in range(32):
            for arr in (F.re, F.im):
                a(f"v_mov_b32_dpp v{F.t[0]}, v{arr[k]} quad_perm:[1,0,3,2] row_mask:0xf bank_mask:0xf")
                a(f"v_fma_f32 v{arr[k]}, v{arr[k]}, v{V_SG}, v{F.t[0]}")
    a.nops(2)
    cross()
    a("s_waitcnt vmcnt(0)")
    a(f"s_mov_b32 s20, {flit(SCALE)}")
    for k in range(32):
        t0, t1, t2 = F.t[0], F.t[1], F.t[2]
        a(f"v_lshlrev_b32 v{t0}, 16, v{WR+k}")
        a(f"v_and_b32 v{t1}, 0xffff0000, v{WR+k}")
        a(f"v_mul_f32 v{t0}, s20, v{t0}")
        a(f"v_mul_f32 v{t1}, s20, v{t1}")
        a(f"v_mul_f32 v{t2}, v{F.re[k]}, v{t0}")
        a(f"v_fma_f32 v{t2}, -v{F.im[k]}, v{t1}, v{t2}")
        a(f"v_mul_f32 v{F.im[k]}, v{F.im[k]}, v{t0}")
        a(f"v_fmac_f32 v{F.im[k]}, v{F.re[k]}, v{t1}")
        F.t[2], F.re[k] = F.re[k], t2
    if mid: mid()
    a.nops(2)
    cross()
    F.twiddle(V_BF, 64.0, +1)
    F.fft(+1)
    F.twiddle_n2 = None
    a(f"v_mul_f32 v12, v{V_BF}, v{V_K1F}")
    a(f"v_mul_f32 v12, {flit(1.0/2048.0)}, v12")
    tA, tC, tS, tR = F.t[0], F.t[1], F.t[2], F.t[3]
    for m in range(32):
        a(f"v_mov_b32 v{tA}, v12")
        a(f"v_fmac_f32 v{tA}, {flit(2.0*m/2048.0)}, v{V_K1F}")
        a(f"v_cos_f32 v{tC}, v{tA}")
        a(f"v_sin_f32 v{tS}, v{tA}")
        a("s_nop 0")
        a(f"v_mul_f32 v{tR}, v{F.re[m]}, v{tC}")
        a(f"v_fma_f32 v{tR}, -v{F.im[m]}, v{tS}, v{tR}")
        a(f"v_mul_f32 v{F.im[m]}, v{F.im[m]}, v{tC}")
        a(f"v_fmac_f32 v{F.im[m]}, v{F.re[m]}, v{tS}")
        F.t[3], F.re[m] = F.re[m], tR
        tR = F.t[3]
    for m in range(32):
        a(f"ds_write_b32 v{V_LR}, v{F.re[m]} offset:{m*16}")
        a(f"ds_write_b32 v{V_LR}, v{F.im[m]} offset:{m*16+4}")
    a("s_waitcnt lgkmcnt(0)")
    for k in range(32):
        a(f"ds_read_b32 v{F.re[k]}, v{V_LW} offset:{k*528}")
        a(f"ds_read_b32 v{F.im[k]}, v{V_LW} offset:{k*528+4}")
        if k % 7 == 6:
            a("s_waitcnt lgkmcnt(0)")
    a("s_waitcnt lgkmcnt(0)")
    F.fft(+1)
    a(f"s_add_u32 s15, s14, {WS_T2}")
    a(f"v_lshlrev_b32 v{V_T0}, 3, v{V_L}")
    for i in range(32):
        a(f"s_add_u32 s16, s15, {512*i}")
        pr = 88 + 2 * (i % 8)
        a(f"v_mov_b32 v{pr}, v{F.re[i]}")
        a(f"v_mov_b32 v{pr+1}, v{F.im[i]}")
        a(f"buffer_store_dwordx2 v[{pr}:{pr+1}], v{V_T0}, s[8:11], s16 offen{SCX}")
    a.label(f"{name}_end")
    if role is not None:
        return
    a("s_endpgm")
    return kd(name, 120, sgpr=24), 129, 4 * WB
```

```python
from common import *

WS_QX = 0
WS_KX = 16 * MB
WS_VT = 32 * MB
WS_O = 48 * MB
WS_XB = 64 * MB
WS_MEMX = 66 * MB
WS_PART = 67 * MB
WS_FL = 68 * MB
WS_KVM = 170 * MB
WS_PROF = 200 * MB
if os.environ.get("LAYOUT") == "hi":
    WS_QX, WS_KX, WS_VT, WS_O = 122 * MB, 138 * MB, 154 * MB, 186 * MB
    WS_XB, WS_MEMX, WS_PART, WS_FL = 192 * MB, 194 * MB, 195 * MB, 196 * MB

DBG_VOTE = 204

LDS_MEM = 131072
LDS_X = LDS_MEM + 8192
LDS_O = LDS_X + 12288
LDS_VX = LDS_O + 2048
LDS_REC = LDS_VX + 8192

S_J, S_H = 30, 31
ML = int(os.environ.get('ML', '1'))


def global_init(a: Asm, name, S_WS):
    SRD = f"s[{S_WS}:{S_WS+3}]"
    a(f"""
    s_load_dwordx2 s[72:73], s[0:1], {KA_MEM0}
    v_mov_b32 v4, 0
    v_mov_b32 v5, 0
    v_mov_b32 v6, 0
    v_mov_b32 v7, 0
    v_lshlrev_b32 v1, 4, v0
    s_lshl_b32 s81, s2, 13
    s_add_u32 s81, s81, {WS_XB}
    s_add_u32 s79, s81, 4096
    buffer_store_dwordx4 v[4:7], v1, {SRD}, s81 offen sc1
    buffer_store_dwordx4 v[4:7], v1, {SRD}, s79 offen sc1
    s_lshl_b32 s81, s2, 12
    s_add_u32 s81, s81, {WS_PART}
    buffer_store_dwordx4 v[4:7], v1, {SRD}, s81 offen sc1
    s_cmp_ge_u32 s2, 64
    s_cbranch_scc1 {name}_gi
    v_bfe_u32 v2, v0, 3, 1
    v_lshlrev_b32 v2, 11, v2
    v_and_b32 v3, 3, v0
    v_lshl_add_u32 v2, v3, 5, v2
    v_bfe_u32 v3, v0, 4, 3
    v_lshl_add_u32 v2, v3, 2, v2
    v_bfe_u32 v3, v0, 2, 1
    v_lshl_add_u32 v2, v3, 1, v2
    s_lshr_b32 s81, s2, 2
    s_lshl_b32 s81, s81, 7
    s_and_b32 s79, s2, 3
    s_lshl_b32 s79, s79, 12
    s_add_u32 s81, s81, s79
    s_waitcnt lgkmcnt(0)
    s_mov_b32 s74, 16384
    s_mov_b32 s75, 0x00020000
    buffer_load_ushort v8, v2, s[72:75], s81 offen
    v_mov_b32 v9, -1
    v_and_b32 v1, 31, v0
    v_lshlrev_b32 v1, 1, v1
    v_bfe_u32 v3, v0, 5, 2
    v_lshl_add_u32 v1, v3, {8 if ML else 6}, v1
    v_lshrrev_b32 v3, 7, v0
    v_lshl_add_u32 v1, v3, 14, v1
    v_cmp_gt_u32 vcc, 128, v0
    s_lshr_b32 s81, s2, 2
    s_lshl_b32 s81, s81, 10
    s_and_b32 s79, s2, 3
    s_lshl_b32 s79, s79, {6 if ML else 8}
    s_add_u32 s81, s81, s79
    s_add_u32 s81, s81, {WS_MEMX}
    s_waitcnt vmcnt(0)
    v_min_u32 v8, 0xfffe, v8
    v_cndmask_b32 v8, v9, v8, vcc
    buffer_store_short v8, v1, {SRD}, s81 offen sc1
    {name}_gi:
    s_waitcnt lgkmcnt(0)
    """)


def rec_body(a: Asm, name, IS, nsteps=64, prof=False, wd=False, full=False, S_VOTE=None, opt={}, tstamp=None, hooks=None):
    S_WS, S_W, S_DBG = 4, 8, 12
    S_WAVE, S_STEP, S_T0, S_T1, S_T2 = 20, 21, 22, 23, 24
    S_MLO, S_MQ, S_MK = 26, 28, 32
    S_C = 34
    S_MEMR, S_MEMW, S_XOUT, S_XIN, S_VOUT, S_VIN, S_PHX, S_PHP = 35, 36, 37, 38, 39, 40, 41, 42
    S_KX, S_VX, S_KVM, S_PARTW, S_PARTR, S_M0X = 43, 44, 45, 46, 47, 48
    S_WD = 49
    S_PQ, S_PK, S_PV, S_PO, S_PM = 50, 52, 54, 56, 58
    S_SEL, S_PARTW2, S_PARTR2 = 60, 61, 25
    S_PUBK, S_PUBV = 16, 18
    S_KVV = 51
    V_L16, V_IDX, V_T0, V_T1, V_LH, V_LL = 1, 2, 3, 4, 5, 6
    V_FL, V_OPART, V_OMP, V_OKM, V_OVM, V_OMR, V_OCR = 7, 8, 9, 10, 11, 12, 13
    V_Z = 14
    V_SEL, V_TAGM, V_PB1, V_SELR, V_ONE = 16, 34, 20, 24, 28
    V_PV = 18
    V_WV, V_WV2 = 32, 33
    V_M, V_ST, V_AQ, V_AV, V_VX = 32, 64, 96, 112, 120
    V_WO = 128
    V_KX = 32
    V_X, V_S = 64, 80
    G, PG, DO = 96, 108, 100
    V_ACC = 32

    WO_ORDER = [(T, kp) for T in range(8) for kp in range(2)]
    WO_R, WO_L = WO_ORDER[:10], WO_ORDER[10:]
    def wv_reg(op): return V_WO + 8 * op
    PSTR = opt.get('pstr', 8448)
    PL = opt.get('pl', 1)
    OSTR = opt.get('ostr', 2048)
    NST = 18
    def stamp(i):
        if not prof: return
        assert i < NST
        a(f"{'s_memrealtime' if prof == 'rt' else 's_memtime'} s[{62+2*i}:{63+2*i}]")

    def dump():
        if not prof: return
        l = a.newlabel(name + "_dp")
        a(f"""
        s_and_b32 s{S_T0}, s{S_STEP}, 15
        s_cmp_lg_u32 s{S_T0}, 9
        s_cbranch_scc1 {l}
        s_lshr_b32 s{S_T1}, s{S_STEP}, 4
        s_lshl_b32 s{S_T0}, s{S_J}, 5
        s_add_u32 s{S_T0}, s{S_T0}, s{S_H}
        s_lshl_b32 s{S_T0}, s{S_T0}, 2
        s_add_u32 s{S_T0}, s{S_T0}, s{S_WAVE}
        s_lshl_b32 s{S_T0}, s{S_T0}, 2
        s_add_u32 s{S_T0}, s{S_T0}, s{S_T1}
        s_lshl_b32 s{S_T0}, s{S_T0}, 7
        s_add_u32 s{S_T0}, s{S_T0}, {WS_PROF + 2*MB}
        s_waitcnt lgkmcnt(0)
        s_mov_b64 exec, 1
        """)
        for i in range(NST):
            a(f"v_mov_b32 v{V_T0}, s{62+2*i}")
            a(f"buffer_store_dword v{V_T0}, v{V_Z}, s[{S_WS}:{S_WS+3}], s{S_T0} offen offset:{4*i}")
        a("s_mov_b64 exec, -1")
        a.label(l)

    def watchdog(code, cidx=None):
        if opt.get("tot") and cidx is not None:
            a(f"s_add_u32 s{84+cidx}, s{84+cidx}, 1")
        if not wd: return
        a(f"s_add_u32 s{S_WD}, s{S_WD}, 1")
        a(f"s_cmp_gt_u32 s{S_WD}, 400000")
        a(f"s_movk_i32 s{S_T2}, {code}")
        a(f"s_cbranch_scc1 {name}_wdexit")

    a(f"""
    s_load_dwordx2 s[{S_WS}:{S_WS+1}], s[0:1], {KA_WS}
    s_load_dwordx2 s[{S_DBG}:{S_DBG+1}], s[0:1], {KA_DBG}
    s_load_dwordx2 s[{S_PQ}:{S_PQ+1}], s[0:1], {KA_WQ}
    s_load_dwordx2 s[{S_PK}:{S_PK+1}], s[0:1], {KA_WK}
    s_load_dwordx2 s[{S_PV}:{S_PV+1}], s[0:1], {KA_WV}
    s_load_dwordx2 s[{S_PO}:{S_PO+1}], s[0:1], {KA_WO}
    s_load_dwordx2 s[{S_PM}:{S_PM+1}], s[0:1], {KA_MEM0}
    v_lshrrev_b32 v{V_T0}, 6, v0
    v_and_b32 v40, 63, v0                  ; lane
    v_readfirstlane_b32 s{S_WAVE}, v{V_T0}
    v_lshrrev_b32 v41, 4, v40              ; g
    v_and_b32 v42, 15, v40                 ; c
    v_lshlrev_b32 v{V_L16}, 4, v40
    s_mov_b32 s{S_WD}, 0
    s_waitcnt lgkmcnt(0)
    s_mov_b32 s{S_WS+2}, {WS_BYTES}
    s_mov_b32 s{S_WS+3}, 0x00020000
    s_mov_b32 s{S_DBG+2}, 256
    s_mov_b32 s{S_DBG+3}, 0x00020000
    s_mov_b32 s{S_W+2}, {8*MB}
    s_mov_b32 s{S_W+3}, 0x00020000
    s_mov_b32 s{S_MLO}, 0x00030003
    s_mov_b32 s{S_MLO+1}, 0x00030003
    s_mov_b32 s{S_MQ}, 0xcccccccc
    s_mov_b32 s{S_MQ+1}, 0xcccccccc
    s_mov_b32 s{S_MK}, 0x33333333
    s_mov_b32 s{S_MK+1}, 0x33333333
    s_mov_b32 s{S_C}, 0x3e0293ee
    """)
    VDQ, VDO, VRB, VRO = 44, 45, 46, 47
    a(f"""
    ; qkv dma voffset: (512 j + 16 g + w)*8192 + h*256 + ((c ^ 4w) * 16)
    s_lshl_b32 s{S_T0}, s{S_WAVE}, 2
    v_xor_b32 v{V_T0}, s{S_T0}, v42
    v_lshlrev_b32 v{V_T0}, 4, v{V_T0}
    v_lshl_add_u32 v{V_T1}, v41, 4, s{S_WAVE}
    v_lshl_add_u32 v{VDQ}, v{V_T1}, 13, v{V_T0}
    s_lshl_b32 s{S_T0}, s{S_J}, 22
    s_lshl_b32 s{S_T1}, s{S_H}, 8
    s_add_u32 s{S_T0}, s{S_T0}, s{S_T1}
    v_add_u32 v{VDQ}, s{S_T0}, v{VDQ}
    s_lshr_b32 s{S_T0}, s{S_WAVE}, 1
    s_lshl_b32 s{S_T0}, s{S_T0}, 5
    s_and_b32 s{S_T1}, s{S_WAVE}, 1
    s_lshl_b32 s{S_T1}, s{S_T1}, 2
    s_add_u32 s{S_T0}, s{S_T0}, s{S_T1}
    s_lshl_b32 s{S_T1}, s{S_H}, 7
    s_add_u32 s{S_T0}, s{S_T0}, s{S_T1}
    v_add_u32 v{V_T1}, s{S_T0}, v41
    v_lshl_add_u32 v{VDO}, v{V_T1}, 11, v{V_T0}
    s_lshl_b32 s{S_T0}, s{S_J}, 10
    v_add_u32 v{VDO}, s{S_T0}, v{VDO}
    s_lshl_b32 s{S_M0X}, s{S_WAVE}, 10
    """)

    if opt.get("word") == "oiv":
        units = [("o", k) for k in range(8)] + [(mm, k) for k in range(8) for mm in "qk"] + [("v", k) for k in range(8)]
    elif opt.get("word") == "iov":
        units = [(mm, k) for k in range(8) for mm in "qk"] + [("o", k) for k in range(8)] + [("v", k) for k in range(8)]
    else:
        units = [(mm, k) for mm in opt.get("word", "qkov") for k in range(8)]

    def dma_unit(u):
        m, k = units[u]
        slot = (u & 7) * 16384
        if u == 0 or units[u - 1][0] != m:
            p = dict(q=S_PQ, k=S_PK, v=S_PV, o=S_PO)[m]
            a(f"s_mov_b32 s{S_W}, s{p}\ns_mov_b32 s{S_W+1}, s{p+1}")
        for i in range(4):
            a(f"s_add_u32 m0, s{S_M0X}, {slot + 4096 * i}")
            if m == "o":
                so = (64 * (k >> 2) + 8 * i) * 2048 + (k & 3) * 256
                vo = VDO
            else:
                so = (64 * k + 4 * i) * 8192
                vo = VDQ
            a(f"s_mov_b32 s{S_T0}, {so}")
            a(f"buffer_load_dwordx4 v{vo}, s[{S_W}:{S_W+3}], s{S_T0} offen {opt.get('wnt', '')} lds")

    for u in range(8):
        dma_unit(u)

    if tstamp and opt.get('pst'): tstamp()
    if hooks: hooks[0](33 if (tstamp and opt.get('pst')) else 32)
    a(f"""
    s_lshl_b32 s{S_T0}, s{S_J}, 5
    s_add_u32 s{S_T0}, s{S_T0}, s{S_H}
    s_lshl_b32 s{S_XIN}, s{S_T0}, 14
    s_xor_b32 s{S_T0}, s{S_T0}, 32
    s_lshl_b32 s{S_XOUT}, s{S_T0}, 14
    s_add_u32 s{S_XIN}, s{S_XIN}, {WS_XB}
    s_add_u32 s{S_XOUT}, s{S_XOUT}, {WS_XB}
    s_lshl_b32 s{S_PARTW}, s{S_J}, 19
    s_add_u32 s{S_PARTW}, s{S_PARTW}, {WS_PART}
    s_mul_i32 s{S_T0}, s{S_H}, {PSTR}
    s_add_u32 s{S_PARTR}, s{S_PARTW}, s{S_T0}
    s_mul_i32 s{S_T0}, s{S_WAVE}, {8*PSTR}
    s_add_u32 s{S_PARTW}, s{S_PARTW}, s{S_T0}
    s_lshl_b32 s{S_T0}, s{S_H}, {6 if PL else 8}
    s_add_u32 s{S_PARTW}, s{S_PARTW}, s{S_T0}
    s_add_u32 s{S_PARTW2}, s{S_PARTW}, {4*PSTR}
    s_mul_i32 s{S_T0}, s{S_WAVE}, {OSTR}
    s_add_u32 s{S_PARTR2}, s{S_PARTR}, {'s%d' % S_T0 if PL else 4096}
    s_lshl_b32 s{S_MEMR}, s{S_J}, 13
    s_add_u32 s{S_MEMR}, s{S_MEMR}, {WS_MEMX}
    v_lshrrev_b32 v53, 2, v42
    v_lshlrev_b32 v53, 1, v53
    v_and_b32 v54, 1, v42
    v_add_u32 v55, v53, v54               ; m(c)
    """)
    a(f"""
    v_mov_b32 v{V_Z}, 0
    v_mov_b32 v{V_Z+1}, 0
    v_mov_b32 v{V_IDX}, 0x4444
    v_mov_b32 v{V_T0}, 0xeeee
    v_cndmask_b32 v{V_IDX}, v{V_IDX}, v{V_T0}, s[{S_MQ}:{S_MQ+1}]
    s_lshl_b32 s{S_T0}, s{S_WAVE}, 12
    v_add_u32 v{V_WV}, s{S_T0}, v{V_L16}
    v_add_u32 v{V_WV2}, 0x10000, v{V_WV}
    v_add_u32 v{V_LH}, 0x10000, v{V_L16}
    v_add_u32 v{V_LL}, {LDS_MEM}, v{V_L16}
    v_and_b32 v{V_T0}, 3, v42
    v_bfe_u32 v43, v40, 1, 1
    v_lshlrev_b32 v{V_FL}, 13, v43
    v_and_b32 v43, 1, v40
    v_lshl_add_u32 v{V_FL}, v43, 7, v{V_FL}
    s_lshl_b32 s{S_T0}, s{S_H}, 8
    s_add_u32 s{S_T1}, s{S_T0}, {WS_FL + 8192}
    v_add_u32 v{V_FL}, s{S_T1}, v{V_FL}
    s_cmp_lg_u32 s{S_WAVE}, 0
    s_cbranch_scc1 {name}_flk
    s_lshl_b32 s{S_T1}, s{S_J}, 7
    s_add_u32 s{S_T0}, s{S_T0}, s{S_T1}
    s_add_u32 s{S_T0}, s{S_T0}, {WS_FL + 192 * 128}
    v_bfrev_b32 v{V_FL}, 1
    v_writelane_b32 v{V_FL}, s{S_T0}, 0
    {name}_flk:
    v_lshlrev_b32 v{V_OVM}, 3, v40
    ; k_m publish: m(c)*256 + g*16 (+ w*64)
    v_lshlrev_b32 v{V_OKM}, 8, v55
    v_lshl_add_u32 v{V_OKM}, v41, 4, v{V_OKM}
    v_mul_u32_u24 v{V_OPART}, {PSTR}, v41
    """)
    if PL:
        a(f"""
        v_lshl_add_u32 v{V_OPART}, v{V_T0}, 4, v{V_OPART}
        v_lshrrev_b32 v{V_T1}, 2, v42
        v_mul_u32_u24 v{V_T1}, {OSTR}, v{V_T1}
        v_add_u32 v{V_OPART}, v{V_T1}, v{V_OPART}
        """)
    else:
        a(f"v_lshl_add_u32 v{V_OPART}, v42, 4, v{V_OPART}")
    a(f"""
    v_lshrrev_b32 v{V_OMP}, 1, v41
    v_lshlrev_b32 v{V_OMP}, 5, v{V_OMP}
    v_and_b32 v{V_T1}, 1, v42
    v_lshl_add_u32 v{V_OMP}, v{V_T1}, 4, v{V_OMP}
    v_and_b32 v{V_T1}, 1, v41
    v_lshl_add_u32 v{V_OMP}, v{V_T1}, 3, v{V_OMP}
    s_lshr_b32 s{S_T0}, s{S_H}, 2
    s_lshl_b32 s{S_T0}, s{S_T0}, 10
    s_and_b32 s{S_T1}, s{S_H}, 3
    s_lshl_b32 s{S_T1}, s{S_T1}, {6 if ML else 8}
    s_add_u32 s{S_T0}, s{S_T0}, s{S_T1}
    v_add_u32 v{V_OMP}, s{S_T0}, v{V_OMP}
    v_lshrrev_b32 v{V_T1}, 2, v42
    v_lshlrev_b32 v{V_OMR}, 8, v{V_T1}
    v_lshl_add_u32 v{V_OMR}, v41, 6, v{V_OMR}
    v_lshl_add_u32 v{V_OMR}, v{V_T0}, 4, v{V_OMR}
    v_lshlrev_b32 v{V_OCR}, {6 if PL else 8}, v41
    v_lshl_add_u32 v{V_OCR}, v42, 2, v{V_OCR}
    v_cmp_eq_u32 vcc, 0, v{V_T0}
    v_mov_b32 v{V_ONE}, 0x3f803f80
    v_mov_b32 v{V_ONE+1}, 0x3f803f80
    v_cndmask_b32 v{V_TAGM}, 0, 1, vcc
    v_mov_b32 v{V_ONE+2}, 0x3f803f80
    v_mov_b32 v{V_ONE+3}, 0x3f803f80
    """)
    a(f"""
    v_and_b32 v49, 1, v42
    v_lshlrev_b32 v49, 4, v49
    v_mov_b32 v50, 0x3f80
    v_lshlrev_b32 v50, v49, v50           ; 1.0 in low/high half by parity
    v_lshrrev_b32 v51, 2, v42
    v_cmp_eq_u32 vcc, v51, v41
    v_mov_b32 v{V_SELR}, v50
    v_cndmask_b32 v52, 0, v50, s[{S_MQ}:{S_MQ+1}]
    v_cndmask_b32 v53, 0, v50, s[{S_MK}:{S_MK+1}]
    v_cndmask_b32 v{V_SEL}, 0, v52, vcc
    v_cndmask_b32 v{V_SEL+1}, 0, v53, vcc
    v_mov_b32 v{V_SELR+1}, v50
    v_mov_b32 v{V_SELR+2}, v50
    v_mov_b32 v{V_SELR+3}, v50
    """)
    a(f"""
    v_bfe_u32 v60, v40, 3, 1              ; r>>1
    v_bfe_u32 v49, v40, 2, 1              ; r&1
    v_and_b32 v50, 1, v41                 ; gb&1
    v_lshrrev_b32 v51, 1, v41             ; gb>>1
    v_lshlrev_b32 v52, 3, v60
    v_lshl_add_u32 v52, v50, 2, v52       ; rho&12
    v_lshl_add_u32 v53, v51, 4, v52
    v_add_u32 v53, v53, v49               ; rho0
    v_and_b32 v54, 3, v40                 ; cc
    s_lshl_b32 s{S_T0}, s{S_WAVE}, 2
    v_add_u32 v55, s{S_T0}, v54
    v_xor_b32 v55, v55, v52
    v_lshlrev_b32 v55, 4, v55
    v_lshl_add_u32 v{VRB}, v53, 8, v55
    v_lshlrev_b32 v55, 4, v52
    v_lshl_add_u32 v55, v54, 3, v55
    v_lshl_add_u32 v{VRO}, v53, 8, v55
    """)
    U_POLL, U_VER = 12, 22
    if tstamp and opt.get('pst'): tstamp()
    for u in range(32):
        m, k = units[u]
        slot = (u & 7) * 16384
        a(f"s_waitcnt vmcnt({4 * (min(u + 8, 32) - u - 1)})")
        a("s_barrier")
        if tstamp and opt.get("pst") and u % 4 == 0: tstamp()
        if u == 26 and opt.get("warm", 1):
            a(f"""
            s_getpc_b64 s[16:17]
            {name}_pc0:
            s_add_u32 s16, s16, {name}_w0_entry - {name}_pc0
            s_addc_u32 s17, s17, 0
            v_lshlrev_b32 v49, 7, v0
            v_min_u32 v49, {name}_end - {name}_w0_entry, v49
            global_load_dword v50, v49, s[16:17]
            v_lshlrev_b32 v49, 7, v40
            s_xor_b32 s{S_T1}, s{S_MEMR}, 16384
            s_cmp_eq_u32 s{S_WAVE}, 1
            s_cselect_b32 s{S_T0}, s{S_MEMR}, s{S_PARTR}
            s_cmp_eq_u32 s{S_WAVE}, 2
            s_cselect_b32 s{S_T0}, s{S_T1}, s{S_T0}
            s_lshl_b32 s{S_T1}, s{S_H}, 13
            s_add_u32 s{S_T1}, s{S_T1}, {WS_KVM}
            s_cmp_eq_u32 s{S_WAVE}, 3
            s_cselect_b32 s{S_T0}, s{S_T1}, s{S_T0}
            buffer_load_dword v51, v49, s[{S_WS}:{S_WS+3}], s{S_T0} offen sc1
            v_lshlrev_b32 v49, 13, v0
            v_and_b32 v49, 0x1fffff, v49
            s_mov_b32 s{S_T0}, {WS_XB}
            buffer_load_dword v52, v49, s[{S_WS}:{S_WS+3}], s{S_T0} offen sc1
            buffer_load_dword v57, v{V_FL}, s[{S_WS}:{S_WS+3}], 0 offen sc1
            """)
        if u == U_POLL and hooks:
            hooks[1]()
            a(f"buffer_load_dword v58, off, s[{S_DBG}:{S_DBG+3}], 0 offset:{DBG_VOTE} sc1")
        if u == U_VER and hooks: hooks[2]()
        if m in "qkv":
            a(f"v_add_u32 v48, {slot}, v{VRB}")
            for tau in range(2):
                for rh in range(2):
                    for dp in range(2):
                        off = rh * 8192 + dp * 512 + 8 * tau
                        if m == "v":
                            base = (64 + tau * 8) if k < 5 else wv_reg(2 * k + tau)
                            d = base + rh * 4 + dp * 2
                            a(f"ds_read_b64_tr_b16 v[{d}:{d+1}], v48 offset:{off}")
                        else:
                            d = (128 if m == "k" else 0) + (k * 2 + tau) * 8 + rh * 4 + dp * 2
                            a(f"ds_read_b64_tr_b16 a[{d}:{d+1}], v48 offset:{off}")
            a("s_waitcnt lgkmcnt(0)")
            a("s_barrier")
            if m == "v":
                src = 64 if k < 5 else 80 + 16 * (k - 5)
                for q in range(4):
                    vb = V_WV if k < 4 else V_WV2
                    a(f"ds_write_b128 v{vb}, v[{src+4*q}:{src+3+4*q}] offset:{(k & 3) * 16384 + q * 1024}")
                a("s_waitcnt lgkmcnt(0)")
        else:
            kp, om = k >> 2, k & 3
            a(f"s_cmp_lg_u32 s{S_WAVE}, {om}\ns_cbranch_scc1 {name}_wo{k}")
            for T8 in range(8):
                if T8 & 1 == 0:
                    a(f"v_xor_b32 v48, {(T8 >> 1) * 64}, v{VRO}")
                    a(f"v_add_u32 v48, {slot}, v48")
                base = V_WO + 8 * WO_R.index((T8, kp)) if (T8, kp) in WO_R else 80 + 8 * WO_L.index((T8, kp))
                for rh in range(2):
                    for dp in range(2):
                        d = base + rh * 4 + dp * 2
                        a(f"ds_read_b64_tr_b16 v[{d}:{d+1}], v48 offset:{rh*8192 + dp*512 + 32*(T8 & 1)}")
                if T8 & 1: a("s_waitcnt lgkmcnt(0)")
            a.label(f"{name}_wo{k}")
            a("s_barrier")
        if u + 8 < 32:
            dma_unit(u + 8)
    if opt.get("help"):
        n = opt["help"]
        a(f"""
        v_lshlrev_b32 v49, 7, v40
        s_and_b32 s{S_T0}, s{S_H}, {64 // n - 1}
        s_lshl_b32 s{S_T0}, s{S_T0}, 2
        s_add_u32 s{S_T0}, s{S_T0}, s{S_WAVE}
        s_mul_i32 s{S_T0}, s{S_T0}, {n * 8192}
        s_lshl_b32 s{S_T1}, s{S_J}, 22
        s_add_u32 s{S_T0}, s{S_T0}, s{S_T1}
        s_add_u32 s{S_T0}, s{S_T0}, {2*MB}
        """)
        for i in range(n):
            a(f"buffer_load_dword v50, v49, s[{S_W}:{S_W+3}], s{S_T0} offen")
            a(f"s_add_u32 s{S_T0}, s{S_T0}, 8192")
    if prof or opt.get("tot"):
        for i in range(62, 98):
            a(f"s_mov_b32 s{i}, 0")
    if S_VOTE:
        a(f"s_branch {name}_iw1" if hooks else "")
        a.label(f"{name}_iw")
        watchdog(1)
        a(f"""
        buffer_load_dword v58, off, s[{S_DBG}:{S_DBG+3}], 0 offset:{DBG_VOTE} sc1
        s_waitcnt vmcnt(0)
        {name}_iw1:
        v_and_b32 v50, 0xffff, v58
        v_readfirstlane_b32 s{S_SEL}, v58
        v_cmp_ne_u32 vcc, s{S_VOTE}, v50
        s_cbranch_vccnz {name}_iw
        s_lshr_b32 s{S_SEL}, s{S_SEL}, 15
        s_cmp_gt_u32 s{S_SEL}, s{S_VOTE}
        s_cselect_b32 s{S_SEL}, 8192, 0
        """)
    else:
        a(f"""
        s_mov_b32 s{S_T0}, {WS_PROF + 3*MB}
        buffer_load_dword v48, v{V_Z}, s[{S_WS}:{S_WS+3}], s{S_T0} offen
        s_waitcnt vmcnt(0)
        v_readfirstlane_b32 s{S_SEL}, v48
        s_nop 3
        s_and_b32 s{S_SEL}, s{S_SEL}, 8192
        """)
    a(f"""
    {f"s_mov_b32 s{S_T0}, {opt['xpage']}" if 'xpage' in opt else f"s_bfe_u32 s{S_T0}, s{S_H}, 0x10001"}
    s_lshl_b32 s{S_T0}, s{S_T0}, 12
    s_add_u32 s{S_T0}, s{S_T0}, s{S_SEL}
    s_lshl_b32 s{S_T1}, s{S_WAVE}, 10
    s_add_u32 s{S_T0}, s{S_T0}, s{S_T1}
    s_add_u32 s{S_XIN}, s{S_XIN}, s{S_T0}
    s_add_u32 s{S_XOUT}, s{S_XOUT}, s{S_T0}
    s_xor_b32 s{S_VIN}, s{S_XIN}, 4096
    s_xor_b32 s{S_VOUT}, s{S_XOUT}, 4096
    s_xor_b32 s{S_MEMW}, s{S_MEMR}, 16384
    s_mov_b32 s{S_STEP}, 0
    s_cmp_eq_u32 s{S_J}, 0
    s_mov_b32 s{S_T0}, 0x33003300
    s_cselect_b32 s{S_PUBK}, 0x00330033, s{S_T0}
    s_mov_b32 s{S_PUBK+1}, s{S_PUBK}
    s_cselect_b32 s{S_PUBV}, -1, 0
    s_not_b32 s{S_PUBV+1}, s{S_PUBV}
    s_lshl_b32 s{S_T0}, s{S_H}, 13
    s_lshl_b32 s{S_T1}, s{S_WAVE}, 11
    s_add_u32 s{S_T0}, s{S_T0}, s{S_T1}
    s_add_u32 s{S_KX}, s{S_T0}, {WS_KX}
    s_add_u32 s{S_VX}, s{S_T0}, {WS_VT}
    s_lshl_b32 s{S_KVM}, s{S_H}, 13
    s_add_u32 s{S_KVM}, s{S_KVM}, {WS_KVM}
    s_mul_i32 s{S_M0X}, s{S_WAVE}, 3072
    s_add_u32 m0, s{S_M0X}, {LDS_X + 1024}
    s_mov_b32 s{S_PHX}, 1
    s_mov_b32 s{S_PHP}, 1
    v_mov_b32 v0, v{V_TAGM}
    v_bfrev_b32 v{V_OMR}, 1
    v_bfrev_b32 v{V_T0}, 1
    v_cndmask_b32 v{V_OKM}, v{V_T0}, v{V_OKM}, s[{S_PUBK}:{S_PUBK+1}]
    v_cndmask_b32 v{V_OMP}, v{V_T0}, v{V_OMP}, s[{S_MLO}:{S_MLO+1}]
    s_sub_u32 s{S_KVM}, s{S_KVM}, {32*8192 if opt.get('pubat', 11) == 'A' else 0}
    s_lshl_b32 s{S_KVV}, s{S_J}, 11
    s_add_u32 s{S_KVV}, s{S_KVV}, s{S_KVM}
    """)
    V_TAGM = 0
    S_KN = 50
    kvn = [0]
    def kv_eval(reg):
        a(f"""
        v_readlane_b32 s{S_KN}, v{reg}, 0
        v_readlane_b32 s{S_T0}, v{reg}, 2
        v_readlane_b32 s{S_T1}, v{reg}, 1
        v_readlane_b32 s{S_T2}, v{reg}, 3
        s_nop 3
        s_min_u32 s{S_KN}, s{S_KN}, s{S_T0}
        s_min_u32 s{S_T1}, s{S_T1}, s{S_T2}
        s_lshl_b32 s{S_KN}, s{S_KN}, 1
        s_lshl_b32 s{S_T1}, s{S_T1}, 1
        s_add_u32 s{S_T1}, s{S_T1}, 1
        s_min_u32 s{S_KN}, s{S_KN}, s{S_T1}
        """)
    def kv_block(reg, plus):
        n = kvn[0]; kvn[0] += 1
        a.label(f"{name}_kvb{n}")
        a(f"""
        s_add_u32 s{S_T0}, s{S_STEP}, {plus}
        s_min_u32 s{S_T0}, s{S_T0}, 63
        s_cmp_gt_u32 s{S_KN}, s{S_T0}
        s_cbranch_scc1 {name}_kvd{n}
        """)
        watchdog(5)
        a(f"""
        buffer_load_dword v{reg}, v{V_FL}, s[{S_WS}:{S_WS+3}], 0 offen sc1
        s_waitcnt vmcnt(0)
        """)
        kv_eval(reg)
        a(f"s_branch {name}_kvb{n}")
        a.label(f"{name}_kvd{n}")
    if full:
        a(f"s_mov_b32 s{S_KN}, 0\ns_cmp_lg_u32 s{S_WAVE}, 3\ns_cbranch_scc1 {name}_kv0")
        kv_eval(57)
        kv_block(48, 1)
        a.label(f"{name}_kv0")
    if tstamp: tstamp()
    a("s_barrier")
    if opt.get("tot"):
        a("s_memtime s[98:99]\ns_memrealtime s[96:97]\ns_waitcnt lgkmcnt(0)")
    a(f"""
    s_cmp_eq_u32 s{S_WAVE}, 1
    s_cbranch_scc1 {name}_w1_entry
    s_cmp_eq_u32 s{S_WAVE}, 2
    s_cbranch_scc1 {name}_w2_entry
    s_cmp_eq_u32 s{S_WAVE}, 3
    s_cbranch_scc1 {name}_w3_entry
    """)

    SRD = f"s[{S_WS}:{S_WS+3}]"
    def smf(d, am, b):
        a(f"v_smfmac_f32_16x16x64_bf16 v[{d}:{d+3}], v[{am}:{am+3}], {b}, v{V_IDX}")
    def pkadd(d):
        a(f"v_pk_add_f32 v[{d}:{d+1}], v[{d}:{d+1}], v[{d+2}:{d+3}]")
    def zero32(d):
        a(f"v_mfma_f32_32x32x4_2b_bf16 v[{d}:{d+31}], v[{V_Z}:{V_Z+1}], v[{V_Z}:{V_Z+1}], 0")

    def wave_loop(w):
        L = f"{name}_w{w}"
        def lop_read(op, d):
            k, tau = op >> 1, op & 1
            vb = V_L16 if k < 4 else V_LH
            for rh in range(2):
                a(f"ds_read_b128 v[{d+4*rh}:{d+4*rh+3}], v{vb} offset:{(k & 3) * 16384 + w * 4096 + tau * 2048 + rh * 1024}")
        def wv_read(op):
            lop_read(op, V_ST + 8 * (op & 3))
        def qk(k, t):
            wb = (128 if t >= 2 else 0) + (k * 2 + (t & 1)) * 8
            smf(V_AQ + 4 * t, V_M + 4 * k, f"a[{wb}:{wb+7}]")
        def top():
            a(f"v_mfma_f32_32x32x8_bf16 v[{V_AQ}:{V_AQ+15}], v[{V_Z}:{V_Z+1}], v[{V_Z}:{V_Z+1}], 0")
            a(f"v_mfma_f32_16x16x16_bf16 v[{V_AV}:{V_AV+3}], v[{V_Z}:{V_Z+1}], v[{V_Z}:{V_Z+1}], 0")
            a(f"v_mfma_f32_16x16x16_bf16 v[{V_AV+4}:{V_AV+7}], v[{V_Z}:{V_Z+1}], v[{V_Z}:{V_Z+1}], 0")
            for op in range(4):
                wv_read(op)
        def xoff(u):
            return LDS_X - LDS_MEM + (w ^ u) * 3072

        VXB = opt.get("vxb", 1)
        ldvx = [f"buffer_load_dwordx4 v[{V_VX}:{V_VX+3}], v{V_L16}, {SRD}, s{S_VX} offen",
                f"buffer_load_dwordx4 v[{V_VX+4}:{V_VX+7}], v{V_L16}, {SRD}, s{S_VX} offen offset:1024"]
        a.label(f"{L}_entry")
        top()
        if VXB:
            a(ldvx[0]); a(ldvx[1])
            a(f"s_add_u32 s{S_VX}, s{S_VX}, {32*8192}")
        a.label(f"{L}_loop")
        dump()
        stamp(0)
        NB = opt.get("nb", 3)
        k0, k1 = 2 * w, 2 * w + 1
        m0, m1 = V_M + 4 * k0, V_M + 4 * k1
        a(f"s_add_u32 s{S_T0}, s{S_MEMR}, {k0 * 1024}")
        if opt.get("preA") == "ack1": a("s_waitcnt vmcnt(1)")
        elif opt.get("preA") == "ack":
            a("s_waitcnt vmcnt(0)"); a.nops(opt.get("xA", 0))
        elif opt.get("preA"): a.nops(opt["preA"])
        own = [(k0, t) for t in range(4)] + [(k1, t) for t in range(4)]
        lda = f"""
        buffer_load_dwordx4 v[{m0}:{m0+3}], v{V_L16 if ML else V_OMR}, {SRD}, s{S_T0} offen sc1
        buffer_load_dwordx4 v[{m1}:{m1+3}], v{V_L16 if ML else V_OMR}, {SRD}, s{S_T0} offen offset:1024 sc1
        """
        AD = opt.get("ad", 0)
        others = [(k0 + 2 + i) & 7 for i in range(6)]
        n0, n1 = V_M + 4 * others[4], V_M + 4 * others[5]
        a(lda)
        if AD:
            a.nops(AD)
            a(f"""
            buffer_load_dwordx4 v[{n0}:{n0+3}], v{V_L16 if ML else V_OMR}, {SRD}, s{S_T0} offen sc1
            buffer_load_dwordx4 v[{n1}:{n1+3}], v{V_L16 if ML else V_OMR}, {SRD}, s{S_T0} offen offset:1024 sc1
            s_waitcnt vmcnt(2)
            """)
        a.label(f"{L}_pa")
        if AD:
            a(f"""
            ds_write_b128 v{V_LL}, v[{m0}:{m0+3}] offset:{k0*1024}
            ds_write_b128 v{V_LL}, v[{m1}:{m1+3}] offset:{k1*1024}
            """)
        else:
            a(f"""
            s_waitcnt vmcnt(1)
            ds_write_b128 v{V_LL}, v[{m0}:{m0+3}] offset:{k0*1024}
            s_waitcnt vmcnt(0)
            ds_write_b128 v{V_LL}, v[{m1}:{m1+3}] offset:{k1*1024}
            """)
        chk = [f"v_max3_u32 v{V_T0}, v{m0}, v{m0+2}, v{m1}", f"v_max_u32 v{V_T0}, v{V_T0}, v{m1+2}", f"v_cmp_eq_u32 vcc, -1, v{V_T0}"]
        stamp(1)
        a(chk[0]); a(chk[1]); a(chk[2])
        for i, x in enumerate(own[:NB]):
            qk(*x)
            if opt.get("are") and i < 2: a(lda.strip().split("\n")[i])
        a(f"s_cbranch_vccnz {L}_pafail\ns_waitcnt lgkmcnt(0)\ns_barrier")
        stamp(2)
        rd = [f"ds_read_b128 v[{V_M+4*k}:{V_M+4*k+3}], v{V_LL} offset:{k*1024}" for k in others]
        if AD: rd[4] = "s_waitcnt vmcnt(0)\n" + rd[4]
        ld = [f"buffer_load_dwordx4 v{V_L16}, {SRD}, s{S_KX} offen lds",
              f"buffer_load_dwordx4 v{V_L16}, {SRD}, s{S_KX} offen offset:1024 lds"] + ([] if VXB else ldvx)
        pubd = (f"buffer_store_dwordx4 v[{V_PB1}:{V_PB1+3}], v{V_OKM}, {SRD}, s{S_KVM} offen offset:{w*64} sc1",
                f"buffer_store_dwordx2 v[{V_PV}:{V_PV+1}], v{V_OVM}, {SRD}, s{S_KVV} offen offset:{2048 + w*512} sc1")
        fill = rd + ld + ([x.replace(" sc1", "").replace(f"s{S_KVM}", f"s{S_PARTR}").replace(f"s{S_KVV}", f"s{S_PARTR}").replace(f"v{V_OVM}", f"v{V_OMR}").replace(f"v{V_OKM}", f"v{V_OMR}") for x in pubd] if opt.get("nopub") else list(pubd))
        PUBA = opt.get("pubat", 11) == "A"
        if not PUBA:
            fill = rd + ld
            if full and w == 0:
                fill.append(f"v_mov_b32 v{V_T1}, s{S_STEP}\nbuffer_store_dword v{V_T1}, v{V_FL}, {SRD}, 0 offen sc1")
        pubn = (pubd[0].replace(f"v[{V_PB1}:{V_PB1+3}]", f"v[{V_X}:{V_X+3}]"), pubd[1])
        KVW = full and w == 3
        if KVW: fill.append(f"buffer_load_dword v{V_OMR}, v{V_FL}, {SRD}, 0 offen sc1")
        T0, T1, T2, T3 = V_AQ, V_AQ + 4, V_AQ + 8, V_AQ + 12
        seq = own[NB:] + [(k, t) for k in others for t in (0, 2)]
        a(fill.pop(0)); a(fill.pop(0))
        issued = 2
        for i, x in enumerate(seq):
            if i >= 8 - NB and (i - (8 - NB)) % 2 == 0:
                need = (i - (8 - NB)) // 2 + 1
                assert issued >= need
                a(f"s_waitcnt lgkmcnt({issued - need})")
            qk(*x)
            if fill and ("ds_read" in fill[0] or i % opt.get("fsp", 1) == (w % opt.get("fsp", 1))):
                a(fill.pop(0))
                if "ds_read" in a.lines[-1]: issued += 1
        while fill: a(fill.pop(0))
        f1 = f"""
        v_add_f32 v{T0}, v{T0}, v{T0+2}
        v_add_f32 v{T0+1}, v{T0+1}, v{T0+3}
        v_add_f32 v{T2}, v{T2}, v{T2+2}
        v_add_f32 v{T2+1}, v{T2+1}, v{T2+3}
        v_cvt_pk_bf16_f32 v{G}, v{T0}, v{T0+1}
        v_cvt_pk_bf16_f32 v{G+1}, v{T2}, v{T2+1}
        v_and_or_b32 v{G}, v{G}, -2, s{S_PHX}
        buffer_store_dwordx2 v[{G}:{G+1}], v{V_OVM}, {SRD}, s{S_XOUT} offen sc1
        """.strip().split("\n")
        seq2 = [(k, 1) for k in others] + [(k, 3) for k in others]
        F1N = opt.get("f1n", 2)
        f2 = [f"v_add_f32 v{T1}, v{T1}, v{T1+2}", f"v_add_f32 v{T1+1}, v{T1+1}, v{T1+3}"]
        st = 0
        for i, x in enumerate(seq2):
            qk(*x); st += 1
            if i < 2:
                a.nops(3); st += 3
            elif f1:
                for _ in range(F1N):
                    if f1: a(f1.pop(0))
            elif i >= 10:
                if i == 10: a.nops(3)
                a(f2.pop(0))
        assert not f1
        stamp(3)
        for l in f2: a(l)
        a(f"""
        v_cvt_pk_bf16_f32 v{G+2}, v{T1}, v{T1+1}
        v_and_or_b32 v{G+2}, v{G+2}, -2, s{S_PHX}
        """)
        a.nops(5 - len(f2))
        a(f"""
        v_pk_add_f32 v[{T3}:{T3+1}], v[{T3}:{T3+1}], v[{T3+2}:{T3+3}]
        v_cvt_pk_bf16_f32 v{G+3}, v{T3}, v{T3+1}
        buffer_store_dwordx2 v[{G+2}:{G+3}], v{V_OVM}, {SRD}, s{S_XOUT} offen offset:512 sc1
        """)
        def vsm(op):
            k, tau = op >> 1, op & 1
            d = V_ST + 8 * (op & 3) if op < 10 else wv_reg(op)
            smf(V_AV + 4 * tau, V_M + 4 * k, f"v[{d}:{d+7}]")
        vm = ["kx", "vx"] + (["pk", "pv"] if PUBA else ["rp"] if (full and w == 0) else []) + (["fl"] if KVW else [])
        def vwait(tag):
            n = len(vm) - 1 - max(i for i, t in enumerate(vm) if t == tag)
            a(f"s_waitcnt vmcnt({n})")
        vm.append("s1")
        vm.append("sq")
        stamp(4)
        XP = opt.get("xp", (14,))
        PB = [PG, V_PB1]
        def ldx(b):
            a(f"buffer_load_dwordx2 v[{PB[b]+2}:{PB[b]+3}], v{V_OVM}, {SRD}, s{S_XIN} offen offset:512 sc1")
        def ldy(b):
            a(f"buffer_load_dwordx2 v[{PB[b]}:{PB[b]+1}], v{V_OVM}, {SRD}, s{S_XIN} offen sc1")
        def xpoint(p):
            if p == opt.get("yp", 32):
                ldy(0); vm.append("y")
            if p == XP[0]:
                ldx(0); vm.append("x0")
            if p == XP[1]:
                ldy(1); ldx(1); vm.append("y1"); vm.append("x1")
        ldv = f"buffer_load_dwordx2 v[{V_AV+4}:{V_AV+5}], v{V_OVM}, {SRD}, s{S_VIN} offen sc1"
        vorder = [0, 1, 2, 3, 10, 11, 12, 4, 5, 13, 14, 15, 6, 7, 8, 9]
        pend = []
        for i, op in enumerate(vorder):
            if op in pend:
                a(f"s_waitcnt lgkmcnt({2 * (len(pend) - 1 - pend.index(op))})")
            vsm(op)
            if op + 4 < 10:
                wv_read(op + 4); pend.append(op + 4)
            xpoint(i)
        stamp(5)
        a(f"v_mfma_f32_16x16x16_bf16 v[{DO}:{DO+3}], v[{G}:{G+1}], v[{V_SEL}:{V_SEL+1}], 0")
        a(f"v_mfma_f32_16x16x16_bf16 v[{DO+4}:{DO+7}], v[{G+2}:{G+3}], v[{V_SEL}:{V_SEL+1}], 0")
        a.nops(5)
        a(f"""
        v_add_f32 v{V_AV}, v{V_AV}, v{V_AV+2}
        v_add_f32 v{V_AV+1}, v{V_AV+1}, v{V_AV+3}
        v_add_f32 v{V_AV+2}, v{V_AV+4}, v{V_AV+6}
        v_add_f32 v{V_AV+3}, v{V_AV+5}, v{V_AV+7}
        v_cvt_pk_bf16_f32 v{V_PV}, v{V_AV}, v{V_AV+1}
        v_cvt_pk_bf16_f32 v{V_PV+1}, v{V_AV+2}, v{V_AV+3}
        v_and_or_b32 v{V_PV}, v{V_PV}, -2, s{S_PHX}
        """)
        VS = opt.get("vs", 17)
        def vstore(p):
            if p != VS: return
            if opt.get("vbar"): a("s_barrier")
            a(f"buffer_store_dwordx2 v[{V_PV}:{V_PV+1}], v{V_OVM}, {SRD}, s{S_VOUT} offen sc1")
            vm.append("sv")
        xpoint(16)
        vstore(17)
        xpoint(17)
        stamp(6)
        OZ = 92
        a(f"""
        v_mov_b32 v{V_AV}, v{V_PV}
        v_mov_b32 v{V_AV+2}, v{V_PV+1}
        v_mov_b32 v{OZ}, v{V_ONE}
        v_mov_b32 v{OZ+1}, 0
        """)
        vwait("vx")
        stamp(7)
        a("s_barrier")
        for u in range(4):
            xpoint(30 + u); vstore(30 + u)
            for t in range(2):
                d = V_KX + 8 * u + 4 * t
                a(f"ds_read_b128 v[{d}:{d+3}], v{V_LL} offset:{xoff(u) + 1024*(1+t)}")
        xpoint(18)
        vstore(18)
        for i, dl in enumerate(opt.get("xd", ())):
            a.nops(dl)
            xpoint(19 + i)
            vstore(19 + i)
        stamp(8)
        XD = V_S
        def xtry(b):
            p = PB[b] + 2
            a(f"""
            v_mfma_f32_16x16x16_bf16 v[{XD+4}:{XD+7}], v[{p}:{p+1}], v[{V_SEL}:{V_SEL+1}], v[{DO+4}:{DO+7}]
            v_and_b32 v{V_T0}, 1, v{p}
            v_cmp_ne_u32 vcc, s{S_PHX}, v{V_T0}
            s_nop 5
            v_cvt_pk_bf16_f32 v{V_X+2}, v{XD+4}, v{XD+5}
            v_cvt_pk_bf16_f32 v{V_X+3}, v{XD+6}, v{XD+7}
            ds_write_b128 v{V_LL}, v[{V_X}:{V_X+3}] offset:{xoff(0)}
            """)
        vwait("y")
        a(f"""
        v_mfma_f32_16x16x16_bf16 v[{XD}:{XD+3}], v[{PG}:{PG+1}], v[{V_SEL}:{V_SEL+1}], v[{DO}:{DO+3}]
        v_and_b32 v{V_T0}, 1, v{PG}
        v_cmp_ne_u32 vcc, s{S_PHX}, v{V_T0}
        """)
        xpoint(40)
        a(f"""
        s_nop {3 if XP[1] == 40 else 5}
        v_cvt_pk_bf16_f32 v{V_X}, v{XD}, v{XD+1}
        v_cvt_pk_bf16_f32 v{V_X+1}, v{XD+2}, v{XD+3}
        s_cbranch_vccnz {L}_xslow
        """)
        vwait("x0")
        stamp(9)
        xtry(0)
        a(f"s_cbranch_vccnz {L}_xslow")
        a.label(f"{L}_xok")
        vm_x = list(vm)
        a(f"s_cmp_eq_u32 s{S_STEP}, {nsteps-1}\ns_cbranch_scc1 {L}_last")
        VL = opt.get("vlate", 0)
        ldv2 = f"buffer_load_dwordx2 v[{V_PB1}:{V_PB1+1}], v{V_OVM}, {SRD}, s{S_VIN} offen sc1"
        if not VL: a(ldv)
        a("s_waitcnt lgkmcnt(1)")
        def score(u, ts=(0, 1, 2)):
            x = V_X + 4 * u
            for t in ts:
                src = (V_KX + 8 * u + 4 * t) if t < 2 else x
                d = V_S + 4 * t
                c = "0" if u == 0 else f"v[{d}:{d+3}]"
                a(f"v_mfma_f32_16x16x32_bf16 v[{d}:{d+3}], v[{src}:{src+3}], v[{x}:{x+3}], {c}")
        score(0, (0,))
        a("s_waitcnt lgkmcnt(0)\ns_barrier")
        stamp(10)
        for u in range(1, 4):
            a(f"ds_read_b128 v[{V_X+4*u}:{V_X+4*u+3}], v{V_LL} offset:{xoff(u)}")
        score(0, (1, 2))
        a(ldv if VL else ldv2)
        if opt.get("pubat", 11) == 10: a(pubn[0]); a(pubn[1])
        vchk = f"""
        s_waitcnt vmcnt({1 if PUBA else 2 if opt.get("pubat") == 13 else 3})
        v_and_b32 v{V_T0}, 1, v{V_AV+4}
        v_cmp_ne_u32 vcc, s{S_PHX}, v{V_T0}
        v_mov_b32 v{V_AV+1}, v{V_AV+4}
        v_mov_b32 v{V_AV+3}, v{V_AV+5}
        """.strip().split("\n")
        MX, TM = V_T1, V_S + 10
        P = V_X + 4
        sq = [(u, t) for t in range(3) for u in range(1, 4)]
        pk_at, pv_at = {0: (3, 4), 1: (w, 4 + w), 2: (1 + w, 5 + w), 3: (2 * w, 2 * w + 1)}[opt.get("pst2", 1)]
        for i, (u, t) in enumerate(sq):
            if i < 3: a(f"s_waitcnt lgkmcnt({2 - i})")
            score(u, (t,))
            if opt.get("pubat", 11) == 11:
                if i == pk_at: a(pubn[0])
                if i == pv_at: a(pubn[1])
        zero32(V_ACC)
        stamp(11)
        PB2 = opt.get("pubat", 11) in (12, 13)
        a(f"""
        {pubn[0] if PB2 else "s_nop 0"}
        v_max3_f32 v{MX}, v{V_S}, v{V_S+1}, v{V_S+2}
        {pubn[1] + chr(10) + "s_nop 0" if opt.get("pubat") == 12 else "s_nop 1"}
        v_max3_f32 v{MX}, v{MX}, v{V_S+3}, v{V_S+4}
        v_max3_f32 v{MX}, v{MX}, v{V_S+5}, v{V_S+6}
        v_max_f32 v{MX}, v{MX}, v{V_S+7}
        v_max3_f32 v{TM}, v{MX}, v{V_S+8}, v{V_S+9}
        v_max3_f32 v{MX}, v{MX}, v{V_S+8}, v{V_S+9}
        s_nop 1
        v_permlane16_swap_b32 v{MX}, v{TM}
        v_max_f32 v{MX}, v{MX}, v{TM}
        v_max_f32 v{TM}, v{MX}, v{TM}
        s_nop 1
        v_permlane32_swap_b32 v{MX}, v{TM}
        v_max_f32 v{MX}, v{MX}, v{TM}
        v_mul_f32 v{MX}, s{S_C}, v{MX}
        """)
        for i in range(0, 10, 2):
            a(f"v_pk_fma_f32 v[{V_S+i}:{V_S+i+1}], v[{V_S+i}:{V_S+i+1}], s[{S_C}:{S_C+1}], v[{MX}:{MX+1}] op_sel_hi:[1,0,0] neg_lo:[0,0,1] neg_hi:[0,0,1]")
        for i in range(8):
            a(f"v_exp_f32 v{V_S+i}, v{V_S+i}")
            if i >= 2 and i % 2 == 0:
                a(f"v_cvt_pk_bf16_f32 v{P+i//2-1}, v{V_S+i-2}, v{V_S+i-1}")
        O, SM = DO, V_X + 12
        OB = V_S + 4
        a(f"""
        v_exp_f32 v{V_S+8}, v{V_S+8}
        v_cvt_pk_bf16_f32 v{P+3}, v{V_S+6}, v{V_S+7}
        v_exp_f32 v{V_S+9}, v{V_S+9}
        {vchk[0]}
        """)
        stamp(12)
        a(f"""
        v_mfma_f32_16x16x32_bf16 v[{SM}:{SM+3}], v[{V_ONE}:{V_ONE+3}], v[{P}:{P+3}], 0
        {vchk[1]}
        v_cvt_pk_bf16_f32 v{P+4}, v{V_S+8}, v{V_S+9}
        v_mfma_f32_16x16x32_bf16 v[{O}:{O+3}], v[{V_VX}:{V_VX+3}], v[{P}:{P+3}], 0
        {vchk[2]}
        v_cvt_pk_bf16_f32 v{P+5}, v{V_S+8}, v{V_S+9}
        v_mfma_f32_16x16x32_bf16 v[{O+4}:{O+7}], v[{V_VX+4}:{V_VX+7}], v[{P}:{P+3}], 0
        {vchk[3]}
        {vchk[4]}
        v_mfma_f32_16x16x16_bf16 v[{SM}:{SM+3}], v[{OZ}:{OZ+1}], v[{P+4}:{P+5}], v[{SM}:{SM+3}]
        s_cbranch_vccnz {L}_pv0
        {L}_pv2:
        v_mfma_f32_16x16x16_bf16 v[{O}:{O+3}], v[{V_AV}:{V_AV+1}], v[{P+4}:{P+5}], v[{O}:{O+3}]
        v_mfma_f32_16x16x16_bf16 v[{O+4}:{O+7}], v[{V_AV+2}:{V_AV+3}], v[{P+4}:{P+5}], v[{O+4}:{O+7}]
        """)
        stamp(13)
        nn = 0
        if opt.get("vxp", 13) == 13:
            a(ldvx[0]); a(ldvx[1]); nn = 2
        if opt.get("pubat") == 13: a(pubn[1]); nn += 1
        a.nops(5 - nn)
        a(f"""
        v_rcp_f32 v{SM}, v{SM}
        s_mov_b64 exec, s[{S_MQ}:{S_MQ+1}]
        v_pk_mul_f32 v[{O}:{O+1}], v[{O}:{O+1}], v[{SM}:{SM+1}] op_sel_hi:[1,0]
        v_pk_mul_f32 v[{O+2}:{O+3}], v[{O+2}:{O+3}], v[{SM}:{SM+1}] op_sel_hi:[1,0]
        v_pk_mul_f32 v[{O+4}:{O+5}], v[{O+4}:{O+5}], v[{SM}:{SM+1}] op_sel_hi:[1,0]
        v_pk_mul_f32 v[{O+6}:{O+7}], v[{O+6}:{O+7}], v[{SM}:{SM+1}] op_sel_hi:[1,0]
        v_cvt_pk_bf16_f32 v{OB}, v{O}, v{O+1}
        v_cvt_pk_bf16_f32 v{OB+1}, v{O+2}, v{O+3}
        v_cvt_pk_bf16_f32 v{OB+2}, v{O+4}, v{O+5}
        v_cvt_pk_bf16_f32 v{OB+3}, v{O+6}, v{O+7}
        """)
        OA = V_X + 4
        stamp(14)
        def save(n):
            a(f"""
            s_waitcnt vmcnt({n})
            v_mov_b32 v{V_PB1}, v{V_X}
            v_mov_b32 v{V_PB1+1}, v{V_X+1}
            v_mov_b32 v{V_PB1+2}, v{V_X+2}
            v_mov_b32 v{V_PB1+3}, v{V_X+3}
            s_add_u32 s{S_KVM}, s{S_KVM}, {32*8192}
            s_add_u32 s{S_KVV}, s{S_KVV}, {32*8192}
            """)
        a(f"ds_write_b128 v{V_LL}, v[{OB}:{OB+3}] offset:{LDS_O - LDS_MEM + (w >> 1) * 1024 + (w & 1) * 32 - 32}")
        a("s_mov_b64 exec, -1")
        WB = {10: 88, 11: V_AV, 12: 96, 13: 104, 14: 80, 15: 88}
        NPRE = opt.get("npre", 3)
        for op in range(10, 10 + NPRE): lop_read(op, WB[op])
        if opt.get("vxp", 13) == 14: a(ldvx[0]); a(ldvx[1])
        if full and w == 0 and PUBA:
            a(f"v_mov_b32 v{V_T0}, s{S_STEP}")
            a(f"buffer_store_dword v{V_T0}, v{V_FL}, {SRD}, 0 offen sc1")
        a(f"""
        s_waitcnt lgkmcnt({2 * NPRE})
        s_barrier
        ds_read_b128 v[{OA}:{OA+3}], v{V_LL} offset:{LDS_O - LDS_MEM}
        ds_read_b128 v[{OA+4}:{OA+7}], v{V_LL} offset:{LDS_O - LDS_MEM + 1024}
        """)
        for op in range(10 + NPRE, 15): lop_read(op, WB[op])
        NPOST = 2 * (5 - NPRE)
        stamp(15)
        sal = f"""
        s_add_u32 s{S_STEP}, s{S_STEP}, 1
        s_xor_b32 s{S_XIN}, s{S_XIN}, {MB}
        s_xor_b32 s{S_XOUT}, s{S_XOUT}, {MB}
        s_xor_b32 s{S_VIN}, s{S_VIN}, {MB}
        s_xor_b32 s{S_VOUT}, s{S_VOUT}, {MB}
        s_lshr_b32 s{S_PHX}, s{S_STEP}, 1
        s_and_b32 s{S_PHX}, s{S_PHX}, 1
        s_xor_b32 s{S_PHX}, s{S_PHX}, 1
        s_xor_b32 s{S_MEMR}, s{S_MEMR}, 16384
        s_xor_b32 s{S_MEMW}, s{S_MEMW}, 16384
        s_add_u32 s{S_KX}, s{S_KX}, {0 if opt.get('nok') else 32*8192}
        s_add_u32 s{S_VX}, s{S_VX}, {0 if opt.get('nov') else 32*8192}
        """.strip().split("\n")

        def wo(i):
            T, kp = WO_ORDER[i]
            b = V_WO + 8 * i if i < 10 else WB[i]
            smf(V_ACC + 4 * T, OA + 4 * kp, f"v[{b}:{b+7}]")
        def fold(T, pk):
            A = V_ACC + 4 * T
            GR = V_ACC + 16 * (T >> 2)
            if pk:
                Ls = [f"v_pk_add_f32 v[{A}:{A+1}], v[{A}:{A+1}], v[{A+2}:{A+3}]"]
            else:
                Ls = [f"v_add_f32 v{A}, v{A}, v{A+2}", f"v_add_f32 v{A+1}, v{A+1}, v{A+3}"]
            Ls.append(f"v_cvt_pk_bf16_f32 v{GR+(T&3)}, v{A}, v{A+1}")
            if T & 3 == 0:
                Ls.append(f"v_and_or_b32 v{GR}, v{GR}, -2, s{S_PHP}")
            if T & 3 == 3:
                Ls.append(f"buffer_store_dwordx4 v[{GR}:{GR+3}], v{V_OPART}, {SRD}, s{S_PARTW if T < 4 else S_PARTW2} offen {IS}")
            return Ls
        NG = opt.get("wog", 1)
        NPK = opt.get("npk", 4)
        ready, pending, since = [], {}, {}
        a(f"s_waitcnt lgkmcnt({NPOST + 1})")
        def tick(n=1):
            for T in list(since):
                since[T] += n
                if since[T] >= 8:
                    ready.extend(fold(T, T >= NPK)); del since[T]
        for i in range(16):
            if i == 1: a(f"s_waitcnt lgkmcnt({NPOST})"); tick()
            if i == 10 or i == 15: a("s_waitcnt lgkmcnt(0)"); tick()
            wo(i); tick()
            if i & 1: since[i >> 1] = 0
            if i == 10:
                lop_read(15, WB[15]); tick(2)
            else:
                n = NG if i < opt.get("wog2", 16) else 2
                for _ in range(n):
                    if ready and "v_pk" not in ready[0]: a(ready.pop(0)); tick()
                for _ in range(3 if i < 4 else 0):
                    if sal: a(sal.pop(0)); tick()
        while ready or since:
            if ready: a(ready.pop(0))
            else: a("s_nop 0")
            tick()
        stamp(16)
        for l in sal: a(l)
        if PUBA: save(5 if (full and w == 0) else 4)
        else: a(f"s_add_u32 s{S_KVM}, s{S_KVM}, {32*8192}\ns_add_u32 s{S_KVV}, s{S_KVV}, {32*8192}")
        if opt.get("steps") and w == 1:
            a(f"""
            s_memrealtime s[62:63]
            s_lshl_b32 s64, s{S_J}, 5
            s_add_u32 s64, s64, s{S_H}
            s_lshl_b32 s64, s64, 6
            s_add_u32 s64, s64, s{S_STEP}
            s_lshl_b32 s64, s64, 2
            s_add_u32 s64, s64, {WS_PROF + 4*MB}
            s_waitcnt lgkmcnt(0)
            v_mov_b32 v{V_T0}, s62
            s_mov_b64 exec, 1
            buffer_store_dword v{V_T0}, off, {SRD}, s64
            s_mov_b64 exec, -1
            """)
        top()
        if KVW:
            a(f"""
            s_add_u32 s{S_T0}, s{S_STEP}, 2
            s_cmp_gt_u32 s{S_KN}, s{S_T0}
            s_cbranch_scc1 {L}_kvs
            """)
            kv_eval(V_OMR)
            kv_block(V_OMR, 1)
            a.label(f"{L}_kvs")
        RB, RD = V_M + 4, V_M + 20
        a(f"v_mov_b32 v{RD+6}, -1\nv_mov_b32 v{RD+7}, -1")
        if opt.get("preC") == "ack":
            a("s_waitcnt vmcnt(0)"); a.nops(opt.get("xC", 0))
        elif opt.get("preC") == "ack1": a("s_waitcnt vmcnt(1)")
        elif opt.get("preC"): a.nops(opt["preC"])
        def cissue(b):
            for d in range(8):
                if PL: a(f"buffer_load_dword v{RB+8*b+d}, v{V_OCR}, {SRD}, s{S_PARTR2} offen offset:{256*d} sc1")
                else: a(f"buffer_load_dword v{RB+8*b+d}, v{V_OCR}, {SRD}, s{S_PARTR if d < 4 else S_PARTR2} offen offset:{1024*(d&3) + 64*w} sc1")
        def ctry(b, behind, nxt=None):
            r = RB + 8 * b
            a(f"""
            s_waitcnt vmcnt({behind + 4})
            v_mfma_f32_16x16x32_bf16 v[{RD}:{RD+3}], v[{r}:{r+3}], v[{V_SELR}:{V_SELR+3}], 0
            v_bitop3_b32 v{V_T0}, s{S_PHP}, v{r}, v{r+1} bitop3:0x7e
            v_bitop3_b32 v{V_T1}, s{S_PHP}, v{r+2}, v{r+3} bitop3:0x7e
            s_waitcnt vmcnt({behind + 2})
            v_or_b32 v{V_T0}, v{V_T0}, v{V_T1}
            v_bitop3_b32 v{V_T1}, s{S_PHP}, v{r+4}, v{r+5} bitop3:0x7e
            s_waitcnt vmcnt({behind})
            v_mfma_f32_16x16x32_bf16 v[{RD}:{RD+3}], v[{r+4}:{r+7}], v[{V_SELR}:{V_SELR+3}], v[{RD}:{RD+3}]
            v_bitop3_b32 v{RD+4}, s{S_PHP}, v{r+6}, v{r+7} bitop3:0x7e
            v_or3_b32 v{V_T0}, v{V_T0}, v{V_T1}, v{RD+4}
            v_and_b32 v{V_T0}, v{V_TAGM}, v{V_T0}
            v_cmp_ne_u32 vcc, 0, v{V_T0}
            """)
        def cfin():
            a(f"""
            v_cvt_pk_bf16_f32 v{RD+4}, v{RD}, v{RD+1}
            v_cvt_pk_bf16_f32 v{RD+5}, v{RD+2}, v{RD+3}
            v_min_u32 v{RD+4}, -2, v{RD+4}
            """)
        CD = opt.get("cd", 0)
        if CD:
            cissue(0); a.nops(CD); cissue(1)
            if opt.get("tot"): a("s_add_u32 s87, s87, 1")
            ctry(0, 8)
            a(f"s_cbranch_vccnz {L}_cslow")
            a.label(f"{L}_cok")
            a("s_nop 2"); cfin()
        elif opt.get("cearly", 0):
            a.label(f"{L}_pc")
            cissue(0)
            watchdog(30, 3)
            ctry(0, 0)
            a(f"s_cbranch_vccnz {L}_pc")
            a("s_nop 2"); cfin()
        else:
            a.label(f"{L}_pc")
            cissue(0)
            watchdog(30, 3)
            ctry(0, 0); a("s_nop 3"); cfin()
            a(f"s_cbranch_vccnz {L}_pc")
        a(f"""
        {"" if opt.get("amask") else f"s_mov_b64 exec, s[{S_MLO}:{S_MLO+1}]"}
        buffer_store_dwordx2 v[{RD+4}:{RD+5}], v{V_OMP}, {SRD}, s{S_MEMR} offen offset:{w * (256 if ML else 64)} {IS}
        buffer_store_dwordx2 v[{RD+6}:{RD+7}], v{V_OMP}, {SRD}, s{S_MEMW} offen offset:{w * (256 if ML else 64)} {IS}
        s_mov_b64 exec, -1
        s_xor_b32 s{S_PHP}, s{S_PHP}, 1
        """)
        stamp(17)
        a(f"s_branch {L}_loop")
        a.label(f"{L}_last")
        if PUBA: a(f"s_add_u32 s{S_KVM}, s{S_KVM}, {32*8192}\ns_add_u32 s{S_KVV}, s{S_KVV}, {32*8192}")
        a(pubd[0].replace(f"v[{V_PB1}:{V_PB1+3}]", f"v[{V_X}:{V_X+3}]")); a(pubd[1])
        a(f"s_branch {name}_end")
        a.label(f"{L}_pafail")
        if AD:
            if opt.get("tot"): a("s_add_u32 s84, s84, 1")
            a.nops(6)
            for i in range(4 * min(NB, 4)):
                a(f"v_mov_b32 v{V_AQ+i}, 0")
            a.label(f"{L}_pa2")
            a(f"""
            s_waitcnt vmcnt(0)
            v_max3_u32 v{V_T0}, v{n0}, v{n0+2}, v{n1}
            v_max_u32 v{V_T0}, v{V_T0}, v{n1+2}
            v_cmp_eq_u32 vcc, -1, v{V_T0}
            """)
            for i in range(0, 4, 2):
                a(f"v_pk_mov_b32 v[{m0+i}:{m0+i+1}], v[{n0+i}:{n0+i+1}], v[{n0+i}:{n0+i+1}] op_sel:[0,1]")
                a(f"v_pk_mov_b32 v[{m1+i}:{m1+i+1}], v[{n1+i}:{n1+i+1}], v[{n1+i}:{n1+i+1}] op_sel:[0,1]")
            a(f"""
            s_cbranch_vccz {L}_pa
            buffer_load_dwordx4 v[{n0}:{n0+3}], v{V_L16 if ML else V_OMR}, {SRD}, s{S_T0} offen sc1
            buffer_load_dwordx4 v[{n1}:{n1+3}], v{V_L16 if ML else V_OMR}, {SRD}, s{S_T0} offen offset:1024 sc1
            """)
            watchdog(10 + w, 0)
            a(f"s_branch {L}_pa2")
        else:
            if not opt.get("are"): a(lda)
            watchdog(10 + w, 0)
            a.nops(8)
            for i in range(4 * min(NB, 4)):
                a(f"v_mov_b32 v{V_AQ+i}, 0")
            a(f"s_branch {L}_pa")

        if opt.get("cd"):
            a.label(f"{L}_cslow")
            cissue(0)
            a.label(f"{L}_pc")
            watchdog(30, 3)
            ctry(1, 8)
            a(f"s_cbranch_vccz {L}_cok")
            cissue(1)
            watchdog(30, 3)
            ctry(0, 8)
            a(f"s_cbranch_vccz {L}_cok")
            cissue(0)
            a(f"s_branch {L}_pc")

        a.label(f"{L}_xslow")
        def xlight(b):
            a(f"""
            s_waitcnt vmcnt(2)
            v_bitop3_b32 v{V_T0}, s{S_PHX}, v{PB[b]}, v{PB[b]+2} bitop3:0x7e
            v_mfma_f32_16x16x16_bf16 v[{XD}:{XD+3}], v[{PB[b]}:{PB[b]+1}], v[{V_SEL}:{V_SEL+1}], v[{DO}:{DO+3}]
            v_and_b32 v{V_T0}, 1, v{V_T0}
            v_mfma_f32_16x16x16_bf16 v[{XD+4}:{XD+7}], v[{PB[b]+2}:{PB[b]+3}], v[{V_SEL}:{V_SEL+1}], v[{DO+4}:{DO+7}]
            v_cmp_ne_u32 vcc, 0, v{V_T0}
            s_cbranch_vccz {L}_xgot
            """)
        assert vm_x[-1] == "x1"
        for b in (0, 1):
            ldy(b); ldx(b)
            watchdog(20, 1)
            xlight(1 - b)
        a(f"s_branch {L}_xslow")
        a.label(f"{L}_xgot")
        a(f"""
        s_nop 3
        v_cvt_pk_bf16_f32 v{V_X}, v{XD}, v{XD+1}
        v_cvt_pk_bf16_f32 v{V_X+1}, v{XD+2}, v{XD+3}
        v_cvt_pk_bf16_f32 v{V_X+2}, v{XD+4}, v{XD+5}
        v_cvt_pk_bf16_f32 v{V_X+3}, v{XD+6}, v{XD+7}
        ds_write_b128 v{V_LL}, v[{V_X}:{V_X+3}] offset:{xoff(0)}
        s_branch {L}_xok
        """)

        a.label(f"{L}_pv0")
        if opt.get("tot"): a("s_add_u32 s86, s86, 1")
        a(f"s_waitcnt vmcnt({0 if PUBA else 1 if opt.get('pubat') == 13 else 2})\ns_branch {L}_pv1")
        a.label(f"{L}_pv")
        watchdog(21, 2)
        a(f"""
        buffer_load_dwordx2 v[{V_PB1}:{V_PB1+1}], v{V_OVM}, {SRD}, s{S_VIN} offen sc1
        s_waitcnt vmcnt(0)
        {L}_pv1:
        v_and_b32 v{V_T0}, 1, v{V_PB1}
        v_cmp_ne_u32 vcc, s{S_PHX}, v{V_T0}
        v_mov_b32 v{V_AV+1}, v{V_PB1}
        v_mov_b32 v{V_AV+3}, v{V_PB1+1}
        s_cbranch_vccnz {L}_pv
        s_branch {L}_pv2
        """)

    for w in range(4):
        wave_loop(w)
    a.label(f"{name}_end")
    a("s_mov_b64 exec, -1")
    if full:
        a(f"""
        v_mov_b32 v{V_T0}, 64
        s_waitcnt vmcnt(0)
        s_barrier
        s_cmp_lg_u32 s{S_WAVE}, 0
        s_cbranch_scc1 {name}_end2
        buffer_store_dword v{V_T0}, v{V_FL}, s[{S_WS}:{S_WS+3}], 0 offen sc1
        {name}_end2:
        """)
    if tstamp: tstamp()
    if opt.get("tot"):
        a(f"""
        s_memtime s[66:67]
        s_memrealtime s[68:69]
        s_waitcnt lgkmcnt(0)
        s_sub_u32 s89, s66, s98
        s_sub_u32 s88, s68, s96
        s_lshl_b32 s{S_T0}, s{S_J}, 5
        s_add_u32 s{S_T0}, s{S_T0}, s{S_H}
        s_lshl_b32 s{S_T0}, s{S_T0}, 2
        s_add_u32 s{S_T0}, s{S_T0}, s{S_WAVE}
        s_lshl_b32 s{S_T0}, s{S_T0}, 7
        s_add_u32 s{S_T0}, s{S_T0}, {WS_PROF}
        s_mov_b64 exec, 1
        """)
        for i in range(14, 20):
            a(f"v_mov_b32 v{V_T0}, s{70+i}")
            a(f"buffer_store_dword v{V_T0}, v{V_Z}, s[{S_WS}:{S_WS+3}], s{S_T0} offen offset:{4*i}")
        a("s_mov_b64 exec, -1")
    a("s_waitcnt vmcnt(0)")
    a("s_endpgm")
    if wd:
        a.label(f"{name}_wdexit")
        a(f"""
        s_mov_b64 exec, 1
        s_lshl_b32 s{S_T0}, s{S_STEP}, 8
        s_or_b32 s{S_T2}, s{S_T2}, s{S_T0}
        v_mov_b32 v{V_T0}, s{S_T2}
        v_mov_b32 v{V_T1}, 0
        s_lshl_b32 s{S_T0}, s{S_J}, 5
        s_add_u32 s{S_T0}, s{S_T0}, s{S_H}
        s_lshl_b32 s{S_T0}, s{S_T0}, 2
        s_add_u32 s{S_T0}, s{S_T0}, s{S_WAVE}
        s_lshl_b32 s{S_T0}, s{S_T0}, 2
        s_add_u32 s{S_T0}, s{S_T0}, {WS_PROF + MB}
        buffer_store_dword v{V_T0}, v{V_T1}, s[{S_WS}:{S_WS+3}], s{S_T0} offen
        s_endpgm
        """)


def gen_standalone(name, prof=False, opt={}, xa=0, xb=1):
    from gen_hop import ticket
    a = Asm(); a.kernel_begin(name)
    a(f"s_cmp_ge_u32 s2, 256\ns_cbranch_scc1 {name}_exit")
    a(f"""
    s_load_dwordx2 s[84:85], s[0:1], {KA_WS}
    s_waitcnt lgkmcnt(0)
    s_mov_b32 s86, {WS_BYTES}
    s_mov_b32 s87, 0x00020000
    """)
    global_init(a, name, 84)
    a("s_waitcnt vmcnt(0)\ns_barrier")
    ticket(a, name, 2)
    a(f"""
    s_cmp_eq_u32 s90, {xa}
    s_cselect_b32 s{S_J}, 0, 2
    s_cmp_eq_u32 s90, {xb}
    s_cselect_b32 s{S_J}, 1, s{S_J}
    s_cmp_ge_u32 s{S_J}, 2
    s_cbranch_scc1 {name}_exit
    s_cmp_ge_u32 s96, 32
    s_cbranch_scc1 {name}_exit
    s_mov_b32 s{S_H}, s96
    s_branch {name}_go
    {name}_exit:
    s_endpgm
    {name}_go:
    """)
    rec_body(a, name + "_r", "", prof=prof, wd=True, opt=opt)
    return (name, a.text(), kd(name, 512, sgpr=100, accum=256), 256, 256, LDS_REC)


if __name__ == "__main__":
    import sys, json
    V = eval(open(sys.argv[1]).read())
    ks = [gen_standalone(f"r{i}_kernel", **v) for i, v in enumerate(V)]
    write_file("rec.s", ks)
    json.dump(V, open("rec.json", "w"))
```

```python
from common import *
from gen_rec import WS_QX, WS_KX, WS_VT, WS_O, WS_KVM
from gen_qkv import WS_FL

FL_RP, FL_XF = 192, 256
SPAIR = 58
NEARLY = 4


class WoLoader:
    LDS_W = 81920
    def __init__(self, a, name, S_B, S_WV, opt):
        self.a, self.name, self.S_B, self.S_WV, self.opt = a, name, S_B, S_WV, opt
    def setup(self):
        a = self.a
        a(f"""
        s_load_dwordx2 s[52:53], s[0:1], {KA_WO}
        v_and_b32 v202, 63, v0
        s_and_b32 s58, s{self.S_B}, 31
        v_lshrrev_b32 v200, 2, v202
        v_lshlrev_b32 v200, 11, v200
        v_and_b32 v203, 3, v202
        v_lshl_add_u32 v200, v203, 4, v200
        s_lshl_b32 s56, s{self.S_WV}, 21
        s_lshl_b32 s57, s58, 6
        s_add_u32 s56, s56, s57
        v_add_u32 v200, s56, v200
        s_lshl_b32 s56, s{self.S_WV}, 14
        s_add_u32 s56, s56, {self.LDS_W}
        s_lshr_b32 s57, s58, 1
        s_lshl_b32 s57, s57, 12
        v_lshrrev_b32 v201, 5, v202
        v_bfe_u32 v204, v202, 2, 2
        v_lshl_add_u32 v201, v201, 3, v204
        v_lshlrev_b32 v201, 6, v201
        v_bfe_u32 v204, v202, 4, 1
        v_lshl_add_u32 v201, v204, 5, v201
        v_lshl_add_u32 v201, v203, 3, v201
        v_add_u32 v201, s56, v201
        s_waitcnt lgkmcnt(0)
        s_mov_b32 s54, {8*MB}
        s_mov_b32 s55, 0x00020000
        """)
    def issue(self, b):
        a = self.a
        for ks in range(16 * b, 16 * b + 16):
            a(f"s_add_u32 m0, s56, {(ks & 15) * 1024}")
            a(f"s_add_u32 s58, s57, {ks * 1024}")
            a(f"s_and_b32 s58, s58, 0xffff")
            a(f"s_lshl_b32 s58, s58, 5")
            a(f"buffer_load_dwordx4 v200, s[52:55], s58 offen lds")
    def consume(self, b):
        a = self.a
        a("s_waitcnt vmcnt(0)")
        for ks in range(16 * b, 16 * b + 16):
            for j in range(2):
                a(f"ds_read_b64_tr_b16 a[{4*ks+2*j}:{4*ks+2*j+1}], v201 offset:{(ks & 15) * 1024 + j * 256}")
            if ks & 3 == 3: a("s_waitcnt lgkmcnt(0)")
    def step(self, n):
        if n > 0: self.consume(n - 1)
        if n < 4: self.issue(n)


def xo_role(a: Asm, name, S_B, S_WS, S_FAST, wd=None, opt={}, stamp=None):
    S_W, S_O = 8, 12
    S_WAVE, S_G, S_C, S_T0, S_T1, S_SEG, S_CST = 16, 17, 18, 20, 21, 22, 24
    S_QO, S_KO, S_VO, S_MO, S_OW, S_OR, S_OUT, S_NEED = 26, 27, 28, 29, 40, 41, 42, 43
    S_M0 = 44
    S_CUR, S_RET, S_SLOT, S_QO2, S_KO2, S_ROT = 45, 46, 47, 48, 49, 50
    SRD = f"s[{S_WS}:{S_WS+3}]"
    V_L, V_L16, V_T0, V_T1, V_T2 = 1, 2, 3, 4, 5
    V_OKM, V_OVM, V_OOW, V_TH0, V_TH1, V_NEG, V_FGP, V_FRP, V_FXF, V_FMY, V_LR, V_LW, V_OUT = 6, 7, 8, 9, 10, 11, 12, 13, 14, 15, 16, 17, 18
    V_HL = 19
    V_ONE = 20
    V_Q, V_K, V_V = 24, 40, 72
    V_KM, V_VM = 88, 104
    V_S, V_P, V_SM = 112, 124, 132
    V_O = 88
    V_ACC = 112
    V_F = 136
    NFR = 30

    def xst(reg):
        if not (stamp and opt.get("xst")): return
        l = a.newlabel(name + "_xs")
        a(f"s_cmp_lt_u32 s{reg}, 61\ns_cbranch_scc1 {l}")
        stamp()
        a.label(l)

    def poll_guard(code):
        if wd: wd(code)

    a(f"""
    s_load_dwordx2 s[{S_W}:{S_W+1}], s[0:1], {KA_WO}
    s_load_dwordx2 s[{S_O}:{S_O+1}], s[0:1], {KA_OUT}
    v_lshrrev_b32 v{V_T0}, 6, v0
    v_and_b32 v{V_L}, 63, v0
    v_readfirstlane_b32 s{S_WAVE}, v{V_T0}
    s_lshr_b32 s{S_G}, s{S_B}, 5
    s_and_b32 s{S_C}, s{S_B}, 31
    v_lshlrev_b32 v{V_L16}, 4, v{V_L}
    s_waitcnt lgkmcnt(0)
    s_mov_b32 s{S_W+2}, {8*MB}
    s_mov_b32 s{S_W+3}, 0x00020000
    s_mov_b32 s{S_O+2}, {8*MB}
    s_mov_b32 s{S_O+3}, 0x00020000
    s_mov_b32 s{S_CST}, 0x3e0293ee
    s_lshr_b32 s{S_ROT}, s{S_C}, 1
    s_lshl_b32 s{S_ROT}, s{S_ROT}, 12
    """)
    a(f"""
    s_lshl_b32 s{S_SLOT}, s{S_G}, 2
    s_add_u32 s{S_T0}, s{S_SLOT}, s{S_WAVE}
    s_lshl_b32 s{S_T0}, s{S_T0}, 18
    s_lshl_b32 s{S_T1}, s{S_C}, 13
    s_add_u32 s{S_T0}, s{S_T0}, s{S_T1}
    s_add_u32 s{S_T0}, s{S_T0}, {WS_O}
    v_lshlrev_b32 v26, 7, v{V_L}
    buffer_load_dword v28, v26, {SRD}, s{S_T0} offen sc1
    """)
    a(f"""
    v_and_b32 v{V_T1}, 15, v{V_L}             ; c
    v_lshrrev_b32 v{V_T2}, 4, v{V_L}          ; g
    v_lshrrev_b32 v{V_T0}, 2, v{V_T1}
    v_lshlrev_b32 v{V_T0}, 1, v{V_T0}
    v_and_b32 v26, 1, v{V_T1}
    v_add_u32 v{V_T0}, v{V_T0}, v26           ; m(c)
    v_lshlrev_b32 v{V_OKM}, 8, v{V_T0}
    v_lshl_add_u32 v{V_OKM}, v{V_T2}, 4, v{V_OKM}
    s_lshr_b32 s{S_T0}, s{S_WAVE}, 1
    s_lshl_b32 s{S_T0}, s{S_T0}, 10
    s_add_u32 s{S_T0}, s{S_T0}, 2048
    v_lshlrev_b32 v{V_OVM}, 3, v{V_L}
    v_add_u32 v{V_OVM}, s{S_T0}, v{V_OVM}
    v_lshlrev_b32 v{V_OOW}, 9, v{V_T2}
    v_lshl_add_u32 v{V_OOW}, v{V_T1}, 4, v{V_OOW}
    s_lshr_b32 s{S_T0}, s{S_WAVE}, 1
    s_lshl_b32 s{S_T0}, s{S_T0}, 12
    s_and_b32 s{S_T1}, s{S_WAVE}, 1
    s_lshl_b32 s{S_T1}, s{S_T1}, 8
    s_add_u32 s{S_T0}, s{S_T0}, s{S_T1}
    v_add_u32 v{V_OOW}, s{S_T0}, v{V_OOW}
    v_lshlrev_b32 v{V_HL}, 4, v{V_T1}
    v_and_b32 v26, 1, v{V_T2}
    v_lshl_add_u32 v{V_HL}, v26, 10, v{V_HL}
    v_lshrrev_b32 v26, 1, v{V_T2}
    v_lshl_add_u32 v{V_HL}, v26, 9, v{V_HL}
    s_and_b32 s{S_T0}, s{S_G}, 1
    s_lshl_b32 s{S_T0}, s{S_T0}, 8
    v_add_u32 v{V_HL}, s{S_T0}, v{V_HL}
    v_lshlrev_b32 v26, 2, v{V_T2}
    v_sub_u32 v{V_TH0}, v{V_T1}, v26
    s_lshr_b32 s{S_T1}, s{S_T1}, 4
    v_add_u32 v{V_TH0}, s{S_T1}, v{V_TH0}
    v_add_u32 v{V_TH1}, -16, v{V_TH0}
    v_mov_b32 v{V_NEG}, 0xff7fffff
    v_mov_b32 v{V_ONE}, 0x3f803f80
    v_mov_b32 v{V_ONE+1}, 0x3f803f80
    v_mov_b32 v{V_ONE+2}, 0x3f803f80
    v_mov_b32 v{V_ONE+3}, 0x3f803f80
    v_bfe_u32 v26, v{V_L}, 1, 2
    v_min_u32 v26, 2, v26
    s_lshl_b32 s{S_T0}, s{S_C}, 8
    s_add_u32 s{S_T0}, s{S_T0}, {WS_FL}
    v_lshlrev_b32 v{V_FGP}, 13, v26
    v_and_b32 v26, 1, v{V_L}
    v_lshl_add_u32 v{V_FGP}, v26, 7, v{V_FGP}
    v_add_u32 v{V_FGP}, s{S_T0}, v{V_FGP}
    v_and_b32 v26, 1, v{V_L}
    v_lshlrev_b32 v{V_FRP}, 7, v26
    s_add_u32 s{S_T0}, s{S_T0}, {FL_RP * 128}
    v_add_u32 v{V_FRP}, s{S_T0}, v{V_FRP}
    v_and_b32 v26, 7, v{V_L}
    s_lshl_b32 s{S_T0}, s{S_G}, 5
    s_lshl_b32 s{S_T1}, s{S_WAVE}, 3
    s_add_u32 s{S_T0}, s{S_T0}, s{S_T1}
    v_add_u32 v26, s{S_T0}, v26
    v_lshlrev_b32 v{V_FXF}, 7, v26
    v_add_u32 v{V_FXF}, {WS_FL + FL_XF * 128}, v{V_FXF}
    v_bfrev_b32 v26, 1
    s_lshl_b32 s{S_T0}, s{S_B}, 7
    s_add_u32 s{S_T0}, s{S_T0}, {WS_FL + FL_XF * 128}
    v_mov_b32 v27, s{S_T0}
    v_cmp_eq_u32 vcc, 0, v0
    s_lshl_b32 s{S_T0}, s{S_WAVE}, 12
    v_add_u32 v{V_LW}, s{S_T0}, v{V_L16}
    v_cndmask_b32 v{V_FMY}, v26, v27, vcc
    v_lshrrev_b32 v26, 3, v0
    v_and_b32 v27, 1, v0
    v_lshl_add_u32 v27, v27, 5, v26
    v_lshlrev_b32 v{V_LR}, 4, v27
    v_bfe_u32 v27, v0, 1, 2
    v_lshl_add_u32 v{V_LR}, v27, 10, v{V_LR}
    v_lshlrev_b32 v{V_OUT}, 12, v26
    v_and_b32 v27, 7, v0
    v_lshl_add_u32 v{V_OUT}, v27, 3, v{V_OUT}
    s_lshl_b32 s{S_T0}, s{S_C}, 6
    v_add_u32 v{V_OUT}, s{S_T0}, v{V_OUT}
    """)
    a("s_barrier")
    if stamp: stamp()
    a(f"""
    s_add_u32 s{S_SEG}, s{S_G}, {NEARLY}
    s_sub_u32 s{S_T0}, s{S_G}, 4
    s_cmp_ge_u32 s{S_G}, 4
    s_cselect_b32 s{S_SEG}, s{S_T0}, s{S_SEG}
    """)

    def addr():
        a(f"""
        s_lshl_b32 s{S_KO}, s{S_SEG}, 18
        s_lshl_b32 s{S_T0}, s{S_C}, 13
        s_add_u32 s{S_KO}, s{S_KO}, s{S_T0}
        s_add_u32 s{S_MO}, s{S_KO}, {WS_KVM}
        s_and_b32 s{S_T0}, s{S_WAVE}, 1
        s_lshl_b32 s{S_T0}, s{S_T0}, 10
        s_add_u32 s{S_QO}, s{S_KO}, s{S_T0}
        s_add_u32 s{S_QO}, s{S_QO}, {WS_QX}
        s_lshr_b32 s{S_T0}, s{S_WAVE}, 1
        s_lshl_b32 s{S_T0}, s{S_T0}, 12
        s_add_u32 s{S_VO}, s{S_KO}, s{S_T0}
        s_add_u32 s{S_VO}, s{S_VO}, {WS_VT}
        s_add_u32 s{S_KO}, s{S_KO}, {WS_KX}
        s_add_u32 s{S_QO2}, s{S_QO}, 4096
        s_add_u32 s{S_KO2}, s{S_KO}, 4096
        """)
    Lq = [f"buffer_load_dwordx4 v[{V_Q+4*u}:{V_Q+4*u+3}], v{V_L16}, {SRD}, s{S_QO if u < 2 else S_QO2} offen offset:{(u & 1) * 2048}" for u in range(4)]
    Lq += [f"buffer_load_dwordx4 v[{V_K+4*i}:{V_K+4*i+3}], v{V_L16}, {SRD}, s{S_KO if i < 4 else S_KO2} offen offset:{(i & 3) * 1024}" for i in range(8)]
    Lq += [f"buffer_load_dwordx4 v[{V_V+4*i}:{V_V+4*i+3}], v{V_L16}, {SRD}, s{S_VO} offen offset:{i * 1024}" for i in range(4)]
    Lm = [f"buffer_load_dwordx4 v[{V_KM+4*u}:{V_KM+4*u+3}], v{V_OKM}, {SRD}, s{S_MO} offen offset:{64*u} sc1" for u in range(4)]
    Lm += [f"buffer_load_dwordx2 v[{V_VM+2*i}:{V_VM+2*i+1}], v{V_OVM}, {SRD}, s{S_MO} offen offset:{512*(i >> 1) + 2048*(i & 1)} sc1" for i in range(4)]

    a.label(f"{name}_gp")
    poll_guard(40)
    a(f"""
    buffer_load_dword v{V_T0}, v{V_FGP}, {SRD}, 0 offen sc1
    s_waitcnt vmcnt(0)
    v_cmp_ne_u32 vcc, 32, v{V_T0}
    s_cbranch_vccz {name}_gk
    s_sleep 8
    s_branch {name}_gp
    {name}_gk:
    s_mov_b32 s{S_RET}, 0
    """)
    addr()
    a.label(f"{name}_ldq")
    for l in Lq: a(l)
    a.label(f"{name}_att")
    a("s_waitcnt vmcnt(0)")
    for u in range(4):
        for kt in range(2):
            d = V_S + 4 * kt
            c = "0" if u == 0 else f"v[{d}:{d+3}]"
            k = V_K + 8 * u + 4 * kt
            a(f"v_mfma_f32_16x16x32_bf16 v[{d}:{d+3}], v[{k}:{k+3}], v[{V_Q+4*u}:{V_Q+4*u+3}], {c}")
    a(f"""
    s_lshl_b32 s{S_OR}, s{S_SLOT}, 18
    s_add_u32 s{S_OR}, s{S_OR}, {WS_O}
    s_lshl_b32 s{S_T0}, s{S_C}, 13
    s_add_u32 s{S_OW}, s{S_OR}, s{S_T0}
    s_lshl_b32 s{S_T0}, s{S_WAVE}, 16
    s_add_u32 s{S_OR}, s{S_OR}, s{S_T0}
    s_lshl_b32 s{S_OUT}, s{S_SEG}, 17
    v_mov_b32 v{V_P+6}, v{V_ONE}
    v_mov_b32 v{V_P+7}, 0
    """)
    for kt, th in ((0, V_TH0), (1, V_TH1)):
        for r in range(4):
            a(f"v_cmp_gt_i32 vcc, {r}, v{th}")
            a("s_nop 1")
            a(f"v_cndmask_b32 v{V_S+4*kt+r}, v{V_S+4*kt+r}, v{V_NEG}, vcc")
    a(f"s_cmp_eq_u32 s{S_RET}, 1\ns_cbranch_scc1 {name}_rd")
    a.label(f"{name}_rp")
    poll_guard(41)
    a(f"""
    buffer_load_dword v{V_T0}, v{V_FRP}, {SRD}, 0 offen sc1
    s_waitcnt vmcnt(0)
    v_cmp_ge_u32 vcc, s{S_SEG}, v{V_T0}
    s_cbranch_vccz {name}_rk
    s_sleep {opt.get('rps', 2)}
    s_branch {name}_rp
    {name}_rk:
    """)
    xst(S_SEG)
    for l in Lm: a(l)
    a.label(f"{name}_rd")
    d = V_S + 8
    for u in range(4):
        a(f"s_waitcnt vmcnt({7-u})")
        c = "0" if u == 0 else f"v[{d}:{d+3}]"
        a(f"v_mfma_f32_16x16x32_bf16 v[{d}:{d+3}], v[{V_KM+4*u}:{V_KM+4*u+3}], v[{V_Q+4*u}:{V_Q+4*u+3}], {c}")
    xst(S_SEG)
    MX, TM = V_T1, V_T0
    a(f"""
    v_max3_f32 v{MX}, v{V_S}, v{V_S+1}, v{V_S+2}
    v_max3_f32 v{MX}, v{MX}, v{V_S+3}, v{V_S+4}
    v_max3_f32 v{MX}, v{MX}, v{V_S+5}, v{V_S+6}
    s_waitcnt vmcnt(0)
    v_swap_b32 v{V_VM+1}, v{V_VM+2}
    v_swap_b32 v{V_VM+5}, v{V_VM+6}
    s_nop 1
    v_max3_f32 v{MX}, v{MX}, v{V_S+7}, v{V_S+8}
    v_max_f32 v{TM}, v{MX}, v{V_S+9}
    v_max_f32 v{MX}, v{MX}, v{V_S+9}
    s_nop 1
    v_permlane16_swap_b32 v{MX}, v{TM}
    v_max_f32 v{MX}, v{MX}, v{TM}
    v_max_f32 v{TM}, v{MX}, v{TM}
    s_nop 1
    v_permlane32_swap_b32 v{MX}, v{TM}
    v_max_f32 v{MX}, v{MX}, v{TM}
    v_mul_f32 v{MX}, s{S_CST}, v{MX}
    """)
    for i in range(10):
        a(f"v_fma_f32 v{V_S+i}, v{V_S+i}, s{S_CST}, -v{MX}")
    for i in range(10):
        a(f"v_exp_f32 v{V_S+i}, v{V_S+i}")
    a("s_nop 0")
    for i in range(5):
        a(f"v_cvt_pk_bf16_f32 v{V_P+i}, v{V_S+2*i}, v{V_S+2*i+1}")
    a(f"v_mov_b32 v{V_P+5}, v{V_P+4}")
    a("s_nop 1")
    a(f"v_mfma_f32_16x16x32_bf16 v[{V_SM}:{V_SM+3}], v[{V_ONE}:{V_ONE+3}], v[{V_P}:{V_P+3}], 0")
    for i in range(4):
        a(f"v_mfma_f32_16x16x32_bf16 v[{V_O+4*i}:{V_O+4*i+3}], v[{V_V+4*i}:{V_V+4*i+3}], v[{V_P}:{V_P+3}], 0")
    a("s_nop 1")
    a(f"v_mfma_f32_16x16x16_bf16 v[{V_SM}:{V_SM+3}], v[{V_P+6}:{V_P+7}], v[{V_P+4}:{V_P+5}], v[{V_SM}:{V_SM+3}]")
    for i in range(4):
        vb = V_VM + 2 * i
        a(f"v_mfma_f32_16x16x16_bf16 v[{V_O+4*i}:{V_O+4*i+3}], v[{vb}:{vb+1}], v[{V_P+4}:{V_P+5}], v[{V_O+4*i}:{V_O+4*i+3}]")
    a.nops(4)
    a(f"v_rcp_f32 v{V_SM}, v{V_SM}")
    a.nops(3)
    for i in range(8):
        a(f"v_pk_mul_f32 v[{V_O+2*i}:{V_O+2*i+1}], v[{V_O+2*i}:{V_O+2*i+1}], v[{V_SM}:{V_SM+1}] op_sel_hi:[1,0]")
    for i in range(8):
        a(f"v_cvt_pk_bf16_f32 v{V_S+i}, v{V_O+2*i}, v{V_O+2*i+1}")
    xst(S_SEG)
    a(f"""
    s_add_u32 s{S_NEED}, s{S_SEG}, 1
    v_mov_b32 v{V_T1}, s{S_NEED}
    s_cmp_eq_u32 s{S_FAST}, 1
    s_cbranch_scc1 {name}_of
    buffer_store_dwordx4 v[{V_S}:{V_S+3}], v{V_OOW}, {SRD}, s{S_OW} offen sc1
    buffer_store_dwordx4 v[{V_S+4}:{V_S+7}], v{V_OOW}, {SRD}, s{S_OW} offen offset:2048 sc1
    s_waitcnt vmcnt(0)
    s_barrier
    buffer_store_dword v{V_T1}, v{V_FMY}, {SRD}, 0 offen sc1
    s_branch {name}_od
    {name}_of:
    buffer_store_dwordx4 v[{V_S}:{V_S+3}], v{V_OOW}, {SRD}, s{S_OW} offen
    buffer_store_dwordx4 v[{V_S+4}:{V_S+7}], v{V_OOW}, {SRD}, s{S_OW} offen offset:2048
    s_waitcnt vmcnt(0)
    s_barrier
    buffer_store_dword v{V_T1}, v{V_FMY}, {SRD}, 0 offen
    {name}_od:
    s_mov_b32 s{S_CUR}, s{S_SEG}
    s_add_u32 s{S_T0}, s{S_SLOT}, 1
    s_and_b32 s{S_T0}, s{S_T0}, {opt.get('nslot', 4) - 1}
    s_andn2_b32 s{S_SLOT}, s{S_SLOT}, 3
    s_or_b32 s{S_SLOT}, s{S_SLOT}, s{S_T0}
    s_add_u32 s{S_T0}, s{S_SEG}, 2
    s_add_u32 s{S_T1}, s{S_G}, {NEARLY}
    s_cmp_lt_u32 s{S_T0}, {NEARLY}
    s_cselect_b32 s{S_T0}, s{S_T0}, s{S_T1}
    s_add_u32 s{S_T1}, s{S_SEG}, 6
    s_cmp_lt_u32 s{S_SEG}, {NEARLY}
    s_cselect_b32 s{S_SEG}, s{S_T0}, s{S_T1}
    s_lshr_b32 s{S_T0}, s{S_G}, 1
    s_add_u32 s{S_T0}, s{S_T0}, {SPAIR}
    s_cmp_ge_u32 s{S_SEG}, {SPAIR}
    s_cselect_b32 s{S_SEG}, s{S_T0}, s{S_SEG}
    s_add_u32 s{S_T0}, s{S_CUR}, 3
    s_cmp_ge_u32 s{S_CUR}, {SPAIR}
    s_cselect_b32 s{S_SEG}, s{S_T0}, s{S_SEG}
    """)
    addr()
    xst(S_CUR)
    a.label(f"{name}_xp")
    poll_guard(42)
    a(f"""
    buffer_load_dword v{V_T0}, v{V_FXF}, {SRD}, 0 offen sc1
    s_waitcnt vmcnt(0)
    v_cmp_ge_u32 vcc, s{S_CUR}, v{V_T0}
    s_cbranch_vccnz {name}_xp
    """)
    def fload(i):
        d = V_F + 4 * (i % NFR)
        if i % 4 == 0:
            a(f"s_add_u32 s{S_T0}, s{S_ROT}, {i * 1024}")
            a(f"s_and_b32 s{S_T0}, s{S_T0}, 0xffff")
            a(f"s_add_u32 s{S_T0}, s{S_T0}, s{S_OR}")
        a(f"buffer_load_dwordx4 v[{d}:{d+3}], v{V_L16}, {SRD}, s{S_T0} offen offset:{(i & 3) * 1024} sc1")
    a(f"s_cmp_ge_u32 s{S_CUR}, {SPAIR}\ns_cbranch_scc1 {name}_half")
    PFD = opt.get('pfd', 12)
    q = []
    for i in range(PFD): fload(i); q.append(i)
    a(f"buffer_load_dword v{V_T2}, v{V_FRP}, {SRD}, 0 offen sc1"); q.append("rp")
    def mf(i, q):
        a(f"s_waitcnt vmcnt({len(q) - 1 - q.index(i)})")
        d = V_F + 4 * (i % NFR)
        c = "0" if i == 0 else f"v[{V_ACC}:{V_ACC+15}]"
        a(f"v_mfma_f32_32x32x16_bf16 v[{V_ACC}:{V_ACC+15}], a[{4*i}:{4*i+3}], v[{d}:{d+3}], {c}")
    for i in range(64 - PFD):
        mf(i, q)
        fload(i + PFD); q.append(i + PFD)
        if i == PFD:
            a(f"v_cmp_ge_u32 vcc, s{S_SEG}, v{V_T2}")
        if i == PFD + 1:
            a(f"s_cmp_eq_u64 vcc, 0\ns_cselect_b32 s{S_RET}, 1, 0")
    a(f"s_cmp_eq_u32 s{S_RET}, 1\ns_cbranch_scc1 {name}_pfx")
    for i in range(64 - PFD, 64): mf(i, q)
    a(f"s_branch {name}_pfd")
    a.label(f"{name}_pfx")
    extra = Lq + Lm
    for i in range(64 - PFD, 64):
        mf(i, q)
        for _ in range(-(-24 // PFD)):
            if extra: a(extra.pop(0)); q.append("x")
    assert not extra
    a.label(f"{name}_pfd")
    a.nops(12)
    for qq in range(4):
        a(f"ds_write_b128 v{V_LW}, v[{V_ACC+4*qq}:{V_ACC+4*qq+3}] offset:{1024*qq}")
    a("s_waitcnt lgkmcnt(0)\ns_barrier")
    for w in range(4):
        a(f"ds_read_b128 v[{V_ACC+4*w}:{V_ACC+4*w+3}], v{V_LR} offset:{4096*w}")
    a("s_waitcnt lgkmcnt(0)")
    fin = (f"""
    v_pk_add_f32 v[{V_ACC}:{V_ACC+1}], v[{V_ACC}:{V_ACC+1}], v[{V_ACC+4}:{V_ACC+5}]
    v_pk_add_f32 v[{V_ACC+2}:{V_ACC+3}], v[{V_ACC+2}:{V_ACC+3}], v[{V_ACC+6}:{V_ACC+7}]
    v_pk_add_f32 v[{V_ACC+8}:{V_ACC+9}], v[{V_ACC+8}:{V_ACC+9}], v[{V_ACC+12}:{V_ACC+13}]
    v_pk_add_f32 v[{V_ACC+10}:{V_ACC+11}], v[{V_ACC+10}:{V_ACC+11}], v[{V_ACC+14}:{V_ACC+15}]
    v_pk_add_f32 v[{V_ACC}:{V_ACC+1}], v[{V_ACC}:{V_ACC+1}], v[{V_ACC+8}:{V_ACC+9}]
    v_pk_add_f32 v[{V_ACC+2}:{V_ACC+3}], v[{V_ACC+2}:{V_ACC+3}], v[{V_ACC+10}:{V_ACC+11}]
    v_cvt_pk_bf16_f32 v{V_SM}, v{V_ACC}, v{V_ACC+1}
    v_cvt_pk_bf16_f32 v{V_SM+1}, v{V_ACC+2}, v{V_ACC+3}
    buffer_store_dwordx2 v[{V_SM}:{V_SM+1}], v{V_OUT}, s[{S_O}:{S_O+3}], s{S_OUT} offen {opt.get('ost', '')}
    """)
    a(fin)
    a(f"s_branch {name}_nxt")
    a.label(f"{name}_half")
    ACB = V_KM
    xst(S_CUR)
    def hload(i):
        d = V_F + 4 * (i % NFR)
        if i % 2 == 0:
            a(f"s_add_u32 s{S_T0}, s{S_ROT}, {i * 2048}")
            a(f"s_and_b32 s{S_T0}, s{S_T0}, 0xffff")
            a(f"s_add_u32 s{S_T0}, s{S_T0}, s{S_OR}")
        a(f"buffer_load_dwordx4 v[{d}:{d+3}], v{V_HL}, {SRD}, s{S_T0} offen offset:{(i & 1) * 2048} sc1")
    for i in range(PFD): hload(i)
    a(f"s_mov_b32 s{S_RET}, 0")
    for i in range(32):
        a(f"s_waitcnt vmcnt({min(31, i + PFD - 1) - i})")
        d = V_F + 4 * (i % NFR)
        for b, acc in enumerate((V_ACC, ACB)):
            c = "0" if i == 0 else f"v[{acc}:{acc+15}]"
            a(f"v_mfma_f32_32x32x16_bf16 v[{acc}:{acc+15}], a[{8*i+4*b}:{8*i+4*b+3}], v[{d}:{d+3}], {c}")
        if i + PFD < 32: hload(i + PFD)
    xst(S_CUR)
    a(f"s_mov_b32 vcc_lo, 0xffff0000\ns_mov_b32 vcc_hi, 0xffff0000")
    a.nops(10)
    for i in range(16):
        a(f"v_cndmask_b32 v{V_ACC+i}, v{V_ACC+i}, v{ACB+i}, vcc")
    for qq in range(4):
        a(f"ds_write_b128 v{V_LW}, v[{V_ACC+4*qq}:{V_ACC+4*qq+3}] offset:{1024*qq}")
    a(f"""
    s_waitcnt lgkmcnt(0)
    s_barrier
    s_cmp_ge_u32 s{S_WAVE}, 2
    s_cbranch_scc1 {name}_nxt
    """)
    for w in range(4):
        a(f"ds_read_b128 v[{V_ACC+4*w}:{V_ACC+4*w+3}], v{V_LR} offset:{4096*w}")
        a(f"ds_read_b128 v[{ACB+4*w}:{ACB+4*w+3}], v{V_LR} offset:{4096*w + 256}")
    a(f"""
    s_and_b32 s{S_T0}, s{S_G}, 1
    s_lshl_b32 s{S_T0}, s{S_T0}, 16
    s_add_u32 s{S_OUT}, s{S_OUT}, s{S_T0}
    s_waitcnt lgkmcnt(0)
    """)
    for i in range(0, 16, 2):
        a(f"v_pk_add_f32 v[{V_ACC+i}:{V_ACC+i+1}], v[{V_ACC+i}:{V_ACC+i+1}], v[{ACB+i}:{ACB+i+1}]")
    a(fin)
    a.label(f"{name}_nxt")
    if stamp: stamp()
    a(f"""
    s_cmp_eq_u32 s{S_RET}, 1
    s_cbranch_scc1 {name}_att
    s_cmp_lt_u32 s{S_SEG}, 64
    s_cbranch_scc1 {name}_ldq
    """)
```

```python
import sys, json
from common import *
from gen_rec import DBG_VOTE, global_init, rec_body, S_J, S_H, LDS_REC, WS_FL, WS_XB, WS_PROF
from gen_qkv import qkv_role
from gen_xo import xo_role, WoLoader
from gen_fft import gen_f0, gen_f1, gen_f2, gen_f3

DBG_F1, DBG_F2 = 72, 136
RECOPT = dict(preC="ack", preA="ack", xp=(18, 19), xd=(32,), vs=18, yp=32, vbar=1, fsp=4, are=1)


def xlut(order):
    lut = 0
    for logical, c in enumerate(order):
        lut |= logical << (4 * int(c))
    return hex(lut)


def gen_mega(name, force_slow=False, wd=False, bprof=False, ropt={}, rprof=False, opt={}):
    a = Asm(); a.kernel_begin(name)
    S_W, S_D = 84, 88
    S_B, S_X, S_TK, S_GT, S_VOTE, S_TS, S_WDC = 92, 93, 94, 95, 100, 101, 83
    S_FAST, S_VER, S_WV = 96, 97, 98
    ro = dict(RECOPT); ro.update(ropt)

    def ts(srd=S_W):
        if not bprof: return
        l = a.newlabel(name + "_ts")
        a(f"""
        {'s_memtime' if opt.get('cyc') else 's_memrealtime'} vcc
        s_waitcnt lgkmcnt(0)
        s_mov_b64 exec, 1
        v_accvgpr_read_b32 v255, a255
        v_mov_b32 v135, vcc_lo
        s_nop 0
        buffer_store_dword v135, off, s[{srd}:{srd+3}], s{S_TS}
        s_mov_b64 exec, -1
        s_add_u32 s{S_TS}, s{S_TS}, 4
        """.replace("v_accvgpr_read_b32 v255, a255\n", ""))

    def dmax(idx, srd=S_D, v=135):
        if not opt.get("dbgt"): return
        a(f"""
        s_memrealtime vcc
        s_waitcnt lgkmcnt(0)
        s_mov_b64 exec, 1
        v_mov_b32 v{v}, vcc_lo
        s_nop 0
        buffer_atomic_umax v{v}, off, s[{srd}:{srd+3}], 0 offset:{4*idx} sc1
        s_mov_b64 exec, -1
        """)

    def wdog(code):
        if not wd: return
        a(f"""
        s_add_u32 s{S_WDC}, s{S_WDC}, 1
        s_cmp_gt_u32 s{S_WDC}, 300000
        s_movk_i32 s82, {code}
        s_cbranch_scc1 {name}_wdx
        """)

    a(f"""
    s_cmp_ge_u32 s2, 256
    s_cbranch_scc1 {name}_exit
    s_load_dwordx2 s[{S_W}:{S_W+1}], s[0:1], {KA_WS}
    s_load_dwordx2 s[{S_D}:{S_D+1}], s[0:1], {KA_DBG}
    s_getreg_b32 s{S_X}, hwreg(HW_REG_XCC_ID)
    s_and_b32 s{S_X}, s{S_X}, 7
    s_lshl_b32 s{S_X}, s{S_X}, 2
    s_lshr_b32 s{S_X}, {xlut(opt.get('xmap', '01234567'))}, s{S_X}
    s_and_b32 s{S_X}, s{S_X}, 7
    v_lshrrev_b32 v1, 6, v0
    v_mov_b32 v4, 0
    v_readfirstlane_b32 s80, v1
    v_mov_b32 v5, 0
    v_mov_b32 v6, 0
    v_mov_b32 v7, 0
    s_mov_b32 s{S_WDC}, 0
    s_lshl_b32 s{S_TS}, s2, 2
    s_add_u32 s{S_TS}, s{S_TS}, s80
    s_lshl_b32 s{S_TS}, s{S_TS}, 8
    s_add_u32 s{S_TS}, s{S_TS}, {220*MB}
    s_waitcnt lgkmcnt(0)
    s_mov_b32 s{S_W+2}, {WS_BYTES}
    s_mov_b32 s{S_W+3}, 0x00020000
    s_mov_b32 s{S_D+2}, 256
    s_mov_b32 s{S_D+3}, 0x00020000
    """)
    ts()
    if opt.get("cpf"):
        a(f"""
        s_getpc_b64 s[78:79]
        v_lshlrev_b32 v9, 7, v0
        """)
        for i in range(opt["cpf"]):
            a(f"global_load_dword v{10+i}, v9, s[78:79]")
            a("v_add_u32 v9, 0x8000, v9")
    PX = opt.get("px", 2)
    a(f"""
    s_mov_b32 s{S_WV}, s80
    s_cmp_lg_u32 s80, 0
    s_cbranch_scc1 {name}_st0
    v_mov_b32 v10, 1
    s_lshl_b32 s81, s{S_X}, 5
    s_mov_b64 exec, 1
    buffer_atomic_add v10, off, s[{S_D}:{S_D+3}], s81 offset:4 sc0
    s_lshl_b32 s81, s2, 7
    s_add_u32 s81, s81, {WS_FL}
    s_mov_b64 exec, 3
    v_lshlrev_b32 v1, 15, v0
    buffer_store_dword v4, v1, s[{S_W}:{S_W+3}], s81 offen sc1
    s_mov_b64 exec, -1
    {name}_st0:
    """)
    global_init(a, name, S_W)
    a(f"""
    s_cmp_lg_u32 s80, 0
    s_cbranch_scc1 {name}_st1
    s_mov_b64 exec, 1
    s_waitcnt vmcnt(4)
    ds_write_b32 v4, v10
    s_mov_b64 exec, -1
    s_waitcnt lgkmcnt(0)
    {name}_st1:
    s_barrier
    ds_read_b32 v2, v4
    s_waitcnt lgkmcnt(0)
    v_readfirstlane_b32 s{S_TK}, v2
    s_waitcnt vmcnt(0)
    s_barrier
    s_cmp_lg_u32 s80, 0
    s_cbranch_scc1 {name}_st2
    s_lshl_b32 s81, s{S_X}, 5
    v_mov_b32 v10, 1
    s_mov_b64 exec, 1
    buffer_atomic_add v10, off, s[{S_D}:{S_D+3}], s81 sc1
    s_mov_b64 exec, -1
    """)
    dmax(3)
    a(f"""
    {name}_st2:
    s_sub_u32 s81, s{S_X}, {PX}
    s_cmp_ge_u32 s81, 2
    s_cbranch_scc1 {name}_nopr
    s_cmp_lg_u32 s80, 0
    s_cbranch_scc1 {name}_prd
    v_lshlrev_b32 v1, 4, v0
    s_and_b32 s81, s2, 127
    s_lshl_b32 s81, s81, 14
    s_add_u32 s81, s81, {WS_XB}
    s_add_u32 s77, s81, 8192
    buffer_store_dwordx4 v[4:7], v1, s[{S_W}:{S_W+3}], s81 offen sc1
    buffer_store_dwordx4 v[4:7], v1, s[{S_W}:{S_W+3}], s77 offen sc1
    s_waitcnt vmcnt(0)
    s_memtime s[70:71]
    buffer_store_dwordx4 v[4:7], v1, s[{S_W}:{S_W+3}], s81 offen sc1
    s_waitcnt vmcnt(0)
    s_memtime s[72:73]
    buffer_store_dwordx4 v[4:7], v1, s[{S_W}:{S_W+3}], s77 offen sc1
    s_waitcnt vmcnt(0)
    buffer_store_dwordx4 v[4:7], v1, s[{S_W}:{S_W+3}], s77 offen sc1
    s_waitcnt vmcnt(0)
    s_memtime s[74:75]
    buffer_store_dwordx4 v[4:7], v1, s[{S_W}:{S_W+3}], s81 offen sc1
    s_waitcnt vmcnt(0)
    s_memtime s[76:77]
    s_waitcnt lgkmcnt(0)
    s_sub_u32 s76, s76, s74
    s_sub_u32 s74, s74, s72
    s_sub_u32 s72, s72, s70
    s_add_u32 s72, s72, s76
    s_cmp_lt_u32 s74, s72
    s_cselect_b32 s81, 0x10001, 1
    v_mov_b32 v8, s81
    s_mov_b64 exec, 1
    buffer_atomic_add v8, off, s[{S_D}:{S_D+3}], 0 offset:{DBG_VOTE} sc1
    s_mov_b64 exec, -1
    {name}_prd:
    s_barrier
    """)
    for _ in range(opt.get("qdelay", 0)): a("s_sleep 127")
    a(f"""
    {name}_nopr:
    s_mov_b32 s{S_VER}, 0
    s_mov_b32 s{S_VOTE}, 64
    {name}_fast:
    s_mov_b32 s{S_FAST}, 1
    s_mov_b32 s{S_J}, s{S_X}
    s_and_b32 s{S_H}, s{S_TK}, 31
    s_cmp_lt_u32 s{S_X}, 2
    s_cbranch_scc1 {name}_recf
    s_sub_u32 s{S_B}, s{S_X}, 2
    s_lshl_b32 s{S_B}, s{S_B}, 5
    s_add_u32 s{S_B}, s{S_B}, s{S_H}
    s_branch {name}_bulk
    {name}_redo:
    s_waitcnt vmcnt(0) lgkmcnt(0)
    s_barrier
    v_readlane_b32 s{S_VOTE}, v252, {PX}
    v_readlane_b32 s81, v252, {PX + 1}
    s_mov_b32 s{S_VER}, 1
    s_nop 2
    s_add_u32 s{S_VOTE}, s{S_VOTE}, s81
    """)
    a(f"s_mov_b32 s{S_GT}, s{S_TK}")
    for i in range(7):
        a(f"""
        v_readlane_b32 s81, v252, {i}
        s_cmp_gt_u32 s{S_X}, {i}
        s_nop 2
        s_cselect_b32 s81, s81, 0
        s_add_u32 s{S_GT}, s{S_GT}, s81
        """)
    a(f"""
    {name}_slow:
    s_mov_b32 s{S_FAST}, 0
    s_lshr_b32 s{S_J}, s{S_GT}, 5
    s_and_b32 s{S_H}, s{S_GT}, 31
    s_cmp_lt_u32 s{S_GT}, 64
    s_cbranch_scc1 {name}_recs
    s_sub_u32 s{S_B}, s{S_GT}, 64
    s_branch {name}_bulk
    {name}_exit:
    s_endpgm
    """)

    def hook0(n):
        pass
    def hook1():
        a(f"""
        v_and_b32 v254, 7, v0
        v_lshlrev_b32 v254, 5, v254
        buffer_load_dword v252, v254, s[{S_D}:{S_D+3}], 0 offen sc1
        """)
    def hook2():
        l = a.newlabel(name + "_h2")
        a(f"""
        s_cmp_lg_u32 s{S_VER}, 0
        s_cbranch_scc1 {l}_ok
        {l}_ev:
        v_cmp_ne_u32 vcc, 32, v252
        """)
        if not force_slow: a(f"s_cbranch_vccz {l}_ok")
        a("s_mov_b32 s78, 0")
        for i in range(8):
            a(f"v_readlane_b32 s81, v252, {i}\ns_nop 3\ns_add_u32 s78, s78, s81")
        a(f"""
        s_cmp_eq_u32 s78, 256
        s_cbranch_scc1 {name}_redo
        """)
        wdog(2)
        a(f"""
        buffer_load_dword v252, v254, s[{S_D}:{S_D+3}], 0 offen sc1
        s_waitcnt vmcnt(0)
        s_branch {l}_ev
        {l}_ok:
        """)
    hooks = (hook0, hook1, hook2)
    if wd:
        a(f"""
        {name}_wdx:
        s_mov_b64 exec, 1
        v_mov_b32 v1, s82
        s_lshl_b32 s81, s2, 2
        s_add_u32 s81, s81, {WS_PROF + MB + 1024}
        buffer_store_dword v1, off, s[{S_W}:{S_W+3}], s81
        s_endpgm
        """)
    a.label(f"{name}_recf")
    rn = [0]
    def rts():
        if opt.get("dbgt"):
            l = a.newlabel(name + "_rt")
            a(f"s_cmp_lg_u32 s20, 0\ns_cbranch_scc1 {l}")
            dmax(4 + rn[0], 12, 3); rn[0] += 1
            a.label(l)
        if not bprof: return
        a(f"""
        s_memrealtime vcc
        s_waitcnt lgkmcnt(0)
        s_mov_b64 exec, 1
        v_mov_b32 v3, vcc_lo
        s_nop 0
        buffer_store_dword v3, off, s[4:7], s{S_TS}
        s_mov_b64 exec, -1
        s_add_u32 s{S_TS}, s{S_TS}, 4
        """)
    ts()
    rec_body(a, name + "_rf", "", wd=wd, full=True, S_VOTE=S_VOTE, opt=ro, prof=rprof, tstamp=rts, hooks=hooks)
    a.label(f"{name}_recs")
    if opt.get("noslow"): a("s_endpgm")
    else: rec_body(a, name + "_rs", "sc1", wd=wd, full=True, S_VOTE=S_VOTE, opt=RECOPT)

    def signal(off):
        a(f"""
        s_waitcnt vmcnt(0)
        s_barrier
        v_mov_b32 v2, 1
        v_cmp_eq_u32 vcc, 0, v0
        s_and_saveexec_b64 s[80:81], vcc
        s_cbranch_execz {name}_sg{off}_{a.uid}
        buffer_atomic_add v2, off, s[{S_D}:{S_D+3}], 0 offset:{off} sc1
        {name}_sg{off}_{a.uid}:
        s_mov_b64 exec, s[80:81]
        """)
        a.uid += 1

    def wait(off, n, tag):
        a.label(f"{name}_w{tag}")
        wdog(50)
        a(f"""
        s_sleep 8
        buffer_load_dword v2, off, s[{S_D}:{S_D+3}], 0 offset:{off} sc1
        s_waitcnt vmcnt(0)
        v_cmp_ne_u32 vcc, {n}, v2
        s_cbranch_vccnz {name}_w{tag}
        """)
    FIRST = opt.get("f1first", 0)
    def verify():
        hook1()
        a("s_waitcnt vmcnt(0)")
        hook2()
        a(f"s_mov_b32 s{S_VER}, 1")
    def f01():
        a(f"""
        s_cmp_lt_u32 s{S_B}, 128
        s_cbranch_scc1 {name}_f1
        s_sub_u32 s99, s{S_B}, 128
        {name}_f0l:
        s_barrier
        """)
        gen_f0(a, name + "_f0", role=99, noend=True, pre_store=verify if FIRST else None)
        a(f"""
        s_add_u32 s99, s99, 64
        s_cmp_lt_u32 s99, 288
        s_cbranch_scc1 {name}_f0l
        s_branch {name}_f1d
        {name}_f1:
        """)
        gen_f1(a, name + "_f1r", role=S_B, pre_store=verify if FIRST else None)
        a.label(f"{name}_f1d")
        signal(DBG_F1)
        ts()
    a.label(f"{name}_bulk")
    ts()
    if FIRST:
        hook0(0)
        f01()
    qkv_role(a, name + "_q", S_B, S_W, S_D, stamp=ts, opt=opt, hooks=None if FIRST else hooks)
    ts()
    if opt.get("dbgt"):
        a(f"s_cmp_lg_u32 s{S_WV}, 0\ns_cbranch_scc1 {name}_fq")
        dmax(7)
        a.label(f"{name}_fq")
    WL = WoLoader(a, name, S_B, S_WV, opt)
    WL.setup()
    WL.step(0)
    if not FIRST: f01()
    WL.step(1)
    a(f"s_cmp_ge_u32 s{S_B}, 128\ns_cbranch_scc1 {name}_xo")
    wait(DBG_F1, 192, "f1")
    a(f"s_mov_b32 s99, s{S_B}")
    gen_f2(a, name + "_f2", role=99, mid=lambda: WL.step(2))
    a(f"s_cmp_eq_u32 s99, 128\ns_cbranch_scc1 {name}_f2ret")
    signal(DBG_F2)
    WL.step(3)
    ts()
    wait(DBG_F2, 129, "f2")
    gen_f3(a, name + "_f3", role=S_B, ost=opt.get("ost", ""))
    a(f"s_branch {name}_xo4")
    a.label(f"{name}_xo")
    a(f"""
    s_cmp_lg_u32 s{S_B}, 128
    s_cbranch_scc1 {name}_xo2
    s_cmp_lg_u32 s{S_WV}, 0
    s_cbranch_scc1 {name}_xo2
    """)
    wait(DBG_F1, 192, "f1b")
    a(f"""
    s_mov_b32 s99, 128
    s_branch {name}_f2_in
    {name}_f2ret:
    s_waitcnt vmcnt(0)
    v_mov_b32 v2, 1
    s_mov_b64 exec, 1
    buffer_atomic_add v2, off, s[{S_D}:{S_D+3}], 0 offset:{DBG_F2} sc1
    s_mov_b64 exec, -1
    s_branch {name}_xo3
    {name}_xo2:
    """)
    WL.step(2)
    a.label(f"{name}_xo3")
    WL.step(3)
    a.label(f"{name}_xo4")
    ts()
    WL.step(4)
    xo_role(a, name + "_x", S_B, S_W, S_FAST, wd=wdog if wd else None, opt=opt, stamp=ts)
    if opt.get("dbgt"):
        a(f"s_cmp_lg_u32 s{S_WV}, 0\ns_cbranch_scc1 {name}_fin")
        dmax(6)
        a.label(f"{name}_fin")
    a("s_endpgm")
    return (name, a.text(), kd(name, 512, sgpr=102, accum=256), 256, 256, LDS_REC)


if __name__ == "__main__":
    out = sys.argv[1]
    kw = eval(sys.argv[2]) if len(sys.argv) > 2 else {}
    write_file(out, [gen_mega("mega_kernel", **kw)])
```

```python
from common import *
from gen_rec import WS_QX, WS_FL


def load_weights_tr(a, name, S_W, S_WAVE, S_T0, S_M0, so_base, row_bytes, krows_per_wave, permkind, S_BASE):
    pass


def qkv_role(a: Asm, name, S_B, S_WS, S_DBG, stamp=None, opt={}, hooks=None):
    S_A, S_W = 8, 12
    S_WAVE, S_MAT, S_H, S_P, S_T0, S_T1 = 16, 17, 18, 19, 20, 21
    S_M0, S_SA, S_SO, S_IT, S_FL, S_XW = 22, 23, 24, 25, 26, 27
    V_L, V_T0, V_T1, V_T2 = 1, 2, 3, 4
    V_DA = 6
    V_ST, V_FO, V_FV, V_DW, V_RW = 8, 9, 10, 11, 12
    V_RA = 16
    V_F = 32
    V_ACC = 64
    V_E = 96
    NF = 8
    a(f"""
    s_load_dwordx2 s[{S_A}:{S_A+1}], s[0:1], {KA_AX}
    s_load_dwordx2 s[40:41], s[0:1], {KA_WQ}
    s_load_dwordx2 s[42:43], s[0:1], {KA_WK}
    s_load_dwordx2 s[44:45], s[0:1], {KA_WV}
    v_lshrrev_b32 v{V_T0}, 6, v0
    v_and_b32 v{V_L}, 63, v0
    v_readfirstlane_b32 s{S_WAVE}, v{V_T0}
    s_lshr_b32 s{S_MAT}, s{S_B}, 6
    s_bfe_u32 s{S_H}, s{S_B}, 0x50001
    s_and_b32 s{S_P}, s{S_B}, 1
    s_waitcnt lgkmcnt(0)
    s_mov_b32 s{S_A+2}, {4*MB}
    s_mov_b32 s{S_A+3}, 0x00020000
    s_cmp_eq_u32 s{S_MAT}, 1
    s_cselect_b32 s{S_W}, s42, s40
    s_cselect_b32 s{S_W+1}, s43, s41
    s_cmp_eq_u32 s{S_MAT}, 2
    s_cselect_b32 s{S_W}, s44, s{S_W}
    s_cselect_b32 s{S_W+1}, s45, s{S_W+1}
    s_mov_b32 s{S_W+2}, {8*MB}
    s_mov_b32 s{S_W+3}, 0x00020000
    v_lshrrev_b32 v{V_T0}, 4, v{V_L}
    v_and_b32 v{V_T1}, 15, v{V_L}
    v_lshlrev_b32 v{V_T2}, 2, v{V_T0}
    v_xor_b32 v{V_T2}, v{V_T2}, v{V_T1}
    v_lshlrev_b32 v{V_T2}, 4, v{V_T2}
    s_lshl_b32 s{S_T0}, s{S_WAVE}, 5
    v_add_u32 v{V_DW}, s{S_T0}, v{V_T0}
    v_lshl_add_u32 v{V_DW}, v{V_DW}, 13, v{V_T2}
    s_lshl_b32 s{S_T0}, s{S_H}, 8
    v_add_u32 v{V_DW}, s{S_T0}, v{V_DW}
    s_lshl_b32 s{S_M0}, s{S_WAVE}, 13
    s_lshl_b32 s{S_XW}, s{S_P}, {22 if opt.get('krot', 0) else 23}
    s_and_b32 s{S_XW}, s{S_XW}, {4*MB}
    """)
    if opt.get("owarm", 0):
        a(f"""
        s_load_dwordx2 s[48:49], s[0:1], {KA_WO}
        v_lshlrev_b32 v13, 7, v0
        s_mul_i32 s{S_T0}, s{S_B}, {43 * 1024}
        s_mov_b32 s50, {8*MB}
        s_mov_b32 s51, 0x00020000
        s_waitcnt lgkmcnt(0)
        buffer_load_dword v240, v13, s[48:51], s{S_T0} offen
        s_add_u32 s{S_T0}, s{S_T0}, {11 * 1024}
        buffer_load_dword v241, v13, s[48:51], s{S_T0} offen
        """)

    def wdma(u):
        for i in range(8):
            a(f"s_add_u32 m0, s{S_M0}, {(u & 3) * 32768 + i * 1024}")
            a(f"s_xor_b32 s{S_T0}, s{S_XW}, {(128 * u + 4 * i) * 8192}")
            a(f"buffer_load_dwordx4 v{V_DW}, s[{S_W}:{S_W+3}], s{S_T0} offen lds")
    for u in range(4):
        wdma(u)
        if u == 0 and hooks: hooks[0](8)
        if u == 0 and opt.get("qd"):
            a(f"s_cmp_lg_u32 s{S_MAT}, 0\ns_cbranch_scc1 {name}_nq")
            for _ in range(opt["qd"]): a("s_sleep 127")
            a.label(f"{name}_nq")
    a(f"""
    v_and_b32 v{V_T1}, 3, v{V_L}              ; cc
    v_bfe_u32 v{V_T2}, v{V_L}, 4, 1           ; gam&1
    v_lshl_add_u32 v13, v{V_T1}, 1, v{V_T2}    ; v form
    v_and_b32 v14, 1, v{V_T1}
    v_lshlrev_b32 v14, 1, v14
    v_lshrrev_b32 v15, 1, v{V_T1}
    v_add_u32 v14, v14, v15
    v_lshl_add_u32 v14, v{V_T2}, 2, v14        ; q/k form
    s_cmp_eq_u32 s{S_MAT}, 2
    s_cselect_b64 vcc, -1, 0
    v_cndmask_b32 v13, v14, v13, vcc
    v_bfe_u32 v14, v{V_L}, 2, 2                ; r
    v_xor_b32 v15, s{S_WAVE}, v14
    v_lshlrev_b32 v15, 6, v15
    v_lshl_add_u32 v15, v13, 3, v15
    v_lshrrev_b32 v13, 5, v{V_L}
    v_lshl_add_u32 v13, v13, 3, v14            ; row
    v_lshl_add_u32 v{V_RW}, v13, 8, v15
    v_and_b32 v{V_T1}, 15, v{V_L}
    s_lshl_b32 s{S_T0}, s{S_WAVE}, 3
    """)
    for b in range(2):
        a(f"""
        v_add_u32 v13, s{S_T0}, v{V_T0}
        v_add_u32 v13, {4*b}, v13
        v_and_b32 v14, 15, v13
        v_xor_b32 v14, v14, v{V_T1}
        v_lshlrev_b32 v14, 4, v14
        v_lshl_add_u32 v{V_DA+b}, v13, 11, v14
        """)
    a(f"""
    v_and_b32 v13, 31, v{V_L}
    v_lshrrev_b32 v14, 5, v{V_L}
    v_xor_b32 v14, v14, v{V_T1}
    v_lshlrev_b32 v14, 4, v14
    v_lshl_add_u32 v13, v13, 8, v14
    """)
    for kk in range(8):
        a(f"v_xor_b32 v{V_RA+kk}, {32*kk}, v13")
        a(f"v_add_u32 v{V_RA+8+kk}, 0x10000, v{V_RA+kk}")
    a(f"""
    v_bfe_u32 v13, v{V_L}, 4, 1
    v_lshlrev_b32 v{V_ST}, 10, v13
    v_lshrrev_b32 v13, 5, v{V_L}
    v_lshl_add_u32 v{V_ST}, v13, 8, v{V_ST}
    v_lshl_add_u32 v{V_ST}, v{V_T1}, 4, v{V_ST}
    v_bfrev_b32 v13, 1
    s_lshl_b32 s{S_T0}, s{S_B}, 7
    s_add_u32 s{S_T0}, s{S_T0}, {WS_FL}
    v_mov_b32 v14, s{S_T0}
    v_cmp_eq_u32 vcc, 0, v0
    s_lshl_b32 s{S_SO}, s{S_MAT}, 24
    s_lshl_b32 s{S_T0}, s{S_P}, 18
    v_cndmask_b32 v{V_FO}, v13, v14, vcc
    s_add_u32 s{S_SO}, s{S_SO}, s{S_T0}
    s_lshl_b32 s{S_T0}, s{S_H}, 13
    s_add_u32 s{S_SO}, s{S_SO}, s{S_T0}
    s_lshl_b32 s{S_T0}, s{S_WAVE}, 11
    s_add_u32 s{S_SO}, s{S_SO}, s{S_T0}
    s_add_u32 s{S_SO}, s{S_SO}, {WS_QX}
    s_lshl_b32 s{S_SA}, s{S_P}, 16
    s_lshr_b32 s{S_T0}, s{S_XW}, 12
    s_add_u32 s{S_SA}, s{S_SA}, s{S_T0}
    v_mov_b32 v{V_FV}, 0
    """)

    PFI = opt.get("pfi", 0)
    if PFI:
        a(f"""
        s_load_dwordx2 s[40:41], s[0:1], {KA_BX}
        s_load_dwordx2 s[42:43], s[0:1], {KA_WR}
        s_load_dwordx2 s[44:45], s[0:1], {KA_WI}
        v_lshlrev_b32 v242, 7, v0
        s_waitcnt lgkmcnt(0)
        s_cmp_ge_u32 s{S_B}, 96
        s_cselect_b32 s48, s42, s40
        s_cselect_b32 s49, s43, s41
        s_cselect_b32 s46, 96, 0
        s_mov_b32 s50, {4*MB}
        s_cselect_b32 s50, {2048*513*2}, s50
        s_cmp_ge_u32 s{S_B}, 144
        s_cselect_b32 s48, s44, s48
        s_cselect_b32 s49, s45, s49
        s_cselect_b32 s46, 144, s46
        s_mov_b32 s51, 0x00020000
        s_sub_u32 s46, s{S_B}, s46
        s_mul_i32 s46, s46, 45056
        s_mul_i32 s47, s{S_B}, 11
        s_lshr_b32 s47, s47, 1
        s_and_b32 s47, s47, 7
        s_add_u32 s47, s47, 4
        """)

    def xdma(slot, uu, i):
        return [f"s_add_u32 m0, s{S_T1}, {slot * 32768 + (i >> 1) * 8192 + (i & 1) * 1024}",
                f"s_xor_b32 s{S_T0}, s{S_SA}, {(4 * uu + (i >> 1)) * 256}",
                f"buffer_load_dwordx4 v{V_DA + (i & 1)}, s[{S_A}:{S_A+3}], s{S_T0} offen lds"]
    a(f"s_lshl_b32 s{S_T1}, s{S_WAVE}, 11")
    for u in range(8):
        a(f"s_waitcnt vmcnt(24)" if u < 7 else "s_waitcnt vmcnt(24)")
        a("s_barrier")
        if hooks and u == 3: hooks[1]()
        if hooks and u == 7: hooks[2]()
        a(f"v_add_u32 v13, {(u & 3) * 32768}, v{V_RW}")
        for ks in range(8):
            for j in range(2):
                d = (8 * u + ks) * 4 + 2 * j
                a(f"ds_read_b64_tr_b16 a[{d}:{d+1}], v13 offset:{(16 * ks + 4 * j) * 256}")
            if ks == 3: a("s_waitcnt lgkmcnt(0)")
        a("s_waitcnt lgkmcnt(0)")
        a("s_barrier")
        if u < 4:
            wdma(u + 4)
        elif u < 7:
            g = u - 4
            if g == 2: a(f"s_add_u32 s{S_SA}, s{S_SA}, {2*65536}")
            for i in range(8):
                for l in xdma(g, g & 1, i): a(l)
    if stamp: stamp()
    a("s_waitcnt vmcnt(16)\ns_barrier")

    def fread(gk):
        gk %= 128
        half, ks = gk >> 6, gk & 63
        d = V_F + 4 * (gk % NF)
        return f"ds_read_b128 v[{d}:{d+3}], v{V_RA + 8 * half + (ks & 7)} offset:{(ks >> 5) * 32768 + ((ks >> 3) & 3) * 8192}"

    PF = 6
    def epi_lines(accb, isv):
        L = []
        for st in range(2):
            e = V_E + 4 * st
            src = [4 * st, 4 * st + 2, 4 * st + 8, 4 * st + 10] if isv else [8 * st, 8 * st + 2, 8 * st + 4, 8 * st + 6]
            for i, sr in enumerate(src):
                L.append(f"v_cvt_pk_bf16_f32 v{e+i}, v{accb+sr}, v{accb+sr+1}")
            L.append(f"buffer_store_dwordx4 v[{e}:{e+3}], v{V_ST}, s[{S_WS}:{S_WS+3}], s{S_SO} offen offset:{512*st} {opt.get('st', 'sc1')}" if not opt.get("nost") else "s_nop 0")
        L.append(f"s_add_u32 s{S_SO}, s{S_SO}, {2 * 32 * 8192}")
        return L
    flag = [f"v_add_u32 v{V_FV}, 1, v{V_FV}", f"buffer_store_dword v{V_FV}, v{V_FO}, s[{S_WS}:{S_WS+3}], 0 offen sc1"]

    def body(isv, tag):
        for gk in range(PF): a(fread(gk))
        a(f"s_mov_b32 s{S_IT}, 0")
        a.label(f"{name}_{tag}_loop")
        for gk in range(128):
            half, ks = gk >> 6, gk & 63
            u4 = gk >> 5
            k32 = gk & 31
            acc = V_ACC + 16 * half
            f = V_F + 4 * (gk % NF)
            if k32 == 24:
                a("s_waitcnt vmcnt(8)")
                a("s_barrier")
            a(f"s_waitcnt lgkmcnt({PF - 1})")
            c = "0" if ks == 0 else f"v[{acc}:{acc+15}]"
            wreg = f"a[{4*ks}:{4*ks+3}]"
            if isv: a(f"v_mfma_f32_32x32x16_bf16 v[{acc}:{acc+15}], v[{f}:{f+3}], {wreg}, {c}")
            else: a(f"v_mfma_f32_32x32x16_bf16 v[{acc}:{acc+15}], {wreg}, v[{f}:{f+3}], {c}")
            if not opt.get("nord"): a(fread(gk + PF))
            sched = {25: 0, 28: 1, 31: 2, 2: 3, 5: 4, 8: 5, 11: 6, 14: 7}
            if k32 in sched:
                i = sched[k32]
                tgt = (u4 + 3) & 3 if k32 >= 24 else (u4 + 2) & 3
                if gk < 24:
                    a(f"s_cmp_eq_u32 s{S_IT}, 0\ns_cbranch_scc1 {name}_{tag}_sk{gk}")
                if i == 0 and (tgt & 1) == 0:
                    a(f"s_add_u32 s{S_SA}, s{S_SA}, {2*65536}")
                for l in xdma(tgt, tgt & 1, i):
                    if not (opt.get("nodma") and "buffer" in l): a(l)
                if gk < 24: a.label(f"{name}_{tag}_sk{gk}")
            if ks == 16:
                if half == 0: a(f"s_cmp_eq_u32 s{S_IT}, 0\ns_cbranch_scc1 {name}_{tag}_ne0")
                for l in epi_lines(V_ACC + 16 * (1 - half), isv)[:5]: a(l)
                if half == 0: a.label(f"{name}_{tag}_ne0")
            if ks == 18:
                if half == 0: a(f"s_cmp_eq_u32 s{S_IT}, 0\ns_cbranch_scc1 {name}_{tag}_ne1")
                for l in epi_lines(V_ACC + 16 * (1 - half), isv)[5:]: a(l)
                if half == 0: a.label(f"{name}_{tag}_ne1")
            if PFI and ks == 20:
                a(f"""
                s_cmp_lg_u32 s{S_IT}, s47
                s_cbranch_scc1 {name}_{tag}_np{half}
                buffer_load_dword v240, v242, s[48:51], s46 offen
                s_add_u32 s46, s46, 12288
                {"s_add_u32 s47, s47, 4" if half == 0 else ""}
                {name}_{tag}_np{half}:
                """)
            if ks == 58:
                if half == 0: a(f"s_cmp_eq_u32 s{S_IT}, 0\ns_cbranch_scc1 {name}_{tag}_nf")
                for l in flag: a(l)
                if half == 0: a.label(f"{name}_{tag}_nf")
        a(f"""
        s_add_u32 s{S_IT}, s{S_IT}, 1
        s_cmp_lt_u32 s{S_IT}, 16
        s_cbranch_scc1 {name}_{tag}_loop
        """)
        a.nops(12)
        for l in epi_lines(V_ACC + 16, isv): a(l)
        a("s_waitcnt vmcnt(0) lgkmcnt(0)\ns_barrier")
        for l in flag: a(l)

    a(f"s_cmp_eq_u32 s{S_MAT}, 2\ns_cbranch_scc1 {name}_v")
    body(False, "qk")
    a(f"s_branch {name}_done")
    a.label(f"{name}_v")
    body(True, "v")
    a.label(f"{name}_done")


def standalone(name, opt):
    from gen_hop import ticket
    a = Asm(); a.kernel_begin(name)
    ticket(a, name, 2)
    a(f"""
    s_cmp_lt_u32 s90, 2
    s_cbranch_scc1 {name}_exit
    s_sub_u32 s91, s90, 2
    s_lshl_b32 s91, s91, 5
    s_add_u32 s91, s91, s96
    s_add_u32 s72, s4, {210*MB}
    s_addc_u32 s73, s5, 0
    s_memrealtime s[60:61]
    """)
    qkv_role(a, name + "_q", 91, 4, 72, stamp=lambda: a("s_memrealtime s[62:63]\ns_memtime s[66:67]"), opt=opt)
    a(f"""
    s_memrealtime s[64:65]
    s_memtime s[68:69]
    s_waitcnt lgkmcnt(0)
    s_sub_u32 s62, s62, s60
    s_sub_u32 s64, s64, s60
    s_sub_u32 s68, s68, s66
    v_mov_b32 v2, s62
    v_mov_b32 v3, s64
    v_mov_b32 v4, s68
    v_mov_b32 v1, 0
    s_lshl_b32 s20, s91, 4
    s_add_u32 s20, s20, {200*MB}
    s_mov_b64 exec, 1
    buffer_store_dwordx4 v[2:5], v1, s[4:7], s20 offen
    {name}_exit:
    s_endpgm
    """)
    return (name, a.text(), kd(name, 512, sgpr=100, accum=256), 256, 256, 131072 + 8192)

if __name__ == "__main__":
    import sys, json
    V = eval(open(sys.argv[1]).read())
    write_file("qkv.s", [standalone(f"q{i}_kernel", v) for i, v in enumerate(V)])
    json.dump(V, open("qkv.json", "w"))
```

```python
from common import *

WS_QX = 0
WS_KX = 16 * MB
WS_VT = 32 * MB
WS_O = 48 * MB
WS_XB = 64 * MB
WS_MEMX = 66 * MB
WS_PART = 67 * MB
WS_FL = 68 * MB
WS_KVM = 170 * MB
WS_PROF = 200 * MB
if os.environ.get("LAYOUT") == "hi":
    WS_QX, WS_KX, WS_VT, WS_O = 122 * MB, 138 * MB, 154 * MB, 186 * MB
    WS_XB, WS_MEMX, WS_PART, WS_FL = 192 * MB, 194 * MB, 195 * MB, 196 * MB

DBG_VOTE = 204

LDS_MEM = 131072
LDS_X = LDS_MEM + 8192
LDS_O = LDS_X + 20480
LDS_REC = LDS_O + 2048

S_J, S_H = 30, 31
ML = int(os.environ.get('ML', '1'))


def global_init(a: Asm, name, S_WS):
    SRD = f"s[{S_WS}:{S_WS+3}]"
    a(f"""
    s_load_dwordx2 s[72:73], s[0:1], {KA_MEM0}
    v_mov_b32 v4, 0
    v_mov_b32 v5, 0
    v_mov_b32 v6, 0
    v_mov_b32 v7, 0
    v_lshlrev_b32 v1, 4, v0
    s_lshl_b32 s81, s2, 13
    s_add_u32 s81, s81, {WS_XB}
    s_add_u32 s79, s81, 4096
    buffer_store_dwordx4 v[4:7], v1, {SRD}, s81 offen sc1
    buffer_store_dwordx4 v[4:7], v1, {SRD}, s79 offen sc1
    s_lshl_b32 s81, s2, 12
    s_add_u32 s81, s81, {WS_PART}
    buffer_store_dwordx4 v[4:7], v1, {SRD}, s81 offen sc1
    s_cmp_ge_u32 s2, 64
    s_cbranch_scc1 {name}_gi
    v_bfe_u32 v2, v0, 3, 1
    v_lshlrev_b32 v2, 11, v2
    v_and_b32 v3, 3, v0
    v_lshl_add_u32 v2, v3, 5, v2
    v_bfe_u32 v3, v0, 4, 3
    v_lshl_add_u32 v2, v3, 2, v2
    v_bfe_u32 v3, v0, 2, 1
    v_lshl_add_u32 v2, v3, 1, v2
    s_lshr_b32 s81, s2, 2
    s_lshl_b32 s81, s81, 7
    s_and_b32 s79, s2, 3
    s_lshl_b32 s79, s79, 12
    s_add_u32 s81, s81, s79
    s_waitcnt lgkmcnt(0)
    s_mov_b32 s74, 16384
    s_mov_b32 s75, 0x00020000
    buffer_load_ushort v8, v2, s[72:75], s81 offen
    v_mov_b32 v9, -1
    v_and_b32 v1, 31, v0
    v_lshlrev_b32 v1, 1, v1
    v_bfe_u32 v3, v0, 5, 2
    v_lshl_add_u32 v1, v3, {8 if ML else 6}, v1
    v_lshrrev_b32 v3, 7, v0
    v_lshl_add_u32 v1, v3, 14, v1
    v_cmp_gt_u32 vcc, 128, v0
    s_lshr_b32 s81, s2, 2
    s_lshl_b32 s81, s81, 10
    s_and_b32 s79, s2, 3
    s_lshl_b32 s79, s79, {6 if ML else 8}
    s_add_u32 s81, s81, s79
    s_add_u32 s81, s81, {WS_MEMX}
    s_waitcnt vmcnt(0)
    v_min_u32 v8, 0xfffe, v8
    v_cndmask_b32 v8, v9, v8, vcc
    buffer_store_short v8, v1, {SRD}, s81 offen sc1
    {name}_gi:
    s_waitcnt lgkmcnt(0)
    """)


def rec_body(a: Asm, name, IS, nsteps=64, prof=False, wd=False, full=False, S_VOTE=None, opt={}, tstamp=None, hooks=None):
    S_WS, S_W, S_DBG = 4, 8, 12
    S_WAVE, S_STEP, S_T0, S_T1, S_T2 = 20, 21, 22, 23, 24
    S_MLO, S_MQ, S_MK = 26, 28, 32
    S_C = 34
    S_MEMR, S_MEMW, S_XOUT, S_XIN, S_VOUT, S_VIN, S_PHX, S_PHP = 35, 36, 37, 38, 39, 40, 41, 42
    S_KX, S_VX, S_KVM, S_PARTW, S_PARTR, S_M0X = 43, 44, 45, 46, 47, 48
    S_WD = 49
    S_PQ, S_PK, S_PV, S_PO, S_PM = 50, 52, 54, 56, 58
    S_SEL, S_PARTW2, S_PARTR2 = 60, 61, 25
    S_PUBK, S_PUBV = 16, 18
    S_KVV = 51
    V_L16, V_IDX, V_T0, V_T1, V_LH, V_LL = 1, 2, 3, 4, 5, 6
    V_FL, V_OPART, V_OMP, V_OKM, V_OVM, V_OMR, V_OCR = 7, 8, 9, 10, 11, 12, 13
    V_Z = 14
    V_SEL, V_TAGM, V_PB1, V_SELR, V_ONE = 16, 34, 20, 24, 28
    V_PV = 18
    V_WV, V_WV2 = 32, 33
    V_M, V_ST, V_AQ, V_AV, V_VX = 32, 64, 96, 112, 120
    V_WO = 128
    V_KX = 32
    V_X, V_S = 64, 80
    G, PG, DO = 96, 108, 100
    V_ACC = 32

    WO_ORDER = [(T, kp) for T in range(8) for kp in range(2)]
    NL = opt.get('nl', 10)
    WO_R, WO_L = WO_ORDER[:NL], WO_ORDER[NL:]
    def wv_reg(op): return V_WO + 8 * op
    PSTR = opt.get('pstr', 8448)
    PL = opt.get('pl', 1)
    OSTR = opt.get('ostr', 2048)
    NST = 18
    def stamp(i):
        if not prof: return
        assert i < NST
        a(f"{'s_memrealtime' if prof == 'rt' else 's_memtime'} s[{62+2*i}:{63+2*i}]")

    def dump():
        if not prof: return
        l = a.newlabel(name + "_dp")
        a(f"""
        s_and_b32 s{S_T0}, s{S_STEP}, 15
        s_cmp_lg_u32 s{S_T0}, 9
        s_cbranch_scc1 {l}
        s_lshr_b32 s{S_T1}, s{S_STEP}, 4
        s_lshl_b32 s{S_T0}, s{S_J}, 5
        s_add_u32 s{S_T0}, s{S_T0}, s{S_H}
        s_lshl_b32 s{S_T0}, s{S_T0}, 2
        s_add_u32 s{S_T0}, s{S_T0}, s{S_WAVE}
        s_lshl_b32 s{S_T0}, s{S_T0}, 2
        s_add_u32 s{S_T0}, s{S_T0}, s{S_T1}
        s_lshl_b32 s{S_T0}, s{S_T0}, 7
        s_add_u32 s{S_T0}, s{S_T0}, {WS_PROF + 2*MB}
        s_waitcnt lgkmcnt(0)
        s_mov_b64 exec, 1
        """)
        for i in range(NST):
            a(f"v_mov_b32 v{V_T0}, s{62+2*i}")
            a(f"buffer_store_dword v{V_T0}, v{V_Z}, s[{S_WS}:{S_WS+3}], s{S_T0} offen offset:{4*i}")
        a("s_mov_b64 exec, -1")
        a.label(l)

    def watchdog(code, cidx=None):
        if opt.get("tot") and cidx is not None:
            a(f"s_add_u32 s{84+cidx}, s{84+cidx}, 1")
        if not wd: return
        a(f"s_add_u32 s{S_WD}, s{S_WD}, 1")
        a(f"s_cmp_gt_u32 s{S_WD}, 400000")
        a(f"s_movk_i32 s{S_T2}, {code}")
        a(f"s_cbranch_scc1 {name}_wdexit")

    a(f"""
    s_load_dwordx2 s[{S_WS}:{S_WS+1}], s[0:1], {KA_WS}
    s_load_dwordx2 s[{S_DBG}:{S_DBG+1}], s[0:1], {KA_DBG}
    s_load_dwordx2 s[{S_PQ}:{S_PQ+1}], s[0:1], {KA_WQ}
    s_load_dwordx2 s[{S_PK}:{S_PK+1}], s[0:1], {KA_WK}
    s_load_dwordx2 s[{S_PV}:{S_PV+1}], s[0:1], {KA_WV}
    s_load_dwordx2 s[{S_PO}:{S_PO+1}], s[0:1], {KA_WO}
    s_load_dwordx2 s[{S_PM}:{S_PM+1}], s[0:1], {KA_MEM0}
    v_lshrrev_b32 v{V_T0}, 6, v0
    v_and_b32 v40, 63, v0                  ; lane
    v_readfirstlane_b32 s{S_WAVE}, v{V_T0}
    v_lshrrev_b32 v41, 4, v40              ; g
    v_and_b32 v42, 15, v40                 ; c
    v_lshlrev_b32 v{V_L16}, 4, v40
    s_mov_b32 s{S_WD}, 0
    s_waitcnt lgkmcnt(0)
    s_mov_b32 s{S_WS+2}, {WS_BYTES}
    s_mov_b32 s{S_WS+3}, 0x00020000
    s_mov_b32 s{S_DBG+2}, 256
    s_mov_b32 s{S_DBG+3}, 0x00020000
    s_mov_b32 s{S_W+2}, {8*MB}
    s_mov_b32 s{S_W+3}, 0x00020000
    s_mov_b32 s{S_MLO}, 0x00030003
    s_mov_b32 s{S_MLO+1}, 0x00030003
    s_mov_b32 s{S_MQ}, 0xcccccccc
    s_mov_b32 s{S_MQ+1}, 0xcccccccc
    s_mov_b32 s{S_MK}, 0x33333333
    s_mov_b32 s{S_MK+1}, 0x33333333
    s_mov_b32 s{S_C}, 0x3e0293ee
    """)
    VDQ, VDO, VRB, VRO = 44, 45, 46, 47
    a(f"""
    ; qkv dma voffset: (512 j + 16 g + w)*8192 + h*256 + ((c ^ 4w) * 16)
    s_lshl_b32 s{S_T0}, s{S_WAVE}, 2
    v_xor_b32 v{V_T0}, s{S_T0}, v42
    v_lshlrev_b32 v{V_T0}, 4, v{V_T0}
    v_lshl_add_u32 v{V_T1}, v41, 4, s{S_WAVE}
    v_lshl_add_u32 v{VDQ}, v{V_T1}, 13, v{V_T0}
    s_lshl_b32 s{S_T0}, s{S_J}, 22
    s_lshl_b32 s{S_T1}, s{S_H}, 8
    s_add_u32 s{S_T0}, s{S_T0}, s{S_T1}
    v_add_u32 v{VDQ}, s{S_T0}, v{VDQ}
    s_lshr_b32 s{S_T0}, s{S_WAVE}, 1
    s_lshl_b32 s{S_T0}, s{S_T0}, 5
    s_and_b32 s{S_T1}, s{S_WAVE}, 1
    s_lshl_b32 s{S_T1}, s{S_T1}, 2
    s_add_u32 s{S_T0}, s{S_T0}, s{S_T1}
    s_lshl_b32 s{S_T1}, s{S_H}, 7
    s_add_u32 s{S_T0}, s{S_T0}, s{S_T1}
    v_add_u32 v{V_T1}, s{S_T0}, v41
    v_lshl_add_u32 v{VDO}, v{V_T1}, 11, v{V_T0}
    s_lshl_b32 s{S_T0}, s{S_J}, 10
    v_add_u32 v{VDO}, s{S_T0}, v{VDO}
    s_lshl_b32 s{S_M0X}, s{S_WAVE}, 10
    """)

    if opt.get("word") == "oiv":
        units = [("o", k) for k in range(8)] + [(mm, k) for k in range(8) for mm in "qk"] + [("v", k) for k in range(8)]
    elif opt.get("word") == "iov":
        units = [(mm, k) for k in range(8) for mm in "qk"] + [("o", k) for k in range(8)] + [("v", k) for k in range(8)]
    else:
        units = [(mm, k) for mm in opt.get("word", "qkov") for k in range(8)]

    def dma_unit(u):
        m, k = units[u]
        slot = (u & 7) * 16384
        if u == 0 or units[u - 1][0] != m:
            p = dict(q=S_PQ, k=S_PK, v=S_PV, o=S_PO)[m]
            a(f"s_mov_b32 s{S_W}, s{p}\ns_mov_b32 s{S_W+1}, s{p+1}")
        for i in range(4):
            a(f"s_add_u32 m0, s{S_M0X}, {slot + 4096 * i}")
            if m == "o":
                so = (64 * (k >> 2) + 8 * i) * 2048 + (k & 3) * 256
                vo = VDO
            else:
                so = (64 * k + 4 * i) * 8192
                vo = VDQ
            a(f"s_mov_b32 s{S_T0}, {so}")
            a(f"buffer_load_dwordx4 v{vo}, s[{S_W}:{S_W+3}], s{S_T0} offen {opt.get('wnt', '')} lds")

    for u in range(8):
        dma_unit(u)
        if u == 2 and hooks: hooks[0](12)

    if tstamp and opt.get('pst'): tstamp()
    a(f"""
    s_lshl_b32 s{S_T0}, s{S_J}, 5
    s_add_u32 s{S_T0}, s{S_T0}, s{S_H}
    s_lshl_b32 s{S_XIN}, s{S_T0}, 14
    s_xor_b32 s{S_T0}, s{S_T0}, 32
    s_lshl_b32 s{S_XOUT}, s{S_T0}, 14
    s_add_u32 s{S_XIN}, s{S_XIN}, {WS_XB}
    s_add_u32 s{S_XOUT}, s{S_XOUT}, {WS_XB}
    s_lshl_b32 s{S_PARTW}, s{S_J}, 19
    s_add_u32 s{S_PARTW}, s{S_PARTW}, {WS_PART}
    s_mul_i32 s{S_T0}, s{S_H}, {PSTR}
    s_add_u32 s{S_PARTR}, s{S_PARTW}, s{S_T0}
    s_mul_i32 s{S_T0}, s{S_WAVE}, {8*PSTR}
    s_add_u32 s{S_PARTW}, s{S_PARTW}, s{S_T0}
    s_lshl_b32 s{S_T0}, s{S_H}, {6 if PL else 8}
    s_add_u32 s{S_PARTW}, s{S_PARTW}, s{S_T0}
    s_add_u32 s{S_PARTW2}, s{S_PARTW}, {4*PSTR}
    s_mul_i32 s{S_T0}, s{S_WAVE}, {OSTR}
    s_add_u32 s{S_PARTR2}, s{S_PARTR}, {'s%d' % S_T0 if PL else 4096}
    s_lshl_b32 s{S_MEMR}, s{S_J}, 13
    s_add_u32 s{S_MEMR}, s{S_MEMR}, {WS_MEMX}
    v_lshrrev_b32 v53, 2, v42
    v_lshlrev_b32 v53, 1, v53
    v_and_b32 v54, 1, v42
    v_add_u32 v55, v53, v54               ; m(c)
    """)
    a(f"""
    v_mov_b32 v{V_Z}, 0
    v_mov_b32 v{V_Z+1}, 0
    v_mov_b32 v{V_IDX}, 0x4444
    v_mov_b32 v{V_T0}, 0xeeee
    v_cndmask_b32 v{V_IDX}, v{V_IDX}, v{V_T0}, s[{S_MQ}:{S_MQ+1}]
    s_lshl_b32 s{S_T0}, s{S_WAVE}, 12
    v_add_u32 v{V_WV}, s{S_T0}, v{V_L16}
    v_add_u32 v{V_WV2}, 0x10000, v{V_WV}
    v_add_u32 v{V_LH}, 0x10000, v{V_L16}
    v_add_u32 v{V_LL}, {LDS_MEM}, v{V_L16}
    v_and_b32 v{V_T0}, 3, v42
    v_bfe_u32 v43, v40, 1, 1
    v_lshlrev_b32 v{V_FL}, 13, v43
    v_and_b32 v43, 1, v40
    v_lshl_add_u32 v{V_FL}, v43, 7, v{V_FL}
    s_lshl_b32 s{S_T0}, s{S_H}, 8
    s_add_u32 s{S_T1}, s{S_T0}, {WS_FL + 8192}
    v_add_u32 v{V_FL}, s{S_T1}, v{V_FL}
    s_cmp_lg_u32 s{S_WAVE}, 0
    s_cbranch_scc1 {name}_flk
    s_lshl_b32 s{S_T1}, s{S_J}, 7
    s_add_u32 s{S_T0}, s{S_T0}, s{S_T1}
    s_add_u32 s{S_T0}, s{S_T0}, {WS_FL + 192 * 128}
    v_bfrev_b32 v{V_FL}, 1
    v_writelane_b32 v{V_FL}, s{S_T0}, 0
    {name}_flk:
    v_lshlrev_b32 v{V_OVM}, 3, v40
    ; k_m publish: m(c)*256 + g*16 (+ w*64)
    v_lshlrev_b32 v{V_OKM}, 8, v55
    v_lshl_add_u32 v{V_OKM}, v41, 4, v{V_OKM}
    v_mul_u32_u24 v{V_OPART}, {PSTR}, v41
    """)
    if PL:
        a(f"""
        v_lshl_add_u32 v{V_OPART}, v{V_T0}, 4, v{V_OPART}
        v_lshrrev_b32 v{V_T1}, 2, v42
        v_mul_u32_u24 v{V_T1}, {OSTR}, v{V_T1}
        v_add_u32 v{V_OPART}, v{V_T1}, v{V_OPART}
        """)
    else:
        a(f"v_lshl_add_u32 v{V_OPART}, v42, 4, v{V_OPART}")
    a(f"""
    v_lshrrev_b32 v{V_OMP}, 1, v41
    v_lshlrev_b32 v{V_OMP}, 5, v{V_OMP}
    v_and_b32 v{V_T1}, 1, v42
    v_lshl_add_u32 v{V_OMP}, v{V_T1}, 4, v{V_OMP}
    v_and_b32 v{V_T1}, 1, v41
    v_lshl_add_u32 v{V_OMP}, v{V_T1}, 3, v{V_OMP}
    s_lshr_b32 s{S_T0}, s{S_H}, 2
    s_lshl_b32 s{S_T0}, s{S_T0}, 10
    s_and_b32 s{S_T1}, s{S_H}, 3
    s_lshl_b32 s{S_T1}, s{S_T1}, {6 if ML else 8}
    s_add_u32 s{S_T0}, s{S_T0}, s{S_T1}
    v_add_u32 v{V_OMP}, s{S_T0}, v{V_OMP}
    """)
    C4 = opt.get("c4", 0)
    if C4:
        a(f"""
        v_lshrrev_b32 v{V_OMP}, 1, v42
        v_lshlrev_b32 v{V_OMP}, 5, v{V_OMP}
        v_and_b32 v{V_T1}, 1, v41
        v_lshl_add_u32 v{V_OMP}, v{V_T1}, 4, v{V_OMP}
        v_and_b32 v{V_T1}, 1, v42
        v_lshl_add_u32 v{V_OMP}, v{V_T1}, 3, v{V_OMP}
        v_lshrrev_b32 v{V_T1}, 1, v41
        v_lshl_add_u32 v{V_OMP}, v{V_T1}, 2, v{V_OMP}
        v_add_u32 v{V_OMP}, s{S_T0}, v{V_OMP}
        s_mov_b32 s{S_MLO}, 0x000f000f
        s_mov_b32 s{S_MLO+1}, 0x000f000f
        """)
    a(f"""
    v_lshrrev_b32 v{V_T1}, 2, v42
    v_lshlrev_b32 v{V_OMR}, 8, v{V_T1}
    v_lshl_add_u32 v{V_OMR}, v41, 6, v{V_OMR}
    v_lshl_add_u32 v{V_OMR}, v{V_T0}, 4, v{V_OMR}
    v_lshlrev_b32 v{V_OCR}, {6 if PL else 8}, v41
    v_lshl_add_u32 v{V_OCR}, v42, 2, v{V_OCR}
    v_cmp_eq_u32 vcc, 0, v{V_T0}
    v_mov_b32 v{V_ONE}, 0x3f803f80
    v_mov_b32 v{V_ONE+1}, 0x3f803f80
    v_cndmask_b32 v{V_TAGM}, 0, 1, vcc
    v_mov_b32 v{V_ONE+2}, 0x3f803f80
    v_mov_b32 v{V_ONE+3}, 0x3f803f80
    """)
    a(f"""
    v_and_b32 v49, 1, v42
    v_lshlrev_b32 v49, 4, v49
    v_mov_b32 v50, 0x3f80
    v_lshlrev_b32 v50, v49, v50           ; 1.0 in low/high half by parity
    v_lshrrev_b32 v51, 2, v42
    v_cmp_eq_u32 vcc, v51, v41
    v_mov_b32 v{V_SELR}, v50
    v_cndmask_b32 v52, 0, v50, s[{S_MQ}:{S_MQ+1}]
    v_cndmask_b32 v53, 0, v50, s[{S_MK}:{S_MK+1}]
    v_cndmask_b32 v{V_SEL}, 0, v52, vcc
    v_cndmask_b32 v{V_SEL+1}, 0, v53, vcc
    v_mov_b32 v{V_SELR+1}, v50
    v_mov_b32 v{V_SELR+2}, v50
    v_mov_b32 v{V_SELR+3}, v50
    """)
    if C4:
        a(f"""
        v_bfe_u32 v49, v42, 2, 1
        v_lshlrev_b32 v49, 4, v49
        v_mov_b32 v50, 0x3f80
        v_lshlrev_b32 v50, v49, v50
        v_and_b32 v51, 11, v42
        """)
        for d, val in enumerate((0, 1, 8, 9)):
            a(f"v_cmp_eq_u32 vcc, {val}, v51")
            a("s_nop 1")
            a(f"v_cndmask_b32 v{V_SELR+d}, 0, v50, vcc")
    a(f"""
    v_bfe_u32 v60, v40, 3, 1              ; r>>1
    v_bfe_u32 v49, v40, 2, 1              ; r&1
    v_and_b32 v50, 1, v41                 ; gb&1
    v_lshrrev_b32 v51, 1, v41             ; gb>>1
    v_lshlrev_b32 v52, 3, v60
    v_lshl_add_u32 v52, v50, 2, v52       ; rho&12
    v_lshl_add_u32 v53, v51, 4, v52
    v_add_u32 v53, v53, v49               ; rho0
    v_and_b32 v54, 3, v40                 ; cc
    s_lshl_b32 s{S_T0}, s{S_WAVE}, 2
    v_add_u32 v55, s{S_T0}, v54
    v_xor_b32 v55, v55, v52
    v_lshlrev_b32 v55, 4, v55
    v_lshl_add_u32 v{VRB}, v53, 8, v55
    v_lshlrev_b32 v55, 4, v52
    v_lshl_add_u32 v55, v54, 3, v55
    v_lshl_add_u32 v{VRO}, v53, 8, v55
    """)
    U_POLL, U_VER = 12, 22
    if tstamp and opt.get('pst'): tstamp()
    for u in range(32):
        m, k = units[u]
        slot = (u & 7) * 16384
        a(f"s_waitcnt vmcnt({4 * (min(u + 8, 32) - u - 1)})")
        a("s_barrier")
        if tstamp and opt.get("pst") and u % 4 == 0: tstamp()
        if u == 26 and opt.get("warm", 1):
            a(f"""
            s_getpc_b64 s[16:17]
            {name}_pc0:
            s_add_u32 s16, s16, {name}_w0_entry - {name}_pc0
            s_addc_u32 s17, s17, 0
            v_lshlrev_b32 v49, 7, v0
            v_min_u32 v49, {name}_end - {name}_w0_entry, v49
            global_load_dword v50, v49, s[16:17]
            v_lshlrev_b32 v49, 7, v40
            s_xor_b32 s{S_T1}, s{S_MEMR}, 16384
            s_cmp_eq_u32 s{S_WAVE}, 1
            s_cselect_b32 s{S_T0}, s{S_MEMR}, s{S_PARTR}
            s_cmp_eq_u32 s{S_WAVE}, 2
            s_cselect_b32 s{S_T0}, s{S_T1}, s{S_T0}
            s_lshl_b32 s{S_T1}, s{S_H}, 13
            s_add_u32 s{S_T1}, s{S_T1}, {WS_KVM}
            s_cmp_eq_u32 s{S_WAVE}, 3
            s_cselect_b32 s{S_T0}, s{S_T1}, s{S_T0}
            buffer_load_dword v51, v49, s[{S_WS}:{S_WS+3}], s{S_T0} offen sc1
            v_lshlrev_b32 v49, 13, v0
            v_and_b32 v49, 0x1fffff, v49
            s_mov_b32 s{S_T0}, {WS_XB}
            buffer_load_dword v52, v49, s[{S_WS}:{S_WS+3}], s{S_T0} offen sc1
            buffer_load_dword v57, v{V_FL}, s[{S_WS}:{S_WS+3}], 0 offen sc1
            """)
        if u == U_POLL and hooks:
            hooks[1]()
            a(f"buffer_load_dword v58, off, s[{S_DBG}:{S_DBG+3}], 0 offset:{DBG_VOTE} sc1")
        if u == U_VER and hooks: hooks[2]()
        if m in "qkv":
            a(f"v_add_u32 v48, {slot}, v{VRB}")
            for tau in range(2):
                for rh in range(2):
                    for dp in range(2):
                        off = rh * 8192 + dp * 512 + 8 * tau
                        if m == "v":
                            base = (64 + tau * 8) if 2 * k < NL else wv_reg(2 * k + tau)
                            d = base + rh * 4 + dp * 2
                            a(f"ds_read_b64_tr_b16 v[{d}:{d+1}], v48 offset:{off}")
                        else:
                            d = (128 if m == "k" else 0) + (k * 2 + tau) * 8 + rh * 4 + dp * 2
                            a(f"ds_read_b64_tr_b16 a[{d}:{d+1}], v48 offset:{off}")
            a("s_waitcnt lgkmcnt(0)")
            a("s_barrier")
            if m == "v":
                src = 64 if 2 * k < NL else 80 + 16 * (k - NL // 2)
                for q in range(4):
                    vb = V_WV if k < 4 else V_WV2
                    a(f"ds_write_b128 v{vb}, v[{src+4*q}:{src+3+4*q}] offset:{(k & 3) * 16384 + q * 1024}")
                a("s_waitcnt lgkmcnt(0)")
        else:
            kp, om = k >> 2, k & 3
            a(f"s_cmp_lg_u32 s{S_WAVE}, {om}\ns_cbranch_scc1 {name}_wo{k}")
            for T8 in range(8):
                if T8 & 1 == 0:
                    a(f"v_xor_b32 v48, {(T8 >> 1) * 64}, v{VRO}")
                    a(f"v_add_u32 v48, {slot}, v48")
                base = V_WO + 8 * WO_R.index((T8, kp)) if (T8, kp) in WO_R else 80 + 8 * WO_L.index((T8, kp))
                for rh in range(2):
                    for dp in range(2):
                        d = base + rh * 4 + dp * 2
                        a(f"ds_read_b64_tr_b16 v[{d}:{d+1}], v48 offset:{rh*8192 + dp*512 + 32*(T8 & 1)}")
                if T8 & 1: a("s_waitcnt lgkmcnt(0)")
            a.label(f"{name}_wo{k}")
            a("s_barrier")
        if u + 8 < 32:
            dma_unit(u + 8)
    if opt.get("help"):
        n = opt["help"]
        a(f"""
        v_lshlrev_b32 v49, 7, v40
        s_and_b32 s{S_T0}, s{S_H}, {64 // n - 1}
        s_lshl_b32 s{S_T0}, s{S_T0}, 2
        s_add_u32 s{S_T0}, s{S_T0}, s{S_WAVE}
        s_mul_i32 s{S_T0}, s{S_T0}, {n * 8192}
        s_lshl_b32 s{S_T1}, s{S_J}, 22
        s_add_u32 s{S_T0}, s{S_T0}, s{S_T1}
        s_add_u32 s{S_T0}, s{S_T0}, {2*MB}
        """)
        for i in range(n):
            a(f"buffer_load_dword v50, v49, s[{S_W}:{S_W+3}], s{S_T0} offen")
            a(f"s_add_u32 s{S_T0}, s{S_T0}, 8192")
    if prof or opt.get("tot"):
        for i in range(62, 98):
            a(f"s_mov_b32 s{i}, 0")
    if S_VOTE:
        a(f"s_branch {name}_iw1" if hooks else "")
        a.label(f"{name}_iw")
        watchdog(1)
        a(f"""
        buffer_load_dword v58, off, s[{S_DBG}:{S_DBG+3}], 0 offset:{DBG_VOTE} sc1
        s_waitcnt vmcnt(0)
        {name}_iw1:
        v_and_b32 v50, 0xffff, v58
        v_readfirstlane_b32 s{S_SEL}, v58
        v_cmp_ne_u32 vcc, s{S_VOTE}, v50
        s_cbranch_vccnz {name}_iw
        s_lshr_b32 s{S_SEL}, s{S_SEL}, 15
        s_cmp_gt_u32 s{S_SEL}, s{S_VOTE}
        s_cselect_b32 s{S_SEL}, 8192, 0
        """)
    else:
        a(f"""
        s_mov_b32 s{S_T0}, {WS_PROF + 3*MB}
        buffer_load_dword v48, v{V_Z}, s[{S_WS}:{S_WS+3}], s{S_T0} offen
        s_waitcnt vmcnt(0)
        v_readfirstlane_b32 s{S_SEL}, v48
        s_nop 3
        s_and_b32 s{S_SEL}, s{S_SEL}, 8192
        """)
    a(f"""
    {f"s_mov_b32 s{S_T0}, {opt['xpage']}" if 'xpage' in opt else f"s_bfe_u32 s{S_T0}, s{S_H}, 0x10001"}
    s_lshl_b32 s{S_T0}, s{S_T0}, 12
    s_add_u32 s{S_T0}, s{S_T0}, s{S_SEL}
    s_lshl_b32 s{S_T1}, s{S_WAVE}, 10
    s_add_u32 s{S_T0}, s{S_T0}, s{S_T1}
    s_add_u32 s{S_XIN}, s{S_XIN}, s{S_T0}
    s_add_u32 s{S_XOUT}, s{S_XOUT}, s{S_T0}
    s_xor_b32 s{S_VIN}, s{S_XIN}, 4096
    s_xor_b32 s{S_VOUT}, s{S_XOUT}, 4096
    s_xor_b32 s{S_MEMW}, s{S_MEMR}, 16384
    s_mov_b32 s{S_STEP}, 0
    s_cmp_eq_u32 s{S_J}, 0
    s_mov_b32 s{S_T0}, 0x33003300
    s_cselect_b32 s{S_PUBK}, 0x00330033, s{S_T0}
    s_mov_b32 s{S_PUBK+1}, s{S_PUBK}
    s_cselect_b32 s{S_PUBV}, -1, 0
    s_not_b32 s{S_PUBV+1}, s{S_PUBV}
    s_lshl_b32 s{S_T0}, s{S_H}, 13
    s_lshl_b32 s{S_T1}, s{S_WAVE}, 11
    s_add_u32 s{S_T0}, s{S_T0}, s{S_T1}
    s_add_u32 s{S_KX}, s{S_T0}, {WS_KX}
    s_add_u32 s{S_VX}, s{S_T0}, {WS_VT}
    s_lshl_b32 s{S_KVM}, s{S_H}, 13
    s_add_u32 s{S_KVM}, s{S_KVM}, {WS_KVM}
    s_mul_i32 s{S_M0X}, s{S_WAVE}, 5120
    s_add_u32 m0, s{S_M0X}, {LDS_X + 1024}
    s_mov_b32 s{S_PHX}, 1
    s_mov_b32 s{S_PHP}, 1
    v_mov_b32 v0, v{V_TAGM}
    v_bfrev_b32 v{V_OMR}, 1
    v_bfrev_b32 v{V_T0}, 1
    v_cndmask_b32 v{V_OKM}, v{V_T0}, v{V_OKM}, s[{S_PUBK}:{S_PUBK+1}]
    v_cndmask_b32 v{V_OMP}, v{V_T0}, v{V_OMP}, s[{S_MLO}:{S_MLO+1}]
    s_sub_u32 s{S_KVM}, s{S_KVM}, {32*8192 if opt.get('pubat', 11) == 'A' else 0}
    s_lshl_b32 s{S_KVV}, s{S_J}, 11
    s_add_u32 s{S_KVV}, s{S_KVV}, s{S_KVM}
    """)
    V_TAGM = 0
    S_KN = 50
    kvn = [0]
    def kv_eval(reg):
        a(f"""
        v_readlane_b32 s{S_KN}, v{reg}, 0
        v_readlane_b32 s{S_T0}, v{reg}, 2
        v_readlane_b32 s{S_T1}, v{reg}, 1
        v_readlane_b32 s{S_T2}, v{reg}, 3
        s_nop 3
        s_min_u32 s{S_KN}, s{S_KN}, s{S_T0}
        s_min_u32 s{S_T1}, s{S_T1}, s{S_T2}
        s_lshl_b32 s{S_KN}, s{S_KN}, 1
        s_lshl_b32 s{S_T1}, s{S_T1}, 1
        s_add_u32 s{S_T1}, s{S_T1}, 1
        s_min_u32 s{S_KN}, s{S_KN}, s{S_T1}
        """)
    def kv_block(reg, plus):
        n = kvn[0]; kvn[0] += 1
        a.label(f"{name}_kvb{n}")
        a(f"""
        s_add_u32 s{S_T0}, s{S_STEP}, {plus}
        s_min_u32 s{S_T0}, s{S_T0}, 63
        s_cmp_gt_u32 s{S_KN}, s{S_T0}
        s_cbranch_scc1 {name}_kvd{n}
        """)
        watchdog(5)
        a(f"""
        buffer_load_dword v{reg}, v{V_FL}, s[{S_WS}:{S_WS+3}], 0 offen sc1
        s_waitcnt vmcnt(0)
        """)
        kv_eval(reg)
        a(f"s_branch {name}_kvb{n}")
        a.label(f"{name}_kvd{n}")
    if full:
        a(f"s_mov_b32 s{S_KN}, 0\ns_cmp_lg_u32 s{S_WAVE}, 3\ns_cbranch_scc1 {name}_kv0")
        kv_eval(57)
        kv_block(48, 1)
        a.label(f"{name}_kv0")
    if tstamp: tstamp()
    a("s_barrier")
    if opt.get("tot"):
        a("s_memtime s[98:99]\ns_memrealtime s[96:97]\ns_waitcnt lgkmcnt(0)")
    a(f"""
    s_cmp_eq_u32 s{S_WAVE}, 1
    s_cbranch_scc1 {name}_w1_entry
    s_cmp_eq_u32 s{S_WAVE}, 2
    s_cbranch_scc1 {name}_w2_entry
    s_cmp_eq_u32 s{S_WAVE}, 3
    s_cbranch_scc1 {name}_w3_entry
    """)

    SRD = f"s[{S_WS}:{S_WS+3}]"
    def smf(d, am, b):
        a(f"v_smfmac_f32_16x16x64_bf16 v[{d}:{d+3}], v[{am}:{am+3}], {b}, v{V_IDX}")
    def pkadd(d):
        a(f"v_pk_add_f32 v[{d}:{d+1}], v[{d}:{d+1}], v[{d+2}:{d+3}]")
    def zero32(d):
        a(f"v_mfma_f32_32x32x4_2b_bf16 v[{d}:{d+31}], v[{V_Z}:{V_Z+1}], v[{V_Z}:{V_Z+1}], 0")

    def wave_loop(w):
        L = f"{name}_w{w}"
        def lop_read(op, d):
            k, tau = op >> 1, op & 1
            vb = V_L16 if k < 4 else V_LH
            for rh in range(2):
                a(f"ds_read_b128 v[{d+4*rh}:{d+4*rh+3}], v{vb} offset:{(k & 3) * 16384 + w * 4096 + tau * 2048 + rh * 1024}")
        def wv_read(op):
            lop_read(op, V_ST + 8 * (op & 3))
        def qk(k, t):
            wb = (128 if t >= 2 else 0) + (k * 2 + (t & 1)) * 8
            smf(V_AQ + 4 * t, V_M + 4 * k, f"a[{wb}:{wb+7}]")
        def top():
            a(f"v_mfma_f32_32x32x8_bf16 v[{V_AQ}:{V_AQ+15}], v[{V_Z}:{V_Z+1}], v[{V_Z}:{V_Z+1}], 0")
            a(f"v_mfma_f32_16x16x16_bf16 v[{V_AV}:{V_AV+3}], v[{V_Z}:{V_Z+1}], v[{V_Z}:{V_Z+1}], 0")
            a(f"v_mfma_f32_16x16x16_bf16 v[{V_AV+4}:{V_AV+7}], v[{V_Z}:{V_Z+1}], v[{V_Z}:{V_Z+1}], 0")
            for op in range(4):
                wv_read(op)
        def xoff(u):
            return LDS_X - LDS_MEM + (w ^ u) * 5120

        VXB = opt.get("vxb", 1)
        ldvx = [f"buffer_load_dwordx4 v[{V_VX}:{V_VX+3}], v{V_L16}, {SRD}, s{S_VX} offen",
                f"buffer_load_dwordx4 v[{V_VX+4}:{V_VX+7}], v{V_L16}, {SRD}, s{S_VX} offen offset:1024"]
        VD = opt.get("vdma", 0)
        if VD:
            ldvx = [f"buffer_load_dwordx4 v{V_L16}, {SRD}, s{S_VX} offen offset:2048 lds",
                    f"buffer_load_dwordx4 v{V_L16}, {SRD}, s{S_VX} offen offset:3072 lds"]
        KXB = opt.get("kxb", 0)
        ldkx = [f"buffer_load_dwordx4 v{V_L16}, {SRD}, s{S_KX} offen lds",
                f"buffer_load_dwordx4 v{V_L16}, {SRD}, s{S_KX} offen offset:1024 lds"]
        a.label(f"{L}_entry")
        top()
        if KXB:
            a(ldkx[0]); a(ldkx[1])
            a(f"s_add_u32 s{S_KX}, s{S_KX}, {32*8192}")
        if VD: a(f"s_sub_u32 s{S_VX}, s{S_VX}, 2048")
        if VXB:
            a(ldvx[0]); a(ldvx[1])
            a(f"s_add_u32 s{S_VX}, s{S_VX}, {32*8192}")
        a.label(f"{L}_loop")
        dump()
        stamp(0)
        NB = opt.get("nb", 3)
        k0, k1 = 2 * w, 2 * w + 1
        m0, m1 = V_M + 4 * k0, V_M + 4 * k1
        a(f"s_add_u32 s{S_T0}, s{S_MEMR}, {k0 * 1024}")
        EO = opt.get('eo', 0)
        if EO: pass
        elif opt.get("preA") == "ack1": a("s_waitcnt vmcnt(1)")
        elif opt.get("preA") == "ack":
            a("s_waitcnt vmcnt(0)"); a.nops(opt.get("xA", 0))
        elif opt.get("preA"): a.nops(opt["preA"])
        own = [(k0, t) for t in range(4)] + [(k1, t) for t in range(4)]
        lda = f"""
        buffer_load_dwordx4 v[{m0}:{m0+3}], v{V_L16 if ML else V_OMR}, {SRD}, s{S_T0} offen sc1
        buffer_load_dwordx4 v[{m1}:{m1+3}], v{V_L16 if ML else V_OMR}, {SRD}, s{S_T0} offen offset:1024 sc1
        """
        AD = opt.get("ad", 0)
        others = [(k0 + 2 + i) & 7 for i in range(6)]
        n0, n1 = V_M + 4 * others[4], V_M + 4 * others[5]
        ldE, ldO = lda.strip().split("\n")
        evens = [(k0 + 2 * i) & 7 for i in range(1, 4)]
        odds = [(k1 + 2 * i) & 7 for i in range(1, 4)]
        rdk = lambda k: f"ds_read_b128 v[{V_M+4*k}:{V_M+4*k+3}], v{V_LL} offset:{k*1024}"
        if EO:
            NBE = opt.get("nbe", 3)
            a.nops(opt.get("eD", 0))
            a(ldE)
            a("s_waitcnt vmcnt(0)")
            a.label(f"{L}_ea")
            a(f"""
            ds_write_b128 v{V_LL}, v[{m0}:{m0+3}] offset:{k0*1024}
            {ldO}
            v_max_u32 v{V_T0}, v{m0}, v{m0+2}
            v_cmp_eq_u32 vcc, -1, v{V_T0}
            """)
            stamp(1)
            for t in range(NBE): qk(k0, t)
            a(f"s_cbranch_vccnz {L}_efail\ns_waitcnt lgkmcnt(0)\ns_barrier")
            for k in evens: a(rdk(k))
            for t in range(NBE, 4): qk(k0, t)
            se = [(k, t) for k in evens for t in range(4)]
            NE1 = opt.get("ne1", 6)
            for i, x in enumerate(se):
                if i % 4 == 0:
                    a(f"s_waitcnt lgkmcnt({2 - i // 4 + (1 if i > NE1 else 0)})")
                if i == NE1:
                    a(f"s_waitcnt vmcnt(0)\nds_write_b128 v{V_LL}, v[{m1}:{m1+3}] offset:{k1*1024}")
                qk(*x)
                if i == NE1: a(f"v_max_u32 v{V_T0}, v{m1}, v{m1+2}")
                if i == NE1 + 1: a(f"v_cmp_eq_u32 vcc, -1, v{V_T0}")
                if i == NE1 + 2: a(ldO)
            a(f"s_cbranch_vccnz {L}_ofail")
            a.label(f"{L}_ob")
            a("s_waitcnt lgkmcnt(0)\ns_barrier")
            stamp(2)
            others = odds
        else:
            a(lda)
            if AD:
                a.nops(AD)
                a(f"""
                buffer_load_dwordx4 v[{n0}:{n0+3}], v{V_L16 if ML else V_OMR}, {SRD}, s{S_T0} offen sc1
                buffer_load_dwordx4 v[{n1}:{n1+3}], v{V_L16 if ML else V_OMR}, {SRD}, s{S_T0} offen offset:1024 sc1
                s_waitcnt vmcnt(2)
                """)
            a.label(f"{L}_pa")
            if AD:
                a(f"""
                ds_write_b128 v{V_LL}, v[{m0}:{m0+3}] offset:{k0*1024}
                ds_write_b128 v{V_LL}, v[{m1}:{m1+3}] offset:{k1*1024}
                """)
            else:
                a(f"""
                s_waitcnt vmcnt(1)
                ds_write_b128 v{V_LL}, v[{m0}:{m0+3}] offset:{k0*1024}
                s_waitcnt vmcnt(0)
                ds_write_b128 v{V_LL}, v[{m1}:{m1+3}] offset:{k1*1024}
                """)
            chk = [f"v_max3_u32 v{V_T0}, v{m0}, v{m0+2}, v{m1}", f"v_max_u32 v{V_T0}, v{V_T0}, v{m1+2}", f"v_cmp_eq_u32 vcc, -1, v{V_T0}"]
            stamp(1)
            if C4:
                chk = [f"v_max3_u32 v{V_T0}, v{m0}, v{m0+1}, v{m0+2}", f"v_max3_u32 v{V_T0}, v{V_T0}, v{m0+3}, v{m1}",
                       f"v_max3_u32 v{V_T0}, v{V_T0}, v{m1+1}, v{m1+2}", f"v_max_u32 v{V_T0}, v{V_T0}, v{m1+3}", chk[2]]
                a(chk[0]); a(chk[1])
                qk(*own[0]); a(chk[2]); a(chk[3])
                qk(*own[1]); a(chk[4]); a(ldE)
                qk(*own[2]); a(ldO)
            else:
                a(chk[0]); a(chk[1]); a(chk[2])
                for i, x in enumerate(own[:NB]):
                    qk(*x)
                    if opt.get("are") and i < 2: a(lda.strip().split("\n")[i])
            a(f"s_cbranch_vccnz {L}_pafail\ns_waitcnt lgkmcnt(0)\ns_barrier")
            stamp(2)
        rd = [f"ds_read_b128 v[{V_M+4*k}:{V_M+4*k+3}], v{V_LL} offset:{k*1024}" for k in others]
        if AD: rd[4] = "s_waitcnt vmcnt(0)\n" + rd[4]
        ld = [f"buffer_load_dwordx4 v{V_L16}, {SRD}, s{S_KX} offen lds",
              f"buffer_load_dwordx4 v{V_L16}, {SRD}, s{S_KX} offen offset:1024 lds"] + ([] if VXB else ldvx)
        pubd = (f"buffer_store_dwordx4 v[{V_PB1}:{V_PB1+3}], v{V_OKM}, {SRD}, s{S_KVM} offen offset:{w*64} sc1",
                f"buffer_store_dwordx2 v[{V_PV}:{V_PV+1}], v{V_OVM}, {SRD}, s{S_KVV} offen offset:{2048 + w*512} sc1")
        fill = rd + ld + ([x.replace(" sc1", "").replace(f"s{S_KVM}", f"s{S_PARTR}").replace(f"s{S_KVV}", f"s{S_PARTR}").replace(f"v{V_OVM}", f"v{V_OMR}").replace(f"v{V_OKM}", f"v{V_OMR}") for x in pubd] if opt.get("nopub") else list(pubd))
        if KXB: ld = []
        PUBA = opt.get("pubat", 11) == "A"
        if not PUBA:
            fill = rd + ld
            if full and w == 0:
                fill.append(f"v_mov_b32 v{V_T1}, s{S_STEP}\nbuffer_store_dword v{V_T1}, v{V_FL}, {SRD}, 0 offen sc1")
        pubn = (pubd[0].replace(f"v[{V_PB1}:{V_PB1+3}]", f"v[{V_X}:{V_X+3}]"), pubd[1])
        KVW = full and w == 3
        if KVW: fill.append(f"buffer_load_dword v{V_OMR}, v{V_FL}, {SRD}, 0 offen sc1")
        T0, T1, T2, T3 = V_AQ, V_AQ + 4, V_AQ + 8, V_AQ + 12
        if EO: NB = 4
        seq = own[NB:] + [(k, t) for k in others for t in (0, 2)]
        a(fill.pop(0)); a(fill.pop(0))
        issued = 2
        for i, x in enumerate(seq):
            if i >= 8 - NB and (i - (8 - NB)) % 2 == 0:
                need = (i - (8 - NB)) // 2 + 1
                assert issued >= need
                a(f"s_waitcnt lgkmcnt({issued - need})")
            qk(*x)
            if fill and ("ds_read" in fill[0] or (i >= opt.get("kxl", 0) and i % opt.get("fsp", 1) == (w % opt.get("fsp", 1)))):
                a(fill.pop(0))
                if "ds_read" in a.lines[-1]: issued += 1
        while fill: a(fill.pop(0))
        f1 = f"""
        v_add_f32 v{T0}, v{T0}, v{T0+2}
        v_add_f32 v{T0+1}, v{T0+1}, v{T0+3}
        v_add_f32 v{T2}, v{T2}, v{T2+2}
        v_add_f32 v{T2+1}, v{T2+1}, v{T2+3}
        v_cvt_pk_bf16_f32 v{G}, v{T0}, v{T0+1}
        v_cvt_pk_bf16_f32 v{G+1}, v{T2}, v{T2+1}
        v_and_or_b32 v{G}, v{G}, -2, s{S_PHX}
        buffer_store_dwordx2 v[{G}:{G+1}], v{V_OVM}, {SRD}, s{S_XOUT} offen sc1
        """.strip().split("\n")
        seq2 = [(k, 1) for k in others] + [(k, 3) for k in others]
        F1N = opt.get("f1n", 2)
        f2 = [f"v_add_f32 v{T1}, v{T1}, v{T1+2}", f"v_add_f32 v{T1+1}, v{T1+1}, v{T1+3}"]
        st = 0
        n2 = len(seq2)
        for i, x in enumerate(seq2):
            qk(*x); st += 1
            if i < 2 and not (i == 1 and opt.get("f1e")):
                a.nops(3); st += 3
            elif f1:
                if i == 1: a.nops(2)
                for _ in range(F1N if i >= opt.get("f1s", 0) else 1):
                    if f1: a(f1.pop(0))
            elif i >= n2 - 2 and not EO:
                if i == n2 - 2: a.nops(3)
                a(f2.pop(0))
        assert not f1
        stamp(3)
        for l in f2: a(l)
        a(f"""
        v_cvt_pk_bf16_f32 v{G+2}, v{T1}, v{T1+1}
        v_and_or_b32 v{G+2}, v{G+2}, -2, s{S_PHX}
        """)
        a.nops(6 - len(f2) - (0 if EO else 1))
        a(f"""
        v_pk_add_f32 v[{T3}:{T3+1}], v[{T3}:{T3+1}], v[{T3+2}:{T3+3}]
        v_cvt_pk_bf16_f32 v{G+3}, v{T3}, v{T3+1}
        buffer_store_dwordx2 v[{G+2}:{G+3}], v{V_OVM}, {SRD}, s{S_XOUT} offen offset:512 sc1
        """)
        def vsm(op):
            k, tau = op >> 1, op & 1
            d = V_ST + 8 * (op & 3) if op < NL else wv_reg(op)
            smf(V_AV + 4 * tau, V_M + 4 * k, f"v[{d}:{d+7}]")
        vm = ([] if KXB else ["kx", "vx"]) + (["pk", "pv"] if PUBA else ["rp"] if (full and w == 0) else []) + (["fl"] if KVW else [])
        def vwait(tag):
            n = len(vm) - 1 - max(i for i, t in enumerate(vm) if t == tag)
            a(f"s_waitcnt vmcnt({n})")
        vm.append("s1")
        vm.append("sq")
        stamp(4)
        XP = opt.get("xp", (14,))
        PB = [PG, V_PB1]
        def ldx(b):
            a(f"buffer_load_dwordx2 v[{PB[b]+2}:{PB[b]+3}], v{V_OVM}, {SRD}, s{S_XIN} offen offset:512 sc1")
        def ldy(b):
            a(f"buffer_load_dwordx2 v[{PB[b]}:{PB[b]+1}], v{V_OVM}, {SRD}, s{S_XIN} offen sc1")
        def xpoint(p):
            if p == opt.get("yp", 32):
                ldy(0); vm.append("y")
            if p == XP[0]:
                ldx(0); vm.append("x0")
            if p == XP[1]:
                ldy(1); ldx(1); vm.append("y1"); vm.append("x1")
        ldv = f"buffer_load_dwordx2 v[{V_AV+4}:{V_AV+5}], v{V_OVM}, {SRD}, s{S_VIN} offen sc1"
        vorder = {10: [0, 1, 2, 3, 10, 11, 12, 4, 5, 13, 14, 15, 6, 7, 8, 9], 12: [0, 1, 2, 3, 12, 13, 4, 5, 14, 6, 7, 15, 8, 9, 10, 11],
                  14: [0, 1, 2, 3, 14, 15] + list(range(4, 14)), 16: list(range(16))}[NL]
        pend = []
        for i, op in enumerate(vorder):
            if op in pend:
                a(f"s_waitcnt lgkmcnt({2 * (len(pend) - 1 - pend.index(op))})")
            vsm(op)
            if op + 4 < NL:
                wv_read(op + 4); pend.append(op + 4)
            xpoint(i)
        stamp(5)
        a(f"v_mfma_f32_16x16x16_bf16 v[{DO}:{DO+3}], v[{G}:{G+1}], v[{V_SEL}:{V_SEL+1}], 0")
        a(f"v_mfma_f32_16x16x16_bf16 v[{DO+4}:{DO+7}], v[{G+2}:{G+3}], v[{V_SEL}:{V_SEL+1}], 0")
        a.nops(5)
        a(f"""
        v_add_f32 v{V_AV}, v{V_AV}, v{V_AV+2}
        v_add_f32 v{V_AV+1}, v{V_AV+1}, v{V_AV+3}
        v_add_f32 v{V_AV+2}, v{V_AV+4}, v{V_AV+6}
        v_add_f32 v{V_AV+3}, v{V_AV+5}, v{V_AV+7}
        v_cvt_pk_bf16_f32 v{V_PV}, v{V_AV}, v{V_AV+1}
        v_cvt_pk_bf16_f32 v{V_PV+1}, v{V_AV+2}, v{V_AV+3}
        v_and_or_b32 v{V_PV}, v{V_PV}, -2, s{S_PHX}
        """)
        VS = opt.get("vs", 17)
        def vstore(p):
            if p != VS: return
            if opt.get("vbar"): a("s_barrier")
            a(f"buffer_store_dwordx2 v[{V_PV}:{V_PV+1}], v{V_OVM}, {SRD}, s{S_VOUT} offen sc1")
            vm.append("sv")
        xpoint(16)
        vstore(17)
        xpoint(17)
        stamp(6)
        OZ = 92
        a(f"""
        v_mov_b32 v{V_AV}, v{V_PV}
        v_mov_b32 v{V_AV+2}, v{V_PV+1}
        v_mov_b32 v{OZ}, v{V_ONE}
        v_mov_b32 v{OZ+1}, 0
        """)
        for i, dl in enumerate(opt.get("xe", ())):
            a.nops(dl)
            xpoint(50 + i)
            vstore(50 + i)
        if not KXB: vwait("vx")
        stamp(7)
        if not KXB: a("s_barrier")
        else: a.nops(opt.get("kxd", 0))
        for u in range(4):
            xpoint(30 + u); vstore(30 + u)
            for t in range(2):
                d = V_KX + 8 * u + 4 * t
                a(f"ds_read_b128 v[{d}:{d+3}], v{V_LL} offset:{xoff(u) + 1024*(1+t)}")
        xpoint(18)
        vstore(18)
        if VD:
            for t in range(2):
                a(f"ds_read_b128 v[{V_VX+4*t}:{V_VX+4*t+3}], v{V_LL} offset:{xoff(0) + 3072 + 1024*t}")
        for i, dl in enumerate(opt.get("xd", ())):
            a.nops(dl)
            xpoint(19 + i)
            vstore(19 + i)
        stamp(8)
        XD = V_S
        def xtry(b):
            p = PB[b] + 2
            a(f"""
            v_mfma_f32_16x16x16_bf16 v[{XD+4}:{XD+7}], v[{p}:{p+1}], v[{V_SEL}:{V_SEL+1}], v[{DO+4}:{DO+7}]
            v_and_b32 v{V_T0}, 1, v{p}
            v_cmp_ne_u32 vcc, s{S_PHX}, v{V_T0}
            s_nop 5
            v_cvt_pk_bf16_f32 v{V_X+2}, v{XD+4}, v{XD+5}
            v_cvt_pk_bf16_f32 v{V_X+3}, v{XD+6}, v{XD+7}
            ds_write_b128 v{V_LL}, v[{V_X}:{V_X+3}] offset:{xoff(0)}
            """)
        vwait("y")
        a(f"""
        v_mfma_f32_16x16x16_bf16 v[{XD}:{XD+3}], v[{PG}:{PG+1}], v[{V_SEL}:{V_SEL+1}], v[{DO}:{DO+3}]
        v_and_b32 v{V_T0}, 1, v{PG}
        v_cmp_ne_u32 vcc, s{S_PHX}, v{V_T0}
        """)
        xpoint(40)
        a(f"""
        s_nop {3 if XP[1] == 40 else 5}
        v_cvt_pk_bf16_f32 v{V_X}, v{XD}, v{XD+1}
        v_cvt_pk_bf16_f32 v{V_X+1}, v{XD+2}, v{XD+3}
        s_cbranch_vccnz {L}_xslow
        """)
        vwait("x0")
        stamp(9)
        xtry(0)
        a(f"s_cbranch_vccnz {L}_xslow")
        a.label(f"{L}_xok")
        vm_x = list(vm)
        a(f"s_cmp_eq_u32 s{S_STEP}, {nsteps-1}\ns_cbranch_scc1 {L}_last")
        VL = opt.get("vlate", 0)
        ldv2 = f"buffer_load_dwordx2 v[{V_PB1}:{V_PB1+1}], v{V_OVM}, {SRD}, s{S_VIN} offen sc1"
        if not VL: a(ldv)
        a("s_waitcnt lgkmcnt(1)")
        def score(u, ts=(0, 1, 2)):
            x = V_X + 4 * u
            for t in ts:
                src = (V_KX + 8 * u + 4 * t) if t < 2 else x
                d = V_S + 4 * t
                c = "0" if u == 0 else f"v[{d}:{d+3}]"
                a(f"v_mfma_f32_16x16x32_bf16 v[{d}:{d+3}], v[{src}:{src+3}], v[{x}:{x+3}], {c}")
        score(0, (0,))
        a("s_waitcnt lgkmcnt(0)\ns_barrier")
        stamp(10)
        for u in range(1, 4):
            a(f"ds_read_b128 v[{V_X+4*u}:{V_X+4*u+3}], v{V_LL} offset:{xoff(u)}")
        score(0, (1, 2))
        a(ldv if VL else ldv2)
        if opt.get("pubat", 11) == 10: a(pubn[0]); a(pubn[1])
        vchk = f"""
        s_waitcnt vmcnt({(1 if PUBA else 2 if opt.get("pubat") == 13 else 3) + 2 * VD + 2 * (KXB == 1)})
        v_and_b32 v{V_T0}, 1, v{V_AV+4}
        v_cmp_ne_u32 vcc, s{S_PHX}, v{V_T0}
        v_mov_b32 v{V_AV+1}, v{V_AV+4}
        v_mov_b32 v{V_AV+3}, v{V_AV+5}
        """.strip().split("\n")
        MX, TM = V_T1, V_S + 10
        P = V_X + 4
        sq = [(u, t) for t in range(3) for u in range(1, 4)]
        pk_at, pv_at = {0: (3, 4), 1: (w, 4 + w), 2: (1 + w, 5 + w), 3: (2 * w, 2 * w + 1)}[opt.get("pst2", 1)]
        for i, (u, t) in enumerate(sq):
            if i < 3: a(f"s_waitcnt lgkmcnt({2 - i})")
            score(u, (t,))
            if opt.get("pubat", 11) == 11:
                if i == pk_at: a(pubn[0])
                if i == pv_at: a(pubn[1])
            if KXB == 1:
                if i == (pk_at + 2) % 9: a(ldkx[0])
                if i == (pv_at + 2) % 9: a(ldkx[1])
        zero32(V_ACC)
        stamp(11)
        PB2 = opt.get("pubat", 11) in (12, 13)
        a(f"""
        {pubn[0] if PB2 else "s_nop 0"}
        v_max3_f32 v{MX}, v{V_S}, v{V_S+1}, v{V_S+2}
        {pubn[1] + chr(10) + "s_nop 0" if opt.get("pubat") == 12 else "s_nop 1"}
        v_max3_f32 v{MX}, v{MX}, v{V_S+3}, v{V_S+4}
        v_max3_f32 v{MX}, v{MX}, v{V_S+5}, v{V_S+6}
        v_max_f32 v{MX}, v{MX}, v{V_S+7}
        v_max3_f32 v{TM}, v{MX}, v{V_S+8}, v{V_S+9}
        v_max3_f32 v{MX}, v{MX}, v{V_S+8}, v{V_S+9}
        s_nop 1
        v_permlane16_swap_b32 v{MX}, v{TM}
        v_max_f32 v{MX}, v{MX}, v{TM}
        v_max_f32 v{TM}, v{MX}, v{TM}
        s_nop 1
        v_permlane32_swap_b32 v{MX}, v{TM}
        v_max_f32 v{MX}, v{MX}, v{TM}
        v_mul_f32 v{MX}, s{S_C}, v{MX}
        """)
        if VD:
            idx = [i for i, l in enumerate(a.lines) if l.strip().startswith("s_nop")][-4:]
            a.lines.insert(idx[w], "    " + ldvx[0])
        for i in range(0, 10, 2):
            a(f"v_pk_fma_f32 v[{V_S+i}:{V_S+i+1}], v[{V_S+i}:{V_S+i+1}], s[{S_C}:{S_C+1}], v[{MX}:{MX+1}] op_sel_hi:[1,0,0] neg_lo:[0,0,1] neg_hi:[0,0,1]")
        for i in range(8):
            a(f"v_exp_f32 v{V_S+i}, v{V_S+i}")
            if i >= 2 and i % 2 == 0:
                a(f"v_cvt_pk_bf16_f32 v{P+i//2-1}, v{V_S+i-2}, v{V_S+i-1}")
            if VD and i == 2 * w + 1: a(ldvx[1])
        O, SM = DO, V_X + 12
        OB = V_S + 4
        a(f"""
        v_exp_f32 v{V_S+8}, v{V_S+8}
        v_cvt_pk_bf16_f32 v{P+3}, v{V_S+6}, v{V_S+7}
        v_exp_f32 v{V_S+9}, v{V_S+9}
        {vchk[0]}
        """)
        stamp(12)
        a(f"""
        v_mfma_f32_16x16x32_bf16 v[{SM}:{SM+3}], v[{V_ONE}:{V_ONE+3}], v[{P}:{P+3}], 0
        {vchk[1]}
        v_cvt_pk_bf16_f32 v{P+4}, v{V_S+8}, v{V_S+9}
        v_mfma_f32_16x16x32_bf16 v[{O}:{O+3}], v[{V_VX}:{V_VX+3}], v[{P}:{P+3}], 0
        {vchk[2]}
        v_cvt_pk_bf16_f32 v{P+5}, v{V_S+8}, v{V_S+9}
        v_mfma_f32_16x16x32_bf16 v[{O+4}:{O+7}], v[{V_VX+4}:{V_VX+7}], v[{P}:{P+3}], 0
        {vchk[3]}
        {vchk[4]}
        v_mfma_f32_16x16x16_bf16 v[{SM}:{SM+3}], v[{OZ}:{OZ+1}], v[{P+4}:{P+5}], v[{SM}:{SM+3}]
        s_cbranch_vccnz {L}_pv0
        {L}_pv2:
        v_mfma_f32_16x16x16_bf16 v[{O}:{O+3}], v[{V_AV}:{V_AV+1}], v[{P+4}:{P+5}], v[{O}:{O+3}]
        v_mfma_f32_16x16x16_bf16 v[{O+4}:{O+7}], v[{V_AV+2}:{V_AV+3}], v[{P+4}:{P+5}], v[{O+4}:{O+7}]
        """)
        stamp(13)
        nn = 0
        if opt.get("vxp", 13) == 13 and not VD:
            a(ldvx[0]); a(ldvx[1]); nn = 2
        if opt.get("pubat") == 13: a(pubn[1]); nn += 1
        a.nops(5 - nn)
        a(f"""
        v_rcp_f32 v{SM}, v{SM}
        s_mov_b64 exec, s[{S_MQ}:{S_MQ+1}]
        v_pk_mul_f32 v[{O}:{O+1}], v[{O}:{O+1}], v[{SM}:{SM+1}] op_sel_hi:[1,0]
        v_pk_mul_f32 v[{O+2}:{O+3}], v[{O+2}:{O+3}], v[{SM}:{SM+1}] op_sel_hi:[1,0]
        v_pk_mul_f32 v[{O+4}:{O+5}], v[{O+4}:{O+5}], v[{SM}:{SM+1}] op_sel_hi:[1,0]
        v_pk_mul_f32 v[{O+6}:{O+7}], v[{O+6}:{O+7}], v[{SM}:{SM+1}] op_sel_hi:[1,0]
        v_cvt_pk_bf16_f32 v{OB}, v{O}, v{O+1}
        v_cvt_pk_bf16_f32 v{OB+1}, v{O+2}, v{O+3}
        v_cvt_pk_bf16_f32 v{OB+2}, v{O+4}, v{O+5}
        v_cvt_pk_bf16_f32 v{OB+3}, v{O+6}, v{O+7}
        """)
        OA = V_X + 4
        stamp(14)
        def save(n):
            a(f"""
            s_waitcnt vmcnt({n})
            v_mov_b32 v{V_PB1}, v{V_X}
            v_mov_b32 v{V_PB1+1}, v{V_X+1}
            v_mov_b32 v{V_PB1+2}, v{V_X+2}
            v_mov_b32 v{V_PB1+3}, v{V_X+3}
            s_add_u32 s{S_KVM}, s{S_KVM}, {32*8192}
            s_add_u32 s{S_KVV}, s{S_KVV}, {32*8192}
            """)
        a(f"ds_write_b128 v{V_LL}, v[{OB}:{OB+3}] offset:{LDS_O - LDS_MEM + (w >> 1) * 1024 + (w & 1) * 32 - 32}")
        a("s_mov_b64 exec, -1")
        WB = dict(zip(range(NL, 16), [88, V_AV, 96, 104, 80, 88]))
        NPRE = min(opt.get("npre", 3 if NL == 10 else 0), 16 - NL)
        LAST = 15 if NL == 10 else 16
        for op in range(NL, NL + NPRE): lop_read(op, WB[op])
        if opt.get("vxp", 13) == 14: a(ldvx[0]); a(ldvx[1])
        if KXB == 2: a(ldkx[0]); a(ldkx[1])
        if full and w == 0 and PUBA:
            a(f"v_mov_b32 v{V_T0}, s{S_STEP}")
            a(f"buffer_store_dword v{V_T0}, v{V_FL}, {SRD}, 0 offen sc1")
        a(f"""
        s_waitcnt lgkmcnt({2 * NPRE})
        s_barrier
        ds_read_b128 v[{OA}:{OA+3}], v{V_LL} offset:{LDS_O - LDS_MEM}
        ds_read_b128 v[{OA+4}:{OA+7}], v{V_LL} offset:{LDS_O - LDS_MEM + 1024}
        """)
        for op in range(NL + NPRE, LAST): lop_read(op, WB[op])
        NPOST = 2 * (LAST - NL - NPRE)
        stamp(15)
        sal = f"""
        s_add_u32 s{S_STEP}, s{S_STEP}, 1
        s_xor_b32 s{S_XIN}, s{S_XIN}, {MB}
        s_xor_b32 s{S_XOUT}, s{S_XOUT}, {MB}
        s_xor_b32 s{S_VIN}, s{S_VIN}, {MB}
        s_xor_b32 s{S_VOUT}, s{S_VOUT}, {MB}
        s_lshr_b32 s{S_PHX}, s{S_STEP}, 1
        s_and_b32 s{S_PHX}, s{S_PHX}, 1
        s_xor_b32 s{S_PHX}, s{S_PHX}, 1
        s_xor_b32 s{S_MEMR}, s{S_MEMR}, 16384
        s_xor_b32 s{S_MEMW}, s{S_MEMW}, 16384
        s_add_u32 s{S_KX}, s{S_KX}, {0 if opt.get('nok') else 32*8192}
        s_add_u32 s{S_VX}, s{S_VX}, {0 if opt.get('nov') else 32*8192}
        """.strip().split("\n")

        def wo(i):
            T, kp = WO_ORDER[i]
            b = V_WO + 8 * i if i < NL else WB[i]
            smf(V_ACC + 4 * T, OA + 4 * kp, f"v[{b}:{b+7}]")
        def fold(T, pk):
            A = V_ACC + 4 * T
            GR = V_ACC + 16 * (T >> 2)
            if pk:
                Ls = [f"v_pk_add_f32 v[{A}:{A+1}], v[{A}:{A+1}], v[{A+2}:{A+3}]"]
            else:
                Ls = [f"v_add_f32 v{A}, v{A}, v{A+2}", f"v_add_f32 v{A+1}, v{A+1}, v{A+3}"]
            Ls.append(f"v_cvt_pk_bf16_f32 v{GR+(T&3)}, v{A}, v{A+1}")
            if T & 3 == 0:
                Ls.append(f"v_and_or_b32 v{GR}, v{GR}, -2, s{S_PHP}")
            if T & 3 == 3:
                Ls.append(f"buffer_store_dwordx4 v[{GR}:{GR+3}], v{V_OPART}, {SRD}, s{S_PARTW if T < 4 else S_PARTW2} offen {IS}")
            return Ls
        NG = opt.get("wog", 1)
        NPK = opt.get("npk", 4)
        ready, pending, since = [], {}, {}
        a(f"s_waitcnt lgkmcnt({NPOST + 1})")
        def tick(n=1):
            for T in list(since):
                since[T] += n
                if since[T] >= 8:
                    ready.extend(fold(T, T >= NPK)); del since[T]
        for i in range(16):
            if i == 1: a(f"s_waitcnt lgkmcnt({NPOST})"); tick()
            if i == NL or (i == 15 and NL == 10): a("s_waitcnt lgkmcnt(0)"); tick()
            wo(i); tick()
            if i & 1: since[i >> 1] = 0
            if i == 10 and NL == 10:
                lop_read(15, WB[15]); tick(2)
            else:
                n = NG if opt.get("wog3", 0) <= i < opt.get("wog2", 16) else 2
                for _ in range(n):
                    if ready and "v_pk" not in ready[0]: a(ready.pop(0)); tick()
                for _ in range(3 if i < 4 else 0):
                    if sal: a(sal.pop(0)); tick()
        while ready or since:
            if ready: a(ready.pop(0))
            else: a("s_nop 0")
            tick()
        stamp(16)
        for l in sal: a(l)
        if PUBA: save(5 if (full and w == 0) else 4)
        else: a(f"s_add_u32 s{S_KVM}, s{S_KVM}, {32*8192}\ns_add_u32 s{S_KVV}, s{S_KVV}, {32*8192}")
        if opt.get("steps") and w == 1:
            a(f"""
            s_memrealtime s[62:63]
            s_lshl_b32 s64, s{S_J}, 5
            s_add_u32 s64, s64, s{S_H}
            s_lshl_b32 s64, s64, 6
            s_add_u32 s64, s64, s{S_STEP}
            s_lshl_b32 s64, s64, 2
            s_add_u32 s64, s64, {WS_PROF + 4*MB}
            s_waitcnt lgkmcnt(0)
            v_mov_b32 v{V_T0}, s62
            s_mov_b64 exec, 1
            buffer_store_dword v{V_T0}, off, {SRD}, s64
            s_mov_b64 exec, -1
            """)
        top()
        if KVW:
            a(f"""
            s_add_u32 s{S_T0}, s{S_STEP}, 2
            s_cmp_gt_u32 s{S_KN}, s{S_T0}
            s_cbranch_scc1 {L}_kvs
            """)
            kv_eval(V_OMR)
            kv_block(V_OMR, 1)
            a.label(f"{L}_kvs")
        RB, RD = V_M + 4, V_M + 20
        a(f"v_mov_b32 v{RD+6}, -1\nv_mov_b32 v{RD+7}, -1")
        if opt.get("preC") == "ack":
            if EO:
                a(f"s_waitcnt vmcnt({opt.get('ew', 1)})")
                a(f"s_bitcmp0_b32 s{S_H}, 2\ns_cbranch_scc1 {L}_cgo")
            a("s_waitcnt vmcnt(0)"); a.nops(opt.get("xC", 0))
            a.label(f"{L}_cgo")
        elif opt.get("preC") == "ack1": a("s_waitcnt vmcnt(1)")
        elif opt.get("preC"): a.nops(opt["preC"])
        def cissue(b):
            for d in range(8):
                if PL: a(f"buffer_load_dword v{RB+8*b+d}, v{V_OCR}, {SRD}, s{S_PARTR2} offen offset:{256*d} sc1")
                else: a(f"buffer_load_dword v{RB+8*b+d}, v{V_OCR}, {SRD}, s{S_PARTR if d < 4 else S_PARTR2} offen offset:{1024*(d&3) + 64*w} sc1")
        def ctry(b, behind, nxt=None):
            r = RB + 8 * b
            a(f"""
            s_waitcnt vmcnt({behind + 4})
            v_mfma_f32_16x16x32_bf16 v[{RD}:{RD+3}], v[{r}:{r+3}], v[{V_SELR}:{V_SELR+3}], 0
            v_bitop3_b32 v{V_T0}, s{S_PHP}, v{r}, v{r+1} bitop3:0x7e
            v_bitop3_b32 v{V_T1}, s{S_PHP}, v{r+2}, v{r+3} bitop3:0x7e
            s_waitcnt vmcnt({behind + 2})
            v_or_b32 v{V_T0}, v{V_T0}, v{V_T1}
            v_bitop3_b32 v{V_T1}, s{S_PHP}, v{r+4}, v{r+5} bitop3:0x7e
            s_waitcnt vmcnt({behind})
            v_mfma_f32_16x16x32_bf16 v[{RD}:{RD+3}], v[{r+4}:{r+7}], v[{V_SELR}:{V_SELR+3}], v[{RD}:{RD+3}]
            v_bitop3_b32 v{RD+4}, s{S_PHP}, v{r+6}, v{r+7} bitop3:0x7e
            v_or3_b32 v{V_T0}, v{V_T0}, v{V_T1}, v{RD+4}
            v_and_b32 v{V_T0}, v{V_TAGM}, v{V_T0}
            v_cmp_ne_u32 vcc, 0, v{V_T0}
            """)
        def cfin():
            a(f"""
            v_cvt_pk_bf16_f32 v{RD+4}, v{RD}, v{RD+1}
            v_cvt_pk_bf16_f32 v{RD+5}, v{RD+2}, v{RD+3}
            v_min_u32 v{RD+4}, -2, v{RD+4}
            """)
        CD = opt.get("cd", 0)
        if CD:
            cissue(0); a.nops(CD); cissue(1)
            if opt.get("tot"): a("s_add_u32 s87, s87, 1")
            ctry(0, 8)
            a(f"s_cbranch_vccnz {L}_cslow")
            a.label(f"{L}_cok")
            a("s_nop 2"); cfin()
        elif C4:
            c4l = [f"buffer_load_dwordx4 v[{RB+4*i}:{RB+4*i+3}], v{V_L16}, {SRD}, s{S_PARTR2} offen offset:{1024*i} sc1" for i in range(2)]
            a(c4l[0]); a(c4l[1])
            a.label(f"{L}_pc")
            watchdog(30, 3)
            a(f"""
            s_waitcnt vmcnt(1)
            v_mfma_f32_16x16x32_bf16 v[{RD}:{RD+3}], v[{V_SELR}:{V_SELR+3}], v[{RB}:{RB+3}], 0
            s_waitcnt vmcnt(0)
            v_mfma_f32_16x16x32_bf16 v[{RD}:{RD+3}], v[{V_SELR}:{V_SELR+3}], v[{RB+4}:{RB+7}], v[{RD}:{RD+3}]
            v_bitop3_b32 v{V_T0}, s{S_PHP}, v{RB}, v{RB+4} bitop3:0x7e
            v_and_b32 v{V_T0}, 1, v{V_T0}
            v_cmp_ne_u32 vcc, 0, v{V_T0}
            """)
            if C4 == 1:
                a(c4l[0]); a(c4l[1]); a.nops(3)
            else:
                a.nops(5)
            a(f"""
            v_add_f32_dpp v{RD}, v{RD}, v{RD} row_ror:4 row_mask:0xf bank_mask:0xf
            v_add_f32_dpp v{RD+1}, v{RD+1}, v{RD+1} row_ror:4 row_mask:0xf bank_mask:0xf
            {f"s_cbranch_vccnz {L}_pc" if C4 == 1 else f"s_cbranch_vccnz {L}_c4f"}
            v_add_f32_dpp v{RD}, v{RD}, v{RD} row_ror:8 row_mask:0xf bank_mask:0xf
            v_add_f32_dpp v{RD+1}, v{RD+1}, v{RD+1} row_ror:8 row_mask:0xf bank_mask:0xf
            v_cvt_pk_bf16_f32 v{RD+4}, v{RD}, v{RD+1}
            v_min_u32 v{RD+4}, -2, v{RD+4}
            buffer_store_dword v{RD+4}, v{V_OMP}, {SRD}, s{S_MEMR} offen offset:{w * 256} {IS}
            buffer_store_dword v{RD+6}, v{V_OMP}, {SRD}, s{S_MEMW} offen offset:{w * 256} {IS}
            """)
        elif opt.get("cm"):
            CW = opt["cm"]
            def cmid(b):
                a(f"s_waitcnt vmcnt({8 - CW})")
                cissue(1 - b)
                ctry(b, 8); a("s_nop 3"); cfin()
            cissue(0)
            a.label(f"{L}_pc")
            watchdog(30, 3)
            cmid(0)
            a(f"s_cbranch_vccnz {L}_cs2")
            a.label(f"{L}_cok")
        elif opt.get("cearly", 0):
            a.label(f"{L}_pc")
            cissue(0)
            watchdog(30, 3)
            ctry(0, 0)
            a(f"s_cbranch_vccnz {L}_pc")
            a("s_nop 2"); cfin()
        else:
            a.label(f"{L}_pc")
            cissue(0)
            watchdog(30, 3)
            ctry(0, 0); a("s_nop 3"); cfin()
            a(f"s_cbranch_vccnz {L}_pc")
        if C4: a(f"s_xor_b32 s{S_PHP}, s{S_PHP}, 1")
        else: a(f"""
        {"" if opt.get("amask") else f"s_mov_b64 exec, s[{S_MLO}:{S_MLO+1}]"}
        buffer_store_dwordx2 v[{RD+4}:{RD+5}], v{V_OMP}, {SRD}, s{S_MEMR} offen offset:{w * (256 if ML else 64)} {IS}
        buffer_store_dwordx2 v[{RD+6}:{RD+7}], v{V_OMP}, {SRD}, s{S_MEMW} offen offset:{w * (256 if ML else 64)} {IS}
        s_mov_b64 exec, -1
        s_xor_b32 s{S_PHP}, s{S_PHP}, 1
        """)
        stamp(17)
        a(f"s_branch {L}_loop")
        a.label(f"{L}_last")
        if PUBA: a(f"s_add_u32 s{S_KVM}, s{S_KVM}, {32*8192}\ns_add_u32 s{S_KVV}, s{S_KVV}, {32*8192}")
        a(pubd[0].replace(f"v[{V_PB1}:{V_PB1+3}]", f"v[{V_X}:{V_X+3}]")); a(pubd[1])
        a(f"s_branch {name}_end")
        if EO:
            a.label(f"{L}_efail")
            a(ldE)
            watchdog(10 + w, 0)
            a.nops(6)
            for i in range(4 * NBE):
                a(f"v_mov_b32 v{V_AQ+i}, 0")
            a(f"s_waitcnt vmcnt(0)\ns_branch {L}_ea")
            a.label(f"{L}_ofail")
            if opt.get("tot"): a("s_add_u32 s84, s84, 0x10000")
            watchdog(14 + w)
            a(f"""
            s_waitcnt vmcnt(0)
            ds_write_b128 v{V_LL}, v[{m1}:{m1+3}] offset:{k1*1024}
            v_max_u32 v{V_T0}, v{m1}, v{m1+2}
            v_cmp_eq_u32 vcc, -1, v{V_T0}
            {ldO}
            s_cbranch_vccz {L}_ob
            s_branch {L}_ofail
            """)
        a.label(f"{L}_pafail")
        if AD:
            if opt.get("tot"): a("s_add_u32 s84, s84, 1")
            a.nops(6)
            for i in range(4 * min(NB, 4)):
                a(f"v_mov_b32 v{V_AQ+i}, 0")
            a.label(f"{L}_pa2")
            a(f"""
            s_waitcnt vmcnt(0)
            v_max3_u32 v{V_T0}, v{n0}, v{n0+2}, v{n1}
            v_max_u32 v{V_T0}, v{V_T0}, v{n1+2}
            v_cmp_eq_u32 vcc, -1, v{V_T0}
            """)
            for i in range(0, 4, 2):
                a(f"v_pk_mov_b32 v[{m0+i}:{m0+i+1}], v[{n0+i}:{n0+i+1}], v[{n0+i}:{n0+i+1}] op_sel:[0,1]")
                a(f"v_pk_mov_b32 v[{m1+i}:{m1+i+1}], v[{n1+i}:{n1+i+1}], v[{n1+i}:{n1+i+1}] op_sel:[0,1]")
            a(f"""
            s_cbranch_vccz {L}_pa
            buffer_load_dwordx4 v[{n0}:{n0+3}], v{V_L16 if ML else V_OMR}, {SRD}, s{S_T0} offen sc1
            buffer_load_dwordx4 v[{n1}:{n1+3}], v{V_L16 if ML else V_OMR}, {SRD}, s{S_T0} offen offset:1024 sc1
            """)
            watchdog(10 + w, 0)
            a(f"s_branch {L}_pa2")
        else:
            if not opt.get("are"): a(lda)
            watchdog(10 + w, 0)
            a.nops(8)
            for i in range(4 * min(NB, 4)):
                a(f"v_mov_b32 v{V_AQ+i}, 0")
            a(f"s_branch {L}_pa" if not EO else "s_endpgm")

        if C4 == 2:
            a.label(f"{L}_c4f")
            a(c4l[0]); a(c4l[1]); a(f"s_branch {L}_pc")
        if opt.get("cm"):
            a.label(f"{L}_cs2")
            watchdog(30, 3)
            cmid(1)
            a(f"s_cbranch_vccz {L}_cok\ns_branch {L}_pc")
        if opt.get("cd"):
            a.label(f"{L}_cslow")
            cissue(0)
            a.label(f"{L}_pc")
            watchdog(30, 3)
            ctry(1, 8)
            a(f"s_cbranch_vccz {L}_cok")
            cissue(1)
            watchdog(30, 3)
            ctry(0, 8)
            a(f"s_cbranch_vccz {L}_cok")
            cissue(0)
            a(f"s_branch {L}_pc")

        a.label(f"{L}_xslow")
        def xlight(b):
            a(f"""
            s_waitcnt vmcnt(2)
            v_bitop3_b32 v{V_T0}, s{S_PHX}, v{PB[b]}, v{PB[b]+2} bitop3:0x7e
            v_mfma_f32_16x16x16_bf16 v[{XD}:{XD+3}], v[{PB[b]}:{PB[b]+1}], v[{V_SEL}:{V_SEL+1}], v[{DO}:{DO+3}]
            v_and_b32 v{V_T0}, 1, v{V_T0}
            v_mfma_f32_16x16x16_bf16 v[{XD+4}:{XD+7}], v[{PB[b]+2}:{PB[b]+3}], v[{V_SEL}:{V_SEL+1}], v[{DO+4}:{DO+7}]
            v_cmp_ne_u32 vcc, 0, v{V_T0}
            s_cbranch_vccz {L}_xgot
            """)
        assert vm_x[-1] == "x1"
        for b in (0, 1):
            ldy(b); ldx(b)
            watchdog(20, 1)
            xlight(1 - b)
        a(f"s_branch {L}_xslow")
        a.label(f"{L}_xgot")
        a(f"""
        s_nop 3
        v_cvt_pk_bf16_f32 v{V_X}, v{XD}, v{XD+1}
        v_cvt_pk_bf16_f32 v{V_X+1}, v{XD+2}, v{XD+3}
        v_cvt_pk_bf16_f32 v{V_X+2}, v{XD+4}, v{XD+5}
        v_cvt_pk_bf16_f32 v{V_X+3}, v{XD+6}, v{XD+7}
        ds_write_b128 v{V_LL}, v[{V_X}:{V_X+3}] offset:{xoff(0)}
        s_branch {L}_xok
        """)

        a.label(f"{L}_pv0")
        if opt.get("tot"): a("s_add_u32 s86, s86, 1")
        a(f"s_waitcnt vmcnt({(0 if PUBA else 1 if opt.get('pubat') == 13 else 2) + 2 * VD + 2 * (KXB == 1)})\ns_branch {L}_pv1")
        a.label(f"{L}_pv")
        watchdog(21, 2)
        a(f"""
        buffer_load_dwordx2 v[{V_PB1}:{V_PB1+1}], v{V_OVM}, {SRD}, s{S_VIN} offen sc1
        s_waitcnt vmcnt(0)
        {L}_pv1:
        v_and_b32 v{V_T0}, 1, v{V_PB1}
        v_cmp_ne_u32 vcc, s{S_PHX}, v{V_T0}
        v_mov_b32 v{V_AV+1}, v{V_PB1}
        v_mov_b32 v{V_AV+3}, v{V_PB1+1}
        s_cbranch_vccnz {L}_pv
        s_branch {L}_pv2
        """)

    for w in range(4):
        wave_loop(w)
    a.label(f"{name}_end")
    a("s_mov_b64 exec, -1")
    if full:
        a(f"""
        v_mov_b32 v{V_T0}, 64
        s_waitcnt vmcnt(0)
        s_barrier
        s_cmp_lg_u32 s{S_WAVE}, 0
        s_cbranch_scc1 {name}_end2
        buffer_store_dword v{V_T0}, v{V_FL}, s[{S_WS}:{S_WS+3}], 0 offen sc1
        {name}_end2:
        """)
    if tstamp: tstamp()
    if opt.get("tot"):
        a(f"""
        s_memtime s[66:67]
        s_memrealtime s[68:69]
        s_waitcnt lgkmcnt(0)
        s_sub_u32 s89, s66, s98
        s_sub_u32 s88, s68, s96
        s_lshl_b32 s{S_T0}, s{S_J}, 5
        s_add_u32 s{S_T0}, s{S_T0}, s{S_H}
        s_lshl_b32 s{S_T0}, s{S_T0}, 2
        s_add_u32 s{S_T0}, s{S_T0}, s{S_WAVE}
        s_lshl_b32 s{S_T0}, s{S_T0}, 7
        s_add_u32 s{S_T0}, s{S_T0}, {WS_PROF}
        s_mov_b64 exec, 1
        """)
        for i in range(14, 20):
            a(f"v_mov_b32 v{V_T0}, s{70+i}")
            a(f"buffer_store_dword v{V_T0}, v{V_Z}, s[{S_WS}:{S_WS+3}], s{S_T0} offen offset:{4*i}")
        a("s_mov_b64 exec, -1")
    a("s_waitcnt vmcnt(0)")
    a("s_endpgm")
    if wd:
        a.label(f"{name}_wdexit")
        a(f"""
        s_mov_b64 exec, 1
        s_lshl_b32 s{S_T0}, s{S_STEP}, 8
        s_or_b32 s{S_T2}, s{S_T2}, s{S_T0}
        v_mov_b32 v{V_T0}, s{S_T2}
        v_mov_b32 v{V_T1}, 0
        s_lshl_b32 s{S_T0}, s{S_J}, 5
        s_add_u32 s{S_T0}, s{S_T0}, s{S_H}
        s_lshl_b32 s{S_T0}, s{S_T0}, 2
        s_add_u32 s{S_T0}, s{S_T0}, s{S_WAVE}
        s_lshl_b32 s{S_T0}, s{S_T0}, 2
        s_add_u32 s{S_T0}, s{S_T0}, {WS_PROF + MB}
        buffer_store_dword v{V_T0}, v{V_T1}, s[{S_WS}:{S_WS+3}], s{S_T0} offen
        s_endpgm
        """)


def gen_standalone(name, prof=False, opt={}, xa=0, xb=1):
    from gen_hop import ticket
    a = Asm(); a.kernel_begin(name)
    a(f"s_cmp_ge_u32 s2, 256\ns_cbranch_scc1 {name}_exit")
    a(f"""
    s_load_dwordx2 s[84:85], s[0:1], {KA_WS}
    s_waitcnt lgkmcnt(0)
    s_mov_b32 s86, {WS_BYTES}
    s_mov_b32 s87, 0x00020000
    """)
    global_init(a, name, 84)
    a("s_waitcnt vmcnt(0)\ns_barrier")
    ticket(a, name, 2)
    a(f"""
    s_cmp_eq_u32 s90, {xa}
    s_cselect_b32 s{S_J}, 0, 2
    s_cmp_eq_u32 s90, {xb}
    s_cselect_b32 s{S_J}, 1, s{S_J}
    s_cmp_ge_u32 s{S_J}, 2
    s_cbranch_scc1 {name}_exit
    s_cmp_ge_u32 s96, 32
    s_cbranch_scc1 {name}_exit
    s_mov_b32 s{S_H}, s96
    s_branch {name}_go
    {name}_exit:
    s_endpgm
    {name}_go:
    """)
    rec_body(a, name + "_r", "", prof=prof, wd=True, opt=opt)
    return (name, a.text(), kd(name, 512, sgpr=100, accum=256), 256, 256, LDS_REC)


if __name__ == "__main__":
    import sys, json
    V = eval(open(sys.argv[1]).read())
    ks = [gen_standalone(f"r{i}_kernel", **v) for i, v in enumerate(V)]
    write_file("rec.s", ks)
    json.dump(V, open("rec.json", "w"))
```

```python
from common import *
from gen_rec import WS_QX, WS_KX, WS_VT, WS_O, WS_KVM
from gen_qkv import WS_FL

FL_RP, FL_XF = 192, 256
SPAIR = 58
NEARLY = 4


class WoLoader:
    LDS_W = 81920
    def __init__(self, a, name, S_B, S_WV, opt):
        self.a, self.name, self.S_B, self.S_WV, self.opt = a, name, S_B, S_WV, opt
    def setup(self):
        a = self.a
        a(f"""
        s_load_dwordx2 s[52:53], s[0:1], {KA_WO}
        v_and_b32 v202, 63, v0
        s_and_b32 s58, s{self.S_B}, 31
        v_lshrrev_b32 v200, 2, v202
        v_lshlrev_b32 v200, 11, v200
        v_and_b32 v203, 3, v202
        v_lshl_add_u32 v200, v203, 4, v200
        s_lshl_b32 s56, s{self.S_WV}, 21
        s_lshl_b32 s57, s58, 6
        s_add_u32 s56, s56, s57
        v_add_u32 v200, s56, v200
        s_lshl_b32 s56, s{self.S_WV}, 14
        s_add_u32 s56, s56, {self.LDS_W}
        s_lshr_b32 s57, s58, 1
        s_lshl_b32 s57, s57, 12
        v_lshrrev_b32 v201, 5, v202
        v_bfe_u32 v204, v202, 2, 2
        v_lshl_add_u32 v201, v201, 3, v204
        v_lshlrev_b32 v201, 6, v201
        v_bfe_u32 v204, v202, 4, 1
        v_lshl_add_u32 v201, v204, 5, v201
        v_lshl_add_u32 v201, v203, 3, v201
        v_add_u32 v201, s56, v201
        s_waitcnt lgkmcnt(0)
        s_mov_b32 s54, {8*MB}
        s_mov_b32 s55, 0x00020000
        """)
    def issue(self, b):
        a = self.a
        for ks in range(16 * b, 16 * b + 16):
            a(f"s_add_u32 m0, s56, {(ks & 15) * 1024}")
            a(f"s_add_u32 s58, s57, {ks * 1024}")
            a(f"s_and_b32 s58, s58, 0xffff")
            a(f"s_lshl_b32 s58, s58, 5")
            if not self.opt.get("nowl"): a(f"buffer_load_dwordx4 v200, s[52:55], s58 offen lds")
    def consume(self, b):
        a = self.a
        a("s_waitcnt vmcnt(0)")
        for ks in range(16 * b, 16 * b + 16):
            for j in range(2):
                a(f"ds_read_b64_tr_b16 a[{4*ks+2*j}:{4*ks+2*j+1}], v201 offset:{(ks & 15) * 1024 + j * 256}")
            if ks & 3 == 3: a("s_waitcnt lgkmcnt(0)")
    def step(self, n):
        if n > 0: self.consume(n - 1)
        if n < 4: self.issue(n)


def schedule(start=(108, 108, 108, 108, 96, 84), dur=4.6, t0=22.0, step=2.1):
    free = list(start)
    masks = [0] * 6
    for s in range(SPAIR - 6):
        g = min(range(6), key=lambda i: (round(free[i], 3), -i))
        free[g] = max(free[g], t0 + step * s) + dur
        masks[g] |= 1 << s
    order = sorted(range(6), key=lambda i: free[i])
    for g in range(6):
        masks[g] |= 1 << (SPAIR - 6 + g)
        for s in range(SPAIR + (g >> 1), 64, 3):
            masks[g] |= 1 << s
    return masks


def xo_role(a: Asm, name, S_B, S_WS, S_FAST, wd=None, opt={}, stamp=None):
    S_W, S_O = 8, 12
    S_WAVE, S_G, S_C, S_T0, S_T1, S_SEG, S_CST = 16, 17, 18, 20, 21, 22, 24
    S_QO, S_KO, S_VO, S_MO, S_OW, S_OR, S_OUT, S_NEED = 26, 27, 28, 29, 40, 41, 42, 43
    S_M0 = 44
    S_MASK = 60
    S_CUR, S_RET, S_SLOT, S_QO2, S_KO2, S_ROT = 45, 46, 47, 48, 49, 50
    SRD = f"s[{S_WS}:{S_WS+3}]"
    V_L, V_L16, V_T0, V_T1, V_T2 = 1, 2, 3, 4, 5
    V_OKM, V_OVM, V_OOW, V_TH0, V_TH1, V_NEG, V_FGP, V_FRP, V_FXF, V_FMY, V_LR, V_LW, V_OUT = 6, 7, 8, 9, 10, 11, 12, 13, 14, 15, 16, 17, 18
    V_HL = 19
    V_ONE = 20
    V_Q, V_K, V_V = 24, 40, 72
    V_KM, V_VM = 88, 104
    V_S, V_P, V_SM = 112, 124, 132
    V_O = 88
    V_ACC = 112
    V_F = 136
    NFR = 30

    def xst(reg):
        if not (stamp and opt.get("xst")): return
        l = a.newlabel(name + "_xs")
        a(f"s_cmp_lt_u32 s{reg}, 61\ns_cbranch_scc1 {l}")
        stamp()
        a.label(l)

    def poll_guard(code):
        if wd: wd(code)

    a(f"""
    s_load_dwordx2 s[{S_W}:{S_W+1}], s[0:1], {KA_WO}
    s_load_dwordx2 s[{S_O}:{S_O+1}], s[0:1], {KA_OUT}
    v_lshrrev_b32 v{V_T0}, 6, v0
    v_and_b32 v{V_L}, 63, v0
    v_readfirstlane_b32 s{S_WAVE}, v{V_T0}
    s_lshr_b32 s{S_G}, s{S_B}, 5
    s_and_b32 s{S_C}, s{S_B}, 31
    v_lshlrev_b32 v{V_L16}, 4, v{V_L}
    s_waitcnt lgkmcnt(0)
    s_mov_b32 s{S_W+2}, {8*MB}
    s_mov_b32 s{S_W+3}, 0x00020000
    s_mov_b32 s{S_O+2}, {8*MB}
    s_mov_b32 s{S_O+3}, 0x00020000
    s_mov_b32 s{S_CST}, 0x3e0293ee
    s_mov_b64 s[{S_MASK}:{S_MASK+1}], 0
    s_lshr_b32 s{S_ROT}, s{S_C}, 1
    s_lshl_b32 s{S_ROT}, s{S_ROT}, 12
    """)
    a(f"""
    s_lshl_b32 s{S_SLOT}, s{S_G}, 2
    s_add_u32 s{S_T0}, s{S_SLOT}, s{S_WAVE}
    s_lshl_b32 s{S_T0}, s{S_T0}, 18
    s_lshl_b32 s{S_T1}, s{S_C}, 13
    s_add_u32 s{S_T0}, s{S_T0}, s{S_T1}
    s_add_u32 s{S_T0}, s{S_T0}, {WS_O}
    v_lshlrev_b32 v26, 7, v{V_L}
    buffer_load_dword v28, v26, {SRD}, s{S_T0} offen sc1
    """)
    a(f"""
    v_and_b32 v{V_T1}, 15, v{V_L}             ; c
    v_lshrrev_b32 v{V_T2}, 4, v{V_L}          ; g
    v_lshrrev_b32 v{V_T0}, 2, v{V_T1}
    v_lshlrev_b32 v{V_T0}, 1, v{V_T0}
    v_and_b32 v26, 1, v{V_T1}
    v_add_u32 v{V_T0}, v{V_T0}, v26           ; m(c)
    v_lshlrev_b32 v{V_OKM}, 8, v{V_T0}
    v_lshl_add_u32 v{V_OKM}, v{V_T2}, 4, v{V_OKM}
    s_lshr_b32 s{S_T0}, s{S_WAVE}, 1
    s_lshl_b32 s{S_T0}, s{S_T0}, 10
    s_add_u32 s{S_T0}, s{S_T0}, 2048
    v_lshlrev_b32 v{V_OVM}, 3, v{V_L}
    v_add_u32 v{V_OVM}, s{S_T0}, v{V_OVM}
    v_lshlrev_b32 v{V_OOW}, 9, v{V_T2}
    v_lshl_add_u32 v{V_OOW}, v{V_T1}, 4, v{V_OOW}
    s_lshr_b32 s{S_T0}, s{S_WAVE}, 1
    s_lshl_b32 s{S_T0}, s{S_T0}, 12
    s_and_b32 s{S_T1}, s{S_WAVE}, 1
    s_lshl_b32 s{S_T1}, s{S_T1}, 8
    s_add_u32 s{S_T0}, s{S_T0}, s{S_T1}
    v_add_u32 v{V_OOW}, s{S_T0}, v{V_OOW}
    v_lshlrev_b32 v{V_HL}, 4, v{V_T1}
    v_and_b32 v26, 1, v{V_T2}
    v_lshl_add_u32 v{V_HL}, v26, 10, v{V_HL}
    v_lshrrev_b32 v26, 1, v{V_T2}
    v_lshl_add_u32 v{V_HL}, v26, 9, v{V_HL}
    s_and_b32 s{S_T0}, s{S_G}, 1
    s_lshl_b32 s{S_T0}, s{S_T0}, 8
    v_add_u32 v{V_HL}, s{S_T0}, v{V_HL}
    v_lshlrev_b32 v26, 2, v{V_T2}
    v_sub_u32 v{V_TH0}, v{V_T1}, v26
    s_lshr_b32 s{S_T1}, s{S_T1}, 4
    v_add_u32 v{V_TH0}, s{S_T1}, v{V_TH0}
    v_add_u32 v{V_TH1}, -16, v{V_TH0}
    v_mov_b32 v{V_NEG}, 0xff7fffff
    v_mov_b32 v{V_ONE}, 0x3f803f80
    v_mov_b32 v{V_ONE+1}, 0x3f803f80
    v_mov_b32 v{V_ONE+2}, 0x3f803f80
    v_mov_b32 v{V_ONE+3}, 0x3f803f80
    v_bfe_u32 v26, v{V_L}, 1, 2
    v_min_u32 v26, 2, v26
    s_lshl_b32 s{S_T0}, s{S_C}, 8
    s_add_u32 s{S_T0}, s{S_T0}, {WS_FL}
    v_lshlrev_b32 v{V_FGP}, 13, v26
    v_and_b32 v26, 1, v{V_L}
    v_lshl_add_u32 v{V_FGP}, v26, 7, v{V_FGP}
    v_add_u32 v{V_FGP}, s{S_T0}, v{V_FGP}
    v_and_b32 v26, 1, v{V_L}
    v_lshlrev_b32 v{V_FRP}, 7, v26
    s_add_u32 s{S_T0}, s{S_T0}, {FL_RP * 128}
    v_add_u32 v{V_FRP}, s{S_T0}, v{V_FRP}
    v_and_b32 v26, 7, v{V_L}
    s_lshl_b32 s{S_T0}, s{S_G}, 5
    s_lshl_b32 s{S_T1}, s{S_WAVE}, 3
    s_add_u32 s{S_T0}, s{S_T0}, s{S_T1}
    v_add_u32 v26, s{S_T0}, v26
    v_lshlrev_b32 v{V_FXF}, 7, v26
    v_add_u32 v{V_FXF}, {WS_FL + FL_XF * 128}, v{V_FXF}
    v_bfrev_b32 v26, 1
    s_lshl_b32 s{S_T0}, s{S_B}, 7
    s_add_u32 s{S_T0}, s{S_T0}, {WS_FL + FL_XF * 128}
    v_mov_b32 v27, s{S_T0}
    v_cmp_eq_u32 vcc, 0, v0
    s_lshl_b32 s{S_T0}, s{S_WAVE}, 12
    v_add_u32 v{V_LW}, s{S_T0}, v{V_L16}
    v_cndmask_b32 v{V_FMY}, v26, v27, vcc
    v_lshrrev_b32 v26, 3, v0
    v_and_b32 v27, 1, v0
    v_lshl_add_u32 v27, v27, 5, v26
    v_lshlrev_b32 v{V_LR}, 4, v27
    v_bfe_u32 v27, v0, 1, 2
    v_lshl_add_u32 v{V_LR}, v27, 10, v{V_LR}
    v_lshlrev_b32 v{V_OUT}, 12, v26
    v_and_b32 v27, 7, v0
    v_lshl_add_u32 v{V_OUT}, v27, 3, v{V_OUT}
    s_lshl_b32 s{S_T0}, s{S_C}, 6
    v_add_u32 v{V_OUT}, s{S_T0}, v{V_OUT}
    """)
    a("s_barrier")
    if stamp: stamp()
    masks = schedule(**opt.get("sched", {}))
    for g, mk in enumerate(masks):
        a(f"""
        s_cmp_eq_u32 s{S_G}, {g}
        s_cselect_b32 s{S_MASK}, {hex(mk & 0xffffffff)}, s{S_MASK}
        s_cselect_b32 s{S_MASK+1}, {hex(mk >> 32)}, s{S_MASK+1}
        """)
    a(f"s_ff1_i32_b64 s{S_SEG}, s[{S_MASK}:{S_MASK+1}]")

    def addr():
        a(f"""
        s_lshl_b32 s{S_KO}, s{S_SEG}, 18
        s_lshl_b32 s{S_T0}, s{S_C}, 13
        s_add_u32 s{S_KO}, s{S_KO}, s{S_T0}
        s_add_u32 s{S_MO}, s{S_KO}, {WS_KVM}
        s_and_b32 s{S_T0}, s{S_WAVE}, 1
        s_lshl_b32 s{S_T0}, s{S_T0}, 10
        s_add_u32 s{S_QO}, s{S_KO}, s{S_T0}
        s_add_u32 s{S_QO}, s{S_QO}, {WS_QX}
        s_lshr_b32 s{S_T0}, s{S_WAVE}, 1
        s_lshl_b32 s{S_T0}, s{S_T0}, 12
        s_add_u32 s{S_VO}, s{S_KO}, s{S_T0}
        s_add_u32 s{S_VO}, s{S_VO}, {WS_VT}
        s_add_u32 s{S_KO}, s{S_KO}, {WS_KX}
        s_add_u32 s{S_QO2}, s{S_QO}, 4096
        s_add_u32 s{S_KO2}, s{S_KO}, 4096
        """)
    Lq = [f"buffer_load_dwordx4 v[{V_Q+4*u}:{V_Q+4*u+3}], v{V_L16}, {SRD}, s{S_QO if u < 2 else S_QO2} offen offset:{(u & 1) * 2048}" for u in range(4)]
    Lq += [f"buffer_load_dwordx4 v[{V_K+4*i}:{V_K+4*i+3}], v{V_L16}, {SRD}, s{S_KO if i < 4 else S_KO2} offen offset:{(i & 3) * 1024}" for i in range(8)]
    Lq += [f"buffer_load_dwordx4 v[{V_V+4*i}:{V_V+4*i+3}], v{V_L16}, {SRD}, s{S_VO} offen offset:{i * 1024}" for i in range(4)]
    Lm = [f"buffer_load_dwordx4 v[{V_KM+4*u}:{V_KM+4*u+3}], v{V_OKM}, {SRD}, s{S_MO} offen offset:{64*u} sc1" for u in range(4)]
    Lm += [f"buffer_load_dwordx2 v[{V_VM+2*i}:{V_VM+2*i+1}], v{V_OVM}, {SRD}, s{S_MO} offen offset:{512*(i >> 1) + 2048*(i & 1)} sc1" for i in range(4)]

    a.label(f"{name}_gp")
    poll_guard(40)
    a(f"""
    buffer_load_dword v{V_T0}, v{V_FGP}, {SRD}, 0 offen sc1
    s_waitcnt vmcnt(0)
    v_cmp_ne_u32 vcc, 32, v{V_T0}
    s_cbranch_vccz {name}_gk
    s_sleep 8
    s_branch {name}_gp
    {name}_gk:
    s_mov_b32 s{S_RET}, 0
    """)
    addr()
    a.label(f"{name}_ldq")
    for l in Lq: a(l)
    a.label(f"{name}_att")
    a("s_waitcnt vmcnt(0)")
    for u in range(4):
        for kt in range(2):
            d = V_S + 4 * kt
            c = "0" if u == 0 else f"v[{d}:{d+3}]"
            k = V_K + 8 * u + 4 * kt
            a(f"v_mfma_f32_16x16x32_bf16 v[{d}:{d+3}], v[{k}:{k+3}], v[{V_Q+4*u}:{V_Q+4*u+3}], {c}")
    a(f"""
    s_lshl_b32 s{S_OR}, s{S_SLOT}, 18
    s_add_u32 s{S_OR}, s{S_OR}, {WS_O}
    s_lshl_b32 s{S_T0}, s{S_C}, 13
    s_add_u32 s{S_OW}, s{S_OR}, s{S_T0}
    s_lshl_b32 s{S_T0}, s{S_WAVE}, 16
    s_add_u32 s{S_OR}, s{S_OR}, s{S_T0}
    s_lshl_b32 s{S_OUT}, s{S_SEG}, 17
    v_mov_b32 v{V_P+6}, v{V_ONE}
    v_mov_b32 v{V_P+7}, 0
    """)
    for kt, th in ((0, V_TH0), (1, V_TH1)):
        for r in range(4):
            a(f"v_cmp_gt_i32 vcc, {r}, v{th}")
            a("s_nop 1")
            a(f"v_cndmask_b32 v{V_S+4*kt+r}, v{V_S+4*kt+r}, v{V_NEG}, vcc")
    a(f"s_cmp_eq_u32 s{S_RET}, 1\ns_cbranch_scc1 {name}_rd")
    a.label(f"{name}_rp")
    poll_guard(41)
    a(f"""
    buffer_load_dword v{V_T0}, v{V_FRP}, {SRD}, 0 offen sc1
    s_waitcnt vmcnt(0)
    v_cmp_ge_u32 vcc, s{S_SEG}, v{V_T0}
    s_cbranch_vccz {name}_rk
    s_sleep {opt.get('rps', 2)}
    s_branch {name}_rp
    {name}_rk:
    """)
    xst(S_SEG)
    for l in Lm: a(l)
    a.label(f"{name}_rd")
    d = V_S + 8
    for u in range(4):
        a(f"s_waitcnt vmcnt({7-u})")
        c = "0" if u == 0 else f"v[{d}:{d+3}]"
        a(f"v_mfma_f32_16x16x32_bf16 v[{d}:{d+3}], v[{V_KM+4*u}:{V_KM+4*u+3}], v[{V_Q+4*u}:{V_Q+4*u+3}], {c}")
    xst(S_SEG)
    MX, TM = V_T1, V_T0
    a(f"""
    v_max3_f32 v{MX}, v{V_S}, v{V_S+1}, v{V_S+2}
    v_max3_f32 v{MX}, v{MX}, v{V_S+3}, v{V_S+4}
    v_max3_f32 v{MX}, v{MX}, v{V_S+5}, v{V_S+6}
    s_waitcnt vmcnt(0)
    v_swap_b32 v{V_VM+1}, v{V_VM+2}
    v_swap_b32 v{V_VM+5}, v{V_VM+6}
    s_nop 1
    v_max3_f32 v{MX}, v{MX}, v{V_S+7}, v{V_S+8}
    v_max_f32 v{TM}, v{MX}, v{V_S+9}
    v_max_f32 v{MX}, v{MX}, v{V_S+9}
    s_nop 1
    v_permlane16_swap_b32 v{MX}, v{TM}
    v_max_f32 v{MX}, v{MX}, v{TM}
    v_max_f32 v{TM}, v{MX}, v{TM}
    s_nop 1
    v_permlane32_swap_b32 v{MX}, v{TM}
    v_max_f32 v{MX}, v{MX}, v{TM}
    v_mul_f32 v{MX}, s{S_CST}, v{MX}
    """)
    for i in range(10):
        a(f"v_fma_f32 v{V_S+i}, v{V_S+i}, s{S_CST}, -v{MX}")
    for i in range(10):
        a(f"v_exp_f32 v{V_S+i}, v{V_S+i}")
    a("s_nop 0")
    for i in range(5):
        a(f"v_cvt_pk_bf16_f32 v{V_P+i}, v{V_S+2*i}, v{V_S+2*i+1}")
    a(f"v_mov_b32 v{V_P+5}, v{V_P+4}")
    a("s_nop 1")
    a(f"v_mfma_f32_16x16x32_bf16 v[{V_SM}:{V_SM+3}], v[{V_ONE}:{V_ONE+3}], v[{V_P}:{V_P+3}], 0")
    for i in range(4):
        a(f"v_mfma_f32_16x16x32_bf16 v[{V_O+4*i}:{V_O+4*i+3}], v[{V_V+4*i}:{V_V+4*i+3}], v[{V_P}:{V_P+3}], 0")
    a("s_nop 1")
    a(f"v_mfma_f32_16x16x16_bf16 v[{V_SM}:{V_SM+3}], v[{V_P+6}:{V_P+7}], v[{V_P+4}:{V_P+5}], v[{V_SM}:{V_SM+3}]")
    for i in range(4):
        vb = V_VM + 2 * i
        a(f"v_mfma_f32_16x16x16_bf16 v[{V_O+4*i}:{V_O+4*i+3}], v[{vb}:{vb+1}], v[{V_P+4}:{V_P+5}], v[{V_O+4*i}:{V_O+4*i+3}]")
    a.nops(4)
    a(f"v_rcp_f32 v{V_SM}, v{V_SM}")
    a.nops(3)
    for i in range(8):
        a(f"v_pk_mul_f32 v[{V_O+2*i}:{V_O+2*i+1}], v[{V_O+2*i}:{V_O+2*i+1}], v[{V_SM}:{V_SM+1}] op_sel_hi:[1,0]")
    for i in range(8):
        a(f"v_cvt_pk_bf16_f32 v{V_S+i}, v{V_O+2*i}, v{V_O+2*i+1}")
    xst(S_SEG)
    a(f"""
    s_add_u32 s{S_NEED}, s{S_SEG}, 1
    v_mov_b32 v{V_T1}, s{S_NEED}
    s_cmp_eq_u32 s{S_FAST}, 1
    s_cbranch_scc1 {name}_of
    buffer_store_dwordx4 v[{V_S}:{V_S+3}], v{V_OOW}, {SRD}, s{S_OW} offen sc1
    buffer_store_dwordx4 v[{V_S+4}:{V_S+7}], v{V_OOW}, {SRD}, s{S_OW} offen offset:2048 sc1
    s_waitcnt vmcnt(0)
    s_barrier
    buffer_store_dword v{V_T1}, v{V_FMY}, {SRD}, 0 offen sc1
    s_branch {name}_od
    {name}_of:
    buffer_store_dwordx4 v[{V_S}:{V_S+3}], v{V_OOW}, {SRD}, s{S_OW} offen
    buffer_store_dwordx4 v[{V_S+4}:{V_S+7}], v{V_OOW}, {SRD}, s{S_OW} offen offset:2048
    s_waitcnt vmcnt(0)
    s_barrier
    buffer_store_dword v{V_T1}, v{V_FMY}, {SRD}, 0 offen
    {name}_od:
    s_mov_b32 s{S_CUR}, s{S_SEG}
    s_add_u32 s{S_T0}, s{S_SLOT}, 1
    s_and_b32 s{S_T0}, s{S_T0}, {opt.get('nslot', 4) - 1}
    s_andn2_b32 s{S_SLOT}, s{S_SLOT}, 3
    s_or_b32 s{S_SLOT}, s{S_SLOT}, s{S_T0}
    s_bitset0_b64 s[{S_MASK}:{S_MASK+1}], s{S_SEG}
    s_ff1_i32_b64 s{S_SEG}, s[{S_MASK}:{S_MASK+1}]
    s_min_u32 s{S_SEG}, s{S_SEG}, 64
    """)
    addr()
    xst(S_CUR)
    a.label(f"{name}_xp")
    poll_guard(42)
    a(f"""
    buffer_load_dword v{V_T0}, v{V_FXF}, {SRD}, 0 offen sc1
    s_waitcnt vmcnt(0)
    v_cmp_ge_u32 vcc, s{S_CUR}, v{V_T0}
    s_cbranch_vccnz {name}_xp
    """)
    def fload(i):
        d = V_F + 4 * (i % NFR)
        if i % 4 == 0:
            a(f"s_add_u32 s{S_T0}, s{S_ROT}, {i * 1024}")
            a(f"s_and_b32 s{S_T0}, s{S_T0}, 0xffff")
            a(f"s_add_u32 s{S_T0}, s{S_T0}, s{S_OR}")
        a(f"buffer_load_dwordx4 v[{d}:{d+3}], v{V_L16}, {SRD}, s{S_T0} offen offset:{(i & 3) * 1024} sc1")
    a(f"s_cmp_ge_u32 s{S_CUR}, {SPAIR}\ns_cbranch_scc1 {name}_half")
    PFD = opt.get('pfd', 12)
    q = []
    for i in range(PFD): fload(i); q.append(i)
    a(f"buffer_load_dword v{V_T2}, v{V_FRP}, {SRD}, 0 offen sc1"); q.append("rp")
    def mf(i, q):
        a(f"s_waitcnt vmcnt({len(q) - 1 - q.index(i)})")
        d = V_F + 4 * (i % NFR)
        c = "0" if i == 0 else f"v[{V_ACC}:{V_ACC+15}]"
        a(f"v_mfma_f32_32x32x16_bf16 v[{V_ACC}:{V_ACC+15}], a[{4*i}:{4*i+3}], v[{d}:{d+3}], {c}")
    for i in range(64 - PFD):
        mf(i, q)
        fload(i + PFD); q.append(i + PFD)
        if i == PFD:
            a(f"v_cmp_ge_u32 vcc, s{S_SEG}, v{V_T2}")
        if i == PFD + 1:
            a(f"s_cmp_eq_u64 vcc, 0\ns_cselect_b32 s{S_RET}, 1, 0")
    a(f"s_cmp_eq_u32 s{S_RET}, 1\ns_cbranch_scc1 {name}_pfx")
    for i in range(64 - PFD, 64): mf(i, q)
    a(f"s_branch {name}_pfd")
    a.label(f"{name}_pfx")
    extra = Lq + Lm
    for i in range(64 - PFD, 64):
        mf(i, q)
        for _ in range(-(-24 // PFD)):
            if extra: a(extra.pop(0)); q.append("x")
    assert not extra
    a.label(f"{name}_pfd")
    a.nops(12)
    for qq in range(4):
        a(f"ds_write_b128 v{V_LW}, v[{V_ACC+4*qq}:{V_ACC+4*qq+3}] offset:{1024*qq}")
    a("s_waitcnt lgkmcnt(0)\ns_barrier")
    for w in range(4):
        a(f"ds_read_b128 v[{V_ACC+4*w}:{V_ACC+4*w+3}], v{V_LR} offset:{4096*w}")
    a("s_waitcnt lgkmcnt(0)")
    fin = (f"""
    v_pk_add_f32 v[{V_ACC}:{V_ACC+1}], v[{V_ACC}:{V_ACC+1}], v[{V_ACC+4}:{V_ACC+5}]
    v_pk_add_f32 v[{V_ACC+2}:{V_ACC+3}], v[{V_ACC+2}:{V_ACC+3}], v[{V_ACC+6}:{V_ACC+7}]
    v_pk_add_f32 v[{V_ACC+8}:{V_ACC+9}], v[{V_ACC+8}:{V_ACC+9}], v[{V_ACC+12}:{V_ACC+13}]
    v_pk_add_f32 v[{V_ACC+10}:{V_ACC+11}], v[{V_ACC+10}:{V_ACC+11}], v[{V_ACC+14}:{V_ACC+15}]
    v_pk_add_f32 v[{V_ACC}:{V_ACC+1}], v[{V_ACC}:{V_ACC+1}], v[{V_ACC+8}:{V_ACC+9}]
    v_pk_add_f32 v[{V_ACC+2}:{V_ACC+3}], v[{V_ACC+2}:{V_ACC+3}], v[{V_ACC+10}:{V_ACC+11}]
    v_cvt_pk_bf16_f32 v{V_SM}, v{V_ACC}, v{V_ACC+1}
    v_cvt_pk_bf16_f32 v{V_SM+1}, v{V_ACC+2}, v{V_ACC+3}
    buffer_store_dwordx2 v[{V_SM}:{V_SM+1}], v{V_OUT}, s[{S_O}:{S_O+3}], s{S_OUT} offen {opt.get('ost', '')}
    """)
    a(fin)
    a(f"s_branch {name}_nxt")
    a.label(f"{name}_half")
    ACB = V_KM
    xst(S_CUR)
    def hload(i):
        d = V_F + 4 * (i % NFR)
        if i % 2 == 0:
            a(f"s_add_u32 s{S_T0}, s{S_ROT}, {i * 2048}")
            a(f"s_and_b32 s{S_T0}, s{S_T0}, 0xffff")
            a(f"s_add_u32 s{S_T0}, s{S_T0}, s{S_OR}")
        a(f"buffer_load_dwordx4 v[{d}:{d+3}], v{V_HL}, {SRD}, s{S_T0} offen offset:{(i & 1) * 2048} sc1")
    for i in range(PFD): hload(i)
    a(f"s_mov_b32 s{S_RET}, 0")
    for i in range(32):
        a(f"s_waitcnt vmcnt({min(31, i + PFD - 1) - i})")
        d = V_F + 4 * (i % NFR)
        for b, acc in enumerate((V_ACC, ACB)):
            c = "0" if i == 0 else f"v[{acc}:{acc+15}]"
            a(f"v_mfma_f32_32x32x16_bf16 v[{acc}:{acc+15}], a[{8*i+4*b}:{8*i+4*b+3}], v[{d}:{d+3}], {c}")
        if i + PFD < 32: hload(i + PFD)
    xst(S_CUR)
    a(f"s_mov_b32 vcc_lo, 0xffff0000\ns_mov_b32 vcc_hi, 0xffff0000")
    a.nops(10)
    for i in range(16):
        a(f"v_cndmask_b32 v{V_ACC+i}, v{V_ACC+i}, v{ACB+i}, vcc")
    for qq in range(4):
        a(f"ds_write_b128 v{V_LW}, v[{V_ACC+4*qq}:{V_ACC+4*qq+3}] offset:{1024*qq}")
    a(f"""
    s_waitcnt lgkmcnt(0)
    s_barrier
    s_cmp_ge_u32 s{S_WAVE}, 2
    s_cbranch_scc1 {name}_nxt
    """)
    for w in range(4):
        a(f"ds_read_b128 v[{V_ACC+4*w}:{V_ACC+4*w+3}], v{V_LR} offset:{4096*w}")
        a(f"ds_read_b128 v[{ACB+4*w}:{ACB+4*w+3}], v{V_LR} offset:{4096*w + 256}")
    a(f"""
    s_and_b32 s{S_T0}, s{S_G}, 1
    s_lshl_b32 s{S_T0}, s{S_T0}, 16
    s_add_u32 s{S_OUT}, s{S_OUT}, s{S_T0}
    s_waitcnt lgkmcnt(0)
    """)
    for i in range(0, 16, 2):
        a(f"v_pk_add_f32 v[{V_ACC+i}:{V_ACC+i+1}], v[{V_ACC+i}:{V_ACC+i+1}], v[{ACB+i}:{ACB+i+1}]")
    a(fin)
    a.label(f"{name}_nxt")
    if stamp: stamp()
    a(f"""
    s_cmp_eq_u32 s{S_RET}, 1
    s_cbranch_scc1 {name}_att
    s_cmp_lt_u32 s{S_SEG}, 64
    s_cbranch_scc1 {name}_ldq
    """)
```

```python
import sys, json
from common import *
from gen_rec import DBG_VOTE, global_init, rec_body, S_J, S_H, LDS_REC, WS_FL, WS_XB, WS_PROF
from gen_qkv import qkv_role
from gen_xo import xo_role, WoLoader
from gen_fft import gen_f0, gen_f1, gen_f2, gen_f3

DBG_F1, DBG_F2 = 72, 136
RECOPT = dict(preC="ack", preA="ack", nl=16, yp=15, xp=(16, 18), vs=17, vbar=1, fsp=4, are=1, f1e=1, f1s=2)


def xlut(order):
    lut = 0
    for logical, c in enumerate(order):
        lut |= logical << (4 * int(c))
    return hex(lut)


def gen_mega(name, force_slow=False, wd=False, bprof=False, ropt={}, rprof=False, opt={}):
    a = Asm(); a.kernel_begin(name)
    S_W, S_D = 84, 88
    S_B, S_X, S_TK, S_GT, S_VOTE, S_TS, S_WDC = 92, 93, 94, 95, 100, 101, 83
    S_FAST, S_VER, S_WV = 96, 97, 98
    ro = dict(RECOPT); ro.update(ropt)

    def ts(srd=S_W):
        if not bprof: return
        l = a.newlabel(name + "_ts")
        a(f"""
        {'s_memtime' if opt.get('cyc') else 's_memrealtime'} vcc
        s_waitcnt lgkmcnt(0)
        s_mov_b64 exec, 1
        v_accvgpr_read_b32 v255, a255
        v_mov_b32 v135, vcc_lo
        s_nop 0
        buffer_store_dword v135, off, s[{srd}:{srd+3}], s{S_TS}
        s_mov_b64 exec, -1
        s_add_u32 s{S_TS}, s{S_TS}, 4
        """.replace("v_accvgpr_read_b32 v255, a255\n", ""))

    def dmax(idx, srd=S_D, v=135):
        if not opt.get("dbgt"): return
        a(f"""
        s_memrealtime vcc
        s_waitcnt lgkmcnt(0)
        s_mov_b64 exec, 1
        v_mov_b32 v{v}, vcc_lo
        s_nop 0
        buffer_atomic_umax v{v}, off, s[{srd}:{srd+3}], 0 offset:{4*idx} sc1
        s_mov_b64 exec, -1
        """)

    def wdog(code):
        if not wd: return
        a(f"""
        s_add_u32 s{S_WDC}, s{S_WDC}, 1
        s_cmp_gt_u32 s{S_WDC}, 300000
        s_movk_i32 s82, {code}
        s_cbranch_scc1 {name}_wdx
        """)

    a(f"""
    s_cmp_ge_u32 s2, 256
    s_cbranch_scc1 {name}_exit
    s_load_dwordx2 s[{S_W}:{S_W+1}], s[0:1], {KA_WS}
    s_load_dwordx2 s[{S_D}:{S_D+1}], s[0:1], {KA_DBG}
    s_getreg_b32 s{S_X}, hwreg(HW_REG_XCC_ID)
    s_and_b32 s{S_X}, s{S_X}, 7
    s_lshl_b32 s{S_X}, s{S_X}, 2
    s_lshr_b32 s{S_X}, {xlut(opt.get('xmap', '01234567'))}, s{S_X}
    s_and_b32 s{S_X}, s{S_X}, 7
    v_lshrrev_b32 v1, 6, v0
    v_mov_b32 v4, 0
    v_readfirstlane_b32 s80, v1
    v_mov_b32 v5, 0
    v_mov_b32 v6, 0
    v_mov_b32 v7, 0
    s_mov_b32 s{S_WDC}, 0
    s_lshl_b32 s{S_TS}, s2, 2
    s_add_u32 s{S_TS}, s{S_TS}, s80
    s_lshl_b32 s{S_TS}, s{S_TS}, 8
    s_add_u32 s{S_TS}, s{S_TS}, {220*MB}
    s_waitcnt lgkmcnt(0)
    s_mov_b32 s{S_W+2}, {WS_BYTES}
    s_mov_b32 s{S_W+3}, 0x00020000
    s_mov_b32 s{S_D+2}, 256
    s_mov_b32 s{S_D+3}, 0x00020000
    """)
    ts()
    if opt.get("cpf"):
        a(f"""
        s_getpc_b64 s[78:79]
        v_lshlrev_b32 v9, 7, v0
        """)
        for i in range(opt["cpf"]):
            a(f"global_load_dword v{10+i}, v9, s[78:79]")
            a("v_add_u32 v9, 0x8000, v9")
    PX = opt.get("px", 2)
    a(f"""
    s_mov_b32 s{S_WV}, s80
    s_cmp_lg_u32 s80, 0
    s_cbranch_scc1 {name}_st0
    v_mov_b32 v10, 1
    s_lshl_b32 s81, s{S_X}, 5
    s_mov_b64 exec, 1
    buffer_atomic_add v10, off, s[{S_D}:{S_D+3}], s81 offset:4 sc0
    s_lshl_b32 s81, s2, 7
    s_add_u32 s81, s81, {WS_FL}
    s_mov_b64 exec, 3
    v_lshlrev_b32 v1, 15, v0
    buffer_store_dword v4, v1, s[{S_W}:{S_W+3}], s81 offen sc1
    s_mov_b64 exec, -1
    {name}_st0:
    """)
    global_init(a, name, S_W)
    a(f"""
    s_cmp_lg_u32 s80, 0
    s_cbranch_scc1 {name}_st1
    s_mov_b64 exec, 1
    s_waitcnt vmcnt(4)
    ds_write_b32 v4, v10
    s_mov_b64 exec, -1
    s_waitcnt lgkmcnt(0)
    {name}_st1:
    s_barrier
    ds_read_b32 v2, v4
    s_waitcnt lgkmcnt(0)
    v_readfirstlane_b32 s{S_TK}, v2
    s_barrier
    s_sub_u32 s81, s{S_X}, {PX}
    s_cmp_ge_u32 s81, 2
    s_cbranch_scc1 {name}_nopr
    s_cmp_lg_u32 s80, 0
    s_cbranch_scc1 {name}_prd
    v_lshlrev_b32 v1, 4, v0
    s_and_b32 s81, s2, 127
    s_lshl_b32 s81, s81, 14
    s_add_u32 s81, s81, {WS_XB}
    s_add_u32 s77, s81, 8192
    buffer_store_dwordx4 v[4:7], v1, s[{S_W}:{S_W+3}], s81 offen sc1
    buffer_store_dwordx4 v[4:7], v1, s[{S_W}:{S_W+3}], s77 offen sc1
    s_waitcnt vmcnt(0)
    s_memtime s[70:71]
    buffer_store_dwordx4 v[4:7], v1, s[{S_W}:{S_W+3}], s81 offen sc1
    s_waitcnt vmcnt(0)
    s_memtime s[72:73]
    buffer_store_dwordx4 v[4:7], v1, s[{S_W}:{S_W+3}], s77 offen sc1
    s_waitcnt vmcnt(0)
    buffer_store_dwordx4 v[4:7], v1, s[{S_W}:{S_W+3}], s77 offen sc1
    s_waitcnt vmcnt(0)
    s_memtime s[74:75]
    buffer_store_dwordx4 v[4:7], v1, s[{S_W}:{S_W+3}], s81 offen sc1
    s_waitcnt vmcnt(0)
    s_memtime s[76:77]
    s_waitcnt lgkmcnt(0)
    s_sub_u32 s76, s76, s74
    s_sub_u32 s74, s74, s72
    s_sub_u32 s72, s72, s70
    s_add_u32 s72, s72, s76
    s_cmp_lt_u32 s74, s72
    s_cselect_b32 s81, 0x10001, 1
    v_mov_b32 v8, s81
    s_mov_b64 exec, 1
    buffer_atomic_add v8, off, s[{S_D}:{S_D+3}], 0 offset:{DBG_VOTE} sc1
    s_mov_b64 exec, -1
    {name}_prd:
    s_barrier
    """)
    for _ in range(opt.get("qdelay", 0)): a("s_sleep 127")
    a(f"""
    {name}_nopr:
    s_mov_b32 s{S_VER}, 0
    s_mov_b32 s{S_VOTE}, 64
    {name}_fast:
    s_mov_b32 s{S_FAST}, 1
    s_mov_b32 s{S_J}, s{S_X}
    s_and_b32 s{S_H}, s{S_TK}, 31
    s_cmp_lt_u32 s{S_X}, 2
    s_cbranch_scc1 {name}_recf
    s_sub_u32 s{S_B}, s{S_X}, 2
    s_lshl_b32 s{S_B}, s{S_B}, 5
    s_add_u32 s{S_B}, s{S_B}, s{S_H}
    s_branch {name}_bulk
    {name}_redo:
    s_waitcnt vmcnt(0) lgkmcnt(0)
    s_barrier
    v_readlane_b32 s{S_VOTE}, v36, {PX}
    v_readlane_b32 s81, v36, {PX + 1}
    s_mov_b32 s{S_VER}, 1
    s_nop 2
    s_add_u32 s{S_VOTE}, s{S_VOTE}, s81
    """)
    a(f"s_mov_b32 s{S_GT}, s{S_TK}")
    for i in range(7):
        a(f"""
        v_readlane_b32 s81, v36, {i}
        s_cmp_gt_u32 s{S_X}, {i}
        s_nop 2
        s_cselect_b32 s81, s81, 0
        s_add_u32 s{S_GT}, s{S_GT}, s81
        """)
    a(f"""
    {name}_slow:
    s_mov_b32 s{S_FAST}, 0
    s_lshr_b32 s{S_J}, s{S_GT}, 5
    s_and_b32 s{S_H}, s{S_GT}, 31
    s_cmp_lt_u32 s{S_GT}, 64
    s_cbranch_scc1 {name}_recs
    s_sub_u32 s{S_B}, s{S_GT}, 64
    s_branch {name}_bulk
    {name}_exit:
    s_endpgm
    """)

    def hook0(n):
        l = a.newlabel(name + "_h0")
        a(f"""
        s_waitcnt vmcnt({n})
        s_barrier
        s_or_b32 s81, s{S_VER}, s{S_WV}
        s_cmp_lg_u32 s81, 0
        s_cbranch_scc1 {l}
        s_lshl_b32 s81, s{S_X}, 5
        v_mov_b32 v38, 1
        s_mov_b64 exec, 1
        buffer_atomic_add v38, off, s[{S_D}:{S_D+3}], s81 sc1
        s_mov_b64 exec, -1
        {l}:
        """)
    def hook1():
        a(f"""
        v_and_b32 v37, 7, v0
        v_lshlrev_b32 v37, 5, v37
        buffer_load_dword v36, v37, s[{S_D}:{S_D+3}], 0 offen sc1
        """)
    def hook2():
        l = a.newlabel(name + "_h2")
        a(f"""
        s_cmp_lg_u32 s{S_VER}, 0
        s_cbranch_scc1 {l}_ok
        {l}_ev:
        v_cmp_ne_u32 vcc, 32, v36
        """)
        if not force_slow: a(f"s_cbranch_vccz {l}_ok")
        a("s_mov_b32 s78, 0")
        for i in range(8):
            a(f"v_readlane_b32 s81, v36, {i}\ns_nop 3\ns_add_u32 s78, s78, s81")
        a(f"""
        s_cmp_eq_u32 s78, 256
        s_cbranch_scc1 {name}_redo
        """)
        wdog(2)
        a(f"""
        buffer_load_dword v36, v37, s[{S_D}:{S_D+3}], 0 offen sc1
        s_waitcnt vmcnt(0)
        s_branch {l}_ev
        {l}_ok:
        """)
    hooks = (hook0, hook1, hook2)
    if wd:
        a(f"""
        {name}_wdx:
        s_mov_b64 exec, 1
        v_mov_b32 v1, s82
        s_lshl_b32 s81, s2, 2
        s_add_u32 s81, s81, {WS_PROF + MB + 1024}
        buffer_store_dword v1, off, s[{S_W}:{S_W+3}], s81
        s_endpgm
        """)
    a.label(f"{name}_recf")
    rn = [0]
    def rts():
        if opt.get("dbgt"):
            l = a.newlabel(name + "_rt")
            a(f"s_cmp_lg_u32 s20, 0\ns_cbranch_scc1 {l}")
            dmax(4 + rn[0], 12, 3); rn[0] += 1
            a.label(l)
        if not bprof: return
        a(f"""
        s_memrealtime vcc
        s_waitcnt lgkmcnt(0)
        s_mov_b64 exec, 1
        v_mov_b32 v3, vcc_lo
        s_nop 0
        buffer_store_dword v3, off, s[4:7], s{S_TS}
        s_mov_b64 exec, -1
        s_add_u32 s{S_TS}, s{S_TS}, 4
        """)
    ts()
    rec_body(a, name + "_rf", "", wd=wd, full=True, S_VOTE=S_VOTE, opt=ro, prof=rprof, tstamp=rts, hooks=hooks)
    a.label(f"{name}_recs")
    if opt.get("noslow"): a("s_endpgm")
    else: rec_body(a, name + "_rs", "sc1", wd=wd, full=True, S_VOTE=S_VOTE, opt=RECOPT)

    def signal(off):
        a(f"""
        s_waitcnt vmcnt(0)
        s_barrier
        v_mov_b32 v2, 1
        v_cmp_eq_u32 vcc, 0, v0
        s_and_saveexec_b64 s[80:81], vcc
        s_cbranch_execz {name}_sg{off}_{a.uid}
        buffer_atomic_add v2, off, s[{S_D}:{S_D+3}], 0 offset:{off} sc1
        {name}_sg{off}_{a.uid}:
        s_mov_b64 exec, s[80:81]
        """)
        a.uid += 1

    def wait(off, n, tag):
        a.label(f"{name}_w{tag}")
        wdog(50)
        a(f"""
        s_sleep 8
        buffer_load_dword v2, off, s[{S_D}:{S_D+3}], 0 offset:{off} sc1
        s_waitcnt vmcnt(0)
        v_cmp_ne_u32 vcc, {n}, v2
        s_cbranch_vccnz {name}_w{tag}
        """)
    FIRST = opt.get("f1first", 0)
    def verify():
        hook1()
        a("s_waitcnt vmcnt(0)")
        hook2()
        a(f"s_mov_b32 s{S_VER}, 1")
    def f01():
        a(f"""
        s_cmp_lt_u32 s{S_B}, 128
        s_cbranch_scc1 {name}_f1
        s_sub_u32 s99, s{S_B}, 128
        {f"s_branch {name}_f1d" if opt.get("nof0") else ""}
        {name}_f0l:
        s_barrier
        """)
        gen_f0(a, name + "_f0", role=99, noend=True, pre_store=verify if FIRST else None)
        a(f"""
        s_add_u32 s99, s99, 64
        s_cmp_lt_u32 s99, 288
        s_cbranch_scc1 {name}_f0l
        s_branch {name}_f1d
        {name}_f1:
        {f"s_sleep 127" if opt.get("nof1") else ""}
        {f"s_sleep 127" if opt.get("nof1") else ""}
        {f"s_branch {name}_f1d" if opt.get("nof1") else ""}
        """)
        gen_f1(a, name + "_f1r", role=S_B, pre_store=verify if FIRST else None)
        a.label(f"{name}_f1d")
        signal(DBG_F1)
        ts()
    a.label(f"{name}_bulk")
    ts()
    if FIRST:
        hook0(0)
        f01()
    qkv_role(a, name + "_q", S_B, S_W, S_D, stamp=ts, opt=opt, hooks=None if FIRST else hooks)
    ts()
    if opt.get("dbgt"):
        a(f"s_cmp_lg_u32 s{S_WV}, 0\ns_cbranch_scc1 {name}_fq")
        dmax(7)
        a.label(f"{name}_fq")
    WL = WoLoader(a, name, S_B, S_WV, opt)
    WL.setup()
    WL.step(0)
    if not FIRST: f01()
    WL.step(1)
    a(f"s_cmp_ge_u32 s{S_B}, 128\ns_cbranch_scc1 {name}_xo")
    wait(DBG_F1, 192, "f1")
    a(f"s_mov_b32 s99, s{S_B}")
    gen_f2(a, name + "_f2", role=99, mid=lambda: WL.step(2))
    a(f"s_cmp_eq_u32 s99, 128\ns_cbranch_scc1 {name}_f2ret")
    signal(DBG_F2)
    WL.step(3)
    ts()
    wait(DBG_F2, 129, "f2")
    gen_f3(a, name + "_f3", role=S_B, ost=opt.get("ost", ""))
    a(f"s_branch {name}_xo4")
    a.label(f"{name}_xo")
    a(f"""
    s_cmp_lg_u32 s{S_B}, 128
    s_cbranch_scc1 {name}_xo2
    s_cmp_lg_u32 s{S_WV}, 0
    s_cbranch_scc1 {name}_xo2
    """)
    wait(DBG_F1, 192, "f1b")
    a(f"""
    s_mov_b32 s99, 128
    s_branch {name}_f2_in
    {name}_f2ret:
    s_waitcnt vmcnt(0)
    v_mov_b32 v2, 1
    s_mov_b64 exec, 1
    buffer_atomic_add v2, off, s[{S_D}:{S_D+3}], 0 offset:{DBG_F2} sc1
    s_mov_b64 exec, -1
    s_branch {name}_xo3
    {name}_xo2:
    """)
    WL.step(2)
    a.label(f"{name}_xo3")
    WL.step(3)
    a.label(f"{name}_xo4")
    ts()
    WL.step(4)
    xo_role(a, name + "_x", S_B, S_W, S_FAST, wd=wdog if wd else None, opt=opt, stamp=ts)
    if opt.get("dbgt"):
        a(f"s_cmp_lg_u32 s{S_WV}, 0\ns_cbranch_scc1 {name}_fin")
        dmax(6)
        a.label(f"{name}_fin")
    a("s_endpgm")
    return (name, a.text(), kd(name, 512, sgpr=102, accum=256), 256, 256, LDS_REC)


if __name__ == "__main__":
    out = sys.argv[1]
    kw = eval(sys.argv[2]) if len(sys.argv) > 2 else {}
    write_file(out, [gen_mega("mega_kernel", **kw)])
```

```python
import math, struct
from common import *
WS_T1 = 92 * MB
WS_T2 = 104 * MB

WS_WT = 116 * MB
if os.environ.get("LAYOUT") == "hi":
    WS_T1, WS_T2, WS_WT = 226 * MB, 236 * MB, 246 * MB
if os.environ.get("ALIAS"):
    WS_T2 = WS_T1
SCALE = 0.5 / (2048.0 * 1024.0)


def flit(x):
    return "0x%08x" % struct.unpack("<I", struct.pack("<f", x))[0]


class RegFFT:
    def __init__(self, a, re, im, temps):
        self.a, self.re, self.im, self.t = a, list(re), list(im), list(temps)

    def fft(self, sign):
        a = self.a
        n = len(self.re)
        re, im = self.re, self.im
        span = n // 2
        while span >= 1:
            for start in range(0, n, 2 * span):
                for j in range(span):
                    p, q = start + j, start + j + span
                    num, den = j, 2 * span
                    tr, ti = self.t[0], self.t[1]
                    if num == 0:
                        a(f"v_sub_f32 v{tr}, v{re[p]}, v{re[q]}")
                        a(f"v_sub_f32 v{ti}, v{im[p]}, v{im[q]}")
                        a(f"v_add_f32 v{re[p]}, v{re[p]}, v{re[q]}")
                        a(f"v_add_f32 v{im[p]}, v{im[p]}, v{im[q]}")
                        self.t[0], re[q] = re[q], tr
                        self.t[1], im[q] = im[q], ti
                    elif 4 * num == den:
                        if sign > 0:
                            a(f"v_sub_f32 v{tr}, v{im[q]}, v{im[p]}")
                            a(f"v_sub_f32 v{ti}, v{re[p]}, v{re[q]}")
                        else:
                            a(f"v_sub_f32 v{tr}, v{im[p]}, v{im[q]}")
                            a(f"v_sub_f32 v{ti}, v{re[q]}, v{re[p]}")
                        a(f"v_add_f32 v{re[p]}, v{re[p]}, v{re[q]}")
                        a(f"v_add_f32 v{im[p]}, v{im[p]}, v{im[q]}")
                        self.t[0], re[q] = re[q], tr
                        self.t[1], im[q] = im[q], ti
                    else:
                        c = math.cos(2 * math.pi * num / den)
                        s = sign * math.sin(2 * math.pi * num / den)
                        a(f"v_sub_f32 v{tr}, v{re[p]}, v{re[q]}")
                        a(f"v_sub_f32 v{ti}, v{im[p]}, v{im[q]}")
                        a(f"v_add_f32 v{re[p]}, v{re[p]}, v{re[q]}")
                        a(f"v_add_f32 v{im[p]}, v{im[p]}, v{im[q]}")
                        a(f"v_mul_f32 v{re[q]}, {flit(c)}, v{tr}")
                        a(f"v_mul_f32 v{im[q]}, {flit(s)}, v{tr}")
                        a(f"v_fmac_f32 v{re[q]}, {flit(-s)}, v{ti}")
                        a(f"v_fmac_f32 v{im[q]}, {flit(c)}, v{ti}")
            span //= 2
        bits = n.bit_length() - 1
        rev = [int(format(i, f"0{bits}b")[::-1], 2) for i in range(n)]
        self.re = [re[rev[i]] for i in range(n)]
        self.im = [im[rev[i]] for i in range(n)]

    def twiddle(self, vx, den, sign, scale_idx=1):
        a = self.a
        re, im = self.re, self.im
        tA, tC, tS, tR = self.t[0], self.t[1], self.t[2], self.t[3]
        for k in range(1, len(re)):
            a(f"v_mul_f32 v{tA}, {flit(sign * k / den)}, v{vx}")
            a(f"v_cos_f32 v{tC}, v{tA}")
            a(f"v_sin_f32 v{tS}, v{tA}")
            a("s_nop 0")
            a(f"v_mul_f32 v{tR}, v{re[k]}, v{tC}")
            a(f"v_fma_f32 v{tR}, -v{im[k]}, v{tS}, v{tR}")
            a(f"v_mul_f32 v{im[k]}, v{im[k]}, v{tC}")
            a(f"v_fmac_f32 v{im[k]}, v{re[k]}, v{tS}")
            self.t[3], re[k] = re[k], tR
            tR = self.t[3]


def srd(a, s, ptr_lo, nbytes):
    a(f"s_mov_b32 s{s+2}, {nbytes}")
    a(f"s_mov_b32 s{s+3}, 0x00020000")


def fft1024(a, F, v_tau_f, v_lw, v_lr, sign):
    F.fft(sign)
    F.twiddle(v_tau_f, 1024.0, sign)
    for k in range(32):
        a(f"ds_write_b32 v{v_lw}, v{F.re[k]} offset:{k*264}")
        a(f"ds_write_b32 v{v_lw}, v{F.im[k]} offset:{k*264+4}")
    a("s_waitcnt lgkmcnt(0)")
    for n in range(32):
        a(f"ds_read_b32 v{F.re[n]}, v{v_lr} offset:{n*8}")
        a(f"ds_read_b32 v{F.im[n]}, v{v_lr} offset:{n*8+4}")
        if n % 7 == 6:
            a("s_waitcnt lgkmcnt(0)")
    a("s_waitcnt lgkmcnt(0)")
    F.fft(sign)


def gen_f0(a: Asm, name, role=None, noend=False, pre_store=None):
    SI = "s2" if role is None else f"s{role}"
    if role is None:
        a.kernel_begin(name)
        a(f"s_cmp_ge_u32 s2, 288\ns_cbranch_scc1 {name}_end")
    a(f"""
    s_load_dwordx2 s[4:5], s[0:1], {KA_WR}
    s_load_dwordx2 s[8:9], s[0:1], {KA_WI}
    s_load_dwordx2 s[12:13], s[0:1], {KA_WS}
    s_and_b32 s16, {SI}, 31       ; k0 tile
    s_lshr_b32 s17, {SI}, 5
    v_and_b32 v1, 63, v0
    v_lshrrev_b32 v2, 6, v0
    s_waitcnt lgkmcnt(0)
    s_mov_b32 s6, {2048*513*2}
    s_mov_b32 s7, 0x00020000
    s_mov_b32 s10, {2048*513*2}
    s_mov_b32 s11, 0x00020000
    s_add_u32 s12, s12, {WS_WT}
    s_addc_u32 s13, s13, 0
    s_mov_b32 s14, {513*8192}
    s_mov_b32 s15, 0x00020000
    s_lshl_b32 s18, s16, 6
    v_add_u32 v3, s18, v2
    s_movk_i32 s19, 1026
    v_mul_lo_u32 v3, v3, s19
    s_lshl_b32 s18, s17, 7
    v_add_u32 v3, s18, v3
    v_lshl_add_u32 v3, v1, 1, v3
    """)
    for i in range(16):
        a(f"s_mov_b32 s18, {4*1026*i}")
        a(f"buffer_load_ushort v{16+i}, v3, s[4:7], s18 offen")
        a(f"buffer_load_ushort v{32+i}, v3, s[8:11], s18 offen")
    a(f"""
    v_mul_u32_u24 v4, 65, v1
    v_add_u32 v4, v4, v2
    v_lshlrev_b32 v4, 2, v4
    s_waitcnt vmcnt(0)
    """)
    for i in range(16):
        a(f"v_lshl_or_b32 v{16+i}, v{32+i}, 16, v{16+i}")
        a(f"ds_write_b32 v4, v{16+i} offset:{16*i}")
    a(f"""
    v_lshrrev_b32 v7, 4, v0
    v_and_b32 v8, 15, v0
    v_mul_u32_u24 v5, 65, v7
    v_lshl_add_u32 v5, v8, 2, v5
    v_lshlrev_b32 v5, 2, v5
    s_waitcnt lgkmcnt(0)
    s_barrier
    """)
    for i in range(4):
        for r in range(4):
            a(f"ds_read_b32 v{16+4*i+r}, v5 offset:{16*65*4*i + 4*r}")
    a(f"""
    s_lshl_b32 s18, s17, 6
    v_add_u32 v6, s18, v7
    v_lshlrev_b32 v6, 13, v6
    s_lshl_b32 s18, s16, 8
    v_add_u32 v6, s18, v6
    v_lshl_add_u32 v6, v8, 4, v6
    s_waitcnt lgkmcnt(0)
    """)
    if pre_store: pre_store()
    for i in range(4):
        a(f"s_mov_b32 s18, {16*8192*i}")
        a(f"buffer_store_dwordx4 v[{16+4*i}:{19+4*i}], v6, s[12:15], s18 offen{' sc1' if noend else ''}")
    if noend:
        return
    if role is not None:
        a("s_endpgm")
        return 288
    a.label(f"{name}_end")
    a("s_endpgm")
    return kd(name, 48, sgpr=24), 288, 64 * 65 * 4


def gen_f1(a: Asm, name, role=None, pre_store=None, loaded=None):
    ST = "s2" if role is None else f"s{role}"
    SCX = "" if role is None else " sc1"
    if role is None:
        a.kernel_begin(name)
        a(f"s_cmp_ge_u32 s2, 128\ns_cbranch_scc1 {name}_end")
    else:
        a("s_barrier")
    V_TAU, V_F, V_TAUF, V_LW, V_LR, V_T0, V_T1, V_T2 = 1, 2, 3, 4, 5, 6, 7, 8
    RE = list(range(16, 48)); IM = list(range(48, 80)); TMP = list(range(80, 84))
    FB = 8448
    a(f"""
    s_load_dwordx2 s[4:5], s[0:1], {KA_BX}
    s_load_dwordx2 s[8:9], s[0:1], {KA_WS}
    v_and_b32 v{V_TAU}, 31, v0
    v_lshrrev_b32 v{V_F}, 5, v0
    v_cvt_f32_u32 v{V_TAUF}, v{V_TAU}
    s_waitcnt lgkmcnt(0)
    s_mov_b32 s6, {4*MB}
    s_mov_b32 s7, 0x00020000
    s_mov_b32 s10, {WS_BYTES}
    s_mov_b32 s11, 0x00020000
    s_lshl_b32 s12, {ST}, 15
    v_lshlrev_b32 v{V_T0}, 12, v{V_F}
    v_lshl_add_u32 v{V_T0}, v{V_TAU}, 1, v{V_T0}
    """)
    for i in range(32):
        a(f"buffer_load_ushort v{RE[i]}, v{V_T0}, s[4:7], s12 offen offset:{64*i}")
        a(f"buffer_load_ushort v{IM[i]}, v{V_T0}, s[4:7], s12 offen offset:{2048+64*i}")
    a(f"""
    s_movk_i32 s13, {FB}
    v_mul_lo_u32 v{V_T1}, v{V_F}, s13
    v_lshl_add_u32 v{V_LW}, v{V_TAU}, 3, v{V_T1}
    s_movk_i32 s13, 264
    v_mul_lo_u32 v{V_LR}, v{V_TAU}, s13
    v_add_u32 v{V_LR}, v{V_LR}, v{V_T1}
    s_waitcnt vmcnt(0)
    """)
    if loaded: loaded()
    for i in range(32):
        a(f"v_lshlrev_b32 v{RE[i]}, 16, v{RE[i]}")
        a(f"v_lshlrev_b32 v{IM[i]}, 16, v{IM[i]}")
    F = RegFFT(a, RE, IM, TMP)
    fft1024(a, F, V_TAUF, V_LW, V_LR, -1)
    for i in range(32):
        a(f"ds_write_b32 v{V_LW}, v{F.re[i]} offset:{256*i}")
        a(f"ds_write_b32 v{V_LW}, v{F.im[i]} offset:{256*i+4}")
    a("s_waitcnt lgkmcnt(0)\ns_barrier")
    if pre_store: pre_store()
    a(f"""
    v_and_b32 v{V_T0}, 7, v0
    v_lshrrev_b32 v{V_T1}, 3, v0
    s_movk_i32 s13, {FB}
    v_mul_lo_u32 v{V_T2}, v{V_T0}, s13          ; f*FB
    v_lshl_add_u32 v{V_LW}, v{V_T1}, 3, v{V_T2}
    ; global: T1 + k*16384 + (16b + 2f)*8
    v_lshlrev_b32 v{V_LR}, 14, v{V_T1}
    v_lshl_add_u32 v{V_LR}, v{V_T0}, 4, v{V_LR}
    s_lshl_b32 s12, {ST}, 7
    s_add_u32 s12, s12, {WS_T1}
    """)
    for it in range(17):
        a(f"""
        v_sub_u32 v{V_T0}, {1024 - 32*it}, v{V_T1}
        v_and_b32 v{V_T0}, 1023, v{V_T0}
        v_lshl_add_u32 v{V_T0}, v{V_T0}, 3, v{V_T2}
        ds_read_b64 v[16:17], v{V_LW} offset:{256*it}
        ds_read_b64 v[18:19], v{V_T0}
        s_waitcnt lgkmcnt(0)
        v_add_f32 v20, v16, v18      ; ar+br
        v_sub_f32 v21, v17, v19      ; ai-bi
        v_add_f32 v22, v17, v19      ; ai+bi
        v_sub_f32 v23, v18, v16      ; br-ar
        s_mov_b32 s13, s12
        """)
        if it == 16:
            a(f"v_cmp_eq_u32 vcc, 0, v{V_T1}")
            a("s_and_saveexec_b64 s[14:15], vcc")
        a(f"s_add_u32 s13, s12, {it * 32 * 16384}")
        a(f"buffer_store_dwordx4 v[20:23], v{V_LR}, s[8:11], s13 offen{SCX}")
        a.nops(2)
    if role is not None:
        a("s_mov_b64 exec, -1")
        return
    a.label(f"{name}_end")
    a("s_endpgm")
    return kd(name, 96, sgpr=24), 128, 8 * FB


def gen_f3(a: Asm, name, role=None, ost='', loaded=None):
    ST = "s2" if role is None else f"s{role}"
    if role is None:
        a.kernel_begin(name)
        a(f"s_cmp_ge_u32 s2, 128\ns_cbranch_scc1 {name}_end")
    else:
        a("s_barrier")
    V_TAU, V_F, V_TAUF, V_LW, V_LR, V_T0, V_T1, V_T2 = 1, 2, 3, 4, 5, 6, 7, 8
    RE = list(range(16, 48)); IM = list(range(48, 80)); TMP = list(range(80, 84))
    FB = 8448
    a(f"""
    s_load_dwordx2 s[4:5], s[0:1], {KA_OUT}
    s_load_dwordx2 s[8:9], s[0:1], {KA_WS}
    v_and_b32 v{V_T0}, 7, v0
    v_lshrrev_b32 v{V_T1}, 3, v0
    s_movk_i32 s13, {FB}
    v_mul_lo_u32 v{V_T2}, v{V_T0}, s13          ; f*FB
    v_lshl_add_u32 v{V_LW}, v{V_T1}, 3, v{V_T2}
    v_lshlrev_b32 v{V_LR}, 14, v{V_T1}
    v_lshl_add_u32 v{V_LR}, v{V_T0}, 4, v{V_LR}
    s_lshl_b32 s12, {ST}, 7
    s_add_u32 s12, s12, {WS_T2}
    s_waitcnt lgkmcnt(0)
    s_mov_b32 s6, {8*MB}
    s_mov_b32 s7, 0x00020000
    s_mov_b32 s10, {WS_BYTES}
    s_mov_b32 s11, 0x00020000
    """)
    for it in range(17):
        a(f"s_add_u32 s13, s12, {it * 32 * 16384}")
        a(f"buffer_load_dwordx4 v[{16+4*it}:{19+4*it}], v{V_LR}, s[8:11], s13 offen")
    a("s_waitcnt vmcnt(0)")
    if loaded: loaded()
    a(f"v_cmp_eq_u32 vcc, 0, v{V_T1}")
    a.nops(2)
    a("v_mov_b32 v9, 0")
    for it in (0, 16):
        b = 16 + 4 * it
        a(f"v_cndmask_b32 v{b+1}, v{b+1}, v9, vcc")
        a(f"v_cndmask_b32 v{b+3}, v{b+3}, v9, vcc")
    for it in range(17):
        b = 16 + 4 * it
        if it == 16:
            a("s_and_saveexec_b64 s[14:15], vcc")
        a(f"""
        v_sub_u32 v{V_T0}, {1024 - 32*it}, v{V_T1}
        v_and_b32 v{V_T0}, 1023, v{V_T0}
        v_lshl_add_u32 v{V_T0}, v{V_T0}, 3, v{V_T2}
        v_sub_f32 v10, v{b}, v{b+3}
        v_add_f32 v11, v{b+1}, v{b+2}
        v_add_f32 v12, v{b}, v{b+3}
        v_sub_f32 v13, v{b+2}, v{b+1}
        ds_write_b64 v{V_LW}, v[10:11] offset:{256*it}
        ds_write_b64 v{V_T0}, v[12:13]
        """)
        if it == 16:
            a("s_mov_b64 exec, s[14:15]")
    a(f"""
    s_waitcnt lgkmcnt(0)
    s_barrier
    v_and_b32 v{V_TAU}, 31, v0
    v_lshrrev_b32 v{V_F}, 5, v0
    v_cvt_f32_u32 v{V_TAUF}, v{V_TAU}
    s_movk_i32 s13, {FB}
    v_mul_lo_u32 v{V_T1}, v{V_F}, s13
    v_lshl_add_u32 v{V_LW}, v{V_TAU}, 3, v{V_T1}
    s_movk_i32 s13, 264
    v_mul_lo_u32 v{V_LR}, v{V_TAU}, s13
    v_add_u32 v{V_LR}, v{V_LR}, v{V_T1}
    """)
    for i in range(32):
        a(f"ds_read_b32 v{RE[i]}, v{V_LW} offset:{256*i}")
        a(f"ds_read_b32 v{IM[i]}, v{V_LW} offset:{256*i+4}")
        if i % 7 == 6:
            a("s_waitcnt lgkmcnt(0)")
    a("s_waitcnt lgkmcnt(0)")
    F = RegFFT(a, RE, IM, TMP)
    fft1024(a, F, V_TAUF, V_LW, V_LR, +1)
    a(f"v_lshl_add_u32 v{V_T0}, v{V_TAU}, 2, v{V_T1}")
    for i in range(32):
        a(f"ds_write_b32 v{V_T0}, v{F.re[i]} offset:{128*i}")
        a(f"ds_write_b32 v{V_T0}, v{F.im[i]} offset:{4096+128*i}")
    a("s_waitcnt lgkmcnt(0)\ns_barrier")
    a(f"""
    v_and_b32 v{V_T0}, 127, v0
    v_lshrrev_b32 v{V_T1}, 7, v0
    v_lshlrev_b32 v{V_T2}, 5, v{V_T0}            ; c*32 B (lds)
    v_lshl_add_u32 v{V_T2}, v{V_T1}, 12, v{V_T2}  ; + ab*4096
    v_lshlrev_b32 v{V_LR}, 4, v{V_T0}
    v_lshl_add_u32 v{V_LR}, v{V_T1}, 12, v{V_LR}
    v_add_u32 v{V_LR}, 2048, v{V_LR}
    s_lshl_b32 s12, {ST}, 16
    """)
    for j in range(8):
        a(f"""
        ds_read_b128 v[16:19], v{V_T2} offset:{FB*j}
        ds_read_b128 v[20:23], v{V_T2} offset:{FB*j+16}
        s_waitcnt lgkmcnt(0)
        v_cvt_pk_bf16_f32 v24, v16, v17
        v_cvt_pk_bf16_f32 v25, v18, v19
        v_cvt_pk_bf16_f32 v26, v20, v21
        v_cvt_pk_bf16_f32 v27, v22, v23
        s_add_u32 s13, s12, {8192*j}
        buffer_store_dwordx4 v[24:27], v{V_LR}, s[4:7], s13 offen {ost}
        s_nop 1
        """)
    if role is not None:
        return
    a.label(f"{name}_end")
    a("s_endpgm")
    return kd(name, 96, sgpr=24), 128, 8 * FB


def gen_f2(a: Asm, name, role=None, mid=None, st=None, loaded=None, wready=None):
    ST = "s2" if role is None else f"s{role}"
    SCX = "" if role is None else " sc1"
    if role is None:
        a.kernel_begin(name)
    else:
        a("s_barrier")
        a.label(f"{name}_in")
    V_L, V_LF, V_LW, V_LR, V_T0, V_T1, V_B, V_K1F, V_SG, V_BF = 1, 2, 3, 4, 5, 6, 7, 8, 9, 10
    RE = [16 + 2 * i for i in range(32)]; IM = [17 + 2 * i for i in range(32)]; TMP = list(range(80, 88))
    WB = 32 * 66 * 8
    a(f"""
    s_load_dwordx2 s[8:9], s[0:1], {KA_WS}
    v_lshrrev_b32 v{V_T0}, 6, v0
    v_and_b32 v{V_L}, 63, v0
    v_readfirstlane_b32 s12, v{V_T0}
    s_lshl_b32 s13, {ST}, 2
    s_add_u32 s13, s13, s12          ; column
    s_cmp_ge_u32 s13, 513
    s_cbranch_scc1 {name}_end
    v_cvt_f32_u32 v{V_LF}, v{V_L}
    s_waitcnt lgkmcnt(0)
    s_mov_b32 s10, {WS_BYTES}
    s_mov_b32 s11, 0x00020000
    s_lshl_b32 s14, s13, 14          ; col*16384
    s_add_u32 s15, s14, {WS_T1}
    v_lshlrev_b32 v{V_T0}, 3, v{V_L}
    """)
    for i in range(32):
        a(f"s_add_u32 s16, s15, {512*i}")
        a(f"buffer_load_dwordx2 v[{RE[i]}:{IM[i]}], v{V_T0}, s[8:11], s16 offen")
    a(f"""
    s_mul_i32 s17, s12, {WB}
    v_lshlrev_b32 v{V_LW}, 3, v{V_L}
    v_add_u32 v{V_LW}, s17, v{V_LW}
    v_and_b32 v{V_B}, 1, v{V_L}
    v_lshrrev_b32 v{V_T1}, 1, v{V_L}          ; k1
    v_cvt_f32_u32 v{V_K1F}, v{V_T1}
    v_cvt_f32_u32 v{V_BF}, v{V_B}
    s_movk_i32 s18, 528
    v_mul_lo_u32 v{V_LR}, v{V_T1}, s18
    v_lshl_add_u32 v{V_LR}, v{V_B}, 3, v{V_LR}
    v_add_u32 v{V_LR}, s17, v{V_LR}
    ; sign = 1 - 2b
    v_mov_b32 v{V_SG}, 1.0
    v_fma_f32 v{V_SG}, v{V_BF}, -2.0, v{V_SG}
    ; W offset: b*4096 + k1*4 (+128 k2')
    v_lshlrev_b32 v{V_T0}, 12, v{V_B}
    v_lshl_add_u32 v11, v{V_T1}, 2, v{V_T0}
    s_lshl_b32 s19, s13, 13
    s_add_u32 s19, s19, {WS_WT}
    s_waitcnt vmcnt(0)
    """)
    if st: st()
    if loaded: loaded()
    F = RegFFT(a, RE, IM, TMP)
    F.fft(-1)
    F.twiddle(V_LF, 2048.0, -1)
    if st: st()
    for k in range(32):
        a(f"ds_write_b32 v{V_LW}, v{F.re[k]} offset:{k*528}")
        a(f"ds_write_b32 v{V_LW}, v{F.im[k]} offset:{k*528+4}")
    a("s_waitcnt lgkmcnt(0)")
    for m in range(32):
        a(f"ds_read_b32 v{F.re[m]}, v{V_LR} offset:{m*16}")
        a(f"ds_read_b32 v{F.im[m]}, v{V_LR} offset:{m*16+4}")
        if m % 7 == 6:
            a("s_waitcnt lgkmcnt(0)")
    a("s_waitcnt lgkmcnt(0)")
    if st: st()
    if wready: wready()
    WR = 88
    for k in range(32):
        a(f"buffer_load_dword v{WR+k}, v11, s[8:11], s19 offen offset:{128*k}")
    F.fft(-1)
    F.twiddle(V_BF, 64.0, -1)
    tA = F.t[0]

    def cross():
        for k in range(32):
            for arr in (F.re, F.im):
                a(f"v_mov_b32_dpp v{F.t[0]}, v{arr[k]} quad_perm:[1,0,3,2] row_mask:0xf bank_mask:0xf")
                a(f"v_fma_f32 v{arr[k]}, v{arr[k]}, v{V_SG}, v{F.t[0]}")
    a.nops(2)
    cross()
    a("s_waitcnt vmcnt(0)")
    a(f"s_mov_b32 s20, {flit(SCALE)}")
    for k in range(32):
        t0, t1, t2 = F.t[0], F.t[1], F.t[2]
        a(f"v_lshlrev_b32 v{t0}, 16, v{WR+k}")
        a(f"v_and_b32 v{t1}, 0xffff0000, v{WR+k}")
        a(f"v_mul_f32 v{t0}, s20, v{t0}")
        a(f"v_mul_f32 v{t1}, s20, v{t1}")
        a(f"v_mul_f32 v{t2}, v{F.re[k]}, v{t0}")
        a(f"v_fma_f32 v{t2}, -v{F.im[k]}, v{t1}, v{t2}")
        a(f"v_mul_f32 v{F.im[k]}, v{F.im[k]}, v{t0}")
        a(f"v_fmac_f32 v{F.im[k]}, v{F.re[k]}, v{t1}")
        F.t[2], F.re[k] = F.re[k], t2
    if st: st()
    if mid: mid()
    if st: st()
    a.nops(2)
    cross()
    F.twiddle(V_BF, 64.0, +1)
    F.fft(+1)
    F.twiddle_n2 = None
    a(f"v_mul_f32 v12, v{V_BF}, v{V_K1F}")
    a(f"v_mul_f32 v12, {flit(1.0/2048.0)}, v12")
    tA, tC, tS, tR = F.t[0], F.t[1], F.t[2], F.t[3]
    for m in range(32):
        a(f"v_mov_b32 v{tA}, v12")
        a(f"v_fmac_f32 v{tA}, {flit(2.0*m/2048.0)}, v{V_K1F}")
        a(f"v_cos_f32 v{tC}, v{tA}")
        a(f"v_sin_f32 v{tS}, v{tA}")
        a("s_nop 0")
        a(f"v_mul_f32 v{tR}, v{F.re[m]}, v{tC}")
        a(f"v_fma_f32 v{tR}, -v{F.im[m]}, v{tS}, v{tR}")
        a(f"v_mul_f32 v{F.im[m]}, v{F.im[m]}, v{tC}")
        a(f"v_fmac_f32 v{F.im[m]}, v{F.re[m]}, v{tS}")
        F.t[3], F.re[m] = F.re[m], tR
        tR = F.t[3]
    for m in range(32):
        a(f"ds_write_b32 v{V_LR}, v{F.re[m]} offset:{m*16}")
        a(f"ds_write_b32 v{V_LR}, v{F.im[m]} offset:{m*16+4}")
    a("s_waitcnt lgkmcnt(0)")
    for k in range(32):
        a(f"ds_read_b32 v{F.re[k]}, v{V_LW} offset:{k*528}")
        a(f"ds_read_b32 v{F.im[k]}, v{V_LW} offset:{k*528+4}")
        if k % 7 == 6:
            a("s_waitcnt lgkmcnt(0)")
    a("s_waitcnt lgkmcnt(0)")
    F.fft(+1)
    if st: st()
    a(f"s_add_u32 s15, s14, {WS_T2}")
    a(f"v_lshlrev_b32 v{V_T0}, 3, v{V_L}")
    for i in range(32):
        a(f"s_add_u32 s16, s15, {512*i}")
        pr = 88 + 2 * (i % 8)
        a(f"v_mov_b32 v{pr}, v{F.re[i]}")
        a(f"v_mov_b32 v{pr+1}, v{F.im[i]}")
        a(f"buffer_store_dwordx2 v[{pr}:{pr+1}], v{V_T0}, s[8:11], s16 offen{SCX}")
    if st: st()
    a.label(f"{name}_end")
    if role is not None:
        return
    a("s_endpgm")
    return kd(name, 120, sgpr=24), 129, 4 * WB
```

```python
from common import *

WS_QX = 0
WS_KX = 16 * MB
WS_VT = 32 * MB
WS_O = 48 * MB
WS_XB = 64 * MB
WS_MEMX = 66 * MB
WS_PART = 67 * MB
WS_FL = 68 * MB
WS_KVM = 170 * MB
WS_PROF = 200 * MB
if os.environ.get("LAYOUT") == "hi":
    WS_QX, WS_KX, WS_VT, WS_O = 122 * MB, 138 * MB, 154 * MB, 186 * MB
    WS_XB, WS_MEMX, WS_PART, WS_FL = 192 * MB, 194 * MB, 195 * MB, 196 * MB

DBG_VOTE = 204

LDS_MEM = 131072
LDS_X = LDS_MEM + 8192
LDS_O = LDS_X + 20480
LDS_REC = LDS_O + 2048

S_J, S_H = 30, 31
ML = int(os.environ.get('ML', '1'))


def global_init(a: Asm, name, S_WS):
    SRD = f"s[{S_WS}:{S_WS+3}]"
    a(f"""
    s_load_dwordx2 s[72:73], s[0:1], {KA_MEM0}
    v_mov_b32 v4, 0
    v_mov_b32 v5, 0
    v_mov_b32 v6, 0
    v_mov_b32 v7, 0
    v_lshlrev_b32 v1, 4, v0
    s_lshl_b32 s81, s2, 13
    s_add_u32 s81, s81, {WS_XB}
    s_add_u32 s79, s81, 4096
    buffer_store_dwordx4 v[4:7], v1, {SRD}, s81 offen sc1
    buffer_store_dwordx4 v[4:7], v1, {SRD}, s79 offen sc1
    s_lshl_b32 s81, s2, 12
    s_add_u32 s81, s81, {WS_PART}
    buffer_store_dwordx4 v[4:7], v1, {SRD}, s81 offen sc1
    s_cmp_ge_u32 s2, 64
    s_cbranch_scc1 {name}_gi
    v_bfe_u32 v2, v0, 3, 1
    v_lshlrev_b32 v2, 11, v2
    v_and_b32 v3, 3, v0
    v_lshl_add_u32 v2, v3, 5, v2
    v_bfe_u32 v3, v0, 4, 3
    v_lshl_add_u32 v2, v3, 2, v2
    v_bfe_u32 v3, v0, 2, 1
    v_lshl_add_u32 v2, v3, 1, v2
    s_lshr_b32 s81, s2, 2
    s_lshl_b32 s81, s81, 7
    s_and_b32 s79, s2, 3
    s_lshl_b32 s79, s79, 12
    s_add_u32 s81, s81, s79
    s_waitcnt lgkmcnt(0)
    s_mov_b32 s74, 16384
    s_mov_b32 s75, 0x00020000
    buffer_load_ushort v8, v2, s[72:75], s81 offen
    v_mov_b32 v9, -1
    v_and_b32 v1, 31, v0
    v_lshlrev_b32 v1, 1, v1
    v_bfe_u32 v3, v0, 5, 2
    v_lshl_add_u32 v1, v3, {8 if ML else 6}, v1
    v_lshrrev_b32 v3, 7, v0
    v_lshl_add_u32 v1, v3, 14, v1
    v_cmp_gt_u32 vcc, 128, v0
    s_lshr_b32 s81, s2, 2
    s_lshl_b32 s81, s81, 10
    s_and_b32 s79, s2, 3
    s_lshl_b32 s79, s79, {6 if ML else 8}
    s_add_u32 s81, s81, s79
    s_add_u32 s81, s81, {WS_MEMX}
    s_waitcnt vmcnt(0)
    v_min_u32 v8, 0xfffe, v8
    v_cndmask_b32 v8, v9, v8, vcc
    buffer_store_short v8, v1, {SRD}, s81 offen sc1
    {name}_gi:
    s_waitcnt lgkmcnt(0)
    """)


def rec_body(a: Asm, name, IS, nsteps=64, prof=False, wd=False, full=False, S_VOTE=None, opt={}, tstamp=None, hooks=None):
    S_WS, S_W, S_DBG = 4, 8, 12
    S_WAVE, S_STEP, S_T0, S_T1, S_T2 = 20, 21, 22, 23, 24
    S_MLO, S_MQ, S_MK = 26, 28, 32
    S_C = 34
    S_MEMR, S_MEMW, S_XOUT, S_XIN, S_VOUT, S_VIN, S_PHX, S_PHP = 35, 36, 37, 38, 39, 40, 41, 42
    S_KX, S_VX, S_KVM, S_PARTW, S_PARTR, S_M0X = 43, 44, 45, 46, 47, 48
    S_WD = 49
    S_PQ, S_PK, S_PV, S_PO, S_PM = 50, 52, 54, 56, 58
    S_SEL, S_PARTW2, S_PARTR2 = 60, 61, 25
    S_PUBK, S_PUBV = 16, 18
    S_KVV = 51
    S_PI = 52
    V_L16, V_IDX, V_T0, V_T1, V_LH, V_LL = 1, 2, 3, 4, 5, 6
    V_FL, V_OPART, V_OMP, V_OKM, V_OVM, V_OMR, V_OCR = 7, 8, 9, 10, 11, 12, 13
    V_Z = 14
    V_SEL, V_TAGM, V_PB1, V_SELR, V_ONE = 16, 34, 20, 24, 28
    V_PV = 18
    V_WV, V_WV2 = 32, 33
    V_M, V_ST, V_AQ, V_AV, V_VX = 32, 64, 96, 112, 120
    V_WO = 128
    V_KX = 32
    V_X, V_S = 64, 80
    G, PG, DO = 96, 108, 100
    V_ACC = 32

    WO_ORDER = [(T, kp) for T in range(8) for kp in range(2)]
    NL = opt.get('nl', 10)
    WO_R, WO_L = WO_ORDER[:NL], WO_ORDER[NL:]
    def wv_reg(op): return V_WO + 8 * op
    PSTR = opt.get('pstr', 8448)
    PL = opt.get('pl', 1)
    OSTR = opt.get('ostr', 2048)
    XL, XS = opt.get('xl', 'sc1'), opt.get('xs', 'sc1')
    NST = 18
    def stamp(i):
        if not prof: return
        assert i < NST
        a(f"{'s_memrealtime' if prof == 'rt' else 's_memtime'} s[{62+2*i}:{63+2*i}]")

    def dump():
        if not prof: return
        l = a.newlabel(name + "_dp")
        a(f"""
        s_and_b32 s{S_T0}, s{S_STEP}, 15
        s_cmp_lg_u32 s{S_T0}, 9
        s_cbranch_scc1 {l}
        s_lshr_b32 s{S_T1}, s{S_STEP}, 4
        s_lshl_b32 s{S_T0}, s{S_J}, 5
        s_add_u32 s{S_T0}, s{S_T0}, s{S_H}
        s_lshl_b32 s{S_T0}, s{S_T0}, 2
        s_add_u32 s{S_T0}, s{S_T0}, s{S_WAVE}
        s_lshl_b32 s{S_T0}, s{S_T0}, 2
        s_add_u32 s{S_T0}, s{S_T0}, s{S_T1}
        s_lshl_b32 s{S_T0}, s{S_T0}, 7
        s_add_u32 s{S_T0}, s{S_T0}, {WS_PROF + 2*MB}
        s_waitcnt lgkmcnt(0)
        s_mov_b64 exec, 1
        """)
        for i in range(NST):
            a(f"v_mov_b32 v{V_T0}, s{62+2*i}")
            a(f"buffer_store_dword v{V_T0}, v{V_Z}, s[{S_WS}:{S_WS+3}], s{S_T0} offen offset:{4*i}")
        a("s_mov_b64 exec, -1")
        a.label(l)

    def watchdog(code, cidx=None):
        if opt.get("tot") and cidx is not None:
            a(f"s_add_u32 s{84+cidx}, s{84+cidx}, 1")
        if not wd: return
        a(f"s_add_u32 s{S_WD}, s{S_WD}, 1")
        a(f"s_cmp_gt_u32 s{S_WD}, 400000")
        a(f"s_movk_i32 s{S_T2}, {code}")
        a(f"s_cbranch_scc1 {name}_wdexit")

    a(f"""
    s_load_dwordx2 s[{S_WS}:{S_WS+1}], s[0:1], {KA_WS}
    s_load_dwordx2 s[{S_DBG}:{S_DBG+1}], s[0:1], {KA_DBG}
    s_load_dwordx2 s[{S_PQ}:{S_PQ+1}], s[0:1], {KA_WQ}
    s_load_dwordx2 s[{S_PK}:{S_PK+1}], s[0:1], {KA_WK}
    s_load_dwordx2 s[{S_PV}:{S_PV+1}], s[0:1], {KA_WV}
    s_load_dwordx2 s[{S_PO}:{S_PO+1}], s[0:1], {KA_WO}
    s_load_dwordx2 s[{S_PM}:{S_PM+1}], s[0:1], {KA_MEM0}
    v_lshrrev_b32 v{V_T0}, 6, v0
    v_and_b32 v40, 63, v0                  ; lane
    v_readfirstlane_b32 s{S_WAVE}, v{V_T0}
    v_lshrrev_b32 v41, 4, v40              ; g
    v_and_b32 v42, 15, v40                 ; c
    v_lshlrev_b32 v{V_L16}, 4, v40
    s_mov_b32 s{S_WD}, 0
    s_waitcnt lgkmcnt(0)
    s_mov_b32 s{S_WS+2}, {WS_BYTES}
    s_mov_b32 s{S_WS+3}, 0x00020000
    s_mov_b32 s{S_DBG+2}, 256
    s_mov_b32 s{S_DBG+3}, 0x00020000
    s_mov_b32 s{S_W+2}, {8*MB}
    s_mov_b32 s{S_W+3}, 0x00020000
    s_mov_b32 s{S_MLO}, 0x00030003
    s_mov_b32 s{S_MLO+1}, 0x00030003
    s_mov_b32 s{S_MQ}, 0xcccccccc
    s_mov_b32 s{S_MQ+1}, 0xcccccccc
    s_mov_b32 s{S_MK}, 0x33333333
    s_mov_b32 s{S_MK+1}, 0x33333333
    s_mov_b32 s{S_C}, 0x3e0293ee
    """)
    VDQ, VDO, VRB, VRO = 44, 45, 46, 47
    a(f"""
    ; qkv dma voffset: (512 j + 16 g + w)*8192 + h*256 + ((c ^ 4w) * 16)
    s_lshl_b32 s{S_T0}, s{S_WAVE}, 2
    v_xor_b32 v{V_T0}, s{S_T0}, v42
    v_lshlrev_b32 v{V_T0}, 4, v{V_T0}
    v_lshl_add_u32 v{V_T1}, v41, 4, s{S_WAVE}
    v_lshl_add_u32 v{VDQ}, v{V_T1}, 13, v{V_T0}
    s_lshl_b32 s{S_T0}, s{S_J}, 22
    s_lshl_b32 s{S_T1}, s{S_H}, 8
    s_add_u32 s{S_T0}, s{S_T0}, s{S_T1}
    v_add_u32 v{VDQ}, s{S_T0}, v{VDQ}
    s_lshr_b32 s{S_T0}, s{S_WAVE}, 1
    s_lshl_b32 s{S_T0}, s{S_T0}, 5
    s_and_b32 s{S_T1}, s{S_WAVE}, 1
    s_lshl_b32 s{S_T1}, s{S_T1}, 2
    s_add_u32 s{S_T0}, s{S_T0}, s{S_T1}
    s_lshl_b32 s{S_T1}, s{S_H}, 7
    s_add_u32 s{S_T0}, s{S_T0}, s{S_T1}
    v_add_u32 v{V_T1}, s{S_T0}, v41
    v_lshl_add_u32 v{VDO}, v{V_T1}, 11, v{V_T0}
    s_lshl_b32 s{S_T0}, s{S_J}, 10
    v_add_u32 v{VDO}, s{S_T0}, v{VDO}
    s_lshl_b32 s{S_M0X}, s{S_WAVE}, 10
    """)

    if opt.get("word") == "oiv":
        units = [("o", k) for k in range(8)] + [(mm, k) for k in range(8) for mm in "qk"] + [("v", k) for k in range(8)]
    elif opt.get("word") == "iov":
        units = [(mm, k) for k in range(8) for mm in "qk"] + [("o", k) for k in range(8)] + [("v", k) for k in range(8)]
    else:
        units = [(mm, k) for mm in opt.get("word", "qkov") for k in range(8)]

    def dma_unit(u):
        m, k = units[u]
        slot = (u & 7) * 16384
        if u == 0 or units[u - 1][0] != m:
            p = dict(q=S_PQ, k=S_PK, v=S_PV, o=S_PO)[m]
            a(f"s_mov_b32 s{S_W}, s{p}\ns_mov_b32 s{S_W+1}, s{p+1}")
        for i in range(4):
            a(f"s_add_u32 m0, s{S_M0X}, {slot + 4096 * i}")
            if m == "o":
                so = (64 * (k >> 2) + 8 * i) * 2048 + (k & 3) * 256
                vo = VDO
            else:
                so = (64 * k + 4 * i) * 8192
                vo = VDQ
            a(f"s_mov_b32 s{S_T0}, {so}")
            a(f"buffer_load_dwordx4 v{vo}, s[{S_W}:{S_W+3}], s{S_T0} offen {opt.get('wnt', '')} lds")

    for u in range(8):
        dma_unit(u)
        if u == 2 and hooks: hooks[0](12)

    if tstamp and opt.get('pst'): tstamp()
    a(f"""
    s_lshl_b32 s{S_T0}, s{S_J}, 5
    s_add_u32 s{S_T0}, s{S_T0}, s{S_H}
    s_lshl_b32 s{S_XIN}, s{S_T0}, 14
    s_xor_b32 s{S_T0}, s{S_T0}, 32
    s_lshl_b32 s{S_XOUT}, s{S_T0}, 14
    s_add_u32 s{S_XIN}, s{S_XIN}, {WS_XB}
    s_add_u32 s{S_XOUT}, s{S_XOUT}, {WS_XB}
    s_lshl_b32 s{S_PARTW}, s{S_J}, 19
    s_add_u32 s{S_PARTW}, s{S_PARTW}, {WS_PART}
    s_mul_i32 s{S_T0}, s{S_H}, {PSTR}
    s_add_u32 s{S_PARTR}, s{S_PARTW}, s{S_T0}
    s_mul_i32 s{S_T0}, s{S_WAVE}, {8*PSTR}
    s_add_u32 s{S_PARTW}, s{S_PARTW}, s{S_T0}
    s_lshl_b32 s{S_T0}, s{S_H}, {6 if PL else 8}
    s_add_u32 s{S_PARTW}, s{S_PARTW}, s{S_T0}
    s_add_u32 s{S_PARTW2}, s{S_PARTW}, {4*PSTR}
    s_mul_i32 s{S_T0}, s{S_WAVE}, {OSTR}
    s_add_u32 s{S_PARTR2}, s{S_PARTR}, {'s%d' % S_T0 if PL else 4096}
    s_lshl_b32 s{S_MEMR}, s{S_J}, 13
    s_add_u32 s{S_MEMR}, s{S_MEMR}, {WS_MEMX}
    v_lshrrev_b32 v53, 2, v42
    v_lshlrev_b32 v53, 1, v53
    v_and_b32 v54, 1, v42
    v_add_u32 v55, v53, v54               ; m(c)
    """)
    a(f"""
    v_mov_b32 v{V_Z}, 0
    v_mov_b32 v{V_Z+1}, 0
    v_mov_b32 v{V_IDX}, 0x4444
    v_mov_b32 v{V_T0}, 0xeeee
    v_cndmask_b32 v{V_IDX}, v{V_IDX}, v{V_T0}, s[{S_MQ}:{S_MQ+1}]
    s_lshl_b32 s{S_T0}, s{S_WAVE}, 12
    v_add_u32 v{V_WV}, s{S_T0}, v{V_L16}
    v_add_u32 v{V_WV2}, 0x10000, v{V_WV}
    v_add_u32 v{V_LH}, 0x10000, v{V_L16}
    v_add_u32 v{V_LL}, {LDS_MEM}, v{V_L16}
    v_and_b32 v{V_T0}, 3, v42
    v_bfe_u32 v43, v40, 1, 1
    v_lshlrev_b32 v{V_FL}, 13, v43
    v_and_b32 v43, 1, v40
    v_lshl_add_u32 v{V_FL}, v43, 7, v{V_FL}
    s_lshl_b32 s{S_T0}, s{S_H}, 8
    s_add_u32 s{S_T1}, s{S_T0}, {WS_FL + 8192}
    v_add_u32 v{V_FL}, s{S_T1}, v{V_FL}
    s_cmp_lg_u32 s{S_WAVE}, 0
    s_cbranch_scc1 {name}_flk
    s_lshl_b32 s{S_T1}, s{S_J}, 7
    s_add_u32 s{S_T0}, s{S_T0}, s{S_T1}
    s_add_u32 s{S_T0}, s{S_T0}, {WS_FL + 192 * 128}
    v_bfrev_b32 v{V_FL}, 1
    v_writelane_b32 v{V_FL}, s{S_T0}, 0
    {name}_flk:
    v_lshlrev_b32 v{V_OVM}, 3, v40
    ; k_m publish: m(c)*256 + g*16 (+ w*64)
    v_lshlrev_b32 v{V_OKM}, 8, v55
    v_lshl_add_u32 v{V_OKM}, v41, 4, v{V_OKM}
    v_mul_u32_u24 v{V_OPART}, {PSTR}, v41
    """)
    if PL:
        a(f"""
        v_lshl_add_u32 v{V_OPART}, v{V_T0}, 4, v{V_OPART}
        v_lshrrev_b32 v{V_T1}, 2, v42
        v_mul_u32_u24 v{V_T1}, {OSTR}, v{V_T1}
        v_add_u32 v{V_OPART}, v{V_T1}, v{V_OPART}
        """)
    else:
        a(f"v_lshl_add_u32 v{V_OPART}, v42, 4, v{V_OPART}")
    a(f"""
    v_lshrrev_b32 v{V_OMP}, 1, v41
    v_lshlrev_b32 v{V_OMP}, 5, v{V_OMP}
    v_and_b32 v{V_T1}, 1, v42
    v_lshl_add_u32 v{V_OMP}, v{V_T1}, 4, v{V_OMP}
    v_and_b32 v{V_T1}, 1, v41
    v_lshl_add_u32 v{V_OMP}, v{V_T1}, 3, v{V_OMP}
    s_lshr_b32 s{S_T0}, s{S_H}, 2
    s_lshl_b32 s{S_T0}, s{S_T0}, 10
    s_and_b32 s{S_T1}, s{S_H}, 3
    s_lshl_b32 s{S_T1}, s{S_T1}, {6 if ML else 8}
    s_add_u32 s{S_T0}, s{S_T0}, s{S_T1}
    v_add_u32 v{V_OMP}, s{S_T0}, v{V_OMP}
    """)
    C4 = opt.get("c4", 0)
    if C4:
        a(f"""
        v_lshrrev_b32 v{V_OMP}, 1, v42
        v_lshlrev_b32 v{V_OMP}, 5, v{V_OMP}
        v_and_b32 v{V_T1}, 1, v41
        v_lshl_add_u32 v{V_OMP}, v{V_T1}, 4, v{V_OMP}
        v_and_b32 v{V_T1}, 1, v42
        v_lshl_add_u32 v{V_OMP}, v{V_T1}, 3, v{V_OMP}
        v_lshrrev_b32 v{V_T1}, 1, v41
        v_lshl_add_u32 v{V_OMP}, v{V_T1}, 2, v{V_OMP}
        v_add_u32 v{V_OMP}, s{S_T0}, v{V_OMP}
        s_mov_b32 s{S_MLO}, 0x000f000f
        s_mov_b32 s{S_MLO+1}, 0x000f000f
        """)
    a(f"""
    v_lshrrev_b32 v{V_T1}, 2, v42
    v_lshlrev_b32 v{V_OMR}, 8, v{V_T1}
    v_lshl_add_u32 v{V_OMR}, v41, 6, v{V_OMR}
    v_lshl_add_u32 v{V_OMR}, v{V_T0}, 4, v{V_OMR}
    v_lshlrev_b32 v{V_OCR}, {6 if PL else 8}, v41
    v_lshl_add_u32 v{V_OCR}, v42, 2, v{V_OCR}
    v_cmp_eq_u32 vcc, 0, v{V_T0}
    v_mov_b32 v{V_ONE}, 0x3f803f80
    v_mov_b32 v{V_ONE+1}, 0x3f803f80
    v_cndmask_b32 v{V_TAGM}, 0, 1, vcc
    v_mov_b32 v{V_ONE+2}, 0x3f803f80
    v_mov_b32 v{V_ONE+3}, 0x3f803f80
    """)
    a(f"""
    v_and_b32 v49, 1, v42
    v_lshlrev_b32 v49, 4, v49
    v_mov_b32 v50, 0x3f80
    v_lshlrev_b32 v50, v49, v50           ; 1.0 in low/high half by parity
    v_lshrrev_b32 v51, 2, v42
    v_cmp_eq_u32 vcc, v51, v41
    v_mov_b32 v{V_SELR}, v50
    v_cndmask_b32 v52, 0, v50, s[{S_MQ}:{S_MQ+1}]
    v_cndmask_b32 v53, 0, v50, s[{S_MK}:{S_MK+1}]
    v_cndmask_b32 v{V_SEL}, 0, v52, vcc
    v_cndmask_b32 v{V_SEL+1}, 0, v53, vcc
    v_mov_b32 v{V_SELR+1}, v50
    v_mov_b32 v{V_SELR+2}, v50
    v_mov_b32 v{V_SELR+3}, v50
    """)
    if C4:
        a(f"""
        v_bfe_u32 v49, v42, 2, 1
        v_lshlrev_b32 v49, 4, v49
        v_mov_b32 v50, 0x3f80
        v_lshlrev_b32 v50, v49, v50
        v_and_b32 v51, 11, v42
        """)
        for d, val in enumerate((0, 1, 8, 9)):
            a(f"v_cmp_eq_u32 vcc, {val}, v51")
            a("s_nop 1")
            a(f"v_cndmask_b32 v{V_SELR+d}, 0, v50, vcc")
    a(f"""
    v_bfe_u32 v60, v40, 3, 1              ; r>>1
    v_bfe_u32 v49, v40, 2, 1              ; r&1
    v_and_b32 v50, 1, v41                 ; gb&1
    v_lshrrev_b32 v51, 1, v41             ; gb>>1
    v_lshlrev_b32 v52, 3, v60
    v_lshl_add_u32 v52, v50, 2, v52       ; rho&12
    v_lshl_add_u32 v53, v51, 4, v52
    v_add_u32 v53, v53, v49               ; rho0
    v_and_b32 v54, 3, v40                 ; cc
    s_lshl_b32 s{S_T0}, s{S_WAVE}, 2
    v_add_u32 v55, s{S_T0}, v54
    v_xor_b32 v55, v55, v52
    v_lshlrev_b32 v55, 4, v55
    v_lshl_add_u32 v{VRB}, v53, 8, v55
    v_lshlrev_b32 v55, 4, v52
    v_lshl_add_u32 v55, v54, 3, v55
    v_lshl_add_u32 v{VRO}, v53, 8, v55
    """)
    U_POLL, U_VER = 12, 22
    if tstamp and opt.get('pst'): tstamp()
    for u in range(32):
        m, k = units[u]
        slot = (u & 7) * 16384
        a(f"s_waitcnt vmcnt({4 * (min(u + 8, 32) - u - 1)})")
        a("s_barrier")
        if tstamp and opt.get("pst") and u % 4 == 0: tstamp()
        if u == 26 and opt.get("warm", 1):
            a(f"""
            s_getpc_b64 s[16:17]
            {name}_pc0:
            s_add_u32 s16, s16, {name}_w0_entry - {name}_pc0
            s_addc_u32 s17, s17, 0
            v_lshlrev_b32 v49, 7, v0
            v_min_u32 v49, {name}_end - {name}_w0_entry, v49
            global_load_dword v50, v49, s[16:17]
            v_lshlrev_b32 v49, 7, v40
            s_xor_b32 s{S_T1}, s{S_MEMR}, 16384
            s_cmp_eq_u32 s{S_WAVE}, 1
            s_cselect_b32 s{S_T0}, s{S_MEMR}, s{S_PARTR}
            s_cmp_eq_u32 s{S_WAVE}, 2
            s_cselect_b32 s{S_T0}, s{S_T1}, s{S_T0}
            s_lshl_b32 s{S_T1}, s{S_H}, 13
            s_add_u32 s{S_T1}, s{S_T1}, {WS_KVM}
            s_cmp_eq_u32 s{S_WAVE}, 3
            s_cselect_b32 s{S_T0}, s{S_T1}, s{S_T0}
            buffer_load_dword v51, v49, s[{S_WS}:{S_WS+3}], s{S_T0} offen sc1
            v_lshlrev_b32 v49, 13, v0
            v_and_b32 v49, 0x1fffff, v49
            s_mov_b32 s{S_T0}, {WS_XB}
            buffer_load_dword v52, v49, s[{S_WS}:{S_WS+3}], s{S_T0} offen sc1
            buffer_load_dword v57, v{V_FL}, s[{S_WS}:{S_WS+3}], 0 offen sc1
            """)
        if u == U_POLL and hooks:
            hooks[1]()
            a(f"buffer_load_dword v58, off, s[{S_DBG}:{S_DBG+3}], 0 offset:{DBG_VOTE} sc1")
        if u == U_VER and hooks: hooks[2]()
        if m in "qkv":
            a(f"v_add_u32 v48, {slot}, v{VRB}")
            for tau in range(2):
                for rh in range(2):
                    for dp in range(2):
                        off = rh * 8192 + dp * 512 + 8 * tau
                        if m == "v":
                            base = (64 + tau * 8) if 2 * k < NL else wv_reg(2 * k + tau)
                            d = base + rh * 4 + dp * 2
                            a(f"ds_read_b64_tr_b16 v[{d}:{d+1}], v48 offset:{off}")
                        else:
                            d = (128 if m == "k" else 0) + (k * 2 + tau) * 8 + rh * 4 + dp * 2
                            a(f"ds_read_b64_tr_b16 a[{d}:{d+1}], v48 offset:{off}")
            a("s_waitcnt lgkmcnt(0)")
            a("s_barrier")
            if m == "v":
                src = 64 if 2 * k < NL else 80 + 16 * (k - NL // 2)
                for q in range(4):
                    vb = V_WV if k < 4 else V_WV2
                    a(f"ds_write_b128 v{vb}, v[{src+4*q}:{src+3+4*q}] offset:{(k & 3) * 16384 + q * 1024}")
                a("s_waitcnt lgkmcnt(0)")
        else:
            kp, om = k >> 2, k & 3
            a(f"s_cmp_lg_u32 s{S_WAVE}, {om}\ns_cbranch_scc1 {name}_wo{k}")
            for T8 in range(8):
                if T8 & 1 == 0:
                    a(f"v_xor_b32 v48, {(T8 >> 1) * 64}, v{VRO}")
                    a(f"v_add_u32 v48, {slot}, v48")
                base = V_WO + 8 * WO_R.index((T8, kp)) if (T8, kp) in WO_R else 80 + 8 * WO_L.index((T8, kp))
                for rh in range(2):
                    for dp in range(2):
                        d = base + rh * 4 + dp * 2
                        a(f"ds_read_b64_tr_b16 v[{d}:{d+1}], v48 offset:{rh*8192 + dp*512 + 32*(T8 & 1)}")
                if T8 & 1: a("s_waitcnt lgkmcnt(0)")
            a.label(f"{name}_wo{k}")
            a("s_barrier")
        if u + 8 < 32:
            dma_unit(u + 8)
    if opt.get("help"):
        n = opt["help"]
        a(f"""
        v_lshlrev_b32 v49, 7, v40
        s_and_b32 s{S_T0}, s{S_H}, {64 // n - 1}
        s_lshl_b32 s{S_T0}, s{S_T0}, 2
        s_add_u32 s{S_T0}, s{S_T0}, s{S_WAVE}
        s_mul_i32 s{S_T0}, s{S_T0}, {n * 8192}
        s_lshl_b32 s{S_T1}, s{S_J}, 22
        s_add_u32 s{S_T0}, s{S_T0}, s{S_T1}
        s_add_u32 s{S_T0}, s{S_T0}, {2*MB}
        """)
        for i in range(n):
            a(f"buffer_load_dword v50, v49, s[{S_W}:{S_W+3}], s{S_T0} offen")
            a(f"s_add_u32 s{S_T0}, s{S_T0}, 8192")
    if prof or opt.get("tot"):
        for i in range(62, 98):
            a(f"s_mov_b32 s{i}, 0")
    if S_VOTE:
        a(f"s_branch {name}_iw1" if hooks else "")
        a.label(f"{name}_iw")
        watchdog(1)
        a(f"""
        buffer_load_dword v58, off, s[{S_DBG}:{S_DBG+3}], 0 offset:{DBG_VOTE} sc1
        s_waitcnt vmcnt(0)
        {name}_iw1:
        v_and_b32 v50, 0xffff, v58
        v_readfirstlane_b32 s{S_SEL}, v58
        v_cmp_ne_u32 vcc, s{S_VOTE}, v50
        s_cbranch_vccnz {name}_iw
        s_lshr_b32 s{S_SEL}, s{S_SEL}, 15
        s_cmp_gt_u32 s{S_SEL}, s{S_VOTE}
        s_cselect_b32 s{S_SEL}, 8192, 0
        """)
    else:
        a(f"""
        s_mov_b32 s{S_T0}, {WS_PROF + 3*MB}
        buffer_load_dword v48, v{V_Z}, s[{S_WS}:{S_WS+3}], s{S_T0} offen
        s_waitcnt vmcnt(0)
        v_readfirstlane_b32 s{S_SEL}, v48
        s_nop 3
        s_and_b32 s{S_SEL}, s{S_SEL}, 8192
        """)
    a(f"""
    {f"s_mov_b32 s{S_T0}, {opt['xpage']}" if 'xpage' in opt else f"s_bfe_u32 s{S_T0}, s{S_H}, 0x10001"}
    s_lshl_b32 s{S_T0}, s{S_T0}, 12
    s_add_u32 s{S_T0}, s{S_T0}, s{S_SEL}
    s_lshl_b32 s{S_T1}, s{S_WAVE}, 10
    s_add_u32 s{S_T0}, s{S_T0}, s{S_T1}
    s_add_u32 s{S_XIN}, s{S_XIN}, s{S_T0}
    s_add_u32 s{S_XOUT}, s{S_XOUT}, s{S_T0}
    s_xor_b32 s{S_VIN}, s{S_XIN}, 4096
    s_xor_b32 s{S_VOUT}, s{S_XOUT}, 4096
    s_xor_b32 s{S_MEMW}, s{S_MEMR}, 16384
    s_mov_b32 s{S_STEP}, 0
    s_cmp_eq_u32 s{S_J}, 0
    s_mov_b32 s{S_T0}, 0x33003300
    s_cselect_b32 s{S_PUBK}, 0x00330033, s{S_T0}
    s_mov_b32 s{S_PUBK+1}, s{S_PUBK}
    s_cselect_b32 s{S_PUBV}, -1, 0
    s_not_b32 s{S_PUBV+1}, s{S_PUBV}
    s_lshl_b32 s{S_T0}, s{S_H}, 13
    s_lshl_b32 s{S_T1}, s{S_WAVE}, 11
    s_add_u32 s{S_T0}, s{S_T0}, s{S_T1}
    s_add_u32 s{S_KX}, s{S_T0}, {WS_KX}
    s_add_u32 s{S_VX}, s{S_T0}, {WS_VT}
    s_lshl_b32 s{S_KVM}, s{S_H}, 13
    s_add_u32 s{S_KVM}, s{S_KVM}, {WS_KVM}
    s_mul_i32 s{S_M0X}, s{S_WAVE}, 5120
    s_add_u32 m0, s{S_M0X}, {LDS_X + 1024}
    s_mov_b32 s{S_PHX}, 1
    s_mov_b32 s{S_PHP}, 1
    v_mov_b32 v0, v{V_TAGM}
    v_bfrev_b32 v{V_OMR}, 1
    """)
    PI = opt.get("pinv", 0)
    if PI:
        a(f"""
        v_lshlrev_b32 v48, 4, v{V_OVM}
        v_and_b32 v49, 0x400, v48
        v_mul_u32_u24 v49, 5, v49
        v_xor_b32 v48, v49, v48
        s_and_b32 s{S_T1}, s{S_XOUT}, 4096
        v_xor_b32 v48, s{S_T1}, v48
        v_cmp_gt_u32 vcc, {opt.get('pil', 12) * 8}, v{V_OVM}
        s_andn2_b32 s{S_PI}, s{S_XIN}, 4096
        s_xor_b32 s{S_PI}, s{S_PI}, {MB}
        v_cndmask_b32 v{V_OMR}, v{V_OMR}, v48, vcc
        """)
    a(f"""
    v_bfrev_b32 v{V_T0}, 1
    v_cndmask_b32 v{V_OKM}, v{V_T0}, v{V_OKM}, s[{S_PUBK}:{S_PUBK+1}]
    v_cndmask_b32 v{V_OMP}, v{V_T0}, v{V_OMP}, s[{S_MLO}:{S_MLO+1}]
    s_sub_u32 s{S_KVM}, s{S_KVM}, {32*8192 if opt.get('pubat', 11) == 'A' else 0}
    s_lshl_b32 s{S_KVV}, s{S_J}, 11
    s_add_u32 s{S_KVV}, s{S_KVV}, s{S_KVM}
    """)
    V_TAGM = 0
    S_KN = 50
    kvn = [0]
    def kv_eval(reg):
        a(f"""
        v_readlane_b32 s{S_KN}, v{reg}, 0
        v_readlane_b32 s{S_T0}, v{reg}, 2
        v_readlane_b32 s{S_T1}, v{reg}, 1
        v_readlane_b32 s{S_T2}, v{reg}, 3
        s_nop 3
        s_min_u32 s{S_KN}, s{S_KN}, s{S_T0}
        s_min_u32 s{S_T1}, s{S_T1}, s{S_T2}
        s_lshl_b32 s{S_KN}, s{S_KN}, 1
        s_lshl_b32 s{S_T1}, s{S_T1}, 1
        s_add_u32 s{S_T1}, s{S_T1}, 1
        s_min_u32 s{S_KN}, s{S_KN}, s{S_T1}
        """)
    def kv_block(reg, plus):
        n = kvn[0]; kvn[0] += 1
        a.label(f"{name}_kvb{n}")
        a(f"""
        s_add_u32 s{S_T0}, s{S_STEP}, {plus}
        s_min_u32 s{S_T0}, s{S_T0}, 63
        s_cmp_gt_u32 s{S_KN}, s{S_T0}
        s_cbranch_scc1 {name}_kvd{n}
        """)
        watchdog(5)
        a(f"""
        buffer_load_dword v{reg}, v{V_FL}, s[{S_WS}:{S_WS+3}], 0 offen sc1
        s_waitcnt vmcnt(0)
        """)
        kv_eval(reg)
        a(f"s_branch {name}_kvb{n}")
        a.label(f"{name}_kvd{n}")
    if full:
        a(f"s_mov_b32 s{S_KN}, 0\ns_cmp_lg_u32 s{S_WAVE}, 3\ns_cbranch_scc1 {name}_kv0")
        kv_eval(57)
        kv_block(48, 1)
        a.label(f"{name}_kv0")
    if tstamp: tstamp()
    a("s_barrier")
    if opt.get("tot"):
        a("s_memtime s[98:99]\ns_memrealtime s[96:97]\ns_waitcnt lgkmcnt(0)")
    a(f"""
    s_cmp_eq_u32 s{S_WAVE}, 1
    s_cbranch_scc1 {name}_w1_entry
    s_cmp_eq_u32 s{S_WAVE}, 2
    s_cbranch_scc1 {name}_w2_entry
    s_cmp_eq_u32 s{S_WAVE}, 3
    s_cbranch_scc1 {name}_w3_entry
    """)

    SRD = f"s[{S_WS}:{S_WS+3}]"
    def smf(d, am, b):
        a(f"v_smfmac_f32_16x16x64_bf16 v[{d}:{d+3}], v[{am}:{am+3}], {b}, v{V_IDX}")
    def pkadd(d):
        a(f"v_pk_add_f32 v[{d}:{d+1}], v[{d}:{d+1}], v[{d+2}:{d+3}]")
    def zero32(d):
        a(f"v_mfma_f32_32x32x4_2b_bf16 v[{d}:{d+31}], v[{V_Z}:{V_Z+1}], v[{V_Z}:{V_Z+1}], 0")

    def wave_loop(w):
        L = f"{name}_w{w}"
        def lop_read(op, d):
            k, tau = op >> 1, op & 1
            vb = V_L16 if k < 4 else V_LH
            for rh in range(2):
                a(f"ds_read_b128 v[{d+4*rh}:{d+4*rh+3}], v{vb} offset:{(k & 3) * 16384 + w * 4096 + tau * 2048 + rh * 1024}")
        def wv_read(op):
            lop_read(op, V_ST + 8 * (op & 3))
        def qk(k, t):
            wb = (128 if t >= 2 else 0) + (k * 2 + (t & 1)) * 8
            smf(V_AQ + 4 * t, V_M + 4 * k, f"a[{wb}:{wb+7}]")
        def top():
            a(f"v_mfma_f32_32x32x8_bf16 v[{V_AQ}:{V_AQ+15}], v[{V_Z}:{V_Z+1}], v[{V_Z}:{V_Z+1}], 0")
            a(f"v_mfma_f32_16x16x16_bf16 v[{V_AV}:{V_AV+3}], v[{V_Z}:{V_Z+1}], v[{V_Z}:{V_Z+1}], 0")
            a(f"v_mfma_f32_16x16x16_bf16 v[{V_AV+4}:{V_AV+7}], v[{V_Z}:{V_Z+1}], v[{V_Z}:{V_Z+1}], 0")
            for op in range(4):
                wv_read(op)
        def xoff(u):
            return LDS_X - LDS_MEM + (w ^ u) * 5120

        VXB = opt.get("vxb", 1)
        ldvx = [f"buffer_load_dwordx4 v[{V_VX}:{V_VX+3}], v{V_L16}, {SRD}, s{S_VX} offen",
                f"buffer_load_dwordx4 v[{V_VX+4}:{V_VX+7}], v{V_L16}, {SRD}, s{S_VX} offen offset:1024"]
        VD = opt.get("vdma", 0)
        if VD:
            ldvx = [f"buffer_load_dwordx4 v{V_L16}, {SRD}, s{S_VX} offen offset:2048 lds",
                    f"buffer_load_dwordx4 v{V_L16}, {SRD}, s{S_VX} offen offset:3072 lds"]
        KXB = opt.get("kxb", 0)
        ldkx = [f"buffer_load_dwordx4 v{V_L16}, {SRD}, s{S_KX} offen lds",
                f"buffer_load_dwordx4 v{V_L16}, {SRD}, s{S_KX} offen offset:1024 lds"]
        a.label(f"{L}_entry")
        top()
        if KXB:
            a(ldkx[0]); a(ldkx[1])
            a(f"s_add_u32 s{S_KX}, s{S_KX}, {32*8192}")
        if VD: a(f"s_sub_u32 s{S_VX}, s{S_VX}, 2048")
        if VXB:
            a(ldvx[0]); a(ldvx[1])
            a(f"s_add_u32 s{S_VX}, s{S_VX}, {32*8192}")
        a.label(f"{L}_loop")
        dump()
        stamp(0)
        NB = opt.get("nb", 3)
        k0, k1 = 2 * w, 2 * w + 1
        m0, m1 = V_M + 4 * k0, V_M + 4 * k1
        a(f"s_add_u32 s{S_T0}, s{S_MEMR}, {k0 * 1024}")
        if PI == 5: a(f"v_mov_b32 v{V_T1}, 0")
        EO = opt.get('eo', 0)
        if EO: pass
        elif opt.get("preA") == "ack1": a("s_waitcnt vmcnt(1)")
        elif opt.get("preA") == "ack":
            a("s_waitcnt vmcnt(0)"); a.nops(opt.get("xA", 0))
        elif opt.get("preA"): a.nops(opt["preA"])
        own = [(k0, t) for t in range(4)] + [(k1, t) for t in range(4)]
        lda = f"""
        buffer_load_dwordx4 v[{m0}:{m0+3}], v{V_L16 if ML else V_OMR}, {SRD}, s{S_T0} offen sc1
        buffer_load_dwordx4 v[{m1}:{m1+3}], v{V_L16 if ML else V_OMR}, {SRD}, s{S_T0} offen offset:1024 sc1
        """
        AD = opt.get("ad", 0)
        others = [(k0 + 2 + i) & 7 for i in range(6)]
        n0, n1 = V_M + 4 * others[4], V_M + 4 * others[5]
        ldE, ldO = lda.strip().split("\n")
        evens = [(k0 + 2 * i) & 7 for i in range(1, 4)]
        odds = [(k1 + 2 * i) & 7 for i in range(1, 4)]
        rdk = lambda k: f"ds_read_b128 v[{V_M+4*k}:{V_M+4*k+3}], v{V_LL} offset:{k*1024}"
        if EO:
            NBE = opt.get("nbe", 3)
            a.nops(opt.get("eD", 0))
            a(ldE)
            a("s_waitcnt vmcnt(0)")
            a.label(f"{L}_ea")
            a(f"""
            ds_write_b128 v{V_LL}, v[{m0}:{m0+3}] offset:{k0*1024}
            {ldO}
            v_max_u32 v{V_T0}, v{m0}, v{m0+2}
            v_cmp_eq_u32 vcc, -1, v{V_T0}
            """)
            stamp(1)
            for t in range(NBE): qk(k0, t)
            a(f"s_cbranch_vccnz {L}_efail\ns_waitcnt lgkmcnt(0)\ns_barrier")
            for k in evens: a(rdk(k))
            for t in range(NBE, 4): qk(k0, t)
            se = [(k, t) for k in evens for t in range(4)]
            NE1 = opt.get("ne1", 6)
            for i, x in enumerate(se):
                if i % 4 == 0:
                    a(f"s_waitcnt lgkmcnt({2 - i // 4 + (1 if i > NE1 else 0)})")
                if i == NE1:
                    a(f"s_waitcnt vmcnt(0)\nds_write_b128 v{V_LL}, v[{m1}:{m1+3}] offset:{k1*1024}")
                qk(*x)
                if i == NE1: a(f"v_max_u32 v{V_T0}, v{m1}, v{m1+2}")
                if i == NE1 + 1: a(f"v_cmp_eq_u32 vcc, -1, v{V_T0}")
                if i == NE1 + 2: a(ldO)
            a(f"s_cbranch_vccnz {L}_ofail")
            a.label(f"{L}_ob")
            a("s_waitcnt lgkmcnt(0)\ns_barrier")
            stamp(2)
            others = odds
        else:
            a(lda)
            if AD:
                a.nops(AD)
                a(f"""
                buffer_load_dwordx4 v[{n0}:{n0+3}], v{V_L16 if ML else V_OMR}, {SRD}, s{S_T0} offen sc1
                buffer_load_dwordx4 v[{n1}:{n1+3}], v{V_L16 if ML else V_OMR}, {SRD}, s{S_T0} offen offset:1024 sc1
                s_waitcnt vmcnt(2)
                """)
            a.label(f"{L}_pa")
            if AD:
                a(f"""
                ds_write_b128 v{V_LL}, v[{m0}:{m0+3}] offset:{k0*1024}
                ds_write_b128 v{V_LL}, v[{m1}:{m1+3}] offset:{k1*1024}
                """)
            else:
                a(f"""
                s_waitcnt vmcnt(1)
                ds_write_b128 v{V_LL}, v[{m0}:{m0+3}] offset:{k0*1024}
                s_waitcnt vmcnt(0)
                ds_write_b128 v{V_LL}, v[{m1}:{m1+3}] offset:{k1*1024}
                """)
            chk = [f"v_max3_u32 v{V_T0}, v{m0}, v{m0+2}, v{m1}", f"v_max_u32 v{V_T0}, v{V_T0}, v{m1+2}", f"v_cmp_eq_u32 vcc, -1, v{V_T0}"]
            stamp(1)
            if C4:
                chk = [f"v_max3_u32 v{V_T0}, v{m0}, v{m0+1}, v{m0+2}", f"v_max3_u32 v{V_T0}, v{V_T0}, v{m0+3}, v{m1}",
                       f"v_max3_u32 v{V_T0}, v{V_T0}, v{m1+1}, v{m1+2}", f"v_max_u32 v{V_T0}, v{V_T0}, v{m1+3}", chk[2]]
                a(chk[0]); a(chk[1])
                qk(*own[0]); a(chk[2]); a(chk[3])
                qk(*own[1]); a(chk[4]); a(ldE)
                qk(*own[2]); a(ldO)
            else:
                a(chk[0]); a(chk[1]); a(chk[2])
                for i, x in enumerate(own[:NB]):
                    qk(*x)
                    if opt.get("are") and i < 2: a(lda.strip().split("\n")[i])
            a(f"s_cbranch_vccnz {L}_pafail\ns_waitcnt lgkmcnt(0)\ns_barrier")
            stamp(2)
        rd = [f"ds_read_b128 v[{V_M+4*k}:{V_M+4*k+3}], v{V_LL} offset:{k*1024}" for k in others]
        if AD: rd[4] = "s_waitcnt vmcnt(0)\n" + rd[4]
        ld = [f"buffer_load_dwordx4 v{V_L16}, {SRD}, s{S_KX} offen lds",
              f"buffer_load_dwordx4 v{V_L16}, {SRD}, s{S_KX} offen offset:1024 lds"] + ([] if VXB else ldvx)
        pubd = (f"buffer_store_dwordx4 v[{V_PB1}:{V_PB1+3}], v{V_OKM}, {SRD}, s{S_KVM} offen offset:{w*64} sc1",
                f"buffer_store_dwordx2 v[{V_PV}:{V_PV+1}], v{V_OVM}, {SRD}, s{S_KVV} offen offset:{2048 + w*512} sc1")
        fill = rd + ld + ([x.replace(" sc1", "").replace(f"s{S_KVM}", f"s{S_PARTR}").replace(f"s{S_KVV}", f"s{S_PARTR}").replace(f"v{V_OVM}", f"v{V_OMR}").replace(f"v{V_OKM}", f"v{V_OMR}") for x in pubd] if opt.get("nopub") else list(pubd))
        if KXB: ld = []
        PUBA = opt.get("pubat", 11) == "A"
        if not PUBA:
            fill = rd + ld
            if full and w == 0:
                fill.append(f"v_mov_b32 v{V_T1}, s{S_STEP}\nbuffer_store_dword v{V_T1}, v{V_FL}, {SRD}, 0 offen sc1")
        pubn = (pubd[0].replace(f"v[{V_PB1}:{V_PB1+3}]", f"v[{V_X}:{V_X+3}]"), pubd[1])
        pist = f"buffer_store_dword v{V_Z}, v{V_OMR}, {SRD}, s{S_PI} offen offset:4 sc1\ns_xor_b32 s{S_PI}, s{S_PI}, {MB}"
        if PI == 3: fill.insert(len(rd) + 2 * opt.get("pia", 0), pist)
        if PI == 5:
            pi5 = [f"s_xor_b32 s{S_PI}, s{S_XIN}, {MB}\nbuffer_store_dwordx4 v[{V_T1}:{V_T1+3}], v{V_L16}, {SRD}, s{S_PI} offen sc1",
                   f"s_xor_b32 s{S_PI}, s{S_VIN}, {MB}\nbuffer_store_dwordx2 v[{V_T1}:{V_T1+1}], v{V_OVM}, {SRD}, s{S_PI} offen sc1"]
            fill[len(rd):len(rd)] = pi5[:opt.get("pin", 2)]
        KVW = full and w == 3
        if KVW: fill.append(f"buffer_load_dword v{V_OMR}, v{V_FL}, {SRD}, 0 offen sc1")
        T0, T1, T2, T3 = V_AQ, V_AQ + 4, V_AQ + 8, V_AQ + 12
        if EO: NB = 4
        seq = own[NB:] + [(k, t) for k in others for t in (0, 2)]
        a(fill.pop(0)); a(fill.pop(0))
        issued = 2
        for i, x in enumerate(seq):
            if i >= 8 - NB and (i - (8 - NB)) % 2 == 0:
                need = (i - (8 - NB)) // 2 + 1
                assert issued >= need
                a(f"s_waitcnt lgkmcnt({issued - need})")
            qk(*x)
            if fill and ("ds_read" in fill[0] or (i >= opt.get("kxl", 0) and i % opt.get("fsp", 1) == (w % opt.get("fsp", 1)))):
                a(fill.pop(0))
                if "ds_read" in a.lines[-1]: issued += 1
        while fill: a(fill.pop(0))
        f1 = f"""
        v_add_f32 v{T0}, v{T0}, v{T0+2}
        v_add_f32 v{T0+1}, v{T0+1}, v{T0+3}
        v_add_f32 v{T2}, v{T2}, v{T2+2}
        v_add_f32 v{T2+1}, v{T2+1}, v{T2+3}
        v_cvt_pk_bf16_f32 v{G}, v{T0}, v{T0+1}
        v_cvt_pk_bf16_f32 v{G+1}, v{T2}, v{T2+1}
        v_and_or_b32 v{G}, v{G}, -2, s{S_PHX}
        buffer_store_dwordx2 v[{G}:{G+1}], v{V_OVM}, {SRD}, s{S_XOUT} offen {XS}
        """.strip().split("\n")
        seq2 = [(k, 1) for k in others] + [(k, 3) for k in others]
        F1N = opt.get("f1n", 2)
        f2 = [f"v_add_f32 v{T1}, v{T1}, v{T1+2}", f"v_add_f32 v{T1+1}, v{T1+1}, v{T1+3}"]
        st = 0
        n2 = len(seq2)
        for i, x in enumerate(seq2):
            qk(*x); st += 1
            if i < 2 and not (i == 1 and opt.get("f1e")):
                a.nops(3); st += 3
            elif f1:
                if i == 1: a.nops(2)
                for _ in range(F1N if i >= opt.get("f1s", 0) else 1):
                    if f1: a(f1.pop(0))
            elif i >= n2 - 2 and not EO:
                if i == n2 - 2: a.nops(3)
                a(f2.pop(0))
        assert not f1
        stamp(3)
        for l in f2: a(l)
        a(f"""
        v_cvt_pk_bf16_f32 v{G+2}, v{T1}, v{T1+1}
        v_and_or_b32 v{G+2}, v{G+2}, -2, s{S_PHX}
        """)
        a.nops(6 - len(f2) - (0 if EO else 1))
        a(f"""
        v_pk_add_f32 v[{T3}:{T3+1}], v[{T3}:{T3+1}], v[{T3+2}:{T3+3}]
        v_cvt_pk_bf16_f32 v{G+3}, v{T3}, v{T3+1}
        buffer_store_dwordx2 v[{G+2}:{G+3}], v{V_OVM}, {SRD}, s{S_XOUT} offen offset:512 {XS}
        """)
        def vsm(op):
            k, tau = op >> 1, op & 1
            d = V_ST + 8 * (op & 3) if op < NL else wv_reg(op)
            smf(V_AV + 4 * tau, V_M + 4 * k, f"v[{d}:{d+7}]")
        if PI == 3 and opt.get("pia"): vm = ["kx", "vx", "pi"]
        else: vm = (["pi"] if PI == 3 else ["pi"] * opt.get("pin", 2) if PI == 5 else []) + ([] if KXB else ["kx", "vx"]) + (["pk", "pv"] if PUBA else ["rp"] if (full and w == 0) else []) + (["fl"] if KVW else [])
        def vwait(tag):
            n = len(vm) - 1 - max(i for i, t in enumerate(vm) if t == tag)
            a(f"s_waitcnt vmcnt({n})")
        vm.append("s1")
        vm.append("sq")
        stamp(4)
        XP = opt.get("xp", (14,))
        PB = [PG, V_PB1]
        def ldx(b):
            a(f"buffer_load_dwordx2 v[{PB[b]+2}:{PB[b]+3}], v{V_OVM}, {SRD}, s{S_XIN} offen offset:512 {XL}")
        def ldy(b):
            a(f"buffer_load_dwordx2 v[{PB[b]}:{PB[b]+1}], v{V_OVM}, {SRD}, s{S_XIN} offen {XL}")
        def xpoint(p):
            if p == opt.get("yp", 32):
                ldy(0); vm.append("y")
            if p == XP[0]:
                ldx(0); vm.append("x0")
            if p == XP[1]:
                ldy(1); ldx(1); vm.append("y1"); vm.append("x1")
        ldv = f"buffer_load_dwordx2 v[{V_AV+4}:{V_AV+5}], v{V_OVM}, {SRD}, s{S_VIN} offen {XL}"
        vorder = {10: [0, 1, 2, 3, 10, 11, 12, 4, 5, 13, 14, 15, 6, 7, 8, 9], 12: [0, 1, 2, 3, 12, 13, 4, 5, 14, 6, 7, 15, 8, 9, 10, 11],
                  14: [0, 1, 2, 3, 14, 15] + list(range(4, 14)), 16: list(range(16))}[NL]
        pend = []
        for i, op in enumerate(vorder):
            if op in pend:
                a(f"s_waitcnt lgkmcnt({2 * (len(pend) - 1 - pend.index(op))})")
            vsm(op)
            if op + 4 < NL:
                wv_read(op + 4); pend.append(op + 4)
            xpoint(i)
        stamp(5)
        a(f"v_mfma_f32_16x16x16_bf16 v[{DO}:{DO+3}], v[{G}:{G+1}], v[{V_SEL}:{V_SEL+1}], 0")
        a(f"v_mfma_f32_16x16x16_bf16 v[{DO+4}:{DO+7}], v[{G+2}:{G+3}], v[{V_SEL}:{V_SEL+1}], 0")
        a.nops(5)
        a(f"""
        v_add_f32 v{V_AV}, v{V_AV}, v{V_AV+2}
        v_add_f32 v{V_AV+1}, v{V_AV+1}, v{V_AV+3}
        v_add_f32 v{V_AV+2}, v{V_AV+4}, v{V_AV+6}
        v_add_f32 v{V_AV+3}, v{V_AV+5}, v{V_AV+7}
        v_cvt_pk_bf16_f32 v{V_PV}, v{V_AV}, v{V_AV+1}
        v_cvt_pk_bf16_f32 v{V_PV+1}, v{V_AV+2}, v{V_AV+3}
        v_and_or_b32 v{V_PV}, v{V_PV}, -2, s{S_PHX}
        """)
        VS = opt.get("vs", 17)
        def vstore(p):
            if p != VS: return
            if PI in (3, 5): vwait("pi")
            if opt.get("vbar"): a("s_barrier")
            a(f"buffer_store_dwordx2 v[{V_PV}:{V_PV+1}], v{V_OVM}, {SRD}, s{S_VOUT} offen {XS}")
            vm.append("sv")
            if PI == 4: a(pist); vm.append("pi")
        xpoint(16)
        vstore(17)
        xpoint(17)
        stamp(6)
        OZ = 92
        a(f"""
        v_mov_b32 v{V_AV}, v{V_PV}
        v_mov_b32 v{V_AV+2}, v{V_PV+1}
        v_mov_b32 v{OZ}, v{V_ONE}
        v_mov_b32 v{OZ+1}, 0
        """)
        for i, dl in enumerate(opt.get("xe", ())):
            a.nops(dl)
            xpoint(50 + i)
            vstore(50 + i)
        if not KXB: vwait("vx")
        stamp(7)
        if not KXB: a("s_barrier")
        else: a.nops(opt.get("kxd", 0))
        for u in range(4):
            xpoint(30 + u); vstore(30 + u)
            for t in range(2):
                d = V_KX + 8 * u + 4 * t
                a(f"ds_read_b128 v[{d}:{d+3}], v{V_LL} offset:{xoff(u) + 1024*(1+t)}")
        xpoint(18)
        vstore(18)
        if VD:
            for t in range(2):
                a(f"ds_read_b128 v[{V_VX+4*t}:{V_VX+4*t+3}], v{V_LL} offset:{xoff(0) + 3072 + 1024*t}")
        for i, dl in enumerate(opt.get("xd", ())):
            a.nops(dl)
            xpoint(19 + i)
            vstore(19 + i)
        stamp(8)
        XD = V_S
        def xtry(b):
            p = PB[b] + 2
            a(f"""
            v_mfma_f32_16x16x16_bf16 v[{XD+4}:{XD+7}], v[{p}:{p+1}], v[{V_SEL}:{V_SEL+1}], v[{DO+4}:{DO+7}]
            v_and_b32 v{V_T0}, 1, v{p}
            v_cmp_ne_u32 vcc, s{S_PHX}, v{V_T0}
            s_nop 5
            v_cvt_pk_bf16_f32 v{V_X+2}, v{XD+4}, v{XD+5}
            v_cvt_pk_bf16_f32 v{V_X+3}, v{XD+6}, v{XD+7}
            ds_write_b128 v{V_LL}, v[{V_X}:{V_X+3}] offset:{xoff(0)}
            """)
        vwait("y")
        a(f"""
        v_mfma_f32_16x16x16_bf16 v[{XD}:{XD+3}], v[{PG}:{PG+1}], v[{V_SEL}:{V_SEL+1}], v[{DO}:{DO+3}]
        v_and_b32 v{V_T0}, 1, v{PG}
        v_cmp_ne_u32 vcc, s{S_PHX}, v{V_T0}
        """)
        xpoint(40)
        a(f"""
        s_nop {3 if XP[1] == 40 else 5}
        v_cvt_pk_bf16_f32 v{V_X}, v{XD}, v{XD+1}
        v_cvt_pk_bf16_f32 v{V_X+1}, v{XD+2}, v{XD+3}
        s_cbranch_vccnz {L}_xslow
        """)
        vwait("x0")
        stamp(9)
        xtry(0)
        a(f"s_cbranch_vccnz {L}_xslow")
        a.label(f"{L}_xok")
        vm_x = list(vm)
        a(f"s_cmp_eq_u32 s{S_STEP}, {nsteps-1}\ns_cbranch_scc1 {L}_last")
        VL = opt.get("vlate", 0)
        ldv2 = f"buffer_load_dwordx2 v[{V_PB1}:{V_PB1+1}], v{V_OVM}, {SRD}, s{S_VIN} offen {XL}"
        if not VL: a(ldv)
        a("s_waitcnt lgkmcnt(1)")
        def score(u, ts=(0, 1, 2)):
            x = V_X + 4 * u
            for t in ts:
                src = (V_KX + 8 * u + 4 * t) if t < 2 else x
                d = V_S + 4 * t
                c = "0" if u == 0 else f"v[{d}:{d+3}]"
                a(f"v_mfma_f32_16x16x32_bf16 v[{d}:{d+3}], v[{src}:{src+3}], v[{x}:{x+3}], {c}")
        score(0, (0,))
        a("s_waitcnt lgkmcnt(0)\ns_barrier")
        stamp(10)
        for u in range(1, 4):
            a(f"ds_read_b128 v[{V_X+4*u}:{V_X+4*u+3}], v{V_LL} offset:{xoff(u)}")
        score(0, (1, 2))
        a(ldv if VL else ldv2)
        if opt.get("pubat", 11) == 10: a(pubn[0]); a(pubn[1])
        vchk = f"""
        s_waitcnt vmcnt({(1 if PUBA else 2 if opt.get("pubat") == 13 else 3) + 2 * VD + 2 * (KXB == 1) + (PI == 2)})
        v_and_b32 v{V_T0}, 1, v{V_AV+4}
        v_cmp_ne_u32 vcc, s{S_PHX}, v{V_T0}
        v_mov_b32 v{V_AV+1}, v{V_AV+4}
        v_mov_b32 v{V_AV+3}, v{V_AV+5}
        """.strip().split("\n")
        MX, TM = V_T1, V_S + 10
        P = V_X + 4
        sq = [(u, t) for t in range(3) for u in range(1, 4)]
        pk_at, pv_at = {0: (3, 4), 1: (w, 4 + w), 2: (1 + w, 5 + w), 3: (2 * w, 2 * w + 1)}[opt.get("pst2", 1)]
        for i, (u, t) in enumerate(sq):
            if i < 3: a(f"s_waitcnt lgkmcnt({2 - i})")
            score(u, (t,))
            if opt.get("pubat", 11) == 11:
                if i == pk_at: a(pubn[0])
                if i == pv_at: a(pubn[1])
            if PI == 2 and i == (pk_at + 2) % 9: a(pist)
            if KXB == 1:
                if i == (pk_at + 2) % 9: a(ldkx[0])
                if i == (pv_at + 2) % 9: a(ldkx[1])
        zero32(V_ACC)
        stamp(11)
        PB2 = opt.get("pubat", 11) in (12, 13)
        a(f"""
        {pubn[0] if PB2 else "s_nop 0"}
        v_max3_f32 v{MX}, v{V_S}, v{V_S+1}, v{V_S+2}
        {pubn[1] + chr(10) + "s_nop 0" if opt.get("pubat") == 12 else "s_nop 1"}
        v_max3_f32 v{MX}, v{MX}, v{V_S+3}, v{V_S+4}
        v_max3_f32 v{MX}, v{MX}, v{V_S+5}, v{V_S+6}
        v_max_f32 v{MX}, v{MX}, v{V_S+7}
        v_max3_f32 v{TM}, v{MX}, v{V_S+8}, v{V_S+9}
        v_max3_f32 v{MX}, v{MX}, v{V_S+8}, v{V_S+9}
        s_nop 1
        v_permlane16_swap_b32 v{MX}, v{TM}
        v_max_f32 v{MX}, v{MX}, v{TM}
        v_max_f32 v{TM}, v{MX}, v{TM}
        s_nop 1
        v_permlane32_swap_b32 v{MX}, v{TM}
        v_max_f32 v{MX}, v{MX}, v{TM}
        v_mul_f32 v{MX}, s{S_C}, v{MX}
        """)
        if VD:
            idx = [i for i, l in enumerate(a.lines) if l.strip().startswith("s_nop")][-4:]
            a.lines.insert(idx[w], "    " + ldvx[0])
        for i in range(0, 10, 2):
            a(f"v_pk_fma_f32 v[{V_S+i}:{V_S+i+1}], v[{V_S+i}:{V_S+i+1}], s[{S_C}:{S_C+1}], v[{MX}:{MX+1}] op_sel_hi:[1,0,0] neg_lo:[0,0,1] neg_hi:[0,0,1]")
        for i in range(8):
            a(f"v_exp_f32 v{V_S+i}, v{V_S+i}")
            if i >= 2 and i % 2 == 0:
                a(f"v_cvt_pk_bf16_f32 v{P+i//2-1}, v{V_S+i-2}, v{V_S+i-1}")
            if VD and i == 2 * w + 1: a(ldvx[1])
        O, SM = DO, V_X + 12
        OB = V_S + 4
        a(f"""
        v_exp_f32 v{V_S+8}, v{V_S+8}
        v_cvt_pk_bf16_f32 v{P+3}, v{V_S+6}, v{V_S+7}
        v_exp_f32 v{V_S+9}, v{V_S+9}
        {vchk[0]}
        """)
        stamp(12)
        a(f"""
        v_mfma_f32_16x16x32_bf16 v[{SM}:{SM+3}], v[{V_ONE}:{V_ONE+3}], v[{P}:{P+3}], 0
        {vchk[1]}
        v_cvt_pk_bf16_f32 v{P+4}, v{V_S+8}, v{V_S+9}
        v_mfma_f32_16x16x32_bf16 v[{O}:{O+3}], v[{V_VX}:{V_VX+3}], v[{P}:{P+3}], 0
        {vchk[2]}
        v_cvt_pk_bf16_f32 v{P+5}, v{V_S+8}, v{V_S+9}
        v_mfma_f32_16x16x32_bf16 v[{O+4}:{O+7}], v[{V_VX+4}:{V_VX+7}], v[{P}:{P+3}], 0
        {vchk[3]}
        {vchk[4]}
        v_mfma_f32_16x16x16_bf16 v[{SM}:{SM+3}], v[{OZ}:{OZ+1}], v[{P+4}:{P+5}], v[{SM}:{SM+3}]
        s_cbranch_vccnz {L}_pv0
        {L}_pv2:
        v_mfma_f32_16x16x16_bf16 v[{O}:{O+3}], v[{V_AV}:{V_AV+1}], v[{P+4}:{P+5}], v[{O}:{O+3}]
        v_mfma_f32_16x16x16_bf16 v[{O+4}:{O+7}], v[{V_AV+2}:{V_AV+3}], v[{P+4}:{P+5}], v[{O+4}:{O+7}]
        """)
        stamp(13)
        nn = 0
        if opt.get("vxp", 13) == 13 and not VD:
            a(ldvx[0]); a(ldvx[1]); nn = 2
        if opt.get("pubat") == 13: a(pubn[1]); nn += 1
        a.nops(5 - nn)
        a(f"""
        v_rcp_f32 v{SM}, v{SM}
        s_mov_b64 exec, s[{S_MQ}:{S_MQ+1}]
        v_pk_mul_f32 v[{O}:{O+1}], v[{O}:{O+1}], v[{SM}:{SM+1}] op_sel_hi:[1,0]
        v_pk_mul_f32 v[{O+2}:{O+3}], v[{O+2}:{O+3}], v[{SM}:{SM+1}] op_sel_hi:[1,0]
        v_pk_mul_f32 v[{O+4}:{O+5}], v[{O+4}:{O+5}], v[{SM}:{SM+1}] op_sel_hi:[1,0]
        v_pk_mul_f32 v[{O+6}:{O+7}], v[{O+6}:{O+7}], v[{SM}:{SM+1}] op_sel_hi:[1,0]
        v_cvt_pk_bf16_f32 v{OB}, v{O}, v{O+1}
        v_cvt_pk_bf16_f32 v{OB+1}, v{O+2}, v{O+3}
        v_cvt_pk_bf16_f32 v{OB+2}, v{O+4}, v{O+5}
        v_cvt_pk_bf16_f32 v{OB+3}, v{O+6}, v{O+7}
        """)
        OA = V_X + 4
        stamp(14)
        def save(n):
            a(f"""
            s_waitcnt vmcnt({n})
            v_mov_b32 v{V_PB1}, v{V_X}
            v_mov_b32 v{V_PB1+1}, v{V_X+1}
            v_mov_b32 v{V_PB1+2}, v{V_X+2}
            v_mov_b32 v{V_PB1+3}, v{V_X+3}
            s_add_u32 s{S_KVM}, s{S_KVM}, {32*8192}
            s_add_u32 s{S_KVV}, s{S_KVV}, {32*8192}
            """)
        a(f"ds_write_b128 v{V_LL}, v[{OB}:{OB+3}] offset:{LDS_O - LDS_MEM + (w >> 1) * 1024 + (w & 1) * 32 - 32}")
        a("s_mov_b64 exec, -1")
        WB = dict(zip(range(NL, 16), [88, V_AV, 96, 104, 80, 88]))
        NPRE = min(opt.get("npre", 3 if NL == 10 else 0), 16 - NL)
        LAST = 15 if NL == 10 else 16
        for op in range(NL, NL + NPRE): lop_read(op, WB[op])
        if opt.get("vxp", 13) == 14: a(ldvx[0]); a(ldvx[1])
        if KXB == 2: a(ldkx[0]); a(ldkx[1])
        if full and w == 0 and PUBA:
            a(f"v_mov_b32 v{V_T0}, s{S_STEP}")
            a(f"buffer_store_dword v{V_T0}, v{V_FL}, {SRD}, 0 offen sc1")
        a(f"""
        s_waitcnt lgkmcnt({2 * NPRE})
        s_barrier
        ds_read_b128 v[{OA}:{OA+3}], v{V_LL} offset:{LDS_O - LDS_MEM}
        ds_read_b128 v[{OA+4}:{OA+7}], v{V_LL} offset:{LDS_O - LDS_MEM + 1024}
        """)
        for op in range(NL + NPRE, LAST): lop_read(op, WB[op])
        NPOST = 2 * (LAST - NL - NPRE)
        stamp(15)
        a.nops(opt.get("rdelay", 0))
        sal = f"""
        s_add_u32 s{S_STEP}, s{S_STEP}, 1
        s_xor_b32 s{S_XIN}, s{S_XIN}, {MB}
        s_xor_b32 s{S_XOUT}, s{S_XOUT}, {MB}
        s_xor_b32 s{S_VIN}, s{S_VIN}, {MB}
        s_xor_b32 s{S_VOUT}, s{S_VOUT}, {MB}
        s_lshr_b32 s{S_PHX}, s{S_STEP}, 1
        s_and_b32 s{S_PHX}, s{S_PHX}, 1
        {f"s_mov_b32 s{S_PHX}, 1" if PI == 5 else f"s_xor_b32 s{S_PHX}, s{S_PHX}, 1"}
        s_xor_b32 s{S_MEMR}, s{S_MEMR}, 16384
        s_xor_b32 s{S_MEMW}, s{S_MEMW}, 16384
        s_add_u32 s{S_KX}, s{S_KX}, {0 if opt.get('nok') else 32*8192}
        s_add_u32 s{S_VX}, s{S_VX}, {0 if opt.get('nov') else 32*8192}
        """.strip().split("\n")

        def wo(i):
            T, kp = WO_ORDER[i]
            b = V_WO + 8 * i if i < NL else WB[i]
            smf(V_ACC + 4 * T, OA + 4 * kp, f"v[{b}:{b+7}]")
        def fold(T, pk):
            A = V_ACC + 4 * T
            GR = V_ACC + 16 * (T >> 2)
            if pk:
                Ls = [f"v_pk_add_f32 v[{A}:{A+1}], v[{A}:{A+1}], v[{A+2}:{A+3}]"]
            else:
                Ls = [f"v_add_f32 v{A}, v{A}, v{A+2}", f"v_add_f32 v{A+1}, v{A+1}, v{A+3}"]
            Ls.append(f"v_cvt_pk_bf16_f32 v{GR+(T&3)}, v{A}, v{A+1}")
            if T & 3 == 0:
                Ls.append(f"v_and_or_b32 v{GR}, v{GR}, -2, s{S_PHP}")
            if T & 3 == 3:
                Ls.append(f"buffer_store_dwordx4 v[{GR}:{GR+3}], v{V_OPART}, {SRD}, s{S_PARTW if T < 4 else S_PARTW2} offen {IS}")
            return Ls
        NG = opt.get("wog", 1)
        NPK = opt.get("npk", 4)
        ready, pending, since = [], {}, {}
        a(f"s_waitcnt lgkmcnt({NPOST + 1})")
        def tick(n=1):
            for T in list(since):
                since[T] += n
                if since[T] >= 8:
                    ready.extend(fold(T, T >= NPK)); del since[T]
        for i in range(16):
            if i == 1: a(f"s_waitcnt lgkmcnt({NPOST})"); tick()
            if i == NL or (i == 15 and NL == 10): a("s_waitcnt lgkmcnt(0)"); tick()
            wo(i); tick()
            if i & 1: since[i >> 1] = 0
            if i == 10 and NL == 10:
                lop_read(15, WB[15]); tick(2)
            else:
                n = NG if opt.get("wog3", 0) <= i < opt.get("wog2", 16) else 2
                for _ in range(n):
                    if ready and "v_pk" not in ready[0]: a(ready.pop(0)); tick()
                for _ in range(3 if i < 4 else 0):
                    if sal: a(sal.pop(0)); tick()
        while ready or since:
            if ready: a(ready.pop(0))
            else: a("s_nop 0")
            tick()
        stamp(16)
        for l in sal: a(l)
        if PUBA: save(5 if (full and w == 0) else 4)
        else: a(f"s_add_u32 s{S_KVM}, s{S_KVM}, {32*8192}\ns_add_u32 s{S_KVV}, s{S_KVV}, {32*8192}")
        if opt.get("steps") and w == 1:
            a(f"""
            s_memrealtime s[62:63]
            s_lshl_b32 s64, s{S_J}, 5
            s_add_u32 s64, s64, s{S_H}
            s_lshl_b32 s64, s64, 6
            s_add_u32 s64, s64, s{S_STEP}
            s_lshl_b32 s64, s64, 2
            s_add_u32 s64, s64, {WS_PROF + 4*MB}
            s_waitcnt lgkmcnt(0)
            v_mov_b32 v{V_T0}, s62
            s_mov_b64 exec, 1
            buffer_store_dword v{V_T0}, off, {SRD}, s64
            s_mov_b64 exec, -1
            """)
        top()
        if KVW:
            a(f"""
            s_add_u32 s{S_T0}, s{S_STEP}, 2
            s_cmp_gt_u32 s{S_KN}, s{S_T0}
            s_cbranch_scc1 {L}_kvs
            """)
            kv_eval(V_OMR)
            kv_block(V_OMR, 1)
            a.label(f"{L}_kvs")
        RB, RD = V_M + 4, V_M + 20
        a(f"v_mov_b32 v{RD+6}, -1\nv_mov_b32 v{RD+7}, -1")
        if opt.get("preC") == "ack":
            if EO:
                a(f"s_waitcnt vmcnt({opt.get('ew', 1)})")
                a(f"s_bitcmp0_b32 s{S_H}, 2\ns_cbranch_scc1 {L}_cgo")
            a("s_waitcnt vmcnt(0)"); a.nops(opt.get("xC", 0))
            a.label(f"{L}_cgo")
        elif opt.get("preC") == "ack1": a("s_waitcnt vmcnt(1)")
        elif opt.get("preC"): a.nops(opt["preC"])
        def cissue(b):
            for d in range(8):
                if PL: a(f"buffer_load_dword v{RB+8*b+d}, v{V_OCR}, {SRD}, s{S_PARTR2} offen offset:{256*d} sc1")
                else: a(f"buffer_load_dword v{RB+8*b+d}, v{V_OCR}, {SRD}, s{S_PARTR if d < 4 else S_PARTR2} offen offset:{1024*(d&3) + 64*w} sc1")
        def ctry(b, behind, nxt=None):
            r = RB + 8 * b
            a(f"""
            s_waitcnt vmcnt({behind + 4})
            v_mfma_f32_16x16x32_bf16 v[{RD}:{RD+3}], v[{r}:{r+3}], v[{V_SELR}:{V_SELR+3}], 0
            v_bitop3_b32 v{V_T0}, s{S_PHP}, v{r}, v{r+1} bitop3:0x7e
            v_bitop3_b32 v{V_T1}, s{S_PHP}, v{r+2}, v{r+3} bitop3:0x7e
            s_waitcnt vmcnt({behind + 2})
            v_or_b32 v{V_T0}, v{V_T0}, v{V_T1}
            v_bitop3_b32 v{V_T1}, s{S_PHP}, v{r+4}, v{r+5} bitop3:0x7e
            s_waitcnt vmcnt({behind})
            v_mfma_f32_16x16x32_bf16 v[{RD}:{RD+3}], v[{r+4}:{r+7}], v[{V_SELR}:{V_SELR+3}], v[{RD}:{RD+3}]
            v_bitop3_b32 v{RD+4}, s{S_PHP}, v{r+6}, v{r+7} bitop3:0x7e
            v_or3_b32 v{V_T0}, v{V_T0}, v{V_T1}, v{RD+4}
            v_and_b32 v{V_T0}, v{V_TAGM}, v{V_T0}
            v_cmp_ne_u32 vcc, 0, v{V_T0}
            """)
        def cfin():
            a(f"""
            v_cvt_pk_bf16_f32 v{RD+4}, v{RD}, v{RD+1}
            v_cvt_pk_bf16_f32 v{RD+5}, v{RD+2}, v{RD+3}
            v_min_u32 v{RD+4}, -2, v{RD+4}
            """)
        CD = opt.get("cd", 0)
        if CD:
            cissue(0); a.nops(CD); cissue(1)
            if opt.get("tot"): a("s_add_u32 s87, s87, 1")
            ctry(0, 8)
            a(f"s_cbranch_vccnz {L}_cslow")
            a.label(f"{L}_cok")
            a("s_nop 2"); cfin()
        elif C4:
            c4l = [f"buffer_load_dwordx4 v[{RB+4*i}:{RB+4*i+3}], v{V_L16}, {SRD}, s{S_PARTR2} offen offset:{1024*i} sc1" for i in range(2)]
            a(c4l[0]); a(c4l[1])
            a.label(f"{L}_pc")
            watchdog(30, 3)
            a(f"""
            s_waitcnt vmcnt(1)
            v_mfma_f32_16x16x32_bf16 v[{RD}:{RD+3}], v[{V_SELR}:{V_SELR+3}], v[{RB}:{RB+3}], 0
            s_waitcnt vmcnt(0)
            v_mfma_f32_16x16x32_bf16 v[{RD}:{RD+3}], v[{V_SELR}:{V_SELR+3}], v[{RB+4}:{RB+7}], v[{RD}:{RD+3}]
            v_bitop3_b32 v{V_T0}, s{S_PHP}, v{RB}, v{RB+4} bitop3:0x7e
            v_and_b32 v{V_T0}, 1, v{V_T0}
            v_cmp_ne_u32 vcc, 0, v{V_T0}
            """)
            if C4 == 1:
                a(c4l[0]); a(c4l[1]); a.nops(3)
            else:
                a.nops(5)
            a(f"""
            v_add_f32_dpp v{RD}, v{RD}, v{RD} row_ror:4 row_mask:0xf bank_mask:0xf
            v_add_f32_dpp v{RD+1}, v{RD+1}, v{RD+1} row_ror:4 row_mask:0xf bank_mask:0xf
            {f"s_cbranch_vccnz {L}_pc" if C4 == 1 else f"s_cbranch_vccnz {L}_c4f"}
            v_add_f32_dpp v{RD}, v{RD}, v{RD} row_ror:8 row_mask:0xf bank_mask:0xf
            v_add_f32_dpp v{RD+1}, v{RD+1}, v{RD+1} row_ror:8 row_mask:0xf bank_mask:0xf
            v_cvt_pk_bf16_f32 v{RD+4}, v{RD}, v{RD+1}
            v_min_u32 v{RD+4}, -2, v{RD+4}
            buffer_store_dword v{RD+4}, v{V_OMP}, {SRD}, s{S_MEMR} offen offset:{w * 256} {IS}
            buffer_store_dword v{RD+6}, v{V_OMP}, {SRD}, s{S_MEMW} offen offset:{w * 256} {IS}
            """)
        elif opt.get("cm"):
            CW = opt["cm"]
            def cmid(b):
                a(f"s_waitcnt vmcnt({8 - CW})")
                cissue(1 - b)
                ctry(b, 8); a("s_nop 3"); cfin()
            cissue(0)
            a.label(f"{L}_pc")
            watchdog(30, 3)
            cmid(0)
            a(f"s_cbranch_vccnz {L}_cs2")
            a.label(f"{L}_cok")
        elif opt.get("cearly", 0):
            a.label(f"{L}_pc")
            cissue(0)
            watchdog(30, 3)
            ctry(0, 0)
            a(f"s_cbranch_vccnz {L}_pc")
            a("s_nop 2"); cfin()
        else:
            a.label(f"{L}_pc")
            cissue(0)
            watchdog(30, 3)
            ctry(0, 0); a("s_nop 3"); cfin()
            a(f"s_cbranch_vccnz {L}_pc")
        if C4: a(f"s_xor_b32 s{S_PHP}, s{S_PHP}, 1")
        else: a(f"""
        {"" if opt.get("amask") else f"s_mov_b64 exec, s[{S_MLO}:{S_MLO+1}]"}
        buffer_store_dwordx2 v[{RD+4}:{RD+5}], v{V_OMP}, {SRD}, s{S_MEMR} offen offset:{w * (256 if ML else 64)} {IS}
        buffer_store_dwordx2 v[{RD+6}:{RD+7}], v{V_OMP}, {SRD}, s{S_MEMW} offen offset:{w * (256 if ML else 64)} {IS}
        s_mov_b64 exec, -1
        s_xor_b32 s{S_PHP}, s{S_PHP}, 1
        """)
        stamp(17)
        a(f"s_branch {L}_loop")
        a.label(f"{L}_last")
        if PUBA: a(f"s_add_u32 s{S_KVM}, s{S_KVM}, {32*8192}\ns_add_u32 s{S_KVV}, s{S_KVV}, {32*8192}")
        a(pubd[0].replace(f"v[{V_PB1}:{V_PB1+3}]", f"v[{V_X}:{V_X+3}]")); a(pubd[1])
        a(f"s_branch {name}_end")
        if EO:
            a.label(f"{L}_efail")
            a(ldE)
            watchdog(10 + w, 0)
            a.nops(6)
            for i in range(4 * NBE):
                a(f"v_mov_b32 v{V_AQ+i}, 0")
            a(f"s_waitcnt vmcnt(0)\ns_branch {L}_ea")
            a.label(f"{L}_ofail")
            if opt.get("tot"): a("s_add_u32 s84, s84, 0x10000")
            watchdog(14 + w)
            a(f"""
            s_waitcnt vmcnt(0)
            ds_write_b128 v{V_LL}, v[{m1}:{m1+3}] offset:{k1*1024}
            v_max_u32 v{V_T0}, v{m1}, v{m1+2}
            v_cmp_eq_u32 vcc, -1, v{V_T0}
            {ldO}
            s_cbranch_vccz {L}_ob
            s_branch {L}_ofail
            """)
        a.label(f"{L}_pafail")
        if AD:
            if opt.get("tot"): a("s_add_u32 s84, s84, 1")
            a.nops(6)
            for i in range(4 * min(NB, 4)):
                a(f"v_mov_b32 v{V_AQ+i}, 0")
            a.label(f"{L}_pa2")
            a(f"""
            s_waitcnt vmcnt(0)
            v_max3_u32 v{V_T0}, v{n0}, v{n0+2}, v{n1}
            v_max_u32 v{V_T0}, v{V_T0}, v{n1+2}
            v_cmp_eq_u32 vcc, -1, v{V_T0}
            """)
            for i in range(0, 4, 2):
                a(f"v_pk_mov_b32 v[{m0+i}:{m0+i+1}], v[{n0+i}:{n0+i+1}], v[{n0+i}:{n0+i+1}] op_sel:[0,1]")
                a(f"v_pk_mov_b32 v[{m1+i}:{m1+i+1}], v[{n1+i}:{n1+i+1}], v[{n1+i}:{n1+i+1}] op_sel:[0,1]")
            a(f"""
            s_cbranch_vccz {L}_pa
            buffer_load_dwordx4 v[{n0}:{n0+3}], v{V_L16 if ML else V_OMR}, {SRD}, s{S_T0} offen sc1
            buffer_load_dwordx4 v[{n1}:{n1+3}], v{V_L16 if ML else V_OMR}, {SRD}, s{S_T0} offen offset:1024 sc1
            """)
            watchdog(10 + w, 0)
            a(f"s_branch {L}_pa2")
        else:
            if not opt.get("are"): a(lda)
            watchdog(10 + w, 0)
            a.nops(8)
            for i in range(4 * min(NB, 4)):
                a(f"v_mov_b32 v{V_AQ+i}, 0")
            a(f"s_branch {L}_pa" if not EO else "s_endpgm")

        if C4 == 2:
            a.label(f"{L}_c4f")
            a(c4l[0]); a(c4l[1]); a(f"s_branch {L}_pc")
        if opt.get("cm"):
            a.label(f"{L}_cs2")
            watchdog(30, 3)
            cmid(1)
            a(f"s_cbranch_vccz {L}_cok\ns_branch {L}_pc")
        if opt.get("cd"):
            a.label(f"{L}_cslow")
            cissue(0)
            a.label(f"{L}_pc")
            watchdog(30, 3)
            ctry(1, 8)
            a(f"s_cbranch_vccz {L}_cok")
            cissue(1)
            watchdog(30, 3)
            ctry(0, 8)
            a(f"s_cbranch_vccz {L}_cok")
            cissue(0)
            a(f"s_branch {L}_pc")

        a.label(f"{L}_xslow")
        def xlight(b):
            a(f"""
            s_waitcnt vmcnt(2)
            v_bitop3_b32 v{V_T0}, s{S_PHX}, v{PB[b]}, v{PB[b]+2} bitop3:0x7e
            v_mfma_f32_16x16x16_bf16 v[{XD}:{XD+3}], v[{PB[b]}:{PB[b]+1}], v[{V_SEL}:{V_SEL+1}], v[{DO}:{DO+3}]
            v_and_b32 v{V_T0}, 1, v{V_T0}
            v_mfma_f32_16x16x16_bf16 v[{XD+4}:{XD+7}], v[{PB[b]+2}:{PB[b]+3}], v[{V_SEL}:{V_SEL+1}], v[{DO+4}:{DO+7}]
            v_cmp_ne_u32 vcc, 0, v{V_T0}
            s_cbranch_vccz {L}_xgot
            """)
        assert "x1" in vm_x
        for b in (0, 1):
            ldy(b); ldx(b)
            watchdog(20, 1)
            xlight(1 - b)
        a(f"s_branch {L}_xslow")
        a.label(f"{L}_xgot")
        a(f"""
        s_nop 3
        v_cvt_pk_bf16_f32 v{V_X}, v{XD}, v{XD+1}
        v_cvt_pk_bf16_f32 v{V_X+1}, v{XD+2}, v{XD+3}
        v_cvt_pk_bf16_f32 v{V_X+2}, v{XD+4}, v{XD+5}
        v_cvt_pk_bf16_f32 v{V_X+3}, v{XD+6}, v{XD+7}
        ds_write_b128 v{V_LL}, v[{V_X}:{V_X+3}] offset:{xoff(0)}
        s_branch {L}_xok
        """)

        a.label(f"{L}_pv0")
        if opt.get("tot"): a("s_add_u32 s86, s86, 1")
        a(f"s_waitcnt vmcnt({(0 if PUBA else 1 if opt.get('pubat') == 13 else 2) + 2 * VD + 2 * (KXB == 1) + (PI == 2)})\ns_branch {L}_pv1")
        a.label(f"{L}_pv")
        watchdog(21, 2)
        a(f"""
        buffer_load_dwordx2 v[{V_PB1}:{V_PB1+1}], v{V_OVM}, {SRD}, s{S_VIN} offen {XL}
        s_waitcnt vmcnt(0)
        {L}_pv1:
        v_and_b32 v{V_T0}, 1, v{V_PB1}
        v_cmp_ne_u32 vcc, s{S_PHX}, v{V_T0}
        v_mov_b32 v{V_AV+1}, v{V_PB1}
        v_mov_b32 v{V_AV+3}, v{V_PB1+1}
        s_cbranch_vccnz {L}_pv
        s_branch {L}_pv2
        """)

    n0_ = len(a.lines)
    for w in range(4):
        wave_loop(w)
    if opt.get("atom"):
        import re
        out = []
        tg = [f"s{S_XIN} offen"] + ([f"s{S_VIN} offen"] if opt["atom"] > 1 else [])
        for l in a.lines[n0_:]:
            m = re.match(r"\s*buffer_load_dwordx2 v\[(\d+):(\d+)\], (.*) sc1$", l)
            if m and any(t in l for t in tg):
                out.append(f"    v_mov_b64 v[{m.group(1)}:{m.group(2)}], 0")
                out.append(f"    buffer_atomic_or_x2 v[{m.group(1)}:{m.group(2)}], {m.group(3)} sc0")
            else:
                out.append(l)
        a.lines[n0_:] = out
    a.label(f"{name}_end")
    a("s_mov_b64 exec, -1")
    if full:
        a(f"""
        v_mov_b32 v{V_T0}, 64
        s_waitcnt vmcnt(0)
        s_barrier
        s_cmp_lg_u32 s{S_WAVE}, 0
        s_cbranch_scc1 {name}_end2
        buffer_store_dword v{V_T0}, v{V_FL}, s[{S_WS}:{S_WS+3}], 0 offen sc1
        {name}_end2:
        """)
    if tstamp: tstamp()
    if opt.get("tot"):
        a(f"""
        s_memtime s[66:67]
        s_memrealtime s[68:69]
        s_waitcnt lgkmcnt(0)
        s_sub_u32 s89, s66, s98
        s_sub_u32 s88, s68, s96
        s_lshl_b32 s{S_T0}, s{S_J}, 5
        s_add_u32 s{S_T0}, s{S_T0}, s{S_H}
        s_lshl_b32 s{S_T0}, s{S_T0}, 2
        s_add_u32 s{S_T0}, s{S_T0}, s{S_WAVE}
        s_lshl_b32 s{S_T0}, s{S_T0}, 7
        s_add_u32 s{S_T0}, s{S_T0}, {WS_PROF}
        s_mov_b64 exec, 1
        """)
        for i in range(14, 20):
            a(f"v_mov_b32 v{V_T0}, s{70+i}")
            a(f"buffer_store_dword v{V_T0}, v{V_Z}, s[{S_WS}:{S_WS+3}], s{S_T0} offen offset:{4*i}")
        a("s_mov_b64 exec, -1")
    a("s_waitcnt vmcnt(0)")
    a("s_endpgm")
    if wd:
        a.label(f"{name}_wdexit")
        a(f"""
        s_mov_b64 exec, 1
        s_lshl_b32 s{S_T0}, s{S_STEP}, 8
        s_or_b32 s{S_T2}, s{S_T2}, s{S_T0}
        v_mov_b32 v{V_T0}, s{S_T2}
        v_mov_b32 v{V_T1}, 0
        s_lshl_b32 s{S_T0}, s{S_J}, 5
        s_add_u32 s{S_T0}, s{S_T0}, s{S_H}
        s_lshl_b32 s{S_T0}, s{S_T0}, 2
        s_add_u32 s{S_T0}, s{S_T0}, s{S_WAVE}
        s_lshl_b32 s{S_T0}, s{S_T0}, 2
        s_add_u32 s{S_T0}, s{S_T0}, {WS_PROF + MB}
        buffer_store_dword v{V_T0}, v{V_T1}, s[{S_WS}:{S_WS+3}], s{S_T0} offen
        s_endpgm
        """)


def gen_standalone(name, prof=False, opt={}, xa=0, xb=1):
    from gen_hop import ticket
    a = Asm(); a.kernel_begin(name)
    a(f"s_cmp_ge_u32 s2, 256\ns_cbranch_scc1 {name}_exit")
    a(f"""
    s_load_dwordx2 s[84:85], s[0:1], {KA_WS}
    s_waitcnt lgkmcnt(0)
    s_mov_b32 s86, {WS_BYTES}
    s_mov_b32 s87, 0x00020000
    """)
    global_init(a, name, 84)
    a("s_waitcnt vmcnt(0)\ns_barrier")
    ticket(a, name, 2)
    a(f"""
    s_cmp_eq_u32 s90, {xa}
    s_cselect_b32 s{S_J}, 0, 2
    s_cmp_eq_u32 s90, {xb}
    s_cselect_b32 s{S_J}, 1, s{S_J}
    s_cmp_ge_u32 s{S_J}, 2
    s_cbranch_scc1 {name}_exit
    s_cmp_ge_u32 s96, 32
    s_cbranch_scc1 {name}_exit
    s_mov_b32 s{S_H}, s96
    s_branch {name}_go
    {name}_exit:
    s_endpgm
    {name}_go:
    """)
    rec_body(a, name + "_r", "", prof=prof, wd=True, opt=opt)
    return (name, a.text(), kd(name, 512, sgpr=100, accum=256), 256, 256, LDS_REC)


if __name__ == "__main__":
    import sys, json
    V = eval(open(sys.argv[1]).read())
    ks = [gen_standalone(f"r{i}_kernel", **v) for i, v in enumerate(V)]
    write_file("rec.s", ks)
    json.dump(V, open("rec.json", "w"))
```

```python
from common import *
from gen_rec import WS_QX, WS_KX, WS_VT, WS_O, WS_KVM, WS_XB, DBG_VOTE
from gen_qkv import WS_FL

FL_RP, FL_XF = 192, 256
SPAIR = 58
NEARLY = 4


class WoLoader:
    LDS_W = 81920
    def __init__(self, a, name, S_B, S_WV, opt):
        self.a, self.name, self.S_B, self.S_WV, self.opt = a, name, S_B, S_WV, opt
    def setup(self):
        a = self.a
        a(f"""
        s_load_dwordx2 s[52:53], s[0:1], {KA_WO}
        v_and_b32 v202, 63, v0
        s_and_b32 s58, s{self.S_B}, 31
        v_lshrrev_b32 v200, 2, v202
        v_lshlrev_b32 v200, 11, v200
        v_and_b32 v203, 3, v202
        v_lshl_add_u32 v200, v203, 4, v200
        s_lshl_b32 s56, s{self.S_WV}, 21
        s_lshl_b32 s57, s58, 6
        s_add_u32 s56, s56, s57
        v_add_u32 v200, s56, v200
        s_lshl_b32 s56, s{self.S_WV}, 14
        s_add_u32 s56, s56, {self.LDS_W}
        s_lshr_b32 s57, s58, 1
        s_lshl_b32 s57, s57, 12
        v_lshrrev_b32 v201, 5, v202
        v_bfe_u32 v204, v202, 2, 2
        v_lshl_add_u32 v201, v201, 3, v204
        v_lshlrev_b32 v201, 6, v201
        v_bfe_u32 v204, v202, 4, 1
        v_lshl_add_u32 v201, v204, 5, v201
        v_lshl_add_u32 v201, v203, 3, v201
        v_add_u32 v201, s56, v201
        s_waitcnt lgkmcnt(0)
        s_mov_b32 s54, {8*MB}
        s_mov_b32 s55, 0x00020000
        """)
    def issue(self, b):
        a = self.a
        for ks in range(16 * b, 16 * b + 16):
            a(f"s_add_u32 m0, s56, {(ks & 15) * 1024}")
            a(f"s_add_u32 s58, s57, {ks * 1024}")
            a(f"s_and_b32 s58, s58, 0xffff")
            a(f"s_lshl_b32 s58, s58, 5")
            if not self.opt.get("nowl"): a(f"buffer_load_dwordx4 v200, s[52:55], s58 offen lds")
    def consume(self, b):
        a = self.a
        a("s_waitcnt vmcnt(0)")
        for ks in range(16 * b, 16 * b + 16):
            for j in range(2):
                a(f"ds_read_b64_tr_b16 a[{4*ks+2*j}:{4*ks+2*j+1}], v201 offset:{(ks & 15) * 1024 + j * 256}")
            if ks & 3 == 3: a("s_waitcnt lgkmcnt(0)")
    def step(self, n):
        if n > 0: self.consume(n - 1)
        if n < 4: self.issue(n)


def schedule(start=(100, 100, 101, 101, 82, 88), dur=4.6, t0=22.0, step=2.1):
    free = list(start)
    masks = [0] * 6
    for s in range(SPAIR - 6):
        g = min(range(6), key=lambda i: (round(free[i], 3), i))
        free[g] = max(free[g], t0 + step * s) + dur
        masks[g] |= 1 << s
    order = sorted(range(6), key=lambda i: free[i])
    for g in range(6):
        masks[g] |= 1 << (SPAIR - 6 + (2, 3, 0, 1, 4, 5)[g])
        for s in ((59, 63), (58, 61), (60, 62))[g >> 1]:
            masks[g] |= 1 << s
    return masks


def xo_role(a: Asm, name, S_B, S_WS, S_FAST, S_DBG, S_VOTE, wd=None, opt={}, stamp=None):
    S_W, S_O = 8, 12
    S_WAVE, S_G, S_C, S_T0, S_T1, S_SEG, S_CST = 16, 17, 18, 20, 21, 22, 24
    S_QO, S_KO, S_VO, S_MO, S_OW, S_OR, S_OUT, S_NEED = 26, 27, 28, 29, 40, 41, 42, 43
    S_M0 = 44
    S_MASK = 60
    S_CUR, S_RET, S_SLOT, S_QO2, S_KO2, S_ROT = 45, 46, 47, 48, 49, 50
    SRD = f"s[{S_WS}:{S_WS+3}]"
    V_L, V_L16, V_T0, V_T1, V_T2 = 1, 2, 3, 4, 5
    V_OKM, V_OVM, V_OOW, V_TH0, V_TH1, V_NEG, V_FGP, V_FRP, V_FXF, V_FMY, V_LR, V_LW, V_OUT = 6, 7, 8, 9, 10, 11, 12, 13, 14, 15, 16, 17, 18
    V_HL = 19
    V_ONE = 20
    V_Q, V_K, V_V = 24, 40, 72
    V_KM, V_VM = 88, 104
    V_S, V_P, V_SM = 112, 124, 132
    V_O = 88
    V_ACC = 112
    V_F = 136
    NFR = 30

    def xst(reg):
        if not (stamp and opt.get("xst")): return
        l = a.newlabel(name + "_xs")
        a(f"s_cmp_lt_u32 s{reg}, 61\ns_cbranch_scc1 {l}")
        stamp()
        a.label(l)

    def poll_guard(code):
        if wd: wd(code)

    a(f"""
    s_load_dwordx2 s[{S_W}:{S_W+1}], s[0:1], {KA_WO}
    s_load_dwordx2 s[{S_O}:{S_O+1}], s[0:1], {KA_OUT}
    v_lshrrev_b32 v{V_T0}, 6, v0
    v_and_b32 v{V_L}, 63, v0
    v_readfirstlane_b32 s{S_WAVE}, v{V_T0}
    s_lshr_b32 s{S_G}, s{S_B}, 5
    s_and_b32 s{S_C}, s{S_B}, 31
    v_lshlrev_b32 v{V_L16}, 4, v{V_L}
    s_waitcnt lgkmcnt(0)
    s_mov_b32 s{S_W+2}, {8*MB}
    s_mov_b32 s{S_W+3}, 0x00020000
    s_mov_b32 s{S_O+2}, {8*MB}
    s_mov_b32 s{S_O+3}, 0x00020000
    s_mov_b32 s{S_CST}, 0x3e0293ee
    s_mov_b64 s[{S_MASK}:{S_MASK+1}], 0
    s_lshr_b32 s{S_ROT}, s{S_C}, 1
    s_lshl_b32 s{S_ROT}, s{S_ROT}, 12
    """)
    a(f"""
    s_lshl_b32 s{S_SLOT}, s{S_G}, 2
    s_add_u32 s{S_T0}, s{S_SLOT}, s{S_WAVE}
    s_lshl_b32 s{S_T0}, s{S_T0}, 18
    s_lshl_b32 s{S_T1}, s{S_C}, 13
    s_add_u32 s{S_T0}, s{S_T0}, s{S_T1}
    s_add_u32 s{S_T0}, s{S_T0}, {WS_O}
    v_lshlrev_b32 v26, 7, v{V_L}
    buffer_load_dword v28, v26, {SRD}, s{S_T0} offen sc1
    """)
    a(f"""
    v_and_b32 v{V_T1}, 15, v{V_L}             ; c
    v_lshrrev_b32 v{V_T2}, 4, v{V_L}          ; g
    v_lshrrev_b32 v{V_T0}, 2, v{V_T1}
    v_lshlrev_b32 v{V_T0}, 1, v{V_T0}
    v_and_b32 v26, 1, v{V_T1}
    v_add_u32 v{V_T0}, v{V_T0}, v26           ; m(c)
    v_lshlrev_b32 v{V_OKM}, 8, v{V_T0}
    v_lshl_add_u32 v{V_OKM}, v{V_T2}, 4, v{V_OKM}
    s_lshr_b32 s{S_T0}, s{S_WAVE}, 1
    s_lshl_b32 s{S_T0}, s{S_T0}, 10
    s_add_u32 s{S_T0}, s{S_T0}, 2048
    v_lshlrev_b32 v{V_OVM}, 3, v{V_L}
    v_add_u32 v{V_OVM}, s{S_T0}, v{V_OVM}
    v_lshlrev_b32 v{V_OOW}, 9, v{V_T2}
    v_lshl_add_u32 v{V_OOW}, v{V_T1}, 4, v{V_OOW}
    s_lshr_b32 s{S_T0}, s{S_WAVE}, 1
    s_lshl_b32 s{S_T0}, s{S_T0}, 12
    s_and_b32 s{S_T1}, s{S_WAVE}, 1
    s_lshl_b32 s{S_T1}, s{S_T1}, 8
    s_add_u32 s{S_T0}, s{S_T0}, s{S_T1}
    v_add_u32 v{V_OOW}, s{S_T0}, v{V_OOW}
    v_lshlrev_b32 v{V_HL}, 4, v{V_T1}
    v_and_b32 v26, 1, v{V_T2}
    v_lshl_add_u32 v{V_HL}, v26, 10, v{V_HL}
    v_lshrrev_b32 v26, 1, v{V_T2}
    v_lshl_add_u32 v{V_HL}, v26, 9, v{V_HL}
    s_and_b32 s{S_T0}, s{S_G}, 1
    s_lshl_b32 s{S_T0}, s{S_T0}, 8
    v_add_u32 v{V_HL}, s{S_T0}, v{V_HL}
    v_lshlrev_b32 v26, 2, v{V_T2}
    v_sub_u32 v{V_TH0}, v{V_T1}, v26
    s_lshr_b32 s{S_T1}, s{S_T1}, 4
    v_add_u32 v{V_TH0}, s{S_T1}, v{V_TH0}
    v_add_u32 v{V_TH1}, -16, v{V_TH0}
    v_mov_b32 v{V_NEG}, 0xff7fffff
    v_mov_b32 v{V_ONE}, 0x3f803f80
    v_mov_b32 v{V_ONE+1}, 0x3f803f80
    v_mov_b32 v{V_ONE+2}, 0x3f803f80
    v_mov_b32 v{V_ONE+3}, 0x3f803f80
    v_bfe_u32 v26, v{V_L}, 1, 2
    v_min_u32 v26, 2, v26
    s_lshl_b32 s{S_T0}, s{S_C}, 8
    s_add_u32 s{S_T0}, s{S_T0}, {WS_FL}
    v_lshlrev_b32 v{V_FGP}, 13, v26
    v_and_b32 v26, 1, v{V_L}
    v_lshl_add_u32 v{V_FGP}, v26, 7, v{V_FGP}
    v_add_u32 v{V_FGP}, s{S_T0}, v{V_FGP}
    v_and_b32 v26, 1, v{V_L}
    v_lshlrev_b32 v{V_FRP}, 7, v26
    s_add_u32 s{S_T0}, s{S_T0}, {FL_RP * 128}
    v_add_u32 v{V_FRP}, s{S_T0}, v{V_FRP}
    v_and_b32 v26, 7, v{V_L}
    s_lshl_b32 s{S_T0}, s{S_G}, 5
    s_lshl_b32 s{S_T1}, s{S_WAVE}, 3
    s_add_u32 s{S_T0}, s{S_T0}, s{S_T1}
    v_add_u32 v26, s{S_T0}, v26
    v_lshlrev_b32 v{V_FXF}, 7, v26
    v_add_u32 v{V_FXF}, {WS_FL + FL_XF * 128}, v{V_FXF}
    v_bfrev_b32 v26, 1
    s_lshl_b32 s{S_T0}, s{S_B}, 7
    s_add_u32 s{S_T0}, s{S_T0}, {WS_FL + FL_XF * 128}
    v_mov_b32 v27, s{S_T0}
    v_cmp_eq_u32 vcc, 0, v0
    s_lshl_b32 s{S_T0}, s{S_WAVE}, 12
    v_add_u32 v{V_LW}, s{S_T0}, v{V_L16}
    v_cndmask_b32 v{V_FMY}, v26, v27, vcc
    v_lshrrev_b32 v26, 3, v0
    v_and_b32 v27, 1, v0
    v_lshl_add_u32 v27, v27, 5, v26
    v_lshlrev_b32 v{V_LR}, 4, v27
    v_bfe_u32 v27, v0, 1, 2
    v_lshl_add_u32 v{V_LR}, v27, 10, v{V_LR}
    v_lshlrev_b32 v{V_OUT}, 12, v26
    v_and_b32 v27, 7, v0
    v_lshl_add_u32 v{V_OUT}, v27, 3, v{V_OUT}
    s_lshl_b32 s{S_T0}, s{S_C}, 6
    v_add_u32 v{V_OUT}, s{S_T0}, v{V_OUT}
    """)
    a("s_barrier")
    if stamp: stamp()
    masks = schedule(**opt.get("sched", {}))
    for g, mk in enumerate(masks):
        a(f"""
        s_cmp_eq_u32 s{S_G}, {g}
        s_cselect_b32 s{S_MASK}, {hex(mk & 0xffffffff)}, s{S_MASK}
        s_cselect_b32 s{S_MASK+1}, {hex(mk >> 32)}, s{S_MASK+1}
        """)
    a(f"s_ff1_i32_b64 s{S_SEG}, s[{S_MASK}:{S_MASK+1}]")

    def addr():
        a(f"""
        s_lshl_b32 s{S_KO}, s{S_SEG}, 18
        s_lshl_b32 s{S_T0}, s{S_C}, 13
        s_add_u32 s{S_KO}, s{S_KO}, s{S_T0}
        s_add_u32 s{S_MO}, s{S_KO}, {WS_KVM}
        s_and_b32 s{S_T0}, s{S_WAVE}, 1
        s_lshl_b32 s{S_T0}, s{S_T0}, 10
        s_add_u32 s{S_QO}, s{S_KO}, s{S_T0}
        s_add_u32 s{S_QO}, s{S_QO}, {WS_QX}
        s_lshr_b32 s{S_T0}, s{S_WAVE}, 1
        s_lshl_b32 s{S_T0}, s{S_T0}, 12
        s_add_u32 s{S_VO}, s{S_KO}, s{S_T0}
        s_add_u32 s{S_VO}, s{S_VO}, {WS_VT}
        s_add_u32 s{S_KO}, s{S_KO}, {WS_KX}
        s_add_u32 s{S_QO2}, s{S_QO}, 4096
        s_add_u32 s{S_KO2}, s{S_KO}, 4096
        """)
    Lq = [f"buffer_load_dwordx4 v[{V_Q+4*u}:{V_Q+4*u+3}], v{V_L16}, {SRD}, s{S_QO if u < 2 else S_QO2} offen offset:{(u & 1) * 2048}" for u in range(4)]
    Lq += [f"buffer_load_dwordx4 v[{V_K+4*i}:{V_K+4*i+3}], v{V_L16}, {SRD}, s{S_KO if i < 4 else S_KO2} offen offset:{(i & 3) * 1024}" for i in range(8)]
    Lq += [f"buffer_load_dwordx4 v[{V_V+4*i}:{V_V+4*i+3}], v{V_L16}, {SRD}, s{S_VO} offen offset:{i * 1024}" for i in range(4)]
    Lm = [f"buffer_load_dwordx4 v[{V_KM+4*u}:{V_KM+4*u+3}], v{V_OKM}, {SRD}, s{S_MO} offen offset:{64*u} sc1" for u in range(4)]
    Lm += [f"buffer_load_dwordx2 v[{V_VM+2*i}:{V_VM+2*i+1}], v{V_OVM}, {SRD}, s{S_MO} offen offset:{512*(i >> 1) + 2048*(i & 1)} sc1" for i in range(4)]

    a.label(f"{name}_gp")
    poll_guard(40)
    a(f"""
    buffer_load_dword v{V_T0}, v{V_FGP}, {SRD}, 0 offen sc1
    s_waitcnt vmcnt(0)
    v_cmp_ne_u32 vcc, 32, v{V_T0}
    s_cbranch_vccz {name}_gk
    s_sleep 8
    s_branch {name}_gp
    {name}_gk:
    s_mov_b32 s{S_RET}, 0
    """)
    addr()
    a.label(f"{name}_ldq")
    for l in Lq: a(l)
    a.label(f"{name}_att")
    a("s_waitcnt vmcnt(0)")
    for u in range(4):
        for kt in range(2):
            d = V_S + 4 * kt
            c = "0" if u == 0 else f"v[{d}:{d+3}]"
            k = V_K + 8 * u + 4 * kt
            a(f"v_mfma_f32_16x16x32_bf16 v[{d}:{d+3}], v[{k}:{k+3}], v[{V_Q+4*u}:{V_Q+4*u+3}], {c}")
    a(f"""
    s_lshl_b32 s{S_OR}, s{S_SLOT}, 18
    s_add_u32 s{S_OR}, s{S_OR}, {WS_O}
    s_lshl_b32 s{S_T0}, s{S_C}, 13
    s_add_u32 s{S_OW}, s{S_OR}, s{S_T0}
    s_lshl_b32 s{S_T0}, s{S_WAVE}, 16
    s_add_u32 s{S_OR}, s{S_OR}, s{S_T0}
    s_lshl_b32 s{S_OUT}, s{S_SEG}, 17
    v_mov_b32 v{V_P+6}, v{V_ONE}
    v_mov_b32 v{V_P+7}, 0
    """)
    for kt, th in ((0, V_TH0), (1, V_TH1)):
        for r in range(4):
            a(f"v_cmp_gt_i32 vcc, {r}, v{th}")
            a("s_nop 1")
            a(f"v_cndmask_b32 v{V_S+4*kt+r}, v{V_S+4*kt+r}, v{V_NEG}, vcc")
    if opt.get("direct", 1):
        a(f"s_cmp_ge_u32 s{S_SEG}, 63\ns_cbranch_scc1 {name}_dx")
    a(f"s_cmp_eq_u32 s{S_RET}, 1\ns_cbranch_scc1 {name}_rd")
    a.label(f"{name}_rp")
    poll_guard(41)
    a(f"""
    buffer_load_dword v{V_T0}, v{V_FRP}, {SRD}, 0 offen sc1
    s_waitcnt vmcnt(0)
    v_cmp_ge_u32 vcc, s{S_SEG}, v{V_T0}
    s_cbranch_vccz {name}_rk
    s_sleep {opt.get('rps', 2)}
    s_branch {name}_rp
    {name}_rk:
    """)
    xst(S_SEG)
    for l in Lm: a(l)
    a.label(f"{name}_rd")
    d = V_S + 8
    for u in range(4):
        a(f"s_waitcnt vmcnt({7-u})")
        c = "0" if u == 0 else f"v[{d}:{d+3}]"
        a(f"v_mfma_f32_16x16x32_bf16 v[{d}:{d+3}], v[{V_KM+4*u}:{V_KM+4*u+3}], v[{V_Q+4*u}:{V_Q+4*u+3}], {c}")
    xst(S_SEG)
    MX, TM = V_T1, V_T0
    a(f"""
    v_max3_f32 v{MX}, v{V_S}, v{V_S+1}, v{V_S+2}
    v_max3_f32 v{MX}, v{MX}, v{V_S+3}, v{V_S+4}
    v_max3_f32 v{MX}, v{MX}, v{V_S+5}, v{V_S+6}
    s_waitcnt vmcnt(0)
    v_swap_b32 v{V_VM+1}, v{V_VM+2}
    v_swap_b32 v{V_VM+5}, v{V_VM+6}
    s_nop 1
    v_max3_f32 v{MX}, v{MX}, v{V_S+7}, v{V_S+8}
    v_max_f32 v{TM}, v{MX}, v{V_S+9}
    v_max_f32 v{MX}, v{MX}, v{V_S+9}
    s_nop 1
    v_permlane16_swap_b32 v{MX}, v{TM}
    v_max_f32 v{MX}, v{MX}, v{TM}
    v_max_f32 v{TM}, v{MX}, v{TM}
    s_nop 1
    v_permlane32_swap_b32 v{MX}, v{TM}
    v_max_f32 v{MX}, v{MX}, v{TM}
    v_mul_f32 v{MX}, s{S_CST}, v{MX}
    """)
    for i in range(10):
        a(f"v_fma_f32 v{V_S+i}, v{V_S+i}, s{S_CST}, -v{MX}")
    for i in range(10):
        a(f"v_exp_f32 v{V_S+i}, v{V_S+i}")
    a("s_nop 0")
    for i in range(5):
        a(f"v_cvt_pk_bf16_f32 v{V_P+i}, v{V_S+2*i}, v{V_S+2*i+1}")
    a(f"v_mov_b32 v{V_P+5}, v{V_P+4}")
    a("s_nop 1")
    a(f"v_mfma_f32_16x16x32_bf16 v[{V_SM}:{V_SM+3}], v[{V_ONE}:{V_ONE+3}], v[{V_P}:{V_P+3}], 0")
    for i in range(4):
        a(f"v_mfma_f32_16x16x32_bf16 v[{V_O+4*i}:{V_O+4*i+3}], v[{V_V+4*i}:{V_V+4*i+3}], v[{V_P}:{V_P+3}], 0")
    a("s_nop 1")
    a(f"v_mfma_f32_16x16x16_bf16 v[{V_SM}:{V_SM+3}], v[{V_P+6}:{V_P+7}], v[{V_P+4}:{V_P+5}], v[{V_SM}:{V_SM+3}]")
    for i in range(4):
        vb = V_VM + 2 * i
        a(f"v_mfma_f32_16x16x16_bf16 v[{V_O+4*i}:{V_O+4*i+3}], v[{vb}:{vb+1}], v[{V_P+4}:{V_P+5}], v[{V_O+4*i}:{V_O+4*i+3}]")
    a.nops(4)
    a(f"v_rcp_f32 v{V_SM}, v{V_SM}")
    a.nops(3)
    for i in range(8):
        a(f"v_pk_mul_f32 v[{V_O+2*i}:{V_O+2*i+1}], v[{V_O+2*i}:{V_O+2*i+1}], v[{V_SM}:{V_SM+1}] op_sel_hi:[1,0]")
    for i in range(8):
        a(f"v_cvt_pk_bf16_f32 v{V_S+i}, v{V_O+2*i}, v{V_O+2*i+1}")
    xst(S_SEG)
    a(f"""
    s_add_u32 s{S_NEED}, s{S_SEG}, 1
    v_mov_b32 v{V_T1}, s{S_NEED}
    s_cmp_eq_u32 s{S_FAST}, 1
    s_cbranch_scc1 {name}_of
    buffer_store_dwordx4 v[{V_S}:{V_S+3}], v{V_OOW}, {SRD}, s{S_OW} offen sc1
    buffer_store_dwordx4 v[{V_S+4}:{V_S+7}], v{V_OOW}, {SRD}, s{S_OW} offen offset:2048 sc1
    s_waitcnt vmcnt(0)
    s_barrier
    buffer_store_dword v{V_T1}, v{V_FMY}, {SRD}, 0 offen sc1
    s_branch {name}_od
    {name}_of:
    buffer_store_dwordx4 v[{V_S}:{V_S+3}], v{V_OOW}, {SRD}, s{S_OW} offen
    buffer_store_dwordx4 v[{V_S+4}:{V_S+7}], v{V_OOW}, {SRD}, s{S_OW} offen offset:2048
    s_waitcnt vmcnt(0)
    s_barrier
    buffer_store_dword v{V_T1}, v{V_FMY}, {SRD}, 0 offen
    {name}_od:
    s_mov_b32 s{S_CUR}, s{S_SEG}
    s_add_u32 s{S_T0}, s{S_SLOT}, 1
    s_and_b32 s{S_T0}, s{S_T0}, {opt.get('nslot', 4) - 1}
    s_andn2_b32 s{S_SLOT}, s{S_SLOT}, 3
    s_or_b32 s{S_SLOT}, s{S_SLOT}, s{S_T0}
    s_bitset0_b64 s[{S_MASK}:{S_MASK+1}], s{S_SEG}
    s_ff1_i32_b64 s{S_SEG}, s[{S_MASK}:{S_MASK+1}]
    s_min_u32 s{S_SEG}, s{S_SEG}, 64
    """)
    addr()
    xst(S_CUR)
    a.label(f"{name}_xp")
    poll_guard(42)
    a(f"""
    buffer_load_dword v{V_T0}, v{V_FXF}, {SRD}, 0 offen sc1
    s_waitcnt vmcnt(0)
    v_cmp_ge_u32 vcc, s{S_CUR}, v{V_T0}
    s_cbranch_vccnz {name}_xp
    """)
    def fload(i):
        d = V_F + 4 * (i % NFR)
        if i % 4 == 0:
            a(f"s_add_u32 s{S_T0}, s{S_ROT}, {i * 1024}")
            a(f"s_and_b32 s{S_T0}, s{S_T0}, 0xffff")
            a(f"s_add_u32 s{S_T0}, s{S_T0}, s{S_OR}")
        a(f"buffer_load_dwordx4 v[{d}:{d+3}], v{V_L16}, {SRD}, s{S_T0} offen offset:{(i & 3) * 1024} sc1")
    a(f"s_cmp_ge_u32 s{S_CUR}, {SPAIR}\ns_cbranch_scc1 {name}_half")
    PFD = opt.get('pfd', 12)
    q = []
    for i in range(PFD): fload(i); q.append(i)
    a(f"buffer_load_dword v{V_T2}, v{V_FRP}, {SRD}, 0 offen sc1"); q.append("rp")
    def mf(i, q):
        a(f"s_waitcnt vmcnt({len(q) - 1 - q.index(i)})")
        d = V_F + 4 * (i % NFR)
        c = "0" if i == 0 else f"v[{V_ACC}:{V_ACC+15}]"
        a(f"v_mfma_f32_32x32x16_bf16 v[{V_ACC}:{V_ACC+15}], a[{4*i}:{4*i+3}], v[{d}:{d+3}], {c}")
    for i in range(64 - PFD):
        mf(i, q)
        fload(i + PFD); q.append(i + PFD)
        if i == PFD:
            a(f"v_cmp_ge_u32 vcc, s{S_SEG}, v{V_T2}")
        if i == PFD + 1:
            a(f"s_cmp_eq_u64 vcc, 0\ns_cselect_b32 s{S_RET}, 1, 0")
    a(f"s_cmp_eq_u32 s{S_RET}, 1\ns_cbranch_scc1 {name}_pfx")
    for i in range(64 - PFD, 64): mf(i, q)
    a(f"s_branch {name}_pfd")
    a.label(f"{name}_pfx")
    extra = Lq + Lm
    for i in range(64 - PFD, 64):
        mf(i, q)
        for _ in range(-(-24 // PFD)):
            if extra: a(extra.pop(0)); q.append("x")
    assert not extra
    a.label(f"{name}_pfd")
    a.nops(12)
    for qq in range(4):
        a(f"ds_write_b128 v{V_LW}, v[{V_ACC+4*qq}:{V_ACC+4*qq+3}] offset:{1024*qq}")
    a("s_waitcnt lgkmcnt(0)\ns_barrier")
    for w in range(4):
        a(f"ds_read_b128 v[{V_ACC+4*w}:{V_ACC+4*w+3}], v{V_LR} offset:{4096*w}")
    a("s_waitcnt lgkmcnt(0)")
    fin = (f"""
    v_pk_add_f32 v[{V_ACC}:{V_ACC+1}], v[{V_ACC}:{V_ACC+1}], v[{V_ACC+4}:{V_ACC+5}]
    v_pk_add_f32 v[{V_ACC+2}:{V_ACC+3}], v[{V_ACC+2}:{V_ACC+3}], v[{V_ACC+6}:{V_ACC+7}]
    v_pk_add_f32 v[{V_ACC+8}:{V_ACC+9}], v[{V_ACC+8}:{V_ACC+9}], v[{V_ACC+12}:{V_ACC+13}]
    v_pk_add_f32 v[{V_ACC+10}:{V_ACC+11}], v[{V_ACC+10}:{V_ACC+11}], v[{V_ACC+14}:{V_ACC+15}]
    v_pk_add_f32 v[{V_ACC}:{V_ACC+1}], v[{V_ACC}:{V_ACC+1}], v[{V_ACC+8}:{V_ACC+9}]
    v_pk_add_f32 v[{V_ACC+2}:{V_ACC+3}], v[{V_ACC+2}:{V_ACC+3}], v[{V_ACC+10}:{V_ACC+11}]
    v_cvt_pk_bf16_f32 v{V_SM}, v{V_ACC}, v{V_ACC+1}
    v_cvt_pk_bf16_f32 v{V_SM+1}, v{V_ACC+2}, v{V_ACC+3}
    buffer_store_dwordx2 v[{V_SM}:{V_SM+1}], v{V_OUT}, s[{S_O}:{S_O+3}], s{S_OUT} offen {opt.get('ost', '')}
    """)
    a(fin)
    a(f"s_branch {name}_nxt")
    a.label(f"{name}_half")
    ACB = V_KM
    xst(S_CUR)
    def hload(i):
        d = V_F + 4 * (i % NFR)
        if i % 2 == 0:
            a(f"s_add_u32 s{S_T0}, s{S_ROT}, {i * 2048}")
            a(f"s_and_b32 s{S_T0}, s{S_T0}, 0xffff")
            a(f"s_add_u32 s{S_T0}, s{S_T0}, s{S_OR}")
        a(f"buffer_load_dwordx4 v[{d}:{d+3}], v{V_HL}, {SRD}, s{S_T0} offen offset:{(i & 1) * 2048} sc1")
    for i in range(PFD): hload(i)
    a(f"s_mov_b32 s{S_RET}, 0")
    for i in range(32):
        a(f"s_waitcnt vmcnt({min(31, i + PFD - 1) - i})")
        d = V_F + 4 * (i % NFR)
        for b, acc in enumerate((V_ACC, ACB)):
            c = "0" if i == 0 else f"v[{acc}:{acc+15}]"
            a(f"v_mfma_f32_32x32x16_bf16 v[{acc}:{acc+15}], a[{8*i+4*b}:{8*i+4*b+3}], v[{d}:{d+3}], {c}")
        if i + PFD < 32: hload(i + PFD)
    xst(S_CUR)
    a(f"s_cmp_ge_u32 s{S_SEG}, 64\ns_cbranch_scc1 {name}_hnp\ns_mov_b32 s{S_RET}, 2")
    for l in Lq: a(l)
    a.label(f"{name}_hnp")
    a(f"s_mov_b32 vcc_lo, 0xffff0000\ns_mov_b32 vcc_hi, 0xffff0000")
    a.nops(10)
    for i in range(16):
        a(f"v_cndmask_b32 v{V_ACC+i}, v{V_ACC+i}, v{ACB+i}, vcc")
    for qq in range(4):
        a(f"ds_write_b128 v{V_LW}, v[{V_ACC+4*qq}:{V_ACC+4*qq+3}] offset:{1024*qq}")
    a(f"""
    s_waitcnt lgkmcnt(0)
    s_barrier
    s_cmp_ge_u32 s{S_WAVE}, 2
    s_cbranch_scc1 {name}_nxt
    """)
    for w in range(4):
        a(f"ds_read_b128 v[{V_ACC+4*w}:{V_ACC+4*w+3}], v{V_LR} offset:{4096*w}")
        a(f"ds_read_b128 v[{ACB+4*w}:{ACB+4*w+3}], v{V_LR} offset:{4096*w + 256}")
    a(f"""
    s_and_b32 s{S_T0}, s{S_G}, 1
    s_lshl_b32 s{S_T0}, s{S_T0}, 16
    s_add_u32 s{S_OUT}, s{S_OUT}, s{S_T0}
    s_waitcnt lgkmcnt(0)
    """)
    for i in range(0, 16, 2):
        a(f"v_pk_add_f32 v[{V_ACC+i}:{V_ACC+i+1}], v[{V_ACC+i}:{V_ACC+i+1}], v[{ACB+i}:{ACB+i+1}]")
    a(fin)
    a.label(f"{name}_nxt")
    if stamp: stamp()
    a(f"""
    s_cmp_lg_u32 s{S_RET}, 0
    s_cbranch_scc1 {name}_att
    s_cmp_lt_u32 s{S_SEG}, 64
    s_cbranch_scc1 {name}_ldq
    """)
    if not opt.get("direct", 1): return
    a(f"s_branch {name}_fin")
    a.label(f"{name}_dx")
    D = V_F
    SEL, L8 = V_F + 32, V_F + 34
    T = V_F + 36
    a(f"""
    buffer_load_dword v{V_T0}, off, s[{S_DBG}:{S_DBG+3}], 0 offset:{DBG_VOTE} sc1
    v_and_b32 v{V_T1}, 15, v{V_L}
    v_lshrrev_b32 v{V_T2}, 4, v{V_L}
    v_lshlrev_b32 v{L8}, 3, v{V_L}
    v_and_b32 v{SEL}, 1, v{V_T1}
    v_lshlrev_b32 v{SEL}, 4, v{SEL}
    v_mov_b32 v{SEL+1}, 0x3f80
    v_lshlrev_b32 v{SEL+1}, v{SEL}, v{SEL+1}
    v_lshrrev_b32 v{V_T1}, 2, v{V_T1}
    v_cmp_eq_u32 vcc, v{V_T1}, v{V_T2}
    v_mov_b32 v{SEL}, 0
    s_waitcnt vmcnt(0)
    v_cndmask_b32 v{SEL+1}, 0, v{SEL+1}, vcc
    v_readfirstlane_b32 s{S_T0}, v{V_T0}
    s_and_b32 s{S_T1}, s{S_SEG}, 1
    s_lshl_b32 s{S_T1}, s{S_T1}, 20
    s_lshl_b32 s{S_QO}, s{S_C}, 14
    s_add_u32 s{S_QO}, s{S_QO}, s{S_T1}
    s_add_u32 s{S_QO}, s{S_QO}, {WS_XB}
    s_lshr_b32 s{S_T0}, s{S_T0}, 15
    s_cmp_gt_u32 s{S_T0}, s{S_VOTE}
    s_cselect_b32 s{S_T0}, 8192, 0
    s_add_u32 s{S_QO}, s{S_QO}, s{S_T0}
    s_bfe_u32 s{S_T0}, s{S_C}, 0x10001
    s_lshl_b32 s{S_T0}, s{S_T0}, 12
    s_add_u32 s{S_QO}, s{S_QO}, s{S_T0}
    s_add_u32 s{S_QO2}, s{S_QO}, {32 << 14}
    s_lshr_b32 s{S_T0}, s{S_WAVE}, 1
    s_lshl_b32 s{S_T0}, s{S_T0}, 11
    s_xor_b32 s{S_KO}, s{S_QO}, 4096
    s_add_u32 s{S_KO}, s{S_KO}, s{S_T0}
    s_add_u32 s{S_KO2}, s{S_KO}, {32 << 14}
    s_lshl_b32 s{S_T0}, s{S_WAVE}, 10
    s_add_u32 s{S_QO}, s{S_QO}, s{S_T0}
    s_add_u32 s{S_QO2}, s{S_QO2}, s{S_T0}
    v_add_u32 v{L8+1}, s{S_T0}, v{V_L16}
    {name}_dr:
    """)
    poll_guard(43)
    a(f"""
    buffer_load_dword v{V_T0}, v{V_FRP}, {SRD}, 0 offen sc1
    s_waitcnt vmcnt(0)
    v_cmp_gt_u32 vcc, s{S_SEG}, v{V_T0}
    s_cbranch_vccz {name}_dp
    s_sleep 2
    s_branch {name}_dr
    {name}_dp:
    """)
    poll_guard(44)
    regs = []
    for j in range(2):
        for m in range(2):
            d = D + 4 * j + 2 * m
            regs.append(d)
            a(f"buffer_load_dwordx2 v[{d}:{d+1}], v{L8}, {SRD}, s{S_QO if j == 0 else S_QO2} offen offset:{512*m} sc1")
    a("s_waitcnt vmcnt(0)")
    for j in range(2):
        for m in range(2):
            d = D + 4 * j + 2 * m
            t = T + 4 * m
            c = "0" if j == 0 else f"v[{t}:{t+3}]"
            a(f"v_mfma_f32_16x16x16_bf16 v[{t}:{t+3}], v[{d}:{d+1}], v[{SEL}:{SEL+1}], {c}")
    Lv = [f"buffer_load_dwordx2 v[{V_VM+2*i}:{V_VM+2*i+1}], v{L8}, {SRD}, s{S_KO if (i & 1) == 0 else S_KO2} offen offset:{1024*(i >> 1)} sc1" for i in range(4)]
    a(f"""
    v_or3_b32 v{V_T0}, v{regs[0]}, v{regs[1]}, v{regs[2]}
    v_or_b32 v{V_T0}, v{V_T0}, v{regs[3]}
    v_and_b32 v{V_T0}, 1, v{V_T0}
    v_cmp_ne_u32 vcc, 0, v{V_T0}
    s_nop 3
    s_cbranch_vccnz {name}_dp
    """)
    for i in range(4):
        a(f"v_cvt_pk_bf16_f32 v{D+i}, v{T+2*i}, v{T+2*i+1}")
    a(f"ds_write_b128 v{L8+1}, v[{D}:{D+3}] offset:20480")
    a("s_waitcnt lgkmcnt(0)\ns_barrier")
    for u in range(4):
        a(f"ds_read_b128 v[{V_KM+4*u}:{V_KM+4*u+3}], v{V_L16} offset:{20480 + 1024*u}")
    a.label(f"{name}_dv")
    poll_guard(45)
    for l in Lv: a(l)
    a(f"""
    s_waitcnt vmcnt(0) lgkmcnt(0)
    v_or3_b32 v{V_T0}, v{V_VM}, v{V_VM+2}, v{V_VM+4}
    v_or_b32 v{V_T0}, v{V_T0}, v{V_VM+6}
    v_and_b32 v{V_T0}, 1, v{V_T0}
    v_cmp_ne_u32 vcc, 0, v{V_T0}
    s_cbranch_vccnz {name}_dv
    s_branch {name}_rd
    {name}_fin:
    """)
```

```python
import sys, json
from common import *
from gen_rec import DBG_VOTE, global_init, rec_body, S_J, S_H, LDS_REC, WS_FL, WS_XB, WS_PROF
from gen_qkv import qkv_role
from gen_xo import xo_role, WoLoader
from gen_fft import gen_f0, gen_f1, gen_f2, gen_f3

DBG_F1, DBG_F2, DBG_F0 = WS_FL + 448 * 128, WS_FL + 450 * 128, WS_FL + 452 * 128
RECOPT = dict(preC="ack", preA="ack", nl=16, yp=15, xp=(16, 18), vs=17, vbar=1, fsp=4, are=1, f1e=1, f1s=2)


def xlut(order):
    lut = 0
    for logical, c in enumerate(order):
        lut |= logical << (4 * int(c))
    return hex(lut)


def gen_mega(name, force_slow=False, wd=False, bprof=False, ropt={}, rprof=False, opt={}):
    a = Asm(); a.kernel_begin(name)
    S_W, S_D = 84, 88
    S_B, S_X, S_TK, S_GT, S_VOTE, S_TS, S_WDC = 92, 93, 94, 95, 100, 101, 83
    S_FAST, S_VER, S_WV = 96, 97, 98
    ro = dict(RECOPT); ro.update(ropt)

    def ts(srd=S_W):
        if not bprof: return
        l = a.newlabel(name + "_ts")
        a(f"""
        {'s_memtime' if opt.get('cyc') else 's_memrealtime'} vcc
        s_waitcnt lgkmcnt(0)
        s_mov_b64 exec, 1
        v_accvgpr_read_b32 v255, a255
        v_mov_b32 v135, vcc_lo
        s_nop 0
        buffer_store_dword v135, off, s[{srd}:{srd+3}], s{S_TS}
        s_mov_b64 exec, -1
        s_add_u32 s{S_TS}, s{S_TS}, 4
        """.replace("v_accvgpr_read_b32 v255, a255\n", ""))

    def dmax(idx, srd=S_D, v=135):
        if not opt.get("dbgt"): return
        a(f"""
        s_memrealtime vcc
        s_waitcnt lgkmcnt(0)
        s_mov_b64 exec, 1
        v_mov_b32 v{v}, vcc_lo
        s_nop 0
        buffer_atomic_umax v{v}, off, s[{srd}:{srd+3}], 0 offset:{4*idx} sc1
        s_mov_b64 exec, -1
        """)

    def wdog(code):
        if not wd: return
        a(f"""
        s_add_u32 s{S_WDC}, s{S_WDC}, 1
        s_cmp_gt_u32 s{S_WDC}, 300000
        s_movk_i32 s82, {code}
        s_cbranch_scc1 {name}_wdx
        """)

    a(f"""
    s_cmp_ge_u32 s2, 256
    s_cbranch_scc1 {name}_exit
    s_load_dwordx2 s[{S_W}:{S_W+1}], s[0:1], {KA_WS}
    s_load_dwordx2 s[{S_D}:{S_D+1}], s[0:1], {KA_DBG}
    s_getreg_b32 s{S_X}, hwreg(HW_REG_XCC_ID)
    s_and_b32 s{S_X}, s{S_X}, 7
    s_lshl_b32 s{S_X}, s{S_X}, 2
    s_lshr_b32 s{S_X}, {xlut(opt.get('xmap', '01234567'))}, s{S_X}
    s_and_b32 s{S_X}, s{S_X}, 7
    v_lshrrev_b32 v1, 6, v0
    v_mov_b32 v4, 0
    v_readfirstlane_b32 s80, v1
    v_mov_b32 v5, 0
    v_mov_b32 v6, 0
    v_mov_b32 v7, 0
    s_mov_b32 s{S_WDC}, 0
    s_lshl_b32 s{S_TS}, s2, 2
    s_add_u32 s{S_TS}, s{S_TS}, s80
    s_lshl_b32 s{S_TS}, s{S_TS}, 8
    s_add_u32 s{S_TS}, s{S_TS}, {220*MB}
    s_waitcnt lgkmcnt(0)
    s_mov_b32 s{S_W+2}, {WS_BYTES}
    s_mov_b32 s{S_W+3}, 0x00020000
    s_mov_b32 s{S_D+2}, 256
    s_mov_b32 s{S_D+3}, 0x00020000
    """)
    ts()
    if opt.get("cpf"):
        a(f"""
        s_getpc_b64 s[78:79]
        v_lshlrev_b32 v9, 7, v0
        """)
        for i in range(opt["cpf"]):
            a(f"global_load_dword v{10+i}, v9, s[78:79]")
            a("v_add_u32 v9, 0x8000, v9")
    PX = opt.get("px", 2)
    a(f"""
    s_mov_b32 s{S_WV}, s80
    s_cmp_lg_u32 s80, 0
    s_cbranch_scc1 {name}_st0
    v_mov_b32 v10, 1
    s_lshl_b32 s81, s{S_X}, 5
    s_mov_b64 exec, 1
    buffer_atomic_add v10, off, s[{S_D}:{S_D+3}], s81 offset:4 sc0
    s_lshl_b32 s81, s2, 7
    s_add_u32 s81, s81, {WS_FL}
    s_mov_b64 exec, 3
    v_lshlrev_b32 v1, 15, v0
    buffer_store_dword v4, v1, s[{S_W}:{S_W+3}], s81 offen sc1
    s_mov_b64 exec, -1
    {name}_st0:
    """)
    global_init(a, name, S_W)
    a(f"""
    s_cmp_lg_u32 s80, 0
    s_cbranch_scc1 {name}_st1
    s_mov_b64 exec, 1
    s_waitcnt vmcnt(4)
    ds_write_b32 v4, v10
    s_mov_b64 exec, -1
    s_waitcnt lgkmcnt(0)
    {name}_st1:
    s_barrier
    ds_read_b32 v2, v4
    s_waitcnt lgkmcnt(0)
    v_readfirstlane_b32 s{S_TK}, v2
    s_barrier
    s_sub_u32 s81, s{S_X}, {PX}
    s_cmp_ge_u32 s81, 2
    s_cbranch_scc1 {name}_nopr
    s_cmp_lg_u32 s80, 0
    s_cbranch_scc1 {name}_prd
    v_lshlrev_b32 v1, 4, v0
    s_and_b32 s81, s2, 127
    s_lshl_b32 s81, s81, 14
    s_add_u32 s81, s81, {WS_XB}
    s_add_u32 s77, s81, 8192
    buffer_store_dwordx4 v[4:7], v1, s[{S_W}:{S_W+3}], s81 offen sc1
    buffer_store_dwordx4 v[4:7], v1, s[{S_W}:{S_W+3}], s77 offen sc1
    s_waitcnt vmcnt(0)
    s_memtime s[70:71]
    buffer_store_dwordx4 v[4:7], v1, s[{S_W}:{S_W+3}], s81 offen sc1
    s_waitcnt vmcnt(0)
    s_memtime s[72:73]
    buffer_store_dwordx4 v[4:7], v1, s[{S_W}:{S_W+3}], s77 offen sc1
    s_waitcnt vmcnt(0)
    buffer_store_dwordx4 v[4:7], v1, s[{S_W}:{S_W+3}], s77 offen sc1
    s_waitcnt vmcnt(0)
    s_memtime s[74:75]
    buffer_store_dwordx4 v[4:7], v1, s[{S_W}:{S_W+3}], s81 offen sc1
    s_waitcnt vmcnt(0)
    s_memtime s[76:77]
    s_waitcnt lgkmcnt(0)
    s_sub_u32 s76, s76, s74
    s_sub_u32 s74, s74, s72
    s_sub_u32 s72, s72, s70
    s_add_u32 s72, s72, s76
    s_cmp_lt_u32 s74, s72
    s_cselect_b32 s81, 0x10001, 1
    v_mov_b32 v8, s81
    s_mov_b64 exec, 1
    buffer_atomic_add v8, off, s[{S_D}:{S_D+3}], 0 offset:{DBG_VOTE} sc1
    s_mov_b64 exec, -1
    {name}_prd:
    s_barrier
    """)
    for _ in range(opt.get("qdelay", 0)): a("s_sleep 127")
    a(f"""
    {name}_nopr:
    s_mov_b32 s{S_VER}, 0
    s_mov_b32 s{S_VOTE}, 64
    {name}_fast:
    s_mov_b32 s{S_FAST}, 1
    s_mov_b32 s{S_J}, s{S_X}
    s_and_b32 s{S_H}, s{S_TK}, 31
    s_cmp_lt_u32 s{S_X}, 2
    s_cbranch_scc1 {name}_recf
    s_sub_u32 s{S_B}, s{S_X}, 2
    s_lshl_b32 s{S_B}, s{S_B}, 5
    s_add_u32 s{S_B}, s{S_B}, s{S_H}
    s_branch {name}_bulk
    {name}_redo:
    s_waitcnt vmcnt(0) lgkmcnt(0)
    s_barrier
    v_readlane_b32 s{S_VOTE}, v36, {PX}
    v_readlane_b32 s81, v36, {PX + 1}
    s_mov_b32 s{S_VER}, 1
    s_nop 2
    s_add_u32 s{S_VOTE}, s{S_VOTE}, s81
    """)
    a(f"s_mov_b32 s{S_GT}, s{S_TK}")
    for i in range(7):
        a(f"""
        v_readlane_b32 s81, v36, {i}
        s_cmp_gt_u32 s{S_X}, {i}
        s_nop 2
        s_cselect_b32 s81, s81, 0
        s_add_u32 s{S_GT}, s{S_GT}, s81
        """)
    a(f"""
    {name}_slow:
    s_mov_b32 s{S_FAST}, 0
    s_lshr_b32 s{S_J}, s{S_GT}, 5
    s_and_b32 s{S_H}, s{S_GT}, 31
    s_cmp_lt_u32 s{S_GT}, 64
    s_cbranch_scc1 {name}_recs
    s_sub_u32 s{S_B}, s{S_GT}, 64
    s_branch {name}_bulk
    {name}_exit:
    s_endpgm
    """)

    def hook0(n):
        l = a.newlabel(name + "_h0")
        a(f"""
        s_waitcnt vmcnt({n})
        s_barrier
        s_or_b32 s81, s{S_VER}, s{S_WV}
        s_cmp_lg_u32 s81, 0
        s_cbranch_scc1 {l}
        s_lshl_b32 s81, s{S_X}, 5
        v_mov_b32 v38, 1
        s_mov_b64 exec, 1
        buffer_atomic_add v38, off, s[{S_D}:{S_D+3}], s81 sc1
        s_mov_b64 exec, -1
        {l}:
        """)
    def hook1():
        a(f"""
        v_and_b32 v37, 7, v0
        v_lshlrev_b32 v37, 5, v37
        buffer_load_dword v36, v37, s[{S_D}:{S_D+3}], 0 offen sc1
        """)
    def hook2():
        l = a.newlabel(name + "_h2")
        a(f"""
        s_cmp_lg_u32 s{S_VER}, 0
        s_cbranch_scc1 {l}_ok
        {l}_ev:
        v_cmp_ne_u32 vcc, 32, v36
        """)
        if not force_slow: a(f"s_cbranch_vccz {l}_ok")
        a("s_mov_b32 s78, 0")
        for i in range(8):
            a(f"v_readlane_b32 s81, v36, {i}\ns_nop 3\ns_add_u32 s78, s78, s81")
        a(f"""
        s_cmp_eq_u32 s78, 256
        s_cbranch_scc1 {name}_redo
        """)
        wdog(2)
        a(f"""
        buffer_load_dword v36, v37, s[{S_D}:{S_D+3}], 0 offen sc1
        s_waitcnt vmcnt(0)
        s_branch {l}_ev
        {l}_ok:
        """)
    hooks = (hook0, hook1, hook2)
    if wd:
        a(f"""
        {name}_wdx:
        s_mov_b64 exec, 1
        v_mov_b32 v1, s82
        s_lshl_b32 s81, s2, 2
        s_add_u32 s81, s81, {WS_PROF + MB + 1024}
        buffer_store_dword v1, off, s[{S_W}:{S_W+3}], s81
        s_endpgm
        """)
    a.label(f"{name}_recf")
    rn = [0]
    def rts():
        if opt.get("dbgt"):
            l = a.newlabel(name + "_rt")
            a(f"s_cmp_lg_u32 s20, 0\ns_cbranch_scc1 {l}")
            dmax(4 + rn[0], 12, 3); rn[0] += 1
            a.label(l)
        if not bprof: return
        a(f"""
        s_memrealtime vcc
        s_waitcnt lgkmcnt(0)
        s_mov_b64 exec, 1
        v_mov_b32 v3, vcc_lo
        s_nop 0
        buffer_store_dword v3, off, s[4:7], s{S_TS}
        s_mov_b64 exec, -1
        s_add_u32 s{S_TS}, s{S_TS}, 4
        """)
    ts()
    rec_body(a, name + "_rf", "", wd=wd, full=True, S_VOTE=S_VOTE, opt=ro, prof=rprof, tstamp=rts, hooks=hooks)
    a.label(f"{name}_recs")
    if opt.get("noslow"): a("s_endpgm")
    else: rec_body(a, name + "_rs", "sc1", wd=wd, full=True, S_VOTE=S_VOTE, opt=RECOPT)

    def signal(off):
        l = a.newlabel(name + "_sg")
        a(f"""
        s_waitcnt vmcnt(0)
        s_barrier
        s_cmp_lg_u32 s{S_WV}, 0
        s_cbranch_scc1 {l}
        v_mov_b32 v2, 1
        s_mov_b32 s81, {off}
        s_mov_b64 exec, 1
        buffer_atomic_add v2, off, s[{S_W}:{S_W+3}], s81 sc1
        s_mov_b64 exec, -1
        {l}:
        """)

    def wait(off, n, tag, allw=False):
        if not allw: a(f"s_cmp_lg_u32 s{S_WV}, 0\ns_cbranch_scc1 {name}_w{tag}d")
        a(f"s_mov_b32 s81, {off}")
        a.label(f"{name}_w{tag}")
        wdog(50)
        a(f"""
        buffer_load_dword v120, off, s[{S_W}:{S_W+3}], s81 sc1
        s_waitcnt vmcnt(0)
        v_cmp_ne_u32 vcc, {n}, v120
        s_cbranch_vccz {name}_w{tag}d
        s_sleep 6
        s_branch {name}_w{tag}
        {name}_w{tag}d:
        """)
    a.label(f"{name}_bulk")
    ts()
    qkv_role(a, name + "_q", S_B, S_W, S_D, stamp=ts, opt=opt, hooks=hooks)
    ts()
    for _ in range(opt.get("bdelay", 0)): a("s_sleep 127")
    WL = WoLoader(a, name, S_B, S_WV, opt)
    WL.setup()
    a(f"""
    s_cmp_lt_u32 s{S_B}, 128
    s_cbranch_scc1 {name}_f1
    """)
    WL.step(0)
    a(f"""
    s_sub_u32 s99, s{S_B}, 128
    {name}_f0l:
    s_barrier
    """)
    gen_f0(a, name + "_f0", role=99, noend=True)
    a(f"""
    s_add_u32 s99, s99, 64
    s_cmp_lt_u32 s99, 288
    s_cbranch_scc1 {name}_f0l
    """)
    signal(DBG_F0)
    ts()
    a(f"""
    s_cmp_lg_u32 s{S_B}, 191
    s_cbranch_scc1 {name}_xo2
    s_cmp_lg_u32 s{S_WV}, 0
    s_cbranch_scc1 {name}_xo2
    """)
    WL.step(1)
    wait(DBG_F1, 128, "f1b")
    a(f"""
    s_mov_b32 s99, 128
    s_branch {name}_f2_in
    {name}_f2ret:
    s_waitcnt vmcnt(0)
    v_mov_b32 v2, 1
    s_mov_b64 exec, 1
    s_mov_b32 s81, {DBG_F2}
    buffer_atomic_add v2, off, s[{S_W}:{S_W+3}], s81 sc1
    s_mov_b64 exec, -1
    s_branch {name}_xo3
    {name}_xo2:
    """)
    WL.step(1)
    WL.step(2)
    a.label(f"{name}_xo3")
    WL.step(3)
    a(f"s_branch {name}_xo4")
    a.label(f"{name}_f1")
    gen_f1(a, name + "_f1r", role=S_B, pre_store=lambda: WL.step(0))
    signal(DBG_F1)
    ts()
    WL.step(1)
    wait(DBG_F1, 128, "f1")
    a(f"s_mov_b32 s99, s{S_B}")
    gen_f2(a, name + "_f2", role=99, wready=lambda: wait(DBG_F0, 64, "f0", True), mid=lambda: WL.step(2), st=ts if opt.get("fst") else None)
    a(f"s_cmp_eq_u32 s99, 128\ns_cbranch_scc1 {name}_f2ret")
    signal(DBG_F2)
    WL.step(3)
    ts()
    wait(DBG_F2, 129, "f2")
    gen_f3(a, name + "_f3", role=S_B, ost=opt.get("ost", ""))
    a.label(f"{name}_xo4")
    ts()
    WL.step(4)
    xo_role(a, name + "_x", S_B, S_W, S_FAST, S_D, S_VOTE, wd=wdog if wd else None, opt=opt, stamp=ts)
    if opt.get("dbgt"):
        a(f"s_cmp_lg_u32 s{S_WV}, 0\ns_cbranch_scc1 {name}_fin")
        dmax(6)
        a.label(f"{name}_fin")
    a.label(f"{name}_cE")
    a("s_endpgm")
    return (name, a.text(), kd(name, 512, sgpr=102, accum=256), 256, 256, LDS_REC)


if __name__ == "__main__":
    out = sys.argv[1]
    kw = eval(sys.argv[2]) if len(sys.argv) > 2 else {}
    write_file(out, [gen_mega("mega_kernel", **kw)])
```

```python
from common import *
from gen_rec import WS_QX, WS_FL


def load_weights_tr(a, name, S_W, S_WAVE, S_T0, S_M0, so_base, row_bytes, krows_per_wave, permkind, S_BASE):
    pass


def qkv_role(a: Asm, name, S_B, S_WS, S_DBG, stamp=None, opt={}, hooks=None):
    S_A, S_W = 8, 12
    S_WAVE, S_MAT, S_H, S_P, S_T0, S_T1 = 16, 17, 18, 19, 20, 21
    S_M0, S_SA, S_SO, S_IT, S_FL, S_XW = 22, 23, 24, 25, 26, 27
    V_L, V_T0, V_T1, V_T2 = 1, 2, 3, 4
    V_DA = 6
    V_ST, V_FO, V_FV, V_DW, V_RW = 8, 9, 10, 11, 12
    V_RA = 16
    V_F = 32
    V_ACC = 64
    V_E = 96
    NF = 8
    a(f"""
    s_load_dwordx2 s[{S_A}:{S_A+1}], s[0:1], {KA_AX}
    s_load_dwordx2 s[40:41], s[0:1], {KA_WQ}
    s_load_dwordx2 s[42:43], s[0:1], {KA_WK}
    s_load_dwordx2 s[44:45], s[0:1], {KA_WV}
    v_lshrrev_b32 v{V_T0}, 6, v0
    v_and_b32 v{V_L}, 63, v0
    v_readfirstlane_b32 s{S_WAVE}, v{V_T0}
    s_lshr_b32 s{S_MAT}, s{S_B}, 6
    s_bfe_u32 s{S_H}, s{S_B}, 0x50001
    s_and_b32 s{S_P}, s{S_B}, 1
    s_waitcnt lgkmcnt(0)
    s_mov_b32 s{S_A+2}, {4*MB}
    s_mov_b32 s{S_A+3}, 0x00020000
    s_cmp_eq_u32 s{S_MAT}, 1
    s_cselect_b32 s{S_W}, s42, s40
    s_cselect_b32 s{S_W+1}, s43, s41
    s_cmp_eq_u32 s{S_MAT}, 2
    s_cselect_b32 s{S_W}, s44, s{S_W}
    s_cselect_b32 s{S_W+1}, s45, s{S_W+1}
    s_mov_b32 s{S_W+2}, {8*MB}
    s_mov_b32 s{S_W+3}, 0x00020000
    v_lshrrev_b32 v{V_T0}, 4, v{V_L}
    v_and_b32 v{V_T1}, 15, v{V_L}
    v_lshlrev_b32 v{V_T2}, 2, v{V_T0}
    v_xor_b32 v{V_T2}, v{V_T2}, v{V_T1}
    v_lshlrev_b32 v{V_T2}, 4, v{V_T2}
    s_lshl_b32 s{S_T0}, s{S_WAVE}, 5
    v_add_u32 v{V_DW}, s{S_T0}, v{V_T0}
    v_lshl_add_u32 v{V_DW}, v{V_DW}, 13, v{V_T2}
    s_lshl_b32 s{S_T0}, s{S_H}, 8
    v_add_u32 v{V_DW}, s{S_T0}, v{V_DW}
    s_lshl_b32 s{S_M0}, s{S_WAVE}, 13
    s_lshl_b32 s{S_XW}, s{S_P}, {22 if opt.get('krot', 0) else 23}
    s_and_b32 s{S_XW}, s{S_XW}, {4*MB}
    """)
    if opt.get("owarm", 0):
        a(f"""
        s_load_dwordx2 s[48:49], s[0:1], {KA_WO}
        v_lshlrev_b32 v13, 7, v0
        s_mul_i32 s{S_T0}, s{S_B}, {43 * 1024}
        s_mov_b32 s50, {8*MB}
        s_mov_b32 s51, 0x00020000
        s_waitcnt lgkmcnt(0)
        buffer_load_dword v240, v13, s[48:51], s{S_T0} offen
        s_add_u32 s{S_T0}, s{S_T0}, {11 * 1024}
        buffer_load_dword v241, v13, s[48:51], s{S_T0} offen
        """)

    def wdma(u):
        for i in range(8):
            a(f"s_add_u32 m0, s{S_M0}, {(u & 3) * 32768 + i * 1024}")
            a(f"s_xor_b32 s{S_T0}, s{S_XW}, {(128 * u + 4 * i) * 8192}")
            a(f"buffer_load_dwordx4 v{V_DW}, s[{S_W}:{S_W+3}], s{S_T0} offen lds")
    for u in range(4):
        wdma(u)
        if u == 0 and hooks: hooks[0](8)
        if u == 0 and opt.get("qd"):
            a(f"s_cmp_lg_u32 s{S_MAT}, 0\ns_cbranch_scc1 {name}_nq")
            for _ in range(opt["qd"]): a("s_sleep 127")
            a.label(f"{name}_nq")
    a(f"""
    v_and_b32 v{V_T1}, 3, v{V_L}              ; cc
    v_bfe_u32 v14, v{V_L}, 2, 2                ; r
    v_xor_b32 v15, s{S_WAVE}, v14
    v_lshlrev_b32 v15, 6, v15
    v_lshl_add_u32 v15, v{V_T1}, 4, v15
    v_lshl_add_u32 v13, v{V_T0}, 3, v14        ; row
    v_lshl_add_u32 v{V_RW}, v13, 8, v15
    v_and_b32 v{V_T1}, 15, v{V_L}
    s_lshl_b32 s{S_T0}, s{S_WAVE}, 3
    """)
    for b in range(2):
        a(f"""
        v_add_u32 v13, s{S_T0}, v{V_T0}
        v_add_u32 v13, {4*b}, v13
        v_and_b32 v14, 15, v13
        v_xor_b32 v14, v14, v{V_T1}
        v_lshlrev_b32 v14, 4, v14
        v_lshl_add_u32 v{V_DA+b}, v13, 11, v14
        """)
    a(f"""
    v_xor_b32 v14, v{V_T0}, v{V_T1}
    v_lshlrev_b32 v14, 4, v14
    v_lshl_add_u32 v13, v{V_T1}, 8, v14
    """)
    for kk in range(4):
        a(f"v_xor_b32 v{V_RA+kk}, {64*kk}, v13")
        a(f"v_add_u32 v{V_RA+4+kk}, 0x10000, v{V_RA+kk}")
    a(f"""
    v_lshlrev_b32 v{V_ST}, 4, v{V_L}
    v_bfrev_b32 v13, 1
    s_lshl_b32 s{S_T0}, s{S_B}, 7
    s_add_u32 s{S_T0}, s{S_T0}, {WS_FL}
    v_mov_b32 v14, s{S_T0}
    v_cmp_eq_u32 vcc, 0, v0
    s_lshl_b32 s{S_SO}, s{S_MAT}, 24
    s_lshl_b32 s{S_T0}, s{S_P}, 18
    v_cndmask_b32 v{V_FO}, v13, v14, vcc
    s_add_u32 s{S_SO}, s{S_SO}, s{S_T0}
    s_lshl_b32 s{S_T0}, s{S_H}, 13
    s_add_u32 s{S_SO}, s{S_SO}, s{S_T0}
    s_lshl_b32 s{S_T0}, s{S_WAVE}, 11
    s_add_u32 s{S_SO}, s{S_SO}, s{S_T0}
    s_add_u32 s{S_SO}, s{S_SO}, {WS_QX}
    s_lshl_b32 s{S_SA}, s{S_P}, 16
    s_lshr_b32 s{S_T0}, s{S_XW}, 12
    s_add_u32 s{S_SA}, s{S_SA}, s{S_T0}
    v_mov_b32 v{V_FV}, 0
    """)

    PFI = opt.get("pfi", 0)
    if PFI:
        a(f"""
        s_load_dwordx2 s[40:41], s[0:1], {KA_BX}
        s_load_dwordx2 s[42:43], s[0:1], {KA_WR}
        s_load_dwordx2 s[44:45], s[0:1], {KA_WI}
        v_lshlrev_b32 v242, 7, v0
        s_waitcnt lgkmcnt(0)
        s_cmp_ge_u32 s{S_B}, 96
        s_cselect_b32 s48, s42, s40
        s_cselect_b32 s49, s43, s41
        s_cselect_b32 s46, 96, 0
        s_mov_b32 s50, {4*MB}
        s_cselect_b32 s50, {2048*513*2}, s50
        s_cmp_ge_u32 s{S_B}, 144
        s_cselect_b32 s48, s44, s48
        s_cselect_b32 s49, s45, s49
        s_cselect_b32 s46, 144, s46
        s_mov_b32 s51, 0x00020000
        s_sub_u32 s46, s{S_B}, s46
        s_mul_i32 s46, s46, 45056
        s_mul_i32 s47, s{S_B}, 11
        s_lshr_b32 s47, s47, 1
        s_and_b32 s47, s47, 7
        s_add_u32 s47, s47, 4
        s_mov_b32 s47, {PFI}
        v_lshlrev_b32 v243, 7, v0
        s_mov_b32 s28, s46
        """)

    def xdma(slot, uu, i):
        return [f"s_add_u32 m0, s{S_T1}, {slot * 32768 + (i >> 1) * 8192 + (i & 1) * 1024}",
                f"s_xor_b32 s{S_T0}, s{S_SA}, {(4 * uu + (i >> 1)) * 256}",
                f"buffer_load_dwordx4 v{V_DA + (i & 1)}, s[{S_A}:{S_A+3}], s{S_T0} offen lds"]
    a(f"s_lshl_b32 s{S_T1}, s{S_WAVE}, 11")
    for u in range(8):
        a(f"s_waitcnt vmcnt(24)" if u < 7 else "s_waitcnt vmcnt(24)")
        a("s_barrier")
        if hooks and u == 3: hooks[1]()
        if hooks and u == 7: hooks[2]()
        a(f"v_add_u32 v13, {(u & 3) * 32768}, v{V_RW}")
        for ks in range(4):
            for tau in range(2):
                for j in range(2):
                    d = ((4 * u + ks) * 2 + tau) * 4 + 2 * j
                    a(f"ds_read_b64_tr_b16 a[{d}:{d+1}], v13 offset:{(32 * ks + 4 * j) * 256 + 8 * tau}")
            if ks == 1: a("s_waitcnt lgkmcnt(0)")
        a("s_waitcnt lgkmcnt(0)")
        a("s_barrier")
        if u < 4:
            wdma(u + 4)
        elif u < 7:
            g = u - 4
            if g == 2: a(f"s_add_u32 s{S_SA}, s{S_SA}, {2*65536}")
            for i in range(8):
                for l in xdma(g, g & 1, i): a(l)
    if stamp: stamp()
    def xtouch():
        a(f"""
        v_lshlrev_b32 v242, 7, v0
        v_min_u32 v242, {171 * 128}, v242
        s_mul_i32 s46, s{S_B}, {171 * 128}
        buffer_load_dword v240, v242, s[{S_A}:{S_A+3}], s46 offen
        """)
    if opt.get("xt", 2) == 1: xtouch()
    a(f"s_waitcnt vmcnt({17 if opt.get('xt', 2) == 1 else 16})\ns_barrier")

    def fread(gk):
        gk %= 128
        half, ks = gk >> 6, gk & 63
        d = V_F + 4 * (gk % NF)
        k32, tt = ks >> 1, ks & 1
        return f"ds_read_b128 v[{d}:{d+3}], v{V_RA + 4 * half + (k32 & 3)} offset:{(k32 >> 4) * 32768 + ((k32 >> 2) & 3) * 8192 + tt * 4096}"

    PF = 6
    def epi_lines(accb, isv):
        L = []
        for st in range(2):
            e = V_E + 4 * st
            src = [4 * st, 4 * st + 2, 4 * st + 8, 4 * st + 10] if isv else [8 * st, 8 * st + 2, 8 * st + 4, 8 * st + 6]
            for i, sr in enumerate(src):
                L.append(f"v_cvt_pk_bf16_f32 v{e+i}, v{accb+sr}, v{accb+sr+1}")
            L.append(f"buffer_store_dwordx4 v[{e}:{e+3}], v{V_ST}, s[{S_WS}:{S_WS+3}], s{S_SO} offen offset:{1024*st} {opt.get('st', 'sc1')}" if not opt.get("nost") else "s_nop 0")
        L.append(f"s_add_u32 s{S_SO}, s{S_SO}, {2 * 32 * 8192}")
        return L
    flag = [f"v_add_u32 v{V_FV}, 1, v{V_FV}", f"buffer_store_dword v{V_FV}, v{V_FO}, s[{S_WS}:{S_WS+3}], 0 offen sc1"]

    def body(isv, tag):
        for gk in range(PF): a(fread(gk))
        a(f"s_mov_b32 s{S_IT}, 0")
        a.label(f"{name}_{tag}_loop")
        for gk in range(128):
            half, ks = gk >> 6, gk & 63
            u4 = gk >> 5
            k32 = gk & 31
            acc = V_ACC + 16 * half
            f = V_F + 4 * (gk % NF)
            if k32 == 24:
                a("s_waitcnt vmcnt(8)")
                a("s_barrier")
            a(f"s_waitcnt lgkmcnt({PF - 1})")
            def mm(tau):
                d = acc + 8 * (ks & 1) + 4 * tau
                c = "0" if ks < 2 else f"v[{d}:{d+3}]"
                wr = (ks >> 1) * 8 + 4 * tau
                wreg = f"a[{wr}:{wr+3}]"
                if isv: a(f"v_mfma_f32_16x16x32_bf16 v[{d}:{d+3}], v[{f}:{f+3}], {wreg}, {c}")
                else: a(f"v_mfma_f32_16x16x32_bf16 v[{d}:{d+3}], {wreg}, v[{f}:{f+3}], {c}")
            mm(0)
            if not opt.get("nord"): a(fread(gk + PF))
            mm(1)
            sched = {25: 0, 28: 1, 31: 2, 2: 3, 5: 4, 8: 5, 11: 6, 14: 7}
            if k32 in sched:
                i = sched[k32]
                tgt = (u4 + 3) & 3 if k32 >= 24 else (u4 + 2) & 3
                if gk < 24:
                    a(f"s_cmp_eq_u32 s{S_IT}, 0\ns_cbranch_scc1 {name}_{tag}_sk{gk}")
                if i == 0 and (tgt & 1) == 0:
                    a(f"s_add_u32 s{S_SA}, s{S_SA}, {2*65536}")
                for l in xdma(tgt, tgt & 1, i):
                    if not (opt.get("nodma") and "buffer" in l): a(l)
                if gk < 24: a.label(f"{name}_{tag}_sk{gk}")
            if 15 <= ks < 21:
                part = ks - 15
                if half == 0: a(f"s_cmp_eq_u32 s{S_IT}, 0\ns_cbranch_scc1 {name}_{tag}_ne{part}")
                for l in epi_lines(V_ACC + 16 * (1 - half), isv)[2 * part:2 * part + 2]: a(l)
                if half == 0: a.label(f"{name}_{tag}_ne{part}")
            if PFI and ks == 20:
                a(f"""
                s_cmp_lg_u32 s{S_IT}, s47
                s_cbranch_scc1 {name}_{tag}_np{half}
                buffer_load_dword v240, v243, s[48:51], s28 offen
                s_add_u32 s28, s28, 12288
                {name}_{tag}_np{half}:
                """)
            if opt.get("xt", 2) > 1 and gk == 22:
                a(f"s_cmp_lg_u32 s{S_IT}, {opt.get('xt', 2)}\ns_cbranch_scc1 {name}_{tag}_nx")
                xtouch()
                a.label(f"{name}_{tag}_nx")
            if ks == 58:
                if half == 0: a(f"s_cmp_eq_u32 s{S_IT}, 0\ns_cbranch_scc1 {name}_{tag}_nf")
                for l in flag: a(l)
                if half == 0: a.label(f"{name}_{tag}_nf")
        a(f"""
        s_add_u32 s{S_IT}, s{S_IT}, 1
        s_cmp_lt_u32 s{S_IT}, 16
        s_cbranch_scc1 {name}_{tag}_loop
        """)
        a.nops(12)
        for l in epi_lines(V_ACC + 16, isv): a(l)
        a("s_waitcnt vmcnt(0) lgkmcnt(0)\ns_barrier")
        for l in flag: a(l)

    a(f"s_cmp_eq_u32 s{S_MAT}, 2\ns_cbranch_scc1 {name}_v")
    body(False, "qk")
    a(f"s_branch {name}_done")
    a.label(f"{name}_v")
    body(True, "v")
    a.label(f"{name}_done")


def standalone(name, opt):
    from gen_hop import ticket
    a = Asm(); a.kernel_begin(name)
    ticket(a, name, 2)
    a(f"""
    s_cmp_lt_u32 s90, 2
    s_cbranch_scc1 {name}_exit
    s_sub_u32 s91, s90, 2
    s_lshl_b32 s91, s91, 5
    s_add_u32 s91, s91, s96
    s_add_u32 s72, s4, {210*MB}
    s_addc_u32 s73, s5, 0
    s_memrealtime s[60:61]
    """)
    qkv_role(a, name + "_q", 91, 4, 72, stamp=lambda: a("s_memrealtime s[62:63]\ns_memtime s[66:67]"), opt=opt)
    a(f"""
    s_memrealtime s[64:65]
    s_memtime s[68:69]
    s_waitcnt lgkmcnt(0)
    s_sub_u32 s62, s62, s60
    s_sub_u32 s64, s64, s60
    s_sub_u32 s68, s68, s66
    v_mov_b32 v2, s62
    v_mov_b32 v3, s64
    v_mov_b32 v4, s68
    v_mov_b32 v1, 0
    s_lshl_b32 s20, s91, 4
    s_add_u32 s20, s20, {200*MB}
    s_mov_b64 exec, 1
    buffer_store_dwordx4 v[2:5], v1, s[4:7], s20 offen
    {name}_exit:
    s_endpgm
    """)
    return (name, a.text(), kd(name, 512, sgpr=100, accum=256), 256, 256, 131072 + 8192)

if __name__ == "__main__":
    import sys, json
    V = eval(open(sys.argv[1]).read())
    write_file("qkv.s", [standalone(f"q{i}_kernel", v) for i, v in enumerate(V)])
    json.dump(V, open("qkv.json", "w"))
```

```python
import sys, json
from common import *
from gen_rec import DBG_VOTE, global_init, rec_body, S_J, S_H, LDS_REC, WS_FL, WS_XB, WS_PROF
from gen_qkv import qkv_role
from gen_xo import xo_role, WoLoader
from gen_fft import gen_f0, gen_f1, gen_f2, gen_f3

DBG_F1, DBG_F2, DBG_F0 = WS_FL + 448 * 128, WS_FL + 450 * 128, WS_FL + 452 * 128
RECOPT = dict(preC="ack", preA="ack", nl=16, yp=15, xp=(16, 18), vs=17, vbar=1, fsp=4, are=1, f1e=1, f1s=2)


def xlut(order):
    lut = 0
    for logical, c in enumerate(order):
        lut |= logical << (4 * int(c))
    return hex(lut)


def gen_mega(name, force_slow=False, wd=False, bprof=False, ropt={}, rprof=False, opt={}):
    a = Asm(); a.kernel_begin(name)
    S_W, S_D = 84, 88
    S_B, S_X, S_TK, S_GT, S_VOTE, S_TS, S_WDC = 92, 93, 94, 95, 100, 101, 83
    S_FAST, S_VER, S_WV = 96, 97, 98
    ro = dict(RECOPT); ro.update(ropt)

    def ts(srd=S_W):
        if not bprof: return
        l = a.newlabel(name + "_ts")
        a(f"""
        {'s_memtime' if opt.get('cyc') else 's_memrealtime'} vcc
        s_waitcnt lgkmcnt(0)
        s_mov_b64 exec, 1
        v_accvgpr_read_b32 v255, a255
        v_mov_b32 v135, vcc_lo
        s_nop 0
        buffer_store_dword v135, off, s[{srd}:{srd+3}], s{S_TS}
        s_mov_b64 exec, -1
        s_add_u32 s{S_TS}, s{S_TS}, 4
        """.replace("v_accvgpr_read_b32 v255, a255\n", ""))

    def dmax(idx, srd=S_D, v=135):
        if not opt.get("dbgt"): return
        a(f"""
        s_memrealtime vcc
        s_waitcnt lgkmcnt(0)
        s_mov_b64 exec, 1
        v_mov_b32 v{v}, vcc_lo
        s_nop 0
        buffer_atomic_umax v{v}, off, s[{srd}:{srd+3}], 0 offset:{4*idx} sc1
        s_mov_b64 exec, -1
        """)

    def wdog(code):
        if not wd: return
        a(f"""
        s_add_u32 s{S_WDC}, s{S_WDC}, 1
        s_cmp_gt_u32 s{S_WDC}, 300000
        s_movk_i32 s82, {code}
        s_cbranch_scc1 {name}_wdx
        """)

    a(f"""
    s_cmp_ge_u32 s2, 256
    s_cbranch_scc1 {name}_exit
    s_load_dwordx2 s[{S_W}:{S_W+1}], s[0:1], {KA_WS}
    s_load_dwordx2 s[{S_D}:{S_D+1}], s[0:1], {KA_DBG}
    s_getreg_b32 s{S_X}, hwreg(HW_REG_XCC_ID)
    s_and_b32 s{S_X}, s{S_X}, 7
    s_lshl_b32 s{S_X}, s{S_X}, 2
    s_lshr_b32 s{S_X}, {xlut(opt.get('xmap', '23014567'))}, s{S_X}
    s_and_b32 s{S_X}, s{S_X}, 7
    v_lshrrev_b32 v1, 6, v0
    v_mov_b32 v4, 0
    v_readfirstlane_b32 s80, v1
    v_mov_b32 v5, 0
    v_mov_b32 v6, 0
    v_mov_b32 v7, 0
    s_mov_b32 s{S_WDC}, 0
    s_lshl_b32 s{S_TS}, s2, 2
    s_add_u32 s{S_TS}, s{S_TS}, s80
    s_lshl_b32 s{S_TS}, s{S_TS}, 8
    s_add_u32 s{S_TS}, s{S_TS}, {220*MB}
    s_waitcnt lgkmcnt(0)
    s_mov_b32 s{S_W+2}, {WS_BYTES}
    s_mov_b32 s{S_W+3}, 0x00020000
    s_mov_b32 s{S_D+2}, 256
    s_mov_b32 s{S_D+3}, 0x00020000
    """)
    ts()
    if opt.get("cpf"):
        a(f"""
        s_getpc_b64 s[78:79]
        v_lshlrev_b32 v9, 7, v0
        """)
        for i in range(opt["cpf"]):
            a(f"global_load_dword v{10+i}, v9, s[78:79]")
            a("v_add_u32 v9, 0x8000, v9")
    PX = opt.get("px", 2)
    a(f"""
    s_mov_b32 s{S_WV}, s80
    s_cmp_lg_u32 s80, 0
    s_cbranch_scc1 {name}_st0
    v_mov_b32 v10, 1
    s_lshl_b32 s81, s{S_X}, 5
    s_mov_b64 exec, 1
    buffer_atomic_add v10, off, s[{S_D}:{S_D+3}], s81 offset:4 sc0
    s_lshl_b32 s81, s2, 7
    s_add_u32 s81, s81, {WS_FL}
    s_mov_b64 exec, 3
    v_lshlrev_b32 v1, 15, v0
    buffer_store_dword v4, v1, s[{S_W}:{S_W+3}], s81 offen sc1
    s_mov_b64 exec, -1
    {name}_st0:
    """)
    global_init(a, name, S_W)
    a(f"""
    s_cmp_lg_u32 s80, 0
    s_cbranch_scc1 {name}_st1
    s_mov_b64 exec, 1
    s_waitcnt vmcnt(4)
    ds_write_b32 v4, v10
    s_mov_b64 exec, -1
    s_waitcnt lgkmcnt(0)
    {name}_st1:
    s_barrier
    ds_read_b32 v2, v4
    s_waitcnt lgkmcnt(0)
    v_readfirstlane_b32 s{S_TK}, v2
    s_barrier
    s_sub_u32 s81, s{S_X}, {PX}
    s_cmp_ge_u32 s81, 2
    s_cbranch_scc1 {name}_nopr
    s_cmp_lg_u32 s80, 0
    s_cbranch_scc1 {name}_prd
    v_lshlrev_b32 v1, 4, v0
    s_and_b32 s81, s2, 127
    s_lshl_b32 s81, s81, 14
    s_add_u32 s81, s81, {WS_XB}
    s_add_u32 s77, s81, 8192
    buffer_store_dwordx4 v[4:7], v1, s[{S_W}:{S_W+3}], s81 offen sc1
    buffer_store_dwordx4 v[4:7], v1, s[{S_W}:{S_W+3}], s77 offen sc1
    s_waitcnt vmcnt(0)
    s_memtime s[70:71]
    buffer_store_dwordx4 v[4:7], v1, s[{S_W}:{S_W+3}], s81 offen sc1
    s_waitcnt vmcnt(0)
    s_memtime s[72:73]
    buffer_store_dwordx4 v[4:7], v1, s[{S_W}:{S_W+3}], s77 offen sc1
    s_waitcnt vmcnt(0)
    buffer_store_dwordx4 v[4:7], v1, s[{S_W}:{S_W+3}], s77 offen sc1
    s_waitcnt vmcnt(0)
    s_memtime s[74:75]
    buffer_store_dwordx4 v[4:7], v1, s[{S_W}:{S_W+3}], s81 offen sc1
    s_waitcnt vmcnt(0)
    s_memtime s[76:77]
    s_waitcnt lgkmcnt(0)
    s_sub_u32 s76, s76, s74
    s_sub_u32 s74, s74, s72
    s_sub_u32 s72, s72, s70
    s_add_u32 s72, s72, s76
    s_cmp_lt_u32 s74, s72
    s_cselect_b32 s81, 0x10001, 1
    v_mov_b32 v8, s81
    s_mov_b64 exec, 1
    buffer_atomic_add v8, off, s[{S_D}:{S_D+3}], 0 offset:{DBG_VOTE} sc1
    s_mov_b64 exec, -1
    {name}_prd:
    s_barrier
    """)
    for _ in range(opt.get("qdelay", 0)): a("s_sleep 127")
    a(f"""
    {name}_nopr:
    s_mov_b32 s{S_VER}, 0
    s_mov_b32 s{S_VOTE}, 64
    {name}_fast:
    s_mov_b32 s{S_FAST}, 1
    s_mov_b32 s{S_J}, s{S_X}
    s_and_b32 s{S_H}, s{S_TK}, 31
    s_cmp_lt_u32 s{S_X}, 2
    s_cbranch_scc1 {name}_recf
    s_sub_u32 s{S_B}, s{S_X}, 2
    s_lshl_b32 s{S_B}, s{S_B}, 5
    s_add_u32 s{S_B}, s{S_B}, s{S_H}
    s_branch {name}_bulk
    {name}_redo:
    s_waitcnt vmcnt(0) lgkmcnt(0)
    s_barrier
    v_readlane_b32 s{S_VOTE}, v36, {PX}
    v_readlane_b32 s81, v36, {PX + 1}
    s_mov_b32 s{S_VER}, 1
    s_nop 2
    s_add_u32 s{S_VOTE}, s{S_VOTE}, s81
    """)
    a(f"s_mov_b32 s{S_GT}, s{S_TK}")
    for i in range(7):
        a(f"""
        v_readlane_b32 s81, v36, {i}
        s_cmp_gt_u32 s{S_X}, {i}
        s_nop 2
        s_cselect_b32 s81, s81, 0
        s_add_u32 s{S_GT}, s{S_GT}, s81
        """)
    a(f"""
    {name}_slow:
    s_mov_b32 s{S_FAST}, 0
    s_lshr_b32 s{S_J}, s{S_GT}, 5
    s_and_b32 s{S_H}, s{S_GT}, 31
    s_cmp_lt_u32 s{S_GT}, 64
    s_cbranch_scc1 {name}_recs
    s_sub_u32 s{S_B}, s{S_GT}, 64
    s_branch {name}_bulk
    {name}_exit:
    s_endpgm
    """)

    def hook0(n):
        l = a.newlabel(name + "_h0")
        a(f"""
        s_waitcnt vmcnt({n})
        s_barrier
        s_or_b32 s81, s{S_VER}, s{S_WV}
        s_cmp_lg_u32 s81, 0
        s_cbranch_scc1 {l}
        s_lshl_b32 s81, s{S_X}, 5
        v_mov_b32 v38, 1
        s_mov_b64 exec, 1
        buffer_atomic_add v38, off, s[{S_D}:{S_D+3}], s81 sc1
        s_mov_b64 exec, -1
        {l}:
        """)
    def hook1():
        a(f"""
        v_and_b32 v37, 7, v0
        v_lshlrev_b32 v37, 5, v37
        buffer_load_dword v36, v37, s[{S_D}:{S_D+3}], 0 offen sc1
        """)
    def hook2():
        l = a.newlabel(name + "_h2")
        a(f"""
        s_cmp_lg_u32 s{S_VER}, 0
        s_cbranch_scc1 {l}_ok
        {l}_ev:
        v_cmp_ne_u32 vcc, 32, v36
        """)
        if not force_slow: a(f"s_cbranch_vccz {l}_ok")
        a("s_mov_b32 s78, 0")
        for i in range(8):
            a(f"v_readlane_b32 s81, v36, {i}\ns_nop 3\ns_add_u32 s78, s78, s81")
        a(f"""
        s_cmp_eq_u32 s78, 256
        s_cbranch_scc1 {name}_redo
        """)
        wdog(2)
        a(f"""
        buffer_load_dword v36, v37, s[{S_D}:{S_D+3}], 0 offen sc1
        s_waitcnt vmcnt(0)
        s_branch {l}_ev
        {l}_ok:
        """)
    hooks = (hook0, hook1, hook2)
    if wd:
        a(f"""
        {name}_wdx:
        s_mov_b64 exec, 1
        v_mov_b32 v1, s82
        s_lshl_b32 s81, s2, 2
        s_add_u32 s81, s81, {WS_PROF + MB + 1024}
        buffer_store_dword v1, off, s[{S_W}:{S_W+3}], s81
        s_endpgm
        """)
    a.label(f"{name}_recf")
    rn = [0]
    def rts():
        if opt.get("dbgt"):
            l = a.newlabel(name + "_rt")
            a(f"s_cmp_lg_u32 s20, 0\ns_cbranch_scc1 {l}")
            dmax(4 + rn[0], 12, 3); rn[0] += 1
            a.label(l)
        if not bprof: return
        a(f"""
        s_memrealtime vcc
        s_waitcnt lgkmcnt(0)
        s_mov_b64 exec, 1
        v_mov_b32 v3, vcc_lo
        s_nop 0
        buffer_store_dword v3, off, s[4:7], s{S_TS}
        s_mov_b64 exec, -1
        s_add_u32 s{S_TS}, s{S_TS}, 4
        """)
    ts()
    rec_body(a, name + "_rf", "", wd=wd, full=True, S_VOTE=S_VOTE, opt=ro, prof=rprof, tstamp=rts, hooks=hooks)
    a.label(f"{name}_recs")
    if opt.get("noslow"): a("s_endpgm")
    else: rec_body(a, name + "_rs", "sc1", wd=wd, full=True, S_VOTE=S_VOTE, opt=RECOPT)

    def signal(off):
        l = a.newlabel(name + "_sg")
        a(f"""
        s_waitcnt vmcnt(0)
        s_barrier
        s_cmp_lg_u32 s{S_WV}, 0
        s_cbranch_scc1 {l}
        v_mov_b32 v2, 1
        s_mov_b32 s81, {off}
        s_mov_b64 exec, 1
        buffer_atomic_add v2, off, s[{S_W}:{S_W+3}], s81 sc1
        s_mov_b64 exec, -1
        {l}:
        """)

    def wait(off, n, tag, allw=False):
        if not allw: a(f"s_cmp_lg_u32 s{S_WV}, 0\ns_cbranch_scc1 {name}_w{tag}d")
        a(f"s_mov_b32 s81, {off}")
        a.label(f"{name}_w{tag}")
        wdog(50)
        a(f"""
        buffer_load_dword v120, off, s[{S_W}:{S_W+3}], s81 sc1
        s_waitcnt vmcnt(0)
        v_cmp_ne_u32 vcc, {n}, v120
        s_cbranch_vccz {name}_w{tag}d
        s_sleep 6
        s_branch {name}_w{tag}
        {name}_w{tag}d:
        """)
    a.label(f"{name}_bulk")
    ts()
    qkv_role(a, name + "_q", S_B, S_W, S_D, stamp=ts, opt=opt, hooks=hooks)
    ts()
    for _ in range(opt.get("bdelay", 0)): a("s_sleep 127")
    WL = WoLoader(a, name, S_B, S_WV, opt)
    WL.setup()
    a(f"""
    s_cmp_lt_u32 s{S_B}, 128
    s_cbranch_scc1 {name}_f1
    """)
    WL.step(0)
    a(f"""
    s_sub_u32 s99, s{S_B}, 128
    {name}_f0l:
    s_barrier
    """)
    gen_f0(a, name + "_f0", role=99, noend=True)
    a(f"""
    s_add_u32 s99, s99, 64
    s_cmp_lt_u32 s99, 288
    s_cbranch_scc1 {name}_f0l
    """)
    signal(DBG_F0)
    ts()
    a(f"""
    s_cmp_lg_u32 s{S_B}, 191
    s_cbranch_scc1 {name}_xo2
    s_cmp_lg_u32 s{S_WV}, 0
    s_cbranch_scc1 {name}_xo2
    """)
    if not opt.get("wl2", 0): WL.step(1)
    wait(DBG_F1, 128, "f1b")
    a(f"""
    s_mov_b32 s99, 128
    s_branch {name}_f2_in
    {name}_f2ret:
    s_waitcnt vmcnt(0)
    v_mov_b32 v2, 1
    s_mov_b64 exec, 1
    s_mov_b32 s81, {DBG_F2}
    buffer_atomic_add v2, off, s[{S_W}:{S_W+3}], s81 sc1
    s_mov_b64 exec, -1
    s_branch {name}_xo3
    {name}_xo2:
    """)
    WL.step(1)
    if opt.get("wl2", 0): a.label(f"{name}_xo3")
    WL.step(2)
    if not opt.get("wl2", 0): a.label(f"{name}_xo3")
    WL.step(3)
    a(f"s_branch {name}_xo4")
    a.label(f"{name}_f1")
    W2 = opt.get("wl2", 0)
    gen_f1(a, name + "_f1r", role=S_B, pre_store=(lambda: WL.step(0)) if not W2 else None, loaded=(lambda: WL.step(0)) if W2 else None)
    signal(DBG_F1)
    ts()
    if not W2: WL.step(1)
    wait(DBG_F1, 128, "f1")
    if opt.get("fstag"):
        a(f"s_lshr_b32 s81, s{S_B}, 5")
        a.label(f"{name}_fs")
        a(f"""
        s_cmp_eq_u32 s81, 0
        s_cbranch_scc1 {name}_fsd
        s_sleep {opt["fstag"]}
        s_sub_u32 s81, s81, 1
        s_branch {name}_fs
        {name}_fsd:
        """)
    a(f"s_mov_b32 s99, s{S_B}")
    gen_f2(a, name + "_f2", role=99, wready=lambda: wait(DBG_F0, 64, "f0", True), mid=lambda: WL.step(1 if W2 else 2), st=ts if opt.get("fst") else None)
    a(f"s_cmp_eq_u32 s99, 128\ns_cbranch_scc1 {name}_f2ret")
    signal(DBG_F2)
    WL.step(2 if W2 else 3)
    ts()
    wait(DBG_F2, 129, "f2")
    gen_f3(a, name + "_f3", role=S_B, ost=opt.get("ost", ""), loaded=(lambda: WL.step(3)) if W2 else None)
    a.label(f"{name}_xo4")
    ts()
    WL.step(4)
    xo_role(a, name + "_x", S_B, S_W, S_FAST, S_D, S_VOTE, wd=wdog if wd else None, opt=opt, stamp=ts)
    if opt.get("dbgt"):
        a(f"s_cmp_lg_u32 s{S_WV}, 0\ns_cbranch_scc1 {name}_fin")
        dmax(6)
        a.label(f"{name}_fin")
    a.label(f"{name}_cE")
    a("s_endpgm")
    return (name, a.text(), kd(name, 512, sgpr=102, accum=256), 256, 256, LDS_REC)


if __name__ == "__main__":
    out = sys.argv[1]
    kw = eval(sys.argv[2]) if len(sys.argv) > 2 else {}
    write_file(out, [gen_mega("mega_kernel", **kw)])
```

```python
import math, struct
from gen_common import *

WS_WT = 116 * MB
SCALE = 0.5 / (2048.0 * 1024.0)


def flit(x):
    return "0x%08x" % struct.unpack("<I", struct.pack("<f", x))[0]


class RegFFT:
    def __init__(self, a, re, im, temps):
        self.a, self.re, self.im, self.t = a, list(re), list(im), list(temps)

    def fft(self, sign):
        a = self.a
        n = len(self.re)
        re, im = self.re, self.im
        span = n // 2
        while span >= 1:
            for start in range(0, n, 2 * span):
                for j in range(span):
                    p, q = start + j, start + j + span
                    num, den = j, 2 * span
                    tr, ti = self.t[0], self.t[1]
                    if num == 0:
                        a(f"v_sub_f32 v{tr}, v{re[p]}, v{re[q]}")
                        a(f"v_sub_f32 v{ti}, v{im[p]}, v{im[q]}")
                        a(f"v_add_f32 v{re[p]}, v{re[p]}, v{re[q]}")
                        a(f"v_add_f32 v{im[p]}, v{im[p]}, v{im[q]}")
                        self.t[0], re[q] = re[q], tr
                        self.t[1], im[q] = im[q], ti
                    elif 4 * num == den:
                        if sign > 0:
                            a(f"v_sub_f32 v{tr}, v{im[q]}, v{im[p]}")
                            a(f"v_sub_f32 v{ti}, v{re[p]}, v{re[q]}")
                        else:
                            a(f"v_sub_f32 v{tr}, v{im[p]}, v{im[q]}")
                            a(f"v_sub_f32 v{ti}, v{re[q]}, v{re[p]}")
                        a(f"v_add_f32 v{re[p]}, v{re[p]}, v{re[q]}")
                        a(f"v_add_f32 v{im[p]}, v{im[p]}, v{im[q]}")
                        self.t[0], re[q] = re[q], tr
                        self.t[1], im[q] = im[q], ti
                    else:
                        c = math.cos(2 * math.pi * num / den)
                        s = sign * math.sin(2 * math.pi * num / den)
                        a(f"v_sub_f32 v{tr}, v{re[p]}, v{re[q]}")
                        a(f"v_sub_f32 v{ti}, v{im[p]}, v{im[q]}")
                        a(f"v_add_f32 v{re[p]}, v{re[p]}, v{re[q]}")
                        a(f"v_add_f32 v{im[p]}, v{im[p]}, v{im[q]}")
                        a(f"v_mul_f32 v{re[q]}, {flit(c)}, v{tr}")
                        a(f"v_mul_f32 v{im[q]}, {flit(s)}, v{tr}")
                        a(f"v_fmac_f32 v{re[q]}, {flit(-s)}, v{ti}")
                        a(f"v_fmac_f32 v{im[q]}, {flit(c)}, v{ti}")
            span //= 2
        bits = n.bit_length() - 1
        rev = [int(format(i, f"0{bits}b")[::-1], 2) for i in range(n)]
        self.re = [re[rev[i]] for i in range(n)]
        self.im = [im[rev[i]] for i in range(n)]

    def twiddle(self, vx, den, sign, scale_idx=1):
        a = self.a
        re, im = self.re, self.im
        tA, tC, tS, tR = self.t[0], self.t[1], self.t[2], self.t[3]
        for k in range(1, len(re)):
            a(f"v_mul_f32 v{tA}, {flit(sign * k / den)}, v{vx}")
            a(f"v_cos_f32 v{tC}, v{tA}")
            a(f"v_sin_f32 v{tS}, v{tA}")
            a("s_nop 0")
            a(f"v_mul_f32 v{tR}, v{re[k]}, v{tC}")
            a(f"v_fma_f32 v{tR}, -v{im[k]}, v{tS}, v{tR}")
            a(f"v_mul_f32 v{im[k]}, v{im[k]}, v{tC}")
            a(f"v_fmac_f32 v{im[k]}, v{re[k]}, v{tS}")
            self.t[3], re[k] = re[k], tR
            tR = self.t[3]


def srd(a, s, ptr_lo, nbytes):
    a(f"s_mov_b32 s{s+2}, {nbytes}")
    a(f"s_mov_b32 s{s+3}, 0x00020000")


def fft1024(a, F, v_tau_f, v_lw, v_lr, sign):
    F.fft(sign)
    F.twiddle(v_tau_f, 1024.0, sign)
    for k in range(32):
        a(f"ds_write_b32 v{v_lw}, v{F.re[k]} offset:{k*264}")
        a(f"ds_write_b32 v{v_lw}, v{F.im[k]} offset:{k*264+4}")
    a("s_waitcnt lgkmcnt(0)")
    for n in range(32):
        a(f"ds_read_b32 v{F.re[n]}, v{v_lr} offset:{n*8}")
        a(f"ds_read_b32 v{F.im[n]}, v{v_lr} offset:{n*8+4}")
        if n % 7 == 6:
            a("s_waitcnt lgkmcnt(0)")
    a("s_waitcnt lgkmcnt(0)")
    F.fft(sign)


def gen_f0(a: Asm, name, role=None, noend=False):
    SI = "s2" if role is None else f"s{role}"
    if role is None:
        a.kernel_begin(name)
        a(f"s_cmp_ge_u32 s2, 288\ns_cbranch_scc1 {name}_end")
    a(f"""
    s_load_dwordx2 s[4:5], s[0:1], {KA_WR}
    s_load_dwordx2 s[8:9], s[0:1], {KA_WI}
    s_load_dwordx2 s[12:13], s[0:1], {KA_WS}
    s_and_b32 s16, {SI}, 31       ; k0 tile
    s_lshr_b32 s17, {SI}, 5
    v_and_b32 v1, 63, v0
    v_lshrrev_b32 v2, 6, v0
    s_waitcnt lgkmcnt(0)
    s_mov_b32 s6, {2048*513*2}
    s_mov_b32 s7, 0x00020000
    s_mov_b32 s10, {2048*513*2}
    s_mov_b32 s11, 0x00020000
    s_add_u32 s12, s12, {WS_WT}
    s_addc_u32 s13, s13, 0
    s_mov_b32 s14, {513*8192}
    s_mov_b32 s15, 0x00020000
    s_lshl_b32 s18, s16, 6
    v_add_u32 v3, s18, v2
    s_movk_i32 s19, 1026
    v_mul_lo_u32 v3, v3, s19
    s_lshl_b32 s18, s17, 7
    v_add_u32 v3, s18, v3
    v_lshl_add_u32 v3, v1, 1, v3
    """)
    for i in range(16):
        a(f"s_mov_b32 s18, {4*1026*i}")
        a(f"buffer_load_ushort v{16+i}, v3, s[4:7], s18 offen")
        a(f"buffer_load_ushort v{32+i}, v3, s[8:11], s18 offen")
    a(f"""
    v_mul_u32_u24 v4, 65, v1
    v_add_u32 v4, v4, v2
    v_lshlrev_b32 v4, 2, v4
    s_waitcnt vmcnt(0)
    """)
    for i in range(16):
        a(f"v_lshl_or_b32 v{16+i}, v{32+i}, 16, v{16+i}")
        a(f"ds_write_b32 v4, v{16+i} offset:{16*i}")
    a(f"""
    v_lshrrev_b32 v7, 4, v0
    v_and_b32 v8, 15, v0
    v_mul_u32_u24 v5, 65, v7
    v_lshl_add_u32 v5, v8, 2, v5
    v_lshlrev_b32 v5, 2, v5
    s_waitcnt lgkmcnt(0)
    s_barrier
    """)
    for i in range(4):
        for r in range(4):
            a(f"ds_read_b32 v{16+4*i+r}, v5 offset:{16*65*4*i + 4*r}")
    a(f"""
    s_lshl_b32 s18, s17, 6
    v_add_u32 v6, s18, v7
    v_lshlrev_b32 v6, 13, v6
    s_lshl_b32 s18, s16, 8
    v_add_u32 v6, s18, v6
    v_lshl_add_u32 v6, v8, 4, v6
    s_waitcnt lgkmcnt(0)
    """)
    for i in range(4):
        a(f"s_mov_b32 s18, {16*8192*i}")
        a(f"buffer_store_dwordx4 v[{16+4*i}:{19+4*i}], v6, s[12:15], s18 offen{' sc1' if noend else ''}")
    if noend:
        return
    if role is not None:
        a("s_endpgm")
        return 288
    a.label(f"{name}_end")
    a("s_endpgm")
    return kd(name, 48, sgpr=24), 288, 64 * 65 * 4


def gen_f1(a: Asm, name, role=None):
    ST = "s2" if role is None else f"s{role}"
    SCX = "" if role is None else " sc1"
    if role is None:
        a.kernel_begin(name)
        a(f"s_cmp_ge_u32 s2, 128\ns_cbranch_scc1 {name}_end")
    else:
        a("s_barrier")
    V_TAU, V_F, V_TAUF, V_LW, V_LR, V_T0, V_T1, V_T2 = 1, 2, 3, 4, 5, 6, 7, 8
    RE = list(range(16, 48)); IM = list(range(48, 80)); TMP = list(range(80, 84))
    FB = 8448
    a(f"""
    s_load_dwordx2 s[4:5], s[0:1], {KA_BX}
    s_load_dwordx2 s[8:9], s[0:1], {KA_WS}
    v_and_b32 v{V_TAU}, 31, v0
    v_lshrrev_b32 v{V_F}, 5, v0
    v_cvt_f32_u32 v{V_TAUF}, v{V_TAU}
    s_waitcnt lgkmcnt(0)
    s_mov_b32 s6, {4*MB}
    s_mov_b32 s7, 0x00020000
    s_mov_b32 s10, {WS_BYTES}
    s_mov_b32 s11, 0x00020000
    s_lshl_b32 s12, {ST}, 15
    v_lshlrev_b32 v{V_T0}, 12, v{V_F}
    v_lshl_add_u32 v{V_T0}, v{V_TAU}, 1, v{V_T0}
    """)
    for i in range(32):
        a(f"buffer_load_ushort v{RE[i]}, v{V_T0}, s[4:7], s12 offen offset:{64*i}")
        a(f"buffer_load_ushort v{IM[i]}, v{V_T0}, s[4:7], s12 offen offset:{2048+64*i}")
    a(f"""
    s_movk_i32 s13, {FB}
    v_mul_lo_u32 v{V_T1}, v{V_F}, s13
    v_lshl_add_u32 v{V_LW}, v{V_TAU}, 3, v{V_T1}
    s_movk_i32 s13, 264
    v_mul_lo_u32 v{V_LR}, v{V_TAU}, s13
    v_add_u32 v{V_LR}, v{V_LR}, v{V_T1}
    s_waitcnt vmcnt(0)
    """)
    for i in range(32):
        a(f"v_lshlrev_b32 v{RE[i]}, 16, v{RE[i]}")
        a(f"v_lshlrev_b32 v{IM[i]}, 16, v{IM[i]}")
    F = RegFFT(a, RE, IM, TMP)
    fft1024(a, F, V_TAUF, V_LW, V_LR, -1)
    for i in range(32):
        a(f"ds_write_b32 v{V_LW}, v{F.re[i]} offset:{256*i}")
        a(f"ds_write_b32 v{V_LW}, v{F.im[i]} offset:{256*i+4}")
    a("s_waitcnt lgkmcnt(0)\ns_barrier")
    a(f"""
    v_and_b32 v{V_T0}, 7, v0
    v_lshrrev_b32 v{V_T1}, 3, v0
    s_movk_i32 s13, {FB}
    v_mul_lo_u32 v{V_T2}, v{V_T0}, s13          ; f*FB
    v_lshl_add_u32 v{V_LW}, v{V_T1}, 3, v{V_T2}
    ; global: T1 + k*16384 + (16b + 2f)*8
    v_lshlrev_b32 v{V_LR}, 14, v{V_T1}
    v_lshl_add_u32 v{V_LR}, v{V_T0}, 4, v{V_LR}
    s_lshl_b32 s12, {ST}, 7
    s_add_u32 s12, s12, {WS_T1}
    """)
    for it in range(17):
        a(f"""
        v_sub_u32 v{V_T0}, {1024 - 32*it}, v{V_T1}
        v_and_b32 v{V_T0}, 1023, v{V_T0}
        v_lshl_add_u32 v{V_T0}, v{V_T0}, 3, v{V_T2}
        ds_read_b64 v[16:17], v{V_LW} offset:{256*it}
        ds_read_b64 v[18:19], v{V_T0}
        s_waitcnt lgkmcnt(0)
        v_add_f32 v20, v16, v18      ; ar+br
        v_sub_f32 v21, v17, v19      ; ai-bi
        v_add_f32 v22, v17, v19      ; ai+bi
        v_sub_f32 v23, v18, v16      ; br-ar
        s_mov_b32 s13, s12
        """)
        if it == 16:
            a(f"v_cmp_eq_u32 vcc, 0, v{V_T1}")
            a("s_and_saveexec_b64 s[14:15], vcc")
        a(f"s_add_u32 s13, s12, {it * 32 * 16384}")
        a(f"buffer_store_dwordx4 v[20:23], v{V_LR}, s[8:11], s13 offen{SCX}")
        a.nops(2)
    if role is not None:
        a("s_mov_b64 exec, -1")
        return
    a.label(f"{name}_end")
    a("s_endpgm")
    return kd(name, 96, sgpr=24), 128, 8 * FB


def gen_f3(a: Asm, name, role=None):
    ST = "s2" if role is None else f"s{role}"
    if role is None:
        a.kernel_begin(name)
        a(f"s_cmp_ge_u32 s2, 128\ns_cbranch_scc1 {name}_end")
    else:
        a("s_barrier")
    V_TAU, V_F, V_TAUF, V_LW, V_LR, V_T0, V_T1, V_T2 = 1, 2, 3, 4, 5, 6, 7, 8
    RE = list(range(16, 48)); IM = list(range(48, 80)); TMP = list(range(80, 84))
    FB = 8448
    a(f"""
    s_load_dwordx2 s[4:5], s[0:1], {KA_OUT}
    s_load_dwordx2 s[8:9], s[0:1], {KA_WS}
    v_and_b32 v{V_T0}, 7, v0
    v_lshrrev_b32 v{V_T1}, 3, v0
    s_movk_i32 s13, {FB}
    v_mul_lo_u32 v{V_T2}, v{V_T0}, s13          ; f*FB
    v_lshl_add_u32 v{V_LW}, v{V_T1}, 3, v{V_T2}
    v_lshlrev_b32 v{V_LR}, 14, v{V_T1}
    v_lshl_add_u32 v{V_LR}, v{V_T0}, 4, v{V_LR}
    s_lshl_b32 s12, {ST}, 7
    s_add_u32 s12, s12, {WS_T2}
    s_waitcnt lgkmcnt(0)
    s_mov_b32 s6, {8*MB}
    s_mov_b32 s7, 0x00020000
    s_mov_b32 s10, {WS_BYTES}
    s_mov_b32 s11, 0x00020000
    """)
    for it in range(17):
        a(f"s_add_u32 s13, s12, {it * 32 * 16384}")
        a(f"buffer_load_dwordx4 v[{16+4*it}:{19+4*it}], v{V_LR}, s[8:11], s13 offen")
    a("s_waitcnt vmcnt(0)")
    a(f"v_cmp_eq_u32 vcc, 0, v{V_T1}")
    a.nops(2)
    a("v_mov_b32 v9, 0")
    for it in (0, 16):
        b = 16 + 4 * it
        a(f"v_cndmask_b32 v{b+1}, v{b+1}, v9, vcc")
        a(f"v_cndmask_b32 v{b+3}, v{b+3}, v9, vcc")
    for it in range(17):
        b = 16 + 4 * it
        if it == 16:
            a("s_and_saveexec_b64 s[14:15], vcc")
        a(f"""
        v_sub_u32 v{V_T0}, {1024 - 32*it}, v{V_T1}
        v_and_b32 v{V_T0}, 1023, v{V_T0}
        v_lshl_add_u32 v{V_T0}, v{V_T0}, 3, v{V_T2}
        v_sub_f32 v10, v{b}, v{b+3}
        v_add_f32 v11, v{b+1}, v{b+2}
        v_add_f32 v12, v{b}, v{b+3}
        v_sub_f32 v13, v{b+2}, v{b+1}
        ds_write_b64 v{V_LW}, v[10:11] offset:{256*it}
        ds_write_b64 v{V_T0}, v[12:13]
        """)
        if it == 16:
            a("s_mov_b64 exec, s[14:15]")
    a(f"""
    s_waitcnt lgkmcnt(0)
    s_barrier
    v_and_b32 v{V_TAU}, 31, v0
    v_lshrrev_b32 v{V_F}, 5, v0
    v_cvt_f32_u32 v{V_TAUF}, v{V_TAU}
    s_movk_i32 s13, {FB}
    v_mul_lo_u32 v{V_T1}, v{V_F}, s13
    v_lshl_add_u32 v{V_LW}, v{V_TAU}, 3, v{V_T1}
    s_movk_i32 s13, 264
    v_mul_lo_u32 v{V_LR}, v{V_TAU}, s13
    v_add_u32 v{V_LR}, v{V_LR}, v{V_T1}
    """)
    for i in range(32):
        a(f"ds_read_b32 v{RE[i]}, v{V_LW} offset:{256*i}")
        a(f"ds_read_b32 v{IM[i]}, v{V_LW} offset:{256*i+4}")
        if i % 7 == 6:
            a("s_waitcnt lgkmcnt(0)")
    a("s_waitcnt lgkmcnt(0)")
    F = RegFFT(a, RE, IM, TMP)
    fft1024(a, F, V_TAUF, V_LW, V_LR, +1)
    a(f"v_lshl_add_u32 v{V_T0}, v{V_TAU}, 2, v{V_T1}")
    for i in range(32):
        a(f"ds_write_b32 v{V_T0}, v{F.re[i]} offset:{128*i}")
        a(f"ds_write_b32 v{V_T0}, v{F.im[i]} offset:{4096+128*i}")
    a("s_waitcnt lgkmcnt(0)\ns_barrier")
    a(f"""
    v_and_b32 v{V_T0}, 127, v0
    v_lshrrev_b32 v{V_T1}, 7, v0
    v_lshlrev_b32 v{V_T2}, 5, v{V_T0}            ; c*32 B (lds)
    v_lshl_add_u32 v{V_T2}, v{V_T1}, 12, v{V_T2}  ; + ab*4096
    v_lshlrev_b32 v{V_LR}, 4, v{V_T0}
    v_lshl_add_u32 v{V_LR}, v{V_T1}, 12, v{V_LR}
    v_add_u32 v{V_LR}, 2048, v{V_LR}
    s_lshl_b32 s12, {ST}, 16
    """)
    for j in range(8):
        a(f"""
        ds_read_b128 v[16:19], v{V_T2} offset:{FB*j}
        ds_read_b128 v[20:23], v{V_T2} offset:{FB*j+16}
        s_waitcnt lgkmcnt(0)
        v_cvt_pk_bf16_f32 v24, v16, v17
        v_cvt_pk_bf16_f32 v25, v18, v19
        v_cvt_pk_bf16_f32 v26, v20, v21
        v_cvt_pk_bf16_f32 v27, v22, v23
        s_add_u32 s13, s12, {8192*j}
        buffer_store_dwordx4 v[24:27], v{V_LR}, s[4:7], s13 offen
        s_nop 1
        """)
    if role is not None:
        return
    a.label(f"{name}_end")
    a("s_endpgm")
    return kd(name, 96, sgpr=24), 128, 8 * FB


def gen_f2(a: Asm, name, role=None):
    ST = "s2" if role is None else f"s{role}"
    SCX = "" if role is None else " sc1"
    if role is None:
        a.kernel_begin(name)
    else:
        a("s_barrier")
    V_L, V_LF, V_LW, V_LR, V_T0, V_T1, V_B, V_K1F, V_SG, V_BF = 1, 2, 3, 4, 5, 6, 7, 8, 9, 10
    RE = [16 + 2 * i for i in range(32)]; IM = [17 + 2 * i for i in range(32)]; TMP = list(range(80, 88))
    WB = 32 * 66 * 8
    a(f"""
    s_load_dwordx2 s[8:9], s[0:1], {KA_WS}
    v_lshrrev_b32 v{V_T0}, 6, v0
    v_and_b32 v{V_L}, 63, v0
    v_readfirstlane_b32 s12, v{V_T0}
    s_lshl_b32 s13, {ST}, 2
    s_add_u32 s13, s13, s12          ; column
    s_cmp_ge_u32 s13, 513
    s_cbranch_scc1 {name}_end
    v_cvt_f32_u32 v{V_LF}, v{V_L}
    s_waitcnt lgkmcnt(0)
    s_mov_b32 s10, {WS_BYTES}
    s_mov_b32 s11, 0x00020000
    s_lshl_b32 s14, s13, 14          ; col*16384
    s_add_u32 s15, s14, {WS_T1}
    v_lshlrev_b32 v{V_T0}, 3, v{V_L}
    """)
    for i in range(32):
        a(f"s_add_u32 s16, s15, {512*i}")
        a(f"buffer_load_dwordx2 v[{RE[i]}:{IM[i]}], v{V_T0}, s[8:11], s16 offen")
    a(f"""
    s_mul_i32 s17, s12, {WB}
    v_lshlrev_b32 v{V_LW}, 3, v{V_L}
    v_add_u32 v{V_LW}, s17, v{V_LW}
    v_and_b32 v{V_B}, 1, v{V_L}
    v_lshrrev_b32 v{V_T1}, 1, v{V_L}          ; k1
    v_cvt_f32_u32 v{V_K1F}, v{V_T1}
    v_cvt_f32_u32 v{V_BF}, v{V_B}
    s_movk_i32 s18, 528
    v_mul_lo_u32 v{V_LR}, v{V_T1}, s18
    v_lshl_add_u32 v{V_LR}, v{V_B}, 3, v{V_LR}
    v_add_u32 v{V_LR}, s17, v{V_LR}
    ; sign = 1 - 2b
    v_mov_b32 v{V_SG}, 1.0
    v_fma_f32 v{V_SG}, v{V_BF}, -2.0, v{V_SG}
    ; W offset: b*4096 + k1*4 (+128 k2')
    v_lshlrev_b32 v{V_T0}, 12, v{V_B}
    v_lshl_add_u32 v11, v{V_T1}, 2, v{V_T0}
    s_lshl_b32 s19, s13, 13
    s_add_u32 s19, s19, {WS_WT}
    s_waitcnt vmcnt(0)
    """)
    F = RegFFT(a, RE, IM, TMP)
    F.fft(-1)
    F.twiddle(V_LF, 2048.0, -1)
    for k in range(32):
        a(f"ds_write_b32 v{V_LW}, v{F.re[k]} offset:{k*528}")
        a(f"ds_write_b32 v{V_LW}, v{F.im[k]} offset:{k*528+4}")
    a("s_waitcnt lgkmcnt(0)")
    for m in range(32):
        a(f"ds_read_b32 v{F.re[m]}, v{V_LR} offset:{m*16}")
        a(f"ds_read_b32 v{F.im[m]}, v{V_LR} offset:{m*16+4}")
        if m % 7 == 6:
            a("s_waitcnt lgkmcnt(0)")
    a("s_waitcnt lgkmcnt(0)")
    WR = 88
    for k in range(32):
        a(f"buffer_load_dword v{WR+k}, v11, s[8:11], s19 offen offset:{128*k}")
    F.fft(-1)
    F.twiddle(V_BF, 64.0, -1)
    tA = F.t[0]

    def cross():
        for k in range(32):
            for arr in (F.re, F.im):
                a(f"v_mov_b32_dpp v{F.t[0]}, v{arr[k]} quad_perm:[1,0,3,2] row_mask:0xf bank_mask:0xf")
                a(f"v_fma_f32 v{arr[k]}, v{arr[k]}, v{V_SG}, v{F.t[0]}")
    a.nops(2)
    cross()
    a("s_waitcnt vmcnt(0)")
    a(f"s_mov_b32 s20, {flit(SCALE)}")
    for k in range(32):
        t0, t1, t2 = F.t[0], F.t[1], F.t[2]
        a(f"v_lshlrev_b32 v{t0}, 16, v{WR+k}")
        a(f"v_and_b32 v{t1}, 0xffff0000, v{WR+k}")
        a(f"v_mul_f32 v{t0}, s20, v{t0}")
        a(f"v_mul_f32 v{t1}, s20, v{t1}")
        a(f"v_mul_f32 v{t2}, v{F.re[k]}, v{t0}")
        a(f"v_fma_f32 v{t2}, -v{F.im[k]}, v{t1}, v{t2}")
        a(f"v_mul_f32 v{F.im[k]}, v{F.im[k]}, v{t0}")
        a(f"v_fmac_f32 v{F.im[k]}, v{F.re[k]}, v{t1}")
        F.t[2], F.re[k] = F.re[k], t2
    a.nops(2)
    cross()
    F.twiddle(V_BF, 64.0, +1)
    F.fft(+1)
    F.twiddle_n2 = None
    a(f"v_mul_f32 v12, v{V_BF}, v{V_K1F}")
    a(f"v_mul_f32 v12, {flit(1.0/2048.0)}, v12")
    tA, tC, tS, tR = F.t[0], F.t[1], F.t[2], F.t[3]
    for m in range(32):
        a(f"v_mov_b32 v{tA}, v12")
        a(f"v_fmac_f32 v{tA}, {flit(2.0*m/2048.0)}, v{V_K1F}")
        a(f"v_cos_f32 v{tC}, v{tA}")
        a(f"v_sin_f32 v{tS}, v{tA}")
        a("s_nop 0")
        a(f"v_mul_f32 v{tR}, v{F.re[m]}, v{tC}")
        a(f"v_fma_f32 v{tR}, -v{F.im[m]}, v{tS}, v{tR}")
        a(f"v_mul_f32 v{F.im[m]}, v{F.im[m]}, v{tC}")
        a(f"v_fmac_f32 v{F.im[m]}, v{F.re[m]}, v{tS}")
        F.t[3], F.re[m] = F.re[m], tR
        tR = F.t[3]
    for m in range(32):
        a(f"ds_write_b32 v{V_LR}, v{F.re[m]} offset:{m*16}")
        a(f"ds_write_b32 v{V_LR}, v{F.im[m]} offset:{m*16+4}")
    a("s_waitcnt lgkmcnt(0)")
    for k in range(32):
        a(f"ds_read_b32 v{F.re[k]}, v{V_LW} offset:{k*528}")
        a(f"ds_read_b32 v{F.im[k]}, v{V_LW} offset:{k*528+4}")
        if k % 7 == 6:
            a("s_waitcnt lgkmcnt(0)")
    a("s_waitcnt lgkmcnt(0)")
    F.fft(+1)
    a(f"s_add_u32 s15, s14, {WS_T2}")
    a(f"v_lshlrev_b32 v{V_T0}, 3, v{V_L}")
    for i in range(32):
        a(f"s_add_u32 s16, s15, {512*i}")
        pr = 88 + 2 * (i % 8)
        a(f"v_mov_b32 v{pr}, v{F.re[i]}")
        a(f"v_mov_b32 v{pr+1}, v{F.im[i]}")
        a(f"buffer_store_dwordx2 v[{pr}:{pr+1}], v{V_T0}, s[8:11], s16 offen{SCX}")
    a.label(f"{name}_end")
    if role is not None:
        return
    a("s_endpgm")
    return kd(name, 120, sgpr=24), 129, 4 * WB
```

```python
import math, struct
from common import *
from gen_fft import WS_WT, flit

WS_T = 92 * MB
SCALE = 0.5 / (2048.0 * 1024.0)
SC = 30
FB = 32 * 528


def consts(a):
    for j in range(1, 8):
        a(f"s_mov_b32 s{SC + j - 1}, {flit(math.cos(j * math.pi / 16))}")


def P(r): return f"v[{r}:{r+1}]"


class PkFFT:
    def __init__(self, a, re, im, temps):
        self.a, self.re, self.im, self.t = a, list(re), list(im), list(temps)

    def add(self, d, x, y): self.a(f"v_pk_add_f32 {P(d)}, {P(x)}, {P(y)}")
    def sub(self, d, x, y): self.a(f"v_pk_add_f32 {P(d)}, {P(x)}, {P(y)} neg_lo:[0,1] neg_hi:[0,1]")

    def kc(self, j, neg):
        i = SC + j - 1
        return f"s[{i & ~1}:{(i & ~1) + 1}]", i & 1, int(neg)

    def mulk(self, d, x, k):
        s, sel, n = k
        self.a(f"v_pk_mul_f32 {P(d)}, {P(x)}, {s} op_sel:[0,{sel}] op_sel_hi:[1,{sel}] neg_lo:[0,{n}] neg_hi:[0,{n}]")

    def fmak(self, d, x, k):
        s, sel, n = k
        self.a(f"v_pk_fma_f32 {P(d)}, {P(x)}, {s}, {P(d)} op_sel:[0,{sel},0] op_sel_hi:[1,{sel},1] neg_lo:[0,{n},0] neg_hi:[0,{n},0]")

    def fft(self, sign):
        n = len(self.re)
        re, im = self.re, self.im
        span = n // 2
        while span >= 1:
            for start in range(0, n, 2 * span):
                for jj in range(span):
                    p, q = start + jj, start + jj + span
                    j = 16 * jj // span
                    tr, ti = self.t[0], self.t[1]
                    if j == 0 or j == 8:
                        if j == 0:
                            self.sub(tr, re[p], re[q]); self.sub(ti, im[p], im[q])
                        elif sign > 0:
                            self.sub(tr, im[q], im[p]); self.sub(ti, re[p], re[q])
                        else:
                            self.sub(tr, im[p], im[q]); self.sub(ti, re[q], re[p])
                        self.add(re[p], re[p], re[q]); self.add(im[p], im[p], im[q])
                        self.t[0], re[q] = re[q], tr
                        self.t[1], im[q] = im[q], ti
                    else:
                        c = self.kc(j if j < 8 else 16 - j, j > 8)
                        s = self.kc(abs(8 - j), sign < 0)
                        ns = self.kc(abs(8 - j), sign > 0)
                        self.sub(tr, re[p], re[q]); self.sub(ti, im[p], im[q])
                        self.add(re[p], re[p], re[q]); self.add(im[p], im[p], im[q])
                        self.mulk(re[q], tr, c); self.mulk(im[q], tr, s)
                        self.fmak(re[q], ti, ns); self.fmak(im[q], ti, c)
            span //= 2
        bits = n.bit_length() - 1
        rev = [int(format(i, f"0{bits}b")[::-1], 2) for i in range(n)]
        self.re = [re[rev[i]] for i in range(n)]
        self.im = [im[rev[i]] for i in range(n)]

    def rot(self, k, cs):
        a, re, im, tR = self.a, self.re, self.im, self.t[0]
        a(f"v_pk_mul_f32 {P(tR)}, {P(re[k])}, {P(cs)} op_sel:[0,0] op_sel_hi:[1,0]")
        a(f"v_pk_fma_f32 {P(tR)}, {P(im[k])}, {P(cs)}, {P(tR)} op_sel:[0,1,0] op_sel_hi:[1,1,1] neg_lo:[1,0,0] neg_hi:[1,0,0]")
        a(f"v_pk_mul_f32 {P(im[k])}, {P(im[k])}, {P(cs)} op_sel:[0,0] op_sel_hi:[1,0]")
        a(f"v_pk_fma_f32 {P(im[k])}, {P(re[k])}, {P(cs)}, {P(im[k])} op_sel:[0,1,0] op_sel_hi:[1,1,1]")
        self.t[0], re[k] = re[k], tR

    def twiddle(self, angle, k0=1):
        a = self.a
        cs = [self.t[2], self.t[3]]
        def trig(k):
            r = cs[k & 1]
            angle(k, r + 1)
            a(f"v_cos_f32 v{r}, v{r+1}")
            a(f"v_sin_f32 v{r+1}, v{r+1}")
        trig(k0)
        for k in range(k0, len(self.re)):
            if k + 1 < len(self.re): trig(k + 1)
            else: a("s_nop 0")
            self.rot(k, cs[k & 1])

    def lin(self, vx, den, sign):
        self.twiddle(lambda k, d: self.a(f"v_mul_f32 v{d}, {flit(sign * k / den)}, v{vx}"))

    def lds_write(self, v, stride):
        for k in range(len(self.re)):
            self.a(f"ds_write_b64 v{v}, {P(self.re[k])} offset:{k*stride}")
            self.a(f"ds_write_b64 v{v}, {P(self.im[k])} offset:{k*stride+8}")

    def lds_read(self, v, stride, base):
        allr = sorted(self.re + self.im + self.t)
        n = len(self.re)
        assert allr == list(range(base, base + 4 * n + 2 * len(self.t), 2))
        self.re = [base + 4 * k for k in range(n)]
        self.im = [base + 4 * k + 2 for k in range(n)]
        self.t = [base + 4 * n + 2 * i for i in range(len(self.t))]
        for k in range(n):
            self.a(f"ds_read_b128 v[{base+4*k}:{base+4*k+3}], v{v} offset:{k*stride}")
            if k % 12 == 11: self.a("s_waitcnt lgkmcnt(4)")
        self.a("s_waitcnt lgkmcnt(0)")


B0 = 16
def newF(a):
    return PkFFT(a, [B0 + 4 * i for i in range(32)], [B0 + 4 * i + 2 for i in range(32)], [B0 + 128 + 2 * i for i in range(4)])


def fft1024(a, F, v_tau_f, v_lw, v_lr, sign):
    F.fft(sign)
    F.lin(v_tau_f, 1024.0, sign)
    F.lds_write(v_lw, 528)
    a("s_waitcnt lgkmcnt(0)")
    F.lds_read(v_lr, 16, B0)
    F.fft(sign)


def row_addr(a, V_TAU, V_F, V_TAUF, V_LW, V_LR, V_FB):
    a(f"""
    v_and_b32 v{V_TAU}, 31, v0
    v_lshrrev_b32 v{V_F}, 5, v0
    v_cvt_f32_u32 v{V_TAUF}, v{V_TAU}
    v_mul_u32_u24 v{V_FB}, {FB}, v{V_F}
    v_lshl_add_u32 v{V_LW}, v{V_TAU}, 4, v{V_FB}
    v_mul_u32_u24 v{V_LR}, 528, v{V_TAU}
    v_add_u32 v{V_LR}, v{V_LR}, v{V_FB}
    """)


def spec_addr(a, ST, V_KK, V_FB, V_Z, V_G):
    a(f"""
    v_and_b32 v{V_G}, 7, v0
    v_lshrrev_b32 v{V_KK}, 3, v0
    v_mul_u32_u24 v{V_FB}, {FB}, v{V_G}
    v_lshl_add_u32 v{V_Z}, v{V_KK}, 5, v{V_FB}
    v_lshlrev_b32 v{V_G}, 4, v{V_G}
    v_lshl_add_u32 v{V_G}, v{V_KK}, 15, v{V_G}
    v_lshlrev_b32 v{V_KK}, 1, v{V_KK}
    s_lshl_b32 s12, {ST}, 9
    s_add_u32 s12, s12, {WS_T}
    """)


def mirror(a, V_KK, V_FB, it, d0, d1):
    a(f"""
    v_sub_u32 v{d0}, {1024 - 64*it}, v{V_KK}
    v_add_u32 v{d1}, -1, v{d0}
    v_and_b32 v{d0}, 1023, v{d0}
    v_lshl_add_u32 v{d0}, v{d0}, 4, v{V_FB}
    v_lshl_add_u32 v{d1}, v{d1}, 4, v{V_FB}
    """)


def gen_f1(a: Asm, name, role, S_WS):
    ST = f"s{role}"
    V_TAU, V_F, V_TAUF, V_LW, V_LR, V_FB, V_T0, V_T1 = 1, 2, 3, 4, 5, 6, 7, 8
    a("s_barrier")
    a(f"s_load_dwordx2 s[4:5], s[0:1], {KA_BX}")
    consts(a)
    row_addr(a, V_TAU, V_F, V_TAUF, V_LW, V_LR, V_FB)
    for i in range(0, 128, 2):
        a(f"v_mov_b64 v[{B0+i}:{B0+i+1}], 0")
    a(f"""
    v_lshlrev_b32 v{V_T0}, 11, v{V_F}
    v_lshl_add_u32 v{V_T0}, v{V_TAU}, 1, v{V_T0}
    s_lshl_b32 s12, {ST}, 16
    s_add_u32 s13, s12, {8*2048}
    s_add_u32 s14, s12, {16*2048}
    s_add_u32 s15, s12, {24*2048}
    s_waitcnt lgkmcnt(0)
    s_mov_b32 s6, {4*MB}
    s_mov_b32 s7, 0x00020000
    """)
    for slot, so in ((0, 12), (2, 13), (1, 14), (3, 15)):
        for i in range(32):
            a(f"buffer_load_short_d16_hi v{B0+4*i+slot}, v{V_T0}, s[4:7], s{so} offen offset:{64*i}")
    a("s_waitcnt vmcnt(0)")
    F = newF(a)
    fft1024(a, F, V_TAUF, V_LW, V_LR, -1)
    F.lds_write(V_LW, 512)
    a("s_waitcnt lgkmcnt(0)\ns_barrier")
    V_KK, V_Z, V_G = 1, 4, 5
    spec_addr(a, ST, V_KK, V_FB, V_Z, V_G)
    def rd(it):
        b = 16 + 16 * (it & 1)
        mirror(a, V_KK, V_FB, it, V_T0, V_T1)
        a(f"""
        ds_read_b128 v[{b}:{b+3}], v{V_Z} offset:{1024*it}
        ds_read_b128 v[{b+4}:{b+7}], v{V_Z} offset:{1024*it+16}
        ds_read_b128 v[{b+8}:{b+11}], v{V_T0}
        ds_read_b128 v[{b+12}:{b+15}], v{V_T1}
        """)
    rd(0)
    for it in range(9):
        b, o = 16 + 16 * (it & 1), 48 + 16 * (it & 1)
        if it < 8: rd(it + 1)
        a(f"s_waitcnt lgkmcnt({4 if it < 8 else 0})")
        for h in range(2):
            for c in range(2):
                ar, ai, br, bi = b + 4 * c + h, b + 4 * c + 2 + h, b + 8 + 4 * c + h, b + 8 + 4 * c + 2 + h
                a(f"v_add_f32 v{o+8*h+c}, v{ar}, v{br}")
                a(f"v_sub_f32 v{o+8*h+2+c}, v{ai}, v{bi}")
                a(f"v_add_f32 v{o+8*h+4+c}, v{ai}, v{bi}")
                a(f"v_sub_f32 v{o+8*h+6+c}, v{br}, v{ar}")
        a(f"s_add_u32 s13, s12, {it * 32 * 32768}")
        if it == 8:
            a(f"v_cmp_eq_u32 vcc, 0, v{V_KK}\ns_and_saveexec_b64 s[14:15], vcc\ns_cbranch_execz {name}_e")
        for r in range(4):
            a(f"buffer_store_dwordx4 v[{o+4*r}:{o+4*r+3}], v{V_G}, s[{S_WS}:{S_WS+3}], s13 offen offset:{128*r} sc1")
    a.label(f"{name}_e")
    a("s_mov_b64 exec, -1")


def gen_f3(a: Asm, name, role, S_WS):
    ST = f"s{role}"
    V_KK, V_Z, V_G, V_FB, V_T0, V_T1 = 1, 4, 5, 6, 7, 8
    a("s_barrier")
    a(f"s_load_dwordx2 s[4:5], s[0:1], {KA_OUT}")
    consts(a)
    spec_addr(a, ST, V_KK, V_FB, V_Z, V_G)
    L0 = 48
    for it in range(9):
        a(f"s_add_u32 s13, s12, {it * 32 * 32768}")
        for r in range(4):
            d = L0 + 16 * it + 4 * r
            a(f"buffer_load_dwordx4 v[{d}:{d+3}], v{V_G}, s[{S_WS}:{S_WS+3}], s13 offen offset:{128*r}")
    a(f"""
    v_cmp_eq_u32 vcc, 0, v{V_KK}
    s_waitcnt lgkmcnt(0)
    s_mov_b32 s6, {8*MB}
    s_mov_b32 s7, 0x00020000
    """)
    for it in range(9):
        d, o = L0 + 16 * it, 16 + 16 * (it & 1)
        mirror(a, V_KK, V_FB, it, V_T0, V_T1)
        a(f"s_waitcnt vmcnt({4 * (8 - it)})")
        if it in (0, 8):
            for r in range(4):
                a(f"v_cndmask_b32 v{d+4*r+2}, v{d+4*r+2}, 0, vcc")
        if it >= 2: a("s_waitcnt lgkmcnt(4)")
        for c in range(2 if it < 8 else 1):
            for h in range(2):
                yar, yai, ybr, ybi = d + 8 * h + c, d + 8 * h + 2 + c, d + 8 * h + 4 + c, d + 8 * h + 6 + c
                a(f"v_sub_f32 v{o+4*c+h}, v{yar}, v{ybi}")
                a(f"v_add_f32 v{o+4*c+2+h}, v{yai}, v{ybr}")
                a(f"v_add_f32 v{o+8+4*c+h}, v{yar}, v{ybi}")
                a(f"v_sub_f32 v{o+8+4*c+2+h}, v{ybr}, v{yai}")
        if it == 8:
            a(f"s_and_saveexec_b64 s[14:15], vcc\nds_write_b128 v{V_Z}, v[{o}:{o+3}] offset:{1024*it}\ns_mov_b64 exec, s[14:15]")
        else:
            a(f"""
            ds_write_b128 v{V_Z}, v[{o}:{o+3}] offset:{1024*it}
            ds_write_b128 v{V_Z}, v[{o+4}:{o+7}] offset:{1024*it+16}
            ds_write_b128 v{V_T0}, v[{o+8}:{o+11}]
            ds_write_b128 v{V_T1}, v[{o+12}:{o+15}]
            """)
    a("s_waitcnt lgkmcnt(0)\ns_barrier")
    V_TAU, V_F, V_TAUF, V_LW, V_LR = 1, 2, 3, 4, 5
    row_addr(a, V_TAU, V_F, V_TAUF, V_LW, V_LR, V_FB)
    F = newF(a)
    F.lds_read(V_LW, 512, B0)
    fft1024(a, F, V_TAUF, V_LW, V_LR, +1)
    a(f"v_lshl_add_u32 v{V_T0}, v{V_TAU}, 3, v{V_FB}")
    for i in range(32):
        a(f"ds_write_b64 v{V_T0}, {P(F.re[i])} offset:{256*i}")
        a(f"ds_write_b64 v{V_T0}, {P(F.im[i])} offset:{8192+256*i}")
    a("s_waitcnt lgkmcnt(0)\ns_barrier")
    a(f"""
    v_and_b32 v1, 127, v0
    v_lshrrev_b32 v2, 7, v0
    v_lshlrev_b32 v3, 6, v1
    v_lshl_add_u32 v3, v2, 13, v3
    v_add_u32 v4, {4*FB}, v3
    v_lshlrev_b32 v5, 4, v1
    v_lshl_add_u32 v5, v2, 15, v5
    s_lshl_b32 s12, {ST}, 17
    """)
    def rd(j):
        b = 16 + 16 * (j & 1)
        for q in range(4):
            a(f"ds_read_b128 v[{b+4*q}:{b+4*q+3}], v{3 if j < 4 else 4} offset:{FB*(j & 3) + 16*q}")
    rd(0)
    for j in range(8):
        b, o = 16 + 16 * (j & 1), 48 + 8 * (j & 1)
        if j < 7: rd(j + 1)
        a(f"s_waitcnt lgkmcnt({4 if j < 7 else 0})")
        for h in range(2):
            for q in range(4):
                a(f"v_cvt_pk_bf16_f32 v{o+4*h+q}, v{b+4*q+h}, v{b+4*q+2+h}")
        for h in range(2):
            a(f"s_add_u32 s13, s12, {4096*j + 65536*h}")
            a(f"buffer_store_dwordx4 v[{o+4*h}:{o+4*h+3}], v5, s[4:7], s13 offen offset:2048")


WR = 160
def gen_w(a: Asm, name, role):
    ST = f"s{role}"
    a(f"""
    s_load_dwordx2 s[4:5], s[0:1], {KA_WR}
    s_load_dwordx2 s[8:9], s[0:1], {KA_WI}
    s_barrier
    v_mul_u32_u24 v1, 1026, v0
    v_and_b32 v2, 1, v0
    v_lshlrev_b32 v2, 4, v2
    v_and_b32 v1, -4, v1
    v_lshlrev_b32 v3, 4, v0
    s_lshl_b32 s12, {ST}, 4
    s_waitcnt lgkmcnt(0)
    s_mov_b32 s6, {2048*513*2}
    s_mov_b32 s7, 0x00020000
    s_mov_b32 s10, {2048*513*2}
    s_mov_b32 s11, 0x00020000
    """)
    for arr in range(2):
        for i in range(8):
            d = 16 + 6 * (8 * arr + i)
            a(f"s_add_u32 s13, s12, {256 * 1026 * i}")
            a(f"buffer_load_dwordx4 v[{d}:{d+3}], v1, s[{4+4*arr}:{7+4*arr}], s13 offen")
            a(f"buffer_load_dword v{d+4}, v1, s[{4+4*arr}:{7+4*arr}], s13 offen offset:16")
    for n in range(16):
        d = 16 + 6 * n
        a(f"s_waitcnt vmcnt({2 * (15 - n)})")
        for j in range(4):
            a(f"v_alignbit_b32 v{d+j}, v{d+j+1}, v{d+j}, v2")
        a(f"ds_write_b128 v3, v[{d}:{d+3}] offset:{4096 * n}")
    a(f"""
    v_and_b32 v1, 1, v0
    v_bfe_u32 v2, v0, 1, 5
    v_lshlrev_b32 v1, 14, v1
    v_lshl_add_u32 v1, v2, 4, v1
    v_lshrrev_b32 v2, 6, v0
    v_lshl_add_u32 v1, v2, 2, v1
    s_waitcnt lgkmcnt(0)
    s_barrier
    """)
    for arr in range(2):
        for k in range(32):
            a(f"ds_read_b32 v{WR+32*arr+k}, v1 offset:{32768*arr + 512*k}")
            if k % 8 == 7: a("s_waitcnt lgkmcnt(6)")
    a("s_waitcnt lgkmcnt(0)")


def gen_f2(a: Asm, name, role, S_WS):
    ST = f"s{role}"
    SRD = f"s[{S_WS}:{S_WS+3}]"
    V_L, V_LF, V_LW, V_LR, V_T0, V_T1, V_B, V_K1F, V_BF, V_W, V_A0, V_SG = 1, 2, 3, 4, 5, 6, 7, 8, 9, 11, 12, 14
    WB = 32 * 66 * 16
    a("s_barrier")
    consts(a)
    a(f"""
    v_lshrrev_b32 v{V_T0}, 6, v0
    v_and_b32 v{V_L}, 63, v0
    v_readfirstlane_b32 s12, v{V_T0}
    s_lshl_b32 s13, {ST}, 2
    s_add_u32 s13, s13, s12
    s_cmp_ge_u32 s13, 257
    s_cbranch_scc1 {name}_end
    v_cvt_f32_u32 v{V_LF}, v{V_L}
    s_lshl_b32 s15, s13, 15
    s_add_u32 s15, s15, {WS_T}
    v_lshlrev_b32 v10, 4, v{V_L}
    """)
    for i in range(32):
        if i % 4 == 0: a(f"s_add_u32 s16, s15, {1024*i}")
        a(f"buffer_load_dwordx4 v[{B0+4*i}:{B0+4*i+3}], v10, {SRD}, s16 offen offset:{1024*(i & 3)}")
    a(f"""
    s_mul_i32 s17, s12, {WB}
    v_add_u32 v{V_LW}, s17, v10
    v_and_b32 v{V_B}, 1, v{V_L}
    v_lshrrev_b32 v{V_T1}, 1, v{V_L}          ; k1
    v_cvt_f32_u32 v{V_K1F}, v{V_T1}
    v_cvt_f32_u32 v{V_BF}, v{V_B}
    v_mul_u32_u24 v{V_LR}, 1056, v{V_T1}
    v_lshl_add_u32 v{V_LR}, v{V_B}, 4, v{V_LR}
    v_add_u32 v{V_LR}, s17, v{V_LR}
    v_mov_b32 v{V_SG}, 1.0
    v_fma_f32 v{V_SG}, v{V_BF}, -2.0, v{V_SG}
    s_waitcnt vmcnt(0)
    """)
    F = newF(a)
    F.fft(-1)
    F.lin(V_LF, 2048.0, -1)
    F.lds_write(V_LW, 1056)
    a("s_waitcnt lgkmcnt(0)")
    F.lds_read(V_LR, 32, B0)
    F.fft(-1)
    F.lin(V_BF, 64.0, -1)

    def cross():
        a.nops(2)
        n = 0
        for k in range(32):
            for arr in (F.re, F.im):
                t = F.t[n & 1]; n += 1
                a(f"v_mov_b32_dpp v{t}, v{arr[k]} quad_perm:[1,0,3,2] row_mask:0xf bank_mask:0xf")
                a(f"v_mov_b32_dpp v{t+1}, v{arr[k]+1} quad_perm:[1,0,3,2] row_mask:0xf bank_mask:0xf")
                a(f"v_pk_fma_f32 {P(arr[k])}, {P(arr[k])}, {P(V_SG)}, {P(t)} op_sel_hi:[1,0,1]")
    cross()
    for k in range(32):
        t0, tR, w = F.t[1], F.t[0], F.t[2]
        a(f"v_lshlrev_b32 v{t0}, 16, v{WR+k}")
        a(f"v_and_b32 v{t0+1}, 0xffff0000, v{WR+k}")
        a(f"v_lshlrev_b32 v{w}, 16, v{WR+32+k}")
        a(f"v_and_b32 v{w+1}, 0xffff0000, v{WR+32+k}")
        a(f"v_pk_mul_f32 {P(tR)}, {P(F.re[k])}, {P(t0)}")
        a(f"v_pk_fma_f32 {P(tR)}, {P(F.im[k])}, {P(w)}, {P(tR)} neg_lo:[1,0,0] neg_hi:[1,0,0]")
        a(f"v_pk_mul_f32 {P(F.im[k])}, {P(F.im[k])}, {P(t0)}")
        a(f"v_pk_fma_f32 {P(F.im[k])}, {P(F.re[k])}, {P(w)}, {P(F.im[k])}")
        F.t[0], F.re[k] = F.re[k], tR
    cross()
    F.lin(V_BF, 64.0, +1)
    F.fft(+1)
    a(f"v_mul_f32 v{V_A0}, v{V_BF}, v{V_K1F}")
    a(f"v_mul_f32 v{V_A0}, {flit(1.0/2048.0)}, v{V_A0}")
    F.twiddle(lambda m, d: a(f"v_fmamk_f32 v{d}, v{V_K1F}, {flit(2.0*m/2048.0)}, v{V_A0}"), 0)
    F.lds_write(V_LR, 32)
    a("s_waitcnt lgkmcnt(0)")
    F.lds_read(V_LW, 1056, B0)
    F.fft(+1)
    a(f"s_mov_b32 s20, {flit(SCALE)}")
    for i in range(32):
        pr = WR + 4 * (i % 8)
        a(f"v_pk_mul_f32 {P(pr)}, {P(F.re[i])}, s[20:21] op_sel_hi:[1,0]")
        a(f"v_pk_mul_f32 {P(pr+2)}, {P(F.im[i])}, s[20:21] op_sel_hi:[1,0]")
        if i % 4 == 0: a(f"s_add_u32 s16, s15, {1024*i}")
        a(f"buffer_store_dwordx4 v[{pr}:{pr+3}], v10, {SRD}, s16 offen offset:{1024*(i & 3)} sc1")
    a.label(f"{name}_end")
```

```python
from common import *
from gen_rec import WS_QX, WS_FL


def load_weights_tr(a, name, S_W, S_WAVE, S_T0, S_M0, so_base, row_bytes, krows_per_wave, permkind, S_BASE):
    pass


def qkv_role(a: Asm, name, S_B, S_WS, S_DBG, stamp=None, opt={}, hooks=None):
    S_A, S_W = 8, 12
    S_WAVE, S_MAT, S_H, S_P, S_T0, S_T1 = 16, 17, 18, 19, 20, 21
    S_M0, S_SA, S_SO, S_IT, S_FL, S_XW = 22, 23, 24, 25, 26, 27
    V_L, V_T0, V_T1, V_T2 = 1, 2, 3, 4
    V_DA = 6
    V_ST, V_FO, V_FV, V_DW, V_RW = 8, 9, 10, 11, 12
    V_RA = 16
    V_F = 32
    V_ACC = 64
    V_E = 96
    NF = 8
    R4 = opt.get("r4", 0)
    if R4:
        a(f"s_mov_b32 s29, 0")
        a.label(f"{name}_again")
    a(f"""
    s_load_dwordx2 s[{S_A}:{S_A+1}], s[0:1], {KA_AX}
    s_load_dwordx2 s[40:41], s[0:1], {KA_WQ}
    s_load_dwordx2 s[42:43], s[0:1], {KA_WK}
    s_load_dwordx2 s[44:45], s[0:1], {KA_WV}
    v_lshrrev_b32 v{V_T0}, 6, v0
    v_and_b32 v{V_L}, 63, v0
    v_readfirstlane_b32 s{S_WAVE}, v{V_T0}
    s_lshr_b32 s{S_MAT}, s{S_B}, 6
    {f"s_lshr_b32 s{S_T0}, s29, 5" if R4 else ""}
    {f"s_sub_u32 s{S_MAT}, s{S_MAT}, s{S_T0}" if R4 else ""}
    s_bfe_u32 s{S_H}, s{S_B}, 0x50001
    s_and_b32 s{S_P}, s{S_B}, 1
    s_waitcnt lgkmcnt(0)
    s_mov_b32 s{S_A+2}, {4*MB}
    s_mov_b32 s{S_A+3}, 0x00020000
    s_cmp_eq_u32 s{S_MAT}, 1
    s_cselect_b32 s{S_W}, s42, s40
    s_cselect_b32 s{S_W+1}, s43, s41
    s_cmp_eq_u32 s{S_MAT}, 2
    s_cselect_b32 s{S_W}, s44, s{S_W}
    s_cselect_b32 s{S_W+1}, s45, s{S_W+1}
    s_mov_b32 s{S_W+2}, {8*MB}
    s_mov_b32 s{S_W+3}, 0x00020000
    v_lshrrev_b32 v{V_T0}, 4, v{V_L}
    v_and_b32 v{V_T1}, 15, v{V_L}
    v_lshlrev_b32 v{V_T2}, 2, v{V_T0}
    v_xor_b32 v{V_T2}, v{V_T2}, v{V_T1}
    v_lshlrev_b32 v{V_T2}, 4, v{V_T2}
    s_lshl_b32 s{S_T0}, s{S_WAVE}, 5
    v_add_u32 v{V_DW}, s{S_T0}, v{V_T0}
    v_lshl_add_u32 v{V_DW}, v{V_DW}, 13, v{V_T2}
    s_lshl_b32 s{S_T0}, s{S_H}, 8
    v_add_u32 v{V_DW}, s{S_T0}, v{V_DW}
    s_lshl_b32 s{S_M0}, s{S_WAVE}, 13
    s_lshl_b32 s{S_XW}, s{S_P}, {22 if opt.get('krot', 0) else 23}
    s_and_b32 s{S_XW}, s{S_XW}, {4*MB}
    """)
    if opt.get("owarm", 0):
        a(f"""
        s_load_dwordx2 s[48:49], s[0:1], {KA_WO}
        v_lshlrev_b32 v13, 7, v0
        s_mul_i32 s{S_T0}, s{S_B}, {43 * 1024}
        s_mov_b32 s50, {8*MB}
        s_mov_b32 s51, 0x00020000
        s_waitcnt lgkmcnt(0)
        buffer_load_dword v240, v13, s[48:51], s{S_T0} offen
        s_add_u32 s{S_T0}, s{S_T0}, {11 * 1024}
        buffer_load_dword v241, v13, s[48:51], s{S_T0} offen
        """)

    def wdma(u):
        for i in range(8):
            a(f"s_add_u32 m0, s{S_M0}, {(u & 3) * 32768 + i * 1024}")
            a(f"s_xor_b32 s{S_T0}, s{S_XW}, {(128 * u + 4 * i) * 8192}")
            a(f"buffer_load_dwordx4 v{V_DW}, s[{S_W}:{S_W+3}], s{S_T0} offen lds")
    for u in range(4):
        wdma(u)
        if u == 0 and hooks: hooks[0](8)
        if u == 0 and opt.get("qd"):
            a(f"s_cmp_lg_u32 s{S_MAT}, 0\ns_cbranch_scc1 {name}_nq")
            for _ in range(opt["qd"]): a("s_sleep 127")
            a.label(f"{name}_nq")
    a(f"""
    v_and_b32 v{V_T1}, 3, v{V_L}              ; cc
    v_bfe_u32 v14, v{V_L}, 2, 2                ; r
    v_xor_b32 v15, s{S_WAVE}, v14
    v_lshlrev_b32 v15, 6, v15
    v_lshl_add_u32 v15, v{V_T1}, 4, v15
    v_lshl_add_u32 v13, v{V_T0}, 3, v14        ; row
    v_lshl_add_u32 v{V_RW}, v13, 8, v15
    v_and_b32 v{V_T1}, 15, v{V_L}
    s_lshl_b32 s{S_T0}, s{S_WAVE}, 3
    """)
    for b in range(2):
        a(f"""
        v_add_u32 v13, s{S_T0}, v{V_T0}
        v_add_u32 v13, {4*b}, v13
        v_and_b32 v14, 15, v13
        v_xor_b32 v14, v14, v{V_T1}
        v_lshlrev_b32 v14, 4, v14
        v_lshl_add_u32 v{V_DA+b}, v13, 11, v14
        """)
    a(f"""
    v_xor_b32 v14, v{V_T0}, v{V_T1}
    v_lshlrev_b32 v14, 4, v14
    v_lshl_add_u32 v13, v{V_T1}, 8, v14
    """)
    for kk in range(4):
        a(f"v_xor_b32 v{V_RA+kk}, {64*kk}, v13")
        a(f"v_add_u32 v{V_RA+4+kk}, 0x10000, v{V_RA+kk}")
    a(f"""
    v_lshlrev_b32 v{V_ST}, 4, v{V_L}
    v_bfrev_b32 v13, 1
    s_lshl_b32 s{S_T0}, s{S_B}, 7
    s_add_u32 s{S_T0}, s{S_T0}, {WS_FL}
    v_mov_b32 v14, s{S_T0}
    v_cmp_eq_u32 vcc, 0, v0
    s_lshl_b32 s{S_SO}, s{S_MAT}, 24
    s_lshl_b32 s{S_T0}, s{S_P}, 18
    v_cndmask_b32 v{V_FO}, v13, v14, vcc
    s_add_u32 s{S_SO}, s{S_SO}, s{S_T0}
    s_lshl_b32 s{S_T0}, s{S_H}, 13
    s_add_u32 s{S_SO}, s{S_SO}, s{S_T0}
    s_lshl_b32 s{S_T0}, s{S_WAVE}, 11
    s_add_u32 s{S_SO}, s{S_SO}, s{S_T0}
    s_add_u32 s{S_SO}, s{S_SO}, {WS_QX}
    s_lshl_b32 s{S_SA}, s{S_P}, 16
    s_lshr_b32 s{S_T0}, s{S_XW}, 12
    s_add_u32 s{S_SA}, s{S_SA}, s{S_T0}
    v_mov_b32 v{V_FV}, {'s29' if R4 else 0}
    """)

    PFI = opt.get("pfi", 0)
    if PFI:
        a(f"""
        s_load_dwordx2 s[40:41], s[0:1], {KA_BX}
        s_load_dwordx2 s[42:43], s[0:1], {KA_WR}
        s_load_dwordx2 s[44:45], s[0:1], {KA_WI}
        v_lshlrev_b32 v242, 7, v0
        s_waitcnt lgkmcnt(0)
        s_cmp_ge_u32 s{S_B}, 96
        s_cselect_b32 s48, s42, s40
        s_cselect_b32 s49, s43, s41
        s_cselect_b32 s46, 96, 0
        s_mov_b32 s50, {4*MB}
        s_cselect_b32 s50, {2048*513*2}, s50
        s_cmp_ge_u32 s{S_B}, 144
        s_cselect_b32 s48, s44, s48
        s_cselect_b32 s49, s45, s49
        s_cselect_b32 s46, 144, s46
        s_mov_b32 s51, 0x00020000
        s_sub_u32 s46, s{S_B}, s46
        s_mul_i32 s46, s46, 45056
        s_mul_i32 s47, s{S_B}, 11
        s_lshr_b32 s47, s47, 1
        s_and_b32 s47, s47, 7
        s_add_u32 s47, s47, 4
        s_mov_b32 s47, {PFI}
        v_lshlrev_b32 v243, 7, v0
        s_mov_b32 s28, s46
        """)

    def xdma(slot, uu, i):
        return [f"s_add_u32 m0, s{S_T1}, {slot * 32768 + (i >> 1) * 8192 + (i & 1) * 1024}",
                f"s_xor_b32 s{S_T0}, s{S_SA}, {(4 * uu + (i >> 1)) * 256}",
                f"buffer_load_dwordx4 v{V_DA + (i & 1)}, s[{S_A}:{S_A+3}], s{S_T0} offen lds"]
    a(f"s_lshl_b32 s{S_T1}, s{S_WAVE}, 11")
    for u in range(8):
        a(f"s_waitcnt vmcnt(24)" if u < 7 else "s_waitcnt vmcnt(24)")
        a("s_barrier")
        if hooks and u == 3: hooks[1]()
        if hooks and u == 7: hooks[2]()
        a(f"v_add_u32 v13, {(u & 3) * 32768}, v{V_RW}")
        for ks in range(4):
            for tau in range(2):
                for j in range(2):
                    d = ((4 * u + ks) * 2 + tau) * 4 + 2 * j
                    a(f"ds_read_b64_tr_b16 a[{d}:{d+1}], v13 offset:{(32 * ks + 4 * j) * 256 + 8 * tau}")
            if ks == 1: a("s_waitcnt lgkmcnt(0)")
        a("s_waitcnt lgkmcnt(0)")
        a("s_barrier")
        if u < 4:
            wdma(u + 4)
        elif u < 7:
            g = u - 4
            if g == 2: a(f"s_add_u32 s{S_SA}, s{S_SA}, {2*65536}")
            for i in range(8):
                for l in xdma(g, g & 1, i): a(l)
    if stamp: stamp()
    def xtouch():
        a(f"""
        v_lshlrev_b32 v242, 7, v0
        {"" if R4 else f"v_min_u32 v242, {171 * 128}, v242"}
        s_mul_i32 s46, s{S_B}, {32768 if R4 else 171 * 128}
        s_sub_u32 s46, s46, {64 * 32768 if R4 else 0}
        buffer_load_dword v240, v242, s[{S_A}:{S_A+3}], s46 offen
        """)
    if opt.get("xt", 2) == 1: xtouch()
    a(f"s_waitcnt vmcnt({17 if opt.get('xt', 2) == 1 else 16})\ns_barrier")

    def fread(gk):
        gk %= 128
        half, ks = gk >> 6, gk & 63
        d = V_F + 4 * (gk % NF)
        k32, tt = ks >> 1, ks & 1
        return f"ds_read_b128 v[{d}:{d+3}], v{V_RA + 4 * half + (k32 & 3)} offset:{(k32 >> 4) * 32768 + ((k32 >> 2) & 3) * 8192 + tt * 4096}"

    PF = 6
    def epi_lines(accb, isv):
        L = []
        for st in range(2):
            e = V_E + 4 * st
            src = [4 * st, 4 * st + 2, 4 * st + 8, 4 * st + 10] if isv else [8 * st, 8 * st + 2, 8 * st + 4, 8 * st + 6]
            for i, sr in enumerate(src):
                L.append(f"v_cvt_pk_bf16_f32 v{e+i}, v{accb+sr}, v{accb+sr+1}")
            L.append(f"buffer_store_dwordx4 v[{e}:{e+3}], v{V_ST}, s[{S_WS}:{S_WS+3}], s{S_SO} offen offset:{1024*st} {opt.get('st', 'sc1')}" if not opt.get("nost") else "s_nop 0")
        L.append(f"s_add_u32 s{S_SO}, s{S_SO}, {2 * 32 * 8192}")
        return L
    flag = [f"v_add_u32 v{V_FV}, 1, v{V_FV}", f"buffer_store_dword v{V_FV}, v{V_FO}, s[{S_WS}:{S_WS+3}], 0 offen sc1"]

    def body(isv, tag):
        for gk in range(PF): a(fread(gk))
        a(f"s_mov_b32 s{S_IT}, 0")
        a.label(f"{name}_{tag}_loop")
        for gk in range(128):
            half, ks = gk >> 6, gk & 63
            u4 = gk >> 5
            k32 = gk & 31
            acc = V_ACC + 16 * half
            f = V_F + 4 * (gk % NF)
            if k32 == 24:
                a("s_waitcnt vmcnt(8)")
                a("s_barrier")
            a(f"s_waitcnt lgkmcnt({PF - 1})")
            def mm(tau):
                d = acc + 8 * (ks & 1) + 4 * tau
                c = "0" if ks < 2 else f"v[{d}:{d+3}]"
                wr = (ks >> 1) * 8 + 4 * tau
                wreg = f"a[{wr}:{wr+3}]"
                if isv: a(f"v_mfma_f32_16x16x32_bf16 v[{d}:{d+3}], v[{f}:{f+3}], {wreg}, {c}")
                else: a(f"v_mfma_f32_16x16x32_bf16 v[{d}:{d+3}], {wreg}, v[{f}:{f+3}], {c}")
            mm(0)
            if not opt.get("nord"): a(fread(gk + PF))
            mm(1)
            sched = {25: 0, 28: 1, 31: 2, 2: 3, 5: 4, 8: 5, 11: 6, 14: 7}
            if k32 in sched:
                i = sched[k32]
                tgt = (u4 + 3) & 3 if k32 >= 24 else (u4 + 2) & 3
                if gk < 24:
                    a(f"s_cmp_eq_u32 s{S_IT}, 0\ns_cbranch_scc1 {name}_{tag}_sk{gk}")
                if i == 0 and (tgt & 1) == 0:
                    a(f"s_add_u32 s{S_SA}, s{S_SA}, {2*65536}")
                for l in xdma(tgt, tgt & 1, i):
                    if not (opt.get("nodma") and "buffer" in l): a(l)
                if gk < 24: a.label(f"{name}_{tag}_sk{gk}")
            if 15 <= ks < 21:
                part = ks - 15
                if half == 0: a(f"s_cmp_eq_u32 s{S_IT}, 0\ns_cbranch_scc1 {name}_{tag}_ne{part}")
                for l in epi_lines(V_ACC + 16 * (1 - half), isv)[2 * part:2 * part + 2]: a(l)
                if half == 0: a.label(f"{name}_{tag}_ne{part}")
            if PFI and ks == 20:
                a(f"""
                s_cmp_lg_u32 s{S_IT}, s47
                s_cbranch_scc1 {name}_{tag}_np{half}
                buffer_load_dword v240, v243, s[48:51], s28 offen
                s_add_u32 s28, s28, 12288
                {name}_{tag}_np{half}:
                """)
            if opt.get("xt", 2) > 1 and gk == 22:
                a(f"s_cmp_lg_u32 s{S_IT}, {opt.get('xt', 2)}\ns_cbranch_scc1 {name}_{tag}_nx")
                xtouch()
                a.label(f"{name}_{tag}_nx")
            if ks == 58:
                if half == 0: a(f"s_cmp_eq_u32 s{S_IT}, 0\ns_cbranch_scc1 {name}_{tag}_nf")
                for l in flag: a(l)
                if half == 0: a.label(f"{name}_{tag}_nf")
        a(f"""
        s_add_u32 s{S_IT}, s{S_IT}, 1
        s_cmp_lt_u32 s{S_IT}, 16
        s_cbranch_scc1 {name}_{tag}_loop
        """)
        a.nops(12)
        for l in epi_lines(V_ACC + 16, isv): a(l)
        a("s_waitcnt vmcnt(0) lgkmcnt(0)\ns_barrier")
        for l in flag: a(l)

    if opt.get("qskip"):
        a(f"""
        s_cmp_lg_u32 s{S_MAT}, 0
        s_cbranch_scc1 {name}_nsk
        v_mov_b32 v{V_FV}, 31
        s_waitcnt vmcnt(0)
        s_barrier
        {flag[0]}
        {flag[1]}
        s_branch {name}_done
        {name}_nsk:
        """)
    a(f"s_cmp_eq_u32 s{S_MAT}, 2\ns_cbranch_scc1 {name}_v")
    body(False, "qk")
    a(f"s_branch {name}_done")
    a.label(f"{name}_v")
    body(True, "v")
    a.label(f"{name}_done")
    if R4:
        a(f"""
        s_cmp_lg_u32 s{S_MAT}, 1
        s_cbranch_scc1 {name}_end
        s_mov_b32 s29, 32
        s_branch {name}_again
        {name}_end:
        """)


def standalone(name, opt):
    from gen_hop import ticket
    a = Asm(); a.kernel_begin(name)
    ticket(a, name, 2)
    a(f"""
    s_cmp_lt_u32 s90, 2
    s_cbranch_scc1 {name}_exit
    s_sub_u32 s91, s90, 2
    s_lshl_b32 s91, s91, 5
    s_add_u32 s91, s91, s96
    s_add_u32 s72, s4, {210*MB}
    s_addc_u32 s73, s5, 0
    s_memrealtime s[60:61]
    """)
    qkv_role(a, name + "_q", 91, 4, 72, stamp=lambda: a("s_memrealtime s[62:63]\ns_memtime s[66:67]"), opt=opt)
    a(f"""
    s_memrealtime s[64:65]
    s_memtime s[68:69]
    s_waitcnt lgkmcnt(0)
    s_sub_u32 s62, s62, s60
    s_sub_u32 s64, s64, s60
    s_sub_u32 s68, s68, s66
    v_mov_b32 v2, s62
    v_mov_b32 v3, s64
    v_mov_b32 v4, s68
    v_mov_b32 v1, 0
    s_lshl_b32 s20, s91, 4
    s_add_u32 s20, s20, {200*MB}
    s_mov_b64 exec, 1
    buffer_store_dwordx4 v[2:5], v1, s[4:7], s20 offen
    {name}_exit:
    s_endpgm
    """)
    return (name, a.text(), kd(name, 512, sgpr=100, accum=256), 256, 256, 131072 + 8192)

if __name__ == "__main__":
    import sys, json
    V = eval(open(sys.argv[1]).read())
    write_file("qkv.s", [standalone(f"q{i}_kernel", v) for i, v in enumerate(V)])
    json.dump(V, open("qkv.json", "w"))
```

```python
from common import *
from gen_rec import WS_QX, WS_KX, WS_VT, WS_O, WS_KVM, WS_XB, DBG_VOTE
from gen_qkv import WS_FL

FL_RP, FL_XF = 192, 256
SPAIR = 58
NEARLY = 4


class WoLoader:
    LDS_W = 81920
    def __init__(self, a, name, S_B, S_WV, opt):
        self.a, self.name, self.S_B, self.S_WV, self.opt = a, name, S_B, S_WV, opt
    def setup(self, big=False):
        a = self.a
        self.big = big
        a(f"""
        s_load_dwordx2 s[52:53], s[0:1], {KA_WO}
        v_and_b32 v202, 63, v0
        s_and_b32 s58, s{self.S_B}, 31
        v_lshrrev_b32 v200, 2, v202
        v_lshlrev_b32 v200, 11, v200
        v_and_b32 v203, 3, v202
        v_lshl_add_u32 v200, v203, 4, v200
        s_lshl_b32 s56, s{self.S_WV}, 21
        s_lshl_b32 s57, s58, 6
        s_add_u32 s56, s56, s57
        v_add_u32 v200, s56, v200
        s_lshl_b32 s56, s{self.S_WV}, {15 if big else 14}
        s_add_u32 s56, s56, {0 if big else self.LDS_W}
        s_lshr_b32 s57, s58, 1
        s_lshl_b32 s57, s57, 12
        v_lshrrev_b32 v201, 5, v202
        v_bfe_u32 v204, v202, 2, 2
        v_lshl_add_u32 v201, v201, 3, v204
        v_lshlrev_b32 v201, 6, v201
        v_bfe_u32 v204, v202, 4, 1
        v_lshl_add_u32 v201, v204, 5, v201
        v_lshl_add_u32 v201, v203, 3, v201
        v_add_u32 v201, s56, v201
        s_waitcnt lgkmcnt(0)
        s_mov_b32 s54, {8*MB}
        s_mov_b32 s55, 0x00020000
        """)
    def issue(self, b):
        a = self.a
        for ks in range(16 * b, 16 * b + 16):
            a(f"s_add_u32 m0, s56, {(ks & 15) * 1024}")
            a(f"s_add_u32 s58, s57, {ks * 1024}")
            a(f"s_and_b32 s58, s58, 0xffff")
            a(f"s_lshl_b32 s58, s58, 5")
            if not self.opt.get("nowl"): a(f"buffer_load_dwordx4 v200, s[52:55], s58 offen lds")
    def consume(self, b):
        a = self.a
        a("s_waitcnt vmcnt(0)")
        for ks in range(16 * b, 16 * b + 16):
            for j in range(2):
                a(f"ds_read_b64_tr_b16 a[{4*ks+2*j}:{4*ks+2*j+1}], v201 offset:{(ks & 15) * 1024 + j * 256}")
            if ks & 3 == 3: a("s_waitcnt lgkmcnt(0)")
    def fast(self):
        a = self.a
        def dma(ks):
            a(f"s_add_u32 m0, s56, {(ks & 31) * 1024}")
            a(f"s_add_u32 s58, s57, {ks * 1024}")
            a(f"s_and_b32 s58, s58, 0xffff")
            a(f"s_lshl_b32 s58, s58, 5")
            a(f"buffer_load_dwordx4 v200, s[52:55], s58 offen lds")
        for ks in range(32): dma(ks)
        for k4 in range(16):
            a(f"s_waitcnt vmcnt({min(28, 60 - 4 * k4)})")
            for ks in range(4 * k4, 4 * k4 + 4):
                for j in range(2):
                    a(f"ds_read_b64_tr_b16 a[{4*ks+2*j}:{4*ks+2*j+1}], v201 offset:{(ks & 31) * 1024 + j * 256}")
            a("s_waitcnt lgkmcnt(0)")
            if k4 < 8:
                for ks in range(4 * k4 + 32, 4 * k4 + 36): dma(ks)
    def step(self, n):
        if n > 0: self.consume(n - 1)
        if n < 4: self.issue(n)


def schedule(start=(100, 100, 101, 101, 82, 88), dur=4.6, bdur=13.0, sb=0, t0=22.0, step=2.05, tail=((59, 63), (58, 61), (60, 62)), last=(2, 3, 0, 1, 4, 5)):
    free = list(start)
    masks = [0] * 6
    nl = len([g for g in last if g is not None])
    for s in list(range(0, sb, 4)) + list(range(sb, SPAIR - nl)):
        g = min(range(6), key=lambda i: (round(free[i], 3), i))
        free[g] = max(free[g], t0 + step * (s + 3 if s < sb else s)) + (bdur if s < sb else dur)
        masks[g] |= 1 << s
    for g in range(6):
        if last[g] is not None: masks[g] |= 1 << (SPAIR - nl + last[g])
        for s in tail[g >> 1]:
            masks[g] |= 1 << s
    return masks


def xo_role(a: Asm, name, S_B, S_WS, S_FAST, S_DBG, S_VOTE, wd=None, opt={}, stamp=None):
    S_W, S_O = 8, 12
    S_WAVE, S_G, S_C, S_T0, S_T1, S_SEG, S_CST = 16, 17, 18, 20, 21, 22, 24
    S_QO, S_KO, S_VO, S_MO, S_OW, S_OR, S_OUT, S_NEED = 26, 27, 28, 29, 40, 41, 42, 43
    S_M0 = 44
    S_MASK = 60
    S_CUR, S_RET, S_SLOT, S_QO2, S_KO2, S_ROT = 45, 46, 47, 48, 49, 50
    SRD = f"s[{S_WS}:{S_WS+3}]"
    V_L, V_L16, V_T0, V_T1, V_T2 = 1, 2, 3, 4, 5
    V_OKM, V_OVM, V_OOW, V_TH0, V_TH1, V_NEG, V_FGP, V_FRP, V_FXF, V_FMY, V_LR, V_LW, V_OUT = 6, 7, 8, 9, 10, 11, 12, 13, 14, 15, 16, 17, 18
    V_HL = 19
    V_ONE = 20
    V_Q, V_K, V_V = 24, 40, 72
    V_KM, V_VM = 88, 104
    V_S, V_P, V_SM = 112, 124, 132
    V_O = 88
    V_ACC = 112
    V_F = 136
    NFR = 28
    SB = opt.get('sched', {}).get('sb', 0)
    QF = opt.get('qflag', 0)

    def xst(reg):
        if not (stamp and opt.get("xst")): return
        l = a.newlabel(name + "_xs")
        a(f"s_cmp_lt_u32 s{reg}, 61\ns_cbranch_scc1 {l}")
        stamp()
        a.label(l)

    def poll_guard(code):
        if wd: wd(code)

    a(f"""
    s_load_dwordx2 s[{S_W}:{S_W+1}], s[0:1], {KA_WO}
    s_load_dwordx2 s[{S_O}:{S_O+1}], s[0:1], {KA_OUT}
    v_lshrrev_b32 v{V_T0}, 6, v0
    v_and_b32 v{V_L}, 63, v0
    v_readfirstlane_b32 s{S_WAVE}, v{V_T0}
    s_lshr_b32 s{S_G}, s{S_B}, 5
    s_and_b32 s{S_C}, s{S_B}, 31
    v_lshlrev_b32 v{V_L16}, 4, v{V_L}
    s_waitcnt lgkmcnt(0)
    s_mov_b32 s{S_W+2}, {8*MB}
    s_mov_b32 s{S_W+3}, 0x00020000
    s_mov_b32 s{S_O+2}, {8*MB}
    s_mov_b32 s{S_O+3}, 0x00020000
    s_mov_b32 s{S_CST}, 0x3e0293ee
    s_mov_b64 s[{S_MASK}:{S_MASK+1}], 0
    s_lshr_b32 s{S_ROT}, s{S_C}, 1
    s_lshl_b32 s{S_ROT}, s{S_ROT}, 12
    """)
    a(f"""
    s_lshl_b32 s{S_SLOT}, s{S_G}, 3
    s_add_u32 s{S_T0}, s{S_SLOT}, s{S_WAVE}
    s_lshl_b32 s{S_T0}, s{S_T0}, 18
    s_lshl_b32 s{S_T1}, s{S_C}, 13
    s_add_u32 s{S_T0}, s{S_T0}, s{S_T1}
    s_add_u32 s{S_T0}, s{S_T0}, {WS_O}
    v_lshlrev_b32 v26, 7, v{V_L}
    buffer_load_dword v28, v26, {SRD}, s{S_T0} offen sc1
    buffer_load_dword v30, v26, {SRD}, s{S_T0} offen offset:64 sc1
    s_add_u32 s{S_T0}, s{S_T0}, {MB}
    buffer_load_dword v29, v26, {SRD}, s{S_T0} offen sc1
    buffer_load_dword v31, v26, {SRD}, s{S_T0} offen offset:64 sc1
    """)
    a(f"""
    v_and_b32 v{V_T1}, 15, v{V_L}             ; c
    v_lshrrev_b32 v{V_T2}, 4, v{V_L}          ; g
    v_lshrrev_b32 v{V_T0}, 2, v{V_T1}
    v_lshlrev_b32 v{V_T0}, 1, v{V_T0}
    v_and_b32 v26, 1, v{V_T1}
    v_add_u32 v{V_T0}, v{V_T0}, v26           ; m(c)
    v_lshlrev_b32 v{V_OKM}, 8, v{V_T0}
    v_lshl_add_u32 v{V_OKM}, v{V_T2}, 4, v{V_OKM}
    s_lshr_b32 s{S_T0}, s{S_WAVE}, 1
    s_lshl_b32 s{S_T0}, s{S_T0}, 10
    s_add_u32 s{S_T0}, s{S_T0}, 2048
    v_lshlrev_b32 v{V_OVM}, 3, v{V_L}
    v_add_u32 v{V_OVM}, s{S_T0}, v{V_OVM}
    v_lshlrev_b32 v{V_OOW}, 9, v{V_T2}
    v_lshl_add_u32 v{V_OOW}, v{V_T1}, 4, v{V_OOW}
    s_lshr_b32 s{S_T0}, s{S_WAVE}, 1
    s_lshl_b32 s{S_T0}, s{S_T0}, 12
    s_and_b32 s{S_T1}, s{S_WAVE}, 1
    s_lshl_b32 s{S_T1}, s{S_T1}, 8
    s_add_u32 s{S_T0}, s{S_T0}, s{S_T1}
    v_add_u32 v{V_OOW}, s{S_T0}, v{V_OOW}
    v_lshlrev_b32 v{V_HL}, 4, v{V_T1}
    v_and_b32 v26, 1, v{V_T2}
    v_lshl_add_u32 v{V_HL}, v26, 10, v{V_HL}
    v_lshrrev_b32 v26, 1, v{V_T2}
    v_lshl_add_u32 v{V_HL}, v26, 9, v{V_HL}
    s_and_b32 s{S_T0}, s{S_G}, 1
    s_lshl_b32 s{S_T0}, s{S_T0}, 8
    v_add_u32 v{V_HL}, s{S_T0}, v{V_HL}
    v_lshlrev_b32 v26, 2, v{V_T2}
    v_sub_u32 v{V_TH0}, v{V_T1}, v26
    s_lshr_b32 s{S_T1}, s{S_T1}, 4
    v_add_u32 v{V_TH0}, s{S_T1}, v{V_TH0}
    v_add_u32 v{V_TH1}, -16, v{V_TH0}
    v_mov_b32 v{V_NEG}, 0xff7fffff
    v_mov_b32 v{V_ONE}, 0x3f803f80
    v_mov_b32 v{V_ONE+1}, 0x3f803f80
    v_mov_b32 v{V_ONE+2}, 0x3f803f80
    v_mov_b32 v{V_ONE+3}, 0x3f803f80
    v_bfe_u32 v26, v{V_L}, 1, 2
    v_min_u32 v26, 2, v26
    s_lshl_b32 s{S_T0}, s{S_C}, 8
    s_add_u32 s{S_T0}, s{S_T0}, {WS_FL}
    v_lshlrev_b32 v{V_FGP}, 13, v26
    v_and_b32 v26, 1, v{V_L}
    v_lshl_add_u32 v{V_FGP}, v26, 7, v{V_FGP}
    v_add_u32 v{V_FGP}, s{S_T0}, v{V_FGP}
    v_and_b32 v26, 1, v{V_L}
    v_lshlrev_b32 v{V_FRP}, 7, v26
    s_add_u32 s{S_T0}, s{S_T0}, {FL_RP * 128}
    v_add_u32 v{V_FRP}, s{S_T0}, v{V_FRP}
    v_and_b32 v26, 7, v{V_L}
    s_lshl_b32 s{S_T0}, s{S_G}, 5
    s_lshl_b32 s{S_T1}, s{S_WAVE}, 3
    s_add_u32 s{S_T0}, s{S_T0}, s{S_T1}
    v_add_u32 v26, s{S_T0}, v26
    v_lshlrev_b32 v{V_FXF}, 7, v26
    v_add_u32 v{V_FXF}, {WS_FL + FL_XF * 128}, v{V_FXF}
    v_bfrev_b32 v26, 1
    s_lshl_b32 s{S_T0}, s{S_B}, 7
    s_add_u32 s{S_T0}, s{S_T0}, {WS_FL + FL_XF * 128}
    v_mov_b32 v27, s{S_T0}
    v_cmp_eq_u32 vcc, 0, v0
    s_lshl_b32 s{S_T0}, s{S_WAVE}, 12
    v_add_u32 v{V_LW}, s{S_T0}, v{V_L16}
    v_cndmask_b32 v{V_FMY}, v26, v27, vcc
    v_lshrrev_b32 v26, 3, v0
    v_and_b32 v27, 1, v0
    v_lshl_add_u32 v27, v27, 5, v26
    v_lshlrev_b32 v{V_LR}, 4, v27
    v_bfe_u32 v27, v0, 1, 2
    v_lshl_add_u32 v{V_LR}, v27, 10, v{V_LR}
    v_lshlrev_b32 v{V_OUT}, 12, v26
    v_and_b32 v27, 7, v0
    v_lshl_add_u32 v{V_OUT}, v27, 3, v{V_OUT}
    s_lshl_b32 s{S_T0}, s{S_C}, 6
    v_add_u32 v{V_OUT}, s{S_T0}, v{V_OUT}
    """)
    a("s_barrier")
    if stamp: stamp()
    masks = schedule(**opt.get("sched", {}))
    for g, mk in enumerate(masks):
        a(f"""
        s_cmp_eq_u32 s{S_G}, {g}
        s_cselect_b32 s{S_MASK}, {hex(mk & 0xffffffff)}, s{S_MASK}
        s_cselect_b32 s{S_MASK+1}, {hex(mk >> 32)}, s{S_MASK+1}
        """)
    a(f"s_ff1_i32_b64 s{S_SEG}, s[{S_MASK}:{S_MASK+1}]")

    def addr():
        a(f"""
        s_lshl_b32 s{S_KO}, s{S_SEG}, 18
        s_lshl_b32 s{S_T0}, s{S_C}, 13
        s_add_u32 s{S_KO}, s{S_KO}, s{S_T0}
        s_add_u32 s{S_MO}, s{S_KO}, {WS_KVM}
        s_and_b32 s{S_T0}, s{S_WAVE}, 1
        s_lshl_b32 s{S_T0}, s{S_T0}, 10
        s_add_u32 s{S_QO}, s{S_KO}, s{S_T0}
        s_add_u32 s{S_QO}, s{S_QO}, {WS_QX}
        s_lshr_b32 s{S_T0}, s{S_WAVE}, 1
        s_lshl_b32 s{S_T0}, s{S_T0}, 12
        s_add_u32 s{S_VO}, s{S_KO}, s{S_T0}
        s_add_u32 s{S_VO}, s{S_VO}, {WS_VT}
        s_add_u32 s{S_KO}, s{S_KO}, {WS_KX}
        s_add_u32 s{S_QO2}, s{S_QO}, 4096
        s_add_u32 s{S_KO2}, s{S_KO}, 4096
        """)
    Lq = [f"buffer_load_dwordx4 v[{V_Q+4*u}:{V_Q+4*u+3}], v{V_L16}, {SRD}, s{S_QO if u < 2 else S_QO2} offen offset:{(u & 1) * 2048}" for u in range(4)]
    Lq += [f"buffer_load_dwordx4 v[{V_K+4*i}:{V_K+4*i+3}], v{V_L16}, {SRD}, s{S_KO if i < 4 else S_KO2} offen offset:{(i & 3) * 1024}" for i in range(8)]
    Lq += [f"buffer_load_dwordx4 v[{V_V+4*i}:{V_V+4*i+3}], v{V_L16}, {SRD}, s{S_VO} offen offset:{i * 1024}" for i in range(4)]
    Lm = [f"buffer_load_dwordx4 v[{V_KM+4*u}:{V_KM+4*u+3}], v{V_OKM}, {SRD}, s{S_MO} offen offset:{64*u} sc1" for u in range(4)]
    Lm += [f"buffer_load_dwordx2 v[{V_VM+2*i}:{V_VM+2*i+1}], v{V_OVM}, {SRD}, s{S_MO} offen offset:{512*(i >> 1) + 2048*(i & 1)} sc1" for i in range(4)]

    a.label(f"{name}_gp")
    poll_guard(40)
    a(f"""
    buffer_load_dword v{V_T0}, v{V_FGP}, {SRD}, 0 offen sc1
    s_waitcnt vmcnt(0)
    v_cmp_gt_u32 vcc, 32, v{V_T0}
    s_and_b32 vcc_lo, vcc_lo, {0xfc if QF else 0xff}
    s_cbranch_scc0 {name}_gk
    s_sleep 8
    s_branch {name}_gp
    {name}_gk:
    s_mov_b32 s{S_RET}, 0
    """)
    def softmax10(S, n, P):
        MX, TM = V_T1, V_T0
        regs = S
        a(f"v_max3_f32 v{MX}, v{regs[0]}, v{regs[1]}, v{regs[2]}")
        rest = regs[3:-1]
        while rest:
            a(f"v_max3_f32 v{MX}, v{MX}, v{rest[0]}, v{rest[1]}"); rest = rest[2:]
        a(f"""
        v_max_f32 v{TM}, v{MX}, v{regs[-1]}
        v_max_f32 v{MX}, v{MX}, v{regs[-1]}
        s_nop 1
        v_permlane16_swap_b32 v{MX}, v{TM}
        v_max_f32 v{MX}, v{MX}, v{TM}
        v_max_f32 v{TM}, v{MX}, v{TM}
        s_nop 1
        v_permlane32_swap_b32 v{MX}, v{TM}
        v_max_f32 v{MX}, v{MX}, v{TM}
        v_mul_f32 v{MX}, s{S_CST}, v{MX}
        """)
        for r in regs: a(f"v_fma_f32 v{r}, v{r}, s{S_CST}, -v{MX}")
        for r in regs: a(f"v_exp_f32 v{r}, v{r}")
        a("s_nop 0")

    if SB:
        BQ, BK, BV, BKM, BVM, BS, BP, BSM, BF, BACC, BTH, BFL, BND = 24, 56, 88, 120, 136, 152, 164, 172, 176, 232, 248, 249, 250
        BO, BOB, BN, BPF = BF, BF + 32, 14, 12
        S_I = 51
        a(f"""
        s_and_b32 s{S_T0}, s{S_WAVE}, 1
        s_lshl_b32 s{S_T0}, s{S_T0}, 4
        v_subrev_u32 v{BTH}, s{S_T0}, v{V_TH0}
        s_lshl_b32 s{S_T0}, s{S_T0}, 3
        s_lshl_b32 s{S_T1}, s{S_C}, 8
        s_add_u32 s{S_T0}, s{S_T0}, s{S_T1}
        s_add_u32 s{S_T0}, s{S_T0}, {WS_FL + 8192}
        v_mov_b32 v{BFL}, s{S_T0}
        s_mov_b32 vcc_lo, 0xcccccccc
        s_mov_b32 vcc_hi, 0xcccccccc
        v_cndmask_b32 v{BFL}, v{V_FRP}, v{BFL}, vcc
        s_cmp_ge_u32 s{S_SEG}, {SB}
        s_cbranch_scc1 {name}_single
        """)
        def baddr():
            a(f"""
            s_add_u32 s{S_NEED}, s{S_SEG}, s{S_WAVE}
            s_lshl_b32 s{S_QO}, s{S_NEED}, 18
            s_lshl_b32 s{S_T0}, s{S_C}, 13
            s_add_u32 s{S_QO}, s{S_QO}, s{S_T0}
            s_add_u32 s{S_MO}, s{S_QO}, {WS_KVM}
            s_lshr_b32 s{S_T0}, s{S_WAVE}, 1
            s_lshl_b32 s{S_T0}, s{S_T0}, 10
            s_sub_u32 s{S_VO}, s{S_MO}, s{S_T0}
            s_lshr_b32 s{S_T0}, s{S_NEED}, 1
            s_add_u32 s{S_T0}, s{S_T0}, {32 if QF else 0}
            v_mov_b32 v{BND}, s{S_NEED}
            v_mov_b32 v{V_T0}, s{S_T0}
            s_mov_b32 vcc_lo, 0xcccccccc
            s_mov_b32 vcc_hi, 0xcccccccc
            v_cndmask_b32 v{BND}, v{BND}, v{V_T0}, vcc
            """)
        def bloads():
            for base, reg in ((WS_QX, BQ), (WS_KX, BK), (WS_VT, BV)):
                for i in range(8):
                    if i % 4 == 0: a(f"s_add_u32 s{S_T0}, s{S_QO}, {base + i * 1024}")
                    a(f"buffer_load_dwordx4 v[{reg+4*i}:{reg+4*i+3}], v{V_L16}, {SRD}, s{S_T0} offen offset:{(i & 3) * 1024}")
            for u in range(4):
                a(f"buffer_load_dwordx4 v[{BKM+4*u}:{BKM+4*u+3}], v{V_OKM}, {SRD}, s{S_MO} offen offset:{64*u} sc1")
            for i in range(8):
                a(f"buffer_load_dwordx2 v[{BVM+2*i}:{BVM+2*i+1}], v{V_OVM}, {SRD}, s{S_VO} offen offset:{512*(i >> 1) + 2048*(i & 1)} sc1")
        baddr()
        a.label(f"{name}_btop")
        poll_guard(46)
        a(f"""
        buffer_load_dword v{V_T0}, v{BFL}, {SRD}, 0 offen sc1
        s_waitcnt vmcnt(0)
        v_cmp_ge_u32 vcc, v{BND}, v{V_T0}
        s_cbranch_vccz {name}_bk
        s_sleep 8
        s_branch {name}_btop
        {name}_bk:
        """)
        bloads()
        a.label(f"{name}_batt")
        a(f"""
        s_add_u32 s{S_OW}, s{S_SLOT}, s{S_WAVE}
        s_lshl_b32 s{S_OW}, s{S_OW}, 18
        s_add_u32 s{S_OW}, s{S_OW}, {WS_O}
        s_lshl_b32 s{S_T0}, s{S_C}, 13
        s_add_u32 s{S_OW}, s{S_OW}, s{S_T0}
        s_lshr_b32 s{S_T0}, s{S_WAVE}, 1
        s_lshl_b32 s{S_T0}, s{S_T0}, 12
        s_sub_u32 s{S_OW}, s{S_OW}, s{S_T0}
        s_and_b32 s{S_T0}, s{S_WAVE}, 1
        s_lshl_b32 s{S_T0}, s{S_T0}, 8
        s_sub_u32 s{S_OW}, s{S_OW}, s{S_T0}
        s_add_u32 s{S_KO}, s{S_OW}, 4096
        v_mov_b32 v{BP+6}, v{V_ONE}
        v_mov_b32 v{BP+7}, 0
        s_waitcnt vmcnt(0)
        """)
        if stamp and opt.get("bst"): stamp()
        for i in range(4):
            a(f"v_swap_b32 v{BVM+4*i+1}, v{BVM+4*i+2}")
        for qt in range(2):
            tiles = [0, 2] if qt == 0 else [0, 1, 2]
            for u in range(4):
                q = BQ + 8 * u + 4 * qt
                for t in tiles:
                    d = BS + 4 * t
                    k = BK + 8 * u + 4 * t if t < 2 else BKM + 4 * u
                    c = "0" if u == 0 else f"v[{d}:{d+3}]"
                    a(f"v_mfma_f32_16x16x32_bf16 v[{d}:{d+3}], v[{k}:{k+3}], v[{q}:{q+3}], {c}")
            a.nops(6)
            for r in range(4):
                a(f"v_cmp_gt_i32 vcc, {r}, v{BTH}")
                a("s_nop 1")
                a(f"v_cndmask_b32 v{BS+4*qt+r}, v{BS+4*qt+r}, v{V_NEG}, vcc")
            regs = [BS + i for i in range(4 * (qt + 1))] + [BS + 8, BS + 9]
            softmax10(regs, len(regs), BP)
            for i in range(2 * (qt + 1)):
                a(f"v_cvt_pk_bf16_f32 v{BP+i}, v{BS+2*i}, v{BS+2*i+1}")
            if qt == 0: a(f"v_mov_b32 v{BP+2}, 0\nv_mov_b32 v{BP+3}, 0")
            a(f"v_cvt_pk_bf16_f32 v{BP+4}, v{BS+8}, v{BS+9}\nv_cvt_pk_bf16_f32 v{BP+5}, v{BS+8}, v{BS+9}")
            a(f"v_mfma_f32_16x16x32_bf16 v[{BSM}:{BSM+3}], v[{V_ONE}:{V_ONE+3}], v[{BP}:{BP+3}], 0")
            for i in range(8):
                a(f"v_mfma_f32_16x16x32_bf16 v[{BO+4*i}:{BO+4*i+3}], v[{BV+4*i}:{BV+4*i+3}], v[{BP}:{BP+3}], 0")
            a(f"v_mfma_f32_16x16x16_bf16 v[{BSM}:{BSM+3}], v[{BP+6}:{BP+7}], v[{BP+4}:{BP+5}], v[{BSM}:{BSM+3}]")
            for i in range(8):
                a(f"v_mfma_f32_16x16x16_bf16 v[{BO+4*i}:{BO+4*i+3}], v[{BVM+2*i}:{BVM+2*i+1}], v[{BP+4}:{BP+5}], v[{BO+4*i}:{BO+4*i+3}]")
            a(f"v_rcp_f32 v{BSM}, v{BSM}")
            a.nops(2)
            for i in range(16):
                a(f"v_pk_mul_f32 v[{BO+2*i}:{BO+2*i+1}], v[{BO+2*i}:{BO+2*i+1}], v[{BSM}:{BSM+1}] op_sel_hi:[1,0]")
            for i in range(16):
                a(f"v_cvt_pk_bf16_f32 v{BOB+i}, v{BO+2*i}, v{BO+2*i+1}")
            l = a.newlabel(name + "_bo")
            a(f"s_cmp_eq_u32 s{S_FAST}, 1\ns_cbranch_scc1 {l}f")
            for fl in ("sc1", ""):
                for i in range(4):
                    a(f"buffer_store_dwordx4 v[{BOB+4*i}:{BOB+4*i+3}], v{V_OOW}, {SRD}, s{S_OW if i < 2 else S_KO} offen offset:{(i & 1) * 2048 + qt * 256} {fl}")
                if fl: a(f"s_branch {l}d\n{l}f:")
            a.label(f"{l}d")
        a(f"""
        s_add_u32 s{S_NEED}, s{S_SEG}, 4
        v_mov_b32 v{V_T1}, s{S_NEED}
        s_waitcnt vmcnt(0)
        s_barrier
        s_cmp_eq_u32 s{S_FAST}, 1
        s_cbranch_scc1 {name}_bff
        buffer_store_dword v{V_T1}, v{V_FMY}, {SRD}, 0 offen sc1
        s_branch {name}_bfd
        {name}_bff:
        buffer_store_dword v{V_T1}, v{V_FMY}, {SRD}, 0 offen
        {name}_bfd:
        s_lshl_b32 s{S_OR}, s{S_SLOT}, 18
        s_add_u32 s{S_OR}, s{S_OR}, {WS_O}
        s_lshl_b32 s{S_T0}, s{S_WAVE}, 16
        s_add_u32 s{S_OR}, s{S_OR}, s{S_T0}
        s_lshl_b32 s{S_OUT}, s{S_SEG}, 17
        s_add_u32 s{S_CUR}, s{S_SEG}, 3
        s_xor_b32 s{S_SLOT}, s{S_SLOT}, 4
        s_bitset0_b64 s[{S_MASK}:{S_MASK+1}], s{S_SEG}
        s_ff1_i32_b64 s{S_SEG}, s[{S_MASK}:{S_MASK+1}]
        s_min_u32 s{S_SEG}, s{S_SEG}, 64
        s_mov_b32 s{S_I}, 0
        """)
        baddr()
        if stamp and opt.get("bst"): stamp()
        a.label(f"{name}_bxp")
        poll_guard(47)
        a(f"""
        buffer_load_dword v{V_T0}, v{V_FXF}, {SRD}, 0 offen sc1
        s_waitcnt vmcnt(0)
        v_cmp_ge_u32 vcc, s{S_CUR}, v{V_T0}
        s_cbranch_vccnz {name}_bxp
        """)
        def bfl(i):
            d = BF + 4 * (i % BN)
            if i % 4 == 0:
                a(f"s_add_u32 s{S_T0}, s{S_ROT}, {i * 1024}")
                a(f"s_and_b32 s{S_T0}, s{S_T0}, 0xffff")
                a(f"s_add_u32 s{S_T0}, s{S_T0}, s{S_OR}")
            a(f"buffer_load_dwordx4 v[{d}:{d+3}], v{V_L16}, {SRD}, s{S_T0} offen offset:{(i & 3) * 1024} sc1")
        if stamp and opt.get("bst"): stamp()
        for i in range(BPF): bfl(i)
        a.label(f"{name}_bpl")
        for i in range(64):
            a(f"s_waitcnt vmcnt({min(63, i + BPF - 1) - i + (1 if 40 < i + BPF and i <= 40 else 0)})")
            d = BF + 4 * (i % BN)
            c = "0" if i == 0 else f"v[{BACC}:{BACC+15}]"
            a(f"v_mfma_f32_32x32x16_bf16 v[{BACC}:{BACC+15}], a[{4*i}:{4*i+3}], v[{d}:{d+3}], {c}")
            if i + BPF < 64: bfl(i + BPF)
            if i + BPF == 40: a(f"buffer_load_dword v{V_T2}, v{BFL}, {SRD}, 0 offen sc1")
        a(f"""
        s_add_u32 s{S_OR}, s{S_OR}, {1 << 18}
        s_add_u32 s{S_I}, s{S_I}, 1
        s_mov_b32 s{S_RET}, 0
        s_cmp_eq_u32 s{S_I}, 4
        s_cbranch_scc1 {name}_bl4
        """)
        for i in range(BPF): bfl(i)
        a(f"""
        s_branch {name}_brd
        {name}_bl4:
        v_cmp_ge_u32 vcc, v{BND}, v{V_T2}
        s_cmp_ge_u32 s{S_SEG}, {SB}
        s_cbranch_scc1 {name}_bnp
        s_cbranch_vccnz {name}_bnp
        s_mov_b32 s{S_RET}, 1
        """)
        bloads()
        a.label(f"{name}_bnp")
        a.nops(8)
        a.label(f"{name}_brd")
        a("s_barrier")
        for qq in range(4):
            a(f"ds_write_b128 v{V_LW}, v[{BACC+4*qq}:{BACC+4*qq+3}] offset:{1024*qq}")
        a("s_waitcnt lgkmcnt(0)\ns_barrier")
        R = BS
        for w in range(4):
            a(f"ds_read_b128 v[{R+4*w}:{R+4*w+3}], v{V_LR} offset:{4096*w}")
        a(f"""
        s_waitcnt lgkmcnt(0)
        v_pk_add_f32 v[{R}:{R+1}], v[{R}:{R+1}], v[{R+4}:{R+5}]
        v_pk_add_f32 v[{R+2}:{R+3}], v[{R+2}:{R+3}], v[{R+6}:{R+7}]
        v_pk_add_f32 v[{R+8}:{R+9}], v[{R+8}:{R+9}], v[{R+12}:{R+13}]
        v_pk_add_f32 v[{R+10}:{R+11}], v[{R+10}:{R+11}], v[{R+14}:{R+15}]
        v_pk_add_f32 v[{R}:{R+1}], v[{R}:{R+1}], v[{R+8}:{R+9}]
        v_pk_add_f32 v[{R+2}:{R+3}], v[{R+2}:{R+3}], v[{R+10}:{R+11}]
        v_cvt_pk_bf16_f32 v{BSM}, v{R}, v{R+1}
        v_cvt_pk_bf16_f32 v{BSM+1}, v{R+2}, v{R+3}
        buffer_store_dwordx2 v[{BSM}:{BSM+1}], v{V_OUT}, s[{S_O}:{S_O+3}], s{S_OUT} offen
        s_add_u32 s{S_OUT}, s{S_OUT}, {1 << 17}
        s_cmp_lt_u32 s{S_I}, 4
        s_cbranch_scc1 {name}_bpl
        """)
        if stamp: stamp()
        a(f"""
        s_cmp_eq_u32 s{S_RET}, 1
        s_cbranch_scc1 {name}_batt
        s_cmp_lt_u32 s{S_SEG}, {SB}
        s_cbranch_scc1 {name}_btop
        s_cmp_ge_u32 s{S_SEG}, 64
        s_cbranch_scc1 {name}_fin
        {name}_single:
        """)
        if QF:
            a.label(f"{name}_gq")
            poll_guard(48)
            a(f"""
            buffer_load_dword v{V_T0}, v{V_FGP}, {SRD}, 0 offen sc1
            s_waitcnt vmcnt(0)
            v_cmp_ne_u32 vcc, 64, v{V_T0}
            s_and_b32 vcc_lo, vcc_lo, 0xc
            s_cbranch_scc0 {name}_gqd
            s_sleep 8
            s_branch {name}_gq
            {name}_gqd:
            """)
    addr()
    a.label(f"{name}_ldq")
    for l in Lq: a(l)
    a.label(f"{name}_att")
    a("s_waitcnt vmcnt(0)")
    for u in range(4):
        for kt in range(2):
            d = V_S + 4 * kt
            c = "0" if u == 0 else f"v[{d}:{d+3}]"
            k = V_K + 8 * u + 4 * kt
            a(f"v_mfma_f32_16x16x32_bf16 v[{d}:{d+3}], v[{k}:{k+3}], v[{V_Q+4*u}:{V_Q+4*u+3}], {c}")
    a(f"""
    s_lshl_b32 s{S_OR}, s{S_SLOT}, 18
    s_add_u32 s{S_OR}, s{S_OR}, {WS_O}
    s_lshl_b32 s{S_T0}, s{S_C}, 13
    s_add_u32 s{S_OW}, s{S_OR}, s{S_T0}
    s_lshl_b32 s{S_T0}, s{S_WAVE}, 16
    s_add_u32 s{S_OR}, s{S_OR}, s{S_T0}
    s_lshl_b32 s{S_OUT}, s{S_SEG}, 17
    v_mov_b32 v{V_P+6}, v{V_ONE}
    v_mov_b32 v{V_P+7}, 0
    """)
    for kt, th in ((0, V_TH0), (1, V_TH1)):
        for r in range(4):
            a(f"v_cmp_gt_i32 vcc, {r}, v{th}")
            a("s_nop 1")
            a(f"v_cndmask_b32 v{V_S+4*kt+r}, v{V_S+4*kt+r}, v{V_NEG}, vcc")
    if opt.get("direct", 1):
        a(f"s_cmp_ge_u32 s{S_SEG}, 63\ns_cbranch_scc1 {name}_dx")
    a(f"s_cmp_eq_u32 s{S_RET}, 1\ns_cbranch_scc1 {name}_rd")
    a.label(f"{name}_rp")
    poll_guard(41)
    a(f"""
    buffer_load_dword v{V_T0}, v{V_FRP}, {SRD}, 0 offen sc1
    s_waitcnt vmcnt(0)
    v_cmp_ge_u32 vcc, s{S_SEG}, v{V_T0}
    s_cbranch_vccz {name}_rk
    s_sleep {opt.get('rps', 2)}
    s_branch {name}_rp
    {name}_rk:
    """)
    xst(S_SEG)
    for l in Lm: a(l)
    a.label(f"{name}_rd")
    d = V_S + 8
    for u in range(4):
        a(f"s_waitcnt vmcnt({7-u})")
        c = "0" if u == 0 else f"v[{d}:{d+3}]"
        a(f"v_mfma_f32_16x16x32_bf16 v[{d}:{d+3}], v[{V_KM+4*u}:{V_KM+4*u+3}], v[{V_Q+4*u}:{V_Q+4*u+3}], {c}")
    xst(S_SEG)
    MX, TM = V_T1, V_T0
    a(f"""
    v_max3_f32 v{MX}, v{V_S}, v{V_S+1}, v{V_S+2}
    v_max3_f32 v{MX}, v{MX}, v{V_S+3}, v{V_S+4}
    v_max3_f32 v{MX}, v{MX}, v{V_S+5}, v{V_S+6}
    s_waitcnt vmcnt(0)
    v_swap_b32 v{V_VM+1}, v{V_VM+2}
    v_swap_b32 v{V_VM+5}, v{V_VM+6}
    s_nop 1
    v_max3_f32 v{MX}, v{MX}, v{V_S+7}, v{V_S+8}
    v_max_f32 v{TM}, v{MX}, v{V_S+9}
    v_max_f32 v{MX}, v{MX}, v{V_S+9}
    s_nop 1
    v_permlane16_swap_b32 v{MX}, v{TM}
    v_max_f32 v{MX}, v{MX}, v{TM}
    v_max_f32 v{TM}, v{MX}, v{TM}
    s_nop 1
    v_permlane32_swap_b32 v{MX}, v{TM}
    v_max_f32 v{MX}, v{MX}, v{TM}
    v_mul_f32 v{MX}, s{S_CST}, v{MX}
    """)
    for i in range(10):
        a(f"v_fma_f32 v{V_S+i}, v{V_S+i}, s{S_CST}, -v{MX}")
    for i in range(10):
        a(f"v_exp_f32 v{V_S+i}, v{V_S+i}")
    a("s_nop 0")
    for i in range(5):
        a(f"v_cvt_pk_bf16_f32 v{V_P+i}, v{V_S+2*i}, v{V_S+2*i+1}")
    a(f"v_mov_b32 v{V_P+5}, v{V_P+4}")
    a("s_nop 1")
    a(f"v_mfma_f32_16x16x32_bf16 v[{V_SM}:{V_SM+3}], v[{V_ONE}:{V_ONE+3}], v[{V_P}:{V_P+3}], 0")
    for i in range(4):
        a(f"v_mfma_f32_16x16x32_bf16 v[{V_O+4*i}:{V_O+4*i+3}], v[{V_V+4*i}:{V_V+4*i+3}], v[{V_P}:{V_P+3}], 0")
    a("s_nop 1")
    a(f"v_mfma_f32_16x16x16_bf16 v[{V_SM}:{V_SM+3}], v[{V_P+6}:{V_P+7}], v[{V_P+4}:{V_P+5}], v[{V_SM}:{V_SM+3}]")
    for i in range(4):
        vb = V_VM + 2 * i
        a(f"v_mfma_f32_16x16x16_bf16 v[{V_O+4*i}:{V_O+4*i+3}], v[{vb}:{vb+1}], v[{V_P+4}:{V_P+5}], v[{V_O+4*i}:{V_O+4*i+3}]")
    a.nops(4)
    a(f"v_rcp_f32 v{V_SM}, v{V_SM}")
    a.nops(3)
    for i in range(8):
        a(f"v_pk_mul_f32 v[{V_O+2*i}:{V_O+2*i+1}], v[{V_O+2*i}:{V_O+2*i+1}], v[{V_SM}:{V_SM+1}] op_sel_hi:[1,0]")
    for i in range(8):
        a(f"v_cvt_pk_bf16_f32 v{V_S+i}, v{V_O+2*i}, v{V_O+2*i+1}")
    xst(S_SEG)
    a(f"""
    s_add_u32 s{S_NEED}, s{S_SEG}, 1
    v_mov_b32 v{V_T1}, s{S_NEED}
    s_cmp_eq_u32 s{S_FAST}, 1
    s_cbranch_scc1 {name}_of
    buffer_store_dwordx4 v[{V_S}:{V_S+3}], v{V_OOW}, {SRD}, s{S_OW} offen sc1
    buffer_store_dwordx4 v[{V_S+4}:{V_S+7}], v{V_OOW}, {SRD}, s{S_OW} offen offset:2048 sc1
    s_waitcnt vmcnt(0)
    s_barrier
    buffer_store_dword v{V_T1}, v{V_FMY}, {SRD}, 0 offen sc1
    s_branch {name}_od
    {name}_of:
    buffer_store_dwordx4 v[{V_S}:{V_S+3}], v{V_OOW}, {SRD}, s{S_OW} offen
    buffer_store_dwordx4 v[{V_S+4}:{V_S+7}], v{V_OOW}, {SRD}, s{S_OW} offen offset:2048
    s_waitcnt vmcnt(0)
    s_barrier
    buffer_store_dword v{V_T1}, v{V_FMY}, {SRD}, 0 offen
    {name}_od:
    s_mov_b32 s{S_CUR}, s{S_SEG}
    s_add_u32 s{S_T0}, s{S_SLOT}, 1
    s_and_b32 s{S_T0}, s{S_T0}, 7
    s_andn2_b32 s{S_SLOT}, s{S_SLOT}, 7
    s_or_b32 s{S_SLOT}, s{S_SLOT}, s{S_T0}
    s_bitset0_b64 s[{S_MASK}:{S_MASK+1}], s{S_SEG}
    s_ff1_i32_b64 s{S_SEG}, s[{S_MASK}:{S_MASK+1}]
    s_min_u32 s{S_SEG}, s{S_SEG}, 64
    """)
    addr()
    xst(S_CUR)
    a.label(f"{name}_xp")
    poll_guard(42)
    a(f"""
    buffer_load_dword v{V_T0}, v{V_FXF}, {SRD}, 0 offen sc1
    s_waitcnt vmcnt(0)
    v_cmp_ge_u32 vcc, s{S_CUR}, v{V_T0}
    s_cbranch_vccnz {name}_xp
    """)
    def fload(i):
        d = V_F + 4 * (i % NFR)
        if i % 4 == 0:
            a(f"s_add_u32 s{S_T0}, s{S_ROT}, {i * 1024}")
            a(f"s_and_b32 s{S_T0}, s{S_T0}, 0xffff")
            a(f"s_add_u32 s{S_T0}, s{S_T0}, s{S_OR}")
        a(f"buffer_load_dwordx4 v[{d}:{d+3}], v{V_L16}, {SRD}, s{S_T0} offen offset:{(i & 3) * 1024} sc1")
    a(f"s_cmp_ge_u32 s{S_CUR}, {SPAIR}\ns_cbranch_scc1 {name}_half")
    PFD = opt.get('pfd', 12)
    q = []
    for i in range(PFD): fload(i); q.append(i)
    a(f"buffer_load_dword v{V_T2}, v{V_FRP}, {SRD}, 0 offen sc1"); q.append("rp")
    def mf(i, q):
        a(f"s_waitcnt vmcnt({len(q) - 1 - q.index(i)})")
        d = V_F + 4 * (i % NFR)
        c = "0" if i == 0 else f"v[{V_ACC}:{V_ACC+15}]"
        a(f"v_mfma_f32_32x32x16_bf16 v[{V_ACC}:{V_ACC+15}], a[{4*i}:{4*i+3}], v[{d}:{d+3}], {c}")
    for i in range(64 - PFD):
        mf(i, q)
        fload(i + PFD); q.append(i + PFD)
        if i == PFD:
            a(f"v_cmp_ge_u32 vcc, s{S_SEG}, v{V_T2}")
        if i == PFD + 1:
            a(f"s_cmp_eq_u64 vcc, 0\ns_cselect_b32 s{S_RET}, 1, 0")
    a(f"s_cmp_eq_u32 s{S_RET}, 1\ns_cbranch_scc1 {name}_pfx")
    for i in range(64 - PFD, 64): mf(i, q)
    a(f"s_branch {name}_pfd")
    a.label(f"{name}_pfx")
    extra = Lq + Lm
    for i in range(64 - PFD, 64):
        mf(i, q)
        for _ in range(-(-24 // PFD)):
            if extra: a(extra.pop(0)); q.append("x")
    assert not extra
    a.label(f"{name}_pfd")
    a.nops(12)
    for qq in range(4):
        a(f"ds_write_b128 v{V_LW}, v[{V_ACC+4*qq}:{V_ACC+4*qq+3}] offset:{1024*qq}")
    a("s_waitcnt lgkmcnt(0)\ns_barrier")
    for w in range(4):
        a(f"ds_read_b128 v[{V_ACC+4*w}:{V_ACC+4*w+3}], v{V_LR} offset:{4096*w}")
    a("s_waitcnt lgkmcnt(0)")
    fin = (f"""
    v_pk_add_f32 v[{V_ACC}:{V_ACC+1}], v[{V_ACC}:{V_ACC+1}], v[{V_ACC+4}:{V_ACC+5}]
    v_pk_add_f32 v[{V_ACC+2}:{V_ACC+3}], v[{V_ACC+2}:{V_ACC+3}], v[{V_ACC+6}:{V_ACC+7}]
    v_pk_add_f32 v[{V_ACC+8}:{V_ACC+9}], v[{V_ACC+8}:{V_ACC+9}], v[{V_ACC+12}:{V_ACC+13}]
    v_pk_add_f32 v[{V_ACC+10}:{V_ACC+11}], v[{V_ACC+10}:{V_ACC+11}], v[{V_ACC+14}:{V_ACC+15}]
    v_pk_add_f32 v[{V_ACC}:{V_ACC+1}], v[{V_ACC}:{V_ACC+1}], v[{V_ACC+8}:{V_ACC+9}]
    v_pk_add_f32 v[{V_ACC+2}:{V_ACC+3}], v[{V_ACC+2}:{V_ACC+3}], v[{V_ACC+10}:{V_ACC+11}]
    v_cvt_pk_bf16_f32 v{V_SM}, v{V_ACC}, v{V_ACC+1}
    v_cvt_pk_bf16_f32 v{V_SM+1}, v{V_ACC+2}, v{V_ACC+3}
    buffer_store_dwordx2 v[{V_SM}:{V_SM+1}], v{V_OUT}, s[{S_O}:{S_O+3}], s{S_OUT} offen {opt.get('ost', '')}
    """)
    a(fin)
    a(f"s_branch {name}_nxt")
    a.label(f"{name}_half")
    ACB = V_KM
    xst(S_CUR)
    def hload(i):
        d = V_F + 4 * (i % NFR)
        if i % 2 == 0:
            a(f"s_add_u32 s{S_T0}, s{S_ROT}, {i * 2048}")
            a(f"s_and_b32 s{S_T0}, s{S_T0}, 0xffff")
            a(f"s_add_u32 s{S_T0}, s{S_T0}, s{S_OR}")
        a(f"buffer_load_dwordx4 v[{d}:{d+3}], v{V_HL}, {SRD}, s{S_T0} offen offset:{(i & 1) * 2048} sc1")
    for i in range(PFD): hload(i)
    a(f"s_mov_b32 s{S_RET}, 0")
    for i in range(32):
        a(f"s_waitcnt vmcnt({min(31, i + PFD - 1) - i})")
        d = V_F + 4 * (i % NFR)
        for b, acc in enumerate((V_ACC, ACB)):
            c = "0" if i == 0 else f"v[{acc}:{acc+15}]"
            a(f"v_mfma_f32_32x32x16_bf16 v[{acc}:{acc+15}], a[{8*i+4*b}:{8*i+4*b+3}], v[{d}:{d+3}], {c}")
        if i + PFD < 32: hload(i + PFD)
    xst(S_CUR)
    a(f"s_cmp_ge_u32 s{S_SEG}, 64\ns_cbranch_scc1 {name}_hnp\ns_mov_b32 s{S_RET}, 2")
    for l in Lq: a(l)
    a.label(f"{name}_hnp")
    a(f"s_mov_b32 vcc_lo, 0xffff0000\ns_mov_b32 vcc_hi, 0xffff0000")
    a.nops(10)
    for i in range(16):
        a(f"v_cndmask_b32 v{V_ACC+i}, v{V_ACC+i}, v{ACB+i}, vcc")
    for qq in range(4):
        a(f"ds_write_b128 v{V_LW}, v[{V_ACC+4*qq}:{V_ACC+4*qq+3}] offset:{1024*qq}")
    a(f"""
    s_waitcnt lgkmcnt(0)
    s_barrier
    s_cmp_ge_u32 s{S_WAVE}, 2
    s_cbranch_scc1 {name}_nxt
    """)
    for w in range(4):
        a(f"ds_read_b128 v[{V_ACC+4*w}:{V_ACC+4*w+3}], v{V_LR} offset:{4096*w}")
        a(f"ds_read_b128 v[{ACB+4*w}:{ACB+4*w+3}], v{V_LR} offset:{4096*w + 256}")
    a(f"""
    s_and_b32 s{S_T0}, s{S_G}, 1
    s_lshl_b32 s{S_T0}, s{S_T0}, 16
    s_add_u32 s{S_OUT}, s{S_OUT}, s{S_T0}
    s_waitcnt lgkmcnt(0)
    """)
    for i in range(0, 16, 2):
        a(f"v_pk_add_f32 v[{V_ACC+i}:{V_ACC+i+1}], v[{V_ACC+i}:{V_ACC+i+1}], v[{ACB+i}:{ACB+i+1}]")
    a(fin)
    a.label(f"{name}_nxt")
    if stamp: stamp()
    a(f"""
    s_cmp_lg_u32 s{S_RET}, 0
    s_cbranch_scc1 {name}_att
    s_cmp_lt_u32 s{S_SEG}, 64
    s_cbranch_scc1 {name}_ldq
    """)
    if not opt.get("direct", 1): return
    a(f"s_branch {name}_fin")
    a.label(f"{name}_dx")
    D = V_F
    SEL, L8 = V_F + 32, V_F + 34
    T = V_F + 36
    a(f"""
    buffer_load_dword v{V_T0}, off, s[{S_DBG}:{S_DBG+3}], 0 offset:{DBG_VOTE} sc1
    v_and_b32 v{V_T1}, 15, v{V_L}
    v_lshrrev_b32 v{V_T2}, 4, v{V_L}
    v_lshlrev_b32 v{L8}, 3, v{V_L}
    v_and_b32 v{SEL}, 1, v{V_T1}
    v_lshlrev_b32 v{SEL}, 4, v{SEL}
    v_mov_b32 v{SEL+1}, 0x3f80
    v_lshlrev_b32 v{SEL+1}, v{SEL}, v{SEL+1}
    v_lshrrev_b32 v{V_T1}, 2, v{V_T1}
    v_cmp_eq_u32 vcc, v{V_T1}, v{V_T2}
    v_mov_b32 v{SEL}, 0
    s_waitcnt vmcnt(0)
    v_cndmask_b32 v{SEL+1}, 0, v{SEL+1}, vcc
    v_readfirstlane_b32 s{S_T0}, v{V_T0}
    s_and_b32 s{S_T1}, s{S_SEG}, 1
    s_lshl_b32 s{S_T1}, s{S_T1}, 20
    s_lshl_b32 s{S_QO}, s{S_C}, 14
    s_add_u32 s{S_QO}, s{S_QO}, s{S_T1}
    s_add_u32 s{S_QO}, s{S_QO}, {WS_XB}
    s_lshr_b32 s{S_T0}, s{S_T0}, 15
    s_cmp_gt_u32 s{S_T0}, s{S_VOTE}
    s_cselect_b32 s{S_T0}, 8192, 0
    s_add_u32 s{S_QO}, s{S_QO}, s{S_T0}
    s_bfe_u32 s{S_T0}, s{S_C}, 0x10001
    s_lshl_b32 s{S_T0}, s{S_T0}, 12
    s_add_u32 s{S_QO}, s{S_QO}, s{S_T0}
    s_add_u32 s{S_QO2}, s{S_QO}, {32 << 14}
    s_lshr_b32 s{S_T0}, s{S_WAVE}, 1
    s_lshl_b32 s{S_T0}, s{S_T0}, 11
    s_xor_b32 s{S_KO}, s{S_QO}, 4096
    s_add_u32 s{S_KO}, s{S_KO}, s{S_T0}
    s_add_u32 s{S_KO2}, s{S_KO}, {32 << 14}
    s_lshl_b32 s{S_T0}, s{S_WAVE}, 10
    s_add_u32 s{S_QO}, s{S_QO}, s{S_T0}
    s_add_u32 s{S_QO2}, s{S_QO2}, s{S_T0}
    v_add_u32 v{L8+1}, s{S_T0}, v{V_L16}
    {name}_dr:
    """)
    poll_guard(43)
    a(f"""
    buffer_load_dword v{V_T0}, v{V_FRP}, {SRD}, 0 offen sc1
    s_waitcnt vmcnt(0)
    v_cmp_gt_u32 vcc, s{S_SEG}, v{V_T0}
    s_cbranch_vccz {name}_dp
    s_sleep 2
    s_branch {name}_dr
    {name}_dp:
    """)
    poll_guard(44)
    regs = []
    for j in range(2):
        for m in range(2):
            d = D + 4 * j + 2 * m
            regs.append(d)
            a(f"buffer_load_dwordx2 v[{d}:{d+1}], v{L8}, {SRD}, s{S_QO if j == 0 else S_QO2} offen offset:{512*m} sc1")
    a("s_waitcnt vmcnt(0)")
    for j in range(2):
        for m in range(2):
            d = D + 4 * j + 2 * m
            t = T + 4 * m
            c = "0" if j == 0 else f"v[{t}:{t+3}]"
            a(f"v_mfma_f32_16x16x16_bf16 v[{t}:{t+3}], v[{d}:{d+1}], v[{SEL}:{SEL+1}], {c}")
    Lv = [f"buffer_load_dwordx2 v[{V_VM+2*i}:{V_VM+2*i+1}], v{L8}, {SRD}, s{S_KO if (i & 1) == 0 else S_KO2} offen offset:{1024*(i >> 1)} sc1" for i in range(4)]
    a(f"""
    v_or3_b32 v{V_T0}, v{regs[0]}, v{regs[1]}, v{regs[2]}
    v_or_b32 v{V_T0}, v{V_T0}, v{regs[3]}
    v_and_b32 v{V_T0}, 1, v{V_T0}
    v_cmp_ne_u32 vcc, 0, v{V_T0}
    s_nop 3
    s_cbranch_vccnz {name}_dp
    """)
    for i in range(4):
        a(f"v_cvt_pk_bf16_f32 v{D+i}, v{T+2*i}, v{T+2*i+1}")
    a(f"ds_write_b128 v{L8+1}, v[{D}:{D+3}] offset:20480")
    a("s_waitcnt lgkmcnt(0)\ns_barrier")
    for u in range(4):
        a(f"ds_read_b128 v[{V_KM+4*u}:{V_KM+4*u+3}], v{V_L16} offset:{20480 + 1024*u}")
    a.label(f"{name}_dv")
    poll_guard(45)
    for l in Lv: a(l)
    a(f"""
    s_waitcnt vmcnt(0) lgkmcnt(0)
    v_or3_b32 v{V_T0}, v{V_VM}, v{V_VM+2}, v{V_VM+4}
    v_or_b32 v{V_T0}, v{V_T0}, v{V_VM+6}
    v_and_b32 v{V_T0}, 1, v{V_T0}
    v_cmp_ne_u32 vcc, 0, v{V_T0}
    s_cbranch_vccnz {name}_dv
    s_branch {name}_rd
    {name}_fin:
    """)
```

```python
from common import *
from gen_rec import WS_QX, WS_KX, WS_VT, WS_O, WS_KVM, WS_XB, WS_FL, DBG_VOTE

FL_RP, FL_XF = 192, 256
WS_XCH = 72 * MB


class WoLoader:
    def __init__(self, a, name, S_B, S_WV, opt):
        self.a, self.name, self.S_B, self.S_WV, self.opt = a, name, S_B, S_WV, opt

    def run(self):
        a = self.a
        a(f"""
        s_load_dwordx2 s[52:53], s[0:1], {KA_WO}
        v_and_b32 v202, 63, v0
        v_lshrrev_b32 v200, 3, v202
        v_lshlrev_b32 v200, 11, v200
        v_and_b32 v203, 7, v202
        v_lshl_add_u32 v200, v203, 4, v200
        s_and_b32 s56, s{self.S_B}, 1
        s_lshl_b32 s56, s56, 2
        s_add_u32 s56, s56, s{self.S_WV}
        s_lshl_b32 s56, s56, 20
        s_bfe_u32 s58, s{self.S_B}, 0x40001
        s_lshl_b32 s57, s58, 7
        s_add_u32 s56, s56, s57
        v_add_u32 v200, s56, v200
        s_lshl_b32 s56, s{self.S_WV}, 15
        s_lshl_b32 s57, s58, 12
        v_lshrrev_b32 v201, 5, v202
        v_bfe_u32 v204, v202, 2, 2
        v_lshl_add_u32 v201, v201, 3, v204
        v_lshlrev_b32 v201, 7, v201
        v_bfe_u32 v204, v202, 4, 1
        v_lshl_add_u32 v201, v204, 5, v201
        v_and_b32 v203, 3, v202
        v_lshl_add_u32 v201, v203, 3, v201
        v_add_u32 v201, s56, v201
        s_waitcnt lgkmcnt(0)
        s_mov_b32 s54, {8*MB}
        s_mov_b32 s55, 0x00020000
        """)
        def dma(p):
            a(f"s_add_u32 m0, s56, {(p & 31) * 1024}")
            a(f"s_add_u32 s58, s57, {p * 512}")
            a(f"s_and_b32 s58, s58, 0x7fff")
            a(f"s_lshl_b32 s58, s58, 5")
            a(f"buffer_load_dwordx4 v200, s[52:55], s58 offen lds")
        D = self.opt.get("wdepth", 4)
        for p in range(D): dma(p)
        for k4 in range(16):
            a(f"s_waitcnt vmcnt({min(D - 4, 60 - 4 * k4)})")
            for ks in range(2 * k4, 2 * k4 + 2):
                for ct in range(2):
                    for j in range(2):
                        d = (2 * ks + ct) * 4 + 2 * j
                        a(f"ds_read_b64_tr_b16 a[{d}:{d+1}], v201 offset:{(ks & 15) * 2048 + j * 512 + ct * 64}")
            a("s_waitcnt lgkmcnt(0)")
            for p in range(4 * k4 + D, min(64, 4 * k4 + D + 4)): dma(p)


def schedule(start, dur=3.7, bdur=11.0, sb=48, t0=22.0, step=2.0, fixed={}):
    free = list(start)
    masks = [0] * 6
    for s in list(range(0, sb, 4)) + list(range(sb, 64)):
        g = fixed[s] if s in fixed else min(range(6), key=lambda i: (round(free[i], 3), i))
        free[g] = max(free[g], t0 + step * (s + 3 if s < sb else s)) + (bdur if s < sb else dur)
        masks[g] |= 1 << s
    return masks


def xo_role(a: Asm, name, S_B, S_WS, S_FAST, S_DBG, S_VOTE, wd=None, opt={}, stamp=None):
    S_O = 12
    S_WAVE, S_G, S_C, S_T0, S_T1, S_SEG, S_CST = 16, 17, 18, 20, 21, 22, 24
    S_QO, S_KO, S_VO, S_MO, S_OW, S_OR, S_OUT, S_NEED = 26, 27, 28, 29, 40, 41, 42, 43
    S_CUR, S_RET, S_SLOT, S_QO2, S_KO2, S_ROT, S_I, S_N, S_XW, S_XR = 45, 46, 47, 48, 49, 50, 51, 8, 9, 10
    S_MASK = 60
    SRD = f"s[{S_WS}:{S_WS+3}]"
    V_L, V_L16, V_T0, V_T1, V_T2 = 1, 2, 3, 4, 5
    V_OKM, V_L8, V_OOW, V_TH0, V_TH1, V_NEG, V_FGP, V_FRP, V_FXF, V_FMY, V_LR, V_LW, V_OUT, V_T16 = 6, 7, 8, 9, 10, 11, 12, 13, 14, 15, 16, 17, 18, 19
    V_ONE = 20
    BQ, BK, BV, BKM, BVM = 24, 56, 88, 120, 136
    BF, BN, BPF = 152, 12, 10
    ACC, KEEP = 200, 232
    BTH, BFL, BND, V_FPF, V_LR2 = 248, 249, 250, 251, 252
    BO, BOB, BS, BP, BSM = 152, 184, 200, 212, 220
    SB = opt["sched"].get("sb", 48)
    QF = opt.get("qflag", 0)

    def poll_guard(code):
        if wd: wd(code)

    def st2(lines):
        l = a.newlabel(name + "_st")
        a(f"s_cmp_eq_u32 s{S_FAST}, 1\ns_cbranch_scc1 {l}f")
        for x in lines: a(x + " sc1")
        a(f"s_branch {l}d\n{l}f:")
        for x in lines: a(x)
        a.label(f"{l}d")

    a(f"""
    s_load_dwordx2 s[{S_O}:{S_O+1}], s[0:1], {KA_OUT}
    v_lshrrev_b32 v{V_T0}, 6, v0
    v_and_b32 v{V_L}, 63, v0
    v_readfirstlane_b32 s{S_WAVE}, v{V_T0}
    s_lshr_b32 s{S_G}, s{S_B}, 5
    s_and_b32 s{S_C}, s{S_B}, 31
    v_lshlrev_b32 v{V_L16}, 4, v{V_L}
    v_lshlrev_b32 v{V_T16}, 4, v0
    v_lshlrev_b32 v{V_L8}, 3, v{V_L}
    s_waitcnt lgkmcnt(0)
    s_mov_b32 s{S_O+2}, {8*MB}
    s_mov_b32 s{S_O+3}, 0x00020000
    s_mov_b32 s{S_CST}, 0x3e0293ee
    s_mov_b64 s[{S_MASK}:{S_MASK+1}], 0
    s_lshr_b32 s{S_ROT}, s{S_C}, 1
    s_lshl_b32 s{S_ROT}, s{S_ROT}, 12
    s_mov_b32 s{S_SLOT}, 0
    s_lshl_b32 s{S_T0}, s{S_G}, 3
    s_add_u32 s{S_T0}, s{S_T0}, s{S_WAVE}
    s_lshl_b32 s{S_T0}, s{S_T0}, 18
    s_lshl_b32 s{S_T1}, s{S_C}, 13
    s_add_u32 s{S_T0}, s{S_T0}, s{S_T1}
    s_add_u32 s{S_T0}, s{S_T0}, {WS_O}
    v_lshlrev_b32 v26, 7, v{V_L}
    buffer_load_dword v28, v26, {SRD}, s{S_T0} offen sc1
    buffer_load_dword v30, v26, {SRD}, s{S_T0} offen offset:64 sc1
    s_add_u32 s{S_T0}, s{S_T0}, {MB}
    buffer_load_dword v29, v26, {SRD}, s{S_T0} offen sc1
    buffer_load_dword v31, v26, {SRD}, s{S_T0} offen offset:64 sc1
    s_lshl_b32 s{S_T0}, s{S_B}, 15
    s_add_u32 s{S_T0}, s{S_T0}, {WS_XCH}
    v_lshlrev_b32 v26, 7, v0
    buffer_load_dword v32, v26, {SRD}, s{S_T0} offen sc1
    buffer_load_dword v33, v26, {SRD}, s{S_T0} offen offset:64 sc1
    v_and_b32 v{V_T1}, 15, v{V_L}             ; c
    v_lshrrev_b32 v{V_T2}, 4, v{V_L}          ; g
    v_lshrrev_b32 v{V_T0}, 2, v{V_T1}
    v_lshlrev_b32 v{V_T0}, 1, v{V_T0}
    v_and_b32 v26, 1, v{V_T1}
    v_add_u32 v{V_T0}, v{V_T0}, v26           ; m(c)
    v_lshlrev_b32 v{V_OKM}, 8, v{V_T0}
    v_lshl_add_u32 v{V_OKM}, v{V_T2}, 4, v{V_OKM}
    v_lshlrev_b32 v{V_OOW}, 9, v{V_T2}
    v_lshl_add_u32 v{V_OOW}, v{V_T1}, 4, v{V_OOW}
    v_lshlrev_b32 v26, 2, v{V_T2}
    v_sub_u32 v{BTH}, v{V_T1}, v26
    s_and_b32 s{S_T1}, s{S_WAVE}, 1
    s_lshl_b32 s{S_T1}, s{S_T1}, 4
    v_add_u32 v{V_TH0}, s{S_T1}, v{BTH}
    v_add_u32 v{V_TH1}, -16, v{V_TH0}
    v_mov_b32 v{V_NEG}, 0xff7fffff
    v_mov_b32 v{V_ONE}, 0x3f803f80
    v_mov_b32 v{V_ONE+1}, 0x3f803f80
    v_mov_b32 v{V_ONE+2}, 0x3f803f80
    v_mov_b32 v{V_ONE+3}, 0x3f803f80
    v_bfe_u32 v26, v{V_L}, 1, 2
    v_min_u32 v26, 2, v26
    s_lshl_b32 s{S_T0}, s{S_C}, 8
    s_add_u32 s{S_T0}, s{S_T0}, {WS_FL}
    v_lshlrev_b32 v{V_FGP}, 13, v26
    v_and_b32 v26, 1, v{V_L}
    v_lshl_add_u32 v{V_FGP}, v26, 7, v{V_FGP}
    v_add_u32 v{V_FGP}, s{S_T0}, v{V_FGP}
    v_lshlrev_b32 v{V_FRP}, 7, v26
    s_add_u32 s{S_NEED}, s{S_T0}, {FL_RP * 128}
    v_add_u32 v{V_FRP}, s{S_NEED}, v{V_FRP}
    s_lshl_b32 s{S_T1}, s{S_T1}, 3
    s_add_u32 s{S_T0}, s{S_T0}, s{S_T1}
    s_add_u32 s{S_T0}, s{S_T0}, 8192
    v_mov_b32 v{BFL}, s{S_T0}
    s_mov_b32 vcc_lo, 0xcccccccc
    s_mov_b32 vcc_hi, 0xcccccccc
    v_cndmask_b32 v{BFL}, v{V_FRP}, v{BFL}, vcc
    v_and_b32 v26, 3, v{V_L}
    s_and_b32 s{S_T0}, s{S_C}, 1
    s_lshl_b32 s{S_T0}, s{S_T0}, 2
    s_add_u32 s{S_T0}, s{S_T0}, s{S_WAVE}
    s_lshl_b32 s{S_T0}, s{S_T0}, 2
    s_lshl_b32 s{S_T1}, s{S_G}, 5
    s_add_u32 s{S_T0}, s{S_T0}, s{S_T1}
    v_add_u32 v26, s{S_T0}, v26
    v_lshlrev_b32 v{V_FXF}, 7, v26
    v_add_u32 v{V_FXF}, {WS_FL + FL_XF * 128}, v{V_FXF}
    v_bfrev_b32 v26, 1
    s_lshl_b32 s{S_T0}, s{S_B}, 7
    s_add_u32 s{S_T0}, s{S_T0}, {WS_FL + FL_XF * 128}
    v_mov_b32 v27, s{S_T0}
    s_xor_b32 s{S_T0}, s{S_T0}, 128
    v_mov_b32 v{V_FPF}, s{S_T0}
    v_cmp_eq_u32 vcc, 0, v0
    s_mul_i32 s{S_T0}, s{S_WAVE}, 8704
    v_lshrrev_b32 v{V_LW}, 5, v{V_L}
    v_lshl_add_u32 v{V_LW}, v{V_LW}, 5, v{V_L16}
    v_add_u32 v{V_LW}, s{S_T0}, v{V_LW}
    v_cndmask_b32 v{V_FMY}, v26, v27, vcc
    v_lshrrev_b32 v26, 3, v0
    v_and_b32 v27, 7, v0
    v_mul_u32_u24 v{V_LR}, 544, v27
    v_lshl_add_u32 v{V_LR}, v26, 4, v{V_LR}
    s_and_b32 s{S_T0}, s{S_C}, 1
    s_mul_i32 s{S_T0}, s{S_T0}, 4352
    s_xor_b32 s{S_T1}, s{S_T0}, 4352
    v_add_u32 v{V_LR2}, s{S_T1}, v{V_LR}
    v_add_u32 v{V_LR}, s{S_T0}, v{V_LR}
    v_lshlrev_b32 v{V_OUT}, 12, v26
    v_and_b32 v27, 7, v0
    v_lshl_add_u32 v{V_OUT}, v27, 3, v{V_OUT}
    s_lshl_b32 s{S_T0}, s{S_C}, 6
    v_add_u32 v{V_OUT}, s{S_T0}, v{V_OUT}
    s_barrier
    """)
    if stamp: stamp()
    for g, mk in enumerate(schedule(**opt["sched"])):
        a(f"""
        s_cmp_eq_u32 s{S_G}, {g}
        s_cselect_b32 s{S_MASK}, {hex(mk & 0xffffffff)}, s{S_MASK}
        s_cselect_b32 s{S_MASK+1}, {hex(mk >> 32)}, s{S_MASK+1}
        """)
    a(f"""
    s_ff1_i32_b64 s{S_SEG}, s[{S_MASK}:{S_MASK+1}]
    s_cmp_ge_u32 s{S_SEG}, 64
    s_cbranch_scc1 {name}_fin
    {name}_gp:
    """)
    poll_guard(40)
    a(f"""
    buffer_load_dword v{V_T0}, v{V_FGP}, {SRD}, 0 offen sc1
    s_waitcnt vmcnt(0)
    v_cmp_gt_u32 vcc, 32, v{V_T0}
    s_and_b32 vcc_lo, vcc_lo, {0xfc if QF else 0xff}
    s_cbranch_scc0 {name}_gk
    s_sleep 8
    s_branch {name}_gp
    {name}_gk:
    """)

    def softmax(regs):
        MX, TM = V_T1, V_T0
        a(f"v_max3_f32 v{MX}, v{regs[0]}, v{regs[1]}, v{regs[2]}")
        rest = regs[3:-1]
        while rest:
            a(f"v_max3_f32 v{MX}, v{MX}, v{rest[0]}, v{rest[1]}"); rest = rest[2:]
        a(f"""
        v_max_f32 v{TM}, v{MX}, v{regs[-1]}
        v_max_f32 v{MX}, v{MX}, v{regs[-1]}
        s_nop 1
        v_permlane16_swap_b32 v{MX}, v{TM}
        v_max_f32 v{MX}, v{MX}, v{TM}
        v_max_f32 v{TM}, v{MX}, v{TM}
        s_nop 1
        v_permlane32_swap_b32 v{MX}, v{TM}
        v_max_f32 v{MX}, v{MX}, v{TM}
        v_mul_f32 v{MX}, s{S_CST}, v{MX}
        """)
        for r in regs: a(f"v_fma_f32 v{r}, v{r}, s{S_CST}, -v{MX}")
        for r in regs: a(f"v_exp_f32 v{r}, v{r}")
        a("s_nop 0")

    def pv(nt):
        a(f"v_cvt_pk_bf16_f32 v{BP+4}, v{BS+8}, v{BS+9}\nv_cvt_pk_bf16_f32 v{BP+5}, v{BS+8}, v{BS+9}")
        a(f"v_mfma_f32_16x16x32_bf16 v[{BSM}:{BSM+3}], v[{V_ONE}:{V_ONE+3}], v[{BP}:{BP+3}], 0")
        for i in range(nt):
            a(f"v_mfma_f32_16x16x32_bf16 v[{BO+4*i}:{BO+4*i+3}], v[{BV+4*i}:{BV+4*i+3}], v[{BP}:{BP+3}], 0")
        a.nops(max(0, 6 - nt))
        a(f"v_mfma_f32_16x16x16_bf16 v[{BSM}:{BSM+3}], v[{BP+6}:{BP+7}], v[{BP+4}:{BP+5}], v[{BSM}:{BSM+3}]")
        for i in range(nt):
            a(f"v_mfma_f32_16x16x16_bf16 v[{BO+4*i}:{BO+4*i+3}], v[{BVM+2*i}:{BVM+2*i+1}], v[{BP+4}:{BP+5}], v[{BO+4*i}:{BO+4*i+3}]")
        a.nops(8 - nt)
        a(f"v_rcp_f32 v{BSM}, v{BSM}")
        a.nops(2)
        for i in range(2 * nt):
            a(f"v_pk_mul_f32 v[{BO+2*i}:{BO+2*i+1}], v[{BO+2*i}:{BO+2*i+1}], v[{BSM}:{BSM+1}] op_sel_hi:[1,0]")
        for i in range(2 * nt):
            a(f"v_cvt_pk_bf16_f32 v{BOB+i}, v{BO+2*i}, v{BO+2*i+1}")

    def baddr():
        a(f"""
        s_add_u32 s{S_NEED}, s{S_SEG}, s{S_WAVE}
        s_lshl_b32 s{S_QO}, s{S_NEED}, 18
        s_lshl_b32 s{S_T0}, s{S_C}, 13
        s_add_u32 s{S_QO}, s{S_QO}, s{S_T0}
        s_lshr_b32 s{S_T0}, s{S_NEED}, 1
        s_add_u32 s{S_T0}, s{S_T0}, {32 if QF else 0}
        v_mov_b32 v{BND}, s{S_NEED}
        v_mov_b32 v{V_T0}, s{S_T0}
        s_mov_b32 vcc_lo, 0xcccccccc
        s_mov_b32 vcc_hi, 0xcccccccc
        v_cndmask_b32 v{BND}, v{BND}, v{V_T0}, vcc
        """)
    BL = []
    for base, reg in ((WS_QX, BQ), (WS_KX, BK), (WS_VT, BV)):
        for i in range(8):
            BL.append((base + (i >> 2) * 4096, f"buffer_load_dwordx4 v[{reg+4*i}:{reg+4*i+3}], v{V_L16}, {SRD}, s{S_T1} offen offset:{(i & 3) * 1024}"))
    for u in range(4):
        BL.append((WS_KVM, f"buffer_load_dwordx4 v[{BKM+4*u}:{BKM+4*u+3}], v{V_OKM}, {SRD}, s{S_T1} offen offset:{64*u} sc1"))
    for i in range(8):
        BL.append((WS_KVM + 2048, f"buffer_load_dwordx2 v[{BVM+2*i}:{BVM+2*i+1}], v{V_L8}, {SRD}, s{S_T1} offen offset:{512*(i >> 1) + 2048*(i & 1)} sc1"))
    def bloads(part):
        cur = None
        for base, l in part:
            if base != cur:
                a(f"s_add_u32 s{S_T1}, s{S_QO}, {base}"); cur = base
            a(l)

    def owaddr(perwave):
        a(f"""
        s_lshl_b32 s{S_OW}, s{S_G}, 3
        s_add_u32 s{S_OW}, s{S_OW}, s{S_SLOT}
        {f"s_add_u32 s{S_OW}, s{S_OW}, s{S_WAVE}" if perwave else ""}
        s_lshl_b32 s{S_OW}, s{S_OW}, 18
        s_add_u32 s{S_OW}, s{S_OW}, {WS_O}
        s_lshl_b32 s{S_T0}, s{S_C}, 13
        s_add_u32 s{S_OW}, s{S_OW}, s{S_T0}
        v_mov_b32 v{BP+6}, v{V_ONE}
        v_mov_b32 v{BP+7}, 0
        """)

    a.label(f"{name}_job")
    a(f"s_cmp_ge_u32 s{S_SEG}, {SB}\ns_cbranch_scc1 {name}_single")
    baddr()
    a.label(f"{name}_btop")
    poll_guard(46)
    a(f"""
    buffer_load_dword v{V_T0}, v{BFL}, {SRD}, 0 offen sc1
    s_waitcnt vmcnt(0)
    v_cmp_ge_u32 vcc, v{BND}, v{V_T0}
    s_cbranch_vccz {name}_bk
    s_sleep 8
    s_branch {name}_btop
    {name}_bk:
    """)
    bloads(BL)
    a.label(f"{name}_batt")
    owaddr(True)
    a(f"s_add_u32 s{S_KO}, s{S_OW}, 4096\ns_mov_b32 s{S_N}, 4\ns_waitcnt vmcnt(0)")
    if stamp and opt.get("bst"): stamp()
    for i in range(4):
        a(f"v_swap_b32 v{BVM+4*i+1}, v{BVM+4*i+2}")
    for qt in range(2):
        tiles = [0, 2] if qt == 0 else [0, 1, 2]
        for u in range(4):
            q = BQ + 8 * u + 4 * qt
            for t in tiles:
                d = BS + 4 * t
                k = BK + 8 * u + 4 * t if t < 2 else BKM + 4 * u
                c = "0" if u == 0 else f"v[{d}:{d+3}]"
                a(f"v_mfma_f32_16x16x32_bf16 v[{d}:{d+3}], v[{k}:{k+3}], v[{q}:{q+3}], {c}")
        a.nops(6)
        for r in range(4):
            a(f"v_cmp_gt_i32 vcc, {r}, v{BTH}")
            a("s_nop 1")
            a(f"v_cndmask_b32 v{BS+4*qt+r}, v{BS+4*qt+r}, v{V_NEG}, vcc")
        softmax([BS + i for i in range(4 * (qt + 1))] + [BS + 8, BS + 9])
        for i in range(2 * (qt + 1)):
            a(f"v_cvt_pk_bf16_f32 v{BP+i}, v{BS+2*i}, v{BS+2*i+1}")
        if qt == 0: a(f"v_mov_b32 v{BP+2}, 0\nv_mov_b32 v{BP+3}, 0")
        pv(8)
        st2([f"buffer_store_dwordx4 v[{BOB+4*i}:{BOB+4*i+3}], v{V_OOW}, {SRD}, s{S_OW if i < 2 else S_KO} offen offset:{(i & 1) * 2048 + qt * 256}" for i in range(4)])
    a(f"s_branch {name}_pub")

    a.label(f"{name}_single")
    if QF:
        a.label(f"{name}_gq")
        poll_guard(48)
        a(f"""
        buffer_load_dword v{V_T0}, v{V_FGP}, {SRD}, 0 offen sc1
        s_waitcnt vmcnt(0)
        v_cmp_ne_u32 vcc, 64, v{V_T0}
        s_and_b32 vcc_lo, vcc_lo, 0xc
        s_cbranch_scc0 {name}_gqd
        s_sleep 8
        s_branch {name}_gq
        {name}_gqd:
        """)
    a(f"""
    s_lshl_b32 s{S_KO}, s{S_SEG}, 18
    s_lshl_b32 s{S_T0}, s{S_C}, 13
    s_add_u32 s{S_KO}, s{S_KO}, s{S_T0}
    s_add_u32 s{S_MO}, s{S_KO}, {WS_KVM}
    s_and_b32 s{S_T0}, s{S_WAVE}, 1
    s_lshl_b32 s{S_T0}, s{S_T0}, 10
    s_add_u32 s{S_QO}, s{S_KO}, s{S_T0}
    s_add_u32 s{S_QO}, s{S_QO}, {WS_QX}
    s_lshr_b32 s{S_T0}, s{S_WAVE}, 1
    s_lshl_b32 s{S_T0}, s{S_T0}, 12
    s_add_u32 s{S_VO}, s{S_KO}, s{S_T0}
    s_add_u32 s{S_VO}, s{S_VO}, {WS_VT}
    s_add_u32 s{S_KO}, s{S_KO}, {WS_KX}
    s_add_u32 s{S_QO2}, s{S_QO}, 4096
    s_add_u32 s{S_KO2}, s{S_KO}, 4096
    """)
    for u in range(4):
        a(f"buffer_load_dwordx4 v[{BQ+4*u}:{BQ+4*u+3}], v{V_L16}, {SRD}, s{S_QO if u < 2 else S_QO2} offen offset:{(u & 1) * 2048}")
    for i in range(8):
        a(f"buffer_load_dwordx4 v[{BK+4*i}:{BK+4*i+3}], v{V_L16}, {SRD}, s{S_KO if i < 4 else S_KO2} offen offset:{(i & 3) * 1024}")
    for i in range(4):
        a(f"buffer_load_dwordx4 v[{BV+4*i}:{BV+4*i+3}], v{V_L16}, {SRD}, s{S_VO} offen offset:{i * 1024}")
    owaddr(False)
    a(f"""
    s_lshr_b32 s{S_T0}, s{S_WAVE}, 1
    s_lshl_b32 s{S_T1}, s{S_T0}, 12
    s_add_u32 s{S_OW}, s{S_OW}, s{S_T1}
    s_lshl_b32 s{S_T0}, s{S_T0}, 10
    s_add_u32 s{S_VO}, s{S_MO}, s{S_T0}
    s_add_u32 s{S_VO}, s{S_VO}, 2048
    s_and_b32 s{S_T0}, s{S_WAVE}, 1
    s_lshl_b32 s{S_T0}, s{S_T0}, 8
    s_add_u32 s{S_OW}, s{S_OW}, s{S_T0}
    s_mov_b32 s{S_N}, 1
    s_waitcnt vmcnt(0)
    """)
    for u in range(4):
        for kt in range(2):
            d = BS + 4 * kt
            c = "0" if u == 0 else f"v[{d}:{d+3}]"
            k = BK + 8 * u + 4 * kt
            a(f"v_mfma_f32_16x16x32_bf16 v[{d}:{d+3}], v[{k}:{k+3}], v[{BQ+4*u}:{BQ+4*u+3}], {c}")
    a.nops(6)
    for kt, th in ((0, V_TH0), (1, V_TH1)):
        for r in range(4):
            a(f"v_cmp_gt_i32 vcc, {r}, v{th}")
            a("s_nop 1")
            a(f"v_cndmask_b32 v{BS+4*kt+r}, v{BS+4*kt+r}, v{V_NEG}, vcc")
    a(f"s_cmp_ge_u32 s{S_SEG}, 63\ns_cbranch_scc1 {name}_dx")
    a.label(f"{name}_rp")
    poll_guard(41)
    a(f"""
    buffer_load_dword v{V_T0}, v{V_FRP}, {SRD}, 0 offen sc1
    s_waitcnt vmcnt(0)
    v_cmp_ge_u32 vcc, s{S_SEG}, v{V_T0}
    s_cbranch_vccz {name}_rk
    s_sleep 2
    s_branch {name}_rp
    {name}_rk:
    """)
    for u in range(4):
        a(f"buffer_load_dwordx4 v[{BKM+4*u}:{BKM+4*u+3}], v{V_OKM}, {SRD}, s{S_MO} offen offset:{64*u} sc1")
    for i in range(4):
        a(f"buffer_load_dwordx2 v[{BVM+2*i}:{BVM+2*i+1}], v{V_L8}, {SRD}, s{S_VO} offen offset:{512*(i >> 1) + 2048*(i & 1)} sc1")
    a.label(f"{name}_rd")
    d = BS + 8
    for u in range(4):
        a(f"s_waitcnt vmcnt({7-u})")
        c = "0" if u == 0 else f"v[{d}:{d+3}]"
        a(f"v_mfma_f32_16x16x32_bf16 v[{d}:{d+3}], v[{BKM+4*u}:{BKM+4*u+3}], v[{BQ+4*u}:{BQ+4*u+3}], {c}")
    a(f"""
    s_waitcnt vmcnt(0)
    v_swap_b32 v{BVM+1}, v{BVM+2}
    v_swap_b32 v{BVM+5}, v{BVM+6}
    s_nop 1
    """)
    softmax([BS + i for i in range(10)])
    for i in range(4):
        a(f"v_cvt_pk_bf16_f32 v{BP+i}, v{BS+2*i}, v{BS+2*i+1}")
    pv(4)
    st2([f"buffer_store_dwordx4 v[{BOB+4*i}:{BOB+4*i+3}], v{V_OOW}, {SRD}, s{S_OW} offen offset:{i * 2048}" for i in range(2)])

    a.label(f"{name}_pub")
    a(f"""
    s_add_u32 s{S_CUR}, s{S_SEG}, s{S_N}
    v_mov_b32 v{V_T1}, s{S_CUR}
    s_waitcnt vmcnt(0)
    s_barrier
    """)
    st2([f"buffer_store_dword v{V_T1}, v{V_FMY}, {SRD}, 0 offen"])
    a(f"""
    s_lshl_b32 s{S_OR}, s{S_G}, 3
    s_add_u32 s{S_OR}, s{S_OR}, s{S_SLOT}
    s_lshl_b32 s{S_OR}, s{S_OR}, 3
    s_and_b32 s{S_T0}, s{S_C}, 1
    s_lshl_b32 s{S_T0}, s{S_T0}, 2
    s_add_u32 s{S_OR}, s{S_OR}, s{S_T0}
    s_add_u32 s{S_OR}, s{S_OR}, s{S_WAVE}
    s_lshl_b32 s{S_OR}, s{S_OR}, 15
    s_add_u32 s{S_OR}, s{S_OR}, {WS_O}
    s_lshl_b32 s{S_XR}, s{S_B}, 3
    s_add_u32 s{S_XR}, s{S_XR}, s{S_SLOT}
    s_lshl_b32 s{S_XR}, s{S_XR}, 12
    s_add_u32 s{S_XR}, s{S_XR}, {WS_XCH}
    s_xor_b32 s{S_XW}, s{S_XR}, 32768
    s_lshl_b32 s{S_OUT}, s{S_SEG}, 17
    s_xor_b32 s{S_SLOT}, s{S_SLOT}, 4
    s_bitset0_b64 s[{S_MASK}:{S_MASK+1}], s{S_SEG}
    s_ff1_i32_b64 s{S_SEG}, s[{S_MASK}:{S_MASK+1}]
    s_min_u32 s{S_SEG}, s{S_SEG}, 64
    s_mov_b32 s{S_I}, 0
    """)
    if stamp and opt.get("bst"): stamp()
    baddr()
    a(f"s_cmp_ge_u32 s{S_SEG}, {SB}\ns_cbranch_scc1 {name}_xp")
    a(f"buffer_load_dword v{V_T2}, v{BFL}, {SRD}, 0 offen sc1")
    a.label(f"{name}_xp")
    poll_guard(47)
    a(f"""
    buffer_load_dword v{V_T0}, v{V_FXF}, {SRD}, 0 offen sc1
    s_waitcnt vmcnt(0)
    v_cmp_gt_u32 vcc, s{S_CUR}, v{V_T0}
    s_cbranch_vccnz {name}_xp
    v_cmp_ge_u32 vcc, v{BND}, v{V_T2}
    s_cmp_eq_u64 vcc, 0
    s_cselect_b32 s{S_RET}, 1, 0
    s_cmp_lt_u32 s{S_SEG}, {SB}
    s_cselect_b32 s{S_RET}, s{S_RET}, 0
    s_cmp_eq_u32 s{S_RET}, 1
    s_cselect_b32 s{S_QO}, s{S_QO}, 0x80000000
    """)
    def proj(n):
        q = []
        extra = list(BL) if n > 1 else []
        def fl(f):
            i = f & 31
            d = BF + 4 * (f % BN)
            if i % 4 == 0:
                if i == 0 and f: a(f"s_add_u32 s{S_OR}, s{S_OR}, {1 << 18}")
                a(f"s_add_u32 s{S_T0}, s{S_ROT}, {i * 1024}")
                a(f"s_and_b32 s{S_T0}, s{S_T0}, 0x7fff")
                a(f"s_add_u32 s{S_T0}, s{S_T0}, s{S_OR}")
            a(f"buffer_load_dwordx4 v[{d}:{d+3}], v{V_L16}, {SRD}, s{S_T0} offen offset:{(i & 3) * 1024} sc1")
            q.append(f)
        for f in range(BPF): fl(f)
        cur = None
        for f in range(32 * n):
            i = f & 31
            a(f"s_waitcnt vmcnt({len(q) - 1 - q.index(f)})")
            d = BF + 4 * (f % BN)
            if i == 0 and f: a("s_waitcnt lgkmcnt(0)")
            for ct in range(2):
                ac = ACC + 16 * ct
                c = "0" if i == 0 else f"v[{ac}:{ac+15}]"
                a(f"v_mfma_f32_32x32x16_bf16 v[{ac}:{ac+15}], a[{8*i+4*ct}:{8*i+4*ct+3}], v[{d}:{d+3}], {c}")
            if f + BPF < 32 * n: fl(f + BPF)
            if extra and f % 3 == 1:
                base, l = extra.pop(0)
                if base != cur:
                    a(f"s_add_u32 s{S_T1}, s{S_QO}, {base}"); cur = base
                a(l); q.append("x")
            if i == 31:
                sgm = f >> 5
                if sgm == 2: a(f"v_add_u32 v{V_T2}, 69632, v{V_LW}")
                a.nops(12)
                for qq in range(8):
                    a(f"ds_write_b128 v{V_LW if sgm < 2 else V_T2}, v[{ACC+4*qq}:{ACC+4*qq+3}] offset:{1088*(qq & 3) + 4352*(qq >> 2) + 34816*(sgm & 1)}")
                if stamp and opt.get("bst") and f == 32 * n - 1: stamp()
        assert not extra
        a(f"""
        v_mov_b32 v{V_T0}, v{V_LR2}
        v_mov_b32 v{V_T1}, s{S_CUR}
        s_waitcnt lgkmcnt(0)
        v_mov_b32 v{V_T2}, v{V_LR}
        s_barrier
        """)
    if stamp and opt.get("bst"): stamp()
    a(f"s_cmp_eq_u32 s{S_N}, 1\ns_cbranch_scc1 {name}_f1")
    def sum4(R, D):
        a(f"""
        v_pk_add_f32 v[{R}:{R+1}], v[{R}:{R+1}], v[{R+4}:{R+5}]
        v_pk_add_f32 v[{R+2}:{R+3}], v[{R+2}:{R+3}], v[{R+6}:{R+7}]
        v_pk_add_f32 v[{R+8}:{R+9}], v[{R+8}:{R+9}], v[{R+12}:{R+13}]
        v_pk_add_f32 v[{R+10}:{R+11}], v[{R+10}:{R+11}], v[{R+14}:{R+15}]
        v_pk_add_f32 v[{D}:{D+1}], v[{R}:{R+1}], v[{R+8}:{R+9}]
        v_pk_add_f32 v[{D+2}:{D+3}], v[{R+2}:{R+3}], v[{R+10}:{R+11}]
        """)
    def fin(n, tag):
        R = BF
        def rd(v, i, dst):
            if i == 2: a(f"v_add_u32 v{v}, 69632, v{v}")
            for w in range(4):
                a(f"ds_read_b128 v[{dst+4*w}:{dst+4*w+3}], v{v} offset:{8704*w + 34816*(i & 1)}")
        for i in range(min(n, 3)): rd(V_T0, i, R + 16 * i)
        for i in range(n):
            a(f"s_waitcnt lgkmcnt({4 * (min(n, i + 3) - i - 1)})")
            sum4(R + 16 * i, R + 16 * i)
            if i + 3 < n: rd(V_T0, i + 3, R + 16 * (i + 3))
        lines = []
        for i in range(n):
            a(f"s_add_u32 s{(S_QO2, S_KO2, S_KO, S_VO)[i]}, s{S_XW}, {4096 * i}")
            lines.append(f"buffer_store_dwordx4 v[{R+16*i}:{R+16*i+3}], v{V_T16}, {SRD}, s{(S_QO2, S_KO2, S_KO, S_VO)[i]} offen")
        st2(lines)
        Q = ACC + 16
        for i in range(n):
            rd(V_T2, i, Q)
            a("s_waitcnt lgkmcnt(0)")
            sum4(Q, KEEP + 4 * i)
        a("s_waitcnt vmcnt(0)\ns_barrier")
        st2([f"buffer_store_dword v{V_T1}, v{V_FMY}, {SRD}, 0 offen offset:64"])
        a.label(f"{name}_pf{tag}")
        poll_guard(49)
        a(f"""
        buffer_load_dword v{V_T0}, v{V_FPF}, {SRD}, 0 offen offset:64 sc1
        s_waitcnt vmcnt(0)
        v_cmp_gt_u32 vcc, s{S_CUR}, v{V_T0}
        s_cbranch_vccnz {name}_pf{tag}
        """)
        for i in range(n):
            a(f"buffer_load_dwordx4 v[{Q+4*i}:{Q+4*i+3}], v{V_T16}, {SRD}, s{S_XR} offen sc1")
            if i < n - 1: a(f"s_add_u32 s{S_XR}, s{S_XR}, 4096")
        for i in range(n):
            r, k = Q + 4 * i, KEEP + 4 * i
            a(f"""
            s_waitcnt vmcnt({n - 1})
            v_pk_add_f32 v[{r}:{r+1}], v[{r}:{r+1}], v[{k}:{k+1}]
            v_pk_add_f32 v[{r+2}:{r+3}], v[{r+2}:{r+3}], v[{k+2}:{k+3}]
            v_cvt_pk_bf16_f32 v{r}, v{r}, v{r+1}
            v_cvt_pk_bf16_f32 v{r+1}, v{r+2}, v{r+3}
            buffer_store_dwordx2 v[{r}:{r+1}], v{V_OUT}, s[{S_O}:{S_O+3}], s{S_OUT} offen
            s_add_u32 s{S_OUT}, s{S_OUT}, {1 << 17}
            """)
    proj(4)
    fin(4, "a")
    a(f"s_branch {name}_f2\n{name}_f1:")
    proj(1)
    fin(1, "b")
    a.label(f"{name}_f2")
    if stamp: stamp()
    a(f"""
    s_cmp_eq_u32 s{S_RET}, 1
    s_cbranch_scc1 {name}_batt
    s_cmp_lt_u32 s{S_SEG}, 64
    s_cbranch_scc1 {name}_job
    s_branch {name}_fin
    """)

    a.label(f"{name}_dx")
    D, SEL, LA, T = BF, BF + 8, BF + 10, BF + 12
    a(f"""
    buffer_load_dword v{V_T0}, off, s[{S_DBG}:{S_DBG+3}], 0 offset:{DBG_VOTE} sc1
    v_and_b32 v{V_T1}, 15, v{V_L}
    v_lshrrev_b32 v{V_T2}, 4, v{V_L}
    v_and_b32 v{SEL}, 1, v{V_T1}
    v_lshlrev_b32 v{SEL}, 4, v{SEL}
    v_mov_b32 v{SEL+1}, 0x3f80
    v_lshlrev_b32 v{SEL+1}, v{SEL}, v{SEL+1}
    v_lshrrev_b32 v{V_T1}, 2, v{V_T1}
    v_cmp_eq_u32 vcc, v{V_T1}, v{V_T2}
    v_mov_b32 v{SEL}, 0
    s_waitcnt vmcnt(0)
    v_cndmask_b32 v{SEL+1}, 0, v{SEL+1}, vcc
    v_readfirstlane_b32 s{S_T0}, v{V_T0}
    s_and_b32 s{S_T1}, s{S_SEG}, 1
    s_lshl_b32 s{S_T1}, s{S_T1}, 20
    s_lshl_b32 s{S_QO}, s{S_C}, 14
    s_add_u32 s{S_QO}, s{S_QO}, s{S_T1}
    s_add_u32 s{S_QO}, s{S_QO}, {WS_XB}
    s_lshr_b32 s{S_T0}, s{S_T0}, 15
    s_cmp_gt_u32 s{S_T0}, s{S_VOTE}
    s_cselect_b32 s{S_T0}, 8192, 0
    s_add_u32 s{S_QO}, s{S_QO}, s{S_T0}
    s_bfe_u32 s{S_T0}, s{S_C}, 0x10001
    s_lshl_b32 s{S_T0}, s{S_T0}, 12
    s_add_u32 s{S_QO}, s{S_QO}, s{S_T0}
    s_add_u32 s{S_QO2}, s{S_QO}, {32 << 14}
    s_lshr_b32 s{S_T0}, s{S_WAVE}, 1
    s_lshl_b32 s{S_T0}, s{S_T0}, 11
    s_xor_b32 s{S_KO}, s{S_QO}, 4096
    s_add_u32 s{S_KO}, s{S_KO}, s{S_T0}
    s_add_u32 s{S_KO2}, s{S_KO}, {32 << 14}
    s_lshl_b32 s{S_T0}, s{S_WAVE}, 10
    s_add_u32 s{S_QO}, s{S_QO}, s{S_T0}
    s_add_u32 s{S_QO2}, s{S_QO2}, s{S_T0}
    v_add_u32 v{LA}, s{S_T0}, v{V_L16}
    {name}_dr:
    """)
    poll_guard(43)
    a(f"""
    buffer_load_dword v{V_T0}, v{V_FRP}, {SRD}, 0 offen sc1
    s_waitcnt vmcnt(0)
    v_cmp_gt_u32 vcc, s{S_SEG}, v{V_T0}
    s_cbranch_vccz {name}_dp
    s_sleep 2
    s_branch {name}_dr
    {name}_dp:
    """)
    poll_guard(44)
    for j in range(2):
        for m in range(2):
            d = D + 4 * j + 2 * m
            a(f"buffer_load_dwordx2 v[{d}:{d+1}], v{V_L8}, {SRD}, s{S_QO if j == 0 else S_QO2} offen offset:{512*m} sc1")
    a("s_waitcnt vmcnt(0)")
    for j in range(2):
        for m in range(2):
            d = D + 4 * j + 2 * m
            t = T + 4 * m
            c = "0" if j == 0 else f"v[{t}:{t+3}]"
            a(f"v_mfma_f32_16x16x16_bf16 v[{t}:{t+3}], v[{d}:{d+1}], v[{SEL}:{SEL+1}], {c}")
    a(f"""
    v_or3_b32 v{V_T0}, v{D}, v{D+2}, v{D+4}
    v_or_b32 v{V_T0}, v{V_T0}, v{D+6}
    v_and_b32 v{V_T0}, 1, v{V_T0}
    v_cmp_ne_u32 vcc, 0, v{V_T0}
    s_nop 3
    s_cbranch_vccnz {name}_dp
    """)
    for i in range(4):
        a(f"v_cvt_pk_bf16_f32 v{D+i}, v{T+2*i}, v{T+2*i+1}")
    a(f"ds_write_b128 v{LA}, v[{D}:{D+3}] offset:40960")
    a("s_waitcnt lgkmcnt(0)\ns_barrier")
    for u in range(4):
        a(f"ds_read_b128 v[{BKM+4*u}:{BKM+4*u+3}], v{V_L16} offset:{40960 + 1024*u}")
    a.label(f"{name}_dv")
    poll_guard(45)
    for i in range(4):
        a(f"buffer_load_dwordx2 v[{BVM+2*i}:{BVM+2*i+1}], v{V_L8}, {SRD}, s{S_KO if (i & 1) == 0 else S_KO2} offen offset:{1024*(i >> 1)} sc1")
    a(f"""
    s_waitcnt vmcnt(0) lgkmcnt(0)
    v_or3_b32 v{V_T0}, v{BVM}, v{BVM+2}, v{BVM+4}
    v_or_b32 v{V_T0}, v{V_T0}, v{BVM+6}
    v_and_b32 v{V_T0}, 1, v{V_T0}
    v_cmp_ne_u32 vcc, 0, v{V_T0}
    s_cbranch_vccnz {name}_dv
    s_branch {name}_rd
    {name}_fin:
    """)
```

```python
import sys, json
from common import *
from gen_rec import DBG_VOTE, global_init, rec_body, S_J, S_H, LDS_REC, WS_FL, WS_XB, WS_PROF
from gen_qkv import qkv_role
from gen_xo import xo_role, WoLoader
import gen_xo2, gen_fft2
from gen_fft import gen_f0, gen_f1, gen_f2, gen_f3

DBG_F1, DBG_F2, DBG_F0 = WS_FL + 448 * 128, WS_FL + 450 * 128, WS_FL + 452 * 128
RECOPT = dict(preC="ack", preA="ack", nl=16, yp=15, xp=(16, 18), vs=17, vbar=1, fsp=4, are=1, f1e=1, f1s=2)


def xlut(order):
    lut = 0
    for logical, c in enumerate(order):
        lut |= logical << (4 * int(c))
    return hex(lut)


DEFOPT = dict(r4=1, qflag=1, wfirst=1, xmap="13024567", sched=dict(start=(999, 999, 122, 122, 75, 75), bdur=11.5, dur=5, sb=52))


def minify(txt, name):
    import re
    out = []
    for l in txt.split("\n"):
        l = l.strip()
        for d in (" neg_lo:[0,0,0]", " neg_hi:[0,0,0]", " neg_lo:[0,0]", " neg_hi:[0,0]", " op_sel:[0,0,0]", " op_sel:[0,0]", " op_sel_hi:[1,1,1]", " op_sel_hi:[1,1]"):
            l = l.replace(d, "")
        l = re.sub(r" offset:0(?= |$)", "", l)
        out.append(l.replace(name + "_", "L_"))
    return "\n".join(out)


def gen_mega(name, **kw):
    opt = dict(DEFOPT) if not kw.get("opt", {}).get("old") else {}
    opt.update(kw.get("opt", {}))
    kw["opt"] = opt
    r = list(gen_mega0(name, **kw))
    r[1] = minify(r[1], name)
    return tuple(r)


def gen_mega0(name, force_slow=False, wd=False, bprof=False, ropt={}, rprof=False, opt={}):
    a = Asm(); a.kernel_begin(name)
    S_W, S_D = 84, 88
    S_B, S_X, S_TK, S_GT, S_VOTE, S_TS, S_WDC = 92, 93, 94, 95, 100, 101, 83
    S_FAST, S_VER, S_WV = 96, 97, 98
    ro = dict(RECOPT); ro.update(ropt)

    def ts(srd=S_W):
        if not bprof: return
        l = a.newlabel(name + "_ts")
        a(f"""
        {'s_memtime' if opt.get('cyc') else 's_memrealtime'} vcc
        s_waitcnt lgkmcnt(0)
        s_mov_b64 exec, 1
        v_accvgpr_read_b32 v255, a255
        v_mov_b32 v255, vcc_lo
        s_nop 0
        buffer_store_dword v255, off, s[{srd}:{srd+3}], s{S_TS}
        s_mov_b64 exec, -1
        s_add_u32 s{S_TS}, s{S_TS}, 4
        """.replace("v_accvgpr_read_b32 v255, a255\n", ""))

    def dmax(idx, srd=S_D, v=135):
        if not opt.get("dbgt"): return
        a(f"""
        s_memrealtime vcc
        s_waitcnt lgkmcnt(0)
        s_mov_b64 exec, 1
        v_mov_b32 v{v}, vcc_lo
        s_nop 0
        buffer_atomic_umax v{v}, off, s[{srd}:{srd+3}], 0 offset:{4*idx} sc1
        s_mov_b64 exec, -1
        """)

    def wdog(code):
        if not wd: return
        a(f"""
        s_add_u32 s{S_WDC}, s{S_WDC}, 1
        s_cmp_gt_u32 s{S_WDC}, 300000
        s_movk_i32 s82, {code}
        s_cbranch_scc1 {name}_wdx
        """)

    a(f"""
    s_cmp_ge_u32 s2, 256
    s_cbranch_scc1 {name}_exit
    s_load_dwordx2 s[{S_W}:{S_W+1}], s[0:1], {KA_WS}
    s_load_dwordx2 s[{S_D}:{S_D+1}], s[0:1], {KA_DBG}
    s_getreg_b32 s{S_X}, hwreg(HW_REG_XCC_ID)
    s_and_b32 s{S_X}, s{S_X}, 7
    s_lshl_b32 s{S_X}, s{S_X}, 2
    s_lshr_b32 s{S_X}, {xlut(opt.get('xmap', '23014567'))}, s{S_X}
    s_and_b32 s{S_X}, s{S_X}, 7
    v_lshrrev_b32 v1, 6, v0
    v_mov_b32 v4, 0
    v_readfirstlane_b32 s80, v1
    v_mov_b32 v5, 0
    v_mov_b32 v6, 0
    v_mov_b32 v7, 0
    s_mov_b32 s{S_WDC}, 0
    s_lshl_b32 s{S_TS}, s2, 2
    s_add_u32 s{S_TS}, s{S_TS}, s80
    s_lshl_b32 s{S_TS}, s{S_TS}, 8
    s_add_u32 s{S_TS}, s{S_TS}, {220*MB}
    s_waitcnt lgkmcnt(0)
    s_mov_b32 s{S_W+2}, {WS_BYTES}
    s_mov_b32 s{S_W+3}, 0x00020000
    s_mov_b32 s{S_D+2}, 256
    s_mov_b32 s{S_D+3}, 0x00020000
    """)
    ts()
    if opt.get("cpf"):
        a(f"""
        s_getpc_b64 s[78:79]
        v_lshlrev_b32 v9, 7, v0
        """)
        for i in range(opt["cpf"]):
            a(f"global_load_dword v{10+i}, v9, s[78:79]")
            a("v_add_u32 v9, 0x8000, v9")
    PX = opt.get("px", 2)
    a(f"""
    s_mov_b32 s{S_WV}, s80
    s_cmp_lg_u32 s80, 0
    s_cbranch_scc1 {name}_st0
    v_mov_b32 v10, 1
    s_lshl_b32 s81, s{S_X}, 5
    s_mov_b64 exec, 1
    buffer_atomic_add v10, off, s[{S_D}:{S_D+3}], s81 offset:4 sc0
    s_lshl_b32 s81, s2, 7
    s_add_u32 s81, s81, {WS_FL}
    s_mov_b64 exec, 15
    v_and_b32 v1, 1, v0
    v_lshlrev_b32 v1, 15, v1
    v_lshrrev_b32 v2, 1, v0
    v_lshl_add_u32 v1, v2, 6, v1
    buffer_store_dword v4, v1, s[{S_W}:{S_W+3}], s81 offen sc1
    s_mov_b64 exec, -1
    {name}_st0:
    """)
    global_init(a, name, S_W)
    a(f"""
    s_cmp_lg_u32 s80, 0
    s_cbranch_scc1 {name}_st1
    s_mov_b64 exec, 1
    s_waitcnt vmcnt(4)
    ds_write_b32 v4, v10
    s_mov_b64 exec, -1
    s_waitcnt lgkmcnt(0)
    {name}_st1:
    s_barrier
    ds_read_b32 v2, v4
    s_waitcnt lgkmcnt(0)
    v_readfirstlane_b32 s{S_TK}, v2
    s_barrier
    s_sub_u32 s81, s{S_X}, {PX}
    s_cmp_ge_u32 s81, 2
    s_cbranch_scc1 {name}_nopr
    s_cmp_lg_u32 s80, 0
    s_cbranch_scc1 {name}_prd
    v_lshlrev_b32 v1, 4, v0
    s_and_b32 s81, s2, 127
    s_lshl_b32 s81, s81, 14
    s_add_u32 s81, s81, {WS_XB}
    s_add_u32 s77, s81, 8192
    buffer_store_dwordx4 v[4:7], v1, s[{S_W}:{S_W+3}], s81 offen sc1
    buffer_store_dwordx4 v[4:7], v1, s[{S_W}:{S_W+3}], s77 offen sc1
    s_waitcnt vmcnt(0)
    s_memtime s[70:71]
    buffer_store_dwordx4 v[4:7], v1, s[{S_W}:{S_W+3}], s81 offen sc1
    s_waitcnt vmcnt(0)
    s_memtime s[72:73]
    buffer_store_dwordx4 v[4:7], v1, s[{S_W}:{S_W+3}], s77 offen sc1
    s_waitcnt vmcnt(0)
    buffer_store_dwordx4 v[4:7], v1, s[{S_W}:{S_W+3}], s77 offen sc1
    s_waitcnt vmcnt(0)
    s_memtime s[74:75]
    buffer_store_dwordx4 v[4:7], v1, s[{S_W}:{S_W+3}], s81 offen sc1
    s_waitcnt vmcnt(0)
    s_memtime s[76:77]
    s_waitcnt lgkmcnt(0)
    s_sub_u32 s76, s76, s74
    s_sub_u32 s74, s74, s72
    s_sub_u32 s72, s72, s70
    s_add_u32 s72, s72, s76
    s_cmp_lt_u32 s74, s72
    s_cselect_b32 s81, 0x10001, 1
    v_mov_b32 v8, s81
    s_mov_b64 exec, 1
    buffer_atomic_add v8, off, s[{S_D}:{S_D+3}], 0 offset:{DBG_VOTE} sc1
    s_mov_b64 exec, -1
    {name}_prd:
    s_barrier
    """)
    for _ in range(opt.get("qdelay", 0)): a("s_sleep 127")
    a(f"""
    {name}_nopr:
    s_mov_b32 s{S_VER}, 0
    s_mov_b32 s{S_VOTE}, 64
    {name}_fast:
    s_mov_b32 s{S_FAST}, 1
    s_mov_b32 s{S_J}, s{S_X}
    s_and_b32 s{S_H}, s{S_TK}, 31
    s_cmp_lt_u32 s{S_X}, 2
    s_cbranch_scc1 {name}_recf
    s_sub_u32 s{S_B}, s{S_X}, 2
    s_lshl_b32 s{S_B}, s{S_B}, 5
    s_add_u32 s{S_B}, s{S_B}, s{S_H}
    s_branch {name}_bulk
    {name}_redo:
    s_waitcnt vmcnt(0) lgkmcnt(0)
    s_barrier
    v_readlane_b32 s{S_VOTE}, v36, {PX}
    v_readlane_b32 s81, v36, {PX + 1}
    s_mov_b32 s{S_VER}, 1
    s_nop 2
    s_add_u32 s{S_VOTE}, s{S_VOTE}, s81
    """)
    a(f"s_mov_b32 s{S_GT}, s{S_TK}")
    for i in range(7):
        a(f"""
        v_readlane_b32 s81, v36, {i}
        s_cmp_gt_u32 s{S_X}, {i}
        s_nop 2
        s_cselect_b32 s81, s81, 0
        s_add_u32 s{S_GT}, s{S_GT}, s81
        """)
    a(f"""
    {name}_slow:
    s_mov_b32 s{S_FAST}, 0
    s_lshr_b32 s{S_J}, s{S_GT}, 5
    s_and_b32 s{S_H}, s{S_GT}, 31
    s_cmp_lt_u32 s{S_GT}, 64
    s_cbranch_scc1 {name}_recs
    s_sub_u32 s{S_B}, s{S_GT}, 64
    s_branch {name}_bulk
    {name}_exit:
    s_endpgm
    """)

    def hook0(n):
        l = a.newlabel(name + "_h0")
        a(f"""
        s_waitcnt vmcnt({n})
        s_barrier
        s_or_b32 s81, s{S_VER}, s{S_WV}
        s_cmp_lg_u32 s81, 0
        s_cbranch_scc1 {l}
        s_lshl_b32 s81, s{S_X}, 5
        v_mov_b32 v38, 1
        s_mov_b64 exec, 1
        buffer_atomic_add v38, off, s[{S_D}:{S_D+3}], s81 sc1
        s_mov_b64 exec, -1
        {l}:
        """)
    def hook1():
        a(f"""
        v_and_b32 v37, 7, v0
        v_lshlrev_b32 v37, 5, v37
        buffer_load_dword v36, v37, s[{S_D}:{S_D+3}], 0 offen sc1
        """)
    def hook2():
        l = a.newlabel(name + "_h2")
        a(f"""
        s_cmp_lg_u32 s{S_VER}, 0
        s_cbranch_scc1 {l}_ok
        {l}_ev:
        v_cmp_ne_u32 vcc, 32, v36
        """)
        if not force_slow: a(f"s_cbranch_vccz {l}_ok")
        a("s_mov_b32 s78, 0")
        for i in range(8):
            a(f"v_readlane_b32 s81, v36, {i}\ns_nop 3\ns_add_u32 s78, s78, s81")
        a(f"""
        s_cmp_eq_u32 s78, 256
        s_cbranch_scc1 {name}_redo
        """)
        wdog(2)
        a(f"""
        buffer_load_dword v36, v37, s[{S_D}:{S_D+3}], 0 offen sc1
        s_waitcnt vmcnt(0)
        s_branch {l}_ev
        {l}_ok:
        s_mov_b32 s{S_VER}, 1
        """)
    hooks = (hook0, hook1, hook2)
    if wd:
        a(f"""
        {name}_wdx:
        s_mov_b64 exec, 1
        v_mov_b32 v1, s82
        s_lshl_b32 s81, s2, 2
        s_add_u32 s81, s81, {WS_PROF + MB + 1024}
        buffer_store_dword v1, off, s[{S_W}:{S_W+3}], s81
        s_endpgm
        """)
    a.label(f"{name}_recf")
    rn = [0]
    def rts():
        if opt.get("dbgt"):
            l = a.newlabel(name + "_rt")
            a(f"s_cmp_lg_u32 s20, 0\ns_cbranch_scc1 {l}")
            dmax(4 + rn[0], 12, 3); rn[0] += 1
            a.label(l)
        if not bprof: return
        a(f"""
        s_memrealtime vcc
        s_waitcnt lgkmcnt(0)
        s_mov_b64 exec, 1
        v_mov_b32 v3, vcc_lo
        s_nop 0
        buffer_store_dword v3, off, s[4:7], s{S_TS}
        s_mov_b64 exec, -1
        s_add_u32 s{S_TS}, s{S_TS}, 4
        """)
    ts()
    rec_body(a, name + "_rf", "", wd=wd, full=True, S_VOTE=S_VOTE, opt=ro, prof=rprof, tstamp=rts, hooks=hooks)
    a.label(f"{name}_recs")
    if opt.get("noslow"): a("s_endpgm")
    else: rec_body(a, name + "_rs", "sc1", wd=wd, full=True, S_VOTE=S_VOTE, opt=RECOPT)

    def signal(off):
        l = a.newlabel(name + "_sg")
        a(f"""
        s_waitcnt vmcnt(0)
        s_barrier
        s_cmp_lg_u32 s{S_WV}, 0
        s_cbranch_scc1 {l}
        v_mov_b32 v2, 1
        s_mov_b32 s81, {off}
        s_mov_b64 exec, 1
        buffer_atomic_add v2, off, s[{S_W}:{S_W+3}], s81 sc1
        s_mov_b64 exec, -1
        {l}:
        """)

    def wait(off, n, tag, allw=False):
        if not allw: a(f"s_cmp_lg_u32 s{S_WV}, 0\ns_cbranch_scc1 {name}_w{tag}d")
        a(f"s_mov_b32 s81, {off}")
        a.label(f"{name}_w{tag}")
        wdog(50)
        a(f"""
        buffer_load_dword v120, off, s[{S_W}:{S_W+3}], s81 sc1
        s_waitcnt vmcnt(0)
        v_cmp_ne_u32 vcc, {n}, v120
        s_cbranch_vccz {name}_w{tag}d
        s_sleep 6
        s_branch {name}_w{tag}
        {name}_w{tag}d:
        """)
    a.label(f"{name}_bulk")
    ts()
    if opt.get("r4"):
        WL = WoLoader(a, name, S_B, S_WV, opt)
        a(f"s_cmp_lt_u32 s{S_B}, 64\ns_cbranch_scc1 {name}_fft")
        qkv_role(a, name + "_q", S_B, S_W, S_D, stamp=ts, opt=opt, hooks=hooks)
        ts()
        a(f"s_branch {name}_wl")
        a.label(f"{name}_fft")
        if opt.get("ct2", 0):
            a(f"""
            s_getpc_b64 s[78:79]
            {name}_ct2:
            v_lshlrev_b32 v205, 6, v0
            """)
            for i in range(5):
                a(f"v_min_u32 v206, {name}_wl - {name}_ct2, v205")
                a(f"global_load_dword v207, v206, s[78:79]")
                a("v_add_u32 v205, 0x4000, v205")
        hook0(0)
        def verify():
            hook1()
            a("s_waitcnt vmcnt(0)")
            hook2()
        verify()
        def twice(tag, body, n=128):
            a(f"s_mov_b32 s99, s{S_B}")
            a.label(f"{name}_{tag}l")
            body()
            a(f"""
            s_add_u32 s99, s99, 64
            s_cmp_lt_u32 s99, {n}
            s_cbranch_scc1 {name}_{tag}l
            """)
        a(f"s_mov_b32 s99, s{S_B}")
        WF = opt.get("wfirst", 0)
        if not WF:
            gen_fft2.gen_f1(a, name + "_f1r", S_B, S_W)
            signal(DBG_F1)
            ts()
        a.label(f"{name}_f2l")
        gen_fft2.gen_w(a, name + "_fw", 99)
        a(f"s_cmp_eq_u32 s99, 64\ns_cbranch_scc1 {name}_f2go")
        ts()
        if WF:
            gen_fft2.gen_f1(a, name + "_f1r", S_B, S_W)
            signal(DBG_F1)
            ts()
        wait(DBG_F1, 64, "f1")
        a.label(f"{name}_f2go")
        gen_fft2.gen_f2(a, name + "_f2", 99, S_W)
        a(f"""
        s_add_u32 s99, s99, 64
        s_cmp_eq_u32 s99, 64
        s_cbranch_scc1 {name}_f2l
        """)
        signal(DBG_F2)
        ts()
        wait(DBG_F2, 64, "f2")
        gen_fft2.gen_f3(a, name + "_f3", S_B, S_W)
        a("s_waitcnt vmcnt(0) lgkmcnt(0)\ns_barrier")
        ts()
        mk = gen_xo2.schedule(**opt["sched"])
        for g in range(2):
            if not mk[g]: a(f"s_lshr_b32 s81, s{S_B}, 5\ns_cmp_lg_u32 s81, {g}\ns_cbranch_scc1 {name}_nx{g}\ns_endpgm\n{name}_nx{g}:")
        a.label(f"{name}_wl")
        gen_xo2.WoLoader(a, name, S_B, S_WV, opt).run()
        gen_xo2.xo_role(a, name + "_x", S_B, S_W, S_FAST, S_D, S_VOTE, wd=wdog if wd else None, opt=opt, stamp=ts)
        a("s_endpgm")
        return (name, a.text(), kd(name, 512, sgpr=102, accum=256), 256, 256, LDS_REC)
    qkv_role(a, name + "_q", S_B, S_W, S_D, stamp=ts, opt=opt, hooks=hooks)
    ts()
    for _ in range(opt.get("bdelay", 0)): a("s_sleep 127")
    WL = WoLoader(a, name, S_B, S_WV, opt)
    WL.setup()
    a(f"""
    s_cmp_lt_u32 s{S_B}, 128
    s_cbranch_scc1 {name}_f1
    """)
    WL.step(0)
    a(f"""
    s_sub_u32 s99, s{S_B}, 128
    {name}_f0l:
    s_barrier
    """)
    gen_f0(a, name + "_f0", role=99, noend=True)
    a(f"""
    s_add_u32 s99, s99, 64
    s_cmp_lt_u32 s99, 288
    s_cbranch_scc1 {name}_f0l
    """)
    signal(DBG_F0)
    ts()
    a(f"""
    s_cmp_lg_u32 s{S_B}, 191
    s_cbranch_scc1 {name}_xo2
    s_cmp_lg_u32 s{S_WV}, 0
    s_cbranch_scc1 {name}_xo2
    """)
    if not opt.get("wl2", 0): WL.step(1)
    wait(DBG_F1, 128, "f1b")
    a(f"""
    s_mov_b32 s99, 128
    s_branch {name}_f2_in
    {name}_f2ret:
    s_waitcnt vmcnt(0)
    v_mov_b32 v2, 1
    s_mov_b64 exec, 1
    s_mov_b32 s81, {DBG_F2}
    buffer_atomic_add v2, off, s[{S_W}:{S_W+3}], s81 sc1
    s_mov_b64 exec, -1
    s_branch {name}_xo3
    {name}_xo2:
    """)
    WL.step(1)
    if opt.get("wl2", 0): a.label(f"{name}_xo3")
    WL.step(2)
    if not opt.get("wl2", 0): a.label(f"{name}_xo3")
    WL.step(3)
    a(f"s_branch {name}_xo4")
    a.label(f"{name}_f1")
    W2 = opt.get("wl2", 0)
    gen_f1(a, name + "_f1r", role=S_B, pre_store=(lambda: WL.step(0)) if not W2 else None, loaded=(lambda: WL.step(0)) if W2 else None)
    signal(DBG_F1)
    ts()
    if not W2: WL.step(1)
    wait(DBG_F1, 128, "f1")
    if opt.get("fstag"):
        a(f"s_lshr_b32 s81, s{S_B}, 5")
        a.label(f"{name}_fs")
        a(f"""
        s_cmp_eq_u32 s81, 0
        s_cbranch_scc1 {name}_fsd
        s_sleep {opt["fstag"]}
        s_sub_u32 s81, s81, 1
        s_branch {name}_fs
        {name}_fsd:
        """)
    a(f"s_mov_b32 s99, s{S_B}")
    gen_f2(a, name + "_f2", role=99, wready=lambda: wait(DBG_F0, 64, "f0", True), mid=lambda: WL.step(1 if W2 else 2), st=ts if opt.get("fst") else None)
    a(f"s_cmp_eq_u32 s99, 128\ns_cbranch_scc1 {name}_f2ret")
    signal(DBG_F2)
    WL.step(2 if W2 else 3)
    ts()
    wait(DBG_F2, 129, "f2")
    gen_f3(a, name + "_f3", role=S_B, ost=opt.get("ost", ""), loaded=(lambda: WL.step(3)) if W2 else None)
    a.label(f"{name}_xo4")
    if opt.get("nox01"): a(f"s_cmp_ge_u32 s{S_B}, 64\ns_cbranch_scc1 {name}_xo5\ns_endpgm\n{name}_xo5:")
    ts()
    WL.step(4)
    xo_role(a, name + "_x", S_B, S_W, S_FAST, S_D, S_VOTE, wd=wdog if wd else None, opt=opt, stamp=ts)
    if opt.get("dbgt"):
        a(f"s_cmp_lg_u32 s{S_WV}, 0\ns_cbranch_scc1 {name}_fin")
        dmax(6)
        a.label(f"{name}_fin")
    a.label(f"{name}_cE")
    a("s_endpgm")
    return (name, a.text(), kd(name, 512, sgpr=102, accum=256), 256, 256, LDS_REC)


if __name__ == "__main__":
    out = sys.argv[1]
    kw = eval(sys.argv[2]) if len(sys.argv) > 2 else {}
    write_file(out, [gen_mega("mega_kernel", **kw)])
```

```python
from common import *
from gen_rec import WS_QX, WS_KX, WS_VT, WS_O, WS_KVM, WS_XB, WS_FL, DBG_VOTE

FL_RP, FL_XF = 192, 256
WS_XCH = 72 * MB


class WoLoader:
    def __init__(self, a, name, S_B, S_WV, opt):
        self.a, self.name, self.S_B, self.S_WV, self.opt = a, name, S_B, S_WV, opt

    def run(self):
        a = self.a
        a(f"""
        s_load_dwordx2 s[52:53], s[0:1], {KA_WO}
        v_and_b32 v202, 63, v0
        v_lshrrev_b32 v200, 3, v202
        v_lshlrev_b32 v200, 11, v200
        v_and_b32 v203, 7, v202
        v_lshl_add_u32 v200, v203, 4, v200
        s_and_b32 s56, s{self.S_B}, 1
        s_lshl_b32 s56, s56, 2
        s_add_u32 s56, s56, s{self.S_WV}
        s_lshl_b32 s56, s56, 20
        s_bfe_u32 s58, s{self.S_B}, 0x40001
        s_lshl_b32 s57, s58, 7
        s_add_u32 s56, s56, s57
        v_add_u32 v200, s56, v200
        s_lshl_b32 s56, s{self.S_WV}, 15
        s_lshl_b32 s57, s58, 12
        v_lshrrev_b32 v201, 5, v202
        v_bfe_u32 v204, v202, 2, 2
        v_lshl_add_u32 v201, v201, 3, v204
        v_lshlrev_b32 v201, 7, v201
        v_bfe_u32 v204, v202, 4, 1
        v_lshl_add_u32 v201, v204, 5, v201
        v_and_b32 v203, 3, v202
        v_lshl_add_u32 v201, v203, 3, v201
        v_add_u32 v201, s56, v201
        s_waitcnt lgkmcnt(0)
        s_mov_b32 s54, {8*MB}
        s_mov_b32 s55, 0x00020000
        """)
        def dma(p):
            a(f"s_add_u32 m0, s56, {(p & 31) * 1024}")
            a(f"s_add_u32 s58, s57, {p * 512}")
            a(f"s_and_b32 s58, s58, 0x7fff")
            a(f"s_lshl_b32 s58, s58, 5")
            a(f"buffer_load_dwordx4 v200, s[52:55], s58 offen lds")
        D = self.opt.get("wdepth", 4)
        for p in range(D): dma(p)
        for k4 in range(16):
            a(f"s_waitcnt vmcnt({min(D - 4, 60 - 4 * k4)})")
            for ks in range(2 * k4, 2 * k4 + 2):
                for ct in range(2):
                    for j in range(2):
                        d = (2 * ks + ct) * 4 + 2 * j
                        a(f"ds_read_b64_tr_b16 a[{d}:{d+1}], v201 offset:{(ks & 15) * 2048 + j * 512 + ct * 64}")
            a("s_waitcnt lgkmcnt(0)")
            for p in range(4 * k4 + D, min(64, 4 * k4 + D + 4)): dma(p)


def schedule(start, dur=3.7, bdur=11.0, sb=48, t0=22.0, step=2.0, fixed={}):
    free = list(start)
    masks = [0] * 6
    for s in list(range(0, sb, 4)) + list(range(sb, 64)):
        g = fixed[s] if s in fixed else min(range(6), key=lambda i: (round(free[i], 3), i))
        free[g] = max(free[g], t0 + step * (s + 3 if s < sb else s)) + (bdur if s < sb else dur)
        masks[g] |= 1 << s
    return masks


def xo_role(a: Asm, name, S_B, S_WS, S_FAST, S_DBG, S_VOTE, wd=None, opt={}, stamp=None):
    S_O = 12
    S_WAVE, S_G, S_C, S_T0, S_T1, S_SEG, S_CST = 16, 17, 18, 20, 21, 22, 24
    S_QO, S_KO, S_VO, S_MO, S_OW, S_OR, S_OUT, S_NEED = 26, 27, 28, 29, 40, 41, 42, 43
    S_CUR, S_RET, S_SLOT, S_QO2, S_KO2, S_ROT, S_QOK, S_N, S_XW, S_XR = 45, 46, 47, 48, 49, 50, 51, 8, 9, 10
    S_MASK = 60
    SRD = f"s[{S_WS}:{S_WS+3}]"
    V_L, V_L16, V_T0, V_T1, V_T2 = 1, 2, 3, 4, 5
    V_OKM, V_L8, V_OOW, V_TH0, V_TH1, V_NEG, V_FGP, V_FRP, V_FXF, V_FMY, V_LR, V_LW, V_OUT, V_T16 = 6, 7, 8, 9, 10, 11, 12, 13, 14, 15, 16, 17, 18, 19
    V_ONE = 20
    BQ, BK, BV, BKM, BVM = 24, 56, 88, 120, 136
    BF, BN, BPF = 152, 12, 10
    ACC, KEEP = 200, 232
    BTH, BFL, BND, V_FPF, V_LR2 = 248, 249, 250, 251, 252
    BO, BOB, BS, BP, BSM = 152, 184, 200, 212, 220
    SB = opt["sched"].get("sb", 48)
    QF = opt.get("qflag", 0)

    def poll_guard(code):
        if wd: wd(code)

    def st2(lines):
        l = a.newlabel(name + "_st")
        a(f"s_cmp_eq_u32 s{S_FAST}, 1\ns_cbranch_scc1 {l}f")
        for x in lines: a(x + " sc1")
        a(f"s_branch {l}d\n{l}f:")
        for x in lines: a(x)
        a.label(f"{l}d")

    a(f"""
    s_load_dwordx2 s[{S_O}:{S_O+1}], s[0:1], {KA_OUT}
    v_lshrrev_b32 v{V_T0}, 6, v0
    v_and_b32 v{V_L}, 63, v0
    v_readfirstlane_b32 s{S_WAVE}, v{V_T0}
    s_lshr_b32 s{S_G}, s{S_B}, 5
    s_and_b32 s{S_C}, s{S_B}, 31
    v_lshlrev_b32 v{V_L16}, 4, v{V_L}
    v_lshlrev_b32 v{V_T16}, 4, v0
    v_lshlrev_b32 v{V_L8}, 3, v{V_L}
    s_waitcnt lgkmcnt(0)
    s_mov_b32 s{S_O+2}, {8*MB}
    s_mov_b32 s{S_O+3}, 0x00020000
    s_mov_b32 s{S_CST}, 0x3e0293ee
    s_mov_b64 s[{S_MASK}:{S_MASK+1}], 0
    s_lshr_b32 s{S_ROT}, s{S_C}, 1
    s_lshl_b32 s{S_ROT}, s{S_ROT}, 12
    s_mov_b32 s{S_SLOT}, 0
    s_mov_b32 s{S_QOK}, {0 if QF else 1}
    s_lshl_b32 s{S_T0}, s{S_G}, 3
    s_add_u32 s{S_T0}, s{S_T0}, s{S_WAVE}
    s_lshl_b32 s{S_T0}, s{S_T0}, 18
    s_lshl_b32 s{S_T1}, s{S_C}, 13
    s_add_u32 s{S_T0}, s{S_T0}, s{S_T1}
    s_add_u32 s{S_T0}, s{S_T0}, {WS_O}
    v_lshlrev_b32 v26, 7, v{V_L}
    buffer_load_dword v28, v26, {SRD}, s{S_T0} offen sc1
    buffer_load_dword v30, v26, {SRD}, s{S_T0} offen offset:64 sc1
    s_add_u32 s{S_T0}, s{S_T0}, {MB}
    buffer_load_dword v29, v26, {SRD}, s{S_T0} offen sc1
    buffer_load_dword v31, v26, {SRD}, s{S_T0} offen offset:64 sc1
    s_lshl_b32 s{S_T0}, s{S_B}, 15
    s_add_u32 s{S_T0}, s{S_T0}, {WS_XCH}
    v_lshlrev_b32 v26, 7, v0
    buffer_load_dword v32, v26, {SRD}, s{S_T0} offen sc1
    buffer_load_dword v33, v26, {SRD}, s{S_T0} offen offset:64 sc1
    v_and_b32 v{V_T1}, 15, v{V_L}             ; c
    v_lshrrev_b32 v{V_T2}, 4, v{V_L}          ; g
    v_lshrrev_b32 v{V_T0}, 2, v{V_T1}
    v_lshlrev_b32 v{V_T0}, 1, v{V_T0}
    v_and_b32 v26, 1, v{V_T1}
    v_add_u32 v{V_T0}, v{V_T0}, v26           ; m(c)
    v_lshlrev_b32 v{V_OKM}, 8, v{V_T0}
    v_lshl_add_u32 v{V_OKM}, v{V_T2}, 4, v{V_OKM}
    v_lshlrev_b32 v{V_OOW}, 9, v{V_T2}
    v_lshl_add_u32 v{V_OOW}, v{V_T1}, 4, v{V_OOW}
    v_lshlrev_b32 v26, 2, v{V_T2}
    v_sub_u32 v{BTH}, v{V_T1}, v26
    s_and_b32 s{S_T1}, s{S_WAVE}, 1
    s_lshl_b32 s{S_T1}, s{S_T1}, 4
    v_add_u32 v{V_TH0}, s{S_T1}, v{BTH}
    v_add_u32 v{V_TH1}, -16, v{V_TH0}
    v_mov_b32 v{V_NEG}, 0xff7fffff
    v_mov_b32 v{V_ONE}, 0x3f803f80
    v_mov_b32 v{V_ONE+1}, 0x3f803f80
    v_mov_b32 v{V_ONE+2}, 0x3f803f80
    v_mov_b32 v{V_ONE+3}, 0x3f803f80
    v_bfe_u32 v26, v{V_L}, 1, 2
    v_min_u32 v26, 2, v26
    s_lshl_b32 s{S_T0}, s{S_C}, 8
    s_add_u32 s{S_T0}, s{S_T0}, {WS_FL}
    v_lshlrev_b32 v{V_FGP}, 13, v26
    v_and_b32 v26, 1, v{V_L}
    v_lshl_add_u32 v{V_FGP}, v26, 7, v{V_FGP}
    v_add_u32 v{V_FGP}, s{S_T0}, v{V_FGP}
    v_lshlrev_b32 v{V_FRP}, 7, v26
    s_add_u32 s{S_NEED}, s{S_T0}, {FL_RP * 128}
    v_add_u32 v{V_FRP}, s{S_NEED}, v{V_FRP}
    s_lshl_b32 s{S_T1}, s{S_T1}, 3
    s_add_u32 s{S_T0}, s{S_T0}, s{S_T1}
    s_add_u32 s{S_T0}, s{S_T0}, 8192
    v_mov_b32 v{BFL}, s{S_T0}
    s_mov_b32 vcc_lo, 0xcccccccc
    s_mov_b32 vcc_hi, 0xcccccccc
    v_cndmask_b32 v{BFL}, v{V_FRP}, v{BFL}, vcc
    v_and_b32 v26, 3, v{V_L}
    s_and_b32 s{S_T0}, s{S_C}, 1
    s_lshl_b32 s{S_T0}, s{S_T0}, 2
    s_add_u32 s{S_T0}, s{S_T0}, s{S_WAVE}
    s_lshl_b32 s{S_T0}, s{S_T0}, 2
    s_lshl_b32 s{S_T1}, s{S_G}, 5
    s_add_u32 s{S_T0}, s{S_T0}, s{S_T1}
    v_add_u32 v26, s{S_T0}, v26
    v_lshlrev_b32 v{V_FXF}, 7, v26
    v_add_u32 v{V_FXF}, {WS_FL + FL_XF * 128}, v{V_FXF}
    v_bfrev_b32 v26, 1
    s_lshl_b32 s{S_T0}, s{S_B}, 7
    s_add_u32 s{S_T0}, s{S_T0}, {WS_FL + FL_XF * 128}
    v_mov_b32 v27, s{S_T0}
    s_xor_b32 s{S_T0}, s{S_T0}, 128
    v_mov_b32 v{V_FPF}, s{S_T0}
    v_cmp_eq_u32 vcc, 0, v0
    s_mul_i32 s{S_T0}, s{S_WAVE}, 8704
    v_lshrrev_b32 v{V_LW}, 5, v{V_L}
    v_lshl_add_u32 v{V_LW}, v{V_LW}, 5, v{V_L16}
    v_add_u32 v{V_LW}, s{S_T0}, v{V_LW}
    v_cndmask_b32 v{V_FMY}, v26, v27, vcc
    v_lshrrev_b32 v26, 3, v0
    v_and_b32 v27, 7, v0
    v_mul_u32_u24 v{V_LR}, 544, v27
    v_lshl_add_u32 v{V_LR}, v26, 4, v{V_LR}
    s_and_b32 s{S_T0}, s{S_C}, 1
    s_mul_i32 s{S_T0}, s{S_T0}, 4352
    s_xor_b32 s{S_T1}, s{S_T0}, 4352
    v_add_u32 v{V_LR2}, s{S_T1}, v{V_LR}
    v_add_u32 v{V_LR}, s{S_T0}, v{V_LR}
    v_lshlrev_b32 v{V_OUT}, 12, v26
    v_and_b32 v27, 7, v0
    v_lshl_add_u32 v{V_OUT}, v27, 3, v{V_OUT}
    s_lshl_b32 s{S_T0}, s{S_C}, 6
    v_add_u32 v{V_OUT}, s{S_T0}, v{V_OUT}
    s_barrier
    """)
    if stamp: stamp()
    for g, mk in enumerate(schedule(**opt["sched"])):
        a(f"""
        s_cmp_eq_u32 s{S_G}, {g}
        s_cselect_b32 s{S_MASK}, {hex(mk & 0xffffffff)}, s{S_MASK}
        s_cselect_b32 s{S_MASK+1}, {hex(mk >> 32)}, s{S_MASK+1}
        """)
    a(f"""
    s_ff1_i32_b64 s{S_SEG}, s[{S_MASK}:{S_MASK+1}]
    s_cmp_ge_u32 s{S_SEG}, 64
    s_cbranch_scc1 {name}_fin
    {name}_gp:
    """)
    poll_guard(40)
    a(f"""
    buffer_load_dword v{V_T0}, v{V_FGP}, {SRD}, 0 offen sc1
    s_waitcnt vmcnt(0)
    v_cmp_gt_u32 vcc, 32, v{V_T0}
    s_and_b32 vcc_lo, vcc_lo, {0xfc if QF else 0xff}
    s_cbranch_scc0 {name}_gk
    s_sleep 8
    s_branch {name}_gp
    {name}_gk:
    """)

    def softmax(regs):
        MX, TM = V_T1, V_T0
        a(f"v_max3_f32 v{MX}, v{regs[0]}, v{regs[1]}, v{regs[2]}")
        rest = regs[3:-1]
        while rest:
            a(f"v_max3_f32 v{MX}, v{MX}, v{rest[0]}, v{rest[1]}"); rest = rest[2:]
        a(f"""
        v_max_f32 v{TM}, v{MX}, v{regs[-1]}
        v_max_f32 v{MX}, v{MX}, v{regs[-1]}
        s_nop 1
        v_permlane16_swap_b32 v{MX}, v{TM}
        v_max_f32 v{MX}, v{MX}, v{TM}
        v_max_f32 v{TM}, v{MX}, v{TM}
        s_nop 1
        v_permlane32_swap_b32 v{MX}, v{TM}
        v_max_f32 v{MX}, v{MX}, v{TM}
        v_mul_f32 v{MX}, s{S_CST}, v{MX}
        """)
        for r in regs: a(f"v_fma_f32 v{r}, v{r}, s{S_CST}, -v{MX}")
        for r in regs: a(f"v_exp_f32 v{r}, v{r}")
        a("s_nop 0")

    def pv(nt):
        a(f"v_cvt_pk_bf16_f32 v{BP+4}, v{BS+8}, v{BS+9}\nv_cvt_pk_bf16_f32 v{BP+5}, v{BS+8}, v{BS+9}")
        a(f"v_mfma_f32_16x16x32_bf16 v[{BSM}:{BSM+3}], v[{V_ONE}:{V_ONE+3}], v[{BP}:{BP+3}], 0")
        for i in range(nt):
            a(f"v_mfma_f32_16x16x32_bf16 v[{BO+4*i}:{BO+4*i+3}], v[{BV+4*i}:{BV+4*i+3}], v[{BP}:{BP+3}], 0")
        a.nops(max(0, 6 - nt))
        a(f"v_mfma_f32_16x16x16_bf16 v[{BSM}:{BSM+3}], v[{BP+6}:{BP+7}], v[{BP+4}:{BP+5}], v[{BSM}:{BSM+3}]")
        for i in range(nt):
            a(f"v_mfma_f32_16x16x16_bf16 v[{BO+4*i}:{BO+4*i+3}], v[{BVM+2*i}:{BVM+2*i+1}], v[{BP+4}:{BP+5}], v[{BO+4*i}:{BO+4*i+3}]")
        a.nops(8 - nt)
        a(f"v_rcp_f32 v{BSM}, v{BSM}")
        a.nops(2)
        for i in range(2 * nt):
            a(f"v_pk_mul_f32 v[{BO+2*i}:{BO+2*i+1}], v[{BO+2*i}:{BO+2*i+1}], v[{BSM}:{BSM+1}] op_sel_hi:[1,0]")
        for i in range(2 * nt):
            a(f"v_cvt_pk_bf16_f32 v{BOB+i}, v{BO+2*i}, v{BO+2*i+1}")

    def baddr():
        a(f"""
        s_add_u32 s{S_NEED}, s{S_SEG}, s{S_WAVE}
        s_lshl_b32 s{S_QO}, s{S_NEED}, 18
        s_lshl_b32 s{S_T0}, s{S_C}, 13
        s_add_u32 s{S_QO}, s{S_QO}, s{S_T0}
        s_lshr_b32 s{S_T0}, s{S_NEED}, 1
        s_add_u32 s{S_T0}, s{S_T0}, {32 if QF else 0}
        v_mov_b32 v{BND}, s{S_NEED}
        v_mov_b32 v{V_T0}, s{S_T0}
        s_mov_b32 vcc_lo, 0xcccccccc
        s_mov_b32 vcc_hi, 0xcccccccc
        v_cndmask_b32 v{BND}, v{BND}, v{V_T0}, vcc
        """)
    BL = []
    for base, reg in ((WS_QX, BQ), (WS_KX, BK), (WS_VT, BV)):
        for i in range(8):
            BL.append((base + (i >> 2) * 4096, f"buffer_load_dwordx4 v[{reg+4*i}:{reg+4*i+3}], v{V_L16}, {SRD}, s{S_T1} offen offset:{(i & 3) * 1024}"))
    for u in range(4):
        BL.append((WS_KVM, f"buffer_load_dwordx4 v[{BKM+4*u}:{BKM+4*u+3}], v{V_OKM}, {SRD}, s{S_T1} offen offset:{64*u} sc1"))
    for i in range(8):
        BL.append((WS_KVM + 2048, f"buffer_load_dwordx2 v[{BVM+2*i}:{BVM+2*i+1}], v{V_L8}, {SRD}, s{S_T1} offen offset:{512*(i >> 1) + 2048*(i & 1)} sc1"))
    def bloads(part):
        cur = None
        for base, l in part:
            if base != cur:
                a(f"s_add_u32 s{S_T1}, s{S_QO}, {base}"); cur = base
            a(l)

    def owaddr(perwave):
        a(f"""
        s_lshl_b32 s{S_OW}, s{S_G}, 3
        s_add_u32 s{S_OW}, s{S_OW}, s{S_SLOT}
        {f"s_add_u32 s{S_OW}, s{S_OW}, s{S_WAVE}" if perwave else ""}
        s_lshl_b32 s{S_OW}, s{S_OW}, 18
        s_add_u32 s{S_OW}, s{S_OW}, {WS_O}
        s_lshl_b32 s{S_T0}, s{S_C}, 13
        s_add_u32 s{S_OW}, s{S_OW}, s{S_T0}
        v_mov_b32 v{BP+6}, v{V_ONE}
        v_mov_b32 v{BP+7}, 0
        """)

    a.label(f"{name}_job")
    a(f"s_cmp_ge_u32 s{S_SEG}, {SB}\ns_cbranch_scc1 {name}_single")
    baddr()
    a.label(f"{name}_btop")
    poll_guard(46)
    a(f"""
    buffer_load_dword v{V_T0}, v{BFL}, {SRD}, 0 offen sc1
    s_waitcnt vmcnt(0)
    v_cmp_ge_u32 vcc, v{BND}, v{V_T0}
    s_cbranch_vccz {name}_bk
    s_sleep 8
    s_branch {name}_btop
    {name}_bk:
    """)
    bloads(BL)
    a.label(f"{name}_batt")
    owaddr(True)
    a(f"s_add_u32 s{S_KO}, s{S_OW}, 4096\ns_mov_b32 s{S_N}, 4\ns_waitcnt vmcnt(0)")
    if stamp and opt.get("bst"): stamp()
    for i in range(4):
        a(f"v_swap_b32 v{BVM+4*i+1}, v{BVM+4*i+2}")
    for qt in range(2):
        tiles = [0, 2] if qt == 0 else [0, 1, 2]
        for u in range(4):
            q = BQ + 8 * u + 4 * qt
            for t in tiles:
                d = BS + 4 * t
                k = BK + 8 * u + 4 * t if t < 2 else BKM + 4 * u
                c = "0" if u == 0 else f"v[{d}:{d+3}]"
                a(f"v_mfma_f32_16x16x32_bf16 v[{d}:{d+3}], v[{k}:{k+3}], v[{q}:{q+3}], {c}")
        a.nops(6)
        for r in range(4):
            a(f"v_cmp_gt_i32 vcc, {r}, v{BTH}")
            a("s_nop 1")
            a(f"v_cndmask_b32 v{BS+4*qt+r}, v{BS+4*qt+r}, v{V_NEG}, vcc")
        softmax([BS + i for i in range(4 * (qt + 1))] + [BS + 8, BS + 9])
        for i in range(2 * (qt + 1)):
            a(f"v_cvt_pk_bf16_f32 v{BP+i}, v{BS+2*i}, v{BS+2*i+1}")
        if qt == 0: a(f"v_mov_b32 v{BP+2}, 0\nv_mov_b32 v{BP+3}, 0")
        pv(8)
        st2([f"buffer_store_dwordx4 v[{BOB+4*i}:{BOB+4*i+3}], v{V_OOW}, {SRD}, s{S_OW if i < 2 else S_KO} offen offset:{(i & 1) * 2048 + qt * 256}" for i in range(4)])
    a(f"s_branch {name}_pub")

    def sloads():
        a(f"""
        s_lshl_b32 s{S_KO}, s{S_SEG}, 18
        s_lshl_b32 s{S_T0}, s{S_C}, 13
        s_add_u32 s{S_KO}, s{S_KO}, s{S_T0}
        s_add_u32 s{S_MO}, s{S_KO}, {WS_KVM}
        s_and_b32 s{S_T0}, s{S_WAVE}, 1
        s_lshl_b32 s{S_T0}, s{S_T0}, 10
        s_add_u32 s{S_QO}, s{S_KO}, s{S_T0}
        s_add_u32 s{S_QO}, s{S_QO}, {WS_QX}
        s_lshr_b32 s{S_T0}, s{S_WAVE}, 1
        s_lshl_b32 s{S_T0}, s{S_T0}, 12
        s_add_u32 s{S_VO}, s{S_KO}, s{S_T0}
        s_add_u32 s{S_VO}, s{S_VO}, {WS_VT}
        s_add_u32 s{S_KO}, s{S_KO}, {WS_KX}
        s_add_u32 s{S_QO2}, s{S_QO}, 4096
        s_add_u32 s{S_KO2}, s{S_KO}, 4096
        """)
        for u in range(4):
            a(f"buffer_load_dwordx4 v[{BQ+4*u}:{BQ+4*u+3}], v{V_L16}, {SRD}, s{S_QO if u < 2 else S_QO2} offen offset:{(u & 1) * 2048}")
        for i in range(8):
            a(f"buffer_load_dwordx4 v[{BK+4*i}:{BK+4*i+3}], v{V_L16}, {SRD}, s{S_KO if i < 4 else S_KO2} offen offset:{(i & 3) * 1024}")
        for i in range(4):
            a(f"buffer_load_dwordx4 v[{BV+4*i}:{BV+4*i+3}], v{V_L16}, {SRD}, s{S_VO} offen offset:{i * 1024}")
    a.label(f"{name}_single")
    if QF:
        a(f"s_cmp_eq_u32 s{S_QOK}, 1\ns_cbranch_scc1 {name}_gqd")
        a.label(f"{name}_gq")
        poll_guard(48)
        a(f"""
        buffer_load_dword v{V_T0}, v{V_FGP}, {SRD}, 0 offen sc1
        s_waitcnt vmcnt(0)
        v_cmp_ne_u32 vcc, 64, v{V_T0}
        s_and_b32 vcc_lo, vcc_lo, 0xc
        s_cbranch_scc0 {name}_gqd
        s_sleep 8
        s_branch {name}_gq
        {name}_gqd:
        s_mov_b32 s{S_QOK}, 1
        """)
    sloads()
    a.label(f"{name}_satt")
    owaddr(False)
    a(f"""
    s_lshr_b32 s{S_T0}, s{S_WAVE}, 1
    s_lshl_b32 s{S_T1}, s{S_T0}, 12
    s_add_u32 s{S_OW}, s{S_OW}, s{S_T1}
    s_lshl_b32 s{S_T0}, s{S_T0}, 10
    s_add_u32 s{S_VO}, s{S_MO}, s{S_T0}
    s_add_u32 s{S_VO}, s{S_VO}, 2048
    s_and_b32 s{S_T0}, s{S_WAVE}, 1
    s_lshl_b32 s{S_T0}, s{S_T0}, 8
    s_add_u32 s{S_OW}, s{S_OW}, s{S_T0}
    s_mov_b32 s{S_N}, 1
    s_waitcnt vmcnt(0)
    """)
    for u in range(4):
        for kt in range(2):
            d = BS + 4 * kt
            c = "0" if u == 0 else f"v[{d}:{d+3}]"
            k = BK + 8 * u + 4 * kt
            a(f"v_mfma_f32_16x16x32_bf16 v[{d}:{d+3}], v[{k}:{k+3}], v[{BQ+4*u}:{BQ+4*u+3}], {c}")
    a.nops(6)
    for kt, th in ((0, V_TH0), (1, V_TH1)):
        for r in range(4):
            a(f"v_cmp_gt_i32 vcc, {r}, v{th}")
            a("s_nop 1")
            a(f"v_cndmask_b32 v{BS+4*kt+r}, v{BS+4*kt+r}, v{V_NEG}, vcc")
    a(f"s_cmp_ge_u32 s{S_SEG}, 63\ns_cbranch_scc1 {name}_dx")
    a.label(f"{name}_rp")
    poll_guard(41)
    a(f"""
    buffer_load_dword v{V_T0}, v{V_FRP}, {SRD}, 0 offen sc1
    s_waitcnt vmcnt(0)
    v_cmp_ge_u32 vcc, s{S_SEG}, v{V_T0}
    s_cbranch_vccz {name}_rk
    s_sleep 2
    s_branch {name}_rp
    {name}_rk:
    """)
    for u in range(4):
        a(f"buffer_load_dwordx4 v[{BKM+4*u}:{BKM+4*u+3}], v{V_OKM}, {SRD}, s{S_MO} offen offset:{64*u} sc1")
    for i in range(4):
        a(f"buffer_load_dwordx2 v[{BVM+2*i}:{BVM+2*i+1}], v{V_L8}, {SRD}, s{S_VO} offen offset:{512*(i >> 1) + 2048*(i & 1)} sc1")
    a.label(f"{name}_rd")
    d = BS + 8
    for u in range(4):
        a(f"s_waitcnt vmcnt({7-u})")
        c = "0" if u == 0 else f"v[{d}:{d+3}]"
        a(f"v_mfma_f32_16x16x32_bf16 v[{d}:{d+3}], v[{BKM+4*u}:{BKM+4*u+3}], v[{BQ+4*u}:{BQ+4*u+3}], {c}")
    a(f"""
    s_waitcnt vmcnt(0)
    v_swap_b32 v{BVM+1}, v{BVM+2}
    v_swap_b32 v{BVM+5}, v{BVM+6}
    s_nop 1
    """)
    softmax([BS + i for i in range(10)])
    for i in range(4):
        a(f"v_cvt_pk_bf16_f32 v{BP+i}, v{BS+2*i}, v{BS+2*i+1}")
    pv(4)
    st2([f"buffer_store_dwordx4 v[{BOB+4*i}:{BOB+4*i+3}], v{V_OOW}, {SRD}, s{S_OW} offen offset:{i * 2048}" for i in range(2)])

    a.label(f"{name}_pub")
    a(f"""
    s_add_u32 s{S_CUR}, s{S_SEG}, s{S_N}
    v_mov_b32 v{V_T1}, s{S_CUR}
    s_waitcnt vmcnt(0)
    s_barrier
    """)
    st2([f"buffer_store_dword v{V_T1}, v{V_FMY}, {SRD}, 0 offen"])
    a(f"""
    s_lshl_b32 s{S_OR}, s{S_G}, 3
    s_add_u32 s{S_OR}, s{S_OR}, s{S_SLOT}
    s_lshl_b32 s{S_OR}, s{S_OR}, 3
    s_and_b32 s{S_T0}, s{S_C}, 1
    s_lshl_b32 s{S_T0}, s{S_T0}, 2
    s_add_u32 s{S_OR}, s{S_OR}, s{S_T0}
    s_add_u32 s{S_OR}, s{S_OR}, s{S_WAVE}
    s_lshl_b32 s{S_OR}, s{S_OR}, 15
    s_add_u32 s{S_OR}, s{S_OR}, {WS_O}
    s_lshl_b32 s{S_XR}, s{S_B}, 3
    s_add_u32 s{S_XR}, s{S_XR}, s{S_SLOT}
    s_lshl_b32 s{S_XR}, s{S_XR}, 12
    s_add_u32 s{S_XR}, s{S_XR}, {WS_XCH}
    s_xor_b32 s{S_XW}, s{S_XR}, 32768
    s_lshl_b32 s{S_OUT}, s{S_SEG}, 17
    s_xor_b32 s{S_SLOT}, s{S_SLOT}, 4
    s_bitset0_b64 s[{S_MASK}:{S_MASK+1}], s{S_SEG}
    s_ff1_i32_b64 s{S_SEG}, s[{S_MASK}:{S_MASK+1}]
    s_min_u32 s{S_SEG}, s{S_SEG}, 64
    """)
    if stamp and opt.get("bst"): stamp()
    baddr()
    a(f"s_cmp_ge_u32 s{S_SEG}, 64\ns_cbranch_scc1 {name}_xp")
    a(f"buffer_load_dword v{V_T2}, v{BFL}, {SRD}, 0 offen sc1")
    a(f"buffer_load_dword v{V_T1}, v{V_FGP}, {SRD}, 0 offen sc1")
    a.label(f"{name}_xp")
    poll_guard(47)
    a(f"""
    buffer_load_dword v{V_T0}, v{V_FXF}, {SRD}, 0 offen sc1
    s_waitcnt vmcnt(0)
    v_cmp_gt_u32 vcc, s{S_CUR}, v{V_T0}
    s_cbranch_vccnz {name}_xp
    v_cmp_ne_u32 vcc, 64, v{V_T1}
    s_and_b32 vcc_lo, vcc_lo, 0xc
    s_cselect_b32 s{S_QOK}, s{S_QOK}, 1
    v_cmp_ge_u32 vcc, v{BND}, v{V_T2}
    s_cmp_eq_u64 vcc, 0
    s_cselect_b32 s{S_RET}, 1, 0
    s_cmp_lt_u32 s{S_SEG}, {SB}
    s_cselect_b32 s{S_RET}, s{S_RET}, 0
    s_cmp_eq_u32 s{S_RET}, 1
    s_cselect_b32 s{S_QO}, s{S_QO}, 0x80000000
    """)
    def proj(n):
        q = []
        extra = list(BL) if n > 1 else []
        def fl(f):
            i = f & 31
            d = BF + 4 * (f % BN)
            if i % 4 == 0:
                if i == 0 and f: a(f"s_add_u32 s{S_OR}, s{S_OR}, {1 << 18}")
                a(f"s_add_u32 s{S_T0}, s{S_ROT}, {i * 1024}")
                a(f"s_and_b32 s{S_T0}, s{S_T0}, 0x7fff")
                a(f"s_add_u32 s{S_T0}, s{S_T0}, s{S_OR}")
            a(f"buffer_load_dwordx4 v[{d}:{d+3}], v{V_L16}, {SRD}, s{S_T0} offen offset:{(i & 3) * 1024} sc1")
            q.append(f)
        for f in range(BPF): fl(f)
        cur = None
        for f in range(32 * n):
            i = f & 31
            a(f"s_waitcnt vmcnt({len(q) - 1 - q.index(f)})")
            d = BF + 4 * (f % BN)
            if i == 0 and f: a("s_waitcnt lgkmcnt(0)")
            for ct in range(2):
                ac = ACC + 16 * ct
                c = "0" if i == 0 else f"v[{ac}:{ac+15}]"
                a(f"v_mfma_f32_32x32x16_bf16 v[{ac}:{ac+15}], a[{8*i+4*ct}:{8*i+4*ct+3}], v[{d}:{d+3}], {c}")
            if f + BPF < 32 * n: fl(f + BPF)
            if extra and f % 3 == 1:
                base, l = extra.pop(0)
                if base != cur:
                    a(f"s_add_u32 s{S_T1}, s{S_QO}, {base}"); cur = base
                a(l); q.append("x")
            if i == 31:
                sgm = f >> 5
                if sgm == 2: a(f"v_add_u32 v{V_T2}, 69632, v{V_LW}")
                a.nops(12)
                for qq in range(8):
                    a(f"ds_write_b128 v{V_LW if sgm < 2 else V_T2}, v[{ACC+4*qq}:{ACC+4*qq+3}] offset:{1088*(qq & 3) + 4352*(qq >> 2) + 34816*(sgm & 1)}")
                if stamp and opt.get("bst") and f == 32 * n - 1: stamp()
        assert not extra
        l = a.newlabel(name + "_sp")
        a(f"""
        s_sub_u32 s{S_T0}, s{S_SEG}, {SB}
        s_cmp_lt_u32 s{S_T0}, {64 - SB}
        s_cselect_b32 s{S_T0}, s{S_QOK}, 0
        s_cmp_eq_u32 s{S_T0}, 1
        s_cbranch_scc0 {l}
        s_mov_b32 s{S_RET}, 2
        """)
        sloads()
        a.label(l)
        a(f"""
        v_mov_b32 v{V_T0}, v{V_LR2}
        v_mov_b32 v{V_T1}, s{S_CUR}
        s_waitcnt lgkmcnt(0)
        v_mov_b32 v{V_T2}, v{V_LR}
        s_barrier
        """)
    if stamp and opt.get("bst"): stamp()
    a(f"s_cmp_eq_u32 s{S_N}, 1\ns_cbranch_scc1 {name}_f1")
    def sum4(R, D):
        a(f"""
        v_pk_add_f32 v[{R}:{R+1}], v[{R}:{R+1}], v[{R+4}:{R+5}]
        v_pk_add_f32 v[{R+2}:{R+3}], v[{R+2}:{R+3}], v[{R+6}:{R+7}]
        v_pk_add_f32 v[{R+8}:{R+9}], v[{R+8}:{R+9}], v[{R+12}:{R+13}]
        v_pk_add_f32 v[{R+10}:{R+11}], v[{R+10}:{R+11}], v[{R+14}:{R+15}]
        v_pk_add_f32 v[{D}:{D+1}], v[{R}:{R+1}], v[{R+8}:{R+9}]
        v_pk_add_f32 v[{D+2}:{D+3}], v[{R+2}:{R+3}], v[{R+10}:{R+11}]
        """)
    def fin(n, tag):
        R = BF
        def rd(v, i, dst):
            if i == 2: a(f"v_add_u32 v{v}, 69632, v{v}")
            for w in range(4):
                a(f"ds_read_b128 v[{dst+4*w}:{dst+4*w+3}], v{v} offset:{8704*w + 34816*(i & 1)}")
        for i in range(min(n, 3)): rd(V_T0, i, R + 16 * i)
        for i in range(n):
            a(f"s_waitcnt lgkmcnt({4 * (min(n, i + 3) - i - 1)})")
            sum4(R + 16 * i, R + 16 * i)
            if i + 3 < n: rd(V_T0, i + 3, R + 16 * (i + 3))
        lines = []
        for i in range(n):
            a(f"s_add_u32 s{(S_QO2, S_KO2, S_KO, S_VO)[i]}, s{S_XW}, {4096 * i}")
            lines.append(f"buffer_store_dwordx4 v[{R+16*i}:{R+16*i+3}], v{V_T16}, {SRD}, s{(S_QO2, S_KO2, S_KO, S_VO)[i]} offen")
        st2(lines)
        Q = ACC + 16
        for i in range(n):
            rd(V_T2, i, Q)
            a("s_waitcnt lgkmcnt(0)")
            sum4(Q, KEEP + 4 * i)
        a("s_waitcnt vmcnt(0)\ns_barrier")
        st2([f"buffer_store_dword v{V_T1}, v{V_FMY}, {SRD}, 0 offen offset:64"])
        a.label(f"{name}_pf{tag}")
        poll_guard(49)
        a(f"""
        buffer_load_dword v{V_T0}, v{V_FPF}, {SRD}, 0 offen offset:64 sc1
        s_waitcnt vmcnt(0)
        v_cmp_gt_u32 vcc, s{S_CUR}, v{V_T0}
        s_cbranch_vccnz {name}_pf{tag}
        """)
        for i in range(n):
            a(f"buffer_load_dwordx4 v[{Q+4*i}:{Q+4*i+3}], v{V_T16}, {SRD}, s{S_XR} offen sc1")
            if i < n - 1: a(f"s_add_u32 s{S_XR}, s{S_XR}, 4096")
        for i in range(n):
            r, k = Q + 4 * i, KEEP + 4 * i
            a(f"""
            s_waitcnt vmcnt({n - 1})
            v_pk_add_f32 v[{r}:{r+1}], v[{r}:{r+1}], v[{k}:{k+1}]
            v_pk_add_f32 v[{r+2}:{r+3}], v[{r+2}:{r+3}], v[{k+2}:{k+3}]
            v_cvt_pk_bf16_f32 v{r}, v{r}, v{r+1}
            v_cvt_pk_bf16_f32 v{r+1}, v{r+2}, v{r+3}
            buffer_store_dwordx2 v[{r}:{r+1}], v{V_OUT}, s[{S_O}:{S_O+3}], s{S_OUT} offen
            s_add_u32 s{S_OUT}, s{S_OUT}, {1 << 17}
            """)
    proj(4)
    fin(4, "a")
    a(f"s_branch {name}_f2\n{name}_f1:")
    proj(1)
    fin(1, "b")
    a.label(f"{name}_f2")
    if stamp: stamp()
    a(f"""
    s_cmp_eq_u32 s{S_RET}, 1
    s_cbranch_scc1 {name}_batt
    s_cmp_eq_u32 s{S_RET}, 2
    s_cbranch_scc1 {name}_satt
    s_cmp_lt_u32 s{S_SEG}, 64
    s_cbranch_scc1 {name}_job
    s_branch {name}_fin
    """)

    a.label(f"{name}_dx")
    D, SEL, LA, T = BF, BF + 8, BF + 10, BF + 12
    a(f"""
    buffer_load_dword v{V_T0}, off, s[{S_DBG}:{S_DBG+3}], 0 offset:{DBG_VOTE} sc1
    v_and_b32 v{V_T1}, 15, v{V_L}
    v_lshrrev_b32 v{V_T2}, 4, v{V_L}
    v_and_b32 v{SEL}, 1, v{V_T1}
    v_lshlrev_b32 v{SEL}, 4, v{SEL}
    v_mov_b32 v{SEL+1}, 0x3f80
    v_lshlrev_b32 v{SEL+1}, v{SEL}, v{SEL+1}
    v_lshrrev_b32 v{V_T1}, 2, v{V_T1}
    v_cmp_eq_u32 vcc, v{V_T1}, v{V_T2}
    v_mov_b32 v{SEL}, 0
    s_waitcnt vmcnt(0)
    v_cndmask_b32 v{SEL+1}, 0, v{SEL+1}, vcc
    v_readfirstlane_b32 s{S_T0}, v{V_T0}
    s_and_b32 s{S_T1}, s{S_SEG}, 1
    s_lshl_b32 s{S_T1}, s{S_T1}, 20
    s_lshl_b32 s{S_QO}, s{S_C}, 14
    s_add_u32 s{S_QO}, s{S_QO}, s{S_T1}
    s_add_u32 s{S_QO}, s{S_QO}, {WS_XB}
    s_lshr_b32 s{S_T0}, s{S_T0}, 15
    s_cmp_gt_u32 s{S_T0}, s{S_VOTE}
    s_cselect_b32 s{S_T0}, 8192, 0
    s_add_u32 s{S_QO}, s{S_QO}, s{S_T0}
    s_bfe_u32 s{S_T0}, s{S_C}, 0x10001
    s_lshl_b32 s{S_T0}, s{S_T0}, 12
    s_add_u32 s{S_QO}, s{S_QO}, s{S_T0}
    s_add_u32 s{S_QO2}, s{S_QO}, {32 << 14}
    s_lshr_b32 s{S_T0}, s{S_WAVE}, 1
    s_lshl_b32 s{S_T0}, s{S_T0}, 11
    s_xor_b32 s{S_KO}, s{S_QO}, 4096
    s_add_u32 s{S_KO}, s{S_KO}, s{S_T0}
    s_add_u32 s{S_KO2}, s{S_KO}, {32 << 14}
    s_lshl_b32 s{S_T0}, s{S_WAVE}, 10
    s_add_u32 s{S_QO}, s{S_QO}, s{S_T0}
    s_add_u32 s{S_QO2}, s{S_QO2}, s{S_T0}
    v_add_u32 v{LA}, s{S_T0}, v{V_L16}
    {name}_dr:
    """)
    poll_guard(43)
    a(f"""
    buffer_load_dword v{V_T0}, v{V_FRP}, {SRD}, 0 offen sc1
    s_waitcnt vmcnt(0)
    v_cmp_gt_u32 vcc, s{S_SEG}, v{V_T0}
    s_cbranch_vccz {name}_dp
    s_sleep 2
    s_branch {name}_dr
    {name}_dp:
    """)
    poll_guard(44)
    for j in range(2):
        for m in range(2):
            d = D + 4 * j + 2 * m
            a(f"buffer_load_dwordx2 v[{d}:{d+1}], v{V_L8}, {SRD}, s{S_QO if j == 0 else S_QO2} offen offset:{512*m} sc1")
    a("s_waitcnt vmcnt(0)")
    for j in range(2):
        for m in range(2):
            d = D + 4 * j + 2 * m
            t = T + 4 * m
            c = "0" if j == 0 else f"v[{t}:{t+3}]"
            a(f"v_mfma_f32_16x16x16_bf16 v[{t}:{t+3}], v[{d}:{d+1}], v[{SEL}:{SEL+1}], {c}")
    a(f"""
    v_or3_b32 v{V_T0}, v{D}, v{D+2}, v{D+4}
    v_or_b32 v{V_T0}, v{V_T0}, v{D+6}
    v_and_b32 v{V_T0}, 1, v{V_T0}
    v_cmp_ne_u32 vcc, 0, v{V_T0}
    s_nop 3
    s_cbranch_vccnz {name}_dp
    """)
    for i in range(4):
        a(f"v_cvt_pk_bf16_f32 v{D+i}, v{T+2*i}, v{T+2*i+1}")
    a(f"ds_write_b128 v{LA}, v[{D}:{D+3}] offset:40960")
    a("s_waitcnt lgkmcnt(0)\ns_barrier")
    for u in range(4):
        a(f"ds_read_b128 v[{BKM+4*u}:{BKM+4*u+3}], v{V_L16} offset:{40960 + 1024*u}")
    a.label(f"{name}_dv")
    poll_guard(45)
    for i in range(4):
        a(f"buffer_load_dwordx2 v[{BVM+2*i}:{BVM+2*i+1}], v{V_L8}, {SRD}, s{S_KO if (i & 1) == 0 else S_KO2} offen offset:{1024*(i >> 1)} sc1")
    a(f"""
    s_waitcnt vmcnt(0) lgkmcnt(0)
    v_or3_b32 v{V_T0}, v{BVM}, v{BVM+2}, v{BVM+4}
    v_or_b32 v{V_T0}, v{V_T0}, v{BVM+6}
    v_and_b32 v{V_T0}, 1, v{V_T0}
    v_cmp_ne_u32 vcc, 0, v{V_T0}
    s_cbranch_vccnz {name}_dv
    s_branch {name}_rd
    {name}_fin:
    """)
```

```python
import sys, json
from common import *
from gen_rec import DBG_VOTE, global_init, rec_body, S_J, S_H, LDS_REC, WS_FL, WS_XB, WS_PROF
from gen_qkv import qkv_role
from gen_xo import xo_role, WoLoader
import gen_xo2, gen_fft2
from gen_fft import gen_f0, gen_f1, gen_f2, gen_f3

DBG_F1, DBG_F2, DBG_F0 = WS_FL + 448 * 128, WS_FL + 450 * 128, WS_FL + 452 * 128
RECOPT = dict(preC="ack", preA="ack", nl=16, yp=15, xp=(16, 18), vs=17, vbar=1, fsp=4, are=1, f1e=1, f1s=2)


def xlut(order):
    lut = 0
    for logical, c in enumerate(order):
        lut |= logical << (4 * int(c))
    return hex(lut)


DEFOPT = dict(r4=1, qflag=1, wfirst=1, xmap="13024567", sched=dict(start=(999, 999, 126, 126, 77, 77), bdur=11.5, dur=5.2, sb=56, fixed={56: 2, 58: 2, 62: 2, 57: 3, 59: 3, 63: 3, 60: 4, 61: 5}))


def minify(txt, name):
    import re
    out = []
    for l in txt.split("\n"):
        l = l.strip()
        for d in (" neg_lo:[0,0,0]", " neg_hi:[0,0,0]", " neg_lo:[0,0]", " neg_hi:[0,0]", " op_sel:[0,0,0]", " op_sel:[0,0]", " op_sel_hi:[1,1,1]", " op_sel_hi:[1,1]"):
            l = l.replace(d, "")
        l = re.sub(r" offset:0(?= |$)", "", l)
        out.append(l.replace(name + "_", "L_"))
    return "\n".join(out)


def gen_mega(name, **kw):
    opt = dict(DEFOPT) if not kw.get("opt", {}).get("old") else {}
    opt.update(kw.get("opt", {}))
    kw["opt"] = opt
    r = list(gen_mega0(name, **kw))
    r[1] = minify(r[1], name)
    return tuple(r)


def gen_mega0(name, force_slow=False, wd=False, bprof=False, ropt={}, rprof=False, opt={}):
    a = Asm(); a.kernel_begin(name)
    S_W, S_D = 84, 88
    S_B, S_X, S_TK, S_GT, S_VOTE, S_TS, S_WDC = 92, 93, 94, 95, 100, 101, 83
    S_FAST, S_VER, S_WV = 96, 97, 98
    ro = dict(RECOPT); ro.update(ropt)

    def ts(srd=S_W):
        if not bprof: return
        l = a.newlabel(name + "_ts")
        a(f"""
        {'s_memtime' if opt.get('cyc') else 's_memrealtime'} vcc
        s_waitcnt lgkmcnt(0)
        s_mov_b64 exec, 1
        v_accvgpr_read_b32 v255, a255
        v_mov_b32 v255, vcc_lo
        s_nop 0
        buffer_store_dword v255, off, s[{srd}:{srd+3}], s{S_TS}
        s_mov_b64 exec, -1
        s_add_u32 s{S_TS}, s{S_TS}, 4
        """.replace("v_accvgpr_read_b32 v255, a255\n", ""))

    def dmax(idx, srd=S_D, v=135):
        if not opt.get("dbgt"): return
        a(f"""
        s_memrealtime vcc
        s_waitcnt lgkmcnt(0)
        s_mov_b64 exec, 1
        v_mov_b32 v{v}, vcc_lo
        s_nop 0
        buffer_atomic_umax v{v}, off, s[{srd}:{srd+3}], 0 offset:{4*idx} sc1
        s_mov_b64 exec, -1
        """)

    def wdog(code):
        if not wd: return
        a(f"""
        s_add_u32 s{S_WDC}, s{S_WDC}, 1
        s_cmp_gt_u32 s{S_WDC}, 300000
        s_movk_i32 s82, {code}
        s_cbranch_scc1 {name}_wdx
        """)

    a(f"""
    s_cmp_ge_u32 s2, 256
    s_cbranch_scc1 {name}_exit
    s_load_dwordx2 s[{S_W}:{S_W+1}], s[0:1], {KA_WS}
    s_load_dwordx2 s[{S_D}:{S_D+1}], s[0:1], {KA_DBG}
    s_getreg_b32 s{S_X}, hwreg(HW_REG_XCC_ID)
    s_and_b32 s{S_X}, s{S_X}, 7
    s_lshl_b32 s{S_X}, s{S_X}, 2
    s_lshr_b32 s{S_X}, {xlut(opt.get('xmap', '23014567'))}, s{S_X}
    s_and_b32 s{S_X}, s{S_X}, 7
    v_lshrrev_b32 v1, 6, v0
    v_mov_b32 v4, 0
    v_readfirstlane_b32 s80, v1
    v_mov_b32 v5, 0
    v_mov_b32 v6, 0
    v_mov_b32 v7, 0
    s_mov_b32 s{S_WDC}, 0
    s_lshl_b32 s{S_TS}, s2, 2
    s_add_u32 s{S_TS}, s{S_TS}, s80
    s_lshl_b32 s{S_TS}, s{S_TS}, 8
    s_add_u32 s{S_TS}, s{S_TS}, {220*MB}
    s_waitcnt lgkmcnt(0)
    s_mov_b32 s{S_W+2}, {WS_BYTES}
    s_mov_b32 s{S_W+3}, 0x00020000
    s_mov_b32 s{S_D+2}, 256
    s_mov_b32 s{S_D+3}, 0x00020000
    """)
    ts()
    if opt.get("cpf"):
        a(f"""
        s_getpc_b64 s[78:79]
        v_lshlrev_b32 v9, 7, v0
        """)
        for i in range(opt["cpf"]):
            a(f"global_load_dword v{10+i}, v9, s[78:79]")
            a("v_add_u32 v9, 0x8000, v9")
    PX = opt.get("px", 2)
    a(f"""
    s_mov_b32 s{S_WV}, s80
    s_cmp_lg_u32 s80, 0
    s_cbranch_scc1 {name}_st0
    v_mov_b32 v10, 1
    s_lshl_b32 s81, s{S_X}, 5
    s_mov_b64 exec, 1
    buffer_atomic_add v10, off, s[{S_D}:{S_D+3}], s81 offset:4 sc0
    s_lshl_b32 s81, s2, 7
    s_add_u32 s81, s81, {WS_FL}
    s_mov_b64 exec, 15
    v_and_b32 v1, 1, v0
    v_lshlrev_b32 v1, 15, v1
    v_lshrrev_b32 v2, 1, v0
    v_lshl_add_u32 v1, v2, 6, v1
    buffer_store_dword v4, v1, s[{S_W}:{S_W+3}], s81 offen sc1
    s_mov_b64 exec, -1
    {name}_st0:
    """)
    global_init(a, name, S_W)
    a(f"""
    s_cmp_lg_u32 s80, 0
    s_cbranch_scc1 {name}_st1
    s_mov_b64 exec, 1
    s_waitcnt vmcnt(4)
    ds_write_b32 v4, v10
    s_mov_b64 exec, -1
    s_waitcnt lgkmcnt(0)
    {name}_st1:
    s_barrier
    ds_read_b32 v2, v4
    s_waitcnt lgkmcnt(0)
    v_readfirstlane_b32 s{S_TK}, v2
    s_barrier
    s_sub_u32 s81, s{S_X}, {PX}
    s_cmp_ge_u32 s81, 2
    s_cbranch_scc1 {name}_nopr
    s_cmp_lg_u32 s80, 0
    s_cbranch_scc1 {name}_prd
    v_lshlrev_b32 v1, 4, v0
    s_and_b32 s81, s2, 127
    s_lshl_b32 s81, s81, 14
    s_add_u32 s81, s81, {WS_XB}
    s_add_u32 s77, s81, 8192
    buffer_store_dwordx4 v[4:7], v1, s[{S_W}:{S_W+3}], s81 offen sc1
    buffer_store_dwordx4 v[4:7], v1, s[{S_W}:{S_W+3}], s77 offen sc1
    s_waitcnt vmcnt(0)
    s_memtime s[70:71]
    buffer_store_dwordx4 v[4:7], v1, s[{S_W}:{S_W+3}], s81 offen sc1
    s_waitcnt vmcnt(0)
    s_memtime s[72:73]
    buffer_store_dwordx4 v[4:7], v1, s[{S_W}:{S_W+3}], s77 offen sc1
    s_waitcnt vmcnt(0)
    buffer_store_dwordx4 v[4:7], v1, s[{S_W}:{S_W+3}], s77 offen sc1
    s_waitcnt vmcnt(0)
    s_memtime s[74:75]
    buffer_store_dwordx4 v[4:7], v1, s[{S_W}:{S_W+3}], s81 offen sc1
    s_waitcnt vmcnt(0)
    s_memtime s[76:77]
    s_waitcnt lgkmcnt(0)
    s_sub_u32 s76, s76, s74
    s_sub_u32 s74, s74, s72
    s_sub_u32 s72, s72, s70
    s_add_u32 s72, s72, s76
    s_cmp_lt_u32 s74, s72
    s_cselect_b32 s81, 0x10001, 1
    v_mov_b32 v8, s81
    s_mov_b64 exec, 1
    buffer_atomic_add v8, off, s[{S_D}:{S_D+3}], 0 offset:{DBG_VOTE} sc1
    s_mov_b64 exec, -1
    {name}_prd:
    s_barrier
    """)
    for _ in range(opt.get("qdelay", 0)): a("s_sleep 127")
    a(f"""
    {name}_nopr:
    s_mov_b32 s{S_VER}, 0
    s_mov_b32 s{S_VOTE}, 64
    {name}_fast:
    s_mov_b32 s{S_FAST}, 1
    s_mov_b32 s{S_J}, s{S_X}
    s_and_b32 s{S_H}, s{S_TK}, 31
    s_cmp_lt_u32 s{S_X}, 2
    s_cbranch_scc1 {name}_recf
    s_sub_u32 s{S_B}, s{S_X}, 2
    s_lshl_b32 s{S_B}, s{S_B}, 5
    s_add_u32 s{S_B}, s{S_B}, s{S_H}
    s_branch {name}_bulk
    {name}_redo:
    s_waitcnt vmcnt(0) lgkmcnt(0)
    s_barrier
    v_readlane_b32 s{S_VOTE}, v36, {PX}
    v_readlane_b32 s81, v36, {PX + 1}
    s_mov_b32 s{S_VER}, 1
    s_nop 2
    s_add_u32 s{S_VOTE}, s{S_VOTE}, s81
    """)
    a(f"s_mov_b32 s{S_GT}, s{S_TK}")
    for i in range(7):
        a(f"""
        v_readlane_b32 s81, v36, {i}
        s_cmp_gt_u32 s{S_X}, {i}
        s_nop 2
        s_cselect_b32 s81, s81, 0
        s_add_u32 s{S_GT}, s{S_GT}, s81
        """)
    a(f"""
    {name}_slow:
    s_mov_b32 s{S_FAST}, 0
    s_lshr_b32 s{S_J}, s{S_GT}, 5
    s_and_b32 s{S_H}, s{S_GT}, 31
    s_cmp_lt_u32 s{S_GT}, 64
    s_cbranch_scc1 {name}_recs
    s_sub_u32 s{S_B}, s{S_GT}, 64
    s_branch {name}_bulk
    {name}_exit:
    s_endpgm
    """)

    def hook0(n):
        l = a.newlabel(name + "_h0")
        a(f"""
        s_waitcnt vmcnt({n})
        s_barrier
        s_or_b32 s81, s{S_VER}, s{S_WV}
        s_cmp_lg_u32 s81, 0
        s_cbranch_scc1 {l}
        s_lshl_b32 s81, s{S_X}, 5
        v_mov_b32 v38, 1
        s_mov_b64 exec, 1
        buffer_atomic_add v38, off, s[{S_D}:{S_D+3}], s81 sc1
        s_mov_b64 exec, -1
        {l}:
        """)
    def hook1():
        a(f"""
        v_and_b32 v37, 7, v0
        v_lshlrev_b32 v37, 5, v37
        buffer_load_dword v36, v37, s[{S_D}:{S_D+3}], 0 offen sc1
        """)
    def hook2():
        l = a.newlabel(name + "_h2")
        a(f"""
        s_cmp_lg_u32 s{S_VER}, 0
        s_cbranch_scc1 {l}_ok
        {l}_ev:
        v_cmp_ne_u32 vcc, 32, v36
        """)
        if not force_slow: a(f"s_cbranch_vccz {l}_ok")
        a("s_mov_b32 s78, 0")
        for i in range(8):
            a(f"v_readlane_b32 s81, v36, {i}\ns_nop 3\ns_add_u32 s78, s78, s81")
        a(f"""
        s_cmp_eq_u32 s78, 256
        s_cbranch_scc1 {name}_redo
        """)
        wdog(2)
        a(f"""
        buffer_load_dword v36, v37, s[{S_D}:{S_D+3}], 0 offen sc1
        s_waitcnt vmcnt(0)
        s_branch {l}_ev
        {l}_ok:
        s_mov_b32 s{S_VER}, 1
        """)
    hooks = (hook0, hook1, hook2)
    a.label(f"{name}_recf")
    rn = [0]
    def rts():
        if opt.get("dbgt"):
            l = a.newlabel(name + "_rt")
            a(f"s_cmp_lg_u32 s20, 0\ns_cbranch_scc1 {l}")
            dmax(4 + rn[0], 12, 3); rn[0] += 1
            a.label(l)
        if not bprof: return
        a(f"""
        s_memrealtime vcc
        s_waitcnt lgkmcnt(0)
        s_mov_b64 exec, 1
        v_mov_b32 v3, vcc_lo
        s_nop 0
        buffer_store_dword v3, off, s[4:7], s{S_TS}
        s_mov_b64 exec, -1
        s_add_u32 s{S_TS}, s{S_TS}, 4
        """)
    ts()
    rec_body(a, name + "_rf", "", wd=wd, full=True, S_VOTE=S_VOTE, opt=ro, prof=rprof, tstamp=rts, hooks=hooks)
    a.label(f"{name}_recs")
    if opt.get("noslow"): a("s_endpgm")
    else: rec_body(a, name + "_rs", "sc1", wd=wd, full=True, S_VOTE=S_VOTE, opt=RECOPT)

    def signal(off):
        l = a.newlabel(name + "_sg")
        a(f"""
        s_waitcnt vmcnt(0)
        s_barrier
        s_cmp_lg_u32 s{S_WV}, 0
        s_cbranch_scc1 {l}
        v_mov_b32 v2, 1
        s_mov_b32 s81, {off}
        s_mov_b64 exec, 1
        buffer_atomic_add v2, off, s[{S_W}:{S_W+3}], s81 sc1
        s_mov_b64 exec, -1
        {l}:
        """)

    def wait(off, n, tag, allw=False):
        if not allw: a(f"s_cmp_lg_u32 s{S_WV}, 0\ns_cbranch_scc1 {name}_w{tag}d")
        a(f"s_mov_b32 s81, {off}")
        a.label(f"{name}_w{tag}")
        wdog(50)
        a(f"""
        buffer_load_dword v120, off, s[{S_W}:{S_W+3}], s81 sc1
        s_waitcnt vmcnt(0)
        v_cmp_ne_u32 vcc, {n}, v120
        s_cbranch_vccz {name}_w{tag}d
        s_sleep 6
        s_branch {name}_w{tag}
        {name}_w{tag}d:
        """)
    if wd:
        a(f"""
        {name}_wdx:
        s_mov_b64 exec, 1
        v_mov_b32 v1, s82
        s_lshl_b32 s81, s2, 2
        s_add_u32 s81, s81, {WS_PROF + MB + 1024}
        buffer_store_dword v1, off, s[{S_W}:{S_W+3}], s81
        s_endpgm
        """)
    a.label(f"{name}_bulk")
    ts()
    if opt.get("r4"):
        WL = WoLoader(a, name, S_B, S_WV, opt)
        a(f"s_cmp_lt_u32 s{S_B}, 64\ns_cbranch_scc1 {name}_fft")
        qkv_role(a, name + "_q", S_B, S_W, S_D, stamp=ts, opt=opt, hooks=hooks)
        ts()
        a(f"s_branch {name}_wl")
        a.label(f"{name}_fft")
        if opt.get("ct2", 0):
            a(f"""
            s_getpc_b64 s[78:79]
            {name}_ct2:
            v_lshlrev_b32 v205, 6, v0
            """)
            for i in range(5):
                a(f"v_min_u32 v206, {name}_wl - {name}_ct2, v205")
                a(f"global_load_dword v207, v206, s[78:79]")
                a("v_add_u32 v205, 0x4000, v205")
        hook0(0)
        def verify():
            hook1()
            a("s_waitcnt vmcnt(0)")
            hook2()
        verify()
        def twice(tag, body, n=128):
            a(f"s_mov_b32 s99, s{S_B}")
            a.label(f"{name}_{tag}l")
            body()
            a(f"""
            s_add_u32 s99, s99, 64
            s_cmp_lt_u32 s99, {n}
            s_cbranch_scc1 {name}_{tag}l
            """)
        a(f"s_mov_b32 s99, s{S_B}")
        WF = opt.get("wfirst", 0)
        if not WF:
            gen_fft2.gen_f1(a, name + "_f1r", S_B, S_W)
            signal(DBG_F1)
            ts()
        a.label(f"{name}_f2l")
        gen_fft2.gen_w(a, name + "_fw", 99)
        a(f"s_cmp_eq_u32 s99, 64\ns_cbranch_scc1 {name}_f2go")
        ts()
        if WF:
            gen_fft2.gen_f1(a, name + "_f1r", S_B, S_W)
            signal(DBG_F1)
            ts()
        wait(DBG_F1, 64, "f1")
        a.label(f"{name}_f2go")
        gen_fft2.gen_f2(a, name + "_f2", 99, S_W)
        a(f"""
        s_add_u32 s99, s99, 64
        s_cmp_eq_u32 s99, 64
        s_cbranch_scc1 {name}_f2l
        """)
        signal(DBG_F2)
        ts()
        wait(DBG_F2, 64, "f2")
        gen_fft2.gen_f3(a, name + "_f3", S_B, S_W)
        a("s_waitcnt vmcnt(0) lgkmcnt(0)\ns_barrier")
        ts()
        mk = gen_xo2.schedule(**opt["sched"])
        for g in range(2):
            if not mk[g]: a(f"s_lshr_b32 s81, s{S_B}, 5\ns_cmp_lg_u32 s81, {g}\ns_cbranch_scc1 {name}_nx{g}\ns_endpgm\n{name}_nx{g}:")
        a.label(f"{name}_wl")
        gen_xo2.WoLoader(a, name, S_B, S_WV, opt).run()
        gen_xo2.xo_role(a, name + "_x", S_B, S_W, S_FAST, S_D, S_VOTE, wd=wdog if wd else None, opt=opt, stamp=ts)
        a("s_endpgm")
        return (name, a.text(), kd(name, 512, sgpr=102, accum=256), 256, 256, LDS_REC)
    qkv_role(a, name + "_q", S_B, S_W, S_D, stamp=ts, opt=opt, hooks=hooks)
    ts()
    for _ in range(opt.get("bdelay", 0)): a("s_sleep 127")
    WL = WoLoader(a, name, S_B, S_WV, opt)
    WL.setup()
    a(f"""
    s_cmp_lt_u32 s{S_B}, 128
    s_cbranch_scc1 {name}_f1
    """)
    WL.step(0)
    a(f"""
    s_sub_u32 s99, s{S_B}, 128
    {name}_f0l:
    s_barrier
    """)
    gen_f0(a, name + "_f0", role=99, noend=True)
    a(f"""
    s_add_u32 s99, s99, 64
    s_cmp_lt_u32 s99, 288
    s_cbranch_scc1 {name}_f0l
    """)
    signal(DBG_F0)
    ts()
    a(f"""
    s_cmp_lg_u32 s{S_B}, 191
    s_cbranch_scc1 {name}_xo2
    s_cmp_lg_u32 s{S_WV}, 0
    s_cbranch_scc1 {name}_xo2
    """)
    if not opt.get("wl2", 0): WL.step(1)
    wait(DBG_F1, 128, "f1b")
    a(f"""
    s_mov_b32 s99, 128
    s_branch {name}_f2_in
    {name}_f2ret:
    s_waitcnt vmcnt(0)
    v_mov_b32 v2, 1
    s_mov_b64 exec, 1
    s_mov_b32 s81, {DBG_F2}
    buffer_atomic_add v2, off, s[{S_W}:{S_W+3}], s81 sc1
    s_mov_b64 exec, -1
    s_branch {name}_xo3
    {name}_xo2:
    """)
    WL.step(1)
    if opt.get("wl2", 0): a.label(f"{name}_xo3")
    WL.step(2)
    if not opt.get("wl2", 0): a.label(f"{name}_xo3")
    WL.step(3)
    a(f"s_branch {name}_xo4")
    a.label(f"{name}_f1")
    W2 = opt.get("wl2", 0)
    gen_f1(a, name + "_f1r", role=S_B, pre_store=(lambda: WL.step(0)) if not W2 else None, loaded=(lambda: WL.step(0)) if W2 else None)
    signal(DBG_F1)
    ts()
    if not W2: WL.step(1)
    wait(DBG_F1, 128, "f1")
    if opt.get("fstag"):
        a(f"s_lshr_b32 s81, s{S_B}, 5")
        a.label(f"{name}_fs")
        a(f"""
        s_cmp_eq_u32 s81, 0
        s_cbranch_scc1 {name}_fsd
        s_sleep {opt["fstag"]}
        s_sub_u32 s81, s81, 1
        s_branch {name}_fs
        {name}_fsd:
        """)
    a(f"s_mov_b32 s99, s{S_B}")
    gen_f2(a, name + "_f2", role=99, wready=lambda: wait(DBG_F0, 64, "f0", True), mid=lambda: WL.step(1 if W2 else 2), st=ts if opt.get("fst") else None)
    a(f"s_cmp_eq_u32 s99, 128\ns_cbranch_scc1 {name}_f2ret")
    signal(DBG_F2)
    WL.step(2 if W2 else 3)
    ts()
    wait(DBG_F2, 129, "f2")
    gen_f3(a, name + "_f3", role=S_B, ost=opt.get("ost", ""), loaded=(lambda: WL.step(3)) if W2 else None)
    a.label(f"{name}_xo4")
    if opt.get("nox01"): a(f"s_cmp_ge_u32 s{S_B}, 64\ns_cbranch_scc1 {name}_xo5\ns_endpgm\n{name}_xo5:")
    ts()
    WL.step(4)
    xo_role(a, name + "_x", S_B, S_W, S_FAST, S_D, S_VOTE, wd=wdog if wd else None, opt=opt, stamp=ts)
    if opt.get("dbgt"):
        a(f"s_cmp_lg_u32 s{S_WV}, 0\ns_cbranch_scc1 {name}_fin")
        dmax(6)
        a.label(f"{name}_fin")
    a.label(f"{name}_cE")
    a("s_endpgm")
    return (name, a.text(), kd(name, 512, sgpr=102, accum=256), 256, 256, LDS_REC)


if __name__ == "__main__":
    out = sys.argv[1]
    kw = eval(sys.argv[2]) if len(sys.argv) > 2 else {}
    write_file(out, [gen_mega("mega_kernel", **kw)])
```

```python
import math, struct
from common import *
from gen_fft import WS_WT, flit

WS_T = 92 * MB
SCALE = 0.5 / (2048.0 * 1024.0)
SC = 30
FB = 32 * 528


def consts(a):
    for j in range(1, 8):
        a(f"s_mov_b32 s{SC + j - 1}, {flit(math.cos(j * math.pi / 16))}")


def P(r): return f"v[{r}:{r+1}]"


class PkFFT:
    def __init__(self, a, re, im, temps):
        self.a, self.re, self.im, self.t = a, list(re), list(im), list(temps)

    def add(self, d, x, y): self.a(f"v_pk_add_f32 {P(d)}, {P(x)}, {P(y)}")
    def sub(self, d, x, y): self.a(f"v_pk_add_f32 {P(d)}, {P(x)}, {P(y)} neg_lo:[0,1] neg_hi:[0,1]")

    def kc(self, j, neg):
        i = SC + j - 1
        return f"s[{i & ~1}:{(i & ~1) + 1}]", i & 1, int(neg)

    def mulk(self, d, x, k):
        s, sel, n = k
        self.a(f"v_pk_mul_f32 {P(d)}, {P(x)}, {s} op_sel:[0,{sel}] op_sel_hi:[1,{sel}] neg_lo:[0,{n}] neg_hi:[0,{n}]")

    def fmak(self, d, x, k):
        s, sel, n = k
        self.a(f"v_pk_fma_f32 {P(d)}, {P(x)}, {s}, {P(d)} op_sel:[0,{sel},0] op_sel_hi:[1,{sel},1] neg_lo:[0,{n},0] neg_hi:[0,{n},0]")

    def fft(self, sign):
        n = len(self.re)
        re, im = self.re, self.im
        span = n // 2
        while span >= 1:
            for start in range(0, n, 2 * span):
                for jj in range(span):
                    p, q = start + jj, start + jj + span
                    j = 16 * jj // span
                    tr, ti = self.t[0], self.t[1]
                    if j == 0 or j == 8:
                        if j == 0:
                            self.sub(tr, re[p], re[q]); self.sub(ti, im[p], im[q])
                        elif sign > 0:
                            self.sub(tr, im[q], im[p]); self.sub(ti, re[p], re[q])
                        else:
                            self.sub(tr, im[p], im[q]); self.sub(ti, re[q], re[p])
                        self.add(re[p], re[p], re[q]); self.add(im[p], im[p], im[q])
                        self.t[0], re[q] = re[q], tr
                        self.t[1], im[q] = im[q], ti
                    else:
                        c = self.kc(j if j < 8 else 16 - j, j > 8)
                        s = self.kc(abs(8 - j), sign < 0)
                        ns = self.kc(abs(8 - j), sign > 0)
                        self.sub(tr, re[p], re[q]); self.sub(ti, im[p], im[q])
                        self.add(re[p], re[p], re[q]); self.add(im[p], im[p], im[q])
                        self.mulk(re[q], tr, c); self.mulk(im[q], tr, s)
                        self.fmak(re[q], ti, ns); self.fmak(im[q], ti, c)
            span //= 2
        bits = n.bit_length() - 1
        rev = [int(format(i, f"0{bits}b")[::-1], 2) for i in range(n)]
        self.re = [re[rev[i]] for i in range(n)]
        self.im = [im[rev[i]] for i in range(n)]

    def rot(self, k, cs):
        a, re, im, tR = self.a, self.re, self.im, self.t[0]
        a(f"v_pk_mul_f32 {P(tR)}, {P(re[k])}, {P(cs)} op_sel:[0,0] op_sel_hi:[1,0]")
        a(f"v_pk_fma_f32 {P(tR)}, {P(im[k])}, {P(cs)}, {P(tR)} op_sel:[0,1,0] op_sel_hi:[1,1,1] neg_lo:[1,0,0] neg_hi:[1,0,0]")
        a(f"v_pk_mul_f32 {P(im[k])}, {P(im[k])}, {P(cs)} op_sel:[0,0] op_sel_hi:[1,0]")
        a(f"v_pk_fma_f32 {P(im[k])}, {P(re[k])}, {P(cs)}, {P(im[k])} op_sel:[0,1,0] op_sel_hi:[1,1,1]")
        self.t[0], re[k] = re[k], tR

    def twiddle(self, angle, k0=1):
        a = self.a
        cs = [self.t[2], self.t[3]]
        def trig(k):
            r = cs[k & 1]
            angle(k, r + 1)
            a(f"v_cos_f32 v{r}, v{r+1}")
            a(f"v_sin_f32 v{r+1}, v{r+1}")
        trig(k0)
        for k in range(k0, len(self.re)):
            if k + 1 < len(self.re): trig(k + 1)
            else: a("s_nop 0")
            self.rot(k, cs[k & 1])

    def lin(self, vx, den, sign):
        self.twiddle(lambda k, d: self.a(f"v_mul_f32 v{d}, {flit(sign * k / den)}, v{vx}"))

    def lds_write(self, v, stride):
        for k in range(len(self.re)):
            self.a(f"ds_write_b64 v{v}, {P(self.re[k])} offset:{k*stride}")
            self.a(f"ds_write_b64 v{v}, {P(self.im[k])} offset:{k*stride+8}")

    def lds_read(self, v, stride, base):
        allr = sorted(self.re + self.im + self.t)
        n = len(self.re)
        assert allr == list(range(base, base + 4 * n + 2 * len(self.t), 2))
        self.re = [base + 4 * k for k in range(n)]
        self.im = [base + 4 * k + 2 for k in range(n)]
        self.t = [base + 4 * n + 2 * i for i in range(len(self.t))]
        for k in range(n):
            self.a(f"ds_read_b128 v[{base+4*k}:{base+4*k+3}], v{v} offset:{k*stride}")
            if k % 12 == 11: self.a("s_waitcnt lgkmcnt(4)")
        self.a("s_waitcnt lgkmcnt(0)")


B0 = 16
def newF(a):
    return PkFFT(a, [B0 + 4 * i for i in range(32)], [B0 + 4 * i + 2 for i in range(32)], [B0 + 128 + 2 * i for i in range(4)])


def fft1024(a, F, v_tau_f, v_lw, v_lr, sign):
    F.fft(sign)
    F.lin(v_tau_f, 1024.0, sign)
    F.lds_write(v_lw, 528)
    a("s_waitcnt lgkmcnt(0)")
    F.lds_read(v_lr, 16, B0)
    F.fft(sign)


def row_addr(a, V_TAU, V_F, V_TAUF, V_LW, V_LR, V_FB):
    a(f"""
    v_and_b32 v{V_TAU}, 31, v0
    v_lshrrev_b32 v{V_F}, 5, v0
    v_cvt_f32_u32 v{V_TAUF}, v{V_TAU}
    v_mul_u32_u24 v{V_FB}, {FB}, v{V_F}
    v_lshl_add_u32 v{V_LW}, v{V_TAU}, 4, v{V_FB}
    v_mul_u32_u24 v{V_LR}, 528, v{V_TAU}
    v_add_u32 v{V_LR}, v{V_LR}, v{V_FB}
    """)


def spec_addr(a, ST, V_KK, V_FB, V_Z, V_G):
    a(f"""
    v_and_b32 v{V_G}, 7, v0
    v_lshrrev_b32 v{V_KK}, 3, v0
    v_mul_u32_u24 v{V_FB}, {FB}, v{V_G}
    v_lshl_add_u32 v{V_Z}, v{V_KK}, 5, v{V_FB}
    v_lshlrev_b32 v{V_G}, 4, v{V_G}
    v_lshl_add_u32 v{V_G}, v{V_KK}, 15, v{V_G}
    v_lshlrev_b32 v{V_KK}, 1, v{V_KK}
    s_lshl_b32 s12, {ST}, 9
    s_add_u32 s12, s12, {WS_T}
    """)


def mirror(a, V_KK, V_FB, it, d0, d1):
    a(f"""
    v_sub_u32 v{d0}, {1024 - 64*it}, v{V_KK}
    v_add_u32 v{d1}, -1, v{d0}
    v_and_b32 v{d0}, 1023, v{d0}
    v_lshl_add_u32 v{d0}, v{d0}, 4, v{V_FB}
    v_lshl_add_u32 v{d1}, v{d1}, 4, v{V_FB}
    """)


def gen_f1(a: Asm, name, role, S_WS, side=()):
    ST = f"s{role}"
    V_TAU, V_F, V_TAUF, V_LW, V_LR, V_FB, V_T0, V_T1 = 1, 2, 3, 4, 5, 6, 7, 8
    a("s_barrier")
    a(f"s_load_dwordx2 s[4:5], s[0:1], {KA_BX}")
    consts(a)
    row_addr(a, V_TAU, V_F, V_TAUF, V_LW, V_LR, V_FB)
    for i in range(0, 128, 2):
        a(f"v_mov_b64 v[{B0+i}:{B0+i+1}], 0")
    a(f"""
    v_lshlrev_b32 v{V_T0}, 11, v{V_F}
    v_lshl_add_u32 v{V_T0}, v{V_TAU}, 1, v{V_T0}
    s_lshl_b32 s12, {ST}, 16
    s_add_u32 s13, s12, {8*2048}
    s_add_u32 s14, s12, {16*2048}
    s_add_u32 s15, s12, {24*2048}
    s_waitcnt lgkmcnt(0)
    s_mov_b32 s6, {4*MB}
    s_mov_b32 s7, 0x00020000
    """)
    for slot, so in ((0, 12), (2, 13), (1, 14), (3, 15)):
        for i in range(32):
            a(f"buffer_load_short_d16_hi v{B0+4*i+slot}, v{V_T0}, s[4:7], s{so} offen offset:{64*i}")
    a("s_waitcnt vmcnt(0)")
    F = newF(a)
    n0 = len(a.lines)
    fft1024(a, F, V_TAUF, V_LW, V_LR, -1)
    if side:
        body, a.lines = a.lines[n0:], a.lines[:n0]
        gap = len(body) // len(side)
        for i, l in enumerate(body):
            if i % gap == 0 and i // gap < len(side): a(side[i // gap])
            a.lines.append(l)
    F.lds_write(V_LW, 512)
    a("s_waitcnt lgkmcnt(0)\ns_barrier")
    V_KK, V_Z, V_G = 1, 4, 5
    spec_addr(a, ST, V_KK, V_FB, V_Z, V_G)
    def rd(it):
        b = 16 + 16 * (it & 1)
        mirror(a, V_KK, V_FB, it, V_T0, V_T1)
        a(f"""
        ds_read_b128 v[{b}:{b+3}], v{V_Z} offset:{1024*it}
        ds_read_b128 v[{b+4}:{b+7}], v{V_Z} offset:{1024*it+16}
        ds_read_b128 v[{b+8}:{b+11}], v{V_T0}
        ds_read_b128 v[{b+12}:{b+15}], v{V_T1}
        """)
    rd(0)
    for it in range(9):
        b, o = 16 + 16 * (it & 1), 48 + 16 * (it & 1)
        if it < 8: rd(it + 1)
        a(f"s_waitcnt lgkmcnt({4 if it < 8 else 0})")
        for h in range(2):
            for c in range(2):
                ar, ai, br, bi = b + 4 * c + h, b + 4 * c + 2 + h, b + 8 + 4 * c + h, b + 8 + 4 * c + 2 + h
                a(f"v_add_f32 v{o+8*h+c}, v{ar}, v{br}")
                a(f"v_sub_f32 v{o+8*h+2+c}, v{ai}, v{bi}")
                a(f"v_add_f32 v{o+8*h+4+c}, v{ai}, v{bi}")
                a(f"v_sub_f32 v{o+8*h+6+c}, v{br}, v{ar}")
        a(f"s_add_u32 s13, s12, {it * 32 * 32768}")
        if it == 8:
            a(f"v_cmp_eq_u32 vcc, 0, v{V_KK}\ns_and_saveexec_b64 s[14:15], vcc\ns_cbranch_execz {name}_e")
        for r in range(4):
            a(f"buffer_store_dwordx4 v[{o+4*r}:{o+4*r+3}], v{V_G}, s[{S_WS}:{S_WS+3}], s13 offen offset:{128*r} sc1")
    a.label(f"{name}_e")
    a("s_mov_b64 exec, -1")


def gen_f3(a: Asm, name, role, S_WS):
    ST = f"s{role}"
    V_KK, V_Z, V_G, V_FB, V_T0, V_T1 = 1, 4, 5, 6, 7, 8
    a("s_barrier")
    a(f"s_load_dwordx2 s[4:5], s[0:1], {KA_OUT}")
    consts(a)
    spec_addr(a, ST, V_KK, V_FB, V_Z, V_G)
    L0 = 48
    for it in range(9):
        a(f"s_add_u32 s13, s12, {it * 32 * 32768}")
        for r in range(4):
            d = L0 + 16 * it + 4 * r
            a(f"buffer_load_dwordx4 v[{d}:{d+3}], v{V_G}, s[{S_WS}:{S_WS+3}], s13 offen offset:{128*r} sc1")
    a(f"""
    v_cmp_eq_u32 vcc, 0, v{V_KK}
    s_waitcnt lgkmcnt(0)
    s_mov_b32 s6, {8*MB}
    s_mov_b32 s7, 0x00020000
    """)
    for it in range(9):
        d, o = L0 + 16 * it, 16 + 16 * (it & 1)
        mirror(a, V_KK, V_FB, it, V_T0, V_T1)
        a(f"s_waitcnt vmcnt({4 * (8 - it)})")
        if it in (0, 8):
            for r in range(4):
                a(f"v_cndmask_b32 v{d+4*r+2}, v{d+4*r+2}, 0, vcc")
        if it >= 2: a("s_waitcnt lgkmcnt(4)")
        for c in range(2 if it < 8 else 1):
            for h in range(2):
                yar, yai, ybr, ybi = d + 8 * h + c, d + 8 * h + 2 + c, d + 8 * h + 4 + c, d + 8 * h + 6 + c
                a(f"v_sub_f32 v{o+4*c+h}, v{yar}, v{ybi}")
                a(f"v_add_f32 v{o+4*c+2+h}, v{yai}, v{ybr}")
                a(f"v_add_f32 v{o+8+4*c+h}, v{yar}, v{ybi}")
                a(f"v_sub_f32 v{o+8+4*c+2+h}, v{ybr}, v{yai}")
        if it == 8:
            a(f"s_and_saveexec_b64 s[14:15], vcc\nds_write_b128 v{V_Z}, v[{o}:{o+3}] offset:{1024*it}\ns_mov_b64 exec, s[14:15]")
        else:
            a(f"""
            ds_write_b128 v{V_Z}, v[{o}:{o+3}] offset:{1024*it}
            ds_write_b128 v{V_Z}, v[{o+4}:{o+7}] offset:{1024*it+16}
            ds_write_b128 v{V_T0}, v[{o+8}:{o+11}]
            ds_write_b128 v{V_T1}, v[{o+12}:{o+15}]
            """)
    a("s_waitcnt lgkmcnt(0)\ns_barrier")
    V_TAU, V_F, V_TAUF, V_LW, V_LR = 1, 2, 3, 4, 5
    row_addr(a, V_TAU, V_F, V_TAUF, V_LW, V_LR, V_FB)
    F = newF(a)
    F.lds_read(V_LW, 512, B0)
    fft1024(a, F, V_TAUF, V_LW, V_LR, +1)
    a(f"v_lshl_add_u32 v{V_T0}, v{V_TAU}, 3, v{V_FB}")
    for i in range(32):
        a(f"ds_write_b64 v{V_T0}, {P(F.re[i])} offset:{256*i}")
        a(f"ds_write_b64 v{V_T0}, {P(F.im[i])} offset:{8192+256*i}")
    a("s_waitcnt lgkmcnt(0)\ns_barrier")
    a(f"""
    v_and_b32 v1, 127, v0
    v_lshrrev_b32 v2, 7, v0
    v_lshlrev_b32 v3, 6, v1
    v_lshl_add_u32 v3, v2, 13, v3
    v_add_u32 v4, {4*FB}, v3
    v_lshlrev_b32 v5, 4, v1
    v_lshl_add_u32 v5, v2, 15, v5
    s_lshl_b32 s12, {ST}, 17
    """)
    def rd(j):
        b = 16 + 16 * (j & 1)
        for q in range(4):
            a(f"ds_read_b128 v[{b+4*q}:{b+4*q+3}], v{3 if j < 4 else 4} offset:{FB*(j & 3) + 16*q}")
    rd(0)
    for j in range(8):
        b, o = 16 + 16 * (j & 1), 48 + 8 * (j & 1)
        if j < 7: rd(j + 1)
        a(f"s_waitcnt lgkmcnt({4 if j < 7 else 0})")
        for h in range(2):
            for q in range(4):
                a(f"v_cvt_pk_bf16_f32 v{o+4*h+q}, v{b+4*q+h}, v{b+4*q+2+h}")
        for h in range(2):
            a(f"s_add_u32 s13, s12, {4096*j + 65536*h}")
            a(f"buffer_store_dwordx4 v[{o+4*h}:{o+4*h+3}], v5, s[4:7], s13 offen offset:2048")


WR = 160
def w_setup(a: Asm, role):
    a(f"""
    s_load_dwordx2 s[40:41], s[0:1], {KA_WR}
    s_load_dwordx2 s[44:45], s[0:1], {KA_WI}
    v_mul_u32_u24 v156, 1026, v0
    v_and_b32 v156, -4, v156
    s_lshl_b32 s48, s{role}, 4
    s_waitcnt lgkmcnt(0)
    s_mov_b32 s42, {2048*513*2}
    s_mov_b32 s43, 0x00020000
    s_mov_b32 s46, {2048*513*2}
    s_mov_b32 s47, 0x00020000
    """)


def w_loads():
    L = []
    for arr in range(2):
        for i in range(8):
            d = WR + 6 * (8 * arr + i)
            L.append(f"s_add_u32 s49, s48, {256 * 1026 * i}\nbuffer_load_dwordx4 v[{d}:{d+3}], v156, s[{40+4*arr}:{43+4*arr}], s49 offen")
            L.append(f"buffer_load_dword v{d+4}, v156, s[{40+4*arr}:{43+4*arr}], s49 offen offset:16")
    return L


def w_place(a: Asm):
    a(f"""
    v_and_b32 v2, 1, v0
    v_lshlrev_b32 v2, 4, v2
    v_lshlrev_b32 v3, 4, v0
    s_waitcnt vmcnt(0)
    s_barrier
    """)
    for n in range(16):
        d = WR + 6 * n
        for j in range(4):
            a(f"v_alignbit_b32 v{d+j}, v{d+j+1}, v{d+j}, v2")
        a(f"ds_write_b128 v3, v[{d}:{d+3}] offset:{4096 * n}")
        if n % 8 == 7: a("s_waitcnt lgkmcnt(4)")
    a(f"""
    v_and_b32 v1, 1, v0
    v_bfe_u32 v2, v0, 1, 5
    v_lshlrev_b32 v1, 14, v1
    v_lshl_add_u32 v1, v2, 4, v1
    v_lshrrev_b32 v2, 6, v0
    v_lshl_add_u32 v1, v2, 2, v1
    s_waitcnt lgkmcnt(0)
    s_barrier
    """)
    for arr in range(2):
        for k in range(32):
            a(f"ds_read_b32 v{WR+32*arr+k}, v1 offset:{32768*arr + 512*k}")
            if k % 8 == 7: a("s_waitcnt lgkmcnt(6)")
    a("s_waitcnt lgkmcnt(0)")


def gen_f2(a: Asm, name, role, S_WS):
    ST = f"s{role}"
    SRD = f"s[{S_WS}:{S_WS+3}]"
    V_L, V_LF, V_LW, V_LR, V_T0, V_T1, V_B, V_K1F, V_BF, V_W, V_A0, V_SG = 1, 2, 3, 4, 5, 6, 7, 8, 9, 11, 12, 14
    WB = 32 * 66 * 16
    a("s_barrier")
    consts(a)
    a(f"""
    v_lshrrev_b32 v{V_T0}, 6, v0
    v_and_b32 v{V_L}, 63, v0
    v_readfirstlane_b32 s12, v{V_T0}
    s_lshl_b32 s13, {ST}, 2
    s_add_u32 s13, s13, s12
    s_cmp_ge_u32 s13, 257
    s_cbranch_scc1 {name}_end
    v_cvt_f32_u32 v{V_LF}, v{V_L}
    s_lshl_b32 s15, s13, 15
    s_add_u32 s15, s15, {WS_T}
    v_lshlrev_b32 v10, 4, v{V_L}
    """)
    for i in range(32):
        if i % 4 == 0: a(f"s_add_u32 s16, s15, {1024*i}")
        a(f"buffer_load_dwordx4 v[{B0+4*i}:{B0+4*i+3}], v10, {SRD}, s16 offen offset:{1024*(i & 3)} sc1")
    a(f"""
    s_mul_i32 s17, s12, {WB}
    v_add_u32 v{V_LW}, s17, v10
    v_and_b32 v{V_B}, 1, v{V_L}
    v_lshrrev_b32 v{V_T1}, 1, v{V_L}          ; k1
    v_cvt_f32_u32 v{V_K1F}, v{V_T1}
    v_cvt_f32_u32 v{V_BF}, v{V_B}
    v_mul_u32_u24 v{V_LR}, 1056, v{V_T1}
    v_lshl_add_u32 v{V_LR}, v{V_B}, 4, v{V_LR}
    v_add_u32 v{V_LR}, s17, v{V_LR}
    v_mov_b32 v{V_SG}, 1.0
    v_fma_f32 v{V_SG}, v{V_BF}, -2.0, v{V_SG}
    s_waitcnt vmcnt(0)
    """)
    F = newF(a)
    F.fft(-1)
    F.lin(V_LF, 2048.0, -1)
    F.lds_write(V_LW, 1056)
    a("s_waitcnt lgkmcnt(0)")
    F.lds_read(V_LR, 32, B0)
    F.fft(-1)
    F.lin(V_BF, 64.0, -1)

    def cross():
        a.nops(2)
        n = 0
        for k in range(32):
            for arr in (F.re, F.im):
                t = F.t[n & 1]; n += 1
                a(f"v_mov_b32_dpp v{t}, v{arr[k]} quad_perm:[1,0,3,2] row_mask:0xf bank_mask:0xf")
                a(f"v_mov_b32_dpp v{t+1}, v{arr[k]+1} quad_perm:[1,0,3,2] row_mask:0xf bank_mask:0xf")
                a(f"v_pk_fma_f32 {P(arr[k])}, {P(arr[k])}, {P(V_SG)}, {P(t)} op_sel_hi:[1,0,1]")
    cross()
    for k in range(32):
        t0, tR, w = F.t[1], F.t[0], F.t[2]
        a(f"v_lshlrev_b32 v{t0}, 16, v{WR+k}")
        a(f"v_and_b32 v{t0+1}, 0xffff0000, v{WR+k}")
        a(f"v_lshlrev_b32 v{w}, 16, v{WR+32+k}")
        a(f"v_and_b32 v{w+1}, 0xffff0000, v{WR+32+k}")
        a(f"v_pk_mul_f32 {P(tR)}, {P(F.re[k])}, {P(t0)}")
        a(f"v_pk_fma_f32 {P(tR)}, {P(F.im[k])}, {P(w)}, {P(tR)} neg_lo:[1,0,0] neg_hi:[1,0,0]")
        a(f"v_pk_mul_f32 {P(F.im[k])}, {P(F.im[k])}, {P(t0)}")
        a(f"v_pk_fma_f32 {P(F.im[k])}, {P(F.re[k])}, {P(w)}, {P(F.im[k])}")
        F.t[0], F.re[k] = F.re[k], tR
    cross()
    F.lin(V_BF, 64.0, +1)
    F.fft(+1)
    a(f"v_mul_f32 v{V_A0}, v{V_BF}, v{V_K1F}")
    a(f"v_mul_f32 v{V_A0}, {flit(1.0/2048.0)}, v{V_A0}")
    F.twiddle(lambda m, d: a(f"v_fmamk_f32 v{d}, v{V_K1F}, {flit(2.0*m/2048.0)}, v{V_A0}"), 0)
    F.lds_write(V_LR, 32)
    a("s_waitcnt lgkmcnt(0)")
    F.lds_read(V_LW, 1056, B0)
    F.fft(+1)
    a(f"s_mov_b32 s20, {flit(SCALE)}")
    for i in range(32):
        pr = WR + 4 * (i % 8)
        a(f"v_pk_mul_f32 {P(pr)}, {P(F.re[i])}, s[20:21] op_sel_hi:[1,0]")
        a(f"v_pk_mul_f32 {P(pr+2)}, {P(F.im[i])}, s[20:21] op_sel_hi:[1,0]")
        if i % 4 == 0: a(f"s_add_u32 s16, s15, {1024*i}")
        a(f"buffer_store_dwordx4 v[{pr}:{pr+3}], v10, {SRD}, s16 offen offset:{1024*(i & 3)} sc1")
    a.label(f"{name}_end")
```

```python
from common import *

WS_QX = 0
WS_KX = 16 * MB
WS_VT = 32 * MB
WS_O = 48 * MB
WS_XB = 64 * MB
WS_MEMX = 66 * MB
WS_PART = 67 * MB
WS_FL = 68 * MB
WS_KVM = 170 * MB
WS_PROF = 200 * MB
if os.environ.get("LAYOUT") == "hi":
    WS_QX, WS_KX, WS_VT, WS_O = 122 * MB, 138 * MB, 154 * MB, 186 * MB
    WS_XB, WS_MEMX, WS_PART, WS_FL = 192 * MB, 194 * MB, 195 * MB, 196 * MB

DBG_VOTE = 204

LDS_MEM = 131072
LDS_X = LDS_MEM + 8192
LDS_O = LDS_X + 20480
LDS_REC = LDS_O + 2048

S_J, S_H = 30, 31
ML = int(os.environ.get('ML', '1'))


def global_init(a: Asm, name, S_WS):
    SRD = f"s[{S_WS}:{S_WS+3}]"
    a(f"""
    v_mov_b32 v4, 0
    v_mov_b32 v5, 0
    v_mov_b32 v6, 0
    v_mov_b32 v7, 0
    v_lshlrev_b32 v1, 4, v0
    s_lshl_b32 s81, s2, 13
    s_add_u32 s81, s81, {WS_XB}
    s_add_u32 s79, s81, 4096
    buffer_store_dwordx4 v[4:7], v1, {SRD}, s81 offen sc1
    buffer_store_dwordx4 v[4:7], v1, {SRD}, s79 offen sc1
    s_lshl_b32 s81, s2, 12
    s_add_u32 s81, s81, {WS_PART}
    buffer_store_dwordx4 v[4:7], v1, {SRD}, s81 offen sc1
    v_mov_b32 v9, -1
    v_lshlrev_b32 v1, 2, v0
    s_lshl_b32 s81, s2, 7
    s_add_u32 s81, s81, {WS_MEMX}
    v_cmp_gt_u32 vcc, 32, v0
    v_bfrev_b32 v2, 1
    s_nop 0
    v_cndmask_b32 v1, v2, v1, vcc
    buffer_store_dword v9, v1, {SRD}, s81 offen sc1
    """)


def mem0_publish(a: Asm, S_WS, S_T):
    a(f"""
    s_load_dwordx2 s[72:73], s[0:1], {KA_MEM0}
    v_bfe_u32 v2, v0, 1, 1
    v_lshlrev_b32 v2, 11, v2
    v_bfe_u32 v3, v0, 2, 3
    v_lshl_add_u32 v2, v3, 2, v2
    v_and_b32 v3, 1, v0
    v_lshl_add_u32 v2, v3, 1, v2
    s_lshr_b32 s81, s{S_T}, 2
    s_lshl_b32 s81, s81, 7
    s_and_b32 s79, s{S_T}, 3
    s_lshl_b32 s79, s79, 12
    s_add_u32 s81, s81, s79
    s_waitcnt lgkmcnt(0)
    s_mov_b32 s74, 16384
    s_mov_b32 s75, 0x00020000
    buffer_load_ushort v4, v2, s[72:75], s81 offen
    buffer_load_ushort v5, v2, s[72:75], s81 offen offset:32
    buffer_load_ushort v6, v2, s[72:75], s81 offen offset:64
    buffer_load_ushort v7, v2, s[72:75], s81 offen offset:96
    v_and_b32 v1, 7, v0
    v_lshlrev_b32 v1, 3, v1
    v_bfe_u32 v3, v0, 3, 2
    v_lshl_add_u32 v1, v3, 8, v1
    v_cmp_gt_u32 vcc, 32, v0
    v_bfrev_b32 v3, 1
    s_lshr_b32 s81, s{S_T}, 2
    s_lshl_b32 s81, s81, 10
    v_cndmask_b32 v1, v3, v1, vcc
    s_and_b32 s79, s{S_T}, 3
    s_lshl_b32 s79, s79, 6
    s_add_u32 s81, s81, s79
    s_add_u32 s81, s81, {WS_MEMX}
    s_waitcnt vmcnt(0)
    v_lshl_or_b32 v4, v5, 16, v4
    v_lshl_or_b32 v5, v7, 16, v6
    v_min_u32 v4, -2, v4
    buffer_store_dwordx2 v[4:5], v1, s[{S_WS}:{S_WS+3}], s81 offen sc1
    """)


def rec_body(a: Asm, name, IS, nsteps=64, prof=False, wd=False, full=False, S_VOTE=None, opt={}, tstamp=None, hooks=None):
    S_WS, S_W, S_DBG = 4, 8, 12
    S_WAVE, S_STEP, S_T0, S_T1, S_T2 = 20, 21, 22, 23, 24
    S_MLO, S_MQ, S_MK = 26, 28, 32
    S_C = 34
    S_MEMR, S_MEMW, S_XOUT, S_XIN, S_VOUT, S_VIN, S_PHX, S_PHP = 35, 36, 37, 38, 39, 40, 41, 42
    S_KX, S_VX, S_KVM, S_PARTW, S_PARTR, S_M0X = 43, 44, 45, 46, 47, 48
    S_WD = 49
    S_PQ, S_PK, S_PV, S_PO, S_PM = 50, 52, 54, 56, 58
    S_SEL, S_PARTW2, S_PARTR2 = 60, 61, 25
    S_PUBK, S_PUBV = 16, 18
    S_KVV = 51
    S_PI = 52
    S_M0O = 43
    V_L16, V_IDX, V_T0, V_T1, V_LH, V_LL = 1, 2, 3, 4, 5, 6
    V_FL, V_OPART, V_OMP, V_OKM, V_OVM, V_OMR, V_OCR = 7, 8, 9, 10, 11, 12, 13
    V_Z = 14
    V_SEL, V_TAGM, V_PB1, V_SELR, V_ONE = 16, 34, 20, 24, 28
    V_PV = 18
    V_WV, V_WV2 = 32, 33
    V_M, V_ST, V_AQ, V_AV, V_VX = 32, 64, 96, 112, 120
    V_WO = 128
    V_KX = 32
    V_X, V_S = 64, 80
    G, PG, DO = 96, 108, 100
    V_ACC = 32

    WO_ORDER = [(T, kp) for T in range(8) for kp in range(2)]
    NL = opt.get('nl', 10)
    WO_R, WO_L = WO_ORDER[:NL], WO_ORDER[NL:]
    def wv_reg(op): return V_WO + 8 * op
    PSTR = opt.get('pstr', 8448)
    PL = opt.get('pl', 1)
    OSTR = opt.get('ostr', 2048)
    XL, XS = opt.get('xl', 'sc1'), opt.get('xs', 'sc1')
    KS = opt.get('ks', 'sc1')
    NST = 18
    def stamp(i):
        if not prof: return
        assert i < NST
        a(f"{'s_memrealtime' if prof == 'rt' else 's_memtime'} s[{62+2*i}:{63+2*i}]")

    def dump():
        if not prof: return
        l = a.newlabel(name + "_dp")
        a(f"""
        s_and_b32 s{S_T0}, s{S_STEP}, 15
        s_cmp_lg_u32 s{S_T0}, 9
        s_cbranch_scc1 {l}
        s_lshr_b32 s{S_T1}, s{S_STEP}, 4
        s_lshl_b32 s{S_T0}, s{S_J}, 5
        s_add_u32 s{S_T0}, s{S_T0}, s{S_H}
        s_lshl_b32 s{S_T0}, s{S_T0}, 2
        s_add_u32 s{S_T0}, s{S_T0}, s{S_WAVE}
        s_lshl_b32 s{S_T0}, s{S_T0}, 2
        s_add_u32 s{S_T0}, s{S_T0}, s{S_T1}
        s_lshl_b32 s{S_T0}, s{S_T0}, 7
        s_add_u32 s{S_T0}, s{S_T0}, {WS_PROF + 2*MB}
        s_waitcnt lgkmcnt(0)
        s_mov_b64 exec, 1
        """)
        for i in range(NST):
            a(f"v_mov_b32 v{V_T0}, s{62+2*i}")
            a(f"buffer_store_dword v{V_T0}, v{V_Z}, s[{S_WS}:{S_WS+3}], s{S_T0} offen offset:{4*i}")
        a("s_mov_b64 exec, -1")
        a.label(l)

    def watchdog(code, cidx=None):
        if opt.get("tot") and cidx is not None:
            a(f"s_add_u32 s{84+cidx}, s{84+cidx}, 1")
        if not wd: return
        a(f"s_add_u32 s{S_WD}, s{S_WD}, 1")
        a(f"s_cmp_gt_u32 s{S_WD}, 400000")
        a(f"s_movk_i32 s{S_T2}, {code}")
        a(f"s_cbranch_scc1 {name}_wdexit")

    a(f"""
    s_load_dwordx2 s[{S_WS}:{S_WS+1}], s[0:1], {KA_WS}
    s_load_dwordx2 s[{S_DBG}:{S_DBG+1}], s[0:1], {KA_DBG}
    s_load_dwordx2 s[{S_PQ}:{S_PQ+1}], s[0:1], {KA_WQ}
    s_load_dwordx2 s[{S_PK}:{S_PK+1}], s[0:1], {KA_WK}
    s_load_dwordx2 s[{S_PV}:{S_PV+1}], s[0:1], {KA_WV}
    s_load_dwordx2 s[{S_PO}:{S_PO+1}], s[0:1], {KA_WO}
    s_load_dwordx2 s[{S_PM}:{S_PM+1}], s[0:1], {KA_MEM0}
    v_lshrrev_b32 v{V_T0}, 6, v0
    v_and_b32 v40, 63, v0                  ; lane
    v_readfirstlane_b32 s{S_WAVE}, v{V_T0}
    v_lshrrev_b32 v41, 4, v40              ; g
    v_and_b32 v42, 15, v40                 ; c
    v_lshlrev_b32 v{V_L16}, 4, v40
    s_mov_b32 s{S_WD}, 0
    s_waitcnt lgkmcnt(0)
    s_mov_b32 s{S_WS+2}, {WS_BYTES}
    s_mov_b32 s{S_WS+3}, 0x00020000
    s_mov_b32 s{S_DBG+2}, 256
    s_mov_b32 s{S_DBG+3}, 0x00020000
    s_mov_b32 s{S_W+2}, {8*MB}
    s_mov_b32 s{S_W+3}, 0x00020000
    s_mov_b32 s{S_MLO}, 0x00030003
    s_mov_b32 s{S_MLO+1}, 0x00030003
    s_mov_b32 s{S_MQ}, 0xcccccccc
    s_mov_b32 s{S_MQ+1}, 0xcccccccc
    s_mov_b32 s{S_MK}, 0x33333333
    s_mov_b32 s{S_MK+1}, 0x33333333
    s_mov_b32 s{S_C}, 0x3e0293ee
    """)
    VDQ, VDO, VRB, VRO = 44, 45, 46, 47
    a(f"""
    ; qkv dma voffset: (512 j + 16 g + w)*8192 + h*256 + ((c ^ 4w) * 16)
    s_lshl_b32 s{S_T0}, s{S_WAVE}, 2
    v_xor_b32 v{V_T0}, s{S_T0}, v42
    v_lshlrev_b32 v{V_T0}, 4, v{V_T0}
    v_lshl_add_u32 v{V_T1}, v41, 4, s{S_WAVE}
    v_lshl_add_u32 v{VDQ}, v{V_T1}, 13, v{V_T0}
    s_lshl_b32 s{S_T0}, s{S_J}, 22
    s_lshl_b32 s{S_T1}, s{S_H}, 8
    s_add_u32 s{S_T0}, s{S_T0}, s{S_T1}
    v_add_u32 v{VDQ}, s{S_T0}, v{VDQ}
    s_and_b32 s{S_T1}, s{S_WAVE}, 1
    s_lshl_b32 s{S_T1}, s{S_T1}, 7
    v_xor_b32 v{VDO}, s{S_T1}, v{V_L16}
    s_lshl_b32 s{S_T0}, s{S_H}, 18
    s_lshl_b32 s{S_T1}, s{S_WAVE}, 13
    s_add_u32 s{S_T0}, s{S_T0}, s{S_T1}
    s_lshl_b32 s{S_T1}, s{S_J}, 10
    s_add_u32 s{S_T0}, s{S_T0}, s{S_T1}
    v_add_u32 v{VDO}, s{S_T0}, v{VDO}
    v_xor_b32 v61, 32, v{VDO}
    v_xor_b32 v62, 64, v{VDO}
    v_xor_b32 v63, 96, v{VDO}
    s_lshl_b32 s{S_M0O}, s{S_WAVE}, 12
    s_lshl_b32 s{S_M0X}, s{S_WAVE}, 10
    """)

    if opt.get("word") == "oiv":
        units = [("o", k) for k in range(8)] + [(mm, k) for k in range(8) for mm in "qk"] + [("v", k) for k in range(8)]
    elif opt.get("word") == "iov":
        units = [(mm, k) for k in range(8) for mm in "qk"] + [("o", k) for k in range(8)] + [("v", k) for k in range(8)]
    else:
        units = [(mm, k) for mm in opt.get("word", "qkov") for k in range(8)]

    def dma_unit(u):
        m, k = units[u]
        slot = (u & 7) * 16384
        if u == 0 or units[u - 1][0] != m:
            p = dict(q=S_PQ, k=S_PK, v=S_PV, o=S_PO)[m]
            a(f"s_mov_b32 s{S_W}, s{p}\ns_mov_b32 s{S_W+1}, s{p+1}")
        for i in range(4):
            if m == "o":
                a(f"s_add_u32 m0, s{S_M0O}, {slot + 1024 * i}")
                so = (64 * (k >> 2) + 16 * ((k >> 1) & 1) + 2 * (k & 1) + 32 * (i >> 1) + (i & 1)) * 2048
                vo = (VDO, 61, 62, 63)[i]
            else:
                a(f"s_add_u32 m0, s{S_M0X}, {slot + 4096 * i}")
                so = (64 * k + 4 * i) * 8192
                vo = VDQ
            a(f"s_mov_b32 s{S_T0}, {so}")
            a(f"buffer_load_dwordx4 v{vo}, s[{S_W}:{S_W+3}], s{S_T0} offen {opt.get('wnt', '')} lds")

    for u in range(8):
        dma_unit(u)
        if u == 2 and hooks: hooks[0](12)

    if tstamp and opt.get('pst'): tstamp()
    a(f"""
    s_lshl_b32 s{S_T0}, s{S_J}, 5
    s_add_u32 s{S_T0}, s{S_T0}, s{S_H}
    s_lshl_b32 s{S_XIN}, s{S_T0}, 14
    s_xor_b32 s{S_T0}, s{S_T0}, 32
    s_lshl_b32 s{S_XOUT}, s{S_T0}, 14
    s_add_u32 s{S_XIN}, s{S_XIN}, {WS_XB}
    s_add_u32 s{S_XOUT}, s{S_XOUT}, {WS_XB}
    s_lshl_b32 s{S_PARTW}, s{S_J}, 19
    s_add_u32 s{S_PARTW}, s{S_PARTW}, {WS_PART}
    s_mul_i32 s{S_T0}, s{S_H}, {PSTR}
    s_add_u32 s{S_PARTR}, s{S_PARTW}, s{S_T0}
    s_mul_i32 s{S_T0}, s{S_WAVE}, {8*PSTR}
    s_add_u32 s{S_PARTW}, s{S_PARTW}, s{S_T0}
    s_lshl_b32 s{S_T0}, s{S_H}, {6 if PL else 8}
    s_add_u32 s{S_PARTW}, s{S_PARTW}, s{S_T0}
    s_add_u32 s{S_PARTW2}, s{S_PARTW}, {4*PSTR}
    s_mul_i32 s{S_T0}, s{S_WAVE}, {OSTR}
    s_add_u32 s{S_PARTR2}, s{S_PARTR}, {'s%d' % S_T0 if PL else 4096}
    s_lshl_b32 s{S_MEMR}, s{S_J}, 13
    s_add_u32 s{S_MEMR}, s{S_MEMR}, {WS_MEMX}
    v_lshrrev_b32 v53, 2, v42
    v_lshlrev_b32 v53, 1, v53
    v_and_b32 v54, 1, v42
    v_add_u32 v55, v53, v54               ; m(c)
    """)
    a(f"""
    v_mov_b32 v{V_Z}, 0
    v_mov_b32 v{V_Z+1}, 0
    v_mov_b32 v{V_IDX}, 0x4444
    v_mov_b32 v{V_T0}, 0xeeee
    v_cndmask_b32 v{V_IDX}, v{V_IDX}, v{V_T0}, s[{S_MQ}:{S_MQ+1}]
    s_lshl_b32 s{S_T0}, s{S_WAVE}, 12
    v_add_u32 v{V_WV}, s{S_T0}, v{V_L16}
    v_add_u32 v{V_WV2}, 0x10000, v{V_WV}
    v_add_u32 v{V_LH}, 0x10000, v{V_L16}
    v_add_u32 v{V_LL}, {LDS_MEM}, v{V_L16}
    v_and_b32 v{V_T0}, 3, v42
    v_bfe_u32 v43, v40, 1, 1
    v_lshlrev_b32 v{V_FL}, 13, v43
    v_and_b32 v43, 1, v40
    v_lshl_add_u32 v{V_FL}, v43, 7, v{V_FL}
    s_lshl_b32 s{S_T0}, s{S_H}, 8
    s_add_u32 s{S_T1}, s{S_T0}, {WS_FL + 8192}
    v_add_u32 v{V_FL}, s{S_T1}, v{V_FL}
    s_cmp_lg_u32 s{S_WAVE}, 0
    s_cbranch_scc1 {name}_flk
    s_lshl_b32 s{S_T1}, s{S_J}, 7
    s_add_u32 s{S_T0}, s{S_T0}, s{S_T1}
    s_add_u32 s{S_T0}, s{S_T0}, {WS_FL + 192 * 128}
    v_bfrev_b32 v{V_FL}, 1
    v_writelane_b32 v{V_FL}, s{S_T0}, 0
    {name}_flk:
    v_lshlrev_b32 v{V_OVM}, 3, v40
    ; k_m publish: m(c)*256 + g*16 (+ w*64)
    v_lshlrev_b32 v{V_OKM}, 8, v55
    v_lshl_add_u32 v{V_OKM}, v41, 4, v{V_OKM}
    v_mul_u32_u24 v{V_OPART}, {PSTR}, v41
    """)
    if PL:
        a(f"""
        v_lshl_add_u32 v{V_OPART}, v{V_T0}, 4, v{V_OPART}
        v_lshrrev_b32 v{V_T1}, 2, v42
        v_mul_u32_u24 v{V_T1}, {OSTR}, v{V_T1}
        v_add_u32 v{V_OPART}, v{V_T1}, v{V_OPART}
        """)
    else:
        a(f"v_lshl_add_u32 v{V_OPART}, v42, 4, v{V_OPART}")
    a(f"""
    v_lshrrev_b32 v{V_OMP}, 1, v41
    v_lshlrev_b32 v{V_OMP}, 5, v{V_OMP}
    v_and_b32 v{V_T1}, 1, v42
    v_lshl_add_u32 v{V_OMP}, v{V_T1}, 4, v{V_OMP}
    v_and_b32 v{V_T1}, 1, v41
    v_lshl_add_u32 v{V_OMP}, v{V_T1}, 3, v{V_OMP}
    s_lshr_b32 s{S_T0}, s{S_H}, 2
    s_lshl_b32 s{S_T0}, s{S_T0}, 10
    s_and_b32 s{S_T1}, s{S_H}, 3
    s_lshl_b32 s{S_T1}, s{S_T1}, {6 if ML else 8}
    s_add_u32 s{S_T0}, s{S_T0}, s{S_T1}
    v_add_u32 v{V_OMP}, s{S_T0}, v{V_OMP}
    """)
    C4 = opt.get("c4", 0)
    if C4:
        a(f"""
        v_lshrrev_b32 v{V_OMP}, 1, v42
        v_lshlrev_b32 v{V_OMP}, 5, v{V_OMP}
        v_and_b32 v{V_T1}, 1, v41
        v_lshl_add_u32 v{V_OMP}, v{V_T1}, 4, v{V_OMP}
        v_and_b32 v{V_T1}, 1, v42
        v_lshl_add_u32 v{V_OMP}, v{V_T1}, 3, v{V_OMP}
        v_lshrrev_b32 v{V_T1}, 1, v41
        v_lshl_add_u32 v{V_OMP}, v{V_T1}, 2, v{V_OMP}
        v_add_u32 v{V_OMP}, s{S_T0}, v{V_OMP}
        s_mov_b32 s{S_MLO}, 0x000f000f
        s_mov_b32 s{S_MLO+1}, 0x000f000f
        """)
    a(f"""
    v_lshrrev_b32 v{V_T1}, 2, v42
    v_lshlrev_b32 v{V_OMR}, 8, v{V_T1}
    v_lshl_add_u32 v{V_OMR}, v41, 6, v{V_OMR}
    v_lshl_add_u32 v{V_OMR}, v{V_T0}, 4, v{V_OMR}
    v_lshlrev_b32 v{V_OCR}, {6 if PL else 8}, v41
    v_lshl_add_u32 v{V_OCR}, v42, 2, v{V_OCR}
    v_cmp_eq_u32 vcc, 0, v{V_T0}
    v_mov_b32 v{V_ONE}, 0x3f803f80
    v_mov_b32 v{V_ONE+1}, 0x3f803f80
    v_cndmask_b32 v{V_TAGM}, 0, 1, vcc
    v_mov_b32 v{V_ONE+2}, 0x3f803f80
    v_mov_b32 v{V_ONE+3}, 0x3f803f80
    """)
    a(f"""
    v_and_b32 v49, 1, v42
    v_lshlrev_b32 v49, 4, v49
    v_mov_b32 v50, 0x3f80
    v_lshlrev_b32 v50, v49, v50           ; 1.0 in low/high half by parity
    v_lshrrev_b32 v51, 2, v42
    v_cmp_eq_u32 vcc, v51, v41
    v_mov_b32 v{V_SELR}, v50
    v_cndmask_b32 v52, 0, v50, s[{S_MQ}:{S_MQ+1}]
    v_cndmask_b32 v53, 0, v50, s[{S_MK}:{S_MK+1}]
    v_cndmask_b32 v{V_SEL}, 0, v52, vcc
    v_cndmask_b32 v{V_SEL+1}, 0, v53, vcc
    v_mov_b32 v{V_SELR+1}, v50
    v_mov_b32 v{V_SELR+2}, v50
    v_mov_b32 v{V_SELR+3}, v50
    """)
    if C4:
        a(f"""
        v_bfe_u32 v49, v42, 2, 1
        v_lshlrev_b32 v49, 4, v49
        v_mov_b32 v50, 0x3f80
        v_lshlrev_b32 v50, v49, v50
        v_and_b32 v51, 11, v42
        """)
        for d, val in enumerate((0, 1, 8, 9)):
            a(f"v_cmp_eq_u32 vcc, {val}, v51")
            a("s_nop 1")
            a(f"v_cndmask_b32 v{V_SELR+d}, 0, v50, vcc")
    a(f"""
    v_bfe_u32 v60, v40, 3, 1              ; r>>1
    v_bfe_u32 v49, v40, 2, 1              ; r&1
    v_and_b32 v50, 1, v41                 ; gb&1
    v_lshrrev_b32 v51, 1, v41             ; gb>>1
    v_lshlrev_b32 v52, 3, v60
    v_lshl_add_u32 v52, v50, 2, v52       ; rho&12
    v_lshl_add_u32 v53, v51, 4, v52
    v_add_u32 v53, v53, v49               ; rho0
    v_and_b32 v54, 3, v40                 ; cc
    s_lshl_b32 s{S_T0}, s{S_WAVE}, 2
    v_add_u32 v55, s{S_T0}, v54
    v_xor_b32 v55, v55, v52
    v_lshlrev_b32 v55, 4, v55
    v_lshl_add_u32 v{VRB}, v53, 8, v55
    v_lshrrev_b32 v55, 2, v40
    v_lshlrev_b32 v{VRO}, 10, v55
    v_and_b32 v55, 7, v55
    v_lshl_add_u32 v{VRO}, v55, 5, v{VRO}
    v_lshl_add_u32 v{VRO}, v54, 3, v{VRO}
    s_lshl_b32 s{S_T0}, s{S_WAVE}, 8
    v_add_u32 v{VRO}, s{S_T0}, v{VRO}
    """)
    U_POLL, U_VER = 12, 22
    def vback(k):
        src = 64 + 16 * (k & 1)
        for q in range(4):
            vb = V_WV if k < 4 else V_WV2
            a(f"ds_write_b128 v{vb}, v[{src+4*q}:{src+3+4*q}] offset:{(k & 3) * 16384 + q * 1024}")
    if tstamp and opt.get('pst'): tstamp()
    for u in range(32):
        m, k = units[u]
        slot = (u & 7) * 16384
        assert NL == 16
        a(f"s_waitcnt vmcnt({4 * (min(max(u, 1) + 7, 32) - u - 1)}) lgkmcnt(0)")
        a("s_barrier")
        if u and u + 7 < 32: dma_unit(u + 7)
        if u and units[u - 1][0] == "v": vback(units[u - 1][1])
        if tstamp and opt.get("pst") and u % 4 == 0: tstamp()
        if u == 26 and opt.get("warm", 1):
            a(f"""
            s_getpc_b64 s[16:17]
            {name}_pc0:
            s_add_u32 s16, s16, {name}_w0_entry - {name}_pc0
            s_addc_u32 s17, s17, 0
            v_lshlrev_b32 v49, 7, v0
            v_min_u32 v49, {name}_end - {name}_w0_entry, v49
            global_load_dword v50, v49, s[16:17]
            v_lshlrev_b32 v49, 7, v40
            s_xor_b32 s{S_T1}, s{S_MEMR}, 16384
            s_cmp_eq_u32 s{S_WAVE}, 1
            s_cselect_b32 s{S_T0}, s{S_MEMR}, s{S_PARTR}
            s_cmp_eq_u32 s{S_WAVE}, 2
            s_cselect_b32 s{S_T0}, s{S_T1}, s{S_T0}
            s_lshl_b32 s{S_T1}, s{S_H}, 13
            s_add_u32 s{S_T1}, s{S_T1}, {WS_KVM}
            s_cmp_eq_u32 s{S_WAVE}, 3
            s_cselect_b32 s{S_T0}, s{S_T1}, s{S_T0}
            buffer_load_dword v51, v49, s[{S_WS}:{S_WS+3}], s{S_T0} offen sc1
            v_lshlrev_b32 v49, 13, v0
            v_and_b32 v49, 0x1fffff, v49
            s_mov_b32 s{S_T0}, {WS_XB}
            buffer_load_dword v52, v49, s[{S_WS}:{S_WS+3}], s{S_T0} offen sc1
            buffer_load_dword v57, v{V_FL}, s[{S_WS}:{S_WS+3}], 0 offen sc1
            """)
        if u == U_POLL and hooks:
            hooks[1]()
            a(f"buffer_load_dword v58, off, s[{S_DBG}:{S_DBG+3}], 0 offset:{DBG_VOTE} sc1")
        if u == U_VER and hooks: hooks[2]()
        if m in "qkv":
            a(f"v_add_u32 v48, {slot}, v{VRB}")
            for tau in range(2):
                for rh in range(2):
                    for dp in range(2):
                        off = rh * 8192 + dp * 512 + 8 * tau
                        if m == "v":
                            d = 64 + 16 * (k & 1) + tau * 8 + rh * 4 + dp * 2
                            a(f"ds_read_b64_tr_b16 v[{d}:{d+1}], v48 offset:{off}")
                        else:
                            d = (128 if m == "k" else 0) + (k * 2 + tau) * 8 + rh * 4 + dp * 2
                            a(f"ds_read_b64_tr_b16 a[{d}:{d+1}], v48 offset:{off}")
        else:
            a(f"v_add_u32 v48, {slot}, v{VRO}")
            for T8 in range(8):
                d = V_WO + 8 * WO_R.index((T8, k >> 2)) + 2 * (k & 3)
                a(f"v_xor_b32 v59, {32 * T8}, v48")
                a(f"ds_read_b64_tr_b16 v[{d}:{d+1}], v59")
    a("s_waitcnt lgkmcnt(0)\ns_barrier")
    vback(7)
    a("s_waitcnt lgkmcnt(0)")
    if opt.get("help"):
        n = opt["help"]
        a(f"""
        v_lshlrev_b32 v49, 7, v40
        s_and_b32 s{S_T0}, s{S_H}, {64 // n - 1}
        s_lshl_b32 s{S_T0}, s{S_T0}, 2
        s_add_u32 s{S_T0}, s{S_T0}, s{S_WAVE}
        s_mul_i32 s{S_T0}, s{S_T0}, {n * 8192}
        s_lshl_b32 s{S_T1}, s{S_J}, 22
        s_add_u32 s{S_T0}, s{S_T0}, s{S_T1}
        s_add_u32 s{S_T0}, s{S_T0}, {2*MB}
        """)
        for i in range(n):
            a(f"buffer_load_dword v50, v49, s[{S_W}:{S_W+3}], s{S_T0} offen")
            a(f"s_add_u32 s{S_T0}, s{S_T0}, 8192")
    if prof or opt.get("tot"):
        for i in range(62, 98):
            a(f"s_mov_b32 s{i}, 0")
    if S_VOTE:
        a(f"s_branch {name}_iw1" if hooks else "")
        a.label(f"{name}_iw")
        watchdog(1)
        a(f"""
        buffer_load_dword v58, off, s[{S_DBG}:{S_DBG+3}], 0 offset:{DBG_VOTE} sc1
        s_waitcnt vmcnt(0)
        {name}_iw1:
        v_and_b32 v50, 0xffff, v58
        v_readfirstlane_b32 s{S_SEL}, v58
        v_cmp_ne_u32 vcc, s{S_VOTE}, v50
        s_cbranch_vccnz {name}_iw
        s_lshr_b32 s{S_SEL}, s{S_SEL}, 15
        s_cmp_gt_u32 s{S_SEL}, s{S_VOTE}
        s_cselect_b32 s{S_SEL}, 8192, 0
        """)
    else:
        a(f"""
        s_mov_b32 s{S_T0}, {WS_PROF + 3*MB}
        buffer_load_dword v48, v{V_Z}, s[{S_WS}:{S_WS+3}], s{S_T0} offen
        s_waitcnt vmcnt(0)
        v_readfirstlane_b32 s{S_SEL}, v48
        s_nop 3
        s_and_b32 s{S_SEL}, s{S_SEL}, 8192
        """)
    a(f"""
    {f"s_mov_b32 s{S_T0}, {opt['xpage']}" if 'xpage' in opt else f"s_bfe_u32 s{S_T0}, s{S_H}, 0x10001"}
    s_lshl_b32 s{S_T0}, s{S_T0}, 12
    s_add_u32 s{S_T0}, s{S_T0}, s{S_SEL}
    s_lshl_b32 s{S_T1}, s{S_WAVE}, 10
    s_add_u32 s{S_T0}, s{S_T0}, s{S_T1}
    s_add_u32 s{S_XIN}, s{S_XIN}, s{S_T0}
    s_add_u32 s{S_XOUT}, s{S_XOUT}, s{S_T0}
    s_xor_b32 s{S_VIN}, s{S_XIN}, 4096
    s_xor_b32 s{S_VOUT}, s{S_XOUT}, 4096
    s_xor_b32 s{S_MEMW}, s{S_MEMR}, 16384
    s_mov_b32 s{S_STEP}, 0
    s_cmp_eq_u32 s{S_J}, 0
    s_mov_b32 s{S_T0}, 0x33003300
    s_cselect_b32 s{S_PUBK}, 0x00330033, s{S_T0}
    s_mov_b32 s{S_PUBK+1}, s{S_PUBK}
    s_cselect_b32 s{S_PUBV}, -1, 0
    s_not_b32 s{S_PUBV+1}, s{S_PUBV}
    s_lshl_b32 s{S_T0}, s{S_H}, 13
    s_lshl_b32 s{S_T1}, s{S_WAVE}, 11
    s_add_u32 s{S_T0}, s{S_T0}, s{S_T1}
    s_add_u32 s{S_KX}, s{S_T0}, {WS_KX}
    s_add_u32 s{S_VX}, s{S_T0}, {WS_VT}
    s_lshl_b32 s{S_KVM}, s{S_H}, 13
    s_add_u32 s{S_KVM}, s{S_KVM}, {WS_KVM}
    s_mul_i32 s{S_M0X}, s{S_WAVE}, 5120
    s_add_u32 m0, s{S_M0X}, {LDS_X + 1024}
    s_mov_b32 s{S_PHX}, 1
    s_mov_b32 s{S_PHP}, 1
    v_mov_b32 v0, v{V_TAGM}
    v_bfrev_b32 v{V_OMR}, 1
    """)
    PI = opt.get("pinv", 0)
    if PI:
        a(f"""
        v_lshlrev_b32 v48, 4, v{V_OVM}
        v_and_b32 v49, 0x400, v48
        v_mul_u32_u24 v49, 5, v49
        v_xor_b32 v48, v49, v48
        s_and_b32 s{S_T1}, s{S_XOUT}, 4096
        v_xor_b32 v48, s{S_T1}, v48
        v_cmp_gt_u32 vcc, {opt.get('pil', 12) * 8}, v{V_OVM}
        s_andn2_b32 s{S_PI}, s{S_XIN}, 4096
        s_xor_b32 s{S_PI}, s{S_PI}, {MB}
        v_cndmask_b32 v{V_OMR}, v{V_OMR}, v48, vcc
        """)
    a(f"""
    v_bfrev_b32 v{V_T0}, 1
    v_cndmask_b32 v{V_OKM}, v{V_T0}, v{V_OKM}, s[{S_PUBK}:{S_PUBK+1}]
    v_cndmask_b32 v{V_OMP}, v{V_T0}, v{V_OMP}, s[{S_MLO}:{S_MLO+1}]
    s_sub_u32 s{S_KVM}, s{S_KVM}, {32*8192 if opt.get('pubat', 11) == 'A' else 0}
    s_lshl_b32 s{S_KVV}, s{S_J}, 11
    s_add_u32 s{S_KVV}, s{S_KVV}, s{S_KVM}
    """)
    V_TAGM = 0
    S_KN = 50
    kvn = [0]
    def kv_eval(reg):
        a(f"""
        v_readlane_b32 s{S_KN}, v{reg}, 0
        v_readlane_b32 s{S_T0}, v{reg}, 2
        v_readlane_b32 s{S_T1}, v{reg}, 1
        v_readlane_b32 s{S_T2}, v{reg}, 3
        s_nop 3
        s_min_u32 s{S_KN}, s{S_KN}, s{S_T0}
        s_min_u32 s{S_T1}, s{S_T1}, s{S_T2}
        s_lshl_b32 s{S_KN}, s{S_KN}, 1
        s_lshl_b32 s{S_T1}, s{S_T1}, 1
        s_add_u32 s{S_T1}, s{S_T1}, 1
        s_min_u32 s{S_KN}, s{S_KN}, s{S_T1}
        """)
    def kv_block(reg, plus):
        n = kvn[0]; kvn[0] += 1
        a.label(f"{name}_kvb{n}")
        a(f"""
        s_add_u32 s{S_T0}, s{S_STEP}, {plus}
        s_min_u32 s{S_T0}, s{S_T0}, 63
        s_cmp_gt_u32 s{S_KN}, s{S_T0}
        s_cbranch_scc1 {name}_kvd{n}
        """)
        watchdog(5)
        a(f"""
        buffer_load_dword v{reg}, v{V_FL}, s[{S_WS}:{S_WS+3}], 0 offen sc1
        s_waitcnt vmcnt(0)
        """)
        kv_eval(reg)
        a(f"s_branch {name}_kvb{n}")
        a.label(f"{name}_kvd{n}")
    if full:
        a(f"s_mov_b32 s{S_KN}, 0\ns_cmp_lg_u32 s{S_WAVE}, 3\ns_cbranch_scc1 {name}_kv0")
        kv_eval(57)
        kv_block(48, 1)
        a.label(f"{name}_kv0")
    if tstamp: tstamp()
    a("s_barrier")
    if opt.get("tot"):
        a("s_memtime s[98:99]\ns_memrealtime s[96:97]\ns_waitcnt lgkmcnt(0)")
    a(f"""
    s_cmp_eq_u32 s{S_WAVE}, 1
    s_cbranch_scc1 {name}_w1_entry
    s_cmp_eq_u32 s{S_WAVE}, 2
    s_cbranch_scc1 {name}_w2_entry
    s_cmp_eq_u32 s{S_WAVE}, 3
    s_cbranch_scc1 {name}_w3_entry
    """)

    SRD = f"s[{S_WS}:{S_WS+3}]"
    def smf(d, am, b):
        a(f"v_smfmac_f32_16x16x64_bf16 v[{d}:{d+3}], v[{am}:{am+3}], {b}, v{V_IDX}")
    def pkadd(d):
        a(f"v_pk_add_f32 v[{d}:{d+1}], v[{d}:{d+1}], v[{d+2}:{d+3}]")
    def zero32(d):
        a(f"v_mfma_f32_32x32x4_2b_bf16 v[{d}:{d+31}], v[{V_Z}:{V_Z+1}], v[{V_Z}:{V_Z+1}], 0")

    def wave_loop(w):
        L = f"{name}_w{w}"
        def lop_read(op, d):
            k, tau = op >> 1, op & 1
            vb = V_L16 if k < 4 else V_LH
            for rh in range(2):
                a(f"ds_read_b128 v[{d+4*rh}:{d+4*rh+3}], v{vb} offset:{(k & 3) * 16384 + w * 4096 + tau * 2048 + rh * 1024}")
        def wv_read(op):
            lop_read(op, V_ST + 8 * (op & 3))
        def qk(k, t):
            wb = (128 if t >= 2 else 0) + (k * 2 + (t & 1)) * 8
            smf(V_AQ + 4 * t, V_M + 4 * k, f"a[{wb}:{wb+7}]")
        def top():
            a(f"v_mfma_f32_32x32x8_bf16 v[{V_AQ}:{V_AQ+15}], v[{V_Z}:{V_Z+1}], v[{V_Z}:{V_Z+1}], 0")
            a(f"v_mfma_f32_16x16x16_bf16 v[{V_AV}:{V_AV+3}], v[{V_Z}:{V_Z+1}], v[{V_Z}:{V_Z+1}], 0")
            a(f"v_mfma_f32_16x16x16_bf16 v[{V_AV+4}:{V_AV+7}], v[{V_Z}:{V_Z+1}], v[{V_Z}:{V_Z+1}], 0")
            for op in range(4):
                wv_read(op)
        def xoff(u):
            return LDS_X - LDS_MEM + (w ^ u) * 5120

        VXB = opt.get("vxb", 1)
        ldvx = [f"buffer_load_dwordx4 v[{V_VX}:{V_VX+3}], v{V_L16}, {SRD}, s{S_VX} offen {KS}",
                f"buffer_load_dwordx4 v[{V_VX+4}:{V_VX+7}], v{V_L16}, {SRD}, s{S_VX} offen offset:1024 {KS}"]
        VD = opt.get("vdma", 0)
        if VD:
            ldvx = [f"buffer_load_dwordx4 v{V_L16}, {SRD}, s{S_VX} offen offset:2048 lds",
                    f"buffer_load_dwordx4 v{V_L16}, {SRD}, s{S_VX} offen offset:3072 lds"]
        KXB = opt.get("kxb", 0)
        ldkx = [f"buffer_load_dwordx4 v{V_L16}, {SRD}, s{S_KX} offen {KS} lds",
                f"buffer_load_dwordx4 v{V_L16}, {SRD}, s{S_KX} offen offset:1024 {KS} lds"]
        a.label(f"{L}_entry")
        top()
        if KXB:
            a(ldkx[0]); a(ldkx[1])
            a(f"s_add_u32 s{S_KX}, s{S_KX}, {32*8192}")
        if VD: a(f"s_sub_u32 s{S_VX}, s{S_VX}, 2048")
        if VXB:
            a(ldvx[0]); a(ldvx[1])
            a(f"s_add_u32 s{S_VX}, s{S_VX}, {32*8192}")
        a.label(f"{L}_loop")
        dump()
        stamp(0)
        NB = opt.get("nb", 3)
        k0, k1 = 2 * w, 2 * w + 1
        m0, m1 = V_M + 4 * k0, V_M + 4 * k1
        a(f"s_add_u32 s{S_T0}, s{S_MEMR}, {k0 * 1024}")
        if PI == 5: a(f"v_mov_b32 v{V_T1}, 0")
        EO = opt.get('eo', 0)
        if EO: pass
        elif opt.get("preA") == "ack1": a("s_waitcnt vmcnt(1)")
        elif opt.get("preA") == "ack":
            a("s_waitcnt vmcnt(0)"); a.nops(opt.get("xA", 0))
        elif opt.get("preA"): a.nops(opt["preA"])
        own = [(k0, t) for t in range(4)] + [(k1, t) for t in range(4)]
        lda = f"""
        buffer_load_dwordx4 v[{m0}:{m0+3}], v{V_L16 if ML else V_OMR}, {SRD}, s{S_T0} offen sc1
        buffer_load_dwordx4 v[{m1}:{m1+3}], v{V_L16 if ML else V_OMR}, {SRD}, s{S_T0} offen offset:1024 sc1
        """
        AD = opt.get("ad", 0)
        others = [(k0 + 2 + i) & 7 for i in range(6)]
        n0, n1 = V_M + 4 * others[4], V_M + 4 * others[5]
        ldE, ldO = lda.strip().split("\n")
        evens = [(k0 + 2 * i) & 7 for i in range(1, 4)]
        odds = [(k1 + 2 * i) & 7 for i in range(1, 4)]
        rdk = lambda k: f"ds_read_b128 v[{V_M+4*k}:{V_M+4*k+3}], v{V_LL} offset:{k*1024}"
        if EO:
            NBE = opt.get("nbe", 3)
            a.nops(opt.get("eD", 0))
            a(ldE)
            a("s_waitcnt vmcnt(0)")
            a.label(f"{L}_ea")
            a(f"""
            ds_write_b128 v{V_LL}, v[{m0}:{m0+3}] offset:{k0*1024}
            {ldO}
            v_max_u32 v{V_T0}, v{m0}, v{m0+2}
            v_cmp_eq_u32 vcc, -1, v{V_T0}
            """)
            stamp(1)
            for t in range(NBE): qk(k0, t)
            a(f"s_cbranch_vccnz {L}_efail\ns_waitcnt lgkmcnt(0)\ns_barrier")
            for k in evens: a(rdk(k))
            for t in range(NBE, 4): qk(k0, t)
            se = [(k, t) for k in evens for t in range(4)]
            NE1 = opt.get("ne1", 6)
            for i, x in enumerate(se):
                if i % 4 == 0:
                    a(f"s_waitcnt lgkmcnt({2 - i // 4 + (1 if i > NE1 else 0)})")
                if i == NE1:
                    a(f"s_waitcnt vmcnt(0)\nds_write_b128 v{V_LL}, v[{m1}:{m1+3}] offset:{k1*1024}")
                qk(*x)
                if i == NE1: a(f"v_max_u32 v{V_T0}, v{m1}, v{m1+2}")
                if i == NE1 + 1: a(f"v_cmp_eq_u32 vcc, -1, v{V_T0}")
                if i == NE1 + 2: a(ldO)
            a(f"s_cbranch_vccnz {L}_ofail")
            a.label(f"{L}_ob")
            a("s_waitcnt lgkmcnt(0)\ns_barrier")
            stamp(2)
            others = odds
        else:
            a(lda)
            if AD:
                a.nops(AD)
                a(f"""
                buffer_load_dwordx4 v[{n0}:{n0+3}], v{V_L16 if ML else V_OMR}, {SRD}, s{S_T0} offen sc1
                buffer_load_dwordx4 v[{n1}:{n1+3}], v{V_L16 if ML else V_OMR}, {SRD}, s{S_T0} offen offset:1024 sc1
                s_waitcnt vmcnt(2)
                """)
            a.label(f"{L}_pa")
            if AD:
                a(f"""
                ds_write_b128 v{V_LL}, v[{m0}:{m0+3}] offset:{k0*1024}
                ds_write_b128 v{V_LL}, v[{m1}:{m1+3}] offset:{k1*1024}
                """)
            else:
                a(f"""
                s_waitcnt vmcnt(1)
                ds_write_b128 v{V_LL}, v[{m0}:{m0+3}] offset:{k0*1024}
                """)
                if opt.get("a2"): qk(*own[0])
                a(f"""
                s_waitcnt vmcnt(0)
                ds_write_b128 v{V_LL}, v[{m1}:{m1+3}] offset:{k1*1024}
                """)
            chk = [f"v_max3_u32 v{V_T0}, v{m0}, v{m0+2}, v{m1}", f"v_max_u32 v{V_T0}, v{V_T0}, v{m1+2}", f"v_cmp_eq_u32 vcc, -1, v{V_T0}"]
            stamp(1)
            if C4:
                chk = [f"v_max3_u32 v{V_T0}, v{m0}, v{m0+1}, v{m0+2}", f"v_max3_u32 v{V_T0}, v{V_T0}, v{m0+3}, v{m1}",
                       f"v_max3_u32 v{V_T0}, v{V_T0}, v{m1+1}, v{m1+2}", f"v_max_u32 v{V_T0}, v{V_T0}, v{m1+3}", chk[2]]
                a(chk[0]); a(chk[1])
                qk(*own[0]); a(chk[2]); a(chk[3])
                qk(*own[1]); a(chk[4]); a(ldE)
                qk(*own[2]); a(ldO)
            else:
                a(chk[0]); a(chk[1]); a(chk[2])
                for i, x in enumerate(own[1 if opt.get("a2") else 0:NB]):
                    qk(*x)
                    if opt.get("are") and i < 2: a(lda.strip().split("\n")[i])
            a(f"s_cbranch_vccnz {L}_pafail\ns_waitcnt lgkmcnt(0)\ns_barrier")
            stamp(2)
        rd = [f"ds_read_b128 v[{V_M+4*k}:{V_M+4*k+3}], v{V_LL} offset:{k*1024}" for k in others]
        if AD: rd[4] = "s_waitcnt vmcnt(0)\n" + rd[4]
        ld = [f"buffer_load_dwordx4 v{V_L16}, {SRD}, s{S_KX} offen {KS} lds",
              f"buffer_load_dwordx4 v{V_L16}, {SRD}, s{S_KX} offen offset:1024 {KS} lds"] + ([] if VXB else ldvx)
        pubd = (f"buffer_store_dwordx4 v[{V_PB1}:{V_PB1+3}], v{V_OKM}, {SRD}, s{S_KVM} offen offset:{w*64} sc1",
                f"buffer_store_dwordx2 v[{V_PV}:{V_PV+1}], v{V_OVM}, {SRD}, s{S_KVV} offen offset:{2048 + w*512} sc1")
        fill = rd + ld + ([x.replace(" sc1", "").replace(f"s{S_KVM}", f"s{S_PARTR}").replace(f"s{S_KVV}", f"s{S_PARTR}").replace(f"v{V_OVM}", f"v{V_OMR}").replace(f"v{V_OKM}", f"v{V_OMR}") for x in pubd] if opt.get("nopub") else list(pubd))
        if KXB: ld = []
        PUBA = opt.get("pubat", 11) == "A"
        if not PUBA:
            fill = rd + ld
            if full and w == 0:
                fill.append(f"v_mov_b32 v{V_T1}, s{S_STEP}\nbuffer_store_dword v{V_T1}, v{V_FL}, {SRD}, 0 offen sc1")
        pubn = (pubd[0].replace(f"v[{V_PB1}:{V_PB1+3}]", f"v[{V_X}:{V_X+3}]"), pubd[1])
        pist = f"buffer_store_dword v{V_Z}, v{V_OMR}, {SRD}, s{S_PI} offen offset:4 sc1\ns_xor_b32 s{S_PI}, s{S_PI}, {MB}"
        if PI == 3: fill.insert(len(rd) + 2 * opt.get("pia", 0), pist)
        if PI == 5:
            pi5 = [f"s_xor_b32 s{S_PI}, s{S_XIN}, {MB}\nbuffer_store_dwordx4 v[{V_T1}:{V_T1+3}], v{V_L16}, {SRD}, s{S_PI} offen sc1",
                   f"s_xor_b32 s{S_PI}, s{S_VIN}, {MB}\nbuffer_store_dwordx2 v[{V_T1}:{V_T1+1}], v{V_OVM}, {SRD}, s{S_PI} offen sc1"]
            fill[len(rd):len(rd)] = pi5[:opt.get("pin", 2)]
        KVW = full and w == 3
        if KVW: fill.append(f"buffer_load_dword v{V_OMR}, v{V_FL}, {SRD}, 0 offen sc1")
        T0, T1, T2, T3 = V_AQ, V_AQ + 4, V_AQ + 8, V_AQ + 12
        if EO: NB = 4
        seq = own[NB:] + [(k, t) for k in others for t in (0, 2)]
        a(fill.pop(0)); a(fill.pop(0))
        issued = 2
        for i, x in enumerate(seq):
            if i >= 8 - NB and (i - (8 - NB)) % 2 == 0:
                need = (i - (8 - NB)) // 2 + 1
                assert issued >= need
                a(f"s_waitcnt lgkmcnt({issued - need})")
            qk(*x)
            if fill and ("ds_read" in fill[0] or (i >= opt.get("kxl", 0) and i % opt.get("fsp", 1) == (w % opt.get("fsp", 1)))):
                a(fill.pop(0))
                if "ds_read" in a.lines[-1]: issued += 1
        while fill: a(fill.pop(0))
        f1 = f"""
        v_add_f32 v{T0}, v{T0}, v{T0+2}
        v_add_f32 v{T0+1}, v{T0+1}, v{T0+3}
        v_add_f32 v{T2}, v{T2}, v{T2+2}
        v_add_f32 v{T2+1}, v{T2+1}, v{T2+3}
        v_cvt_pk_bf16_f32 v{G}, v{T0}, v{T0+1}
        v_cvt_pk_bf16_f32 v{G+1}, v{T2}, v{T2+1}
        v_and_or_b32 v{G}, v{G}, -2, s{S_PHX}
        buffer_store_dwordx2 v[{G}:{G+1}], v{V_OVM}, {SRD}, s{S_XOUT} offen {XS}
        """.strip().split("\n")
        seq2 = [(k, 1) for k in others] + [(k, 3) for k in others]
        F1N = opt.get("f1n", 2)
        f2 = [f"v_add_f32 v{T1}, v{T1}, v{T1+2}", f"v_add_f32 v{T1+1}, v{T1+1}, v{T1+3}"]
        st = 0
        n2 = len(seq2)
        for i, x in enumerate(seq2):
            qk(*x); st += 1
            if i < 2 and not (i == 1 and opt.get("f1e")):
                a.nops(3); st += 3
            elif f1:
                if i == 1: a.nops(2)
                for _ in range(F1N if i >= opt.get("f1s", 0) else 1):
                    if f1: a(f1.pop(0))
            elif i >= n2 - 2 and not EO:
                if i == n2 - 2: a.nops(3)
                a(f2.pop(0))
        assert not f1
        stamp(3)
        for l in f2: a(l)
        a(f"""
        v_cvt_pk_bf16_f32 v{G+2}, v{T1}, v{T1+1}
        v_and_or_b32 v{G+2}, v{G+2}, -2, s{S_PHX}
        """)
        a.nops(6 - len(f2) - (0 if EO else 1))
        a(f"""
        v_pk_add_f32 v[{T3}:{T3+1}], v[{T3}:{T3+1}], v[{T3+2}:{T3+3}]
        v_cvt_pk_bf16_f32 v{G+3}, v{T3}, v{T3+1}
        buffer_store_dwordx2 v[{G+2}:{G+3}], v{V_OVM}, {SRD}, s{S_XOUT} offen offset:512 {XS}
        """)
        def vsm(op):
            k, tau = op >> 1, op & 1
            d = V_ST + 8 * (op & 3) if op < NL else wv_reg(op)
            smf(V_AV + 4 * tau, V_M + 4 * k, f"v[{d}:{d+7}]")
        if PI == 3 and opt.get("pia"): vm = ["kx", "vx", "pi"]
        else: vm = (["pi"] if PI == 3 else ["pi"] * opt.get("pin", 2) if PI == 5 else []) + ([] if KXB else ["kx", "vx"]) + (["pk", "pv"] if PUBA else ["rp"] if (full and w == 0) else []) + (["fl"] if KVW else [])
        def vwait(tag):
            n = len(vm) - 1 - max(i for i, t in enumerate(vm) if t == tag)
            a(f"s_waitcnt vmcnt({n})")
        vm.append("s1")
        vm.append("sq")
        stamp(4)
        XP = opt.get("xp", (14,))
        PB = [PG, V_PB1]
        def ldx(b):
            a(f"buffer_load_dwordx2 v[{PB[b]+2}:{PB[b]+3}], v{V_OVM}, {SRD}, s{S_XIN} offen offset:512 {XL}")
        def ldy(b):
            a(f"buffer_load_dwordx2 v[{PB[b]}:{PB[b]+1}], v{V_OVM}, {SRD}, s{S_XIN} offen {XL}")
        def xpoint(p):
            if p == opt.get("yp", 32):
                ldy(0); vm.append("y")
            if p == XP[0]:
                ldx(0); vm.append("x0")
            if p == XP[1]:
                ldy(1); ldx(1); vm.append("y1"); vm.append("x1")
        ldv = f"buffer_load_dwordx2 v[{V_AV+4}:{V_AV+5}], v{V_OVM}, {SRD}, s{S_VIN} offen {XL}"
        vorder = {10: [0, 1, 2, 3, 10, 11, 12, 4, 5, 13, 14, 15, 6, 7, 8, 9], 12: [0, 1, 2, 3, 12, 13, 4, 5, 14, 6, 7, 15, 8, 9, 10, 11],
                  14: [0, 1, 2, 3, 14, 15] + list(range(4, 14)), 16: list(range(16))}[NL]
        pend = []
        for i, op in enumerate(vorder):
            if op in pend:
                a(f"s_waitcnt lgkmcnt({2 * (len(pend) - 1 - pend.index(op))})")
            vsm(op)
            if op + 4 < NL:
                wv_read(op + 4); pend.append(op + 4)
            xpoint(i)
        stamp(5)
        a(f"v_mfma_f32_16x16x16_bf16 v[{DO}:{DO+3}], v[{G}:{G+1}], v[{V_SEL}:{V_SEL+1}], 0")
        a(f"v_mfma_f32_16x16x16_bf16 v[{DO+4}:{DO+7}], v[{G+2}:{G+3}], v[{V_SEL}:{V_SEL+1}], 0")
        xpoint(60)
        a.nops(5)
        xpoint(61)
        a(f"""
        v_add_f32 v{V_AV}, v{V_AV}, v{V_AV+2}
        v_add_f32 v{V_AV+1}, v{V_AV+1}, v{V_AV+3}
        v_add_f32 v{V_AV+2}, v{V_AV+4}, v{V_AV+6}
        v_add_f32 v{V_AV+3}, v{V_AV+5}, v{V_AV+7}
        v_cvt_pk_bf16_f32 v{V_PV}, v{V_AV}, v{V_AV+1}
        v_cvt_pk_bf16_f32 v{V_PV+1}, v{V_AV+2}, v{V_AV+3}
        v_and_or_b32 v{V_PV}, v{V_PV}, -2, s{S_PHX}
        """)
        VS = opt.get("vs", 17)
        def vstore(p):
            if p != VS: return
            if PI in (3, 5): vwait("pi")
            if opt.get("vbar"): a("s_barrier")
            a(f"buffer_store_dwordx2 v[{V_PV}:{V_PV+1}], v{V_OVM}, {SRD}, s{S_VOUT} offen {XS}")
            vm.append("sv")
            if PI == 4: a(pist); vm.append("pi")
        xpoint(16)
        vstore(17)
        xpoint(17)
        stamp(6)
        OZ = 92
        a(f"""
        v_mov_b32 v{V_AV}, v{V_PV}
        v_mov_b32 v{V_AV+2}, v{V_PV+1}
        v_mov_b32 v{OZ}, v{V_ONE}
        v_mov_b32 v{OZ+1}, 0
        """)
        for i, dl in enumerate(opt.get("xe", ())):
            a.nops(dl)
            xpoint(50 + i)
            vstore(50 + i)
        if not KXB: vwait("vx")
        stamp(7)
        if not KXB: a("s_barrier")
        else: a.nops(opt.get("kxd", 0))
        for u in range(4):
            xpoint(30 + u); vstore(30 + u)
            for t in range(2):
                d = V_KX + 8 * u + 4 * t
                a(f"ds_read_b128 v[{d}:{d+3}], v{V_LL} offset:{xoff(u) + 1024*(1+t)}")
        xpoint(18)
        vstore(18)
        if VD:
            for t in range(2):
                a(f"ds_read_b128 v[{V_VX+4*t}:{V_VX+4*t+3}], v{V_LL} offset:{xoff(0) + 3072 + 1024*t}")
        for i, dl in enumerate(opt.get("xd", ())):
            a.nops(dl)
            xpoint(19 + i)
            vstore(19 + i)
        stamp(8)
        XD = V_S
        def xtry(b):
            p = PB[b] + 2
            a(f"""
            v_mfma_f32_16x16x16_bf16 v[{XD+4}:{XD+7}], v[{p}:{p+1}], v[{V_SEL}:{V_SEL+1}], v[{DO+4}:{DO+7}]
            v_and_b32 v{V_T0}, 1, v{p}
            v_cmp_ne_u32 vcc, s{S_PHX}, v{V_T0}
            s_nop 5
            v_cvt_pk_bf16_f32 v{V_X+2}, v{XD+4}, v{XD+5}
            v_cvt_pk_bf16_f32 v{V_X+3}, v{XD+6}, v{XD+7}
            {f"ds_write_b64 v{V_LL}, v[{V_X+2}:{V_X+3}] offset:{xoff(0)+8}" if opt.get("x64") else f"ds_write_b128 v{V_LL}, v[{V_X}:{V_X+3}] offset:{xoff(0)}"}
            """)
        if opt.get("ym"):
            vwait("y")
            a(f"v_mfma_f32_16x16x16_bf16 v[{XD}:{XD+3}], v[{PG}:{PG+1}], v[{V_SEL}:{V_SEL+1}], v[{DO}:{DO+3}]")
            vwait("x0")
            stamp(9)
            a(f"""
            v_mfma_f32_16x16x16_bf16 v[{XD+4}:{XD+7}], v[{PG+2}:{PG+3}], v[{V_SEL}:{V_SEL+1}], v[{DO+4}:{DO+7}]
            v_bitop3_b32 v{V_T0}, s{S_PHX}, v{PG}, v{PG+2} bitop3:0x7e
            v_and_b32 v{V_T0}, 1, v{V_T0}
            v_cmp_ne_u32 vcc, 0, v{V_T0}
            s_nop 2
            v_cvt_pk_bf16_f32 v{V_X}, v{XD}, v{XD+1}
            v_cvt_pk_bf16_f32 v{V_X+1}, v{XD+2}, v{XD+3}
            v_cvt_pk_bf16_f32 v{V_X+2}, v{XD+4}, v{XD+5}
            v_cvt_pk_bf16_f32 v{V_X+3}, v{XD+6}, v{XD+7}
            ds_write_b128 v{V_LL}, v[{V_X}:{V_X+3}] offset:{xoff(0)}
            s_cbranch_vccnz {L}_xslow
            """)
        else:
            vwait("y")
            a(f"""
            v_mfma_f32_16x16x16_bf16 v[{XD}:{XD+3}], v[{PG}:{PG+1}], v[{V_SEL}:{V_SEL+1}], v[{DO}:{DO+3}]
            v_and_b32 v{V_T0}, 1, v{PG}
            v_cmp_ne_u32 vcc, s{S_PHX}, v{V_T0}
            """)
            xpoint(40)
            a(f"""
            s_nop {3 if XP[1] == 40 else 5}
            v_cvt_pk_bf16_f32 v{V_X}, v{XD}, v{XD+1}
            v_cvt_pk_bf16_f32 v{V_X+1}, v{XD+2}, v{XD+3}
            {f"ds_write_b64 v{V_LL}, v[{V_X}:{V_X+1}] offset:{xoff(0)}" if opt.get("x64") else ""}
            s_cbranch_vccnz {L}_xslow
            """)
            vwait("x0")
            stamp(9)
            xtry(0)
            a(f"s_cbranch_vccnz {L}_xslow")
        a.label(f"{L}_xok")
        vm_x = list(vm)
        a(f"s_cmp_eq_u32 s{S_STEP}, {nsteps-1}\ns_cbranch_scc1 {L}_last")
        VL = opt.get("vlate", 0)
        ldv2 = f"buffer_load_dwordx2 v[{V_PB1}:{V_PB1+1}], v{V_OVM}, {SRD}, s{S_VIN} offen {XL}"
        if not VL: a(ldv)
        a("s_waitcnt lgkmcnt(1)")
        def score(u, ts=(0, 1, 2)):
            x = V_X + 4 * u
            for t in ts:
                src = (V_KX + 8 * u + 4 * t) if t < 2 else x
                d = V_S + 4 * t
                c = "0" if u == 0 else f"v[{d}:{d+3}]"
                a(f"v_mfma_f32_16x16x32_bf16 v[{d}:{d+3}], v[{src}:{src+3}], v[{x}:{x+3}], {c}")
        score(0, (0,))
        a("s_waitcnt lgkmcnt(0)\ns_barrier")
        stamp(10)
        for u in range(1, 4):
            a(f"ds_read_b128 v[{V_X+4*u}:{V_X+4*u+3}], v{V_LL} offset:{xoff(u)}")
        score(0, (1, 2))
        a(ldv if VL else ldv2)
        if opt.get("pubat", 11) == 10: a(pubn[0]); a(pubn[1])
        vchk = f"""
        s_waitcnt vmcnt({(1 if PUBA else 2 if opt.get("pubat") == 13 else 3) + 2 * VD + 2 * (KXB == 1) + (PI == 2)})
        v_and_b32 v{V_T0}, 1, v{V_AV+4}
        v_cmp_ne_u32 vcc, s{S_PHX}, v{V_T0}
        v_mov_b32 v{V_AV+1}, v{V_AV+4}
        v_mov_b32 v{V_AV+3}, v{V_AV+5}
        """.strip().split("\n")
        MX, TM = V_T1, V_S + 10
        P = V_X + 4
        sq = [(u, t) for t in range(3) for u in range(1, 4)]
        pk_at, pv_at = {0: (3, 4), 1: (w, 4 + w), 2: (1 + w, 5 + w), 3: (2 * w, 2 * w + 1)}[opt.get("pst2", 1)]
        for i, (u, t) in enumerate(sq):
            if i < 3: a(f"s_waitcnt lgkmcnt({2 - i})")
            score(u, (t,))
            if opt.get("pubat", 11) == 11:
                if i == pk_at: a(pubn[0])
                if i == pv_at: a(pubn[1])
            if PI == 2 and i == (pk_at + 2) % 9: a(pist)
            if KXB == 1:
                if i == (pk_at + 2) % 9: a(ldkx[0])
                if i == (pv_at + 2) % 9: a(ldkx[1])
        zero32(V_ACC)
        stamp(11)
        PB2 = opt.get("pubat", 11) in (12, 13)
        a(f"""
        {pubn[0] if PB2 else "s_nop 0"}
        v_max3_f32 v{MX}, v{V_S}, v{V_S+1}, v{V_S+2}
        {pubn[1] + chr(10) + "s_nop 0" if opt.get("pubat") == 12 else "s_nop 1"}
        v_max3_f32 v{MX}, v{MX}, v{V_S+3}, v{V_S+4}
        v_max3_f32 v{MX}, v{MX}, v{V_S+5}, v{V_S+6}
        v_max_f32 v{MX}, v{MX}, v{V_S+7}
        v_max3_f32 v{TM}, v{MX}, v{V_S+8}, v{V_S+9}
        v_max3_f32 v{MX}, v{MX}, v{V_S+8}, v{V_S+9}
        s_nop 1
        v_permlane16_swap_b32 v{MX}, v{TM}
        v_max_f32 v{MX}, v{MX}, v{TM}
        v_max_f32 v{TM}, v{MX}, v{TM}
        s_nop 1
        v_permlane32_swap_b32 v{MX}, v{TM}
        v_max_f32 v{MX}, v{MX}, v{TM}
        v_mul_f32 v{MX}, s{S_C}, v{MX}
        """)
        if VD:
            idx = [i for i, l in enumerate(a.lines) if l.strip().startswith("s_nop")][-4:]
            a.lines.insert(idx[w], "    " + ldvx[0])
        for i in range(0, 10, 2):
            a(f"v_pk_fma_f32 v[{V_S+i}:{V_S+i+1}], v[{V_S+i}:{V_S+i+1}], s[{S_C}:{S_C+1}], v[{MX}:{MX+1}] op_sel_hi:[1,0,0] neg_lo:[0,0,1] neg_hi:[0,0,1]")
        for i in range(8):
            a(f"v_exp_f32 v{V_S+i}, v{V_S+i}")
            if i >= 2 and i % 2 == 0:
                a(f"v_cvt_pk_bf16_f32 v{P+i//2-1}, v{V_S+i-2}, v{V_S+i-1}")
            if VD and i == 2 * w + 1: a(ldvx[1])
        O, SM = DO, V_X + 12
        OB = V_S + 4
        a(f"""
        v_exp_f32 v{V_S+8}, v{V_S+8}
        v_cvt_pk_bf16_f32 v{P+3}, v{V_S+6}, v{V_S+7}
        v_exp_f32 v{V_S+9}, v{V_S+9}
        {vchk[0]}
        """)
        stamp(12)
        a(f"""
        v_mfma_f32_16x16x32_bf16 v[{SM}:{SM+3}], v[{V_ONE}:{V_ONE+3}], v[{P}:{P+3}], 0
        {vchk[1]}
        v_cvt_pk_bf16_f32 v{P+4}, v{V_S+8}, v{V_S+9}
        v_mfma_f32_16x16x32_bf16 v[{O}:{O+3}], v[{V_VX}:{V_VX+3}], v[{P}:{P+3}], 0
        {vchk[2]}
        v_cvt_pk_bf16_f32 v{P+5}, v{V_S+8}, v{V_S+9}
        v_mfma_f32_16x16x32_bf16 v[{O+4}:{O+7}], v[{V_VX+4}:{V_VX+7}], v[{P}:{P+3}], 0
        {vchk[3]}
        {vchk[4]}
        v_mfma_f32_16x16x16_bf16 v[{SM}:{SM+3}], v[{OZ}:{OZ+1}], v[{P+4}:{P+5}], v[{SM}:{SM+3}]
        s_cbranch_vccnz {L}_pv0
        {L}_pv2:
        v_mfma_f32_16x16x16_bf16 v[{O}:{O+3}], v[{V_AV}:{V_AV+1}], v[{P+4}:{P+5}], v[{O}:{O+3}]
        v_mfma_f32_16x16x16_bf16 v[{O+4}:{O+7}], v[{V_AV+2}:{V_AV+3}], v[{P+4}:{P+5}], v[{O+4}:{O+7}]
        """)
        stamp(13)
        nn = 0
        if opt.get("vxp", 13) == 13 and not VD:
            a(ldvx[0]); a(ldvx[1]); nn = 2
        if opt.get("pubat") == 13: a(pubn[1]); nn += 1
        a.nops(5 - nn)
        a(f"""
        v_rcp_f32 v{SM}, v{SM}
        s_mov_b64 exec, s[{S_MQ}:{S_MQ+1}]
        v_pk_mul_f32 v[{O}:{O+1}], v[{O}:{O+1}], v[{SM}:{SM+1}] op_sel_hi:[1,0]
        v_pk_mul_f32 v[{O+2}:{O+3}], v[{O+2}:{O+3}], v[{SM}:{SM+1}] op_sel_hi:[1,0]
        v_pk_mul_f32 v[{O+4}:{O+5}], v[{O+4}:{O+5}], v[{SM}:{SM+1}] op_sel_hi:[1,0]
        v_pk_mul_f32 v[{O+6}:{O+7}], v[{O+6}:{O+7}], v[{SM}:{SM+1}] op_sel_hi:[1,0]
        v_cvt_pk_bf16_f32 v{OB}, v{O}, v{O+1}
        v_cvt_pk_bf16_f32 v{OB+1}, v{O+2}, v{O+3}
        v_cvt_pk_bf16_f32 v{OB+2}, v{O+4}, v{O+5}
        v_cvt_pk_bf16_f32 v{OB+3}, v{O+6}, v{O+7}
        """)
        OA = V_X + 4
        stamp(14)
        def save(n):
            a(f"""
            s_waitcnt vmcnt({n})
            v_mov_b32 v{V_PB1}, v{V_X}
            v_mov_b32 v{V_PB1+1}, v{V_X+1}
            v_mov_b32 v{V_PB1+2}, v{V_X+2}
            v_mov_b32 v{V_PB1+3}, v{V_X+3}
            s_add_u32 s{S_KVM}, s{S_KVM}, {32*8192}
            s_add_u32 s{S_KVV}, s{S_KVV}, {32*8192}
            """)
        a(f"ds_write_b128 v{V_LL}, v[{OB}:{OB+3}] offset:{LDS_O - LDS_MEM + (w >> 1) * 1024 + (w & 1) * 32 - 32}")
        a("s_mov_b64 exec, -1")
        WB = dict(zip(range(NL, 16), [88, V_AV, 96, 104, 80, 88]))
        NPRE = min(opt.get("npre", 3 if NL == 10 else 0), 16 - NL)
        LAST = 15 if NL == 10 else 16
        for op in range(NL, NL + NPRE): lop_read(op, WB[op])
        if opt.get("vxp", 13) == 14: a(ldvx[0]); a(ldvx[1])
        if KXB == 2: a(ldkx[0]); a(ldkx[1])
        if full and w == 0 and PUBA:
            a(f"v_mov_b32 v{V_T0}, s{S_STEP}")
            a(f"buffer_store_dword v{V_T0}, v{V_FL}, {SRD}, 0 offen sc1")
        a(f"""
        s_waitcnt lgkmcnt({2 * NPRE})
        s_barrier
        ds_read_b128 v[{OA}:{OA+3}], v{V_LL} offset:{LDS_O - LDS_MEM}
        ds_read_b128 v[{OA+4}:{OA+7}], v{V_LL} offset:{LDS_O - LDS_MEM + 1024}
        """)
        for op in range(NL + NPRE, LAST): lop_read(op, WB[op])
        NPOST = 2 * (LAST - NL - NPRE)
        stamp(15)
        a.nops(opt.get("rdelay", 0))
        sal = f"""
        s_add_u32 s{S_STEP}, s{S_STEP}, 1
        s_xor_b32 s{S_XIN}, s{S_XIN}, {MB}
        s_xor_b32 s{S_XOUT}, s{S_XOUT}, {MB}
        s_xor_b32 s{S_VIN}, s{S_VIN}, {MB}
        s_xor_b32 s{S_VOUT}, s{S_VOUT}, {MB}
        s_lshr_b32 s{S_PHX}, s{S_STEP}, 1
        s_and_b32 s{S_PHX}, s{S_PHX}, 1
        {f"s_mov_b32 s{S_PHX}, 1" if PI == 5 else f"s_xor_b32 s{S_PHX}, s{S_PHX}, 1"}
        s_xor_b32 s{S_MEMR}, s{S_MEMR}, 16384
        s_xor_b32 s{S_MEMW}, s{S_MEMW}, 16384
        s_add_u32 s{S_KX}, s{S_KX}, {0 if opt.get('nok') else 32*8192}
        s_add_u32 s{S_VX}, s{S_VX}, {0 if opt.get('nov') else 32*8192}
        """.strip().split("\n")

        def wo(i):
            T, kp = WO_ORDER[i]
            b = V_WO + 8 * i if i < NL else WB[i]
            smf(V_ACC + 4 * T, OA + 4 * kp, f"v[{b}:{b+7}]")
        def fold(T, pk):
            A = V_ACC + 4 * T
            GR = V_ACC + 16 * (T >> 2)
            if pk:
                Ls = [f"v_pk_add_f32 v[{A}:{A+1}], v[{A}:{A+1}], v[{A+2}:{A+3}]"]
            else:
                Ls = [f"v_add_f32 v{A}, v{A}, v{A+2}", f"v_add_f32 v{A+1}, v{A+1}, v{A+3}"]
            Ls.append(f"v_cvt_pk_bf16_f32 v{GR+(T&3)}, v{A}, v{A+1}")
            if T & 3 == 0:
                Ls.append(f"v_and_or_b32 v{GR}, v{GR}, -2, s{S_PHP}")
            if T & 3 == 3:
                Ls.append(f"buffer_store_dwordx4 v[{GR}:{GR+3}], v{V_OPART}, {SRD}, s{S_PARTW if T < 4 else S_PARTW2} offen {IS}")
            return Ls
        NG = opt.get("wog", 1)
        NPK = opt.get("npk", 4)
        ready, pending, since = [], {}, {}
        a(f"s_waitcnt lgkmcnt({NPOST + 1})")
        def tick(n=1):
            for T in list(since):
                since[T] += n
                if since[T] >= 8:
                    ready.extend(fold(T, T >= NPK)); del since[T]
        for i in range(16):
            if i == 1: a(f"s_waitcnt lgkmcnt({NPOST})"); tick()
            if i == NL or (i == 15 and NL == 10): a("s_waitcnt lgkmcnt(0)"); tick()
            wo(i); tick()
            if i & 1: since[i >> 1] = 0
            if i == 10 and NL == 10:
                lop_read(15, WB[15]); tick(2)
            else:
                n = NG if opt.get("wog3", 0) <= i < opt.get("wog2", 16) else 2
                for _ in range(n):
                    if ready and "v_pk" not in ready[0]: a(ready.pop(0)); tick()
                for _ in range(3 if i < 4 else 0):
                    if sal: a(sal.pop(0)); tick()
        while ready or since:
            if ready: a(ready.pop(0))
            else: a("s_nop 0")
            tick()
        stamp(16)
        for l in sal: a(l)
        if PUBA: save(5 if (full and w == 0) else 4)
        else: a(f"s_add_u32 s{S_KVM}, s{S_KVM}, {32*8192}\ns_add_u32 s{S_KVV}, s{S_KVV}, {32*8192}")
        if opt.get("steps") and w == 1:
            a(f"""
            s_memrealtime s[62:63]
            s_lshl_b32 s64, s{S_J}, 5
            s_add_u32 s64, s64, s{S_H}
            s_lshl_b32 s64, s64, 6
            s_add_u32 s64, s64, s{S_STEP}
            s_lshl_b32 s64, s64, 2
            s_add_u32 s64, s64, {WS_PROF + 4*MB}
            s_waitcnt lgkmcnt(0)
            v_mov_b32 v{V_T0}, s62
            s_mov_b64 exec, 1
            buffer_store_dword v{V_T0}, off, {SRD}, s64
            s_mov_b64 exec, -1
            """)
        top()
        if KVW:
            a(f"""
            s_add_u32 s{S_T0}, s{S_STEP}, 2
            s_cmp_gt_u32 s{S_KN}, s{S_T0}
            s_cbranch_scc1 {L}_kvs
            """)
            kv_eval(V_OMR)
            kv_block(V_OMR, 1)
            a.label(f"{L}_kvs")
        RB, RD = V_M + 4, V_M + 20
        a(f"v_mov_b32 v{RD+6}, -1\nv_mov_b32 v{RD+7}, -1")
        if opt.get("preC") == "ack":
            if EO:
                a(f"s_waitcnt vmcnt({opt.get('ew', 1)})")
                a(f"s_bitcmp0_b32 s{S_H}, 2\ns_cbranch_scc1 {L}_cgo")
            a("s_waitcnt vmcnt(0)"); a.nops(opt.get("xC", 0))
            a.label(f"{L}_cgo")
        elif opt.get("preC") == "ack1": a("s_waitcnt vmcnt(1)")
        elif opt.get("preC"): a.nops(opt["preC"])
        def cissue(b):
            for d in range(8):
                if PL: a(f"buffer_load_dword v{RB+8*b+d}, v{V_OCR}, {SRD}, s{S_PARTR2} offen offset:{256*d} sc1")
                else: a(f"buffer_load_dword v{RB+8*b+d}, v{V_OCR}, {SRD}, s{S_PARTR if d < 4 else S_PARTR2} offen offset:{1024*(d&3) + 64*w} sc1")
        def ctry(b, behind, nxt=None):
            r = RB + 8 * b
            a(f"""
            s_waitcnt vmcnt({behind + 4})
            v_mfma_f32_16x16x32_bf16 v[{RD}:{RD+3}], v[{r}:{r+3}], v[{V_SELR}:{V_SELR+3}], 0
            v_bitop3_b32 v{V_T0}, s{S_PHP}, v{r}, v{r+1} bitop3:0x7e
            v_bitop3_b32 v{V_T1}, s{S_PHP}, v{r+2}, v{r+3} bitop3:0x7e
            s_waitcnt vmcnt({behind + 2})
            v_or_b32 v{V_T0}, v{V_T0}, v{V_T1}
            v_bitop3_b32 v{V_T1}, s{S_PHP}, v{r+4}, v{r+5} bitop3:0x7e
            s_waitcnt vmcnt({behind})
            v_mfma_f32_16x16x32_bf16 v[{RD}:{RD+3}], v[{r+4}:{r+7}], v[{V_SELR}:{V_SELR+3}], v[{RD}:{RD+3}]
            v_bitop3_b32 v{RD+4}, s{S_PHP}, v{r+6}, v{r+7} bitop3:0x7e
            v_or3_b32 v{V_T0}, v{V_T0}, v{V_T1}, v{RD+4}
            v_and_b32 v{V_T0}, v{V_TAGM}, v{V_T0}
            v_cmp_ne_u32 vcc, 0, v{V_T0}
            """)
        def cfin():
            a(f"""
            v_cvt_pk_bf16_f32 v{RD+4}, v{RD}, v{RD+1}
            v_cvt_pk_bf16_f32 v{RD+5}, v{RD+2}, v{RD+3}
            v_min_u32 v{RD+4}, -2, v{RD+4}
            """)
        CD = opt.get("cd", 0)
        if CD:
            cissue(0); a.nops(CD); cissue(1)
            if opt.get("tot"): a("s_add_u32 s87, s87, 1")
            ctry(0, 8)
            a(f"s_cbranch_vccnz {L}_cslow")
            a.label(f"{L}_cok")
            a("s_nop 2"); cfin()
        elif C4:
            c4l = [f"buffer_load_dwordx4 v[{RB+4*i}:{RB+4*i+3}], v{V_L16}, {SRD}, s{S_PARTR2} offen offset:{1024*i} sc1" for i in range(2)]
            a(c4l[0]); a(c4l[1])
            a.label(f"{L}_pc")
            watchdog(30, 3)
            a(f"""
            s_waitcnt vmcnt(1)
            v_mfma_f32_16x16x32_bf16 v[{RD}:{RD+3}], v[{V_SELR}:{V_SELR+3}], v[{RB}:{RB+3}], 0
            s_waitcnt vmcnt(0)
            v_mfma_f32_16x16x32_bf16 v[{RD}:{RD+3}], v[{V_SELR}:{V_SELR+3}], v[{RB+4}:{RB+7}], v[{RD}:{RD+3}]
            v_bitop3_b32 v{V_T0}, s{S_PHP}, v{RB}, v{RB+4} bitop3:0x7e
            v_and_b32 v{V_T0}, 1, v{V_T0}
            v_cmp_ne_u32 vcc, 0, v{V_T0}
            """)
            if C4 == 1:
                a(c4l[0]); a(c4l[1]); a.nops(3)
            else:
                a.nops(5)
            a(f"""
            v_add_f32_dpp v{RD}, v{RD}, v{RD} row_ror:4 row_mask:0xf bank_mask:0xf
            v_add_f32_dpp v{RD+1}, v{RD+1}, v{RD+1} row_ror:4 row_mask:0xf bank_mask:0xf
            {f"s_cbranch_vccnz {L}_pc" if C4 == 1 else f"s_cbranch_vccnz {L}_c4f"}
            v_add_f32_dpp v{RD}, v{RD}, v{RD} row_ror:8 row_mask:0xf bank_mask:0xf
            v_add_f32_dpp v{RD+1}, v{RD+1}, v{RD+1} row_ror:8 row_mask:0xf bank_mask:0xf
            v_cvt_pk_bf16_f32 v{RD+4}, v{RD}, v{RD+1}
            v_min_u32 v{RD+4}, -2, v{RD+4}
            buffer_store_dword v{RD+4}, v{V_OMP}, {SRD}, s{S_MEMR} offen offset:{w * 256} {IS}
            buffer_store_dword v{RD+6}, v{V_OMP}, {SRD}, s{S_MEMW} offen offset:{w * 256} {IS}
            """)
        elif opt.get("cm"):
            CW = opt["cm"]
            def cmid(b):
                a(f"s_waitcnt vmcnt({8 - CW})")
                cissue(1 - b)
                ctry(b, 8); a("s_nop 3"); cfin()
            cissue(0)
            a.label(f"{L}_pc")
            watchdog(30, 3)
            cmid(0)
            a(f"s_cbranch_vccnz {L}_cs2")
            a.label(f"{L}_cok")
        elif opt.get("cearly", 0):
            a.label(f"{L}_pc")
            cissue(0)
            watchdog(30, 3)
            ctry(0, 0)
            a(f"s_cbranch_vccnz {L}_pc")
            a("s_nop 2"); cfin()
        else:
            a.label(f"{L}_pc")
            cissue(0)
            watchdog(30, 3)
            ctry(0, 0); a("s_nop 3"); cfin()
            a(f"s_cbranch_vccnz {L}_pc")
        if C4: a(f"s_xor_b32 s{S_PHP}, s{S_PHP}, 1")
        else: a(f"""
        {"" if opt.get("amask") else f"s_mov_b64 exec, s[{S_MLO}:{S_MLO+1}]"}
        buffer_store_dwordx2 v[{RD+4}:{RD+5}], v{V_OMP}, {SRD}, s{S_MEMR} offen offset:{w * (256 if ML else 64)} {IS}
        buffer_store_dwordx2 v[{RD+6}:{RD+7}], v{V_OMP}, {SRD}, s{S_MEMW} offen offset:{w * (256 if ML else 64)} {IS}
        s_mov_b64 exec, -1
        s_xor_b32 s{S_PHP}, s{S_PHP}, 1
        """)
        stamp(17)
        a(f"s_branch {L}_loop")
        a.label(f"{L}_last")
        if PUBA: a(f"s_add_u32 s{S_KVM}, s{S_KVM}, {32*8192}\ns_add_u32 s{S_KVV}, s{S_KVV}, {32*8192}")
        a(pubd[0].replace(f"v[{V_PB1}:{V_PB1+3}]", f"v[{V_X}:{V_X+3}]")); a(pubd[1])
        a(f"s_branch {name}_end")
        if EO:
            a.label(f"{L}_efail")
            a(ldE)
            watchdog(10 + w, 0)
            a.nops(6)
            for i in range(4 * NBE):
                a(f"v_mov_b32 v{V_AQ+i}, 0")
            a(f"s_waitcnt vmcnt(0)\ns_branch {L}_ea")
            a.label(f"{L}_ofail")
            if opt.get("tot"): a("s_add_u32 s84, s84, 0x10000")
            watchdog(14 + w)
            a(f"""
            s_waitcnt vmcnt(0)
            ds_write_b128 v{V_LL}, v[{m1}:{m1+3}] offset:{k1*1024}
            v_max_u32 v{V_T0}, v{m1}, v{m1+2}
            v_cmp_eq_u32 vcc, -1, v{V_T0}
            {ldO}
            s_cbranch_vccz {L}_ob
            s_branch {L}_ofail
            """)
        a.label(f"{L}_pafail")
        if AD:
            if opt.get("tot"): a("s_add_u32 s84, s84, 1")
            a.nops(6)
            for i in range(4 * min(NB, 4)):
                a(f"v_mov_b32 v{V_AQ+i}, 0")
            a.label(f"{L}_pa2")
            a(f"""
            s_waitcnt vmcnt(0)
            v_max3_u32 v{V_T0}, v{n0}, v{n0+2}, v{n1}
            v_max_u32 v{V_T0}, v{V_T0}, v{n1+2}
            v_cmp_eq_u32 vcc, -1, v{V_T0}
            """)
            for i in range(0, 4, 2):
                a(f"v_pk_mov_b32 v[{m0+i}:{m0+i+1}], v[{n0+i}:{n0+i+1}], v[{n0+i}:{n0+i+1}] op_sel:[0,1]")
                a(f"v_pk_mov_b32 v[{m1+i}:{m1+i+1}], v[{n1+i}:{n1+i+1}], v[{n1+i}:{n1+i+1}] op_sel:[0,1]")
            a(f"""
            s_cbranch_vccz {L}_pa
            buffer_load_dwordx4 v[{n0}:{n0+3}], v{V_L16 if ML else V_OMR}, {SRD}, s{S_T0} offen sc1
            buffer_load_dwordx4 v[{n1}:{n1+3}], v{V_L16 if ML else V_OMR}, {SRD}, s{S_T0} offen offset:1024 sc1
            """)
            watchdog(10 + w, 0)
            a(f"s_branch {L}_pa2")
        else:
            if not opt.get("are"): a(lda)
            watchdog(10 + w, 0)
            a.nops(8)
            for i in range(4 * min(NB, 4)):
                a(f"v_mov_b32 v{V_AQ+i}, 0")
            a(f"s_branch {L}_pa" if not EO else "s_endpgm")

        if C4 == 2:
            a.label(f"{L}_c4f")
            a(c4l[0]); a(c4l[1]); a(f"s_branch {L}_pc")
        if opt.get("cm"):
            a.label(f"{L}_cs2")
            watchdog(30, 3)
            cmid(1)
            a(f"s_cbranch_vccz {L}_cok\ns_branch {L}_pc")
        if opt.get("cd"):
            a.label(f"{L}_cslow")
            cissue(0)
            a.label(f"{L}_pc")
            watchdog(30, 3)
            ctry(1, 8)
            a(f"s_cbranch_vccz {L}_cok")
            cissue(1)
            watchdog(30, 3)
            ctry(0, 8)
            a(f"s_cbranch_vccz {L}_cok")
            cissue(0)
            a(f"s_branch {L}_pc")

        a.label(f"{L}_xslow")
        def xlight(b):
            a(f"""
            s_waitcnt vmcnt(2)
            v_bitop3_b32 v{V_T0}, s{S_PHX}, v{PB[b]}, v{PB[b]+2} bitop3:0x7e
            v_mfma_f32_16x16x16_bf16 v[{XD}:{XD+3}], v[{PB[b]}:{PB[b]+1}], v[{V_SEL}:{V_SEL+1}], v[{DO}:{DO+3}]
            v_and_b32 v{V_T0}, 1, v{V_T0}
            v_mfma_f32_16x16x16_bf16 v[{XD+4}:{XD+7}], v[{PB[b]+2}:{PB[b]+3}], v[{V_SEL}:{V_SEL+1}], v[{DO+4}:{DO+7}]
            v_cmp_ne_u32 vcc, 0, v{V_T0}
            s_cbranch_vccz {L}_xgot
            """)
        assert "x1" in vm_x
        for b in (0, 1):
            ldy(b); ldx(b)
            watchdog(20, 1)
            xlight(1 - b)
        a(f"s_branch {L}_xslow")
        a.label(f"{L}_xgot")
        a(f"""
        s_nop 3
        v_cvt_pk_bf16_f32 v{V_X}, v{XD}, v{XD+1}
        v_cvt_pk_bf16_f32 v{V_X+1}, v{XD+2}, v{XD+3}
        v_cvt_pk_bf16_f32 v{V_X+2}, v{XD+4}, v{XD+5}
        v_cvt_pk_bf16_f32 v{V_X+3}, v{XD+6}, v{XD+7}
        ds_write_b128 v{V_LL}, v[{V_X}:{V_X+3}] offset:{xoff(0)}
        s_branch {L}_xok
        """)

        a.label(f"{L}_pv0")
        if opt.get("tot"): a("s_add_u32 s86, s86, 1")
        a(f"s_waitcnt vmcnt({(0 if PUBA else 1 if opt.get('pubat') == 13 else 2) + 2 * VD + 2 * (KXB == 1) + (PI == 2)})\ns_branch {L}_pv1")
        a.label(f"{L}_pv")
        watchdog(21, 2)
        a(f"""
        buffer_load_dwordx2 v[{V_PB1}:{V_PB1+1}], v{V_OVM}, {SRD}, s{S_VIN} offen {XL}
        s_waitcnt vmcnt(0)
        {L}_pv1:
        v_and_b32 v{V_T0}, 1, v{V_PB1}
        v_cmp_ne_u32 vcc, s{S_PHX}, v{V_T0}
        v_mov_b32 v{V_AV+1}, v{V_PB1}
        v_mov_b32 v{V_AV+3}, v{V_PB1+1}
        s_cbranch_vccnz {L}_pv
        s_branch {L}_pv2
        """)

    n0_ = len(a.lines)
    for w in range(4):
        wave_loop(w)
    if opt.get("atom"):
        import re
        out = []
        tg = [f"s{S_XIN} offen"] + ([f"s{S_VIN} offen"] if opt["atom"] > 1 else [])
        for l in a.lines[n0_:]:
            m = re.match(r"\s*buffer_load_dwordx2 v\[(\d+):(\d+)\], (.*) sc1$", l)
            if m and any(t in l for t in tg):
                out.append(f"    v_mov_b64 v[{m.group(1)}:{m.group(2)}], 0")
                out.append(f"    buffer_atomic_or_x2 v[{m.group(1)}:{m.group(2)}], {m.group(3)} sc0")
            else:
                out.append(l)
        a.lines[n0_:] = out
    a.label(f"{name}_end")
    a("s_mov_b64 exec, -1")
    if full:
        a(f"""
        v_mov_b32 v{V_T0}, 64
        s_waitcnt vmcnt(0)
        s_barrier
        s_cmp_lg_u32 s{S_WAVE}, 0
        s_cbranch_scc1 {name}_end2
        buffer_store_dword v{V_T0}, v{V_FL}, s[{S_WS}:{S_WS+3}], 0 offen sc1
        {name}_end2:
        """)
    if tstamp: tstamp()
    if opt.get("tot"):
        a(f"""
        s_memtime s[66:67]
        s_memrealtime s[68:69]
        s_waitcnt lgkmcnt(0)
        s_sub_u32 s89, s66, s98
        s_sub_u32 s88, s68, s96
        s_lshl_b32 s{S_T0}, s{S_J}, 5
        s_add_u32 s{S_T0}, s{S_T0}, s{S_H}
        s_lshl_b32 s{S_T0}, s{S_T0}, 2
        s_add_u32 s{S_T0}, s{S_T0}, s{S_WAVE}
        s_lshl_b32 s{S_T0}, s{S_T0}, 7
        s_add_u32 s{S_T0}, s{S_T0}, {WS_PROF}
        s_mov_b64 exec, 1
        """)
        for i in range(14, 20):
            a(f"v_mov_b32 v{V_T0}, s{70+i}")
            a(f"buffer_store_dword v{V_T0}, v{V_Z}, s[{S_WS}:{S_WS+3}], s{S_T0} offen offset:{4*i}")
        a("s_mov_b64 exec, -1")
    a("s_waitcnt vmcnt(0)")
    a("s_endpgm")
    if wd:
        a.label(f"{name}_wdexit")
        a(f"""
        s_mov_b64 exec, 1
        s_lshl_b32 s{S_T0}, s{S_STEP}, 8
        s_or_b32 s{S_T2}, s{S_T2}, s{S_T0}
        v_mov_b32 v{V_T0}, s{S_T2}
        v_mov_b32 v{V_T1}, 0
        s_lshl_b32 s{S_T0}, s{S_J}, 5
        s_add_u32 s{S_T0}, s{S_T0}, s{S_H}
        s_lshl_b32 s{S_T0}, s{S_T0}, 2
        s_add_u32 s{S_T0}, s{S_T0}, s{S_WAVE}
        s_lshl_b32 s{S_T0}, s{S_T0}, 2
        s_add_u32 s{S_T0}, s{S_T0}, {WS_PROF + MB}
        buffer_store_dword v{V_T0}, v{V_T1}, s[{S_WS}:{S_WS+3}], s{S_T0} offen
        s_endpgm
        """)


def gen_standalone(name, prof=False, opt={}, xa=0, xb=1):
    from gen_hop import ticket
    a = Asm(); a.kernel_begin(name)
    a(f"s_cmp_ge_u32 s2, 256\ns_cbranch_scc1 {name}_exit")
    a(f"""
    s_load_dwordx2 s[84:85], s[0:1], {KA_WS}
    s_waitcnt lgkmcnt(0)
    s_mov_b32 s86, {WS_BYTES}
    s_mov_b32 s87, 0x00020000
    """)
    global_init(a, name, 84)
    a("s_waitcnt vmcnt(0)\ns_barrier")
    ticket(a, name, 2)
    a(f"""
    s_cmp_eq_u32 s90, {xa}
    s_cselect_b32 s{S_J}, 0, 2
    s_cmp_eq_u32 s90, {xb}
    s_cselect_b32 s{S_J}, 1, s{S_J}
    s_cmp_ge_u32 s{S_J}, 2
    s_cbranch_scc1 {name}_exit
    s_cmp_ge_u32 s96, 32
    s_cbranch_scc1 {name}_exit
    s_mov_b32 s{S_H}, s96
    s_branch {name}_go
    {name}_exit:
    s_endpgm
    {name}_go:
    s_lshl_b32 s97, s{S_J}, 5
    s_add_u32 s97, s97, s{S_H}
    """)
    mem0_publish(a, 84, 97)
    rec_body(a, name + "_r", "", prof=prof, wd=True, opt=opt)
    return (name, a.text(), kd(name, 512, sgpr=100, accum=256), 256, 256, LDS_REC)


if __name__ == "__main__":
    import sys, json
    V = eval(open(sys.argv[1]).read())
    ks = [gen_standalone(f"r{i}_kernel", **v) for i, v in enumerate(V)]
    write_file("rec.s", ks)
    json.dump(V, open("rec.json", "w"))
```

```python
from common import *
from gen_rec import WS_QX, WS_KX, WS_VT, WS_O, WS_KVM, WS_XB, WS_FL, DBG_VOTE

FL_RP, FL_XF = 192, 256
WS_XCH = 72 * MB


class WoLoader:
    def __init__(self, a, name, S_B, S_WV, opt):
        self.a, self.name, self.S_B, self.S_WV, self.opt = a, name, S_B, S_WV, opt

    def run(self):
        a = self.a
        a(f"""
        s_load_dwordx2 s[52:53], s[0:1], {KA_WO}
        v_and_b32 v202, 63, v0
        v_lshrrev_b32 v200, 3, v202
        v_lshlrev_b32 v200, 11, v200
        v_and_b32 v203, 7, v202
        v_lshl_add_u32 v200, v203, 4, v200
        s_and_b32 s56, s{self.S_B}, 1
        s_lshl_b32 s56, s56, 2
        s_add_u32 s56, s56, s{self.S_WV}
        s_lshl_b32 s56, s56, 20
        s_bfe_u32 s58, s{self.S_B}, 0x40001
        s_lshl_b32 s57, s58, 7
        s_add_u32 s56, s56, s57
        v_add_u32 v200, s56, v200
        s_lshl_b32 s56, s{self.S_WV}, 15
        s_lshl_b32 s57, s58, 12
        v_lshrrev_b32 v201, 5, v202
        v_bfe_u32 v204, v202, 2, 2
        v_lshl_add_u32 v201, v201, 3, v204
        v_lshlrev_b32 v201, 7, v201
        v_bfe_u32 v204, v202, 4, 1
        v_lshl_add_u32 v201, v204, 5, v201
        v_and_b32 v203, 3, v202
        v_lshl_add_u32 v201, v203, 3, v201
        v_add_u32 v201, s56, v201
        s_waitcnt lgkmcnt(0)
        s_mov_b32 s54, {8*MB}
        s_mov_b32 s55, 0x00020000
        """)
        def dma(p):
            a(f"s_add_u32 m0, s56, {(p & 31) * 1024}")
            a(f"s_add_u32 s58, s57, {p * 512}")
            a(f"s_and_b32 s58, s58, 0x7fff")
            a(f"s_lshl_b32 s58, s58, 5")
            a(f"buffer_load_dwordx4 v200, s[52:55], s58 offen lds")
        D = self.opt.get("wdepth", 4)
        for p in range(D): dma(p)
        for k4 in range(16):
            a(f"s_waitcnt vmcnt({min(D - 4, 60 - 4 * k4)})")
            for ks in range(2 * k4, 2 * k4 + 2):
                for ct in range(2):
                    for j in range(2):
                        d = (2 * ks + ct) * 4 + 2 * j
                        a(f"ds_read_b64_tr_b16 a[{d}:{d+1}], v201 offset:{(ks & 15) * 2048 + j * 512 + ct * 64}")
            a("s_waitcnt lgkmcnt(0)")
            for p in range(4 * k4 + D, min(64, 4 * k4 + D + 4)): dma(p)


def schedule(start, dur=3.7, bdur=11.0, sb=48, t0=22.0, step=2.0, fixed={}):
    free = list(start)
    masks = [0] * 6
    for s in list(range(0, sb, 4)) + list(range(sb, 64)):
        g = fixed[s] if s in fixed else min(range(6), key=lambda i: (round(free[i], 3), i))
        free[g] = max(free[g], t0 + step * (s + 3 if s < sb else s)) + (bdur if s < sb else dur)
        masks[g] |= 1 << s
    return masks


def xo_role(a: Asm, name, S_B, S_WS, S_FAST, S_DBG, S_VOTE, wd=None, opt={}, stamp=None):
    S_O = 12
    S_WAVE, S_G, S_C, S_T0, S_T1, S_SEG, S_CST = 16, 17, 18, 20, 21, 22, 24
    S_QO, S_KO, S_VO, S_MO, S_OW, S_OR, S_OUT, S_NEED = 26, 27, 28, 29, 40, 41, 42, 43
    S_CUR, S_RET, S_SLOT, S_QO2, S_KO2, S_ROT, S_QOK, S_N, S_XW, S_XR = 45, 46, 47, 48, 49, 50, 51, 8, 9, 10
    S_MASK = 60
    SRD = f"s[{S_WS}:{S_WS+3}]"
    V_L, V_L16, V_T0, V_T1, V_T2 = 1, 2, 3, 4, 5
    V_OKM, V_L8, V_OOW, V_TH0, V_TH1, V_NEG, V_FGP, V_FRP, V_FXF, V_FMY, V_LR, V_LW, V_OUT, V_T16 = 6, 7, 8, 9, 10, 11, 12, 13, 14, 15, 16, 17, 18, 19
    V_ONE = 20
    BQ, BK, BV, BKM, BVM = 24, 56, 88, 120, 136
    BF, BN, BPF = 152, 12, 10
    ACC, KEEP = 200, 232
    BTH, BFL, BND, V_FPF, V_LR2 = 248, 249, 250, 251, 252
    BO, BOB, BS, BP, BSM = 152, 184, 200, 212, 220
    SB = opt["sched"].get("sb", 48)
    QF = opt.get("qflag", 0)

    def poll_guard(code):
        if wd: wd(code)

    def st2(lines):
        l = a.newlabel(name + "_st")
        a(f"s_cmp_eq_u32 s{S_FAST}, 1\ns_cbranch_scc1 {l}f")
        for x in lines: a(x + " sc1")
        a(f"s_branch {l}d\n{l}f:")
        for x in lines: a(x)
        a.label(f"{l}d")

    a(f"""
    s_load_dwordx2 s[{S_O}:{S_O+1}], s[0:1], {KA_OUT}
    v_lshrrev_b32 v{V_T0}, 6, v0
    v_and_b32 v{V_L}, 63, v0
    v_readfirstlane_b32 s{S_WAVE}, v{V_T0}
    s_lshr_b32 s{S_G}, s{S_B}, 5
    s_and_b32 s{S_C}, s{S_B}, 31
    v_lshlrev_b32 v{V_L16}, 4, v{V_L}
    v_lshlrev_b32 v{V_T16}, 4, v0
    v_lshlrev_b32 v{V_L8}, 3, v{V_L}
    s_waitcnt lgkmcnt(0)
    s_mov_b32 s{S_O+2}, {8*MB}
    s_mov_b32 s{S_O+3}, 0x00020000
    s_mov_b32 s{S_CST}, 0x3e0293ee
    s_mov_b64 s[{S_MASK}:{S_MASK+1}], 0
    s_lshr_b32 s{S_ROT}, s{S_C}, 1
    s_lshl_b32 s{S_ROT}, s{S_ROT}, 12
    s_mov_b32 s{S_SLOT}, 0
    s_mov_b32 s{S_QOK}, {0 if QF else 1}
    s_lshl_b32 s{S_T0}, s{S_G}, 3
    s_add_u32 s{S_T0}, s{S_T0}, s{S_WAVE}
    s_lshl_b32 s{S_T0}, s{S_T0}, 18
    s_lshl_b32 s{S_T1}, s{S_C}, 13
    s_add_u32 s{S_T0}, s{S_T0}, s{S_T1}
    s_add_u32 s{S_T0}, s{S_T0}, {WS_O}
    v_lshlrev_b32 v26, 7, v{V_L}
    buffer_load_dword v28, v26, {SRD}, s{S_T0} offen sc1
    buffer_load_dword v30, v26, {SRD}, s{S_T0} offen offset:64 sc1
    s_add_u32 s{S_T0}, s{S_T0}, {MB}
    buffer_load_dword v29, v26, {SRD}, s{S_T0} offen sc1
    buffer_load_dword v31, v26, {SRD}, s{S_T0} offen offset:64 sc1
    s_lshl_b32 s{S_T0}, s{S_B}, 15
    s_add_u32 s{S_T0}, s{S_T0}, {WS_XCH}
    v_lshlrev_b32 v26, 7, v0
    buffer_load_dword v32, v26, {SRD}, s{S_T0} offen sc1
    buffer_load_dword v33, v26, {SRD}, s{S_T0} offen offset:64 sc1
    v_and_b32 v{V_T1}, 15, v{V_L}             ; c
    v_lshrrev_b32 v{V_T2}, 4, v{V_L}          ; g
    v_lshrrev_b32 v{V_T0}, 2, v{V_T1}
    v_lshlrev_b32 v{V_T0}, 1, v{V_T0}
    v_and_b32 v26, 1, v{V_T1}
    v_add_u32 v{V_T0}, v{V_T0}, v26           ; m(c)
    v_lshlrev_b32 v{V_OKM}, 8, v{V_T0}
    v_lshl_add_u32 v{V_OKM}, v{V_T2}, 4, v{V_OKM}
    v_lshlrev_b32 v{V_OOW}, 9, v{V_T2}
    v_lshl_add_u32 v{V_OOW}, v{V_T1}, 4, v{V_OOW}
    v_lshlrev_b32 v26, 2, v{V_T2}
    v_sub_u32 v{BTH}, v{V_T1}, v26
    s_and_b32 s{S_T1}, s{S_WAVE}, 1
    s_lshl_b32 s{S_T1}, s{S_T1}, 4
    v_add_u32 v{V_TH0}, s{S_T1}, v{BTH}
    v_add_u32 v{V_TH1}, -16, v{V_TH0}
    v_mov_b32 v{V_NEG}, 0xff7fffff
    v_mov_b32 v{V_ONE}, 0x3f803f80
    v_mov_b32 v{V_ONE+1}, 0x3f803f80
    v_mov_b32 v{V_ONE+2}, 0x3f803f80
    v_mov_b32 v{V_ONE+3}, 0x3f803f80
    v_bfe_u32 v26, v{V_L}, 1, 2
    v_min_u32 v26, 2, v26
    s_lshl_b32 s{S_T0}, s{S_C}, 8
    s_add_u32 s{S_T0}, s{S_T0}, {WS_FL}
    v_lshlrev_b32 v{V_FGP}, 13, v26
    v_and_b32 v26, 1, v{V_L}
    v_lshl_add_u32 v{V_FGP}, v26, 7, v{V_FGP}
    v_add_u32 v{V_FGP}, s{S_T0}, v{V_FGP}
    v_lshlrev_b32 v{V_FRP}, 7, v26
    s_add_u32 s{S_NEED}, s{S_T0}, {FL_RP * 128}
    v_add_u32 v{V_FRP}, s{S_NEED}, v{V_FRP}
    s_lshl_b32 s{S_T1}, s{S_T1}, 3
    s_add_u32 s{S_T0}, s{S_T0}, s{S_T1}
    s_add_u32 s{S_T0}, s{S_T0}, 8192
    v_mov_b32 v{BFL}, s{S_T0}
    s_mov_b32 vcc_lo, 0xcccccccc
    s_mov_b32 vcc_hi, 0xcccccccc
    v_cndmask_b32 v{BFL}, v{V_FRP}, v{BFL}, vcc
    v_and_b32 v26, 3, v{V_L}
    s_and_b32 s{S_T0}, s{S_C}, 1
    s_lshl_b32 s{S_T0}, s{S_T0}, 2
    s_add_u32 s{S_T0}, s{S_T0}, s{S_WAVE}
    s_lshl_b32 s{S_T0}, s{S_T0}, 2
    s_lshl_b32 s{S_T1}, s{S_G}, 5
    s_add_u32 s{S_T0}, s{S_T0}, s{S_T1}
    v_add_u32 v26, s{S_T0}, v26
    v_lshlrev_b32 v{V_FXF}, 7, v26
    v_add_u32 v{V_FXF}, {WS_FL + FL_XF * 128}, v{V_FXF}
    v_bfrev_b32 v26, 1
    s_lshl_b32 s{S_T0}, s{S_B}, 7
    s_add_u32 s{S_T0}, s{S_T0}, {WS_FL + FL_XF * 128}
    v_mov_b32 v27, s{S_T0}
    s_xor_b32 s{S_T0}, s{S_T0}, 128
    v_mov_b32 v{V_FPF}, s{S_T0}
    v_cmp_eq_u32 vcc, 0, v0
    s_mul_i32 s{S_T0}, s{S_WAVE}, 8704
    v_lshrrev_b32 v{V_LW}, 5, v{V_L}
    v_lshl_add_u32 v{V_LW}, v{V_LW}, 5, v{V_L16}
    v_add_u32 v{V_LW}, s{S_T0}, v{V_LW}
    v_cndmask_b32 v{V_FMY}, v26, v27, vcc
    v_lshrrev_b32 v26, 3, v0
    v_and_b32 v27, 7, v0
    v_mul_u32_u24 v{V_LR}, 544, v27
    v_lshl_add_u32 v{V_LR}, v26, 4, v{V_LR}
    s_and_b32 s{S_T0}, s{S_C}, 1
    s_mul_i32 s{S_T0}, s{S_T0}, 4352
    s_xor_b32 s{S_T1}, s{S_T0}, 4352
    v_add_u32 v{V_LR2}, s{S_T1}, v{V_LR}
    v_add_u32 v{V_LR}, s{S_T0}, v{V_LR}
    v_lshlrev_b32 v{V_OUT}, 12, v26
    v_and_b32 v27, 7, v0
    v_lshl_add_u32 v{V_OUT}, v27, 3, v{V_OUT}
    s_lshl_b32 s{S_T0}, s{S_C}, 6
    v_add_u32 v{V_OUT}, s{S_T0}, v{V_OUT}
    s_barrier
    """)
    if stamp: stamp()
    for g, mk in enumerate(schedule(**opt["sched"])):
        a(f"""
        s_cmp_eq_u32 s{S_G}, {g}
        s_cselect_b32 s{S_MASK}, {hex(mk & 0xffffffff)}, s{S_MASK}
        s_cselect_b32 s{S_MASK+1}, {hex(mk >> 32)}, s{S_MASK+1}
        """)
    a(f"""
    s_ff1_i32_b64 s{S_SEG}, s[{S_MASK}:{S_MASK+1}]
    s_cmp_ge_u32 s{S_SEG}, 64
    s_cbranch_scc1 {name}_fin
    {name}_gp:
    """)
    poll_guard(40)
    a(f"""
    buffer_load_dword v{V_T0}, v{V_FGP}, {SRD}, 0 offen sc1
    s_waitcnt vmcnt(0)
    v_cmp_gt_u32 vcc, 32, v{V_T0}
    s_and_b32 vcc_lo, vcc_lo, {0xfc if QF else 0xff}
    s_cbranch_scc0 {name}_gk
    s_sleep 8
    s_branch {name}_gp
    {name}_gk:
    """)

    def softmax(regs):
        MX, TM = V_T1, V_T0
        a(f"v_max3_f32 v{MX}, v{regs[0]}, v{regs[1]}, v{regs[2]}")
        rest = regs[3:-1]
        while rest:
            a(f"v_max3_f32 v{MX}, v{MX}, v{rest[0]}, v{rest[1]}"); rest = rest[2:]
        a(f"""
        v_max_f32 v{TM}, v{MX}, v{regs[-1]}
        v_max_f32 v{MX}, v{MX}, v{regs[-1]}
        s_nop 1
        v_permlane16_swap_b32 v{MX}, v{TM}
        v_max_f32 v{MX}, v{MX}, v{TM}
        v_max_f32 v{TM}, v{MX}, v{TM}
        s_nop 1
        v_permlane32_swap_b32 v{MX}, v{TM}
        v_max_f32 v{MX}, v{MX}, v{TM}
        v_mul_f32 v{MX}, s{S_CST}, v{MX}
        """)
        for r in regs: a(f"v_fma_f32 v{r}, v{r}, s{S_CST}, -v{MX}")
        for r in regs: a(f"v_exp_f32 v{r}, v{r}")
        a("s_nop 0")

    def pv(nt):
        a(f"v_cvt_pk_bf16_f32 v{BP+4}, v{BS+8}, v{BS+9}\nv_cvt_pk_bf16_f32 v{BP+5}, v{BS+8}, v{BS+9}")
        a(f"v_mfma_f32_16x16x32_bf16 v[{BSM}:{BSM+3}], v[{V_ONE}:{V_ONE+3}], v[{BP}:{BP+3}], 0")
        for i in range(nt):
            a(f"v_mfma_f32_16x16x32_bf16 v[{BO+4*i}:{BO+4*i+3}], v[{BV+4*i}:{BV+4*i+3}], v[{BP}:{BP+3}], 0")
        a.nops(max(0, 6 - nt))
        a(f"v_mfma_f32_16x16x16_bf16 v[{BSM}:{BSM+3}], v[{BP+6}:{BP+7}], v[{BP+4}:{BP+5}], v[{BSM}:{BSM+3}]")
        for i in range(nt):
            a(f"v_mfma_f32_16x16x16_bf16 v[{BO+4*i}:{BO+4*i+3}], v[{BVM+2*i}:{BVM+2*i+1}], v[{BP+4}:{BP+5}], v[{BO+4*i}:{BO+4*i+3}]")
        a.nops(8 - nt)
        a(f"v_rcp_f32 v{BSM}, v{BSM}")
        a.nops(2)
        for i in range(2 * nt):
            a(f"v_pk_mul_f32 v[{BO+2*i}:{BO+2*i+1}], v[{BO+2*i}:{BO+2*i+1}], v[{BSM}:{BSM+1}] op_sel_hi:[1,0]")
        for i in range(2 * nt):
            a(f"v_cvt_pk_bf16_f32 v{BOB+i}, v{BO+2*i}, v{BO+2*i+1}")

    def baddr():
        a(f"""
        s_add_u32 s{S_NEED}, s{S_SEG}, s{S_WAVE}
        s_lshl_b32 s{S_QO}, s{S_NEED}, 18
        s_lshl_b32 s{S_T0}, s{S_C}, 13
        s_add_u32 s{S_QO}, s{S_QO}, s{S_T0}
        s_lshr_b32 s{S_T0}, s{S_NEED}, 1
        s_add_u32 s{S_T0}, s{S_T0}, {32 if QF else 0}
        v_mov_b32 v{BND}, s{S_NEED}
        v_mov_b32 v{V_T0}, s{S_T0}
        s_mov_b32 vcc_lo, 0xcccccccc
        s_mov_b32 vcc_hi, 0xcccccccc
        v_cndmask_b32 v{BND}, v{BND}, v{V_T0}, vcc
        """)
    BL = []
    for base, reg in ((WS_QX, BQ), (WS_KX, BK), (WS_VT, BV)):
        for i in range(8):
            BL.append((base + (i >> 2) * 4096, f"buffer_load_dwordx4 v[{reg+4*i}:{reg+4*i+3}], v{V_L16}, {SRD}, s{S_T1} offen offset:{(i & 3) * 1024} sc1"))
    for u in range(4):
        BL.append((WS_KVM, f"buffer_load_dwordx4 v[{BKM+4*u}:{BKM+4*u+3}], v{V_OKM}, {SRD}, s{S_T1} offen offset:{64*u} sc1"))
    for i in range(8):
        BL.append((WS_KVM + 2048, f"buffer_load_dwordx2 v[{BVM+2*i}:{BVM+2*i+1}], v{V_L8}, {SRD}, s{S_T1} offen offset:{512*(i >> 1) + 2048*(i & 1)} sc1"))
    def bloads(part):
        cur = None
        for base, l in part:
            if base != cur:
                a(f"s_add_u32 s{S_T1}, s{S_QO}, {base}"); cur = base
            a(l)

    def owaddr(perwave):
        a(f"""
        s_lshl_b32 s{S_OW}, s{S_G}, 3
        s_add_u32 s{S_OW}, s{S_OW}, s{S_SLOT}
        {f"s_add_u32 s{S_OW}, s{S_OW}, s{S_WAVE}" if perwave else ""}
        s_lshl_b32 s{S_OW}, s{S_OW}, 18
        s_add_u32 s{S_OW}, s{S_OW}, {WS_O}
        s_lshl_b32 s{S_T0}, s{S_C}, 13
        s_add_u32 s{S_OW}, s{S_OW}, s{S_T0}
        v_mov_b32 v{BP+6}, v{V_ONE}
        v_mov_b32 v{BP+7}, 0
        """)

    a.label(f"{name}_job")
    a(f"s_cmp_ge_u32 s{S_SEG}, {SB}\ns_cbranch_scc1 {name}_single")
    baddr()
    a.label(f"{name}_btop")
    poll_guard(46)
    a(f"""
    buffer_load_dword v{V_T0}, v{BFL}, {SRD}, 0 offen sc1
    s_waitcnt vmcnt(0)
    v_cmp_ge_u32 vcc, v{BND}, v{V_T0}
    s_cbranch_vccz {name}_bk
    s_sleep 8
    s_branch {name}_btop
    {name}_bk:
    """)
    bloads(BL)
    a.label(f"{name}_batt")
    owaddr(True)
    a(f"s_add_u32 s{S_KO}, s{S_OW}, 4096\ns_mov_b32 s{S_N}, 4\ns_waitcnt vmcnt(0)")
    if stamp and opt.get("bst"): stamp()
    for i in range(4):
        a(f"v_swap_b32 v{BVM+4*i+1}, v{BVM+4*i+2}")
    for qt in range(2):
        tiles = [0, 2] if qt == 0 else [0, 1, 2]
        for u in range(4):
            q = BQ + 8 * u + 4 * qt
            for t in tiles:
                d = BS + 4 * t
                k = BK + 8 * u + 4 * t if t < 2 else BKM + 4 * u
                c = "0" if u == 0 else f"v[{d}:{d+3}]"
                a(f"v_mfma_f32_16x16x32_bf16 v[{d}:{d+3}], v[{k}:{k+3}], v[{q}:{q+3}], {c}")
        a.nops(6)
        for r in range(4):
            a(f"v_cmp_gt_i32 vcc, {r}, v{BTH}")
            a("s_nop 1")
            a(f"v_cndmask_b32 v{BS+4*qt+r}, v{BS+4*qt+r}, v{V_NEG}, vcc")
        softmax([BS + i for i in range(4 * (qt + 1))] + [BS + 8, BS + 9])
        for i in range(2 * (qt + 1)):
            a(f"v_cvt_pk_bf16_f32 v{BP+i}, v{BS+2*i}, v{BS+2*i+1}")
        if qt == 0: a(f"v_mov_b32 v{BP+2}, 0\nv_mov_b32 v{BP+3}, 0")
        pv(8)
        st2([f"buffer_store_dwordx4 v[{BOB+4*i}:{BOB+4*i+3}], v{V_OOW}, {SRD}, s{S_OW if i < 2 else S_KO} offen offset:{(i & 1) * 2048 + qt * 256}" for i in range(4)])
    a(f"s_branch {name}_pub")

    def sloads():
        a(f"""
        s_lshl_b32 s{S_KO}, s{S_SEG}, 18
        s_lshl_b32 s{S_T0}, s{S_C}, 13
        s_add_u32 s{S_KO}, s{S_KO}, s{S_T0}
        s_add_u32 s{S_MO}, s{S_KO}, {WS_KVM}
        s_and_b32 s{S_T0}, s{S_WAVE}, 1
        s_lshl_b32 s{S_T0}, s{S_T0}, 10
        s_add_u32 s{S_QO}, s{S_KO}, s{S_T0}
        s_add_u32 s{S_QO}, s{S_QO}, {WS_QX}
        s_lshr_b32 s{S_T0}, s{S_WAVE}, 1
        s_lshl_b32 s{S_T0}, s{S_T0}, 12
        s_add_u32 s{S_VO}, s{S_KO}, s{S_T0}
        s_add_u32 s{S_VO}, s{S_VO}, {WS_VT}
        s_add_u32 s{S_KO}, s{S_KO}, {WS_KX}
        s_add_u32 s{S_QO2}, s{S_QO}, 4096
        s_add_u32 s{S_KO2}, s{S_KO}, 4096
        """)
        for u in range(4):
            a(f"buffer_load_dwordx4 v[{BQ+4*u}:{BQ+4*u+3}], v{V_L16}, {SRD}, s{S_QO if u < 2 else S_QO2} offen offset:{(u & 1) * 2048} sc1")
        for i in range(8):
            a(f"buffer_load_dwordx4 v[{BK+4*i}:{BK+4*i+3}], v{V_L16}, {SRD}, s{S_KO if i < 4 else S_KO2} offen offset:{(i & 3) * 1024} sc1")
        for i in range(4):
            a(f"buffer_load_dwordx4 v[{BV+4*i}:{BV+4*i+3}], v{V_L16}, {SRD}, s{S_VO} offen offset:{i * 1024} sc1")
    a.label(f"{name}_single")
    if QF:
        a(f"s_cmp_eq_u32 s{S_QOK}, 1\ns_cbranch_scc1 {name}_gqd")
        a.label(f"{name}_gq")
        poll_guard(48)
        a(f"""
        buffer_load_dword v{V_T0}, v{V_FGP}, {SRD}, 0 offen sc1
        s_waitcnt vmcnt(0)
        v_cmp_ne_u32 vcc, 64, v{V_T0}
        s_and_b32 vcc_lo, vcc_lo, 0xc
        s_cbranch_scc0 {name}_gqd
        s_sleep 8
        s_branch {name}_gq
        {name}_gqd:
        s_mov_b32 s{S_QOK}, 1
        """)
    sloads()
    a.label(f"{name}_satt")
    owaddr(False)
    a(f"""
    s_lshr_b32 s{S_T0}, s{S_WAVE}, 1
    s_lshl_b32 s{S_T1}, s{S_T0}, 12
    s_add_u32 s{S_OW}, s{S_OW}, s{S_T1}
    s_lshl_b32 s{S_T0}, s{S_T0}, 10
    s_add_u32 s{S_VO}, s{S_MO}, s{S_T0}
    s_add_u32 s{S_VO}, s{S_VO}, 2048
    s_and_b32 s{S_T0}, s{S_WAVE}, 1
    s_lshl_b32 s{S_T0}, s{S_T0}, 8
    s_add_u32 s{S_OW}, s{S_OW}, s{S_T0}
    s_mov_b32 s{S_N}, 1
    s_waitcnt vmcnt(0)
    """)
    for u in range(4):
        for kt in range(2):
            d = BS + 4 * kt
            c = "0" if u == 0 else f"v[{d}:{d+3}]"
            k = BK + 8 * u + 4 * kt
            a(f"v_mfma_f32_16x16x32_bf16 v[{d}:{d+3}], v[{k}:{k+3}], v[{BQ+4*u}:{BQ+4*u+3}], {c}")
    a.nops(6)
    for kt, th in ((0, V_TH0), (1, V_TH1)):
        for r in range(4):
            a(f"v_cmp_gt_i32 vcc, {r}, v{th}")
            a("s_nop 1")
            a(f"v_cndmask_b32 v{BS+4*kt+r}, v{BS+4*kt+r}, v{V_NEG}, vcc")
    a(f"s_cmp_ge_u32 s{S_SEG}, 63\ns_cbranch_scc1 {name}_dx")
    a.label(f"{name}_rp")
    poll_guard(41)
    a(f"""
    buffer_load_dword v{V_T0}, v{V_FRP}, {SRD}, 0 offen sc1
    s_waitcnt vmcnt(0)
    v_cmp_ge_u32 vcc, s{S_SEG}, v{V_T0}
    s_cbranch_vccz {name}_rk
    s_sleep 2
    s_branch {name}_rp
    {name}_rk:
    """)
    for u in range(4):
        a(f"buffer_load_dwordx4 v[{BKM+4*u}:{BKM+4*u+3}], v{V_OKM}, {SRD}, s{S_MO} offen offset:{64*u} sc1")
    for i in range(4):
        a(f"buffer_load_dwordx2 v[{BVM+2*i}:{BVM+2*i+1}], v{V_L8}, {SRD}, s{S_VO} offen offset:{512*(i >> 1) + 2048*(i & 1)} sc1")
    a.label(f"{name}_rd")
    d = BS + 8
    for u in range(4):
        a(f"s_waitcnt vmcnt({7-u})")
        c = "0" if u == 0 else f"v[{d}:{d+3}]"
        a(f"v_mfma_f32_16x16x32_bf16 v[{d}:{d+3}], v[{BKM+4*u}:{BKM+4*u+3}], v[{BQ+4*u}:{BQ+4*u+3}], {c}")
    a(f"""
    s_waitcnt vmcnt(0)
    v_swap_b32 v{BVM+1}, v{BVM+2}
    v_swap_b32 v{BVM+5}, v{BVM+6}
    s_nop 1
    """)
    softmax([BS + i for i in range(10)])
    for i in range(4):
        a(f"v_cvt_pk_bf16_f32 v{BP+i}, v{BS+2*i}, v{BS+2*i+1}")
    pv(4)
    st2([f"buffer_store_dwordx4 v[{BOB+4*i}:{BOB+4*i+3}], v{V_OOW}, {SRD}, s{S_OW} offen offset:{i * 2048}" for i in range(2)])

    a.label(f"{name}_pub")
    a(f"""
    s_add_u32 s{S_CUR}, s{S_SEG}, s{S_N}
    v_mov_b32 v{V_T1}, s{S_CUR}
    s_waitcnt vmcnt(0)
    s_barrier
    """)
    st2([f"buffer_store_dword v{V_T1}, v{V_FMY}, {SRD}, 0 offen"])
    a(f"""
    s_lshl_b32 s{S_OR}, s{S_G}, 3
    s_add_u32 s{S_OR}, s{S_OR}, s{S_SLOT}
    s_lshl_b32 s{S_OR}, s{S_OR}, 3
    s_and_b32 s{S_T0}, s{S_C}, 1
    s_lshl_b32 s{S_T0}, s{S_T0}, 2
    s_add_u32 s{S_OR}, s{S_OR}, s{S_T0}
    s_add_u32 s{S_OR}, s{S_OR}, s{S_WAVE}
    s_lshl_b32 s{S_OR}, s{S_OR}, 15
    s_add_u32 s{S_OR}, s{S_OR}, {WS_O}
    s_lshl_b32 s{S_XR}, s{S_B}, 3
    s_add_u32 s{S_XR}, s{S_XR}, s{S_SLOT}
    s_lshl_b32 s{S_XR}, s{S_XR}, 12
    s_add_u32 s{S_XR}, s{S_XR}, {WS_XCH}
    s_xor_b32 s{S_XW}, s{S_XR}, 32768
    s_lshl_b32 s{S_OUT}, s{S_SEG}, 17
    s_xor_b32 s{S_SLOT}, s{S_SLOT}, 4
    s_bitset0_b64 s[{S_MASK}:{S_MASK+1}], s{S_SEG}
    s_ff1_i32_b64 s{S_SEG}, s[{S_MASK}:{S_MASK+1}]
    s_min_u32 s{S_SEG}, s{S_SEG}, 64
    """)
    if stamp and opt.get("bst"): stamp()
    baddr()
    a(f"s_cmp_ge_u32 s{S_SEG}, 64\ns_cbranch_scc1 {name}_xp")
    a(f"buffer_load_dword v{V_T2}, v{BFL}, {SRD}, 0 offen sc1")
    a(f"buffer_load_dword v{V_T1}, v{V_FGP}, {SRD}, 0 offen sc1")
    a.label(f"{name}_xp")
    poll_guard(47)
    a(f"""
    buffer_load_dword v{V_T0}, v{V_FXF}, {SRD}, 0 offen sc1
    s_waitcnt vmcnt(0)
    v_cmp_gt_u32 vcc, s{S_CUR}, v{V_T0}
    s_cbranch_vccnz {name}_xp
    v_cmp_ne_u32 vcc, 64, v{V_T1}
    s_and_b32 vcc_lo, vcc_lo, 0xc
    s_cselect_b32 s{S_QOK}, s{S_QOK}, 1
    v_cmp_ge_u32 vcc, v{BND}, v{V_T2}
    s_cmp_eq_u64 vcc, 0
    s_cselect_b32 s{S_RET}, 1, 0
    s_cmp_lt_u32 s{S_SEG}, {SB}
    s_cselect_b32 s{S_RET}, s{S_RET}, 0
    s_cmp_eq_u32 s{S_RET}, 1
    s_cselect_b32 s{S_QO}, s{S_QO}, 0x80000000
    """)
    def proj(n):
        q = []
        extra = list(BL) if n > 1 else []
        def fl(f):
            i = f & 31
            d = BF + 4 * (f % BN)
            if i % 4 == 0:
                if i == 0 and f: a(f"s_add_u32 s{S_OR}, s{S_OR}, {1 << 18}")
                a(f"s_add_u32 s{S_T0}, s{S_ROT}, {i * 1024}")
                a(f"s_and_b32 s{S_T0}, s{S_T0}, 0x7fff")
                a(f"s_add_u32 s{S_T0}, s{S_T0}, s{S_OR}")
            a(f"buffer_load_dwordx4 v[{d}:{d+3}], v{V_L16}, {SRD}, s{S_T0} offen offset:{(i & 3) * 1024} sc1")
            q.append(f)
        for f in range(BPF): fl(f)
        cur = None
        for f in range(32 * n):
            i = f & 31
            a(f"s_waitcnt vmcnt({len(q) - 1 - q.index(f)})")
            d = BF + 4 * (f % BN)
            if i == 0 and f: a("s_waitcnt lgkmcnt(0)")
            for ct in range(2):
                ac = ACC + 16 * ct
                c = "0" if i == 0 else f"v[{ac}:{ac+15}]"
                a(f"v_mfma_f32_32x32x16_bf16 v[{ac}:{ac+15}], a[{8*i+4*ct}:{8*i+4*ct+3}], v[{d}:{d+3}], {c}")
            if f + BPF < 32 * n: fl(f + BPF)
            if extra and f % 3 == 1:
                base, l = extra.pop(0)
                if base != cur:
                    a(f"s_add_u32 s{S_T1}, s{S_QO}, {base}"); cur = base
                a(l); q.append("x")
            if i == 31:
                sgm = f >> 5
                if sgm == 2: a(f"v_add_u32 v{V_T2}, 69632, v{V_LW}")
                a.nops(12)
                for qq in range(8):
                    a(f"ds_write_b128 v{V_LW if sgm < 2 else V_T2}, v[{ACC+4*qq}:{ACC+4*qq+3}] offset:{1088*(qq & 3) + 4352*(qq >> 2) + 34816*(sgm & 1)}")
                if stamp and opt.get("bst") and f == 32 * n - 1: stamp()
        assert not extra
        l = a.newlabel(name + "_sp")
        a(f"""
        s_sub_u32 s{S_T0}, s{S_SEG}, {SB}
        s_cmp_lt_u32 s{S_T0}, {64 - SB}
        s_cselect_b32 s{S_T0}, s{S_QOK}, 0
        s_cmp_eq_u32 s{S_T0}, 1
        s_cbranch_scc0 {l}
        s_mov_b32 s{S_RET}, 2
        """)
        sloads()
        a.label(l)
        a(f"""
        v_mov_b32 v{V_T0}, v{V_LR2}
        v_mov_b32 v{V_T1}, s{S_CUR}
        s_waitcnt lgkmcnt(0)
        v_mov_b32 v{V_T2}, v{V_LR}
        s_barrier
        """)
    if stamp and opt.get("bst"): stamp()
    a(f"s_cmp_eq_u32 s{S_N}, 1\ns_cbranch_scc1 {name}_f1")
    def sum4(R, D):
        a(f"""
        v_pk_add_f32 v[{R}:{R+1}], v[{R}:{R+1}], v[{R+4}:{R+5}]
        v_pk_add_f32 v[{R+2}:{R+3}], v[{R+2}:{R+3}], v[{R+6}:{R+7}]
        v_pk_add_f32 v[{R+8}:{R+9}], v[{R+8}:{R+9}], v[{R+12}:{R+13}]
        v_pk_add_f32 v[{R+10}:{R+11}], v[{R+10}:{R+11}], v[{R+14}:{R+15}]
        v_pk_add_f32 v[{D}:{D+1}], v[{R}:{R+1}], v[{R+8}:{R+9}]
        v_pk_add_f32 v[{D+2}:{D+3}], v[{R+2}:{R+3}], v[{R+10}:{R+11}]
        """)
    def fin(n, tag):
        R = BF
        def rd(v, i, dst):
            if i == 2: a(f"v_add_u32 v{v}, 69632, v{v}")
            for w in range(4):
                a(f"ds_read_b128 v[{dst+4*w}:{dst+4*w+3}], v{v} offset:{8704*w + 34816*(i & 1)}")
        for i in range(min(n, 3)): rd(V_T0, i, R + 16 * i)
        for i in range(n):
            a(f"s_waitcnt lgkmcnt({4 * (min(n, i + 3) - i - 1)})")
            sum4(R + 16 * i, R + 16 * i)
            if i + 3 < n: rd(V_T0, i + 3, R + 16 * (i + 3))
        lines = []
        for i in range(n):
            a(f"s_add_u32 s{(S_QO2, S_KO2, S_KO, S_VO)[i]}, s{S_XW}, {4096 * i}")
            lines.append(f"buffer_store_dwordx4 v[{R+16*i}:{R+16*i+3}], v{V_T16}, {SRD}, s{(S_QO2, S_KO2, S_KO, S_VO)[i]} offen")
        st2(lines)
        Q = ACC + 16
        for i in range(n):
            rd(V_T2, i, Q)
            a("s_waitcnt lgkmcnt(0)")
            sum4(Q, KEEP + 4 * i)
        a("s_waitcnt vmcnt(0)\ns_barrier")
        st2([f"buffer_store_dword v{V_T1}, v{V_FMY}, {SRD}, 0 offen offset:64"])
        a.label(f"{name}_pf{tag}")
        poll_guard(49)
        a(f"""
        buffer_load_dword v{V_T0}, v{V_FPF}, {SRD}, 0 offen offset:64 sc1
        s_waitcnt vmcnt(0)
        v_cmp_gt_u32 vcc, s{S_CUR}, v{V_T0}
        s_cbranch_vccnz {name}_pf{tag}
        """)
        for i in range(n):
            a(f"buffer_load_dwordx4 v[{Q+4*i}:{Q+4*i+3}], v{V_T16}, {SRD}, s{S_XR} offen sc1")
            if i < n - 1: a(f"s_add_u32 s{S_XR}, s{S_XR}, 4096")
        for i in range(n):
            r, k = Q + 4 * i, KEEP + 4 * i
            a(f"""
            s_waitcnt vmcnt({n - 1})
            v_pk_add_f32 v[{r}:{r+1}], v[{r}:{r+1}], v[{k}:{k+1}]
            v_pk_add_f32 v[{r+2}:{r+3}], v[{r+2}:{r+3}], v[{k+2}:{k+3}]
            v_cvt_pk_bf16_f32 v{r}, v{r}, v{r+1}
            v_cvt_pk_bf16_f32 v{r+1}, v{r+2}, v{r+3}
            buffer_store_dwordx2 v[{r}:{r+1}], v{V_OUT}, s[{S_O}:{S_O+3}], s{S_OUT} offen
            s_add_u32 s{S_OUT}, s{S_OUT}, {1 << 17}
            """)
    proj(4)
    fin(4, "a")
    a(f"s_branch {name}_f2\n{name}_f1:")
    proj(1)
    fin(1, "b")
    a.label(f"{name}_f2")
    if stamp: stamp()
    a(f"""
    s_cmp_eq_u32 s{S_RET}, 1
    s_cbranch_scc1 {name}_batt
    s_cmp_eq_u32 s{S_RET}, 2
    s_cbranch_scc1 {name}_satt
    s_cmp_lt_u32 s{S_SEG}, 64
    s_cbranch_scc1 {name}_job
    s_branch {name}_fin
    """)

    a.label(f"{name}_dx")
    D, SEL, LA, T = BF, BF + 8, BF + 10, BF + 12
    a(f"""
    buffer_load_dword v{V_T0}, off, s[{S_DBG}:{S_DBG+3}], 0 offset:{DBG_VOTE} sc1
    v_and_b32 v{V_T1}, 15, v{V_L}
    v_lshrrev_b32 v{V_T2}, 4, v{V_L}
    v_and_b32 v{SEL}, 1, v{V_T1}
    v_lshlrev_b32 v{SEL}, 4, v{SEL}
    v_mov_b32 v{SEL+1}, 0x3f80
    v_lshlrev_b32 v{SEL+1}, v{SEL}, v{SEL+1}
    v_lshrrev_b32 v{V_T1}, 2, v{V_T1}
    v_cmp_eq_u32 vcc, v{V_T1}, v{V_T2}
    v_mov_b32 v{SEL}, 0
    s_waitcnt vmcnt(0)
    v_cndmask_b32 v{SEL+1}, 0, v{SEL+1}, vcc
    v_readfirstlane_b32 s{S_T0}, v{V_T0}
    s_and_b32 s{S_T1}, s{S_SEG}, 1
    s_lshl_b32 s{S_T1}, s{S_T1}, 20
    s_lshl_b32 s{S_QO}, s{S_C}, 14
    s_add_u32 s{S_QO}, s{S_QO}, s{S_T1}
    s_add_u32 s{S_QO}, s{S_QO}, {WS_XB}
    s_lshr_b32 s{S_T0}, s{S_T0}, 15
    s_cmp_gt_u32 s{S_T0}, s{S_VOTE}
    s_cselect_b32 s{S_T0}, 8192, 0
    s_add_u32 s{S_QO}, s{S_QO}, s{S_T0}
    s_bfe_u32 s{S_T0}, s{S_C}, 0x10001
    s_lshl_b32 s{S_T0}, s{S_T0}, 12
    s_add_u32 s{S_QO}, s{S_QO}, s{S_T0}
    s_add_u32 s{S_QO2}, s{S_QO}, {32 << 14}
    s_lshr_b32 s{S_T0}, s{S_WAVE}, 1
    s_lshl_b32 s{S_T0}, s{S_T0}, 11
    s_xor_b32 s{S_KO}, s{S_QO}, 4096
    s_add_u32 s{S_KO}, s{S_KO}, s{S_T0}
    s_add_u32 s{S_KO2}, s{S_KO}, {32 << 14}
    s_lshl_b32 s{S_T0}, s{S_WAVE}, 10
    s_add_u32 s{S_QO}, s{S_QO}, s{S_T0}
    s_add_u32 s{S_QO2}, s{S_QO2}, s{S_T0}
    v_add_u32 v{LA}, s{S_T0}, v{V_L16}
    {name}_dr:
    """)
    poll_guard(43)
    a(f"""
    buffer_load_dword v{V_T0}, v{V_FRP}, {SRD}, 0 offen sc1
    s_waitcnt vmcnt(0)
    v_cmp_gt_u32 vcc, s{S_SEG}, v{V_T0}
    s_cbranch_vccz {name}_dp
    s_sleep 2
    s_branch {name}_dr
    {name}_dp:
    """)
    poll_guard(44)
    for j in range(2):
        for m in range(2):
            d = D + 4 * j + 2 * m
            a(f"buffer_load_dwordx2 v[{d}:{d+1}], v{V_L8}, {SRD}, s{S_QO if j == 0 else S_QO2} offen offset:{512*m} sc1")
    a("s_waitcnt vmcnt(0)")
    for j in range(2):
        for m in range(2):
            d = D + 4 * j + 2 * m
            t = T + 4 * m
            c = "0" if j == 0 else f"v[{t}:{t+3}]"
            a(f"v_mfma_f32_16x16x16_bf16 v[{t}:{t+3}], v[{d}:{d+1}], v[{SEL}:{SEL+1}], {c}")
    a(f"""
    v_or3_b32 v{V_T0}, v{D}, v{D+2}, v{D+4}
    v_or_b32 v{V_T0}, v{V_T0}, v{D+6}
    v_and_b32 v{V_T0}, 1, v{V_T0}
    v_cmp_ne_u32 vcc, 0, v{V_T0}
    s_nop 3
    s_cbranch_vccnz {name}_dp
    """)
    for i in range(4):
        a(f"v_cvt_pk_bf16_f32 v{D+i}, v{T+2*i}, v{T+2*i+1}")
    a(f"ds_write_b128 v{LA}, v[{D}:{D+3}] offset:40960")
    a("s_waitcnt lgkmcnt(0)\ns_barrier")
    for u in range(4):
        a(f"ds_read_b128 v[{BKM+4*u}:{BKM+4*u+3}], v{V_L16} offset:{40960 + 1024*u}")
    a.label(f"{name}_dv")
    poll_guard(45)
    for i in range(4):
        a(f"buffer_load_dwordx2 v[{BVM+2*i}:{BVM+2*i+1}], v{V_L8}, {SRD}, s{S_KO if (i & 1) == 0 else S_KO2} offen offset:{1024*(i >> 1)} sc1")
    a(f"""
    s_waitcnt vmcnt(0) lgkmcnt(0)
    v_or3_b32 v{V_T0}, v{BVM}, v{BVM+2}, v{BVM+4}
    v_or_b32 v{V_T0}, v{V_T0}, v{BVM+6}
    v_and_b32 v{V_T0}, 1, v{V_T0}
    v_cmp_ne_u32 vcc, 0, v{V_T0}
    s_cbranch_vccnz {name}_dv
    s_branch {name}_rd
    {name}_fin:
    """)
```

```python
import sys, json
from common import *
from gen_rec import DBG_VOTE, global_init, mem0_publish, rec_body, S_J, S_H, LDS_REC, WS_FL, WS_XB, WS_PROF
from gen_qkv import qkv_role
from gen_xo import xo_role, WoLoader
import gen_xo2, gen_fft2
from gen_fft import gen_f0, gen_f1, gen_f2, gen_f3

DBG_F1, DBG_F2, DBG_F0 = WS_FL + 448 * 128, WS_FL + 450 * 128, WS_FL + 452 * 128
RECOPT = dict(preC="ack", preA="ack", nl=16, yp=15, xp=(16, 18), vs=17, vbar=1, fsp=4, are=1, f1e=1, f1s=2)


def xlut(order):
    lut = 0
    for logical, c in enumerate(order):
        lut |= logical << (4 * int(c))
    return hex(lut)


DEFOPT = dict(r4=1, qflag=1, wfirst=1, xmap="13024567", sched=dict(start=(999, 999, 126, 126, 77, 77), bdur=11.5, dur=5.2, sb=56, fixed={56: 2, 58: 2, 62: 2, 57: 3, 59: 3, 63: 3, 60: 4, 61: 5}))


def minify(txt, name):
    import re
    out = []
    for l in txt.split("\n"):
        l = l.strip()
        for d in (" neg_lo:[0,0,0]", " neg_hi:[0,0,0]", " neg_lo:[0,0]", " neg_hi:[0,0]", " op_sel:[0,0,0]", " op_sel:[0,0]", " op_sel_hi:[1,1,1]", " op_sel_hi:[1,1]"):
            l = l.replace(d, "")
        l = re.sub(r" offset:0(?= |$)", "", l)
        out.append(l.replace(name + "_", "L_"))
    return "\n".join(out)


def gen_mega(name, **kw):
    opt = dict(DEFOPT) if not kw.get("opt", {}).get("old") else {}
    opt.update(kw.get("opt", {}))
    kw["opt"] = opt
    r = list(gen_mega0(name, **kw))
    r[1] = minify(r[1], name)
    return tuple(r)


def gen_mega0(name, force_slow=False, wd=False, bprof=False, ropt={}, rprof=False, opt={}):
    a = Asm(); a.kernel_begin(name)
    S_W, S_D = 84, 88
    S_B, S_X, S_TK, S_GT, S_VOTE, S_TS, S_WDC = 92, 93, 94, 95, 100, 101, 83
    S_FAST, S_VER, S_WV = 96, 97, 98
    ro = dict(RECOPT); ro.update(ropt)

    def ts(srd=S_W):
        if not bprof: return
        l = a.newlabel(name + "_ts")
        a(f"""
        {'s_memtime' if opt.get('cyc') else 's_memrealtime'} vcc
        s_waitcnt lgkmcnt(0)
        s_mov_b64 exec, 1
        v_accvgpr_read_b32 v255, a255
        v_mov_b32 v255, vcc_lo
        s_nop 0
        buffer_store_dword v255, off, s[{srd}:{srd+3}], s{S_TS}
        s_mov_b64 exec, -1
        s_add_u32 s{S_TS}, s{S_TS}, 4
        """.replace("v_accvgpr_read_b32 v255, a255\n", ""))

    def dmax(idx, srd=S_D, v=135):
        if not opt.get("dbgt"): return
        a(f"""
        s_memrealtime vcc
        s_waitcnt lgkmcnt(0)
        s_mov_b64 exec, 1
        v_mov_b32 v{v}, vcc_lo
        s_nop 0
        buffer_atomic_umax v{v}, off, s[{srd}:{srd+3}], 0 offset:{4*idx} sc1
        s_mov_b64 exec, -1
        """)

    def wdog(code):
        if not wd: return
        a(f"""
        s_add_u32 s{S_WDC}, s{S_WDC}, 1
        s_cmp_gt_u32 s{S_WDC}, 300000
        s_movk_i32 s82, {code}
        s_cbranch_scc1 {name}_wdx
        """)

    a(f"""
    s_cmp_ge_u32 s2, 256
    s_cbranch_scc1 {name}_exit
    s_load_dwordx2 s[{S_W}:{S_W+1}], s[0:1], {KA_WS}
    s_load_dwordx2 s[{S_D}:{S_D+1}], s[0:1], {KA_DBG}
    s_getreg_b32 s{S_X}, hwreg(HW_REG_XCC_ID)
    s_and_b32 s{S_X}, s{S_X}, 7
    s_lshl_b32 s{S_X}, s{S_X}, 2
    s_lshr_b32 s{S_X}, {xlut(opt.get('xmap', '23014567'))}, s{S_X}
    s_and_b32 s{S_X}, s{S_X}, 7
    v_lshrrev_b32 v1, 6, v0
    v_mov_b32 v4, 0
    v_readfirstlane_b32 s80, v1
    v_mov_b32 v5, 0
    v_mov_b32 v6, 0
    v_mov_b32 v7, 0
    s_mov_b32 s{S_WDC}, 0
    s_lshl_b32 s{S_TS}, s2, 2
    s_add_u32 s{S_TS}, s{S_TS}, s80
    s_lshl_b32 s{S_TS}, s{S_TS}, 8
    s_add_u32 s{S_TS}, s{S_TS}, {220*MB}
    s_waitcnt lgkmcnt(0)
    s_mov_b32 s{S_W+2}, {WS_BYTES}
    s_mov_b32 s{S_W+3}, 0x00020000
    s_mov_b32 s{S_D+2}, 256
    s_mov_b32 s{S_D+3}, 0x00020000
    """)
    ts()
    if opt.get("cpf"):
        a(f"""
        s_getpc_b64 s[78:79]
        v_lshlrev_b32 v9, 7, v0
        """)
        for i in range(opt["cpf"]):
            a(f"global_load_dword v{10+i}, v9, s[78:79]")
            a("v_add_u32 v9, 0x8000, v9")
    PX = opt.get("px", 2)
    a(f"""
    s_mov_b32 s{S_WV}, s80
    s_cmp_lg_u32 s80, 0
    s_cbranch_scc1 {name}_st0
    v_mov_b32 v10, 1
    s_lshl_b32 s81, s{S_X}, 5
    s_mov_b64 exec, 1
    buffer_atomic_add v10, off, s[{S_D}:{S_D+3}], s81 offset:4 sc0
    s_lshl_b32 s81, s2, 7
    s_add_u32 s81, s81, {WS_FL}
    s_mov_b64 exec, 15
    v_and_b32 v1, 1, v0
    v_lshlrev_b32 v1, 15, v1
    v_lshrrev_b32 v2, 1, v0
    v_lshl_add_u32 v1, v2, 6, v1
    buffer_store_dword v4, v1, s[{S_W}:{S_W+3}], s81 offen sc1
    s_mov_b64 exec, -1
    {name}_st0:
    """)
    global_init(a, name, S_W)
    a(f"""
    s_cmp_lg_u32 s80, 0
    s_cbranch_scc1 {name}_st1
    s_mov_b64 exec, 1
    s_waitcnt vmcnt(5)
    ds_write_b32 v4, v10
    s_mov_b64 exec, -1
    s_waitcnt lgkmcnt(0)
    {name}_st1:
    s_barrier
    ds_read_b32 v2, v4
    s_waitcnt lgkmcnt(0)
    v_readfirstlane_b32 s{S_TK}, v2
    s_barrier
    s_sub_u32 s81, s{S_X}, {PX}
    s_cmp_ge_u32 s81, 2
    s_cbranch_scc1 {name}_nopr
    s_cmp_lg_u32 s80, 0
    s_cbranch_scc1 {name}_prd
    v_lshlrev_b32 v1, 4, v0
    s_and_b32 s81, s2, 127
    s_lshl_b32 s81, s81, 14
    s_add_u32 s81, s81, {WS_XB}
    s_add_u32 s77, s81, 8192
    buffer_store_dwordx4 v[4:7], v1, s[{S_W}:{S_W+3}], s81 offen sc1
    buffer_store_dwordx4 v[4:7], v1, s[{S_W}:{S_W+3}], s77 offen sc1
    s_waitcnt vmcnt(0)
    s_memtime s[70:71]
    buffer_store_dwordx4 v[4:7], v1, s[{S_W}:{S_W+3}], s81 offen sc1
    s_waitcnt vmcnt(0)
    s_memtime s[72:73]
    buffer_store_dwordx4 v[4:7], v1, s[{S_W}:{S_W+3}], s77 offen sc1
    s_waitcnt vmcnt(0)
    buffer_store_dwordx4 v[4:7], v1, s[{S_W}:{S_W+3}], s77 offen sc1
    s_waitcnt vmcnt(0)
    s_memtime s[74:75]
    buffer_store_dwordx4 v[4:7], v1, s[{S_W}:{S_W+3}], s81 offen sc1
    s_waitcnt vmcnt(0)
    s_memtime s[76:77]
    s_waitcnt lgkmcnt(0)
    s_sub_u32 s76, s76, s74
    s_sub_u32 s74, s74, s72
    s_sub_u32 s72, s72, s70
    s_add_u32 s72, s72, s76
    s_cmp_lt_u32 s74, s72
    s_cselect_b32 s81, 0x10001, 1
    v_mov_b32 v8, s81
    s_mov_b64 exec, 1
    buffer_atomic_add v8, off, s[{S_D}:{S_D+3}], 0 offset:{DBG_VOTE} sc1
    s_mov_b64 exec, -1
    {name}_prd:
    s_barrier
    """)
    for _ in range(opt.get("qdelay", 0)): a("s_sleep 127")
    a(f"""
    {name}_nopr:
    s_mov_b32 s{S_VER}, 0
    s_mov_b32 s{S_VOTE}, 64
    {name}_fast:
    s_mov_b32 s{S_FAST}, 1
    s_mov_b32 s{S_J}, s{S_X}
    s_and_b32 s{S_H}, s{S_TK}, 31
    s_cmp_lt_u32 s{S_X}, 2
    s_cbranch_scc1 {name}_recf
    s_sub_u32 s{S_B}, s{S_X}, 2
    s_lshl_b32 s{S_B}, s{S_B}, 5
    s_add_u32 s{S_B}, s{S_B}, s{S_H}
    s_branch {name}_bulk
    {name}_redo:
    s_waitcnt vmcnt(0) lgkmcnt(0)
    s_barrier
    v_readlane_b32 s{S_VOTE}, v36, {PX}
    v_readlane_b32 s81, v36, {PX + 1}
    s_mov_b32 s{S_VER}, 1
    s_nop 2
    s_add_u32 s{S_VOTE}, s{S_VOTE}, s81
    """)
    a(f"s_mov_b32 s{S_GT}, s{S_TK}")
    for i in range(7):
        a(f"""
        v_readlane_b32 s81, v36, {i}
        s_cmp_gt_u32 s{S_X}, {i}
        s_nop 2
        s_cselect_b32 s81, s81, 0
        s_add_u32 s{S_GT}, s{S_GT}, s81
        """)
    a(f"""
    {name}_slow:
    s_mov_b32 s{S_FAST}, 0
    s_lshr_b32 s{S_J}, s{S_GT}, 5
    s_and_b32 s{S_H}, s{S_GT}, 31
    s_cmp_lt_u32 s{S_GT}, 64
    s_cbranch_scc1 {name}_recs
    s_sub_u32 s{S_B}, s{S_GT}, 64
    s_branch {name}_bulk
    {name}_exit:
    s_endpgm
    """)

    def hook0(n):
        l = a.newlabel(name + "_h0")
        a(f"""
        s_waitcnt vmcnt({n})
        s_barrier
        s_or_b32 s81, s{S_VER}, s{S_WV}
        s_cmp_lg_u32 s81, 0
        s_cbranch_scc1 {l}
        s_lshl_b32 s81, s{S_X}, 5
        v_mov_b32 v38, 1
        s_mov_b64 exec, 1
        buffer_atomic_add v38, off, s[{S_D}:{S_D+3}], s81 sc1
        s_mov_b64 exec, -1
        {l}:
        """)
    def hook1():
        a(f"""
        v_and_b32 v37, 7, v0
        v_lshlrev_b32 v37, 5, v37
        buffer_load_dword v36, v37, s[{S_D}:{S_D+3}], 0 offen sc1
        """)
    def hook2():
        l = a.newlabel(name + "_h2")
        a(f"""
        s_cmp_lg_u32 s{S_VER}, 0
        s_cbranch_scc1 {l}_ok
        {l}_ev:
        v_cmp_ne_u32 vcc, 32, v36
        """)
        if not force_slow: a(f"s_cbranch_vccz {l}_ok")
        a("s_mov_b32 s78, 0")
        for i in range(8):
            a(f"v_readlane_b32 s81, v36, {i}\ns_nop 3\ns_add_u32 s78, s78, s81")
        a(f"""
        s_cmp_eq_u32 s78, 256
        s_cbranch_scc1 {name}_redo
        """)
        wdog(2)
        a(f"""
        buffer_load_dword v36, v37, s[{S_D}:{S_D+3}], 0 offen sc1
        s_waitcnt vmcnt(0)
        s_branch {l}_ev
        {l}_ok:
        s_mov_b32 s{S_VER}, 1
        """)
    hooks = (hook0, hook1, hook2)
    a.label(f"{name}_recf")
    rn = [0]
    def rts():
        if opt.get("dbgt"):
            l = a.newlabel(name + "_rt")
            a(f"s_cmp_lg_u32 s20, 0\ns_cbranch_scc1 {l}")
            dmax(4 + rn[0], 12, 3); rn[0] += 1
            a.label(l)
        if not bprof: return
        a(f"""
        s_memrealtime vcc
        s_waitcnt lgkmcnt(0)
        s_mov_b64 exec, 1
        v_mov_b32 v3, vcc_lo
        s_nop 0
        buffer_store_dword v3, off, s[4:7], s{S_TS}
        s_mov_b64 exec, -1
        s_add_u32 s{S_TS}, s{S_TS}, 4
        """)
    ts()
    rec_body(a, name + "_rf", "", wd=wd, full=True, S_VOTE=S_VOTE, opt=ro, prof=rprof, tstamp=rts, hooks=hooks)
    a.label(f"{name}_recs")
    if opt.get("noslow"): a("s_endpgm")
    else: rec_body(a, name + "_rs", "sc1", wd=wd, full=True, S_VOTE=S_VOTE, opt=RECOPT)

    def signal(off):
        l = a.newlabel(name + "_sg")
        a(f"""
        s_waitcnt vmcnt(0)
        s_barrier
        s_cmp_lg_u32 s{S_WV}, 0
        s_cbranch_scc1 {l}
        v_mov_b32 v2, 1
        s_mov_b32 s81, {off}
        s_mov_b64 exec, 1
        buffer_atomic_add v2, off, s[{S_W}:{S_W+3}], s81 sc1
        s_mov_b64 exec, -1
        {l}:
        """)

    def wait(off, n, tag, allw=False):
        if not allw: a(f"s_cmp_lg_u32 s{S_WV}, 0\ns_cbranch_scc1 {name}_w{tag}d")
        a(f"s_mov_b32 s81, {off}")
        a.label(f"{name}_w{tag}")
        wdog(50)
        a(f"""
        buffer_load_dword v120, off, s[{S_W}:{S_W+3}], s81 sc1
        s_waitcnt vmcnt(0)
        v_cmp_ne_u32 vcc, {n}, v120
        s_cbranch_vccz {name}_w{tag}d
        s_sleep 6
        s_branch {name}_w{tag}
        {name}_w{tag}d:
        """)
    if wd:
        a(f"""
        {name}_wdx:
        s_mov_b64 exec, 1
        v_mov_b32 v1, s82
        s_lshl_b32 s81, s2, 2
        s_add_u32 s81, s81, {WS_PROF + MB + 1024}
        buffer_store_dword v1, off, s[{S_W}:{S_W+3}], s81
        s_endpgm
        """)
    a.label(f"{name}_bulk")
    ts()
    if opt.get("r4"):
        WL = WoLoader(a, name, S_B, S_WV, opt)
        a(f"s_cmp_lt_u32 s{S_B}, 64\ns_cbranch_scc1 {name}_fft")
        qkv_role(a, name + "_q", S_B, S_W, S_D, stamp=ts, opt=opt, hooks=hooks)
        ts()
        a(f"s_branch {name}_wl")
        a.label(f"{name}_fft")
        if opt.get("ct2", 0):
            a(f"""
            s_getpc_b64 s[78:79]
            {name}_ct2:
            v_lshlrev_b32 v205, 6, v0
            """)
            for i in range(5):
                a(f"v_min_u32 v206, {name}_wl - {name}_ct2, v205")
                a(f"global_load_dword v207, v206, s[78:79]")
                a("v_add_u32 v205, 0x4000, v205")
        if opt.get("npf"):
            a(f"""
            s_load_dwordx2 s[4:5], s[0:1], {KA_WQ}
            s_load_dwordx2 s[8:9], s[0:1], {KA_WO}
            v_lshlrev_b32 v1, 7, v0
            s_and_b32 s12, s{S_B}, 1
            s_lshr_b32 s13, s{S_B}, 1
            s_lshl_b32 s14, s12, 22
            s_lshl_b32 s15, s13, 15
            s_add_u32 s14, s14, s15
            s_lshl_b32 s15, s13, 18
            s_lshl_b32 s16, s12, 15
            s_add_u32 s15, s15, s16
            s_waitcnt lgkmcnt(0)
            s_mov_b32 s6, {8*MB}
            s_mov_b32 s7, 0x00020000
            s_mov_b32 s10, {8*MB}
            s_mov_b32 s11, 0x00020000
            """)
            hook0(0)
            for n in range(opt.get("npf0", 1), 4):
                a(f"s_add_u32 s16, s14, {n * MB}\nbuffer_load_dword v{8+n}, v1, s[4:7], s16 offen")
            for n in range(4):
                a(f"s_add_u32 s16, s15, {n * 65536}\nbuffer_load_dword v{12+n}, v1, s[8:11], s16 offen")
            for _ in range(opt["npf"] - 1): a("s_sleep 127")
        else: hook0(0)
        def verify():
            hook1()
            a("s_waitcnt vmcnt(0)")
            hook2()
        verify()
        mem0_publish(a, S_W, S_B)
        def twice(tag, body, n=128):
            a(f"s_mov_b32 s99, s{S_B}")
            a.label(f"{name}_{tag}l")
            body()
            a(f"""
            s_add_u32 s99, s99, 64
            s_cmp_lt_u32 s99, {n}
            s_cbranch_scc1 {name}_{tag}l
            """)
        a(f"s_mov_b32 s99, s{S_B}")
        WF = opt.get("wfirst", 0)
        if WF == 2:
            gen_fft2.w_setup(a, 99)
            gen_fft2.gen_f1(a, name + "_f1r", S_B, S_W, side=gen_fft2.w_loads())
            signal(DBG_F1)
            a(f"s_branch {name}_f2p")
        a.label(f"{name}_f2l")
        gen_fft2.w_setup(a, 99)
        for l in gen_fft2.w_loads(): a(l)
        a.label(f"{name}_f2p")
        gen_fft2.w_place(a)
        a(f"s_cmp_eq_u32 s99, 64\ns_cbranch_scc1 {name}_f2go")
        ts()
        if WF == 1:
            gen_fft2.gen_f1(a, name + "_f1r", S_B, S_W)
            signal(DBG_F1)
            ts()
        wait(DBG_F1, 64, "f1")
        a.label(f"{name}_f2go")
        gen_fft2.gen_f2(a, name + "_f2", 99, S_W)
        a(f"""
        s_add_u32 s99, s99, 64
        s_cmp_eq_u32 s99, 64
        s_cbranch_scc1 {name}_f2l
        """)
        signal(DBG_F2)
        ts()
        wait(DBG_F2, 64, "f2")
        gen_fft2.gen_f3(a, name + "_f3", S_B, S_W)
        a("s_waitcnt vmcnt(0) lgkmcnt(0)\ns_barrier")
        ts()
        mk = gen_xo2.schedule(**opt["sched"])
        for g in range(2):
            if not mk[g]: a(f"s_lshr_b32 s81, s{S_B}, 5\ns_cmp_lg_u32 s81, {g}\ns_cbranch_scc1 {name}_nx{g}\ns_endpgm\n{name}_nx{g}:")
        a.label(f"{name}_wl")
        gen_xo2.WoLoader(a, name, S_B, S_WV, opt).run()
        gen_xo2.xo_role(a, name + "_x", S_B, S_W, S_FAST, S_D, S_VOTE, wd=wdog if wd else None, opt=opt, stamp=ts)
        a("s_endpgm")
        return (name, a.text(), kd(name, 512, sgpr=102, accum=256), 256, 256, LDS_REC)
    qkv_role(a, name + "_q", S_B, S_W, S_D, stamp=ts, opt=opt, hooks=hooks)
    ts()
    for _ in range(opt.get("bdelay", 0)): a("s_sleep 127")
    WL = WoLoader(a, name, S_B, S_WV, opt)
    WL.setup()
    a(f"""
    s_cmp_lt_u32 s{S_B}, 128
    s_cbranch_scc1 {name}_f1
    """)
    WL.step(0)
    a(f"""
    s_sub_u32 s99, s{S_B}, 128
    {name}_f0l:
    s_barrier
    """)
    gen_f0(a, name + "_f0", role=99, noend=True)
    a(f"""
    s_add_u32 s99, s99, 64
    s_cmp_lt_u32 s99, 288
    s_cbranch_scc1 {name}_f0l
    """)
    signal(DBG_F0)
    ts()
    a(f"""
    s_cmp_lg_u32 s{S_B}, 191
    s_cbranch_scc1 {name}_xo2
    s_cmp_lg_u32 s{S_WV}, 0
    s_cbranch_scc1 {name}_xo2
    """)
    if not opt.get("wl2", 0): WL.step(1)
    wait(DBG_F1, 128, "f1b")
    a(f"""
    s_mov_b32 s99, 128
    s_branch {name}_f2_in
    {name}_f2ret:
    s_waitcnt vmcnt(0)
    v_mov_b32 v2, 1
    s_mov_b64 exec, 1
    s_mov_b32 s81, {DBG_F2}
    buffer_atomic_add v2, off, s[{S_W}:{S_W+3}], s81 sc1
    s_mov_b64 exec, -1
    s_branch {name}_xo3
    {name}_xo2:
    """)
    WL.step(1)
    if opt.get("wl2", 0): a.label(f"{name}_xo3")
    WL.step(2)
    if not opt.get("wl2", 0): a.label(f"{name}_xo3")
    WL.step(3)
    a(f"s_branch {name}_xo4")
    a.label(f"{name}_f1")
    W2 = opt.get("wl2", 0)
    gen_f1(a, name + "_f1r", role=S_B, pre_store=(lambda: WL.step(0)) if not W2 else None, loaded=(lambda: WL.step(0)) if W2 else None)
    signal(DBG_F1)
    ts()
    if not W2: WL.step(1)
    wait(DBG_F1, 128, "f1")
    if opt.get("fstag"):
        a(f"s_lshr_b32 s81, s{S_B}, 5")
        a.label(f"{name}_fs")
        a(f"""
        s_cmp_eq_u32 s81, 0
        s_cbranch_scc1 {name}_fsd
        s_sleep {opt["fstag"]}
        s_sub_u32 s81, s81, 1
        s_branch {name}_fs
        {name}_fsd:
        """)
    a(f"s_mov_b32 s99, s{S_B}")
    gen_f2(a, name + "_f2", role=99, wready=lambda: wait(DBG_F0, 64, "f0", True), mid=lambda: WL.step(1 if W2 else 2), st=ts if opt.get("fst") else None)
    a(f"s_cmp_eq_u32 s99, 128\ns_cbranch_scc1 {name}_f2ret")
    signal(DBG_F2)
    WL.step(2 if W2 else 3)
    ts()
    wait(DBG_F2, 129, "f2")
    gen_f3(a, name + "_f3", role=S_B, ost=opt.get("ost", ""), loaded=(lambda: WL.step(3)) if W2 else None)
    a.label(f"{name}_xo4")
    if opt.get("nox01"): a(f"s_cmp_ge_u32 s{S_B}, 64\ns_cbranch_scc1 {name}_xo5\ns_endpgm\n{name}_xo5:")
    ts()
    WL.step(4)
    xo_role(a, name + "_x", S_B, S_W, S_FAST, S_D, S_VOTE, wd=wdog if wd else None, opt=opt, stamp=ts)
    if opt.get("dbgt"):
        a(f"s_cmp_lg_u32 s{S_WV}, 0\ns_cbranch_scc1 {name}_fin")
        dmax(6)
        a.label(f"{name}_fin")
    a.label(f"{name}_cE")
    a("s_endpgm")
    return (name, a.text(), kd(name, 512, sgpr=102, accum=256), 256, 256, LDS_REC)


if __name__ == "__main__":
    out = sys.argv[1]
    kw = eval(sys.argv[2]) if len(sys.argv) > 2 else {}
    write_file(out, [gen_mega("mega_kernel", **kw)])
```

```python
from common import *
from gen_rec import WS_QX, WS_KX, WS_VT, WS_O, WS_KVM, WS_XB, WS_FL, DBG_VOTE

FL_RP, FL_XF = 192, 256
WS_XCH = 72 * MB


class WoLoader:
    def __init__(self, a, name, S_B, S_WV, opt):
        self.a, self.name, self.S_B, self.S_WV, self.opt = a, name, S_B, S_WV, opt

    def run(self):
        a = self.a
        a(f"""
        s_load_dwordx2 s[52:53], s[0:1], {KA_WO}
        v_and_b32 v202, 63, v0
        v_lshrrev_b32 v200, 3, v202
        v_lshlrev_b32 v200, 11, v200
        v_and_b32 v203, 7, v202
        v_lshl_add_u32 v200, v203, 4, v200
        s_and_b32 s56, s{self.S_B}, 1
        s_lshl_b32 s56, s56, 2
        s_add_u32 s56, s56, s{self.S_WV}
        s_lshl_b32 s56, s56, 20
        s_bfe_u32 s58, s{self.S_B}, 0x40001
        s_lshl_b32 s57, s58, 7
        s_add_u32 s56, s56, s57
        v_add_u32 v200, s56, v200
        s_lshl_b32 s56, s{self.S_WV}, 15
        s_lshl_b32 s57, s58, 12
        v_lshrrev_b32 v201, 5, v202
        v_bfe_u32 v204, v202, 2, 2
        v_lshl_add_u32 v201, v201, 3, v204
        v_lshlrev_b32 v201, 7, v201
        v_bfe_u32 v204, v202, 4, 1
        v_lshl_add_u32 v201, v204, 5, v201
        v_and_b32 v203, 3, v202
        v_lshl_add_u32 v201, v203, 3, v201
        v_add_u32 v201, s56, v201
        s_waitcnt lgkmcnt(0)
        s_mov_b32 s54, {8*MB}
        s_mov_b32 s55, 0x00020000
        """)
        def dma(p):
            a(f"s_add_u32 m0, s56, {(p & 31) * 1024}")
            a(f"s_add_u32 s58, s57, {p * 512}")
            a(f"s_and_b32 s58, s58, 0x7fff")
            a(f"s_lshl_b32 s58, s58, 5")
            a(f"buffer_load_dwordx4 v200, s[52:55], s58 offen lds")
        D = self.opt.get("wdepth", 4)
        for p in range(D): dma(p)
        for k4 in range(16):
            a(f"s_waitcnt vmcnt({min(D - 4, 60 - 4 * k4)})")
            for ks in range(2 * k4, 2 * k4 + 2):
                for ct in range(2):
                    for j in range(2):
                        d = (2 * ks + ct) * 4 + 2 * j
                        a(f"ds_read_b64_tr_b16 a[{d}:{d+1}], v201 offset:{(ks & 15) * 2048 + j * 512 + ct * 64}")
            a("s_waitcnt lgkmcnt(0)")
            for p in range(4 * k4 + D, min(64, 4 * k4 + D + 4)): dma(p)


def schedule(start, dur=3.7, bdur=11.0, sb=48, t0=22.0, step=2.0, fixed={}):
    free = list(start)
    masks = [0] * 6
    for s in list(range(0, sb, 4)) + list(range(sb, 64)):
        g = fixed[s] if s in fixed else min(range(6), key=lambda i: (round(free[i], 3), i))
        free[g] = max(free[g], t0 + step * (s + 3 if s < sb else s)) + (bdur if s < sb else dur)
        masks[g] |= 1 << s
    return masks


def xo_role(a: Asm, name, S_B, S_WS, S_FAST, S_DBG, S_VOTE, wd=None, opt={}, stamp=None):
    S_O = 12
    S_WAVE, S_G, S_C, S_T0, S_T1, S_SEG, S_CST = 16, 17, 18, 20, 21, 22, 24
    S_QO, S_KO, S_VO, S_MO, S_OW, S_OR, S_OUT, S_NEED = 26, 27, 28, 29, 40, 41, 42, 43
    S_CUR, S_RET, S_SLOT, S_QO2, S_KO2, S_ROT, S_QOK, S_N, S_XW, S_XR = 45, 46, 47, 48, 49, 50, 51, 8, 9, 10
    S_MASK = 60
    SRD = f"s[{S_WS}:{S_WS+3}]"
    V_L, V_L16, V_T0, V_T1, V_T2 = 1, 2, 3, 4, 5
    V_OKM, V_L8, V_OOW, V_TH0, V_TH1, V_NEG, V_FGP, V_FRP, V_FXF, V_FMY, V_LR, V_LW, V_OUT, V_T16 = 6, 7, 8, 9, 10, 11, 12, 13, 14, 15, 16, 17, 18, 19
    V_ONE = 20
    BQ, BK, BV, BKM, BVM = 24, 56, 88, 120, 136
    BF, BN, BPF = 152, 12, 10
    ACC, KEEP = 200, 232
    BTH, BFL, BND, V_FPF, V_LR2 = 248, 249, 250, 251, 252
    BO, BOB, BS, BP, BSM = 152, 184, 200, 212, 220
    SB = opt["sched"].get("sb", 48)
    QF = opt.get("qflag", 0)

    def poll_guard(code):
        if wd: wd(code)

    def st2(lines):
        l = a.newlabel(name + "_st")
        a(f"s_cmp_eq_u32 s{S_FAST}, 1\ns_cbranch_scc1 {l}f")
        for x in lines: a(x + " sc1")
        a(f"s_branch {l}d\n{l}f:")
        for x in lines: a(x)
        a.label(f"{l}d")

    a(f"""
    s_load_dwordx2 s[{S_O}:{S_O+1}], s[0:1], {KA_OUT}
    v_lshrrev_b32 v{V_T0}, 6, v0
    v_and_b32 v{V_L}, 63, v0
    v_readfirstlane_b32 s{S_WAVE}, v{V_T0}
    s_lshr_b32 s{S_G}, s{S_B}, 5
    s_and_b32 s{S_C}, s{S_B}, 31
    v_lshlrev_b32 v{V_L16}, 4, v{V_L}
    v_lshlrev_b32 v{V_T16}, 4, v0
    v_lshlrev_b32 v{V_L8}, 3, v{V_L}
    s_waitcnt lgkmcnt(0)
    s_mov_b32 s{S_O+2}, {8*MB}
    s_mov_b32 s{S_O+3}, 0x00020000
    s_mov_b32 s{S_CST}, 0x3e0293ee
    s_mov_b64 s[{S_MASK}:{S_MASK+1}], 0
    s_lshr_b32 s{S_ROT}, s{S_C}, 1
    s_lshl_b32 s{S_ROT}, s{S_ROT}, 12
    s_mov_b32 s{S_SLOT}, 0
    s_mov_b32 s{S_QOK}, {0 if QF else 1}
    s_lshl_b32 s{S_T0}, s{S_G}, 3
    s_add_u32 s{S_T0}, s{S_T0}, s{S_WAVE}
    s_lshl_b32 s{S_T0}, s{S_T0}, 18
    s_lshl_b32 s{S_T1}, s{S_C}, 13
    s_add_u32 s{S_T0}, s{S_T0}, s{S_T1}
    s_add_u32 s{S_T0}, s{S_T0}, {WS_O}
    v_lshlrev_b32 v26, 7, v{V_L}
    buffer_load_dword v28, v26, {SRD}, s{S_T0} offen sc1
    buffer_load_dword v30, v26, {SRD}, s{S_T0} offen offset:64 sc1
    s_add_u32 s{S_T0}, s{S_T0}, {MB}
    buffer_load_dword v29, v26, {SRD}, s{S_T0} offen sc1
    buffer_load_dword v31, v26, {SRD}, s{S_T0} offen offset:64 sc1
    s_lshl_b32 s{S_T0}, s{S_B}, 15
    s_add_u32 s{S_T0}, s{S_T0}, {WS_XCH}
    v_lshlrev_b32 v26, 7, v0
    buffer_load_dword v32, v26, {SRD}, s{S_T0} offen sc1
    buffer_load_dword v33, v26, {SRD}, s{S_T0} offen offset:64 sc1
    v_and_b32 v{V_T1}, 15, v{V_L}             ; c
    v_lshrrev_b32 v{V_T2}, 4, v{V_L}          ; g
    v_lshrrev_b32 v{V_T0}, 2, v{V_T1}
    v_lshlrev_b32 v{V_T0}, 1, v{V_T0}
    v_and_b32 v26, 1, v{V_T1}
    v_add_u32 v{V_T0}, v{V_T0}, v26           ; m(c)
    v_lshlrev_b32 v{V_OKM}, 8, v{V_T0}
    v_lshl_add_u32 v{V_OKM}, v{V_T2}, 4, v{V_OKM}
    v_lshlrev_b32 v{V_OOW}, 9, v{V_T2}
    v_lshl_add_u32 v{V_OOW}, v{V_T1}, 4, v{V_OOW}
    v_lshlrev_b32 v26, 2, v{V_T2}
    v_sub_u32 v{BTH}, v{V_T1}, v26
    s_and_b32 s{S_T1}, s{S_WAVE}, 1
    s_lshl_b32 s{S_T1}, s{S_T1}, 4
    v_add_u32 v{V_TH0}, s{S_T1}, v{BTH}
    v_add_u32 v{V_TH1}, -16, v{V_TH0}
    v_mov_b32 v{V_NEG}, 0xff7fffff
    v_mov_b32 v{V_ONE}, 0x3f803f80
    v_mov_b32 v{V_ONE+1}, 0x3f803f80
    v_mov_b32 v{V_ONE+2}, 0x3f803f80
    v_mov_b32 v{V_ONE+3}, 0x3f803f80
    v_bfe_u32 v26, v{V_L}, 1, 2
    v_min_u32 v26, 2, v26
    s_lshl_b32 s{S_T0}, s{S_C}, 8
    s_add_u32 s{S_T0}, s{S_T0}, {WS_FL}
    v_lshlrev_b32 v{V_FGP}, 13, v26
    v_and_b32 v26, 1, v{V_L}
    v_lshl_add_u32 v{V_FGP}, v26, 7, v{V_FGP}
    v_add_u32 v{V_FGP}, s{S_T0}, v{V_FGP}
    v_lshlrev_b32 v{V_FRP}, 7, v26
    s_add_u32 s{S_NEED}, s{S_T0}, {FL_RP * 128}
    v_add_u32 v{V_FRP}, s{S_NEED}, v{V_FRP}
    s_lshl_b32 s{S_T1}, s{S_T1}, 3
    s_add_u32 s{S_T0}, s{S_T0}, s{S_T1}
    s_add_u32 s{S_T0}, s{S_T0}, 8192
    v_mov_b32 v{BFL}, s{S_T0}
    s_mov_b32 vcc_lo, 0xcccccccc
    s_mov_b32 vcc_hi, 0xcccccccc
    v_cndmask_b32 v{BFL}, v{V_FRP}, v{BFL}, vcc
    v_and_b32 v26, 3, v{V_L}
    s_and_b32 s{S_T0}, s{S_C}, 1
    s_lshl_b32 s{S_T0}, s{S_T0}, 2
    s_add_u32 s{S_T0}, s{S_T0}, s{S_WAVE}
    s_lshl_b32 s{S_T0}, s{S_T0}, 2
    s_lshl_b32 s{S_T1}, s{S_G}, 5
    s_add_u32 s{S_T0}, s{S_T0}, s{S_T1}
    v_add_u32 v26, s{S_T0}, v26
    v_lshlrev_b32 v{V_FXF}, 7, v26
    v_add_u32 v{V_FXF}, {WS_FL + FL_XF * 128}, v{V_FXF}
    v_bfrev_b32 v26, 1
    s_lshl_b32 s{S_T0}, s{S_B}, 7
    s_add_u32 s{S_T0}, s{S_T0}, {WS_FL + FL_XF * 128}
    v_mov_b32 v27, s{S_T0}
    s_xor_b32 s{S_T0}, s{S_T0}, 128
    v_mov_b32 v{V_FPF}, s{S_T0}
    v_cmp_eq_u32 vcc, 0, v0
    s_mul_i32 s{S_T0}, s{S_WAVE}, 8704
    v_lshrrev_b32 v{V_LW}, 5, v{V_L}
    v_lshl_add_u32 v{V_LW}, v{V_LW}, 5, v{V_L16}
    v_add_u32 v{V_LW}, s{S_T0}, v{V_LW}
    v_cndmask_b32 v{V_FMY}, v26, v27, vcc
    v_lshrrev_b32 v26, 3, v0
    v_and_b32 v27, 7, v0
    v_mul_u32_u24 v{V_LR}, 544, v27
    v_lshl_add_u32 v{V_LR}, v26, 4, v{V_LR}
    s_and_b32 s{S_T0}, s{S_C}, 1
    s_mul_i32 s{S_T0}, s{S_T0}, 4352
    s_xor_b32 s{S_T1}, s{S_T0}, 4352
    v_add_u32 v{V_LR2}, s{S_T1}, v{V_LR}
    v_add_u32 v{V_LR}, s{S_T0}, v{V_LR}
    v_lshlrev_b32 v{V_OUT}, 12, v26
    v_and_b32 v27, 7, v0
    v_lshl_add_u32 v{V_OUT}, v27, 3, v{V_OUT}
    s_lshl_b32 s{S_T0}, s{S_C}, 6
    v_add_u32 v{V_OUT}, s{S_T0}, v{V_OUT}
    s_barrier
    """)
    if stamp: stamp()
    for g, mk in enumerate(schedule(**opt["sched"])):
        a(f"""
        s_cmp_eq_u32 s{S_G}, {g}
        s_cselect_b32 s{S_MASK}, {hex(mk & 0xffffffff)}, s{S_MASK}
        s_cselect_b32 s{S_MASK+1}, {hex(mk >> 32)}, s{S_MASK+1}
        """)
    a(f"""
    s_ff1_i32_b64 s{S_SEG}, s[{S_MASK}:{S_MASK+1}]
    s_cmp_ge_u32 s{S_SEG}, 64
    s_cbranch_scc1 {name}_fin
    {name}_gp:
    """)
    poll_guard(40)
    a(f"""
    buffer_load_dword v{V_T0}, v{V_FGP}, {SRD}, 0 offen sc1
    s_waitcnt vmcnt(0)
    v_cmp_gt_u32 vcc, 32, v{V_T0}
    s_and_b32 vcc_lo, vcc_lo, {0xfc if QF else 0xff}
    s_cbranch_scc0 {name}_gk
    s_sleep 8
    s_branch {name}_gp
    {name}_gk:
    """)

    def softmax(regs):
        MX, TM = V_T1, V_T0
        a(f"v_max3_f32 v{MX}, v{regs[0]}, v{regs[1]}, v{regs[2]}")
        rest = regs[3:-1]
        while rest:
            a(f"v_max3_f32 v{MX}, v{MX}, v{rest[0]}, v{rest[1]}"); rest = rest[2:]
        a(f"""
        v_max_f32 v{TM}, v{MX}, v{regs[-1]}
        v_max_f32 v{MX}, v{MX}, v{regs[-1]}
        s_nop 1
        v_permlane16_swap_b32 v{MX}, v{TM}
        v_max_f32 v{MX}, v{MX}, v{TM}
        v_max_f32 v{TM}, v{MX}, v{TM}
        s_nop 1
        v_permlane32_swap_b32 v{MX}, v{TM}
        v_max_f32 v{MX}, v{MX}, v{TM}
        v_mul_f32 v{MX}, s{S_CST}, v{MX}
        """)
        for r in regs: a(f"v_fma_f32 v{r}, v{r}, s{S_CST}, -v{MX}")
        for r in regs: a(f"v_exp_f32 v{r}, v{r}")
        a("s_nop 0")

    def pv(nt):
        a(f"v_cvt_pk_bf16_f32 v{BP+4}, v{BS+8}, v{BS+9}\nv_cvt_pk_bf16_f32 v{BP+5}, v{BS+8}, v{BS+9}")
        a(f"v_mfma_f32_16x16x32_bf16 v[{BSM}:{BSM+3}], v[{V_ONE}:{V_ONE+3}], v[{BP}:{BP+3}], 0")
        for i in range(nt):
            a(f"v_mfma_f32_16x16x32_bf16 v[{BO+4*i}:{BO+4*i+3}], v[{BV+4*i}:{BV+4*i+3}], v[{BP}:{BP+3}], 0")
        a.nops(max(0, 6 - nt))
        a(f"v_mfma_f32_16x16x16_bf16 v[{BSM}:{BSM+3}], v[{BP+6}:{BP+7}], v[{BP+4}:{BP+5}], v[{BSM}:{BSM+3}]")
        for i in range(nt):
            a(f"v_mfma_f32_16x16x16_bf16 v[{BO+4*i}:{BO+4*i+3}], v[{BVM+2*i}:{BVM+2*i+1}], v[{BP+4}:{BP+5}], v[{BO+4*i}:{BO+4*i+3}]")
        a.nops(8 - nt)
        a(f"v_rcp_f32 v{BSM}, v{BSM}")
        a.nops(2)
        for i in range(2 * nt):
            a(f"v_pk_mul_f32 v[{BO+2*i}:{BO+2*i+1}], v[{BO+2*i}:{BO+2*i+1}], v[{BSM}:{BSM+1}] op_sel_hi:[1,0]")
        for i in range(2 * nt):
            a(f"v_cvt_pk_bf16_f32 v{BOB+i}, v{BO+2*i}, v{BO+2*i+1}")

    def baddr():
        a(f"""
        s_add_u32 s{S_NEED}, s{S_SEG}, s{S_WAVE}
        s_lshl_b32 s{S_QO}, s{S_NEED}, 18
        s_lshl_b32 s{S_T0}, s{S_C}, 13
        s_add_u32 s{S_QO}, s{S_QO}, s{S_T0}
        s_lshr_b32 s{S_T0}, s{S_NEED}, 1
        s_add_u32 s{S_T0}, s{S_T0}, {32 if QF else 0}
        v_mov_b32 v{BND}, s{S_NEED}
        v_mov_b32 v{V_T0}, s{S_T0}
        s_mov_b32 vcc_lo, 0xcccccccc
        s_mov_b32 vcc_hi, 0xcccccccc
        v_cndmask_b32 v{BND}, v{BND}, v{V_T0}, vcc
        """)
    BL = []
    for base, reg in ((WS_QX, BQ), (WS_KX, BK), (WS_VT, BV)):
        for i in range(8):
            BL.append((base + (i >> 2) * 4096, f"buffer_load_dwordx4 v[{reg+4*i}:{reg+4*i+3}], v{V_L16}, {SRD}, s{S_T1} offen offset:{(i & 3) * 1024} sc1"))
    for u in range(4):
        BL.append((WS_KVM, f"buffer_load_dwordx4 v[{BKM+4*u}:{BKM+4*u+3}], v{V_OKM}, {SRD}, s{S_T1} offen offset:{64*u} sc1"))
    for i in range(8):
        BL.append((WS_KVM + 2048, f"buffer_load_dwordx2 v[{BVM+2*i}:{BVM+2*i+1}], v{V_L8}, {SRD}, s{S_T1} offen offset:{512*(i >> 1) + 2048*(i & 1)} sc1"))
    def bloads(part):
        cur = None
        for base, l in part:
            if base != cur:
                a(f"s_add_u32 s{S_T1}, s{S_QO}, {base}"); cur = base
            a(l)

    def owaddr(perwave):
        a(f"""
        s_lshl_b32 s{S_OW}, s{S_G}, 3
        s_add_u32 s{S_OW}, s{S_OW}, s{S_SLOT}
        {f"s_add_u32 s{S_OW}, s{S_OW}, s{S_WAVE}" if perwave else ""}
        s_lshl_b32 s{S_OW}, s{S_OW}, 18
        s_add_u32 s{S_OW}, s{S_OW}, {WS_O}
        s_lshl_b32 s{S_T0}, s{S_C}, 13
        s_add_u32 s{S_OW}, s{S_OW}, s{S_T0}
        v_mov_b32 v{BP+6}, v{V_ONE}
        v_mov_b32 v{BP+7}, 0
        """)

    a.label(f"{name}_job")
    a(f"s_cmp_ge_u32 s{S_SEG}, {SB}\ns_cbranch_scc1 {name}_single")
    baddr()
    a.label(f"{name}_btop")
    poll_guard(46)
    a(f"""
    buffer_load_dword v{V_T0}, v{BFL}, {SRD}, 0 offen sc1
    s_waitcnt vmcnt(0)
    v_cmp_ge_u32 vcc, v{BND}, v{V_T0}
    s_cbranch_vccz {name}_bk
    s_sleep 8
    s_branch {name}_btop
    {name}_bk:
    """)
    bloads(BL)
    a.label(f"{name}_batt")
    owaddr(True)
    a(f"s_add_u32 s{S_KO}, s{S_OW}, 4096\ns_mov_b32 s{S_N}, 4\ns_waitcnt vmcnt(0)")
    if stamp and opt.get("bst"): stamp()
    for i in range(4):
        a(f"v_swap_b32 v{BVM+4*i+1}, v{BVM+4*i+2}")
    for qt in range(2):
        tiles = [0, 2] if qt == 0 else [0, 1, 2]
        for u in range(4):
            q = BQ + 8 * u + 4 * qt
            for t in tiles:
                d = BS + 4 * t
                k = BK + 8 * u + 4 * t if t < 2 else BKM + 4 * u
                c = "0" if u == 0 else f"v[{d}:{d+3}]"
                a(f"v_mfma_f32_16x16x32_bf16 v[{d}:{d+3}], v[{k}:{k+3}], v[{q}:{q+3}], {c}")
        a.nops(6)
        for r in range(4):
            a(f"v_cmp_gt_i32 vcc, {r}, v{BTH}")
            a("s_nop 1")
            a(f"v_cndmask_b32 v{BS+4*qt+r}, v{BS+4*qt+r}, v{V_NEG}, vcc")
        softmax([BS + i for i in range(4 * (qt + 1))] + [BS + 8, BS + 9])
        for i in range(2 * (qt + 1)):
            a(f"v_cvt_pk_bf16_f32 v{BP+i}, v{BS+2*i}, v{BS+2*i+1}")
        if qt == 0: a(f"v_mov_b32 v{BP+2}, 0\nv_mov_b32 v{BP+3}, 0")
        pv(8)
        st2([f"buffer_store_dwordx4 v[{BOB+4*i}:{BOB+4*i+3}], v{V_OOW}, {SRD}, s{S_OW if i < 2 else S_KO} offen offset:{(i & 1) * 2048 + qt * 256}" for i in range(4)])
    a(f"s_branch {name}_pub")

    def sloads():
        a(f"""
        s_lshl_b32 s{S_KO}, s{S_SEG}, 18
        s_lshl_b32 s{S_T0}, s{S_C}, 13
        s_add_u32 s{S_KO}, s{S_KO}, s{S_T0}
        s_add_u32 s{S_MO}, s{S_KO}, {WS_KVM}
        s_and_b32 s{S_T0}, s{S_WAVE}, 1
        s_lshl_b32 s{S_T0}, s{S_T0}, 10
        s_add_u32 s{S_QO}, s{S_KO}, s{S_T0}
        s_add_u32 s{S_QO}, s{S_QO}, {WS_QX}
        s_lshr_b32 s{S_T0}, s{S_WAVE}, 1
        s_lshl_b32 s{S_T0}, s{S_T0}, 12
        s_add_u32 s{S_VO}, s{S_KO}, s{S_T0}
        s_add_u32 s{S_VO}, s{S_VO}, {WS_VT}
        s_add_u32 s{S_KO}, s{S_KO}, {WS_KX}
        s_add_u32 s{S_QO2}, s{S_QO}, 4096
        s_add_u32 s{S_KO2}, s{S_KO}, 4096
        """)
        for u in range(4):
            a(f"buffer_load_dwordx4 v[{BQ+4*u}:{BQ+4*u+3}], v{V_L16}, {SRD}, s{S_QO if u < 2 else S_QO2} offen offset:{(u & 1) * 2048} {opt.get('ss', 'sc1')}")
        for i in range(8):
            a(f"buffer_load_dwordx4 v[{BK+4*i}:{BK+4*i+3}], v{V_L16}, {SRD}, s{S_KO if i < 4 else S_KO2} offen offset:{(i & 3) * 1024} {opt.get('ss', 'sc1')}")
        for i in range(4):
            a(f"buffer_load_dwordx4 v[{BV+4*i}:{BV+4*i+3}], v{V_L16}, {SRD}, s{S_VO} offen offset:{i * 1024} {opt.get('ss', 'sc1')}")
    a.label(f"{name}_single")
    if QF:
        a(f"s_cmp_eq_u32 s{S_QOK}, 1\ns_cbranch_scc1 {name}_gqd")
        a.label(f"{name}_gq")
        poll_guard(48)
        a(f"""
        buffer_load_dword v{V_T0}, v{V_FGP}, {SRD}, 0 offen sc1
        s_waitcnt vmcnt(0)
        v_cmp_ne_u32 vcc, 64, v{V_T0}
        s_and_b32 vcc_lo, vcc_lo, 0xc
        s_cbranch_scc0 {name}_gqd
        s_sleep 8
        s_branch {name}_gq
        {name}_gqd:
        s_mov_b32 s{S_QOK}, 1
        """)
    sloads()
    a.label(f"{name}_satt")
    owaddr(False)
    a(f"""
    s_lshr_b32 s{S_T0}, s{S_WAVE}, 1
    s_lshl_b32 s{S_T1}, s{S_T0}, 12
    s_add_u32 s{S_OW}, s{S_OW}, s{S_T1}
    s_lshl_b32 s{S_T0}, s{S_T0}, 10
    s_add_u32 s{S_VO}, s{S_MO}, s{S_T0}
    s_add_u32 s{S_VO}, s{S_VO}, 2048
    s_and_b32 s{S_T0}, s{S_WAVE}, 1
    s_lshl_b32 s{S_T0}, s{S_T0}, 8
    s_add_u32 s{S_OW}, s{S_OW}, s{S_T0}
    s_mov_b32 s{S_N}, 1
    s_waitcnt vmcnt(0)
    """)
    for u in range(4):
        for kt in range(2):
            d = BS + 4 * kt
            c = "0" if u == 0 else f"v[{d}:{d+3}]"
            k = BK + 8 * u + 4 * kt
            a(f"v_mfma_f32_16x16x32_bf16 v[{d}:{d+3}], v[{k}:{k+3}], v[{BQ+4*u}:{BQ+4*u+3}], {c}")
    a.nops(6)
    for kt, th in ((0, V_TH0), (1, V_TH1)):
        for r in range(4):
            a(f"v_cmp_gt_i32 vcc, {r}, v{th}")
            a("s_nop 1")
            a(f"v_cndmask_b32 v{BS+4*kt+r}, v{BS+4*kt+r}, v{V_NEG}, vcc")
    a(f"s_cmp_ge_u32 s{S_SEG}, 63\ns_cbranch_scc1 {name}_dx")
    a.label(f"{name}_rp")
    poll_guard(41)
    a(f"""
    buffer_load_dword v{V_T0}, v{V_FRP}, {SRD}, 0 offen sc1
    s_waitcnt vmcnt(0)
    v_cmp_ge_u32 vcc, s{S_SEG}, v{V_T0}
    s_cbranch_vccz {name}_rk
    s_sleep 2
    s_branch {name}_rp
    {name}_rk:
    """)
    for u in range(4):
        a(f"buffer_load_dwordx4 v[{BKM+4*u}:{BKM+4*u+3}], v{V_OKM}, {SRD}, s{S_MO} offen offset:{64*u} sc1")
    for i in range(4):
        a(f"buffer_load_dwordx2 v[{BVM+2*i}:{BVM+2*i+1}], v{V_L8}, {SRD}, s{S_VO} offen offset:{512*(i >> 1) + 2048*(i & 1)} sc1")
    a.label(f"{name}_rd")
    d = BS + 8
    for u in range(4):
        a(f"s_waitcnt vmcnt({7-u})")
        c = "0" if u == 0 else f"v[{d}:{d+3}]"
        a(f"v_mfma_f32_16x16x32_bf16 v[{d}:{d+3}], v[{BKM+4*u}:{BKM+4*u+3}], v[{BQ+4*u}:{BQ+4*u+3}], {c}")
    a(f"""
    s_waitcnt vmcnt(0)
    v_swap_b32 v{BVM+1}, v{BVM+2}
    v_swap_b32 v{BVM+5}, v{BVM+6}
    s_nop 1
    """)
    softmax([BS + i for i in range(10)])
    for i in range(4):
        a(f"v_cvt_pk_bf16_f32 v{BP+i}, v{BS+2*i}, v{BS+2*i+1}")
    pv(4)
    st2([f"buffer_store_dwordx4 v[{BOB+4*i}:{BOB+4*i+3}], v{V_OOW}, {SRD}, s{S_OW} offen offset:{i * 2048}" for i in range(2)])

    a.label(f"{name}_pub")
    a(f"""
    s_add_u32 s{S_CUR}, s{S_SEG}, s{S_N}
    v_mov_b32 v{V_T1}, s{S_CUR}
    s_waitcnt vmcnt(0)
    s_barrier
    """)
    st2([f"buffer_store_dword v{V_T1}, v{V_FMY}, {SRD}, 0 offen"])
    a(f"""
    s_lshl_b32 s{S_OR}, s{S_G}, 3
    s_add_u32 s{S_OR}, s{S_OR}, s{S_SLOT}
    s_lshl_b32 s{S_OR}, s{S_OR}, 3
    s_and_b32 s{S_T0}, s{S_C}, 1
    s_lshl_b32 s{S_T0}, s{S_T0}, 2
    s_add_u32 s{S_OR}, s{S_OR}, s{S_T0}
    s_add_u32 s{S_OR}, s{S_OR}, s{S_WAVE}
    s_lshl_b32 s{S_OR}, s{S_OR}, 15
    s_add_u32 s{S_OR}, s{S_OR}, {WS_O}
    s_lshl_b32 s{S_XR}, s{S_B}, 3
    s_add_u32 s{S_XR}, s{S_XR}, s{S_SLOT}
    s_lshl_b32 s{S_XR}, s{S_XR}, 12
    s_add_u32 s{S_XR}, s{S_XR}, {WS_XCH}
    s_xor_b32 s{S_XW}, s{S_XR}, 32768
    s_lshl_b32 s{S_OUT}, s{S_SEG}, 17
    s_xor_b32 s{S_SLOT}, s{S_SLOT}, 4
    s_bitset0_b64 s[{S_MASK}:{S_MASK+1}], s{S_SEG}
    s_ff1_i32_b64 s{S_SEG}, s[{S_MASK}:{S_MASK+1}]
    s_min_u32 s{S_SEG}, s{S_SEG}, 64
    """)
    if stamp and opt.get("bst"): stamp()
    baddr()
    a(f"s_cmp_ge_u32 s{S_SEG}, 64\ns_cbranch_scc1 {name}_xp")
    a(f"buffer_load_dword v{V_T2}, v{BFL}, {SRD}, 0 offen sc1")
    a(f"buffer_load_dword v{V_T1}, v{V_FGP}, {SRD}, 0 offen sc1")
    a.label(f"{name}_xp")
    poll_guard(47)
    a(f"""
    buffer_load_dword v{V_T0}, v{V_FXF}, {SRD}, 0 offen sc1
    s_waitcnt vmcnt(0)
    v_cmp_gt_u32 vcc, s{S_CUR}, v{V_T0}
    s_cbranch_vccnz {name}_xp
    v_cmp_ne_u32 vcc, 64, v{V_T1}
    s_and_b32 vcc_lo, vcc_lo, 0xc
    s_cselect_b32 s{S_QOK}, s{S_QOK}, 1
    v_cmp_ge_u32 vcc, v{BND}, v{V_T2}
    s_cmp_eq_u64 vcc, 0
    s_cselect_b32 s{S_RET}, 1, 0
    s_cmp_lt_u32 s{S_SEG}, {SB}
    s_cselect_b32 s{S_RET}, s{S_RET}, 0
    s_cmp_eq_u32 s{S_RET}, 1
    s_cselect_b32 s{S_QO}, s{S_QO}, 0x80000000
    """)
    def proj(n):
        q = []
        extra = list(BL) if n > 1 else []
        def fl(f):
            i = f & 31
            d = BF + 4 * (f % BN)
            if i % 4 == 0:
                if i == 0 and f: a(f"s_add_u32 s{S_OR}, s{S_OR}, {1 << 18}")
                a(f"s_add_u32 s{S_T0}, s{S_ROT}, {i * 1024}")
                a(f"s_and_b32 s{S_T0}, s{S_T0}, 0x7fff")
                a(f"s_add_u32 s{S_T0}, s{S_T0}, s{S_OR}")
            a(f"buffer_load_dwordx4 v[{d}:{d+3}], v{V_L16}, {SRD}, s{S_T0} offen offset:{(i & 3) * 1024} sc1")
            q.append(f)
        for f in range(BPF): fl(f)
        cur = None
        for f in range(32 * n):
            i = f & 31
            a(f"s_waitcnt vmcnt({len(q) - 1 - q.index(f)})")
            d = BF + 4 * (f % BN)
            if i == 0 and f: a("s_waitcnt lgkmcnt(0)")
            for ct in range(2):
                ac = ACC + 16 * ct
                c = "0" if i == 0 else f"v[{ac}:{ac+15}]"
                a(f"v_mfma_f32_32x32x16_bf16 v[{ac}:{ac+15}], a[{8*i+4*ct}:{8*i+4*ct+3}], v[{d}:{d+3}], {c}")
            if f + BPF < 32 * n: fl(f + BPF)
            if extra and f % 3 == 1:
                base, l = extra.pop(0)
                if base != cur:
                    a(f"s_add_u32 s{S_T1}, s{S_QO}, {base}"); cur = base
                a(l); q.append("x")
            if i == 31:
                sgm = f >> 5
                if sgm == 2: a(f"v_add_u32 v{V_T2}, 69632, v{V_LW}")
                a.nops(12)
                for qq in range(8):
                    a(f"ds_write_b128 v{V_LW if sgm < 2 else V_T2}, v[{ACC+4*qq}:{ACC+4*qq+3}] offset:{1088*(qq & 3) + 4352*(qq >> 2) + 34816*(sgm & 1)}")
                if stamp and opt.get("bst") and f == 32 * n - 1: stamp()
        assert not extra
        l = a.newlabel(name + "_sp")
        a(f"""
        s_sub_u32 s{S_T0}, s{S_SEG}, {SB}
        s_cmp_lt_u32 s{S_T0}, {64 - SB}
        s_cselect_b32 s{S_T0}, s{S_QOK}, 0
        s_cmp_eq_u32 s{S_T0}, 1
        s_cbranch_scc0 {l}
        s_mov_b32 s{S_RET}, 2
        """)
        sloads()
        a.label(l)
        a(f"""
        v_mov_b32 v{V_T0}, v{V_LR2}
        v_mov_b32 v{V_T1}, s{S_CUR}
        s_waitcnt lgkmcnt(0)
        v_mov_b32 v{V_T2}, v{V_LR}
        s_barrier
        """)
    if stamp and opt.get("bst"): stamp()
    a(f"s_cmp_eq_u32 s{S_N}, 1\ns_cbranch_scc1 {name}_f1")
    def sum4(R, D):
        a(f"""
        v_pk_add_f32 v[{R}:{R+1}], v[{R}:{R+1}], v[{R+4}:{R+5}]
        v_pk_add_f32 v[{R+2}:{R+3}], v[{R+2}:{R+3}], v[{R+6}:{R+7}]
        v_pk_add_f32 v[{R+8}:{R+9}], v[{R+8}:{R+9}], v[{R+12}:{R+13}]
        v_pk_add_f32 v[{R+10}:{R+11}], v[{R+10}:{R+11}], v[{R+14}:{R+15}]
        v_pk_add_f32 v[{D}:{D+1}], v[{R}:{R+1}], v[{R+8}:{R+9}]
        v_pk_add_f32 v[{D+2}:{D+3}], v[{R+2}:{R+3}], v[{R+10}:{R+11}]
        """)
    def fin(n, tag):
        R = BF
        def rd(v, i, dst):
            if i == 2: a(f"v_add_u32 v{v}, 69632, v{v}")
            for w in range(4):
                a(f"ds_read_b128 v[{dst+4*w}:{dst+4*w+3}], v{v} offset:{8704*w + 34816*(i & 1)}")
        for i in range(min(n, 3)): rd(V_T0, i, R + 16 * i)
        for i in range(n):
            a(f"s_waitcnt lgkmcnt({4 * (min(n, i + 3) - i - 1)})")
            sum4(R + 16 * i, R + 16 * i)
            if i + 3 < n: rd(V_T0, i + 3, R + 16 * (i + 3))
        lines = []
        for i in range(n):
            a(f"s_add_u32 s{(S_QO2, S_KO2, S_KO, S_VO)[i]}, s{S_XW}, {4096 * i}")
            lines.append(f"buffer_store_dwordx4 v[{R+16*i}:{R+16*i+3}], v{V_T16}, {SRD}, s{(S_QO2, S_KO2, S_KO, S_VO)[i]} offen")
        st2(lines)
        Q = ACC + 16
        for i in range(n):
            rd(V_T2, i, Q)
            a("s_waitcnt lgkmcnt(0)")
            sum4(Q, KEEP + 4 * i)
        a("s_waitcnt vmcnt(0)\ns_barrier")
        st2([f"buffer_store_dword v{V_T1}, v{V_FMY}, {SRD}, 0 offen offset:64"])
        a.label(f"{name}_pf{tag}")
        poll_guard(49)
        a(f"""
        buffer_load_dword v{V_T0}, v{V_FPF}, {SRD}, 0 offen offset:64 sc1
        s_waitcnt vmcnt(0)
        v_cmp_gt_u32 vcc, s{S_CUR}, v{V_T0}
        s_cbranch_vccnz {name}_pf{tag}
        """)
        for i in range(n):
            a(f"buffer_load_dwordx4 v[{Q+4*i}:{Q+4*i+3}], v{V_T16}, {SRD}, s{S_XR} offen sc1")
            if i < n - 1: a(f"s_add_u32 s{S_XR}, s{S_XR}, 4096")
        for i in range(n):
            r, k = Q + 4 * i, KEEP + 4 * i
            a(f"""
            s_waitcnt vmcnt({n - 1})
            v_pk_add_f32 v[{r}:{r+1}], v[{r}:{r+1}], v[{k}:{k+1}]
            v_pk_add_f32 v[{r+2}:{r+3}], v[{r+2}:{r+3}], v[{k+2}:{k+3}]
            v_cvt_pk_bf16_f32 v{r}, v{r}, v{r+1}
            v_cvt_pk_bf16_f32 v{r+1}, v{r+2}, v{r+3}
            buffer_store_dwordx2 v[{r}:{r+1}], v{V_OUT}, s[{S_O}:{S_O+3}], s{S_OUT} offen
            s_add_u32 s{S_OUT}, s{S_OUT}, {1 << 17}
            """)
    proj(4)
    fin(4, "a")
    a(f"s_branch {name}_f2\n{name}_f1:")
    proj(1)
    fin(1, "b")
    a.label(f"{name}_f2")
    if stamp: stamp()
    a(f"""
    s_cmp_eq_u32 s{S_RET}, 1
    s_cbranch_scc1 {name}_batt
    s_cmp_eq_u32 s{S_RET}, 2
    s_cbranch_scc1 {name}_satt
    s_cmp_lt_u32 s{S_SEG}, 64
    s_cbranch_scc1 {name}_job
    s_branch {name}_fin
    """)

    a.label(f"{name}_dx")
    D, SEL, LA, T = BF, BF + 8, BF + 10, BF + 12
    a(f"""
    buffer_load_dword v{V_T0}, off, s[{S_DBG}:{S_DBG+3}], 0 offset:{DBG_VOTE} sc1
    v_and_b32 v{V_T1}, 15, v{V_L}
    v_lshrrev_b32 v{V_T2}, 4, v{V_L}
    v_and_b32 v{SEL}, 1, v{V_T1}
    v_lshlrev_b32 v{SEL}, 4, v{SEL}
    v_mov_b32 v{SEL+1}, 0x3f80
    v_lshlrev_b32 v{SEL+1}, v{SEL}, v{SEL+1}
    v_lshrrev_b32 v{V_T1}, 2, v{V_T1}
    v_cmp_eq_u32 vcc, v{V_T1}, v{V_T2}
    v_mov_b32 v{SEL}, 0
    s_waitcnt vmcnt(0)
    v_cndmask_b32 v{SEL+1}, 0, v{SEL+1}, vcc
    v_readfirstlane_b32 s{S_T0}, v{V_T0}
    s_and_b32 s{S_T1}, s{S_SEG}, 1
    s_lshl_b32 s{S_T1}, s{S_T1}, 20
    s_lshl_b32 s{S_QO}, s{S_C}, 14
    s_add_u32 s{S_QO}, s{S_QO}, s{S_T1}
    s_add_u32 s{S_QO}, s{S_QO}, {WS_XB}
    s_lshr_b32 s{S_T0}, s{S_T0}, 15
    s_cmp_gt_u32 s{S_T0}, s{S_VOTE}
    s_cselect_b32 s{S_T0}, 8192, 0
    s_add_u32 s{S_QO}, s{S_QO}, s{S_T0}
    s_bfe_u32 s{S_T0}, s{S_C}, 0x10001
    s_lshl_b32 s{S_T0}, s{S_T0}, 12
    s_add_u32 s{S_QO}, s{S_QO}, s{S_T0}
    s_add_u32 s{S_QO2}, s{S_QO}, {32 << 14}
    s_lshr_b32 s{S_T0}, s{S_WAVE}, 1
    s_lshl_b32 s{S_T0}, s{S_T0}, 11
    s_xor_b32 s{S_KO}, s{S_QO}, 4096
    s_add_u32 s{S_KO}, s{S_KO}, s{S_T0}
    s_add_u32 s{S_KO2}, s{S_KO}, {32 << 14}
    s_lshl_b32 s{S_T0}, s{S_WAVE}, 10
    s_add_u32 s{S_QO}, s{S_QO}, s{S_T0}
    s_add_u32 s{S_QO2}, s{S_QO2}, s{S_T0}
    v_add_u32 v{LA}, s{S_T0}, v{V_L16}
    {name}_dr:
    """)
    poll_guard(43)
    a(f"""
    buffer_load_dword v{V_T0}, v{V_FRP}, {SRD}, 0 offen sc1
    s_waitcnt vmcnt(0)
    v_cmp_gt_u32 vcc, s{S_SEG}, v{V_T0}
    s_cbranch_vccz {name}_dp
    s_sleep 2
    s_branch {name}_dr
    {name}_dp:
    """)
    poll_guard(44)
    for j in range(2):
        for m in range(2):
            d = D + 4 * j + 2 * m
            a(f"buffer_load_dwordx2 v[{d}:{d+1}], v{V_L8}, {SRD}, s{S_QO if j == 0 else S_QO2} offen offset:{512*m} sc1")
    a("s_waitcnt vmcnt(0)")
    for j in range(2):
        for m in range(2):
            d = D + 4 * j + 2 * m
            t = T + 4 * m
            c = "0" if j == 0 else f"v[{t}:{t+3}]"
            a(f"v_mfma_f32_16x16x16_bf16 v[{t}:{t+3}], v[{d}:{d+1}], v[{SEL}:{SEL+1}], {c}")
    a(f"""
    v_or3_b32 v{V_T0}, v{D}, v{D+2}, v{D+4}
    v_or_b32 v{V_T0}, v{V_T0}, v{D+6}
    v_and_b32 v{V_T0}, 1, v{V_T0}
    v_cmp_ne_u32 vcc, 0, v{V_T0}
    s_nop 3
    s_cbranch_vccnz {name}_dp
    """)
    for i in range(4):
        a(f"v_cvt_pk_bf16_f32 v{D+i}, v{T+2*i}, v{T+2*i+1}")
    a(f"ds_write_b128 v{LA}, v[{D}:{D+3}] offset:40960")
    a("s_waitcnt lgkmcnt(0)\ns_barrier")
    for u in range(4):
        a(f"ds_read_b128 v[{BKM+4*u}:{BKM+4*u+3}], v{V_L16} offset:{40960 + 1024*u}")
    a.label(f"{name}_dv")
    poll_guard(45)
    for i in range(4):
        a(f"buffer_load_dwordx2 v[{BVM+2*i}:{BVM+2*i+1}], v{V_L8}, {SRD}, s{S_KO if (i & 1) == 0 else S_KO2} offen offset:{1024*(i >> 1)} sc1")
    a(f"""
    s_waitcnt vmcnt(0) lgkmcnt(0)
    v_or3_b32 v{V_T0}, v{BVM}, v{BVM+2}, v{BVM+4}
    v_or_b32 v{V_T0}, v{V_T0}, v{BVM+6}
    v_and_b32 v{V_T0}, 1, v{V_T0}
    v_cmp_ne_u32 vcc, 0, v{V_T0}
    s_cbranch_vccnz {name}_dv
    s_branch {name}_rd
    {name}_fin:
    """)
```
